```python
import torch

def _softmax(x, axis=-1):
    return torch.softmax(x, dim=axis)
def _gelu(x):
    return torch.nn.functional.gelu(x, approximate="tanh")
def _silu(x):
    return torch.nn.functional.silu(x)
def _sigmoid(x):
    return torch.sigmoid(x)
def _layernorm(x, axis=-1, eps=1e-5):
    m = x.mean(dim=axis, keepdim=True)
    v = x.var(dim=axis, keepdim=True, unbiased=False)
    return (x - m) / torch.sqrt(v + eps)
def _scatter_add(tgt, idx, src, axis=0):
    return tgt.clone().index_add_(axis, idx, src)
def _segment_sum(src, seg, n):
    out = torch.zeros((n,) + src.shape[1:], dtype=src.dtype)
    return out.index_add_(0, seg, src)
def _pad(x, pw):
    flat = tuple(v for pair in reversed(pw) for v in pair)
    return torch.nn.functional.pad(x, flat)

kernel_name = 'parallel_sum__mha_block__mixer_s_mlp__prompt'

def setup_inputs():

    _w = (lambda a: (lambda t: t.to(torch.bfloat16) if t.is_floating_point() else t)(torch.as_tensor(a)))
    def _A_setup():
        B, S, D, H = 1, 2048, 448, 16
        return {
            "x": _w((lambda *s: torch.randn(*s, dtype=torch.bfloat16) * 0.05)(B, S, D)),
            "wqkv": _w((lambda *s: torch.randn(*s, dtype=torch.bfloat16) * 0.1)(D, 3 * D)),
            "wo": _w((lambda *s: torch.randn(*s, dtype=torch.bfloat16) * 0.05)(D, D)),
        }
    _A_in = _A_setup()

    def _B_setup():
        B, S, D, F = 1, 2048, 448, 1792
        return {
            "x":  _w((lambda *s: torch.randn(*s, dtype=torch.bfloat16) * 0.05)(B, S, D)),
            "w1": _w((lambda *s: torch.randn(*s, dtype=torch.bfloat16) * 1.6)(D, D) * (D ** -0.5)),
            "w2": _w((lambda *s: torch.randn(*s, dtype=torch.bfloat16) * 1.6)(D, D) * (D ** -0.5)),
            "w3": _w((lambda *s: torch.randn(*s, dtype=torch.bfloat16) * 1.6)(D, F) * (D ** -0.5)),
            "w4": _w((lambda *s: torch.randn(*s, dtype=torch.bfloat16) * 1.6)(F, D) * (F ** -0.5)),
        }
    _B_in = _B_setup()

    return {
        "A_x": _A_in["x"],
        "A_wqkv": _A_in["wqkv"],
        "A_wo": _A_in["wo"],
        "B_x": _B_in["x"],
        "B_w1": _B_in["w1"],
        "B_w2": _B_in["w2"],
        "B_w3": _B_in["w3"],
        "B_w4": _B_in["w4"],
    }

def reference(A_x, A_wqkv, A_wo, B_x, B_w1, B_w2, B_w3, B_w4):
    def _A_ref(x, wqkv, wo):
        B, S, D = x.shape
        H = 16
        Dh = D // H
        qkv = (lambda x, *d: x.permute(*d))((x @ wqkv).reshape(B, S, 3, H, Dh), 2, 0, 3, 1, 4)
        q, k, v = qkv[0], qkv[1], qkv[2]
        scores = torch.einsum("bhqd,bhkd->bhqk", q, k) * (Dh ** -0.5)
        p = _softmax(scores, axis=-1)
        o = torch.einsum("bhqk,bhkd->bhqd", p, v)
        return (lambda x, *d: x.permute(*d))(o, 0, 2, 1, 3).reshape(B, S, D) @ wo

    def _B_ref(x, w1, w2, w3, w4):
        B, S, D = x.shape
        h = _gelu(_layernorm(x, axis=-1) @ w1)
        c = D // 4
        g0 = _pad(h[:, :, 0*c:1*c], ((0, 0), (1, 0), (0, 0)))[:, :S, :]
        g1 = _pad(h[:, :, 1*c:2*c], ((0, 0), (0, 1), (0, 0)))[:, 1:, :]
        g2 = _pad(h[:, :, 2*c:3*c], ((0, 0), (2, 0), (0, 0)))[:, :S, :]
        g3 = _pad(h[:, :, 3*c:   ], ((0, 0), (0, 2), (0, 0)))[:, 2:, :]
        hs = torch.concatenate([g0, g1, g2, g3], axis=-1) @ w2
        x1 = x + hs
        h2 = _gelu(_layernorm(x1, axis=-1) @ w3) @ w4
        return x1 + h2

    x = A_x
    xn = _layernorm(x, axis=-1)
    return x + _A_ref(xn, A_wqkv, A_wo) + _B_ref(xn, B_w1, B_w2, B_w3, B_w4)
```

```python
import re, subprocess, os, tempfile

LLVM = "bin"

def vr(a, n=1):
    return f"v{a}" if n == 1 else f"v[{a}:{a+n-1}]"
def sr(a, n=1):
    return f"s{a}" if n == 1 else f"s[{a}:{a+n-1}]"

_reg = re.compile(r"^(-|abs\()?([vsa])(?:(\d+)|\[(\d+):(\d+)\])\)?$")
def regs_of(tok):
    tok = tok.strip()
    if tok in ("vcc",): return {("s", 106), ("s", 107)}
    if tok == "vcc_lo": return {("s", 106)}
    if tok == "vcc_hi": return {("s", 107)}
    if tok == "exec": return {("s", 126), ("s", 127)}
    if tok == "m0": return {("s", 124)}
    m = _reg.match(tok)
    if not m: return set()
    k = m.group(2)
    if m.group(3) is not None:
        return {(k, int(m.group(3)))}
    return {(k, i) for i in range(int(m.group(4)), int(m.group(5)) + 1)}

TRANS = ("v_exp_", "v_log_", "v_rcp_", "v_rsq_", "v_sqrt_", "v_sin_", "v_cos_")

class Ins:
    __slots__ = ("text", "op", "ops", "kind", "defs", "uses", "srcC", "srcAB", "states", "is_label", "hot", "stdata")
    def __init__(self, text, hot=False):
        self.text = text; self.hot = hot
        self.is_label = text.endswith(":") or text.startswith(".") or text.startswith(";")
        self.defs = set(); self.uses = set(); self.srcC = set(); self.srcAB = set(); self.stdata = set()
        self.kind = "none"; self.states = 0; self.op = ""; self.ops = []
        if self.is_label: return
        body = text.split(";")[0].strip()
        parts = body.split(None, 1)
        op = parts[0]; self.op = op
        rest = parts[1] if len(parts) > 1 else ""
        ops = []; cur = ""; depth = 0
        for ch in rest:
            if ch in "[(": depth += 1
            if ch in "])": depth -= 1
            if ch == "," and depth == 0: ops.append(cur.strip()); cur = ""
            else: cur += ch
        if cur.strip(): ops.append(cur.strip())
        mods = ""
        if ops:
            last = ops[-1].split(None, 1)
            if len(last) > 1 and not op.startswith("s_waitcnt"):
                ops[-1] = last[0]; mods = last[1]
        self.ops = ops
        R = [regs_of(o) for o in ops]
        U = lambda idx: set().union(*[R[i] for i in idx if i < len(R)]) if R else set()
        n = len(ops)
        self.states = 1
        if op == "s_nop":
            self.kind = "salu"; self.states = int(ops[0], 0) + 1
        elif op.startswith("v_mfma"):
            self.kind = "mfma"; self.defs = U([0]); self.srcAB = U([1, 2]); self.srcC = U([3]); self.uses = self.srcAB | self.srcC
        elif op.startswith("v_"):
            self.kind = "valu"
            if op.startswith("v_cmp"):
                self.defs = U([0]); self.uses = U(range(1, n))
                if op.startswith("v_cmpx"): self.defs |= regs_of("exec")
            elif op.startswith("v_permlane") and "swap" in op:
                self.defs = U([0, 1]); self.uses = U([0, 1])
            elif "_co_" in op:
                self.defs = U([0, 1]); self.uses = U(range(2, n))
            elif op.startswith(("v_fmac", "v_dot2c", "v_pk_fmac", "v_writelane")):
                self.defs = U([0]); self.uses = U(range(0, n))
            else:
                self.defs = U([0]); self.uses = U(range(1, n))
                if op.startswith("v_cndmask") and n == 3: self.uses |= regs_of("vcc")
            if "UNUSED_PRESERVE" in mods: self.uses |= U([0])
        elif op.startswith("ds_"):
            self.kind = "ds"
            if op.startswith(("ds_read", "ds_bpermute", "ds_permute", "ds_swizzle")) or "_rtn" in op:
                self.defs = U([0]); self.uses = U(range(1, n))
            else:
                self.uses = U(range(0, n))
        elif op.startswith("buffer_") or op.startswith("global_"):
            self.kind = "vmem"
            lds = re.search(r"\blds\b", mods) is not None
            if op.startswith("buffer_load") and not lds:
                self.defs = U([0]); self.uses = U(range(1, n))
            elif op.startswith("buffer_load"):
                self.uses = U(range(0, n)) | regs_of("m0"); self.kind = "dma"
            elif op.startswith("buffer_store"):
                self.uses = U(range(0, n))
                if op.endswith(("x3", "x4")): self.stdata = U([0])
            elif op.startswith("buffer_atomic"):
                self.uses = U(range(0, n))
                if "sc0" in mods: self.defs = U([0])
            else:
                raise ValueError("unhandled " + text)
        elif op.startswith("s_"):
            self.kind = "salu"
            if op.startswith(("s_cmp", "s_bitcmp", "s_waitcnt", "s_barrier", "s_branch", "s_cbranch", "s_endpgm", "s_sleep", "s_setprio", "s_sethalt")):
                self.uses = U(range(0, n))
            elif op.startswith(("s_load", "s_buffer_load", "s_memtime", "s_memrealtime")):
                self.kind = "smem"; self.defs = U([0]); self.uses = U(range(1, n))
            else:
                self.defs = U([0]); self.uses = U(range(1, n))
                if "saveexec" in op: self.defs |= regs_of("exec"); self.uses |= regs_of("exec")
                if op.startswith(("s_addk", "s_mulk", "s_cmov")): self.uses |= U([0])
        else:
            raise ValueError("unknown instruction " + text)

def mfma_passes(op):
    if "32x32x16" in op or "32x32x8" in op: return 8
    if "16x16x32" in op or "16x16x16" in op: return 4
    raise ValueError(op)

def vset(s): return {r for r in s if r[0] in "va"}
def sset(s): return {r for r in s if r[0] == "s"}
EXEC = {("s", 126), ("s", 127)}; M0 = {("s", 124)}

def need_states(p, c):
    need = 0
    if p.kind == "valu":
        pv = vset(p.defs); ps = sset(p.defs)
        isdot = p.op.startswith("v_dot")
        if c.kind == "mfma":
            if pv & c.uses: need = max(need, 3 if isdot else 2)
            if ps & EXEC: need = max(need, 4)
        if c.kind == "valu":
            if isdot and (pv & (c.uses | c.defs)):
                same = c.op == p.op
                if same:
                    srcc = regs_of(c.ops[3]) if len(c.ops) > 3 else regs_of(c.ops[0])
                    ab = regs_of(c.ops[1]) | regs_of(c.ops[2])
                    if pv & ab: need = max(need, 3)
                else: need = max(need, 3)
            if p.op.startswith(TRANS) and not c.op.startswith(TRANS) and (pv & c.uses): need = max(need, 1)
            if c.op.startswith("v_permlane") and (pv & c.uses): need = max(need, 2)
            if c.op.startswith(("v_readlane", "v_readfirstlane")) and (pv & c.uses): need = max(need, 1)
            if "dpp" in c.text or "row_" in c.text or "quad_perm" in c.text:
                if pv & c.uses: need = max(need, 2)
                if ps & EXEC: need = max(need, 5)
            if ps & sset(c.uses):
                need = max(need, 4 if c.op.startswith(("v_readlane", "v_writelane")) else 2)
            if (ps & EXEC) and c.op.startswith(("v_readlane", "v_readfirstlane", "v_writelane", "v_permlane")): need = max(need, 4)
            if ("sdwa" in p.op or "op_sel:" in p.text) and (pv & (c.uses | c.defs)): need = max(need, 1)
        if c.kind in ("vmem", "dma") and (ps & sset(c.uses)): need = max(need, 5)
        if c.kind in ("vmem", "dma", "ds") and isdot and (pv & c.uses): need = max(need, 3)
        if c.kind in ("vmem", "dma", "ds") and p.op.startswith(TRANS) and (pv & c.uses): need = max(need, 1)
        if c.kind in ("salu", "smem") and (ps & (c.uses)): need = max(need, 4)
        if c.op.startswith(("s_cbranch_vcc", )) and (ps & {("s",106),("s",107)}): need = max(need, 5)
        if c.op.startswith(("s_cbranch_exec", )) and (ps & EXEC): need = max(need, 5)
    if p.kind == "mfma":
        ps_ = mfma_passes(p.op)
        full = {8: 12, 4: 8}[ps_]; part = {8: 10, 4: 6}[ps_]; war = {8: 7, 4: 3}[ps_]
        if c.kind == "mfma":
            if p.defs & c.srcAB: need = max(need, full)
            if p.defs & c.srcC:
                if not (p.defs == c.srcC and mfma_passes(c.op) == ps_): need = max(need, part)
            elif p.defs & c.defs: need = max(need, part)
        elif c.kind == "valu":
            if p.defs & (c.uses | c.defs): need = max(need, full)
            if p.srcC & c.defs: need = max(need, war)
        elif c.kind in ("vmem", "dma", "ds"):
            if p.defs & (c.uses | c.defs): need = max(need, full)
            if p.srcC & c.defs: need = max(need, war)
    if p.kind == "vmem" and p.stdata:
        if c.kind in ("valu", "mfma") and (p.stdata & c.defs): need = max(need, 2)
        elif p.stdata & c.defs: need = max(need, 1)
    if p.kind == "salu" and (p.defs & M0) and c.kind == "dma": need = max(need, 1)
    if p.kind == "salu" and (p.defs & EXEC) and False: pass
    return need

class Asm:
    def __init__(self):
        self.ins = []; self.hot = False
        self.vmq = []; self.lgq = []; self.tok = 0
        self.nops_inserted = 0
    def __call__(self, text):
        for line in text.strip("\n").split("\n"):
            line = line.strip()
            if not line: continue
            self.ins.append(Ins(line, self.hot))
    def label(self, name): self.ins.append(Ins(name + ":"))
    def comment(self, s): self.ins.append(Ins("; " + s))
    def vm(self, text):
        self(text); self.tok += 1; self.vmq.append(self.tok); return self.tok
    def lg(self, text):
        self(text); self.tok += 1; self.lgq.append(self.tok); return self.tok
    def _cnt(self, q, toks):
        toks = [t for t in toks if t in q]
        if not toks: return None
        i = max(q.index(t) for t in toks)
        n = len(q) - 1 - i
        del q[:i + 1]
        return n
    def wait(self, vm=(), lg=(), force=False):
        if isinstance(vm, int): vm = [vm]
        if isinstance(lg, int): lg = [lg]
        a = self._cnt(self.vmq, vm); b = self._cnt(self.lgq, lg)
        parts = []
        if a is not None:
            assert a <= 63, a
            parts.append(f"vmcnt({a})")
        if b is not None:
            b = min(b, 14)
            parts.append(f"lgkmcnt({b})")
        if parts: self("s_waitcnt " + " ".join(parts))
        elif force: self("s_nop 0")
        return bool(parts)
    def wait_all(self, vm=True, lg=True):
        parts = []
        if vm: parts.append("vmcnt(0)"); self.vmq = []
        if lg: parts.append("lgkmcnt(0)"); self.lgq = []
        self("s_waitcnt " + " ".join(parts))
    def pad_hazards(self):
        out = []
        for c in self.ins:
            if not c.is_label:
                need = 0; dist = 0
                for p in reversed(out):
                    if p.is_label: continue
                    if dist >= 20: break
                    n = need_states(p, c)
                    if n > dist: need = max(need, n - dist)
                    dist += p.states
                while need > 0:
                    k = min(need, 16)
                    out.append(Ins(f"s_nop {k-1}", c.hot)); need -= k; self.nops_inserted += 1
                    if c.hot: print("  [hazard nop in hot code before]", c.text, k)
            out.append(c)
        self.ins = out
    def text(self):
        return "\n".join((i.text if i.is_label and i.text.endswith(":") else "  " + i.text) for i in self.ins) + "\n"

def assemble_sizes(full_text):
    d = tempfile.mkdtemp()
    s = os.path.join(d, "k.s"); o = os.path.join(d, "k.o")
    open(s, "w").write(full_text)
    r = subprocess.run([LLVM + "/clang", "-x", "assembler", "-target", "amdgcn-amd-amdhsa", "-mcpu=gfx950", "-c", s, "-o", o], capture_output=True, text=True)
    if r.returncode != 0: raise RuntimeError(r.stderr[:6000])
    r = subprocess.run([LLVM + "/llvm-objdump", "-d", "--mcpu=gfx950", o], capture_output=True, text=True)
    res = []
    for line in r.stdout.splitlines():
        m = re.search(r"//\s+([0-9A-F]+):((?:\s[0-9A-F]{8})+)", line)
        if m: res.append((int(m.group(1), 16), 4 * len(m.group(2).split()), line.split("//")[0].strip()))
    return res

_PROMOTABLE = re.compile(r"^v_(exp_f32|rcp_f32|rsq_f32|mov_b32|add_f32|sub_f32|mul_f32|max_f32|min_f32|and_b32|or_b32|xor_b32|add_u32|lshlrev_b32|lshrrev_b32|cvt_f32_u32)(_e32)?$")
def fix_straddles(asm, head, tail, verbose=False):
    sizes = assemble_sizes(head + asm.text() + tail)
    norm = lambda o: o.replace("_e32", "").replace("_e64", "").replace("_sdwa", "").replace("_dpp", "")
    j = 0; size_of = {}
    for ins in asm.ins:
        if ins.is_label: continue
        while norm(sizes[j][2].split()[0]) != norm(ins.op):
            assert sizes[j][2].startswith(("s_nop", "s_code_end")), (sizes[j][2], ins.text)
            j += 1
        size_of[id(ins)] = sizes[j][1]; j += 1
    out = []; addr = 0; line = []; nprom = 0; nnop = 0
    for ins in asm.ins:
        if ins.is_label:
            m = re.match(r"\.p2align\s+(\d+)", ins.text)
            if m:
                a = 1 << int(m.group(1)); addr = (addr + a - 1) // a * a; line = []
            out.append(ins); continue
        size = size_of[id(ins)]
        if addr % 64 == 0: line = []
        if (addr % 64) + size > 64:
            cand = [x for x in line if size_of[id(x)] == 4 and _PROMOTABLE.match(x.op)]
            if cand:
                x = cand[-1]
                op = x.op.replace("_e32", "")
                x.__init__(x.text.replace(x.op, op + "_e64", 1), x.hot); size_of[id(x)] = 8; nprom += 1
            else:
                n = Ins("s_nop 0", ins.hot); size_of[id(n)] = 4; out.append(n); nnop += 1
                if verbose and ins.hot: print("  [straddle nop in hot code before]", ins.text)
            addr += 4; line = []
        out.append(ins); line.append(ins); addr += size
    asm.ins = out
    return addr, nprom, nnop
```

```python
import sys, math, struct
from asmlib import *

NAME = "parallel_sum__mha_block__mixer_s_mlp__prompt"
OPT = dict(stop_after=99, stamps=0, spin=400000, prio_b=0, pf=0)
for a in sys.argv[2:]:
    k, v = a.split("="); OPT[k] = int(v, 0)

def f2u(x): return struct.unpack("<I", struct.pack("<f", x))[0]
def hx(x): return hex(x & 0xffffffff)

S, D, F = 2048, 448, 1792
PL = 32768 + 256
FLG = 0; FT = 0x8000
F_QKV, F_H, F_X1, F_G, F_O = 0, 1, 2, 3, 4
STAMP = 0x30000
QKV = 0x40000
H_ = QKV + 16 * 64 * 6144
X1 = H_ + 0x1C4000
O_ = X1 + 0x1C4000
G_ = O_ + 0x204000
WS_SIZE = G_ + 0x70E000
LDS_BYTES = 81920
EPS = 1e-5
QSCALE = (28 ** -0.5) * math.log2(math.e)
GA = -2.0 * math.log2(math.e) * math.sqrt(2.0 / math.pi)
GB = GA * 0.044715

sX, sWS, sDBG, sWA, sW2, sW3, sW4, sWO, sOUT = 28, 32, 36, 40, 44, 48, 52, 56, 60
sHI = 26
sW, sXCD, sLOC = 64, 65, 66
sONES = 67
sT0, sT1, sT2, sT3, sT4, sT5 = 68, 69, 70, 71, 72, 73
sCNT = 74
sA0 = 75
vTID, vLANE, vT_, vHH, vZERO = 0, 1, 2, 3, 4
vNO = 6
vP0 = 8
vPO = 10
vL16 = 11
vA, vB = 12, 14

a = Asm()
lab = [0]
def newlab(p):
    lab[0] += 1; return f"L_{p}_{lab[0]}"

def srd(dst, ptr, size):
    a(f"s_mov_b32 s{dst}, s{ptr}\ns_mov_b32 s{dst+1}, s{ptr+1}\ns_mov_b32 s{dst+2}, {hx(size)}\ns_mov_b32 s{dst+3}, 0x20000")

nstamp = [0]
def stamp(idx):
    if not OPT["stamps"]: return
    L = newlab("st")
    a(f"s_cmp_lg_u32 s{sW}, 0\ns_cbranch_scc1 {L}")
    a(f"s_memrealtime s[100:101]\ns_waitcnt lgkmcnt(0)")
    a(f"s_lshl_b32 s101, s2, 6\ns_add_u32 s101, s101, {STAMP + 4*idx}")
    a(f"v_mov_b32 v5, s100\ns_mov_b64 exec, 1")
    a(f"buffer_store_dword v5, v{vZERO}, s[{sWS}:{sWS+3}], s101 offen")
    a("s_mov_b64 exec, -1")
    a.label(L)

def get_nonce():
    L = newlab("no"); Dn = newlab("nod")
    a(f"s_mov_b32 s{sCNT}, {OPT['spin']}")
    a.label(L)
    a(f"buffer_load_dwordx2 v[{vNO}:{vNO+1}], v{vZERO}, s[{sDBG}:{sDBG+3}], 0 offen sc1")
    a.wait_all(lg=False)
    a(f"v_cmp_eq_u32 vcc, 0, v{vNO}\ns_cbranch_vccz {Dn}\ns_sub_u32 s{sCNT}, s{sCNT}, 1\ns_cbranch_scc1 {Dn}\ns_sleep 1\ns_branch {L}")
    a.label(Dn)

def poll():
    L = newlab("po"); Dn = newlab("pod")
    a(f"s_mov_b32 s{sCNT}, {OPT['spin']}")
    a.label(L)
    a(f"buffer_load_dwordx2 v[{vP0}:{vP0+1}], v{vPO}, s[{sWS}:{sWS+3}], 0 offen sc1")
    a.wait_all(lg=False)
    a(f"v_cmp_ne_u64 vcc, v[{vP0}:{vP0+1}], v[{vNO}:{vNO+1}]\ns_cbranch_vccz {Dn}\ns_sub_u32 s{sCNT}, s{sCNT}, 1\ns_cbranch_scc1 {Dn}\ns_sleep 1\ns_branch {L}")
    a.label(Dn)

def publish(sflag, barrier=True):
    L = newlab("pub")
    if barrier:
        a.wait_all()
        a("s_barrier")
    a(f"s_cmp_lg_u32 s{sW}, 0\ns_cbranch_scc1 {L}\ns_mov_b64 exec, 1")
    a(f"buffer_store_dwordx2 v[{vNO}:{vNO+1}], v{vZERO}, s[{sWS}:{sWS+3}], s{sflag} offen sc1")
    a("s_mov_b64 exec, -1")
    a.label(L)
    a.flag_pending = True

def xhalf_add(v, t1, t2):
    a(f"v_mov_b32 v{t1}, v{v}\nv_mov_b32 v{t2}, v{v}\nv_permlane32_swap_b32 v{t1}, v{t2}\nv_add_f32 v{v}, v{t1}, v{t2}")

def ln_stats(vsum, vsq, t):
    xhalf_add(vsum, t, t + 1); xhalf_add(vsq, t, t + 1)
    a(f"v_mul_f32 v{vsum}, {hx(f2u(1.0/D))}, v{vsum}\nv_mul_f32 v{vsq}, {hx(f2u(1.0/D))}, v{vsq}")
    a(f"v_fma_f32 v{vsq}, -v{vsum}, v{vsum}, v{vsq}\nv_max_f32 v{vsq}, 0, v{vsq}")

def affine16(dst, acc, cs):
    for i in range(0, 16, 2):
        a(f"v_pk_mul_f32 v[{dst+i}:{dst+i+1}], v[{acc+i}:{acc+i+1}], v[{vA}:{vA+1}] op_sel_hi:[1,0]")
    for i in range(0, 16, 2):
        a(f"v_pk_fma_f32 v[{dst+i}:{dst+i+1}], v[{cs+i}:{cs+i+1}], v[{vB}:{vB+1}], v[{dst+i}:{dst+i+1}] op_sel_hi:[1,0,1]")

def gelu16(y, t, sG):
    for i in range(0, 16, 2):
        a(f"v_pk_mul_f32 v[{t+i}:{t+i+1}], v[{y+i}:{y+i+1}], v[{y+i}:{y+i+1}]")
    for i in range(0, 16, 2):
        a(f"v_pk_fma_f32 v[{t+i}:{t+i+1}], v[{t+i}:{t+i+1}], s[{sG}:{sG+1}], v[{vGA}:{vGA+1}] op_sel_hi:[1,0,0]")
    for i in range(0, 16, 2):
        a(f"v_pk_mul_f32 v[{t+i}:{t+i+1}], v[{t+i}:{t+i+1}], v[{y+i}:{y+i+1}]")
    for i in range(16): a(f"v_exp_f32 v{t+i}, v{t+i}")
    for i in range(0, 16, 2):
        a(f"v_pk_add_f32 v[{t+i}:{t+i+1}], v[{t+i}:{t+i+1}], 1.0 op_sel_hi:[1,0]")
    for i in range(16): a(f"v_rcp_f32 v{t+i}, v{t+i}")
    for i in range(0, 16, 2):
        a(f"v_pk_mul_f32 v[{y+i}:{y+i+1}], v[{y+i}:{y+i+1}], v[{t+i}:{t+i+1}]")

def cvt16(pk, y):
    for i in range(8): a(f"v_cvt_pk_bf16_f32 v{pk+i}, v{y+2*i}, v{y+2*i+1}")

def mfma(d, A, B, first=False):
    c = "0" if first else f"v[{d}:{d+15}]"
    a(f"v_mfma_f32_32x32x16_bf16 v[{d}:{d+15}], v[{A}:{A+3}], v[{B}:{B+3}], {c}")

def interleave(main, fill):
    n = len(main); k = 0
    for i, m in enumerate(main):
        m()
        upto = (len(fill) * (i + 1) + n - 1) // n
        while k < upto: fill[k](); k += 1

def rot7(dst, rot, n=7):
    for c in range(n):
        a(f"s_add_u32 s{dst+c}, s{rot}, {c}\ns_sub_u32 s{sT5}, s{dst+c}, 7\ns_cselect_b32 s{dst+c}, s{dst+c}, s{sT5}")

vGA = 254

def prologue():
    a("s_cmp_ge_u32 s2, 512\ns_cbranch_scc1 L_end")
    a("s_load_dwordx16 s[4:19], s[0:1], 0\ns_load_dwordx4 s[20:23], s[0:1], 64\ns_load_dwordx2 s[24:25], s[0:1], 80")
    a(f"v_lshrrev_b32 v5, 6, v0\nv_and_b32 v{vLANE}, 63, v0\nv_readfirstlane_b32 s{sW}, v5")
    a(f"v_and_b32 v{vT_}, 31, v0\nv_bfe_u32 v{vHH}, v0, 5, 1\nv_mov_b32 v{vZERO}, 0\nv_lshlrev_b32 v{vL16}, 4, v{vLANE}")
    a(f"s_mov_b32 s{sHI}, 0\ns_mov_b32 s{sHI+1}, -1\ns_mov_b32 s{sONES}, 0x3f803f80")
    a(f"s_and_b32 s{sXCD}, s2, 7\ns_bfe_u32 s{sLOC}, s2, {(5 << 16) | 3}")
    a("s_waitcnt lgkmcnt(0)")
    srd(sX, 4, S * D * 2); srd(sWS, 24, WS_SIZE); srd(sDBG, 22, 256)
    stamp(0)
    a("s_cmp_ge_u32 s2, 256\ns_cbranch_scc1 L_roleB")
    a(f"s_or_b32 s{sT0}, s2, s{sW}\ns_cmp_lg_u32 s{sT0}, 0\ns_cbranch_scc1 L_notag")
    a(f"s_memrealtime s[{sT0}:{sT1}]\ns_waitcnt lgkmcnt(0)\ns_or_b32 s{sT0}, s{sT0}, 1")
    a(f"v_mov_b32 v{vNO}, s{sT0}\nv_mov_b32 v{vNO+1}, s{sT1}\ns_mov_b64 exec, 1")
    a(f"buffer_store_dwordx2 v[{vNO}:{vNO+1}], v{vZERO}, s[{sDBG}:{sDBG+3}], 0 offen sc1\ns_mov_b64 exec, -1")
    a("s_waitcnt vmcnt(0)")
    a.label("L_notag")

def addr_xdma(dst, nq, t):
    for q in range(nq):
        a(f"v_lshrrev_b32 v{t}, 3, v{vLANE}\nv_add_u32 v{t}, {8*q}, v{t}")
        a(f"v_bfe_u32 v{t+1}, v{t}, 1, 3\nv_and_b32 v{t+2}, 7, v{vLANE}\nv_xor_b32 v{t+1}, v{t+1}, v{t+2}")
        a(f"v_mul_u32_u24 v{t}, 896, v{t}\nv_lshl_add_u32 v{t}, v{t+1}, 4, v{t}\nv_subrev_u32 v{dst+q}, {1024*q}, v{t}")

def addr_wdma128(dst, t):
    a(f"v_lshrrev_b32 v{t}, 3, v{vLANE}\nv_bfe_u32 v{t+1}, v{vLANE}, 4, 1\nv_lshlrev_b32 v{t+1}, 2, v{t+1}")
    a(f"v_and_b32 v{t+2}, 7, v{vLANE}\nv_xor_b32 v{t+1}, v{t+1}, v{t+2}")
    a(f"v_mul_u32_u24 v{t}, 896, v{t}\nv_lshl_add_u32 v{dst}, v{t+1}, 4, v{t}\nv_add_u32 v{dst+1}, {8*896-1024}, v{dst}")

def addr_wdma256(dst, stride, t):
    a(f"v_lshrrev_b32 v{t}, 4, v{vLANE}\nv_lshlrev_b32 v{t+1}, 2, v{t}\nv_sub_u32 v{t+1}, v{vLANE}, v{t+1}\nv_and_b32 v{t+1}, 15, v{t+1}")
    a(f"v_mul_u32_u24 v{t}, {stride}, v{t}\nv_lshl_add_u32 v{dst}, v{t+1}, 4, v{t}")
    for q in range(1, 4): a(f"v_add_u32 v{dst+q}, {q*(4*stride-1024)}, v{dst}")

def addr_xrd(dst, sbase, t):
    a(f"v_bfe_u32 v{t}, v{vT_}, 1, 3\nv_xor_b32 v{t}, v{t}, v{vHH}\nv_lshlrev_b32 v{t}, 4, v{t}\nv_lshl_add_u32 v{t}, v{vT_}, 7, v{t}")
    for ks in range(4):
        a(f"v_xor_b32 v{dst+ks}, {32*ks}, v{t}\nv_add_u32 v{dst+ks}, s{sbase}, v{dst+ks}")

def lane_rcg(t):
    a(f"v_bfe_u32 v{t}, v{vLANE}, 2, 2\nv_and_b32 v{t+1}, 3, v{vLANE}\nv_lshlrev_b32 v{t+1}, 3, v{t+1}")
    a(f"v_bfe_u32 v{t+2}, v{vLANE}, 4, 1\nv_lshl_add_u32 v{t+1}, v{t+2}, 5, v{t+1}")

def addr_wrd256(dst, cs, t):
    lane_rcg(t)
    a(f"v_lshl_add_u32 v{t+1}, v{t}, 6, v{t+1}")
    a(f"v_lshl_add_u32 v{t}, v{vHH}, 3, v{t}\nv_lshlrev_b32 v{t}, 8, v{t}")
    for u in range(4):
        a(f"s_add_u32 s{sT0}, s{sW}, {u}\ns_and_b32 s{sT0}, s{sT0}, 3\ns_mul_i32 s{sT0}, s{sT0}, {cs}")
        a(f"v_add_u32 v{dst+u}, s{sT0}, v{t+1}\nv_and_b32 v{dst+u}, 255, v{dst+u}\nv_add_u32 v{dst+u}, v{dst+u}, v{t}")

def addr_wrd128(dst, hhmul, scol, sbase, t):
    lane_rcg(t)
    a(f"v_lshrrev_b32 v{t+2}, 1, v{t}\nv_xor_b32 v{t+2}, s{scol}, v{t+2}\nv_lshl_add_u32 v{t+1}, v{t+2}, 6, v{t+1}")
    a(f"v_mad_u32_u24 v{t}, v{vHH}, {hhmul}, v{t}\nv_lshl_add_u32 v{dst}, v{t}, 7, v{t+1}")
    if sbase is not None: a(f"v_add_u32 v{dst}, s{sbase}, v{dst}")

def set_m0(expr_sgpr, add):
    a(f"s_add_u32 m0, s{expr_sgpr}, {add}" if add else f"s_mov_b32 m0, s{expr_sgpr}")

def panel_mainloop(ACC, WF, vWrd, nslot, xfrag, issue_w, wtok, chunk_hooks, vSUM, vSQ, vCS):
    rd = {}
    hi = [False]
    def wreads(s):
        c, ks = divmod(s, 4); slot = c % nslot
        base = slot * 16384 + ks * 4096
        th = []
        if slot == 4 and not hi[0]:
            th.append(lambda: [a(f"v_add_u32 v{vWrd+u}, 0x10000, v{vWrd+u}") for u in range(4)]); hi[0] = True
        if slot != 4 and hi[0]:
            th.append(lambda: [a(f"v_subrev_u32 v{vWrd+u}, 0x10000, v{vWrd+u}") for u in range(4)]); hi[0] = False
        if slot == 4: base -= 65536
        toks = []; rd[s] = toks
        for u in range(4):
            for jj in range(2):
                r = WF + (s & 1) * 16 + u * 4 + jj * 2
                th.append(lambda r=r, u=u, jj=jj: toks.append(a.lg(f"ds_read_b64_tr_b16 v[{r}:{r+1}], v{vWrd+u} offset:{base + jj*1024}")))
        return th
    chunk_hooks["before_barrier"](0)
    a.wait(vm=wtok[0]); a("s_barrier")
    pre = chunk_hooks["after_barrier"](0)
    for t in pre + wreads(0): t()
    for s in range(28):
        c, ks = divmod(s, 4)
        a.wait(lg=rd[s] + chunk_hooks["lg_need"](s), vm=chunk_hooks["vm_need"](s))
        fill = []
        if ks == 3 and c < 6:
            chunk_hooks["before_barrier"](c + 1)
            a.wait(vm=wtok[c + 1]); a("s_barrier")
            fill += chunk_hooks["after_barrier"](c + 1)
        if s < 27: fill += wreads(s + 1)
        if ks == 3 and c + 1 + (nslot - 1) <= 6 and (c + nslot) not in wtok:
            fill.append(lambda c=c: wtok.__setitem__(c + nslot, issue_w(c + nslot)))
        fill += chunk_hooks["kstep"](s)
        xf = xfrag(s); w = WF + (s & 1) * 16
        dots = []
        for i in range(4):
            dots.append(lambda i=i: a(f"v_dot2c_f32_bf16 v{vSUM}, s{sONES}, v{xf+i}"))
            dots.append(lambda i=i: a(f"v_dot2c_f32_bf16 v{vSQ}, v{xf+i}, v{xf+i}"))
            dots.append(lambda i=i: a(f"v_dot2c_f32_bf16 v{vCS}, s{sONES}, v{w+i}"))
        nf = len(fill); k = 0
        for u in range(4):
            mfma(ACC + 16 * u, w + 4 * u, xf, first=(s == 0))
            upto = (nf * (u + 1) + 3) // 4
            while k < upto: fill[k](); k += 1
            for d in dots[3 * u: 3 * u + 3]: d()

def panel_colsums(vCS, csbase, t):
    xhalf_add(vCS, t, t + 1)
    a(f"s_lshl_b32 s{sT0}, s{sW}, 7\ns_add_u32 s{sT0}, s{sT0}, {csbase}")
    a(f"v_lshl_add_u32 v{t}, v{vT_}, 2, s{sT0}")
    a.lg(f"ds_write_b32 v{t}, v{vCS}")
    a.wait_all(vm=False); a("s_barrier")

def read_cs(dst, u, csbase, vaddr):
    a(f"s_add_u32 s{sT0}, s{sW}, {u}\ns_and_b32 s{sT0}, s{sT0}, 3\ns_lshl_b32 s{sT0}, s{sT0}, 7\ns_add_u32 s{sT0}, s{sT0}, {csbase}")
    a(f"v_lshl_add_u32 v{vaddr}, v{vHH}, 4, s{sT0}")
    return [a.lg(f"ds_read_b128 v[{dst+4*i}:{dst+4*i+3}], v{vaddr} offset:{32*i}") for i in range(4)]

def stage_A1():
    a.comment("==== A1: q/k/v projection of 128 rows x 4 head slices")
    ACC, XF, WF = 16, 80, 112
    vWd, vXd, vXr, vWr = 144, 148, 152, 156
    vSUM, vSQ, vCS = 160, 161, 162
    T = 164
    sRB, sCG, sROT = sA0, sA0 + 1, sA0 + 2
    sKC = sA0 + 3
    sWO_ = sA0 + 10
    sM0W, sM0X = sA0 + 17, sA0 + 18
    srd(sWA, 6, D * 3 * D * 2)
    a(f"s_cmp_ge_u32 s{sLOC}, 24\ns_cbranch_scc1 L_A1_skip")
    a(f"s_mul_i32 s{sT0}, s{sLOC}, 43\ns_lshr_b32 s{sT0}, s{sT0}, 8\ns_mul_i32 s{sT1}, s{sT0}, 6\ns_sub_u32 s{sT1}, s{sLOC}, s{sT1}")
    a(f"s_lshr_b32 s{sT2}, s{sXCD}, 1\ns_lshl_b32 s{sT2}, s{sT2}, 2\ns_add_u32 s{sRB}, s{sT2}, s{sT0}")
    a(f"s_and_b32 s{sT2}, s{sXCD}, 1\ns_mul_i32 s{sT2}, s{sT2}, 6\ns_add_u32 s{sCG}, s{sT2}, s{sT1}")
    a(f"s_mul_i32 s{sT0}, s{sLOC}, 37\ns_lshr_b32 s{sT0}, s{sT0}, 8\ns_mul_i32 s{sT0}, s{sT0}, 7\ns_sub_u32 s{sROT}, s{sLOC}, s{sT0}")
    rot7(sKC, sROT)
    a(f"s_lshl_b32 s{sT0}, s{sRB}, 2\ns_add_u32 s{sT0}, s{sT0}, s{sW}\ns_mul_i32 s{sT0}, s{sT0}, {32*896}")
    a(f"s_mul_i32 s{sT1}, s{sW}, {16*2688}\ns_mul_i32 s{sT2}, s{sCG}, 224\ns_add_u32 s{sT1}, s{sT1}, s{sT2}")
    for c in range(7):
        a(f"s_mul_i32 s{sWO_+c}, s{sKC+c}, {64*2688}\ns_add_u32 s{sWO_+c}, s{sWO_+c}, s{sT1}")
        a(f"s_lshl_b32 s{sKC+c}, s{sKC+c}, 7\ns_add_u32 s{sKC+c}, s{sKC+c}, s{sT0}")
    a(f"s_lshl_b32 s{sM0W}, s{sW}, 12\ns_lshl_b32 s{sM0X}, s{sW}, 13\ns_add_u32 s{sM0X}, s{sM0X}, 49152")
    addr_xdma(vXd, 4, T); addr_wdma256(vWd, 2688, T)
    def issue_x(c):
        set_m0(sM0X, (c & 1) * 4096)
        return [a.vm(f"buffer_load_dwordx4 v{vXd+q}, s[{sX}:{sX+3}], s{sKC+c} offen offset:{1024*q} lds") for q in range(4)]
    def issue_w(c):
        set_m0(sM0W, (c % 3) * 16384)
        return [a.vm(f"buffer_load_dwordx4 v{vWd+q}, s[{sWA}:{sWA+3}], s{sWO_+c} offen offset:{1024*q} lds") for q in range(4)]
    xt = {}; wt = {}
    xt[0] = issue_x(0); wt[0] = issue_w(0); xt[1] = issue_x(1); wt[1] = issue_w(1); wt[2] = issue_w(2)
    addr_xrd(vXr, sM0X, T); addr_wrd256(vWr, 56, T)
    a(f"v_mov_b32 v{vSUM}, 0\nv_mov_b32 v{vSQ}, 0\nv_mov_b32 v{vCS}, 0")
    xr = {}
    def after_barrier(c):
        xr[c] = []
        return [lambda ks=ks: xr[c].append(a.lg(f"ds_read_b128 v[{XF+(c&1)*16+4*ks}:{XF+(c&1)*16+4*ks+3}], v{vXr+ks} offset:{(c&1)*4096}")) for ks in range(4)]
    hooks = dict(
        before_barrier=lambda c: a.wait(vm=xt[c]),
        after_barrier=after_barrier,
        lg_need=lambda s: xr[s // 4] if s % 4 == 0 else [],
        vm_need=lambda s: [],
        kstep=lambda s: [lambda: xt.__setitem__(s // 4 + 2, issue_x(s // 4 + 2))] if (s % 4 == 0 and s // 4 + 2 <= 6) else [])
    panel_mainloop(ACC, WF, vWr, 3, lambda s: XF + ((s // 4) & 1) * 16 + 4 * (s % 4), issue_w, wt, hooks, vSUM, vSQ, vCS)
    stamp(1)
    CSB = 16384
    panel_colsums(vCS, CSB, T)
    CS, Y, PK = 80, 96, 112
    vPA, vPB = 136, 137
    sTY, sHQ, sDST = sA0 + 3, sA0 + 4, sA0 + 5
    toks = read_cs(CS, 0, CSB, T + 4)
    ln_stats(vSUM, vSQ, T)
    a(f"s_lshr_b32 s{sTY}, s{sCG}, 2\ns_and_b32 s{sHQ}, s{sCG}, 3")
    a(f"v_add_f32 v{vSQ}, {hx(f2u(EPS))}, v{vSQ}\nv_rsq_f32 v{vA}, v{vSQ}")
    a(f"s_cmp_eq_u32 s{sTY}, 0\ns_cselect_b32 s{sT1}, {hx(f2u(QSCALE))}, 1.0")
    a(f"v_mul_f32 v{vA}, s{sT1}, v{vA}\nv_mul_f32 v{vB}, v{vA}, v{vSUM}\nv_sub_f32 v{vB}, 0, v{vB}")
    a(f"s_cmp_eq_u32 s{sTY}, 1\ns_cselect_b32 s{sT1}, 0x3f803f80, 0\ns_cselect_b32 s{sT2}, 0x3f80, 0")
    a(f"s_cmp_eq_u32 s{sTY}, 2\ns_cselect_b32 s{sT1}, 0x3f80, s{sT1}")
    a(f"v_mov_b32 v{vPA}, s{sT1}\nv_mov_b32 v{vPB}, s{sT2}")
    a(f"s_lshl_b32 s{sT0}, s{sRB}, 2\ns_add_u32 s{sT0}, s{sT0}, s{sW}\ns_lshl_b32 s{sT1}, s{sHQ}, 8\ns_add_u32 s{sT0}, s{sT0}, s{sT1}")
    a(f"s_mul_i32 s{sT0}, s{sT0}, 6144\ns_lshl_b32 s{sT1}, s{sTY}, 11\ns_add_u32 s{sT0}, s{sT0}, s{sT1}\ns_add_u32 s{sDST}, s{sT0}, {QKV}")
    vVw, vVr = 138, 142
    a(f"v_bfe_u32 v{T}, v{vT_}, 1, 3\nv_xor_b32 v{T}, v{T}, v{vHH}\nv_lshlrev_b32 v{T}, 3, v{T}\nv_lshl_add_u32 v{T}, v{vT_}, 6, v{T}")
    for i in range(4): a(f"v_xor_b32 v{vVw+i}, {16*i}, v{T}\nv_add_u32 v{vVw+i}, s{sM0X}, v{vVw+i}")
    lane_rcg(T)
    for jj in range(2):
        a(f"v_lshl_add_u32 v{T+2}, v{vHH}, 2, v{T}\nv_add_u32 v{T+2}, {8*jj}, v{T+2}")
        a(f"v_bfe_u32 v{T+3}, v{T+2}, 1, 3\nv_lshlrev_b32 v{T+3}, 3, v{T+3}\nv_xor_b32 v{T+3}, v{T+3}, v{T+1}")
        a(f"v_lshl_add_u32 v{vVr+jj}, v{T+2}, 6, v{T+3}\nv_add_u32 v{vVr+jj}, s{sM0X}, v{vVr+jj}")
    for u in range(4):
        a.wait(lg=toks)
        affine16(Y, ACC + 16 * u, CS)
        if u < 3: toks = read_cs(CS, u + 1, CSB, T + 4)
        pk = PK + 8 * (u & 1)
        cvt16(pk, Y)
        a(f"v_cndmask_b32 v{pk+6}, v{pk+6}, v{vPA}, s[{sHI}:{sHI+1}]\nv_cndmask_b32 v{pk+7}, v{pk+7}, v{vPB}, s[{sHI}:{sHI+1}]")
        Lq = newlab("nv")
        a(f"s_cmp_lg_u32 s{sTY}, 2\ns_cbranch_scc1 {Lq}")
        for i in range(4): a(f"ds_write_b64 v{vVw+i}, v[{pk+2*i}:{pk+2*i+1}] offset:{2048*u}")
        for m in range(2):
            for jj in range(2):
                a(f"ds_read_b64_tr_b16 v[{pk+4*m+2*jj}:{pk+4*m+2*jj+1}], v{vVr+jj} offset:{2048*u + 1024*m}")
        a("s_waitcnt lgkmcnt(0)")
        a.label(Lq)
        a(f"s_add_u32 s{sT0}, s{sW}, {u}\ns_and_b32 s{sT0}, s{sT0}, 3\ns_mul_i32 s{sT0}, s{sT0}, {64*6144}\ns_add_u32 s{sT0}, s{sT0}, s{sDST}")
        for m in range(2):
            a.vm(f"buffer_store_dwordx4 v[{pk+4*m}:{pk+4*m+3}], v{vL16}, s[{sWS}:{sWS+3}], s{sT0} offen offset:{1024*m} sc1")
    get_nonce()
    a(f"s_lshl_b32 s{sT0}, s{sRB}, 4\ns_add_u32 s{sT0}, s{sT0}, s{sCG}\ns_lshl_b32 s{sT0}, s{sT0}, 7\ns_add_u32 s{sT0}, s{sT0}, {FLG + F_QKV*FT}")
    publish(sT0)
    a("s_branch L_A2")
    a.label("L_A1_skip")
    get_nonce()
    a.label("L_A2")
    a.wait_all()
    stamp(2)

def stage_A2():
    a.comment("==== A2: attention, 128 queries of one head; wave = 512 keys")
    Q, O, SS, P, KB, VB = 16, 48, 112, 144, 160, 184
    T = 208
    MX = 224
    sH, sQB, sQ0, sK, sV, sK0, sRETRY, sKT0 = sA0, sA0+1, sA0+2, sA0+3, sA0+4, sA0+5, sA0+6, sA0+7
    a(f"s_lshr_b32 s{sT0}, s{sLOC}, 4\ns_lshl_b32 s{sH}, s{sXCD}, 1\ns_add_u32 s{sH}, s{sH}, s{sT0}\ns_and_b32 s{sQB}, s{sLOC}, 15")
    a(f"s_lshr_b32 s{sT0}, s{sH}, 2\ns_lshl_b32 s{sT1}, s{sQB}, 4\ns_add_u32 s{sT1}, s{sT1}, s{sT0}")
    a(f"s_lshl_b32 s{sT2}, s{sW}, 6\ns_add_u32 s{sT2}, s{sT2}, s{sT0}")
    a(f"v_subrev_u32 v{T}, 2, v{vLANE}\nv_and_b32 v{T+1}, 3, v{T}\nv_lshlrev_b32 v{T+1}, 4, v{T+1}")
    a(f"v_bfe_u32 v{T+2}, v{T}, 2, 1\nv_lshl_add_u32 v{T+1}, v{T+2}, 2, v{T+1}\nv_add_u32 v{T+1}, 4, v{T+1}\nv_add_u32 v{T+1}, s{sT2}, v{T+1}")
    a(f"v_mov_b32 v{vPO}, s{sT1}\nv_cmp_gt_u32 vcc, 8, v{T}\nv_cndmask_b32 v{vPO}, v{vPO}, v{T+1}, vcc")
    a(f"s_add_u32 s{sT0}, s{sT0}, 4\nv_mov_b32 v{T+1}, s{sT0}\nv_cmp_eq_u32 vcc, 1, v{vLANE}\nv_cndmask_b32 v{vPO}, v{vPO}, v{T+1}, vcc")
    a(f"v_lshlrev_b32 v{vPO}, 7, v{vPO}")
    if FLG + F_QKV * FT: a(f"v_add_u32 v{vPO}, {FLG + F_QKV*FT}, v{vPO}")
    a(f"s_mul_i32 s{sK0}, s{sH}, {64*6144}\ns_add_u32 s{sK0}, s{sK0}, {QKV}")
    a(f"s_mul_i32 s{sQ0}, s{sQB}, {4*6144}\ns_add_u32 s{sQ0}, s{sQ0}, s{sK0}")
    a(f"s_add_u32 s{sK0}, s{sK0}, 2048\ns_mul_i32 s{sKT0}, s{sW}, {16*6144}\ns_add_u32 s{sKT0}, s{sKT0}, s{sK0}")
    a(f"s_mov_b32 s{sRETRY}, 0")
    poll()
    stamp(3)
    def ld(dst, soff, imm): return a.vm(f"buffer_load_dwordx4 v[{dst}:{dst+3}], v{vL16}, s[{sWS}:{sWS+3}], s{soff} offen offset:{imm} sc1")
    k0 = [ld(T, sK0, 0), ld(T + 4, sK0, 1024)]
    qt = []
    for u in range(4):
        a(f"s_xor_b32 s{sT0}, s{sW}, {u}\ns_mul_i32 s{sT0}, s{sT0}, 6144\ns_add_u32 s{sT0}, s{sT0}, s{sQ0}")
        qt.append([ld(Q + 8 * u, sT0, 0), ld(Q + 8 * u + 4, sT0, 1024)])
    kt_tok = {}; vt_tok = {}
    def first_loads():
        a(f"s_mov_b32 s{sK}, s{sKT0}")
        for kt in range(3):
            kt_tok[kt] = [ld(KB + 8 * kt, sK, 0), ld(KB + 8 * kt + 4, sK, 1024)]
            if kt < 2: vt_tok[kt] = [ld(VB + 8 * kt, sK, 2048), ld(VB + 8 * kt + 4, sK, 3072)]
            if kt == 2: a(f"s_mov_b32 s{sV}, s{sK}")
            a(f"s_add_u32 s{sK}, s{sK}, 6144")
    first_loads()
    for u in range(4):
        a.wait(vm=k0 + qt[u])
        s_ = SS + 16 * (u & 1)
        mfma(s_, T, Q + 8 * u, first=True); mfma(s_, T + 4, Q + 8 * u + 4)
        if u > 0: rowmax(MX + u - 1, SS + 16 * ((u - 1) & 1), True)
    rowmax(MX + 3, SS + 16, True)
    a.label("L_A2_setmax")
    for u in range(4):
        m = MX + u
        a(f"v_mov_b32 v{T}, v{m}\nv_mov_b32 v{T+1}, v{m}\nv_permlane32_swap_b32 v{T}, v{T+1}\nv_max_f32 v{m}, v{T}, v{T+1}")
        a(f"v_cvt_pk_bf16_f32 v{T}, -v{m}, -v{m}\nv_and_b32 v{T+1}, 0xffff0000, v{T}\nv_sub_f32 v{T+2}, 0, v{m}\nv_sub_f32 v{T+2}, v{T+2}, v{T+1}")
        a(f"v_cvt_pk_bf16_f32 v{T+3}, v{T+2}, v{T+2}\nv_and_b32 v{T+3}, 0xffff0000, v{T+3}\nv_sub_f32 v{T+2}, v{T+2}, v{T+3}")
        a(f"v_and_b32 v{T}, 0xffff, v{T}\nv_or_b32 v{T}, v{T}, v{T+3}\nv_cvt_pk_bf16_f32 v{T+2}, v{T+2}, 0")
        a(f"v_cndmask_b32 v{Q+8*u+6}, v{Q+8*u+6}, v{T}, s[{sHI}:{sHI+1}]\nv_cndmask_b32 v{Q+8*u+7}, v{Q+8*u+7}, v{T+2}, s[{sHI}:{sHI+1}]")
    def QK(n, half):
        kt, x = divmod(n, 4)
        mfma(SS + 16 * (n & 1), KB + 8 * (kt % 3) + 4 * half, Q + 8 * x + 4 * half, first=(half == 0))
    def PV(n, half):
        kt, x = divmod(n, 4)
        mfma(O + 16 * x, VB + 8 * (kt % 3) + 4 * half, P + 8 * (n & 1) + 4 * half, first=(kt == 0 and half == 0))
    a.wait(vm=kt_tok[0])
    QK(0, 0); QK(0, 1)
    a("s_nop 7\ns_nop 3")
    a.hot = True
    for n in range(64):
        kt, x = divmod(n, 4)
        s_ = SS + 16 * (n & 1); p_ = P + 8 * (n & 1)
        e = lambda i: a(f"v_exp_f32 v{s_+i}, v{s_+i}")
        c = lambda i: a(f"v_cvt_pk_bf16_f32 v{p_+i}, v{s_+2*i}, v{s_+2*i+1}")
        sh = [[], [], [], []]
        if x == 1 and kt + 2 < 16: sh[0].append(lambda: vt_tok.__setitem__(kt + 2, [ld(VB + 8 * ((kt + 2) % 3), sV, 2048)]))
        if x == 2 and kt + 2 < 16:
            sh[0].append(lambda: vt_tok[kt + 2].append(ld(VB + 8 * ((kt + 2) % 3) + 4, sV, 3072)))
            sh[1].append(lambda: a(f"s_add_u32 s{sV}, s{sV}, 6144"))
        if x == 3 and kt + 3 < 16: sh[0].append(lambda: kt_tok.__setitem__(kt + 3, [ld(KB + 8 * (kt % 3), sK, 0)]))
        if x == 0 and kt >= 1 and kt + 2 < 16:
            sh[0].append(lambda: kt_tok[kt + 2].append(ld(KB + 8 * ((kt - 1) % 3) + 4, sK, 1024)))
            sh[1].append(lambda: a(f"s_add_u32 s{sK}, s{sK}, 6144"))
        if x == 2 and kt + 1 < 16: sh[3].append(lambda: a.wait(vm=kt_tok[kt + 1]))
        if x == 1: sh[1].append(lambda: a.wait(vm=vt_tok[kt]))
        mm = [(lambda: QK(n + 1, 0)) if n < 63 else None, (lambda: QK(n + 1, 1)) if n < 63 else None,
              (lambda: PV(n - 1, 0)) if n > 0 else None, (lambda: PV(n - 1, 1)) if n > 0 else None]
        seq = [[("e", 0), ("e", 1), ("e", 2), ("e", 3), ("c", 0)],
               [("e", 4), ("e", 5), ("c", 1), ("e", 6), ("e", 7), ("c", 2)],
               [("e", 8), ("e", 9), ("c", 3), ("e", 10), ("e", 11), ("c", 4)],
               [("e", 12), ("e", 13), ("c", 5), ("e", 14), ("e", 15), ("c", 6), ("c", 7)]]
        for g in range(4):
            if mm[g]: mm[g]()
            for t in sh[g]: t()
            for k, i in seq[g]: (e if k == "e" else c)(i)
    a.hot = False
    PV(63, 0); PV(63, 1)
    stamp(4)
    vW, vR = T, T + 1
    a(f"s_mul_i32 s{sT0}, s{sW}, 12288\nv_add_u32 v{vW}, s{sT0}, v{vL16}")
    for u in range(1, 4):
        for i in range(4): a.lg(f"ds_write_b128 v{vW}, v[{O+16*u+4*i}:{O+16*u+4*i+3}] offset:{(u-1)*4096 + 1024*i}")
    a(f"v_mov_b32 v{T+2}, 49152\nv_mov_b32 v{T+3}, 0")
    a.lg(f"ds_write_b32 v{T+2}, v{T+3}")
    a.wait_all(vm=False); a("s_barrier")
    for u in range(1, 4):
        a(f"s_xor_b32 s{sT0}, s{sW}, {u}\ns_mul_i32 s{sT0}, s{sT0}, 12288\nv_add_u32 v{vR}, s{sT0}, v{vL16}")
        tk = [a.lg(f"ds_read_b128 v[{O+16*u+4*i}:{O+16*u+4*i+3}], v{vR} offset:{(u-1)*4096 + 1024*i}") for i in range(4)]
    a.wait_all(vm=False)
    for u in (2, 1):
        src = O + 16 * (u + 1) if u == 2 else O + 32
        for i in range(0, 16, 2): a(f"v_pk_add_f32 v[{O+16*u+i}:{O+16*u+i+1}], v[{O+16*u+i}:{O+16*u+i+1}], v[{src+i}:{src+i+1}]")
    for i in range(0, 16, 2): a(f"v_pk_add_f32 v[{O+i}:{O+i+1}], v[{O+i}:{O+i+1}], v[{O+16+i}:{O+16+i+1}]")
    a(f"v_mov_b32 v{T+4}, v{O+12}\nv_mov_b32 v{T+5}, v{O+12}\nv_permlane32_swap_b32 v{T+4}, v{T+5}\nv_rcp_f32 v{vA}, v{T+5}")
    for i in range(0, 16, 2): a(f"v_pk_mul_f32 v[{O+i}:{O+i+1}], v[{O+i}:{O+i+1}], v[{vA}:{vA+1}] op_sel_hi:[1,0]")
    a(f"v_mul_f32 v{T+6}, 0, v{O}")
    for i in range(1, 16): a(f"v_fma_f32 v{T+6}, v{O+i}, 0, v{T+6}")
    a(f"s_mov_b32 s{sT0}, {hx(f2u(2.0**120))}\nv_cmp_nge_f32 vcc, s{sT0}, v{T+5}\nv_cmp_u_f32 s[{sT2}:{sT3}], v{T+6}, v{T+6}\ns_or_b64 vcc, vcc, s[{sT2}:{sT3}]")
    Lok = newlab("ok")
    a(f"s_cbranch_vccz {Lok}\nv_mov_b32 v{T+3}, 1\nds_write_b32 v{T+2}, v{T+3}")
    a.label(Lok)
    cvt16(P, O)
    a(f"v_cndmask_b32 v{P+6}, v{P+6}, v{vZERO}, s[{sHI}:{sHI+1}]\nv_cndmask_b32 v{P+7}, v{P+7}, v{vZERO}, s[{sHI}:{sHI+1}]")
    a(f"v_mul_u32_u24 v{T+7}, {PL}, v{vHH}\nv_lshl_add_u32 v{T+7}, v{vT_}, 4, v{T+7}")
    a(f"s_lshl_b32 s{sT0}, s{sQB}, 2\ns_add_u32 s{sT0}, s{sT0}, s{sW}\ns_lshl_b32 s{sT0}, s{sT0}, 9")
    a(f"s_mul_i32 s{sT1}, s{sH}, {4*PL}\ns_add_u32 s{sT0}, s{sT0}, s{sT1}\ns_add_u32 s{sT0}, s{sT0}, {O_}\ns_add_u32 s{sT1}, s{sT0}, {2*PL}")
    a.vm(f"buffer_store_dwordx4 v[{P}:{P+3}], v{T+7}, s[{sWS}:{sWS+3}], s{sT0} offen sc1")
    a.vm(f"buffer_store_dwordx4 v[{P+4}:{P+7}], v{T+7}, s[{sWS}:{sWS+3}], s{sT1} offen sc1")
    a.wait_all(); a("s_barrier")
    a(f"ds_read_b32 v{T+3}, v{T+2}\ns_waitcnt lgkmcnt(0)\nv_readfirstlane_b32 s{sT0}, v{T+3}")
    a(f"s_andn2_b32 s{sT0}, s{sT0}, s{sRETRY}\ns_cmp_lg_u32 s{sT0}, 0\ns_cbranch_scc1 L_A2_fallback")
    a(f"s_lshl_b32 s{sT0}, s{sQB}, 4\ns_add_u32 s{sT0}, s{sT0}, s{sH}\ns_lshl_b32 s{sT0}, s{sT0}, 7\ns_add_u32 s{sT0}, s{sT0}, {FLG + F_O*FT}")
    publish(sT0, barrier=False)
    stamp(5)
    a("s_endpgm")
    a.label("L_A2_fallback")
    a(f"s_mov_b32 s{sRETRY}, 1\ns_barrier")
    for u in range(4):
        a(f"v_cndmask_b32 v{Q+8*u+6}, v{Q+8*u+6}, v{vZERO}, s[{sHI}:{sHI+1}]\nv_cndmask_b32 v{Q+8*u+7}, v{Q+8*u+7}, v{vZERO}, s[{sHI}:{sHI+1}]")
        a(f"v_mov_b32 v{MX+u}, 0xff800000")
    a(f"s_mov_b32 s{sK}, s{sKT0}\ns_mov_b32 s{sT4}, 16")
    a.label("L_A2_fb_loop")
    ld(T, sK, 0); ld(T + 4, sK, 1024); a.wait_all()
    for u in range(4):
        mfma(SS, T, Q + 8 * u, first=True); mfma(SS, T + 4, Q + 8 * u + 4)
        rowmax(MX + u, SS, False)
        a("s_nop 7")
    a(f"s_add_u32 s{sK}, s{sK}, 6144\ns_sub_u32 s{sT4}, s{sT4}, 1\ns_cmp_lg_u32 s{sT4}, 0\ns_cbranch_scc1 L_A2_fb_loop")
    a(f"v_lshlrev_b32 v{T+8}, 2, v{vLANE}")
    for u in range(4):
        a(f"s_xor_b32 s{sT0}, s{sW}, {u}\ns_lshl_b32 s{sT0}, s{sT0}, 8\ns_lshl_b32 s{sT1}, s{sW}, 10\ns_add_u32 s{sT0}, s{sT0}, s{sT1}")
        a(f"v_add_u32 v{T+9}, s{sT0}, v{T+8}\nds_write_b32 v{T+9}, v{MX+u}")
    a("s_waitcnt lgkmcnt(0)\ns_barrier")
    for u in range(4):
        a(f"s_xor_b32 s{sT0}, s{sW}, {u}\ns_lshl_b32 s{sT0}, s{sT0}, 8\nv_add_u32 v{T+9}, s{sT0}, v{T+8}")
        for w2 in range(4): a(f"ds_read_b32 v{T+10+w2}, v{T+9} offset:{1024*w2}")
        a(f"s_waitcnt lgkmcnt(0)\nv_max3_f32 v{MX+u}, v{T+10}, v{T+11}, v{T+12}\nv_max_f32 v{MX+u}, v{MX+u}, v{T+13}")
    a("s_barrier")
    first_loads()
    a.wait_all()
    a("s_nop 7\ns_branch L_A2_setmax")

def rowmax(dst, s_, first):
    if first: a(f"v_max3_f32 v{dst}, v{s_}, v{s_+1}, v{s_+2}\nv_max_f32 v{dst}, v{dst}, v{s_+3}")
    else: a(f"v_max3_f32 v{dst}, v{dst}, v{s_}, v{s_+1}\nv_max3_f32 v{dst}, v{dst}, v{s_+2}, v{s_+3}")
    for i in range(4, 16, 2): a(f"v_max3_f32 v{dst}, v{dst}, v{s_+i}, v{s_+i+1}")

RES, vWD = 232, 248
sR64, sCT, sRW, sCW, sG2 = sA0, sA0 + 1, sA0 + 2, sA0 + 3, sA0 + 5
sB0 = sA0 + 7

def stage_B1():
    a.comment("==== B1: h = gelu(LN(LN(x)) @ w1), 64 x 64 tile")
    a.label("L_roleB")
    a.vmq = []; a.lgq = []
    a(f"s_cmp_ge_u32 s{sLOC}, 28\ns_cbranch_scc1 L_end")
    if OPT["prio_b"]: a(f"s_setprio {OPT['prio_b']}")
    srd(sWA, 12, D * D * 2)
    ACC, CS, XF, WF, ONES = 16, 32, 48, 56, 64
    vXd, vXr, vWr = 68, 70, 74
    vSUM, vSQ = 76, 77
    T = 80
    sKC = sB0; sWO_ = sB0 + 7; sM0 = sB0 + 14; sROT = sB0 + 15
    a(f"s_mul_i32 s{sT0}, s{sLOC}, 37\ns_lshr_b32 s{sT0}, s{sT0}, 8\ns_mul_i32 s{sT1}, s{sT0}, 7\ns_sub_u32 s{sCT}, s{sLOC}, s{sT1}")
    a(f"s_lshl_b32 s{sR64}, s{sXCD}, 2\ns_add_u32 s{sR64}, s{sR64}, s{sT0}")
    a(f"s_lshr_b32 s{sRW}, s{sW}, 1\ns_and_b32 s{sCW}, s{sW}, 1\ns_add_u32 s{sROT}, s{sCT}, 1")
    a(f"s_cmp_eq_u32 s{sROT}, 7\ns_cselect_b32 s{sROT}, 0, s{sROT}")
    rot7(sKC, sROT)
    a(f"s_lshl_b32 s{sT0}, s{sR64}, 2\ns_add_u32 s{sT0}, s{sT0}, s{sW}\ns_mul_i32 s{sT0}, s{sT0}, {16*896}")
    a(f"s_mul_i32 s{sT1}, s{sW}, {16*896}\ns_lshl_b32 s{sT2}, s{sCT}, 7\ns_add_u32 s{sT1}, s{sT1}, s{sT2}")
    for c in range(7):
        a(f"s_mul_i32 s{sWO_+c}, s{sKC+c}, {64*896}\ns_add_u32 s{sWO_+c}, s{sWO_+c}, s{sT1}")
        a(f"s_lshl_b32 s{sKC+c}, s{sKC+c}, 7\ns_add_u32 s{sKC+c}, s{sKC+c}, s{sT0}")
    a(f"s_lshl_b32 s{sM0}, s{sW}, 11")
    addr_xdma(vXd, 2, T); addr_wdma128(vWD, T)
    def issue(c):
        set_m0(sM0, (c % 4) * 16384)
        tk = [a.vm(f"buffer_load_dwordx4 v{vXd+q}, s[{sX}:{sX+3}], s{sKC+c} offen offset:{1024*q} lds") for q in range(2)]
        set_m0(sM0, (c % 4) * 16384 + 8192)
        return tk + [a.vm(f"buffer_load_dwordx4 v{vWD+q}, s[{sWA}:{sWA+3}], s{sWO_+c} offen offset:{1024*q} lds") for q in range(2)]
    tk = {c: issue(c) for c in range(4)}
    srd(sW2, 14, D * D * 2); srd(sW3, 16, D * F * 2); srd(sW4, 18, D * F * 2); srd(sWO, 8, D * D * 2); srd(sOUT, 20, S * D * 2)
    a(f"s_lshl_b32 s{sT3}, s{sRW}, 12")
    addr_xrd(vXr, sT3, T)
    a(f"s_mov_b32 s{sT3}, 8192")
    addr_wrd128(vWr, 8, sCW, sT3, T)
    for i in range(4): a(f"v_mov_b32 v{ONES+i}, s{sONES}")
    a(f"v_mov_b32 v{vSUM}, 0\nv_mov_b32 v{vSQ}, 0")
    a(f"s_mov_b32 s{sG2}, {hx(f2u(GB))}\ns_mov_b32 s{sG2+1}, {hx(f2u(GB))}\nv_mov_b32 v{vGA}, {hx(f2u(GA))}\nv_mov_b32 v{vGA+1}, {hx(f2u(GA))}")
    rd = {}
    def reads(s):
        c, ks = divmod(s, 4); base = (c % 4) * 16384; b = s & 1
        rd[s] = []
        th = [lambda: rd[s].append(a.lg(f"ds_read_b128 v[{XF+4*b}:{XF+4*b+3}], v{vXr+ks} offset:{base}"))]
        for jj in range(2):
            th.append(lambda jj=jj: rd[s].append(a.lg(f"ds_read_b64_tr_b16 v[{WF+4*b+2*jj}:{WF+4*b+2*jj+1}], v{vWr} offset:{base + ks*2048 + jj*512}")))
        return th
    a.wait(vm=tk[0]); a("s_barrier")
    for t in reads(0): t()
    for s in range(28):
        c, ks = divmod(s, 4); b = s & 1
        a.wait(lg=rd[s])
        fill = []
        if ks == 3 and c < 6:
            a.wait(vm=tk[c + 1]); a("s_barrier")
        if s < 27: fill += reads(s + 1)
        if ks == 3 and c + 4 <= 6: fill.append(lambda c=c: tk.__setitem__(c + 4, issue(c + 4)))
        mfma(ACC, WF + 4 * b, XF + 4 * b, first=(s == 0))
        for t in fill: t()
        for i in range(2): a(f"v_dot2c_f32_bf16 v{vSUM}, s{sONES}, v{XF+4*b+i}\nv_dot2c_f32_bf16 v{vSQ}, v{XF+4*b+i}, v{XF+4*b+i}")
        mfma(CS, WF + 4 * b, ONES, first=(s == 0))
        for i in range(2, 4): a(f"v_dot2c_f32_bf16 v{vSUM}, s{sONES}, v{XF+4*b+i}\nv_dot2c_f32_bf16 v{vSQ}, v{XF+4*b+i}, v{XF+4*b+i}")
    stamp(1)
    XV = 96
    a(f"v_bfe_u32 v{T}, v{vT_}, 1, 3\ns_lshl_b32 s{sT0}, s{sCW}, 2\nv_xor_b32 v{T}, s{sT0}, v{T}\nv_lshlrev_b32 v{T}, 4, v{T}")
    a(f"v_lshl_add_u32 v{T}, v{vT_}, 7, v{T}\nv_lshl_add_u32 v{T}, v{vHH}, 3, v{T}\ns_lshl_b32 s{sT0}, s{sRW}, 12\nv_add_u32 v{T}, s{sT0}, v{T}")
    xt = []
    for i in range(4):
        a(f"v_xor_b32 v{T+1}, {16*i}, v{T}")
        xt.append(a.lg(f"ds_read_b64 v[{XV+2*i}:{XV+2*i+1}], v{T+1} offset:{2*16384}"))
    a.wait_all(vm=False); a("s_barrier")
    a(f"s_mul_i32 s{sT0}, s{sW}, {112*896}\ns_lshl_b32 s{sT1}, s{sCT}, 7\ns_add_u32 s{sT0}, s{sT0}, s{sT1}\ns_mul_i32 s{sT1}, s{sW}, 14336")
    for q in range(7):
        set_m0(sT1, 2048 * q)
        for j in range(2): a.vm(f"buffer_load_dwordx4 v{vWD+j}, s[{sW2}:{sW2+3}], s{sT0} offen offset:{1024*j} lds")
        if q < 6: a(f"s_add_u32 s{sT0}, s{sT0}, {16*896}")
    ln_stats(vSUM, vSQ, T)
    a(f"v_add_f32 v{T}, {hx(f2u(EPS))}, v{vSQ}\nv_rsq_f32 v{T}, v{T}\nv_mul_f32 v{T+1}, v{T}, v{T}\nv_mov_b32 v{T+2}, {hx(f2u(EPS))}")
    a(f"v_fma_f32 v{T+1}, v{T+1}, v{vSQ}, v{T+2}\nv_rsq_f32 v{T+1}, v{T+1}\nv_mul_f32 v{vA}, v{T}, v{T+1}")
    a(f"v_mul_f32 v{vB}, v{vA}, v{vSUM}\nv_sub_f32 v{vB}, 0, v{vB}")
    Y, GT, PK = 112, 128, 144
    affine16(Y, ACC, CS)
    gelu16(Y, GT, sG2)
    cvt16(PK, Y)
    vPLN = 250
    a(f"s_lshl_b32 s{sT0}, s{sRW}, 9\nv_mul_u32_u24 v{vPLN}, {PL}, v{vHH}\nv_lshl_add_u32 v{vPLN}, v{vT_}, 4, v{vPLN}\nv_add_u32 v{vPLN}, s{sT0}, v{vPLN}")
    a(f"s_lshl_b32 s{sT0}, s{sCT}, 1\ns_add_u32 s{sT0}, s{sT0}, s{sCW}\ns_mul_i32 s{sT0}, s{sT0}, {4*PL}")
    a(f"s_lshl_b32 s{sT1}, s{sR64}, 10\ns_add_u32 s{sT0}, s{sT0}, s{sT1}\ns_add_u32 s{sB0}, s{sT0}, {H_}\ns_add_u32 s{sT1}, s{sB0}, {2*PL}")
    a.vm(f"buffer_store_dwordx4 v[{PK}:{PK+3}], v{vPLN}, s[{sWS}:{sWS+3}], s{sB0} offen sc1")
    a.vm(f"buffer_store_dwordx4 v[{PK+4}:{PK+7}], v{vPLN}, s[{sWS}:{sWS+3}], s{sT1} offen sc1")
    for i in range(8):
        a(f"v_lshlrev_b32 v{RES+2*i}, 16, v{XV+i}\nv_and_b32 v{RES+2*i+1}, 0xffff0000, v{XV+i}")
    a(f"v_mov_b32 v{vA}, v{T}\nv_mul_f32 v{vB}, v{T}, v{vSUM}\nv_sub_f32 v{vB}, 0, v{vB}")
    for i in range(0, 16, 2):
        a(f"v_pk_fma_f32 v[{ACC+i}:{ACC+i+1}], v[{RES+i}:{RES+i+1}], v[{vA}:{vA+1}], v[{vB}:{vB+1}] op_sel_hi:[1,0,0]")
    get_nonce()
    a(f"s_lshl_b32 s{sT0}, s{sR64}, 3\ns_add_u32 s{sT0}, s{sT0}, s{sCT}\ns_lshl_b32 s{sT0}, s{sT0}, 7\ns_add_u32 s{sT0}, s{sT0}, {FLG + F_H*FT}")
    publish(sT0)
    stamp(2)

def stage_B2():
    a.comment("==== B2: x1 = xn + shift(h) @ w2")
    ACC, HF, WF = 16, 32, 144
    vSH, vWr, T = 160, 164, 168
    vPLN = 250
    a(f"v_lshrrev_b32 v{T}, 3, v{vLANE}\nv_min_u32 v{T}, 2, v{T}\nv_add_u32 v{T}, s{sR64}, v{T}\nv_subrev_u32 v{T}, 1, v{T}")
    a(f"v_max_i32 v{T}, 0, v{T}\nv_min_i32 v{T}, 31, v{T}\nv_and_b32 v{T+1}, 7, v{vLANE}\nv_min_u32 v{T+1}, 6, v{T+1}")
    a(f"v_lshl_add_u32 v{T}, v{T}, 3, v{T+1}\nv_lshlrev_b32 v{T}, 7, v{T}\nv_add_u32 v{vPO}, {FLG + F_H*FT}, v{T}")
    a(f"s_lshl_b32 s{sT0}, s{sR64}, 6\ns_lshl_b32 s{sT1}, s{sRW}, 5\ns_add_u32 s{sT0}, s{sT0}, s{sT1}\nv_add_u32 v{T}, s{sT0}, v{vT_}")
    a(f"v_mul_u32_u24 v{T+1}, {PL}, v{vHH}\nv_mov_b32 v{T+3}, 0x7fff0000\ns_movk_i32 s{sT2}, 2048")
    for g, sh in enumerate((-1, 1, -2, 2)):
        a(f"v_add_u32 v{T+2}, {sh}, v{T}\nv_cmp_gt_u32 vcc, s{sT2}, v{T+2}\nv_lshl_add_u32 v{vSH+g}, v{T+2}, 4, v{T+1}\nv_cndmask_b32 v{vSH+g}, v{T+3}, v{vSH+g}, vcc")
    addr_wrd128(vWr, 4, sCW, None, T)
    poll()
    stamp(3)
    a(f"s_mov_b32 s{sT0}, {H_}")
    ht = []
    for ks in range(28):
        ht.append(a.vm(f"buffer_load_dwordx4 v[{HF+4*ks}:{HF+4*ks+3}], v{vSH + ks//7}, s[{sWS}:{sWS+3}], s{sT0} offen sc1"))
        if ks < 27: a(f"s_add_u32 s{sT0}, s{sT0}, {2*PL}")
    rd = {}
    def reads(s):
        r = WF + 4 * (s & 3)
        rd[s] = [a.lg(f"ds_read_b64_tr_b16 v[{r+2*jj}:{r+2*jj+1}], v{vWr} offset:{s*2048 + jj*1024}") for jj in range(2)]
    for s in range(3): reads(s)
    for s in range(28):
        a.wait(vm=ht[s], lg=rd[s])
        mfma(ACC, WF + 4 * (s & 3), HF + 4 * s)
        if s + 3 < 28: reads(s + 3)
    a("s_barrier")
    stage_B3_prefetch()
    PK = 32
    cvt16(PK, ACC)
    for i in range(0, 16, 2): a(f"v_pk_add_f32 v[{RES+i}:{RES+i+1}], v[{RES+i}:{RES+i+1}], v[{ACC+i}:{ACC+i+1}]")
    a(f"s_lshl_b32 s{sT0}, s{sCT}, 1\ns_add_u32 s{sT0}, s{sT0}, s{sCW}\ns_mul_i32 s{sT0}, s{sT0}, {4*PL}")
    a(f"s_lshl_b32 s{sT1}, s{sR64}, 10\ns_add_u32 s{sT0}, s{sT0}, s{sT1}\ns_add_u32 s{sT0}, s{sT0}, {X1}\ns_add_u32 s{sT1}, s{sT0}, {2*PL}")
    for p in range(2):
        a(f"v_permlane32_swap_b32 v{PK+4*p}, v{PK+4*p+2}\nv_permlane32_swap_b32 v{PK+4*p+1}, v{PK+4*p+3}")
        a.vm(f"buffer_store_dwordx4 v[{PK+4*p}:{PK+4*p+3}], v{vPLN}, s[{sWS}:{sWS+3}], s{sT0 + p} offen sc1")
    a(f"s_lshl_b32 s{sT0}, s{sR64}, 3\ns_add_u32 s{sT0}, s{sT0}, s{sCT}\ns_lshl_b32 s{sT0}, s{sT0}, 7\ns_add_u32 s{sT0}, s{sT0}, {FLG + F_X1*FT}")
    publish(sT0)
    stamp(4)

B3 = {}
sRB3, sC3, sW3O, sM03 = sB0, sB0 + 1, sB0 + 2, sB0 + 9
sK3 = sB0 + 10
vWd3 = 224
def stage_B3_prefetch():
    T = 216
    a(f"s_cmp_ge_u32 s{sLOC}, 14\ns_cselect_b32 s{sT0}, 1, 0\ns_cselect_b32 s{sT1}, 14, 0\ns_sub_u32 s{sC3}, s{sLOC}, s{sT1}")
    a(f"s_lshl_b32 s{sRB3}, s{sXCD}, 1\ns_add_u32 s{sRB3}, s{sRB3}, s{sT0}")
    rot7(sK3, sCT)
    a(f"s_mul_i32 s{sT1}, s{sW}, {16*3584}\ns_lshl_b32 s{sT2}, s{sC3}, 8\ns_add_u32 s{sT1}, s{sT1}, s{sT2}")
    for c in range(7):
        a(f"s_mul_i32 s{sW3O+c}, s{sK3+c}, {64*3584}\ns_add_u32 s{sW3O+c}, s{sW3O+c}, s{sT1}")
    a(f"s_lshl_b32 s{sM03}, s{sW}, 12")
    addr_wdma256(vWd3, 3584, T)
    def issue_w(c):
        set_m0(sM03, (c % 5) * 16384)
        return [a.vm(f"buffer_load_dwordx4 v{vWd3+q}, s[{sW3}:{sW3+3}], s{sW3O+c} offen offset:{1024*q} lds") for q in range(4)]
    B3["issue_w"] = issue_w
    B3["wt"] = {c: issue_w(c) for c in range(5)}

def stage_B3():
    a.comment("==== B3: g = gelu(LN(x1) @ w3), 128 x 128 tile")
    ACC, XF, WF, vWr = 16, 80, 192, 228
    vSUM, vSQ, vCS, vXo = 251, 252, 253, 13
    T = 192
    a(f"s_lshl_b32 s{sT0}, s{sRB3}, 1\ns_add_u32 s{sT0}, s{sT0}, s{sRW}\ns_lshl_b32 s{sT0}, s{sT0}, 10\ns_add_u32 s{sT0}, s{sT0}, {FLG + F_X1*FT}")
    a(f"v_min_u32 v{T}, 6, v{vLANE}\nv_lshl_add_u32 v{vPO}, v{T}, 7, s{sT0}")
    a(f"s_lshl_b32 s{sT0}, s{sRB3}, 2\ns_add_u32 s{sT0}, s{sT0}, s{sW}\ns_lshl_b32 s{sT0}, s{sT0}, 9\ns_add_u32 s{sT1}, s{sT0}, {X1}")
    for c in range(7): a(f"s_mul_i32 s{sK3+c}, s{sK3+c}, {8*PL}\ns_add_u32 s{sK3+c}, s{sK3+c}, s{sT1}")
    sGD = sT4
    a(f"s_mul_i32 s{sT1}, s{sC3}, {16*PL}\ns_add_u32 s{sGD}, s{sT0}, s{sT1}\ns_add_u32 s{sGD}, s{sGD}, {G_}")
    a(f"v_mul_u32_u24 v{vXo}, {PL}, v{vHH}\nv_lshl_add_u32 v{vXo}, v{vT_}, 4, v{vXo}")
    addr_wrd256(vWr, 64, T)
    a(f"v_mov_b32 v{vSUM}, 0\nv_mov_b32 v{vSQ}, 0\nv_mov_b32 v{vCS}, 0")
    poll()
    stamp(5)
    xt = []
    for s in range(28):
        c, ks = divmod(s, 4)
        so = sK3 + c
        if ks: a(f"s_add_u32 s{sT0}, s{sK3+c}, {2*ks*PL}"); so = sT0
        xt.append(a.vm(f"buffer_load_dwordx4 v[{XF+4*s}:{XF+4*s+3}], v{vXo}, s[{sWS}:{sWS+3}], s{so} offen sc1"))
    hooks = dict(before_barrier=lambda c: None, after_barrier=lambda c: [], lg_need=lambda s: [],
                 vm_need=lambda s: [xt[s]], kstep=lambda s: [])
    panel_mainloop(ACC, WF, vWr, 5, lambda s: XF + 4 * s, B3["issue_w"], B3["wt"], hooks, vSUM, vSQ, vCS)
    stamp(6)
    CSB = 73728
    panel_colsums(vCS, CSB, T)
    CS, Y, GT, PK = 80, 96, 112, 128
    toks = read_cs(CS, 0, CSB, T + 4)
    stage_B4_prefetch()
    ln_stats(vSUM, vSQ, T)
    a(f"v_add_f32 v{vSQ}, {hx(f2u(EPS))}, v{vSQ}\nv_rsq_f32 v{vA}, v{vSQ}\nv_mul_f32 v{vB}, v{vA}, v{vSUM}\nv_sub_f32 v{vB}, 0, v{vB}")
    for u in range(4):
        a.wait(lg=toks)
        affine16(Y, ACC + 16 * u, CS)
        if u < 3: toks = read_cs(CS, u + 1, CSB, T + 4)
        gelu16(Y, GT, sG2)
        pk = PK + 8 * (u & 1)
        cvt16(pk, Y)
        a(f"s_add_u32 s{sT0}, s{sW}, {u}\ns_and_b32 s{sT0}, s{sT0}, 3\ns_mul_i32 s{sT0}, s{sT0}, {4*PL}\ns_add_u32 s{sT0}, s{sT0}, s{sGD}\ns_add_u32 s{sT1}, s{sT0}, {2*PL}")
        for m in range(2): a.vm(f"buffer_store_dwordx4 v[{pk+4*m}:{pk+4*m+3}], v{vXo}, s[{sWS}:{sWS+3}], s{sT0+m} offen sc1")
    a(f"s_lshl_b32 s{sT0}, s{sRB3}, 4\ns_add_u32 s{sT0}, s{sT0}, s{sC3}\ns_lshl_b32 s{sT0}, s{sT0}, 7\ns_add_u32 s{sT0}, s{sT0}, {FLG + F_G*FT}")
    publish(sT0)
    stamp(7)

B4 = {}
sG4, sW4o, sM04, sWOo, sOo = 4, 11, 18, 19, 20
NZ = 9
def stage_B4_prefetch():
    rot7(sG4, sCT)
    a(f"s_mul_i32 s{sT0}, s{sW}, {448*896}\ns_lshl_b32 s{sT1}, s{sCT}, 7\ns_add_u32 s{sT0}, s{sT0}, s{sT1}")
    a(f"s_mul_i32 s{sWOo}, s{sW}, {112*896}\ns_add_u32 s{sWOo}, s{sWOo}, s{sT1}")
    a(f"s_lshl_b32 s{sT2}, s{sR64}, 10\ns_mul_i32 s{sT1}, s{sW}, {56*PL}\ns_add_u32 s{sT1}, s{sT1}, s{sT2}\ns_add_u32 s{sT1}, s{sT1}, {G_}")
    a(f"s_mul_i32 s{sOo}, s{sW}, {16*PL}\ns_add_u32 s{sOo}, s{sOo}, s{sT2}\ns_add_u32 s{sOo}, s{sOo}, {O_}")
    for c in range(7):
        a(f"s_mul_i32 s{sW4o+c}, s{sG4+c}, {64*896}\ns_add_u32 s{sW4o+c}, s{sW4o+c}, s{sT0}")
        a(f"s_mul_i32 s{sG4+c}, s{sG4+c}, {8*PL}\ns_add_u32 s{sG4+c}, s{sG4+c}, s{sT1}")
    a(f"s_mul_i32 s{sM04}, s{sW}, {NZ*2048}")
    def issue_w(j):
        set_m0(sM04, (j % NZ) * 2048)
        if j < 28:
            c, ks = divmod(j, 4); srd_, base, add = sW4, sW4o + c, ks * 16 * 896
        else:
            hd, m = divmod(j - 28, 2); srd_, base, add = sWO, sWOo, (28 * hd + 16 * m) * 896
        so = base
        if add: a(f"s_add_u32 s{sT5}, s{base}, {add}"); so = sT5
        return [a.vm(f"buffer_load_dwordx4 v{vWD+q}, s[{srd_}:{srd_+3}], s{so} offen offset:{1024*q} lds") for q in range(2)]
    B4["issue_w"] = issue_w
    B4["wt"] = {j: issue_w(j) for j in range(NZ)}

def stage_B4():
    a.comment("==== B4: out = x + x1 + g @ w4 + o @ wo, 64 x 64 tile, k split over the waves")
    ACC, GF, WF, vWr, vGo, T = 16, 80, 144, 160, 162, 164
    vPLN = 250
    wt = B4["wt"]; issue_w = B4["issue_w"]
    a(f"s_lshr_b32 s{sT0}, s{sR64}, 1\ns_lshl_b32 s{sT0}, s{sT0}, 4\ns_mul_i32 s{sT1}, s{sW}, 7\ns_lshr_b32 s{sT1}, s{sT1}, 1\ns_add_u32 s{sT1}, s{sT1}, s{sT0}")
    a(f"v_and_b32 v{T}, 3, v{vLANE}\nv_add_u32 v{T+1}, s{sT1}, v{T}\nv_lshlrev_b32 v{T+1}, 7, v{T+1}\nv_add_u32 v{vPO}, {FLG + F_G*FT}, v{T+1}")
    vPO2 = T + 8
    a(f"s_lshl_b32 s{sT1}, s{sW}, 2\ns_add_u32 s{sT1}, s{sT1}, s{sT0}\nv_add_u32 v{T+1}, s{sT1}, v{T}\nv_lshlrev_b32 v{T+1}, 7, v{T+1}\nv_add_u32 v{vPO2}, {FLG + F_O*FT}, v{T+1}")
    addr_wrd128(vWr, 4, sCW, sM04, T)
    a(f"v_xor_b32 v{vWr+1}, 64, v{vWr}")
    a(f"s_lshl_b32 s{sT0}, s{sRW}, 9\ns_xor_b32 s{sT1}, s{sT0}, 512\ns_sub_u32 s{sT1}, s{sT1}, s{sT0}")
    a(f"v_mov_b32 v{vGo}, v{vPLN}\nv_add_u32 v{vGo+1}, s{sT1}, v{vPLN}")
    for i in range(16): a(f"v_mov_b32 v{ACC+i}, v{RES+i}")
    rd = {}; gt = {}
    def reads(j):
        a.wait(vm=wt[j])
        rd[j] = []
        return [lambda b=b, jj=jj: rd[j].append(a.lg(f"ds_read_b64_tr_b16 v[{WF+8*(j&1)+4*b+2*jj}:{WF+8*(j&1)+4*b+2*jj+1}], v{vWr+b} offset:{(j%NZ)*2048 + jj*1024}")) for b in range(2) for jj in range(2)]
    def gload(j):
        if j < 28:
            c, ks = divmod(j, 4); base, add = sG4 + c, 2 * ks * PL
        else: base, add = sOo, 2 * (j - 28) * PL
        so = base
        if add: a(f"s_add_u32 s{sT4}, s{base}, {add}"); so = sT4
        r = GF + 8 * (j % 8)
        gt[j] = [a.vm(f"buffer_load_dwordx4 v[{r+4*aa}:{r+4*aa+3}], v{vGo+aa}, s[{sWS}:{sWS+3}], s{so} offen sc1") for aa in range(2)]
    for t in reads(0): t()
    poll()
    stamp(8)
    for j in range(7): gload(j)
    for j in range(36):
        if j == 28:
            stamp(9)
            a(f"v_mov_b32 v{vPO}, v{vPO2}")
            poll()
            stamp(10)
            for jj in range(28, 36): gload(jj)
        a.wait(vm=gt[j], lg=rd[j])
        fill = []
        if j + 1 < 36: fill += reads(j + 1)
        if j + NZ < 36: fill.append(lambda j=j: wt.__setitem__(j + NZ, issue_w(j + NZ)))
        if j + 7 < 28: fill.append(lambda j=j: gload(j + 7))
        g = GF + 8 * (j % 8); w = WF + 8 * (j & 1)
        k = 0
        for u in range(4):
            aa, b = divmod(u, 2)
            mfma(ACC + 16 * u, w + 4 * b, g + 4 * aa, first=(j == 0 and u > 0))
            upto = (len(fill) * (u + 1) + 3) // 4
            while k < upto: fill[k](); k += 1
    stamp(11)
    vW, vR = T, T + 1
    a(f"v_add_u32 v{vW}, s{sM04}, v{vL16}")
    for u in range(1, 4):
        for i in range(4): a.lg(f"ds_write_b128 v{vW}, v[{ACC+16*u+4*i}:{ACC+16*u+4*i+3}] offset:{(u-1)*4096 + 1024*i}")
    a.wait_all(vm=False); a("s_barrier")
    for u in range(1, 4):
        a(f"s_xor_b32 s{sT0}, s{sW}, {u}\ns_mul_i32 s{sT0}, s{sT0}, {NZ*2048}\nv_add_u32 v{vR}, s{sT0}, v{vL16}")
        for i in range(4): a.lg(f"ds_read_b128 v[{ACC+16*u+4*i}:{ACC+16*u+4*i+3}], v{vR} offset:{(u-1)*4096 + 1024*i}")
    a(f"s_lshl_b32 s{sT0}, s{sR64}, 1\ns_add_u32 s{sT0}, s{sT0}, s{sRW}\ns_mul_i32 s{sT0}, s{sT0}, {32*896}")
    a(f"s_lshl_b32 s{sT1}, s{sCT}, 1\ns_add_u32 s{sT1}, s{sT1}, s{sCW}\ns_lshl_b32 s{sT1}, s{sT1}, 6\ns_add_u32 s{sT0}, s{sT0}, s{sT1}")
    a(f"v_mul_u32_u24 v{T+2}, 896, v{vT_}\nv_lshl_add_u32 v{T+2}, v{vHH}, 4, v{T+2}")
    a.wait_all(vm=False)
    for i in range(0, 16, 2): a(f"v_pk_add_f32 v[{ACC+32+i}:{ACC+32+i+1}], v[{ACC+32+i}:{ACC+32+i+1}], v[{ACC+48+i}:{ACC+48+i+1}]")
    for i in range(0, 16, 2): a(f"v_pk_add_f32 v[{ACC+i}:{ACC+i+1}], v[{ACC+i}:{ACC+i+1}], v[{ACC+16+i}:{ACC+16+i+1}]")
    for i in range(0, 16, 2): a(f"v_pk_add_f32 v[{ACC+i}:{ACC+i+1}], v[{ACC+i}:{ACC+i+1}], v[{ACC+32+i}:{ACC+32+i+1}]")
    PK = GF
    cvt16(PK, ACC)
    for p in range(2):
        a(f"v_permlane32_swap_b32 v{PK+4*p}, v{PK+4*p+2}\nv_permlane32_swap_b32 v{PK+4*p+1}, v{PK+4*p+3}")
        a.vm(f"buffer_store_dwordx4 v[{PK+4*p}:{PK+4*p+3}], v{T+2}, s[{sOUT}:{sOUT+3}], s{sT0} offen offset:{32*p}")
    stamp(12)

HEAD = f"""; parallel sum of an attention block and a spatial-shift MLP mixer.  One persistent launch, two workgroups per CU:
; @launch grid=(512,1,1) block=(256,1,1) lds={LDS_BYTES}
.amdgcn_target "amdgcn-amd-amdhsa--gfx950"
.text
.globl {NAME}_kernel
.p2align 8
.type {NAME}_kernel,@function
{NAME}_kernel:
"""
TAIL = f""".section .rodata,"a"
.p2align 6
.amdhsa_kernel {NAME}_kernel
  .amdhsa_next_free_vgpr 256
  .amdhsa_next_free_sgpr 102
  .amdhsa_accum_offset 256
  .amdhsa_group_segment_fixed_size 0
  .amdhsa_kernarg_size 88
  .amdhsa_user_sgpr_count 2
  .amdhsa_user_sgpr_kernarg_segment_ptr 1
  .amdhsa_system_sgpr_workgroup_id_x 1
.end_amdhsa_kernel
"""

def build():
    st = OPT["stop_after"]
    prologue()
    stage_A1()
    if st >= 2: stage_A2()
    else: a("s_endpgm")
    stage_B1()
    if st >= 2: stage_B2()
    if st >= 3: stage_B3()
    if st >= 4: stage_B4()
    a.label("L_end")
    a("s_endpgm")
    a.pad_hazards()
    size, nprom, nnop = fix_straddles(a, HEAD, TAIL, verbose=True)
    print(f"code bytes {size}, hazard nops {a.nops_inserted}, promoted {nprom}, straddle nops {nnop}")
    open(sys.argv[1], "w").write(HEAD + a.text() + TAIL)

if __name__ == "__main__":
    build()
```

```python
import sys, math, struct
from asmlib import *

NAME = "parallel_sum__mha_block__mixer_s_mlp__prompt"
OPT = dict(stamps=0, spin=400000, prio_b=1, pf=9, outsc=0, noattn=0, nob=0, nr=5, thr=64, go=12, prio_a1=2, prio_at=2, w2late=1, thra=6, swap=1, anf=1, thr3=64, w3a=0, w3b=5, aprio=1, pad3=0, pad4=0)
for a in sys.argv[2:]:
    k, v = a.split("="); OPT[k] = int(v, 0)

def f2u(x): return struct.unpack("<I", struct.pack("<f", x))[0]
def hx(x): return hex(x & 0xffffffff)

S, D, F = 2048, 448, 1792
PL = 32768 + 256
FLG = 0; FT = 0x8000
F_QKV, F_GO, F_X1, F_G, F_O, F_LN = 0, 1, 2, 3, 4, 5
QB_ = 0x40000
KV_ = QB_ + 16 * 64 * 2048
H_ = KV_ + 16 * 64 * 4096
X1 = H_ + 0x1C4000
O_ = X1 + 0x1C4000
G_ = O_ + 0x204000
XN_ = G_ + 0x70E000
ST0 = XN_ + 0x1C4000
ST1 = ST0 + 0x8000
WS_SIZE = ST1 + 14 * 0x4000
STAMP = 0x1600000
if OPT['stamps']: WS_SIZE = STAMP + 0x80000
LDS_BYTES = 81920
EPS = 1e-5
QSCALE = (28 ** -0.5) * math.log2(math.e)
GA = -2.0 * math.log2(math.e) * math.sqrt(2.0 / math.pi)
GB = GA * 0.044715

sX, sWS, sDBG, sWA, sW2, sW3, sW4, sWO, sOUT = 28, 32, 36, 40, 44, 48, 52, 56, 60
sHI = 26
sW, sXCD, sLOC = 64, 65, 66
sONES = 67
sT0, sT1, sT2, sT3, sT4, sT5 = 68, 69, 70, 71, 72, 73
sCNT = 74
sA0 = 75
vTID, vLANE, vT_, vHH, vZERO = 0, 1, 2, 3, 4
vNO = 6
vP0 = 8
vPO = 10
vL16 = 11
vA, vB = 12, 14

a = Asm()
lab = [0]
def newlab(p):
    lab[0] += 1; return f"L_{p}_{lab[0]}"

def srd(dst, ptr, size):
    a(f"s_mov_b32 s{dst}, s{ptr}\ns_mov_b32 s{dst+1}, s{ptr+1}\ns_mov_b32 s{dst+2}, {hx(size)}\ns_mov_b32 s{dst+3}, 0x20000")

nstamp = [0]
prev_stamp = [None]
stamp_names = {}
def stamp(name, first=False):
    if not OPT["stamps"]: return
    idx = stamp_names.setdefault(name, len(stamp_names))
    assert idx < 64
    if first: a("v_mov_b32 v5, 0")
    elif prev_stamp[0] is not None: a(f"v_writelane_b32 v5, s100, {prev_stamp[0]}")
    a("s_memrealtime s[100:101]")
    prev_stamp[0] = idx

def stamp_flush():
    if not OPT["stamps"]: return
    a(f"s_waitcnt lgkmcnt(0)\nv_writelane_b32 v5, s100, {prev_stamp[0]}")
    a(f"s_lshl_b32 s100, s2, 2\ns_add_u32 s100, s100, s{sW}\ns_lshl_b32 s100, s100, 8\ns_add_u32 s100, s100, {STAMP}")
    a(f"v_lshlrev_b32 v{vP0}, 2, v{vLANE}\nbuffer_store_dword v5, v{vP0}, s[{sWS}:{sWS+3}], s100 offen")

def get_nonce():
    L = newlab("no"); Dn = newlab("nod")
    a(f"s_mov_b32 s{sCNT}, {OPT['spin']}")
    a.label(L)
    a(f"buffer_load_dwordx2 v[{vNO}:{vNO+1}], v{vZERO}, s[{sDBG}:{sDBG+3}], 0 offen sc1")
    a.wait_all(lg=False)
    a(f"v_cmp_eq_u32 vcc, 0, v{vNO}\ns_cbranch_vccz {Dn}\ns_sub_u32 s{sCNT}, s{sCNT}, 1\ns_cbranch_scc1 {Dn}\ns_sleep 1\ns_branch {L}")
    a.label(Dn)

def check_nonce(keep=False):
    Dn = newlab("cn")
    q = list(a.vmq)
    a(f"v_cmp_eq_u32 vcc, 0, v{vNO}\ns_cbranch_vccz {Dn}")
    get_nonce()
    a.label(Dn)
    a.vmq = q

def poll():
    L = newlab("po"); Dn = newlab("pod")
    a(f"s_mov_b32 s{sCNT}, {OPT['spin']}")
    a.label(L)
    a(f"buffer_load_dwordx2 v[{vP0}:{vP0+1}], v{vPO}, s[{sWS}:{sWS+3}], 0 offen sc1")
    a.wait_all(lg=False)
    a(f"v_cmp_ne_u64 vcc, v[{vP0}:{vP0+1}], v[{vNO}:{vNO+1}]\ns_cbranch_vccz {Dn}\ns_sub_u32 s{sCNT}, s{sCNT}, 1\ns_cbranch_scc1 {Dn}\ns_sleep 1\ns_branch {L}")
    a.label(Dn)

def publish(sflag, barrier=True):
    L = newlab("pub")
    if barrier:
        a.wait_all()
        a("s_barrier")
    a(f"s_cmp_lg_u32 s{sW}, 0\ns_cbranch_scc1 {L}\ns_mov_b64 exec, 1")
    a(f"buffer_store_dwordx2 v[{vNO}:{vNO+1}], v{vZERO}, s[{sWS}:{sWS+3}], s{sflag} offen sc1")
    a("s_mov_b64 exec, -1")
    a.label(L)
    a.flag_pending = True

def xhalf_add(v, t1, t2):
    a(f"v_mov_b32 v{t1}, v{v}\nv_mov_b32 v{t2}, v{v}\nv_permlane32_swap_b32 v{t1}, v{t2}\nv_add_f32 v{v}, v{t1}, v{t2}")

def ln_stats(vsum, vsq, t):
    a(f"v_mul_f32 v{vsum}, {hx(f2u(1.0/D))}, v{vsum}\nv_mul_f32 v{vsq}, {hx(f2u(1.0/D))}, v{vsq}")
    a(f"v_fma_f32 v{vsq}, -v{vsum}, v{vsum}, v{vsq}\nv_max_f32 v{vsq}, 0, v{vsq}")

def scale16(acc):
    for i in range(0, 16, 2):
        a(f"v_pk_mul_f32 v[{acc+i}:{acc+i+1}], v[{acc+i}:{acc+i+1}], v[{vA}:{vA+1}] op_sel_hi:[1,0]")
def shift16(acc, cs):
    for i in range(0, 16, 2):
        a(f"v_pk_fma_f32 v[{acc+i}:{acc+i+1}], v[{cs+i}:{cs+i+1}], v[{vB}:{vB+1}], v[{acc+i}:{acc+i+1}] op_sel_hi:[1,0,1]")

def gelu16(y, t, sG, vG, hook=lambda: None):
    for i in range(0, 16, 2):
        a(f"v_pk_mul_f32 v[{t+i}:{t+i+1}], v[{y+i}:{y+i+1}], v[{y+i}:{y+i+1}]")
    for i in range(0, 16, 2):
        a(f"v_pk_fma_f32 v[{t+i}:{t+i+1}], v[{t+i}:{t+i+1}], s[{sG}:{sG+1}], v[{vG}:{vG+1}] op_sel_hi:[1,0,0]")
    hook()
    for i in range(0, 16, 2):
        a(f"v_pk_mul_f32 v[{t+i}:{t+i+1}], v[{t+i}:{t+i+1}], v[{y+i}:{y+i+1}]")
    for i in range(16):
        a(f"v_exp_f32 v{t+i}, v{t+i}")
        if i == 7: hook()
    for i in range(0, 16, 2):
        a(f"v_pk_add_f32 v[{t+i}:{t+i+1}], v[{t+i}:{t+i+1}], 1.0 op_sel_hi:[1,0]")
    hook()
    for i in range(16):
        a(f"v_rcp_f32 v{t+i}, v{t+i}")
        if i == 9: hook()
    for i in range(0, 16, 2):
        a(f"v_pk_mul_f32 v[{y+i}:{y+i+1}], v[{y+i}:{y+i+1}], v[{t+i}:{t+i+1}]")
    hook()

class Deferred:
    def __init__(self): self.groups = []
    def __enter__(self):
        self.orig = Asm.__call__; d = self
        def cap(asm, text):
            n = len(asm.ins); d.orig(asm, text); d.groups.append(asm.ins[n:]); del asm.ins[n:]
        Asm.__call__ = cap; return self
    def __exit__(self, *e): Asm.__call__ = self.orig
    def drip(self, ninstr):
        while self.groups and ninstr > 0:
            g = self.groups.pop(0); a.ins.extend(g); ninstr -= len(g)
    def flush(self): self.drip(1 << 30)

def cvt16(pk, y):
    for i in range(8): a(f"v_cvt_pk_bf16_f32 v{pk+i}, v{y+2*i}, v{y+2*i+1}")

PAD = [0]
def mfma(d, A, B, first=False):
    if PAD[0]: a(f"s_nop {PAD[0]-1}")
    c = "0" if first else f"v[{d}:{d+15}]"
    a(f"v_mfma_f32_32x32x16_bf16 v[{d}:{d+15}], v[{A}:{A+3}], v[{B}:{B+3}], {c}")

def interleave(main, fill):
    n = len(main); k = 0
    for i, m in enumerate(main):
        m()
        upto = (len(fill) * (i + 1) + n - 1) // n
        while k < upto: fill[k](); k += 1

def rot7(dst, rot, n=7):
    for c in range(n):
        a(f"s_add_u32 s{dst+c}, s{rot}, {c}\ns_sub_u32 s{sT5}, s{dst+c}, 7\ns_cselect_b32 s{dst+c}, s{dst+c}, s{sT5}")

vGA = 254


def prologue():
    a("s_cmp_ge_u32 s2, 512\ns_cbranch_scc1 L_end")
    a("s_load_dwordx16 s[4:19], s[0:1], 0\ns_load_dwordx4 s[20:23], s[0:1], 64\ns_load_dwordx2 s[24:25], s[0:1], 80")
    a(f"s_memrealtime s[{sTAG}:{sTAG+1}]")
    a(f"v_lshrrev_b32 v8, 6, v0\nv_and_b32 v{vLANE}, 63, v0\nv_readfirstlane_b32 s{sW}, v8")
    a(f"v_and_b32 v{vT_}, 31, v0\nv_bfe_u32 v{vHH}, v0, 5, 1\nv_mov_b32 v{vZERO}, 0\nv_lshlrev_b32 v{vL16}, 4, v{vLANE}")
    a(f"s_mov_b32 s{sHI}, 0\ns_mov_b32 s{sHI+1}, -1\ns_mov_b32 s{sONES}, 0x3f803f80")
    a(f"s_and_b32 s{sXCD}, s2, 7\ns_bfe_u32 s{sLOC}, s2, {(5 << 16) | 3}")
    stamp("entry", first=True)
    a(f"s_or_b32 s{sT4}, s2, s{sW}\ns_cmp_lg_u32 s{sT4}, 0\ns_cbranch_scc1 L_notag\ns_waitcnt lgkmcnt(0)")
    srd(sDBG, 22, 256)
    a(f"s_or_b32 s{sTAG}, s{sTAG}, 1\nv_mov_b32 v{vNO}, s{sTAG}\nv_mov_b32 v{vNO+1}, s{sTAG+1}\ns_mov_b64 exec, 1")
    a(f"buffer_store_dwordx2 v[{vNO}:{vNO+1}], v{vZERO}, s[{sDBG}:{sDBG+3}], 0 offen sc1\ns_mov_b64 exec, -1")
    a.label("L_notag")
    a("s_cmp_ge_u32 s2, 256\n" + ("s_cbranch_scc0" if OPT["swap"] else "s_cbranch_scc1") + " L_roleB")

def make_sel(dst, t):
    a(f"v_bfe_u32 v{t}, v{vLANE}, 2, 1\nv_bfe_u32 v{t+1}, v{vLANE}, 4, 1\nv_cmp_eq_u32 vcc, v{t}, v{t+1}\nv_mov_b32 v{t}, s{sONES}\ns_nop 0\n"
      + "\n".join(f"v_cndmask_b32 v{dst+i}, 0, v{t}, vcc" for i in range(4)))

def mfma_sum(d, sel, B, first):
    c = "0" if first else f"v[{d}:{d+3}]"
    a(f"v_mfma_f32_16x16x32_bf16 v[{d}:{d+3}], v[{sel}:{sel+3}], v[{B}:{B+3}], {c}")

def check_record(REC, voff, soff, loaded=True):
    L = newlab("rec"); Dn = newlab("recd"); C = newlab("recc")
    a(f"s_mov_b32 s{sCNT}, {OPT['spin']}")
    if loaded: a(f"s_branch {C}")
    a.label(L)
    a(f"buffer_load_dwordx2 v[{vNO}:{vNO+1}], v{vZERO}, s[{sDBG}:{sDBG+3}], 0 offen sc1")
    a(f"buffer_load_dwordx4 v[{REC}:{REC+3}], v{voff}, s[{sWS}:{sWS+3}], s{soff} offen sc1\ns_waitcnt vmcnt(0)")
    a.label(C)
    a(f"v_cmp_ne_u32 vcc, v{REC+1}, v{vNO}\nv_cmp_ne_u32 s[{sT2}:{sT3}], v{REC+3}, v{vNO}\ns_or_b64 vcc, vcc, s[{sT2}:{sT3}]")
    a(f"v_cmp_eq_u32 s[{sT2}:{sT3}], 0, v{vNO}\ns_or_b64 vcc, vcc, s[{sT2}:{sT3}]\ns_cbranch_vccz {Dn}")
    a(f"s_sub_u32 s{sCNT}, s{sCNT}, 1\ns_cbranch_scc1 {Dn}\ns_sleep 1\ns_branch {L}")
    a.label(Dn)
    if not loaded: a.vmq = []

def addr_xdma(dst, nq, t):
    for q in range(nq):
        a(f"v_lshrrev_b32 v{t}, 3, v{vLANE}\nv_add_u32 v{t}, {8*q}, v{t}")
        a(f"v_bfe_u32 v{t+1}, v{t}, 1, 3\nv_and_b32 v{t+2}, 7, v{vLANE}\nv_xor_b32 v{t+1}, v{t+1}, v{t+2}")
        a(f"v_mul_u32_u24 v{t}, 896, v{t}\nv_lshl_add_u32 v{t}, v{t+1}, 4, v{t}\nv_subrev_u32 v{dst+q}, {1024*q}, v{t}")

def addr_wdma128(dst, t):
    a(f"v_lshrrev_b32 v{t}, 3, v{vLANE}\nv_bfe_u32 v{t+1}, v{vLANE}, 4, 1\nv_lshlrev_b32 v{t+1}, 2, v{t+1}")
    a(f"v_and_b32 v{t+2}, 7, v{vLANE}\nv_xor_b32 v{t+1}, v{t+1}, v{t+2}")
    a(f"v_mul_u32_u24 v{t}, 896, v{t}\nv_lshl_add_u32 v{dst}, v{t+1}, 4, v{t}\nv_add_u32 v{dst+1}, {8*896-1024}, v{dst}")

def addr_wdma256(dst, sstride, t, mask=False):
    a(f"v_lshrrev_b32 v{t}, 4, v{vLANE}\nv_lshlrev_b32 v{t+1}, 2, v{t}\nv_sub_u32 v{t+1}, v{vLANE}, v{t+1}\nv_and_b32 v{t+1}, 15, v{t+1}")
    a(f"v_mul_u32_u24 v{t}, s{sstride}, v{t}\nv_lshl_add_u32 v{dst}, v{t+1}, 4, v{t}")
    if mask: a(f"v_mov_b32 v{t}, 0x7fff0000\nv_cmp_gt_u32 vcc, 14, v{t+1}\nv_cndmask_b32 v{dst}, v{t}, v{dst}, vcc")
    a(f"s_lshl_b32 s{sT5}, s{sstride}, 2\ns_sub_u32 s{sT5}, s{sT5}, 1024")
    for q in range(1, 4): a(f"v_add_u32 v{dst+q}, s{sT5}, v{dst+q-1}")

def addr_xrd(dst, sbase, t):
    a(f"v_bfe_u32 v{t}, v{vT_}, 1, 3\nv_xor_b32 v{t}, v{t}, v{vHH}\nv_lshlrev_b32 v{t}, 4, v{t}\nv_lshl_add_u32 v{t}, v{vT_}, 7, v{t}")
    for ks in range(4):
        a(f"v_xor_b32 v{dst+ks}, {32*ks}, v{t}\nv_add_u32 v{dst+ks}, s{sbase}, v{dst+ks}")

def lane_rcg(t):
    a(f"v_bfe_u32 v{t}, v{vLANE}, 2, 2\nv_and_b32 v{t+1}, 3, v{vLANE}\nv_lshlrev_b32 v{t+1}, 3, v{t+1}")
    a(f"v_bfe_u32 v{t+2}, v{vLANE}, 4, 1\nv_lshl_add_u32 v{t+1}, v{t+2}, 5, v{t+1}")

def addr_wrd256(dst, cs, t):
    lane_rcg(t)
    a(f"v_lshl_add_u32 v{t+1}, v{t}, 6, v{t+1}")
    a(f"v_lshl_add_u32 v{t}, v{vHH}, 3, v{t}\nv_lshlrev_b32 v{t}, 8, v{t}")
    for u in range(4):
        a(f"s_add_u32 s{sT0}, s{sW}, {u}\ns_and_b32 s{sT0}, s{sT0}, 3\ns_mul_i32 s{sT0}, s{sT0}, {cs}")
        a(f"v_add_u32 v{dst+u}, s{sT0}, v{t+1}\nv_and_b32 v{dst+u}, 255, v{dst+u}\nv_add_u32 v{dst+u}, v{dst+u}, v{t}")

def addr_wrd128(dst, hhmul, scol, sbase, t):
    lane_rcg(t)
    a(f"v_lshrrev_b32 v{t+2}, 1, v{t}\nv_xor_b32 v{t+2}, s{scol}, v{t+2}\nv_lshl_add_u32 v{t+1}, v{t+2}, 6, v{t+1}")
    a(f"v_mad_u32_u24 v{t}, v{vHH}, {hhmul}, v{t}\nv_lshl_add_u32 v{dst}, v{t}, 7, v{t+1}")
    if sbase is not None: a(f"v_add_u32 v{dst}, s{sbase}, v{dst}")

def set_m0(expr_sgpr, add):
    a(f"s_add_u32 m0, s{expr_sgpr}, {add}" if add else f"s_mov_b32 m0, s{expr_sgpr}")


def panel_mainloop(name, ACC, WF, vWrd, nslot, xfrag, issue_w, wtok, hooks, SEL, CS4, defer=None):
    rd = {}
    hi = [False]
    pre = set(wtok)
    def wreads(s):
        c, ks = divmod(s, 4); slot = c % nslot
        base = slot * 16384 + ks * 4096
        if slot == 4 and not hi[0]:
            for u in range(4): a(f"v_add_u32 v{vWrd+u}, 0x10000, v{vWrd+u}")
            hi[0] = True
        if slot != 4 and hi[0]:
            for u in range(4): a(f"v_subrev_u32 v{vWrd+u}, 0x10000, v{vWrd+u}")
            hi[0] = False
        if slot == 4: base -= 65536
        toks = []; rd[s] = toks; th = []
        for u in range(4):
            for jj in range(2):
                r = WF + (s & 1) * 16 + u * 4 + jj * 2
                th.append(lambda r=r, u=u, jj=jj: toks.append(a.lg(f"ds_read_b64_tr_b16 v[{r}:{r+1}], v{vWrd+u} offset:{base + jj*1024}")))
        return th
    hooks["before_barrier"](0)
    a.wait(vm=wtok[0]); a("s_barrier")
    stamp(name + "_c0")
    for t in hooks["after_barrier"](0) + wreads(0): t()
    for s in range(28):
        c, ks = divmod(s, 4)
        a.wait(lg=rd[s] + hooks["lg_need"](s), vm=hooks["vm_need"](s))
        reads = []; late = []
        if ks == 3 and c < 6:
            hooks["before_barrier"](c + 1)
            a.wait(vm=wtok[c + 1]); a("s_barrier")
            if c in (1, 3, 5): stamp(name + f"_c{c+1}")
            reads += hooks["after_barrier"](c + 1)
        if s < 27: reads += wreads(s + 1)
        for cc, qs in ((c + nslot, (0, 1)) if ks == 3 else (c - 1 + nslot, (2, 3)) if ks == 0 and c > 0 else (99, ()),):
            if cc <= 6 and cc not in pre:
                for q in qs: late.append(lambda cc=cc, q=q: wtok.setdefault(cc, []).extend(issue_w(cc, (q,))))
        late += hooks["kstep"](s)
        xf = xfrag(s); w = WF + (s & 1) * 16
        h = (len(reads) + 1) // 2
        mfma(ACC, w, xf, first=(s == 0))
        for t in reads[:h]: t()
        mfma(ACC + 16, w + 4, xf, first=(s == 0))
        for t in reads[h:]: t()
        h = (len(late) + 1) // 2
        mfma(ACC + 32, w + 8, xf, first=(s == 0))
        for t in late[:h]: t()
        if defer: defer.drip(3)
        mfma(ACC + 48, w + 12, xf, first=(s == 0))
        for t in late[h:]: t()
        if defer: defer.drip(3)
        if SEL is not None: mfma_sum(CS4, SEL, w, s == 0)
    if defer: defer.flush()

def addr_cs(vCW, vCA, csbase):
    a(f"s_lshl_b32 s{sT0}, s{sW}, 7\ns_add_u32 s{sT0}, s{sT0}, {csbase}\nv_lshl_add_u32 v{vCW}, v{vT_}, 2, s{sT0}")
    for u in range(4):
        a(f"s_add_u32 s{sT0}, s{sW}, {u}\ns_and_b32 s{sT0}, s{sT0}, 3\ns_lshl_b32 s{sT0}, s{sT0}, 7\ns_add_u32 s{sT0}, s{sT0}, {csbase}\nv_lshl_add_u32 v{vCA+u}, v{vHH}, 4, s{sT0}")

def read_cs(dst, vaddr):
    return [a.lg(f"ds_read_b128 v[{dst+4*i}:{dst+4*i+3}], v{vaddr} offset:{32*i}") for i in range(4)]

sTAG = 98
def stage_A1():
    a.comment("==== A1: 128 rows x 112 columns of LN(x) @ [wq | wk | wv | w1]")
    if OPT["prio_a1"]: a(f"s_setprio {OPT['prio_a1']}")
    ACC, XF, WF = 16, 80, 112
    vWd, vXd, vXr, vWr = 144, 148, 152, 156
    SEL, CS4, REC, vCA, vVw, vVr, vPA, vPB, vSt, vCW, vGA_, vRo = 160, 164, 168, 172, 176, 180, 182, 183, 184, 185, 186, 188
    T = 190
    GT, PK = 200, 216
    sRB, sCG, sROT = sA0, sA0 + 1, sA0 + 2
    sKC = sA0 + 3
    sWO_ = sA0 + 10
    sM0W, sM0X, sTY, sHQ, sSTR, sCST = sA0 + 17, sA0 + 18, sA0 + 19, sA0 + 20, sA0 + 21, sA0 + 22
    sD0, sD1, sFL, sRO, sSC, sGO, sG = 4, 8, 12, 13, 14, 15, 16
    a(f"s_lshr_b32 s{sT0}, s{sLOC}, 3\ns_lshr_b32 s{sT2}, s{sXCD}, 1\ns_lshl_b32 s{sT2}, s{sT2}, 2\ns_add_u32 s{sRB}, s{sT2}, s{sT0}")
    a(f"s_and_b32 s{sT2}, s{sXCD}, 1\ns_lshl_b32 s{sT2}, s{sT2}, 3\ns_and_b32 s{sT1}, s{sLOC}, 7\ns_add_u32 s{sCG}, s{sT2}, s{sT1}")
    a(f"s_lshr_b32 s{sTY}, s{sCG}, 2\ns_and_b32 s{sHQ}, s{sCG}, 3")
    a(f"s_cmp_eq_u32 s{sTY}, 3\ns_movk_i32 s{sSTR}, 2688\ns_cselect_b32 s{sSTR}, 896, s{sSTR}\ns_cselect_b32 s{sCST}, 64, 56\ns_cselect_b32 s{sT3}, s{sHQ}, s{sCG}")
    a(f"s_mul_i32 s{sT0}, s{sLOC}, 37\ns_lshr_b32 s{sT0}, s{sT0}, 8\ns_mul_i32 s{sT0}, s{sT0}, 7\ns_sub_u32 s{sROT}, s{sLOC}, s{sT0}")
    a(f"s_lshl_b32 s{sT0}, s{sRB}, 2\ns_add_u32 s{sT0}, s{sT0}, s{sW}\ns_mul_i32 s{sT0}, s{sT0}, {32*896}")
    a(f"s_lshl_b32 s{sT1}, s{sW}, 4\ns_mul_i32 s{sT1}, s{sT1}, s{sSTR}\ns_mul_i32 s{sT2}, s{sT3}, 224\ns_add_u32 s{sT1}, s{sT1}, s{sT2}")
    a(f"s_lshl_b32 s{sT2}, s{sSTR}, 6")
    def chunk_offsets(c):
        a(f"s_add_u32 s{sKC+c}, s{sROT}, {c}\ns_sub_u32 s{sT5}, s{sKC+c}, 7\ns_cselect_b32 s{sKC+c}, s{sKC+c}, s{sT5}")
        a(f"s_mul_i32 s{sWO_+c}, s{sKC+c}, s{sT2}\ns_add_u32 s{sWO_+c}, s{sWO_+c}, s{sT1}")
        a(f"s_lshl_b32 s{sKC+c}, s{sKC+c}, 7\ns_add_u32 s{sKC+c}, s{sKC+c}, s{sT0}")
    for c in range(2): chunk_offsets(c)
    a(f"s_lshl_b32 s{sM0W}, s{sW}, 12\ns_lshl_b32 s{sM0X}, s{sW}, 13\ns_add_u32 s{sM0X}, s{sM0X}, 49152")
    addr_xdma(vXd, 4, T); addr_wdma256(vWd, sSTR, T, mask=True)
    a("s_waitcnt lgkmcnt(0)")
    stamp("a1_karg")
    srd(sX, 4, S * D * 2)
    a(f"s_cmp_eq_u32 s{sTY}, 3\ns_cselect_b32 s{sWA}, s12, s6\ns_cselect_b32 s{sWA+1}, s13, s7\ns_mov_b32 s{sWA+2}, {D*3*D*2}\ns_cselect_b32 s{sWA+2}, {D*D*2}, s{sWA+2}\ns_mov_b32 s{sWA+3}, 0x20000")
    srd(sDBG, 22, 256)
    m0 = [None]
    def issue_x(c, qs=range(4)):
        if m0[0] != ("x", c): set_m0(sM0X, (c & 1) * 4096); m0[0] = ("x", c)
        return [a.vm(f"buffer_load_dwordx4 v{vXd+q}, s[{sX}:{sX+3}], s{sKC+c} offen offset:{1024*q} lds") for q in qs]
    def issue_w(c, qs=range(4)):
        if m0[0] != ("w", c): set_m0(sM0W, (c % 3) * 16384); m0[0] = ("w", c)
        return [a.vm(f"buffer_load_dwordx4 v{vWd+q}, s[{sWA}:{sWA+3}], s{sWO_+c} offen offset:{1024*q} lds") for q in qs]
    xt = {}; wt = {}
    xt[0] = issue_x(0); wt[0] = issue_w(0)
    for c in range(2, 7): chunk_offsets(c)
    xt[1] = issue_x(1)
    addr_xrd(vXr, sM0X, T)
    wt[1] = issue_w(1)
    addr_wrd256(vWr, f"s{sCST}", T)
    make_sel(SEL, T)
    wt[2] = issue_w(2)
    srd(sWS, 24, WS_SIZE)
    stamp("a1_issued")
    CSB = 16384
    with Deferred() as df:
        a(f"s_and_b32 s{sGO}, s2, 255\ns_lshl_b32 s{sGO}, s{sGO}, 7\ns_add_u32 s{sGO}, s{sGO}, {FLG + F_GO*FT}")
        a(f"s_lshl_b32 s{sT0}, s{sRB}, 2\ns_add_u32 s{sT4}, s{sT0}, s{sW}\ns_lshl_b32 s{sRO}, s{sT4}, 9\ns_add_u32 s{sRO}, s{sRO}, {ST0}")
        a(f"v_lshlrev_b32 v{vRo}, 4, v{vT_}")
        addr_cs(vCW, vCA, CSB)
        a(f"s_lshl_b32 s{sT0}, s{sRB}, 4\ns_add_u32 s{sT0}, s{sT0}, s{sCG}\ns_lshl_b32 s{sT0}, s{sT0}, 7\ns_add_u32 s{sFL}, s{sT0}, {FLG + F_QKV*FT}")
        a(f"s_lshl_b32 s{sT1}, s{sHQ}, 8\ns_add_u32 s{sT0}, s{sT4}, s{sT1}\ns_cmp_eq_u32 s{sTY}, 0\ns_cselect_b32 s{sSC}, 11, 12\ns_mov_b32 s{sT2}, {KV_ - 2048}\ns_cselect_b32 s{sT2}, {QB_}, s{sT2}")
        a(f"s_lshl_b32 s{sT0}, s{sT0}, s{sSC}\ns_lshl_b32 s{sT1}, s{sTY}, 11\ns_add_u32 s{sT0}, s{sT0}, s{sT1}\ns_add_u32 s{sT0}, s{sT0}, s{sT2}")
        a(f"s_lshl_b32 s{sT4}, s{sT4}, 9\ns_mul_i32 s{sT1}, s{sHQ}, {14*PL}\ns_add_u32 s{sT4}, s{sT4}, s{sT1}\ns_add_u32 s{sT4}, s{sT4}, {H_}")
        a(f"s_lshl_b32 s{sT1}, 64, s{sSC}\ns_movk_i32 s{sT2}, 1024\ns_movk_i32 s{sT3}, 512")
        a(f"s_cmp_eq_u32 s{sTY}, 3\ns_cselect_b32 s{sT0}, s{sT4}, s{sT0}\ns_cselect_b32 s{sT1}, {4*PL}, s{sT1}\ns_cselect_b32 s{sT2}, {2*PL}, s{sT2}\ns_cselect_b32 s{sT3}, {PL}, s{sT3}")
        a(f"v_mul_u32_u24 v{vSt}, s{sT3}, v{vHH}\nv_lshl_add_u32 v{vSt}, v{vT_}, 4, v{vSt}")
        for u in range(4):
            a(f"s_add_u32 s{sT3}, s{sW}, {u}\ns_and_b32 s{sT3}, s{sT3}, 3\ns_mul_i32 s{sD0+u}, s{sT3}, s{sT1}\ns_add_u32 s{sD0+u}, s{sD0+u}, s{sT0}")
            a(f"s_add_u32 s{sD1+u}, s{sD0+u}, s{sT2}\ns_lshl_b32 s{sT4}, s{sTY}, 2\ns_or_b32 s{sT3}, s{sT3}, s{sT4}")
            a(f"s_cmp_eq_u32 s{sT3}, 15\ns_cselect_b32 s{sD1+u}, 0x7fff0000, s{sD1+u}")
        a(f"s_cmp_eq_u32 s{sTY}, 1\ns_cselect_b32 s{sT1}, 0x3f803f80, 0\ns_cselect_b32 s{sT2}, 0x3f80, 0")
        a(f"s_cmp_eq_u32 s{sTY}, 2\ns_cselect_b32 s{sT1}, 0x3f80, s{sT1}")
        a(f"v_mov_b32 v{vPA}, s{sT1}\nv_mov_b32 v{vPB}, s{sT2}")
        a(f"s_cmp_eq_u32 s{sTY}, 0\ns_cselect_b32 s{sSC}, {hx(f2u(QSCALE))}, 1.0")
        a(f"s_mov_b32 s{sG}, {hx(f2u(GB))}\ns_mov_b32 s{sG+1}, {hx(f2u(GB))}\nv_mov_b32 v{vGA_}, {hx(f2u(GA))}")
        a(f"v_bfe_u32 v{T}, v{vT_}, 1, 3\nv_xor_b32 v{T}, v{T}, v{vHH}\nv_lshlrev_b32 v{T}, 3, v{T}\nv_lshl_add_u32 v{T}, v{vT_}, 6, v{T}")
        for i in range(4): a(f"v_xor_b32 v{vVw+i}, {16*i}, v{T}\nv_add_u32 v{vVw+i}, s{sM0X}, v{vVw+i}")
        lane_rcg(T)
        for jj in range(2):
            a(f"v_lshl_add_u32 v{T+2}, v{vHH}, 2, v{T}\nv_add_u32 v{T+2}, {8*jj}, v{T+2}")
            a(f"v_bfe_u32 v{T+3}, v{T+2}, 1, 3\nv_lshlrev_b32 v{T+3}, 3, v{T+3}\nv_xor_b32 v{T+3}, v{T+3}, v{T+1}")
            a(f"v_lshl_add_u32 v{vVr+jj}, v{T+2}, 6, v{T+3}\nv_add_u32 v{vVr+jj}, s{sM0X}, v{vVr+jj}")
    xr = {}; rec = []
    def go():
        a.wait(vm=rec[0])
        check_nonce(keep=True)
        publish(sGO, barrier=False)
    def after_barrier(c):
        xr[c] = []
        return [lambda ks=ks: xr[c].append(a.lg(f"ds_read_b128 v[{XF+(c&1)*16+4*ks}:{XF+(c&1)*16+4*ks+3}], v{vXr+ks} offset:{(c&1)*4096}")) for ks in range(4)]
    def kstep(s):
        th = []
        c, ks = divmod(s, 4)
        if ks in (1, 2) and c + 2 <= 6:
            for q in (2 * ks - 2, 2 * ks - 1): th.append(lambda q=q: xt.setdefault(c + 2, []).extend(issue_x(c + 2, (q,))))
        if s == OPT["go"] - 5: th.append(lambda: rec.append(a.vm(f"buffer_load_dwordx2 v[{vNO}:{vNO+1}], v{vZERO}, s[{sDBG}:{sDBG+3}], 0 offen sc1")))
        if s == OPT["go"]: th.append(go)
        if s == 22: th.append(lambda: rec.append(a.vm(f"buffer_load_dwordx4 v[{REC}:{REC+3}], v{vRo}, s[{sWS}:{sWS+3}], s{sRO} offen sc1")))
        return th
    hooks = dict(before_barrier=lambda c: a.wait(vm=xt[c]), after_barrier=after_barrier,
                 lg_need=lambda s: xr[s // 4] if s % 4 == 0 else [], vm_need=lambda s: [], kstep=kstep)
    panel_mainloop("a1", ACC, WF, vWr, 3, lambda s: XF + ((s // 4) & 1) * 16 + 4 * (s % 4), issue_w, wt, hooks, SEL, CS4, df)
    stamp("a1_main")
    a.wait(vm=rec)
    check_record(REC, vRo, sRO)
    a.lg(f"ds_write_b32 v{vCW}, v{CS4}")
    a(f"v_mul_f32 v{T}, v{REC+2}, v{REC+2}\nv_mov_b32 v{T+1}, {hx(f2u(1.0 + EPS))}\nv_mov_b32 v{T+2}, {hx(f2u(-EPS))}\nv_fma_f32 v{T}, v{T}, v{T+2}, v{T+1}\nv_rsq_f32 v{T}, v{T}")
    a(f"s_cmp_eq_u32 s{sTY}, 3\ns_cselect_b64 vcc, -1, 0\nv_mov_b32 v{T+1}, s{sSC}\nv_cndmask_b32 v{T}, v{T+1}, v{T}, vcc")
    a(f"v_mul_f32 v{vA}, v{T}, v{REC+2}\nv_mul_f32 v{vB}, v{vA}, v{REC}\nv_sub_f32 v{vB}, 0, v{vB}")
    a.wait_all(vm=False); a("s_barrier")
    stamp("a1_csbar")
    CS = 80
    toks = [read_cs(CS + 16 * u, vCA + u) for u in range(3)]
    for u in range(4): scale16(ACC + 16 * u)
    a.wait(lg=toks[0])
    toks.append(read_cs(CS + 48, vCA + 3))
    def store(u, pk):
        a.vm(f"buffer_store_dwordx4 v[{pk}:{pk+3}], v{vSt}, s[{sWS}:{sWS+3}], s{sD0+u} offen sc1")
        a.vm(f"buffer_store_dwordx4 v[{pk+4}:{pk+7}], v{vSt}, s[{sWS}:{sWS+3}], s{sD1+u} offen sc1")
    def pads(pk): a(f"v_cndmask_b32 v{pk+6}, v{pk+6}, v{vPA}, s[{sHI}:{sHI+1}]\nv_cndmask_b32 v{pk+7}, v{pk+7}, v{vPB}, s[{sHI}:{sHI+1}]")
    lgq0 = list(a.lgq); vmq0 = list(a.vmq)
    a(f"s_cmp_eq_u32 s{sTY}, 2\ns_cbranch_scc1 L_A1_v\ns_cmp_eq_u32 s{sTY}, 3\ns_cbranch_scc1 L_A1_w1")
    for u in range(4):
        a.wait(lg=toks[u]); shift16(ACC + 16 * u, CS + 16 * u)
        cvt16(PK + 8 * u, ACC + 16 * u); pads(PK + 8 * u); store(u, PK + 8 * u)
    a("s_branch L_A1_pub")
    a.label("L_A1_v")
    a.lgq = list(lgq0); a.vmq = list(vmq0); tr = {}
    for u in range(4):
        pk = PK + 8 * u
        a.wait(lg=toks[u]); shift16(ACC + 16 * u, CS + 16 * u)
        cvt16(pk, ACC + 16 * u); pads(pk)
        if u == 0: a.wait(lg=toks[3])
        if u > 0: a.wait(lg=tr[u - 1]); store(u - 1, pk - 8)
        for i in range(4): a.lg(f"ds_write_b64 v{vVw+i}, v[{pk+2*i}:{pk+2*i+1}] offset:{2048*u}")
        tr[u] = [a.lg(f"ds_read_b64_tr_b16 v[{pk+4*m+2*jj}:{pk+4*m+2*jj+1}], v{vVr+jj} offset:{2048*u + 1024*m}") for m in range(2) for jj in range(2)]
    a.wait(lg=tr[3]); store(3, PK + 24)
    a("s_branch L_A1_pub")
    a.label("L_A1_w1")
    a.lgq = list(lgq0); a.vmq = list(vmq0)
    for u in range(4):
        a.wait(lg=toks[u]); shift16(ACC + 16 * u, CS + 16 * u)
        gelu16(ACC + 16 * u, GT, sG, vGA_)
        cvt16(PK + 8 * u, ACC + 16 * u); store(u, PK + 8 * u)
    a.label("L_A1_pub")
    stamp("a1_epi")
    publish(sFL)
    stamp("a1_pub")

def rowmax(dst, s_, first):
    if first: a(f"v_max3_f32 v{dst}, v{s_}, v{s_+1}, v{s_+2}\nv_max_f32 v{dst}, v{dst}, v{s_+3}")
    else: a(f"v_max3_f32 v{dst}, v{dst}, v{s_}, v{s_+1}\nv_max3_f32 v{dst}, v{dst}, v{s_+2}, v{s_+3}")
    for i in range(4, 16, 2): a(f"v_max3_f32 v{dst}, v{dst}, v{s_+i}, v{s_+i+1}")

def stage_A2():
    a.comment("==== A2: attention, 128 queries of one head; wave = 512 keys; slot x holds query tile w^x^3")
    NR = OPT["nr"]
    Q, O, SS, P = 16, 48, 112, 144
    KB = 160; VB = KB + 8 * NR
    T = VB + 8 * NR; MX = 12
    assert T + 16 <= 256
    sH, sQB, sQ0, sK, sV, sK0, sRETRY, sKT0, sOD, sFL, sKVB = sA0, sA0+1, sA0+2, sA0+3, sA0+4, sA0+5, sA0+6, sA0+7, sA0+8, sA0+10, sA0+11
    vOo, vW, vR, vKV = 0, 8, 9, 10
    a(f"s_lshr_b32 s{sT0}, s{sLOC}, 4\ns_lshl_b32 s{sH}, s{sXCD}, 1\ns_add_u32 s{sH}, s{sH}, s{sT0}\ns_and_b32 s{sQB}, s{sLOC}, 15")
    a(f"s_lshr_b32 s{sT0}, s{sH}, 2\ns_lshl_b32 s{sT1}, s{sQB}, 4\ns_add_u32 s{sT1}, s{sT1}, s{sT0}")
    a(f"s_lshl_b32 s{sT2}, s{sW}, 6\ns_add_u32 s{sT2}, s{sT2}, s{sT0}")
    a(f"v_subrev_u32 v{T}, 2, v{vLANE}\nv_and_b32 v{T+1}, 3, v{T}\nv_lshlrev_b32 v{T+1}, 4, v{T+1}")
    a(f"v_bfe_u32 v{T+2}, v{T}, 2, 1\nv_lshl_add_u32 v{T+1}, v{T+2}, 2, v{T+1}\nv_add_u32 v{T+1}, 4, v{T+1}\nv_add_u32 v{T+1}, s{sT2}, v{T+1}")
    a(f"v_mov_b32 v{vPO}, s{sT1}\nv_cmp_gt_u32 vcc, 8, v{T}\nv_cndmask_b32 v{vPO}, v{vPO}, v{T+1}, vcc")
    a(f"s_add_u32 s{sT0}, s{sT0}, 4\nv_mov_b32 v{T+1}, s{sT0}\nv_cmp_eq_u32 vcc, 1, v{vLANE}\nv_cndmask_b32 v{vPO}, v{vPO}, v{T+1}, vcc")
    a(f"v_lshlrev_b32 v{vPO}, 7, v{vPO}")
    if FLG + F_QKV * FT: a(f"v_add_u32 v{vPO}, {FLG + F_QKV*FT}, v{vPO}")
    a(f"s_lshl_b32 s{sK0}, s{sH}, 18\ns_add_u32 s{sK0}, s{sK0}, {KV_}\ns_lshl_b32 s{sT0}, s{sW}, 16\ns_add_u32 s{sT0}, s{sT0}, s{sK0}\ns_mov_b32 s{sKVB}, s{sT0}")
    a(f"s_lshl_b32 s{sQ0}, s{sH}, 17\ns_lshl_b32 s{sT0}, s{sQB}, 13\ns_add_u32 s{sQ0}, s{sQ0}, s{sT0}\ns_add_u32 s{sQ0}, s{sQ0}, {QB_}")
    a(f"s_lshl_b32 s{sKT0}, s{sQB}, 12")
    a(f"s_mov_b32 s{sRETRY}, 0")
    for x in range(4): a(f"s_xor_b32 s{4+x}, s{sW}, {x^3}\ns_lshl_b32 s{4+x}, s{4+x}, 11\ns_add_u32 s{4+x}, s{4+x}, s{sQ0}")
    a(f"v_mul_u32_u24 v{vOo}, {PL}, v{vHH}\nv_lshl_add_u32 v{vOo}, v{vT_}, 4, v{vOo}")
    a(f"s_lshl_b32 s{sT0}, s{sQB}, 2\ns_add_u32 s{sT0}, s{sT0}, s{sW}\ns_lshl_b32 s{sT0}, s{sT0}, 9")
    a(f"s_mul_i32 s{sT1}, s{sH}, {4*PL}\ns_add_u32 s{sT0}, s{sT0}, s{sT1}\ns_add_u32 s{sOD}, s{sT0}, {O_}\ns_add_u32 s{sOD+1}, s{sOD}, {2*PL}")
    a(f"s_lshl_b32 s{sT0}, s{sQB}, 4\ns_add_u32 s{sT0}, s{sT0}, s{sH}\ns_lshl_b32 s{sT0}, s{sT0}, 7\ns_add_u32 s{sFL}, s{sT0}, {FLG + F_O*FT}")
    poll()
    stamp("a2_poll")
    a(f"v_add_u32 v{vKV}, s{sKVB}, v{vL16}")
    def ld(dst, soff, imm, vo=vL16): return a.vm(f"buffer_load_dwordx4 v[{dst}:{dst+3}], v{vo}, s[{sWS}:{sWS+3}], s{soff} offen offset:{imm} sc1")
    k0 = [ld(T, sK0, 0), ld(T + 4, sK0, 1024)]
    qt = [[ld(Q + 8 * x, 4 + x, 0), ld(Q + 8 * x + 4, 4 + x, 1024)] for x in range(4)]
    order = []
    for kt in range(16):
        for kind in "KV":
            for half in range(2):
                need = 4 * kt - 2 if kind == "K" else 4 * kt + 1
                free = 4 * (kt - NR) + (3 if kind == "K" else 5)
                order.append((need, kind, kt, half, free))
    order.sort()
    tok = {}
    def issue(e):
        need, kind, kt, half, free = e
        if kind == "K": t = ld(KB + 8 * (kt % NR) + 4 * half, sK, 1024 * half, vKV)
        else: t = ld(VB + 8 * (kt % NR) + 4 * half, sV, 2048 + 1024 * half, vKV)
        tok.setdefault((kind, kt), []).append(t)
    def bump(e):
        r = sK if e[1] == "K" else sV
        if e[3] == 1: a(f"s_add_u32 s{r}, s{r}, 4096\ns_and_b32 s{r}, s{r}, 0xffff")
    NPRE = 6
    def first_loads():
        a(f"s_mov_b32 s{sK}, s{sKT0}\ns_mov_b32 s{sV}, s{sKT0}")
        for e in order[:NPRE]: issue(e); bump(e)
    first_loads()
    pend = order[NPRE:]
    a(f"s_mul_i32 s{sT0}, s{sW}, 12288\nv_add_u32 v{vW}, s{sT0}, v{vL16}")
    for x in range(4):
        a.wait(vm=k0 + qt[x])
        s_ = SS + 16 * (x & 1)
        mfma(s_, T, Q + 8 * x, first=True); mfma(s_, T + 4, Q + 8 * x + 4)
        if x > 0: rowmax(MX + x - 1, SS + 16 * ((x - 1) & 1), True)
    rowmax(MX + 3, SS + 16, True)
    stamp("a2_max")
    a.label("L_A2_setmax")
    for x in range(4):
        a(f"v_mov_b32 v{T+x}, v{MX+x}")
    for x in range(4):
        a(f"v_permlane32_swap_b32 v{T+x}, v{MX+x}")
    for x in range(4):
        a(f"v_max_f32 v{MX+x}, v{T+x}, v{MX+x}")
    for x in range(4):
        m = MX + x; t = T + 4 * x
        a(f"v_cvt_pk_bf16_f32 v{t}, -v{m}, -v{m}\nv_and_b32 v{t+1}, 0xffff0000, v{t}\nv_sub_f32 v{t+2}, -v{m}, v{t+1}")
        a(f"v_cvt_pk_bf16_f32 v{t+3}, v{t+2}, v{t+2}\nv_and_b32 v{t+3}, 0xffff0000, v{t+3}\nv_sub_f32 v{t+2}, v{t+2}, v{t+3}")
        a(f"v_and_b32 v{t}, 0xffff, v{t}\nv_or_b32 v{t}, v{t}, v{t+3}\nv_cvt_pk_bf16_f32 v{t+2}, v{t+2}, 0")
        a(f"v_cndmask_b32 v{Q+8*x+6}, v{Q+8*x+6}, v{t}, s[{sHI}:{sHI+1}]\nv_cndmask_b32 v{Q+8*x+7}, v{Q+8*x+7}, v{t+2}, s[{sHI}:{sHI+1}]")
        if x == 0:
            a.wait(vm=tok[("K", 0)])
            mfma(SS, KB, Q, first=True); mfma(SS, KB + 4, Q + 4)
    def QK(n, half):
        kt, x = divmod(n, 4)
        mfma(SS + 16 * (n & 1), KB + 8 * (kt % NR) + 4 * half, Q + 8 * x + 4 * half, first=(half == 0))
    def PV(n, half):
        kt, x = divmod(n, 4)
        mfma(O + 16 * x, VB + 8 * (kt % NR) + 4 * half, P + 8 * (n & 1) + 4 * half, first=(kt == 0 and half == 0))
    def owrite(x, i): a.lg(f"ds_write_b128 v{vW}, v[{O+16*x+4*i}:{O+16*x+4*i+3}] offset:{x*4096 + 1024*i}")
    stamp("a2_start")
    if OPT["prio_a1"]: a("s_setprio 0")
    a.hot = True
    for n in range(64):
        if n in (16, 32, 48): stamp(f"a2_b{n}")
        kt, x = divmod(n, 4)
        s_ = SS + 16 * (n & 1); p_ = P + 8 * (n & 1)
        e = lambda i: a(f"v_exp_f32 v{s_+i}, v{s_+i}")
        c = lambda i: a(f"v_cvt_pk_bf16_f32 v{p_+i}, v{s_+2*i}, v{s_+2*i+1}")
        sh = [[], [], [], []]
        pre = [[], [], [], []]
        for g in (0, 2):
            if pend and pend[0][4] <= n:
                ent = pend.pop(0)
                assert ent[0] > n + 1, (ent, n)
                if OPT["aprio"] == 1: pre[g].append(lambda: a("s_setprio 3"))
                sh[g].append(lambda ent=ent: issue(ent))
                if OPT["aprio"] == 1: sh[g].append(lambda: a("s_setprio 0"))
                sh[g + 1].append(lambda ent=ent: bump(ent))
        if OPT["aprio"] == 2: sh[3].append(lambda: a("s_setprio 3")); sh[1].append(lambda: a("s_setprio 0"))
        if OPT["aprio"] == 3: sh[3].append(lambda: a("s_setprio 3")); sh[0].append(lambda: a("s_setprio 0"))
        if OPT["aprio"] == 4: sh[3].append(lambda: a("s_setprio 3")); sh[2].append(lambda: a("s_setprio 0"))
        if x == 2 and kt + 1 < 16: sh[3].append(lambda: a.wait(vm=tok[("K", kt + 1)]))
        if x == 1: sh[1].append(lambda: a.wait(vm=tok[("V", kt)]))
        if n == 62:
            for g in range(4): sh[g].append(lambda g=g: owrite(0, g))
        if n == 63:
            for g in range(4): sh[g].append(lambda g=g: owrite(1, g))
        mm = [(lambda: QK(n + 1, 0)) if n < 63 else None, (lambda: QK(n + 1, 1)) if n < 63 else None,
              (lambda: PV(n - 1, 0)) if n > 0 else None, (lambda: PV(n - 1, 1)) if n > 0 else None]
        seq = [[("e", 0), ("e", 1), ("e", 2), ("e", 3), ("c", 0)],
               [("e", 4), ("e", 5), ("c", 1), ("e", 6), ("e", 7), ("c", 2)],
               [("e", 8), ("e", 9), ("c", 3), ("e", 10), ("e", 11), ("c", 4)],
               [("e", 12), ("e", 13), ("c", 5), ("e", 14), ("e", 15), ("c", 6), ("c", 7)]]
        for g in range(4):
            for t in pre[g]: t()
            if mm[g]: mm[g]()
            for t in sh[g]: t()
            for k, i in seq[g]: (e if k == "e" else c)(i)
    assert not pend
    a.hot = False
    if OPT["prio_at"]: a(f"s_setprio {OPT['prio_at']}")
    PV(63, 0); PV(63, 1)
    stamp("a2_main")
    a(f"v_mov_b32 v{T+2}, 49152\nv_mov_b32 v{T+3}, 0")
    a.lg(f"ds_write_b32 v{T+2}, v{T+3}")
    for i in range(4): owrite(2, i)
    a.wait_all(vm=False); a("s_barrier")
    stamp("a2_cbar")
    tk = []
    for x in range(3):
        a(f"s_xor_b32 s{sT0}, s{sW}, {x^3}\ns_mul_i32 s{sT0}, s{sT0}, 12288\nv_add_u32 v{vR}, s{sT0}, v{vL16}")
        tk.append([a.lg(f"ds_read_b128 v[{O+16*x+4*i}:{O+16*x+4*i+3}], v{vR} offset:{x*4096 + 1024*i}") for i in range(4)])
    R = O + 48
    for x in range(3):
        a.wait(lg=tk[x])
        for i in range(0, 16, 2): a(f"v_pk_add_f32 v[{R+i}:{R+i+1}], v[{R+i}:{R+i+1}], v[{O+16*x+i}:{O+16*x+i+1}]")
    a(f"v_mov_b32 v{T+4}, v{R+12}\nv_mov_b32 v{T+5}, v{R+12}\nv_permlane32_swap_b32 v{T+4}, v{T+5}\nv_rcp_f32 v{vA}, v{T+5}")
    scale16(R)
    cvt16(P, R)
    a(f"v_cndmask_b32 v{P+6}, v{P+6}, v{vZERO}, s[{sHI}:{sHI+1}]\nv_cndmask_b32 v{P+7}, v{P+7}, v{vZERO}, s[{sHI}:{sHI+1}]")
    a.vm(f"buffer_store_dwordx4 v[{P}:{P+3}], v{vOo}, s[{sWS}:{sWS+3}], s{sOD} offen sc1")
    a.vm(f"buffer_store_dwordx4 v[{P+4}:{P+7}], v{vOo}, s[{sWS}:{sWS+3}], s{sOD+1} offen sc1")
    a(f"v_mul_f32 v{T+6}, 0, v{R}")
    for i in range(1, 16): a(f"v_fma_f32 v{T+6}, v{R+i}, 0, v{T+6}")
    a(f"s_mov_b32 s{sT0}, {hx(f2u(2.0**120))}\nv_cmp_nge_f32 vcc, s{sT0}, v{T+5}\nv_cmp_u_f32 s[{sT2}:{sT3}], v{T+6}, v{T+6}\ns_or_b64 vcc, vcc, s[{sT2}:{sT3}]")
    Lok = newlab("ok")
    a(f"s_cbranch_vccz {Lok}\nv_mov_b32 v{T+3}, 1\nds_write_b32 v{T+2}, v{T+3}")
    a.label(Lok)
    stamp("a2_st")
    a.wait_all(); a("s_barrier")
    a(f"ds_read_b32 v{T+3}, v{T+2}\ns_waitcnt lgkmcnt(0)\nv_readfirstlane_b32 s{sT0}, v{T+3}")
    a(f"s_andn2_b32 s{sT0}, s{sT0}, s{sRETRY}\ns_cmp_lg_u32 s{sT0}, 0\ns_cbranch_scc1 L_A2_fallback")
    publish(sFL, barrier=False)
    stamp("a2_pub"); stamp_flush()
    a("s_endpgm")
    a.label("L_A2_fallback")
    a(f"s_mov_b32 s{sRETRY}, 1\ns_barrier")
    for x in range(4):
        a(f"v_cndmask_b32 v{Q+8*x+6}, v{Q+8*x+6}, v{vZERO}, s[{sHI}:{sHI+1}]\nv_cndmask_b32 v{Q+8*x+7}, v{Q+8*x+7}, v{vZERO}, s[{sHI}:{sHI+1}]")
        a(f"v_mov_b32 v{MX+x}, 0xff800000")
    a(f"s_mov_b32 s{sK}, 0\ns_mov_b32 s{sT4}, 16")
    a.label("L_A2_fb_loop")
    ld(T, sK, 0, vKV); ld(T + 4, sK, 1024, vKV); a.wait_all()
    for x in range(4):
        mfma(SS, T, Q + 8 * x, first=True); mfma(SS, T + 4, Q + 8 * x + 4)
        rowmax(MX + x, SS, False)
        a("s_nop 7")
    a(f"s_add_u32 s{sK}, s{sK}, 4096\ns_sub_u32 s{sT4}, s{sT4}, 1\ns_cmp_lg_u32 s{sT4}, 0\ns_cbranch_scc1 L_A2_fb_loop")
    a(f"v_lshlrev_b32 v{T+8}, 2, v{vLANE}")
    for x in range(4):
        a(f"s_xor_b32 s{sT0}, s{sW}, {x^3}\ns_lshl_b32 s{sT0}, s{sT0}, 8\ns_lshl_b32 s{sT1}, s{sW}, 10\ns_add_u32 s{sT0}, s{sT0}, s{sT1}")
        a(f"v_add_u32 v{T+9}, s{sT0}, v{T+8}\nds_write_b32 v{T+9}, v{MX+x}")
    a("s_waitcnt lgkmcnt(0)\ns_barrier")
    for x in range(4):
        a(f"s_xor_b32 s{sT0}, s{sW}, {x^3}\ns_lshl_b32 s{sT0}, s{sT0}, 8\nv_add_u32 v{T+9}, s{sT0}, v{T+8}")
        for w2 in range(4): a(f"ds_read_b32 v{T+10+w2}, v{T+9} offset:{1024*w2}")
        a(f"s_waitcnt lgkmcnt(0)\nv_max3_f32 v{MX+x}, v{T+10}, v{T+11}, v{T+12}\nv_max_f32 v{MX+x}, v{MX+x}, v{T+13}")
    a("s_barrier")
    first_loads()
    a.wait_all()
    a("s_nop 7\ns_branch L_A2_setmax")

RES, vWD, vPLN, vGo1, vWr4 = 232, 248, 250, 251, 252
vWd3, vWr3, vCA3, SEL3, CS43, vXo, vSo, vSH, vST, vCW3, TB = 194, 198, 202, 206, 210, 214, 215, 216, 220, 223, 224
sR64, sCT, sRW, sCW, sSO, sG2 = 75, 76, 77, 78, 79, 80
sRB3, sC3, sW3O, sM03, sK3 = 82, 83, 84, 91, 92
sG4, sW4o, sM04, sWOo, sOo, sX1D, sFX1, sFG, sOUTD, sST1D = 4, 11, 18, 19, 20, 21, 22, 23, 24, 25
sGS = 40
NZ = 9
CSB3 = 73728
B3 = {}; B4 = {}

def touch(srd_, soff, n):
    for i in range(n): a(f"s_buffer_load_dword s3, s[{srd_}:{srd_+3}], s{soff} offset:{128*i}")

def throttled(thunks, depth):
    toks = []
    for i, t in enumerate(thunks):
        toks += t()
        if len(toks) > depth: a.wait(vm=toks[:len(toks) - depth])
    return toks

def go_poll():
    if not OPT["go"]: return
    a(f"s_and_b32 s{sT3}, s2, 255\ns_lshl_b32 s{sT3}, s{sT3}, 7\ns_add_u32 s{sT3}, s{sT3}, {FLG + F_GO*FT}\nv_mov_b32 v{vPO}, s{sT3}")
    poll()
    stamp("b0_go")

def stage_B0():
    a.comment("==== B0: row statistics of x, prefetches, set-up")
    a.label("L_roleB")
    prev_stamp[0] = 0
    a.vmq = []; a.lgq = []
    T = TB; XR = 16
    a(f"s_lshl_b32 s{sT0}, s{sXCD}, 5\ns_add_u32 s{sT0}, s{sT0}, s{sLOC}\ns_lshl_b32 s{sT0}, s{sT0}, 2\ns_add_u32 s{sT0}, s{sT0}, s{sW}")
    a(f"s_mul_i32 s{sT1}, s{sT0}, {2*896}\ns_lshl_b32 s{sT4}, s{sT0}, 5\ns_add_u32 s{sT4}, s{sT4}, {ST0}")
    a(f"v_mul_u32_u24 v{T}, 896, v{vHH}\nv_lshl_add_u32 v{T}, v{vT_}, 4, v{T}\nv_mov_b32 v{T+1}, 0x7fff0000\nv_cmp_gt_u32 vcc, 28, v{vT_}\nv_cndmask_b32 v{T}, v{T+1}, v{T}, vcc")
    a("s_waitcnt lgkmcnt(0)")
    srd(sX, 4, S * D * 2)
    xl = [a.vm(f"buffer_load_dwordx4 v[{XR+4*i}:{XR+4*i+3}], v{T}, s[{sX}:{sX+3}], s{sT1} offen offset:{448*i}") for i in range(2)]
    stamp("b0_karg")
    srd(sDBG, 22, 256); srd(sWS, 24, WS_SIZE); srd(sW2, 14, D * D * 2); srd(sW3, 16, D * F * 2); srd(sW4, 18, D * F * 2); srd(sWO, 8, D * D * 2); srd(sOUT, 20, S * D * 2)
    a(f"v_mov_b32 v{XR+8}, 0\nv_mov_b32 v{XR+10}, 0\nv_lshlrev_b32 v{T+2}, 4, v{vHH}")
    def touches(items, nwg=256):
        a(f"s_and_b32 s{sT0}, s2, 255\nv_lshlrev_b32 v193, 7, v{vLANE}")
        Lj = newlab("tj")
        for w, (sr_, n) in enumerate(items):
            L = newlab("tc")
            if w < 3: a(f"s_cmp_lg_u32 s{sW}, {w}\ns_cbranch_scc1 {L}")
            if sr_ == "code":
                a(f"s_getpc_b64 s[{sWA}:{sWA+1}]")
                a.label("L_pc")
                a(f"s_sub_u32 s{sWA}, s{sWA}, L_pc-{NAME}_kernel\ns_subb_u32 s{sWA+1}, s{sWA+1}, 0\ns_mov_b32 s{sWA+2}, L_code_end-{NAME}_kernel\ns_mov_b32 s{sWA+3}, 0x20000")
                a(f"s_mov_b32 s{sT0}, s{sLOC}"); sr_ = sWA
            if n <= 16: a("v_and_b32 v193, 0x7ff, v193")
            a(f"s_mul_i32 s{sT0}, s{sT0}, {n*128}\nbuffer_load_dword v192, v193, s[{sr_}:{sr_+3}], s{sT0} offen")
            if w < 3: a(f"s_branch {Lj}"); a.label(L)
        a.label(Lj)
        a.tok += 1; a.vmq.append(a.tok)
    if OPT["pf"] & 1: touches([(sW2, 13), ("code", 12), (sW2, 13), (sW2, 13)])
    if OPT["pf"] & 4: touches([(sW3, 49), (sW4, 49), (sWO, 13), (sWO, 13)])
    a(f"s_mul_i32 s{sT0}, s{sLOC}, 37\ns_lshr_b32 s{sT0}, s{sT0}, 8\ns_mul_i32 s{sT1}, s{sT0}, 7\ns_sub_u32 s{sCT}, s{sLOC}, s{sT1}")
    a(f"s_lshl_b32 s{sR64}, s{sXCD}, 2\ns_add_u32 s{sR64}, s{sR64}, s{sT0}\ns_lshr_b32 s{sRW}, s{sW}, 1\ns_and_b32 s{sCW}, s{sW}, 1")
    vXd = 60
    addr_wdma128(vWD, 64); addr_xdma(vXd, 2, 64)
    a.wait(vm=xl)
    stamp("b0_x")
    no = a.vm(f"buffer_load_dwordx2 v[{vNO}:{vNO+1}], v{vZERO}, s[{sDBG}:{sDBG+3}], 0 offen sc1")
    for i in range(8): a(f"v_dot2c_f32_bf16 v{XR+8}, s{sONES}, v{XR+i}\nv_dot2c_f32_bf16 v{XR+10}, v{XR+i}, v{XR+i}")
    for r in (8, 4, 2, 1):
        for v in (XR + 8, XR + 10): a(f"v_add_f32_dpp v{v}, v{v}, v{v} row_ror:{r} row_mask:0xf bank_mask:0xf")
    for v in (XR + 8, XR + 10): a(f"v_mov_b32 v{v+1}, v{v}")
    for v in (XR + 8, XR + 10): a(f"v_permlane16_swap_b32 v{v}, v{v+1}")
    for v in (XR + 8, XR + 10): a(f"v_add_f32 v{v}, v{v}, v{v+1}")
    ln_stats(XR + 8, XR + 10, T)
    a(f"v_add_f32 v{XR+10}, {hx(f2u(EPS))}, v{XR+10}\nv_rsq_f32 v{XR+10}, v{XR+10}")
    a.wait(vm=no)
    check_nonce()
    a(f"v_mov_b32 v{XR+9}, v{vNO}\nv_mov_b32 v{XR+11}, v{vNO}\ns_mov_b32 exec_lo, 1\ns_mov_b32 exec_hi, 1")
    a(f"buffer_store_dwordx4 v[{XR+8}:{XR+11}], v{T+2}, s[{sWS}:{sWS+3}], s{sT4} offen sc1\ns_mov_b64 exec, -1")
    stamp("b0_rec")
    if OPT["nob"]: stamp_flush(); a("s_endpgm")
    if OPT["pf"] & 2:
        go_poll(); touches([(sW3, 49), (sW4, 49), (sWO, 13), (sWO, 13)])
    a(f"s_cmp_ge_u32 s{sLOC}, 28\ns_cbranch_scc1 L_end")
    if OPT["prio_b"]: a(f"s_setprio {OPT['prio_b']}")
    a(f"s_mov_b32 s{sG2}, {hx(f2u(GB))}\ns_mov_b32 s{sG2+1}, {hx(f2u(GB))}\nv_mov_b32 v{vGA}, {hx(f2u(GA))}")
    a(f"v_mul_u32_u24 v{vXo}, {PL}, v{vHH}\nv_lshl_add_u32 v{vXo}, v{vT_}, 4, v{vXo}\ns_lshl_b32 s{sT0}, s{sRW}, 9\nv_add_u32 v{vPLN}, s{sT0}, v{vXo}")
    a(f"s_xor_b32 s{sT0}, s{sT0}, 512\nv_add_u32 v{vGo1}, s{sT0}, v{vXo}")
    a(f"s_cmp_ge_u32 s{sLOC}, 14\ns_cselect_b32 s{sT0}, 1, 0\ns_cselect_b32 s{sT1}, 14, 0\ns_sub_u32 s{sC3}, s{sLOC}, s{sT1}")
    a(f"s_lshl_b32 s{sRB3}, s{sXCD}, 1\ns_add_u32 s{sRB3}, s{sRB3}, s{sT0}")
    a(f"s_mul_i32 s{sT0}, s{sT0}, 3\ns_add_u32 s{sT0}, s{sT0}, s{sCT}\ns_sub_u32 s{sT1}, s{sT0}, 7\ns_cselect_b32 s{sT0}, s{sT0}, s{sT1}")
    rot7(sK3, sT0)
    a(f"s_and_b32 s{sT0}, s{sR64}, 3\ns_lshl_b32 s{sT0}, s{sT0}, 1\ns_add_u32 s{sT0}, s{sT0}, s{sCT}\ns_sub_u32 s{sT1}, s{sT0}, 7\ns_cselect_b32 s{sT0}, s{sT0}, s{sT1}")
    rot7(sG4, sT0)
    a(f"s_mul_i32 s{sT1}, s{sW}, {16*3584}\ns_lshl_b32 s{sT2}, s{sC3}, 8\ns_add_u32 s{sT1}, s{sT1}, s{sT2}")
    a(f"s_mul_i32 s{sT0}, s{sW}, {448*896}\ns_lshl_b32 s{sT2}, s{sCT}, 7\ns_add_u32 s{sT0}, s{sT0}, s{sT2}")
    a(f"s_mul_i32 s{sWOo}, s{sW}, {112*896}\ns_add_u32 s{sWOo}, s{sWOo}, s{sT2}")
    a(f"s_lshl_b32 s{sT2}, s{sR64}, 10\ns_mul_i32 s{sT3}, s{sW}, {56*PL}\ns_add_u32 s{sT3}, s{sT3}, s{sT2}\ns_add_u32 s{sT3}, s{sT3}, {G_}")
    a(f"s_mul_i32 s{sOo}, s{sW}, {16*PL}\ns_add_u32 s{sOo}, s{sOo}, s{sT2}\ns_add_u32 s{sOo}, s{sOo}, {O_}")
    a(f"s_lshl_b32 s{sT4}, s{sRB3}, 2\ns_add_u32 s{sT4}, s{sT4}, s{sW}\ns_lshl_b32 s{sSO}, s{sT4}, 8\ns_add_u32 s{sSO}, s{sSO}, {ST1}\ns_lshl_b32 s{sT4}, s{sT4}, 9")
    for c in range(7):
        a(f"s_mul_i32 s{sW3O+c}, s{sK3+c}, {64*3584}\ns_add_u32 s{sW3O+c}, s{sW3O+c}, s{sT1}")
        a(f"s_mul_i32 s{sW4o+c}, s{sG4+c}, {64*896}\ns_add_u32 s{sW4o+c}, s{sW4o+c}, s{sT0}")
        a(f"s_mul_i32 s{sG4+c}, s{sG4+c}, {8*PL}\ns_add_u32 s{sG4+c}, s{sG4+c}, s{sT3}")
        a(f"s_mul_i32 s{sK3+c}, s{sK3+c}, {8*PL}\ns_add_u32 s{sK3+c}, s{sK3+c}, s{sT4}\ns_add_u32 s{sK3+c}, s{sK3+c}, {X1}")
    a(f"s_mul_i32 s{sT1}, s{sC3}, {16*PL}\ns_add_u32 s{sT4}, s{sT4}, s{sT1}\ns_add_u32 s{sT4}, s{sT4}, {G_}")
    for u in range(4): a(f"s_add_u32 s{sT0}, s{sW}, {u}\ns_and_b32 s{sT0}, s{sT0}, 3\ns_mul_i32 s{sT0}, s{sT0}, {4*PL}\ns_add_u32 s{sGS+u}, s{sT0}, s{sT4}")
    a(f"s_lshl_b32 s{sM03}, s{sW}, 12\ns_mul_i32 s{sM04}, s{sW}, {NZ*2048}")
    a(f"s_lshl_b32 s{sT2}, s{sCT}, 1\ns_add_u32 s{sT2}, s{sT2}, s{sCW}\ns_mul_i32 s{sT0}, s{sT2}, {4*PL}\ns_lshl_b32 s{sT1}, s{sR64}, 10")
    a(f"s_add_u32 s{sT0}, s{sT0}, s{sT1}\ns_add_u32 s{sX1D}, s{sT0}, {X1}\ns_lshl_b32 s{sST1D}, s{sT2}, 14\ns_add_u32 s{sST1D}, s{sST1D}, {ST1}")
    a(f"s_lshl_b32 s{sT2}, s{sT2}, 6\ns_lshl_b32 s{sT0}, s{sR64}, 1\ns_add_u32 s{sT0}, s{sT0}, s{sRW}\ns_mul_i32 s{sOUTD}, s{sT0}, {32*896}\ns_add_u32 s{sOUTD}, s{sOUTD}, s{sT2}")
    a(f"s_lshl_b32 s{sT0}, s{sR64}, 3\ns_add_u32 s{sT0}, s{sT0}, s{sCT}\ns_lshl_b32 s{sT0}, s{sT0}, 7\ns_add_u32 s{sFX1}, s{sT0}, {FLG + F_X1*FT}")
    a(f"s_lshl_b32 s{sT0}, s{sRB3}, 4\ns_add_u32 s{sT0}, s{sT0}, s{sC3}\ns_lshl_b32 s{sT0}, s{sT0}, 7\ns_add_u32 s{sFG}, s{sT0}, {FLG + F_G*FT}")
    a(f"s_movk_i32 s{sT3}, 3584")
    addr_wdma256(vWd3, sT3, T)
    addr_wrd256(vWr3, 64, T)
    addr_cs(vCW3, vCA3, CSB3)
    make_sel(SEL3, T)
    addr_wrd128(vWr4, 4, sCW, sM04, T)
    a(f"v_xor_b32 v{vWr4+1}, 64, v{vWr4}")
    a(f"v_mul_u32_u24 v{vSo}, {7*16384}, v{vHH}\nv_lshl_add_u32 v{vSo}, v{vT_}, 3, v{vSo}")
    a(f"s_lshl_b32 s{sT0}, s{sR64}, 6\ns_lshl_b32 s{sT1}, s{sRW}, 5\ns_add_u32 s{sT0}, s{sT0}, s{sT1}\nv_add_u32 v{T}, s{sT0}, v{vT_}")
    a(f"v_lshlrev_b32 v{vST+2}, 3, v{T}\nv_lshlrev_b32 v{T+4}, 4, v{T}")
    a(f"v_mul_u32_u24 v{T+1}, {PL}, v{vHH}\nv_mov_b32 v{T+3}, 0x7fff0000\ns_movk_i32 s{sT2}, 2048")
    a(f"s_add_u32 s{sT0}, s{sCW}, 1")
    for g, op in enumerate(("v_subrev_u32", "v_add_u32")):
        a(f"{op} v{T+2}, s{sT0}, v{T}\nv_cmp_gt_u32 vcc, s{sT2}, v{T+2}\nv_lshl_add_u32 v{vSH+g}, v{T+2}, 4, v{T+1}\nv_cndmask_b32 v{vSH+g}, v{T+3}, v{vSH+g}, vcc")
    if not OPT["pf"] & 2: go_poll()
    a(f"s_lshl_b32 s{sT0}, s{sR64}, 2\ns_add_u32 s{sT0}, s{sT0}, s{sW}\ns_mul_i32 s{sT0}, s{sT0}, {16*896}\ns_lshl_b32 s{sT1}, s{sCT}, 7\ns_add_u32 s{sT0}, s{sT0}, s{sT1}")
    a(f"s_lshl_b32 s{sT2}, s{sW}, 11"); set_m0(sT2, 57344)
    for q in range(2): a.vm(f"buffer_load_dwordx4 v{vXd+q}, s[{sX}:{sX+3}], s{sT0} offen offset:{1024*q} lds")
    a(f"s_mul_i32 s{sT0}, s{sW}, {112*896}\ns_add_u32 s{sT0}, s{sT0}, s{sT1}\ns_mul_i32 s{sT1}, s{sW}, 14336")
    a(f"s_and_b32 s{sT2}, s{sR64}, 3\ns_lshl_b32 s{sT2}, s{sT2}, 1")
    def w2q(q):
        a(f"s_mul_i32 s{sT4}, s{sT2}, {16*896}\ns_add_u32 s{sT4}, s{sT4}, s{sT0}\ns_lshl_b32 s{sT5}, s{sT2}, 11\ns_add_u32 m0, s{sT5}, s{sT1}")
        tk = [a.vm(f"buffer_load_dwordx4 v{vWD+j}, s[{sW2}:{sW2+3}], s{sT4} offen offset:{1024*j} lds") for j in range(2)]
        if q < 6: a(f"s_add_u32 s{sT2}, s{sT2}, 1\ns_cmp_eq_u32 s{sT2}, 7\ns_cselect_b32 s{sT2}, 0, s{sT2}")
        return tk
    throttled([lambda q=q: w2q(q) for q in range(7)], OPT["thr"])
    REC = 160
    a(f"s_mov_b32 s{sT4}, {ST0}")
    check_record(REC, T + 4, sT4, loaded=False)
    a("s_barrier")
    stamp("b0_w2")
    if OPT["pf"] & 8: touches([(sW3, 56), (sW4, 56), (sWO, 14), (sWO, 14)], 224)
    ACC, W2F, XV, vWr = 16, 48, 164, 172
    a(f"s_mul_i32 s{sT3}, s{sCW}, 28672")
    addr_wrd128(vWr, 4, sCW, sT3, T)
    a(f"v_xor_b32 v{vWr+1}, 64, v{vWr}")
    a(f"v_bfe_u32 v{T}, v{vT_}, 1, 3\ns_lshl_b32 s{sT0}, s{sCW}, 2\nv_xor_b32 v{T}, s{sT0}, v{T}\nv_lshlrev_b32 v{T}, 4, v{T}")
    a(f"v_lshl_add_u32 v{T}, v{vT_}, 7, v{T}\nv_lshl_add_u32 v{T}, v{vHH}, 3, v{T}\ns_lshl_b32 s{sT0}, s{sRW}, 12\nv_add_u32 v{T}, s{sT0}, v{T}")
    for i in range(4):
        a(f"v_xor_b32 v{T+1}, {16*i}, v{T}")
        a.lg(f"ds_read_b64 v[{XV+2*i}:{XV+2*i+1}], v{T+1} offset:57344")
    for s in range(14):
        for b in range(2):
            for jj in range(2): a.lg(f"ds_read_b64_tr_b16 v[{W2F+8*s+4*b+2*jj}:{W2F+8*s+4*b+2*jj+1}], v{vWr+b} offset:{s*2048 + jj*1024}")
            if len(a.lgq) > 12: a.wait(lg=a.lgq[-11])
    a.wait_all(vm=False); a("s_barrier")
    m0 = [None]
    def issue_w(c, qs=range(4)):
        if m0[0] != c: set_m0(sM03, (c % 5) * 16384); m0[0] = c
        return [a.vm(f"buffer_load_dwordx4 v{vWd3+q}, s[{sW3}:{sW3+3}], s{sW3O+c} offen offset:{1024*q} lds") for q in qs]
    B3["issue_w"] = issue_w; B3["wt"] = {}
    def w3c(c, q):
        t = issue_w(c, (q,)); B3["wt"].setdefault(c, []).extend(t); return t
    B3["pieces"] = [lambda c=c, q=q: w3c(c, q) for c in range(5) for q in range(4)]
    for t in B3["pieces"][:OPT["w3a"]]: t()
    for i in range(8):
        a(f"v_lshlrev_b32 v{RES+2*i}, 16, v{XV+i}\nv_and_b32 v{RES+2*i+1}, 0xffff0000, v{XV+i}")
    a(f"v_mov_b32 v{vA}, v{REC+2}\nv_mul_f32 v{vB}, v{REC}, v{REC+2}\nv_sub_f32 v{vB}, 0, v{vB}")
    for i in range(0, 16, 2):
        a(f"v_pk_fma_f32 v[{ACC+i}:{ACC+i+1}], v[{RES+i}:{RES+i+1}], v[{vA}:{vA+1}], v[{vB}:{vB+1}] op_sel_hi:[1,0,0]")

def stage_B2():
    a.comment("==== B2: x1 = xn + shift(h) @ w2, 64 x 64 tile")
    ACC, W2F, HF, NH = 16, 48, 160, 8
    T = TB
    a(f"s_lshr_b32 s{sT0}, s{sR64}, 1\ns_and_b32 s{sT1}, s{sR64}, 1\ns_lshl_b32 s{sT1}, s{sT1}, 1\ns_add_u32 s{sT1}, s{sT1}, s{sT0}\ns_sub_u32 s{sT1}, s{sT1}, 1")
    a(f"s_max_i32 s{sT1}, s{sT1}, 0\ns_min_i32 s{sT1}, s{sT1}, 15\ns_lshl_b32 s{sT2}, s{sCW}, 8\ns_add_u32 s{sT2}, s{sT2}, {FLG + F_QKV*FT + 12*128}")
    a(f"v_mov_b32 v{T}, s{sT0}\nv_mov_b32 v{T+1}, s{sT1}\nv_cmp_gt_u32 vcc, 2, v{vLANE}\nv_cndmask_b32 v{T}, v{T+1}, v{T}, vcc")
    a(f"v_and_b32 v{T+1}, 1, v{vLANE}\nv_lshl_add_u32 v{T}, v{T}, 4, v{T+1}\nv_lshlrev_b32 v{T}, 7, v{T}\nv_add_u32 v{vPO}, s{sT2}, v{T}")
    a(f"s_mul_i32 s{sT0}, s{sCW}, {28*PL}\ns_add_u32 s{sT0}, s{sT0}, {H_}\ns_add_u32 s{sT1}, s{sX1D}, {2*PL}")
    vW, vR = vSH + 2, vSH + 3
    a(f"s_lshl_b32 s{sT2}, s{sW}, 12\ns_add_u32 s{sT2}, s{sT2}, 65536\nv_add_u32 v{vW}, s{sT2}, v{vL16}\nv_xor_b32 v{vR}, 4096, v{vW}")
    stamp("b2_ready")
    poll()
    stamp("b2_poll")
    ht = []
    def hload():
        ks = len(ht); r = HF + 4 * (ks % NH)
        ht.append(a.vm(f"buffer_load_dwordx4 v[{r}:{r+3}], v{vSH + ks//7}, s[{sWS}:{sWS+3}], s{sT0} offen sc1"))
        if ks < 13: a(f"s_add_u32 s{sT0}, s{sT0}, {2*PL}")
    for ks in range(NH): hload()
    a(f"s_lshl_b32 s{sT2}, s{sRB3}, 1\ns_add_u32 s{sT2}, s{sT2}, s{sRW}\ns_lshl_b32 s{sT2}, s{sT2}, 10\ns_add_u32 s{sT2}, s{sT2}, {FLG + F_X1*FT}")
    a(f"v_min_u32 v{T}, 6, v{vLANE}\nv_lshl_add_u32 v{vPO}, v{T}, 7, s{sT2}")
    for s in range(14):
        a.wait(vm=ht[s])
        if s == 0: stamp("b2_h0")
        mfma(ACC + 16, W2F + 8 * s + 4, HF + 4 * (s % NH), first=(s == 0))
        mfma(ACC, W2F + 8 * s, HF + 4 * (s % NH))
        if len(ht) < 14: hload()
    stamp("b2_main")
    for i in range(4): a.lg(f"ds_write_b128 v{vW}, v[{ACC+16+4*i}:{ACC+16+4*i+3}] offset:{1024*i}")
    a.wait_all(vm=False); a("s_barrier")
    tk = [a.lg(f"ds_read_b128 v[{ACC+16+4*i}:{ACC+16+4*i+3}], v{vR} offset:{1024*i}") for i in range(4)]
    for i in range(4):
        a.wait(lg=tk[i])
        for k in (0, 2): a(f"v_pk_add_f32 v[{ACC+4*i+k}:{ACC+4*i+k+1}], v[{ACC+4*i+k}:{ACC+4*i+k+1}], v[{ACC+16+4*i+k}:{ACC+16+4*i+k+1}]")
    PK = 48; sts = []
    cvt16(PK, ACC)
    for p in range(2):
        a(f"v_permlane32_swap_b32 v{PK+4*p}, v{PK+4*p+2}\nv_permlane32_swap_b32 v{PK+4*p+1}, v{PK+4*p+3}")
        sts.append(a.vm(f"buffer_store_dwordx4 v[{PK+4*p}:{PK+4*p+3}], v{vPLN}, s[{sWS}:{sWS+3}], s{sT1 if p else sX1D} offen sc1"))
    a(f"v_pk_add_f32 v[{T}:{T+1}], v[{ACC}:{ACC+1}], v[{ACC+2}:{ACC+3}]\nv_pk_mul_f32 v[{T+2}:{T+3}], v[{ACC}:{ACC+1}], v[{ACC}:{ACC+1}]")
    a(f"v_pk_fma_f32 v[{T+2}:{T+3}], v[{ACC+2}:{ACC+3}], v[{ACC+2}:{ACC+3}], v[{T+2}:{T+3}]")
    for i in range(4, 16, 2):
        a(f"v_pk_add_f32 v[{T}:{T+1}], v[{T}:{T+1}], v[{ACC+i}:{ACC+i+1}]\nv_pk_fma_f32 v[{T+2}:{T+3}], v[{ACC+i}:{ACC+i+1}], v[{ACC+i}:{ACC+i+1}], v[{T+2}:{T+3}]")
    a(f"v_add_f32 v{T}, v{T}, v{T+1}\nv_add_f32 v{T+2}, v{T+2}, v{T+3}\nv_mov_b32 v{T+1}, v{T}\nv_mov_b32 v{T+3}, v{T+2}")
    a(f"v_permlane32_swap_b32 v{T}, v{T+1}\nv_permlane32_swap_b32 v{T+2}, v{T+3}\nv_add_f32 v{vST}, v{T}, v{T+1}\nv_add_f32 v{vST+1}, v{T+2}, v{T+3}")
    sts.append(a.vm(f"buffer_store_dwordx2 v[{vST}:{vST+1}], v{vST+2}, s[{sWS}:{sWS+3}], s{sST1D} offen sc1"))
    for i in range(0, 16, 2): a(f"v_pk_add_f32 v[{RES+i}:{RES+i+1}], v[{RES+i}:{RES+i+1}], v[{ACC+i}:{ACC+i+1}]")
    stamp("b2_st")
    n0 = OPT["w3a"]; n1 = max(n0, OPT["w3b"])
    for t in B3["pieces"][n0:n1]: t()
    a.wait(vm=sts); a("s_barrier")
    publish(sFX1, barrier=False)
    stamp("b2_pub")
    for t in B3["pieces"][n1:]: t()

def stage_B3():
    a.comment("==== B3: g = gelu(LN(x1) @ w3), 128 x 128 tile")
    ACC, XF, NX, WF, ST = 16, 80, 16, 144, 176
    T = TB
    poll()
    stamp("b3_poll")
    xt = []
    def xload():
        s = len(xt); c, ks = divmod(s, 4); r = XF + 4 * (s % NX)
        so = sK3 + c
        if ks: a(f"s_add_u32 s{sT0}, s{sK3+c}, {2*ks*PL}"); so = sT0
        xt.append(a.vm(f"buffer_load_dwordx4 v[{r}:{r+3}], v{vXo}, s[{sWS}:{sWS+3}], s{so} offen sc1"))
    for s in range(6): xload()
    stt = []
    def stat_load():
        i = len(stt)
        if i: a(f"s_add_u32 s{sSO}, s{sSO}, 16384")
        stt.append(a.vm(f"buffer_load_dwordx2 v[{ST+2*i}:{ST+2*i+1}], v{vSo}, s[{sWS}:{sWS+3}], s{sSO} offen sc1"))
    def kstep(s):
        th = []
        n = len(xt)
        for k in range(2):
            if n + k < 28 and n + k < s + NX and n + k <= s + 13: th.append(xload)
        if 17 <= s < 24: th.append(stat_load)
        return th
    hooks = dict(before_barrier=lambda c: None, after_barrier=lambda c: [], lg_need=lambda s: [], vm_need=lambda s: [xt[s]], kstep=kstep)
    PAD[0] = OPT["pad3"]
    panel_mainloop("b3", ACC, WF, vWr3, 5, lambda s: XF + 4 * (s % NX), B3["issue_w"], B3["wt"], hooks, SEL3, CS43)
    PAD[0] = 0
    stamp("b3_main")
    a.wait(vm=stt)
    for i in (2, 4): a(f"v_pk_add_f32 v[{ST}:{ST+1}], v[{ST}:{ST+1}], v[{ST+i}:{ST+i+1}]\nv_pk_add_f32 v[{ST+6}:{ST+7}], v[{ST+6}:{ST+7}], v[{ST+6+i}:{ST+7+i}]")
    a.lg(f"ds_write_b32 v{vCW3}, v{CS43}")
    a(f"v_pk_add_f32 v[{ST}:{ST+1}], v[{ST}:{ST+1}], v[{ST+12}:{ST+13}]\nv_pk_add_f32 v[{ST}:{ST+1}], v[{ST}:{ST+1}], v[{ST+6}:{ST+7}]")
    a(f"v_mov_b32 v{ST+2}, v{ST}\nv_mov_b32 v{ST+3}, v{ST+1}\nv_permlane32_swap_b32 v{ST}, v{ST+2}\nv_permlane32_swap_b32 v{ST+1}, v{ST+3}")
    a(f"v_pk_add_f32 v[{ST}:{ST+1}], v[{ST}:{ST+1}], v[{ST+2}:{ST+3}]")
    ln_stats(ST, ST + 1, T)
    a(f"v_add_f32 v{ST+1}, {hx(f2u(EPS))}, v{ST+1}\nv_rsq_f32 v{vA}, v{ST+1}\nv_mul_f32 v{vB}, v{vA}, v{ST}\nv_sub_f32 v{vB}, 0, v{vB}")
    a.wait_all(vm=False); a("s_barrier")
    stamp("b3_csbar")
    CS, GT, PK = 80, 144, 160
    toks = [read_cs(CS + 16 * u, vCA3 + u) for u in range(3)]
    for u in range(4): scale16(ACC + 16 * u)
    a.wait(lg=toks[0])
    toks.append(read_cs(CS + 48, vCA3 + 3))
    def issue_w4(j):
        set_m0(sM04, (j % NZ) * 2048)
        if j < 28:
            c, ks = divmod(j, 4); srd_, base, add = sW4, sW4o + c, ks * 16 * 896
        else:
            hd, m = divmod(j - 28, 2); srd_, base, add = sWO, sWOo, (28 * hd + 16 * m) * 896
        so = base
        if add: a(f"s_add_u32 s{sT5}, s{base}, {add}"); so = sT5
        return [a.vm(f"buffer_load_dwordx4 v{vWD+q}, s[{srd_}:{srd_+3}], s{so} offen offset:{1024*q} lds") for q in range(2)]
    B4["issue_w"] = issue_w4; B4["wt"] = {}
    cnt = [0]
    def hook():
        cnt[0] += 1
        j = len(B4["wt"])
        if j < NZ and cnt[0] % 2 == 1: B4["wt"][j] = issue_w4(j)
    for u in range(4):
        a.wait(lg=toks[u]); shift16(ACC + 16 * u, CS + 16 * u)
        gelu16(ACC + 16 * u, GT, sG2, vGA, hook)
        pk = PK + 8 * (u & 1)
        cvt16(pk, ACC + 16 * u)
        a(f"s_add_u32 s{sT1}, s{sGS+u}, {2*PL}")
        a.vm(f"buffer_store_dwordx4 v[{pk}:{pk+3}], v{vXo}, s[{sWS}:{sWS+3}], s{sGS+u} offen sc1")
        a.vm(f"buffer_store_dwordx4 v[{pk+4}:{pk+7}], v{vXo}, s[{sWS}:{sWS+3}], s{sT1} offen sc1")
    assert len(B4["wt"]) == NZ
    stamp("b3_epi")
    for i in range(16): a(f"v_mov_b32 v{ACC+i}, v{RES+i}")
    a(f"s_lshr_b32 s{sT0}, s{sR64}, 1\ns_lshl_b32 s{sT0}, s{sT0}, 4\ns_mul_i32 s{sT1}, s{sW}, 7\ns_lshr_b32 s{sT1}, s{sT1}, 1\ns_add_u32 s{sT1}, s{sT1}, s{sT0}")
    a(f"v_and_b32 v{T}, 3, v{vLANE}\nv_add_u32 v{T+1}, s{sT1}, v{T}\nv_lshlrev_b32 v{T+1}, 7, v{T+1}\nv_add_u32 v{vPO}, {FLG + F_G*FT}, v{T+1}")
    a(f"s_lshl_b32 s{sT1}, s{sW}, 2\ns_add_u32 s{sT1}, s{sT1}, s{sT0}\nv_add_u32 v{T+1}, s{sT1}, v{T}\nv_lshlrev_b32 v{T+1}, 7, v{T+1}\nv_add_u32 v{T+7}, {FLG + F_O*FT}, v{T+1}")
    publish(sFG)
    stamp("b3_pub")

def stage_B4():
    a.comment("==== B4: out = x + x1 + g @ w4 + o @ wo, 64 x 64 tile, k split over the waves")
    ACC, GF, WF, T = 16, 80, 144, TB
    vGo = [vPLN, vGo1]; vPO2 = T + 7
    wt = B4["wt"]; issue_w = B4["issue_w"]
    rd = {}; gt = {}
    def reads(j):
        a.wait(vm=wt[j])
        rd[j] = []
        return [lambda b=b, jj=jj: rd[j].append(a.lg(f"ds_read_b64_tr_b16 v[{WF+8*(j&1)+4*b+2*jj}:{WF+8*(j&1)+4*b+2*jj+1}], v{vWr4+b} offset:{(j%NZ)*2048 + jj*1024}")) for b in range(2) for jj in range(2)]
    def gload(j):
        if j < 28:
            c, ks = divmod(j, 4); base, add = sG4 + c, 2 * ks * PL
        else: base, add = sOo, 2 * (j - 28) * PL
        so = base
        if add: a(f"s_add_u32 s{sT4}, s{base}, {add}"); so = sT4
        r = GF + 8 * (j % 8)
        gt[j] = [a.vm(f"buffer_load_dwordx4 v[{r+4*aa}:{r+4*aa+3}], v{vGo[aa]}, s[{sWS}:{sWS+3}], s{so} offen sc1") for aa in range(2)]
    ot = []
    def ocheck():
        L = newlab("oc"); q = None
        a.wait(vm=ot)
        q = list(a.vmq)
        a(f"v_cmp_ne_u64 vcc, v[{vP0}:{vP0+1}], v[{vNO}:{vNO+1}]\ns_cbranch_vccz {L}\nv_mov_b32 v{vPO}, v{vPO2}")
        poll()
        a.label(L)
        a.vmq = q
        stamp("b4_opoll")
    for t in reads(0): t()
    poll()
    stamp("b4_poll")
    for j in range(4): gload(j)
    PAD[0] = OPT["pad4"]
    for j in range(36):
        if j == 28: stamp("b4_g")
        a.wait(vm=gt[j], lg=rd[j])
        if j in (0, 14): stamp(f"b4_j{j}")
        rds = reads(j + 1) if j + 1 < 36 else []
        late = []
        n = len(gt)
        if j == 18 and not OPT["noattn"]:
            late.append(lambda: ot.append(a.vm(f"buffer_load_dwordx2 v[{vP0}:{vP0+1}], v{vPO2}, s[{sWS}:{sWS+3}], 0 offen sc1")))
        if j == 20 and not OPT["noattn"]: late.append(ocheck)
        for k in range(2):
            if n + k < 36 and n + k <= j + 7: late.append(lambda k=n + k: gload(k))
        if j + NZ < 36: late.append(lambda j=j: wt.__setitem__(j + NZ, issue_w(j + NZ)))
        g = GF + 8 * (j % 8); w = WF + 8 * (j & 1)
        for u in range(4):
            aa, b = divmod(u, 2)
            mfma(ACC + 16 * u, w + 4 * b, g + 4 * aa, first=(j == 0 and u > 0))
            if u == 0:
                for t in rds: t()
            elif late: late.pop(0)()
        for t in late: t()
    PAD[0] = 0
    stamp("b4_o")
    vW, vR = T, T + 1
    a(f"v_add_u32 v{vW}, s{sM04}, v{vL16}\nv_mul_u32_u24 v{T+2}, 896, v{vT_}\nv_lshl_add_u32 v{T+2}, v{vHH}, 4, v{T+2}")
    for u in range(1, 4):
        for i in range(4): a.lg(f"ds_write_b128 v{vW}, v[{ACC+16*u+4*i}:{ACC+16*u+4*i+3}] offset:{(u-1)*4096 + 1024*i}")
    a.wait_all(vm=False); a("s_barrier")
    stamp("b4_rbar")
    tk = []
    for u in range(1, 4):
        a(f"s_xor_b32 s{sT0}, s{sW}, {u}\ns_mul_i32 s{sT0}, s{sT0}, {NZ*2048}\nv_add_u32 v{vR}, s{sT0}, v{vL16}")
        tk.append([a.lg(f"ds_read_b128 v[{ACC+16*u+4*i}:{ACC+16*u+4*i+3}], v{vR} offset:{(u-1)*4096 + 1024*i}") for i in range(4)])
    for u in range(1, 4):
        a.wait(lg=tk[u - 1])
        for i in range(0, 16, 2): a(f"v_pk_add_f32 v[{ACC+i}:{ACC+i+1}], v[{ACC+i}:{ACC+i+1}], v[{ACC+16*u+i}:{ACC+16*u+i+1}]")
    PK = GF
    cvt16(PK, ACC)
    for p in range(2):
        a(f"v_permlane32_swap_b32 v{PK+4*p}, v{PK+4*p+2}\nv_permlane32_swap_b32 v{PK+4*p+1}, v{PK+4*p+3}")
        a.vm(f"buffer_store_dwordx4 v[{PK+4*p}:{PK+4*p+3}], v{T+2}, s[{sOUT}:{sOUT+3}], s{sOUTD} offen offset:{32*p}" + ["", " sc1", " nt", " sc0 sc1"][OPT["outsc"]])
    stamp("b4_end"); stamp_flush()

HEAD = f"""; parallel sum of an attention block and a spatial-shift MLP mixer.  One persistent launch, two workgroups per CU:
; @launch grid=(512,1,1) block=(256,1,1) lds={LDS_BYTES}
.amdgcn_target "amdgcn-amd-amdhsa--gfx950"
.text
.globl {NAME}_kernel
.p2align 8
.type {NAME}_kernel,@function
{NAME}_kernel:
"""
TAIL = f""".section .rodata,"a"
.p2align 6
.amdhsa_kernel {NAME}_kernel
  .amdhsa_next_free_vgpr 256
  .amdhsa_next_free_sgpr 102
  .amdhsa_accum_offset 256
  .amdhsa_group_segment_fixed_size 0
  .amdhsa_kernarg_size 88
  .amdhsa_user_sgpr_count 2
  .amdhsa_user_sgpr_kernarg_segment_ptr 1
  .amdhsa_system_sgpr_workgroup_id_x 1
.end_amdhsa_kernel
"""

def build():
    prologue()
    stage_A1()
    if OPT["noattn"]: stamp_flush(); a("s_endpgm")
    else: stage_A2()
    stage_B0()
    stage_B2()
    stage_B3()
    stage_B4()
    a.label("L_end")
    a("s_endpgm")
    a.label("L_code_end")
    a.pad_hazards()
    size, nprom, nnop = fix_straddles(a, HEAD, TAIL, verbose=True)
    print(f"code bytes {size}, hazard nops {a.nops_inserted}, promoted {nprom}, straddle nops {nnop}")
    open(sys.argv[1], "w").write(HEAD + a.text() + TAIL + (("; roles: BA\n" if OPT["swap"] else "") + "; stamps: " + ",".join(stamp_names) + "\n" if OPT["stamps"] else ""))

if __name__ == "__main__":
    build()
```

```python
import sys, math, struct
from asmlib import *

NAME = "parallel_sum__mha_block__mixer_s_mlp__prompt"
OPT = dict(stamps=0, spin=400000, prio_b=1, pf=1, outsc=0, noattn=0, nob=0, nr=5, thr=64, go=12, prio_a1=2, prio_at=2, w2late=1, thra=6, swap=1, anf=1, thr3=64, w3a=0, w3b=3, aprio=1, pad3=0, pad4=0, xp=0, defer=0, w3c=20, l2w3=0, l2w4=48, clr=1, map3=1, split=0, prio_h=1, hwait=1, hthr=14, alate=64, aprio2=1, nrg=8, w4b=0, olead=5, dsw=1)
for a in sys.argv[2:]:
    k, v = a.split("="); OPT[k] = int(v, 0)

def f2u(x): return struct.unpack("<I", struct.pack("<f", x))[0]
def hx(x): return hex(x & 0xffffffff)

S, D, F = 2048, 448, 1792
PL = 32768 + 256
FLG = 0; FT = 0x8000
F_QKV, F_GO, F_X1, F_G, F_O, F_CS = 0, 1, 2, 3, 4, 5
QB_ = 0x40000
KV_ = QB_ + 16 * 64 * 2048
H_ = KV_ + 16 * 64 * 4096
X1 = H_ + 0x1C4000
O_ = X1 + 0x1C4000
G_ = O_ + 0x204000
CS3 = G_ + 0x70E000
ST0 = CS3 + 0x2000
ST1 = ST0 + 0x8000
WS_SIZE = ST1 + 14 * 0x4000
STAMP = 0x1600000
if OPT['stamps']: WS_SIZE = STAMP + 0x80000
LDS_BYTES = 81920
EPS = 1e-5
QSCALE = (28 ** -0.5) * math.log2(math.e)
GA = -2.0 * math.log2(math.e) * math.sqrt(2.0 / math.pi)
GB = GA * 0.044715

sX, sWS, sDBG, sWA, sW2, sW3, sW4, sWO, sOUT = 28, 32, 36, 40, 44, 48, 52, 56, 60
sHI = 26
sW, sXCD, sLOC = 64, 65, 66
sONES = 67
sT0, sT1, sT2, sT3, sT4, sT5 = 68, 69, 70, 71, 72, 73
sCNT = 74
sA0 = 75
vTID, vLANE, vT_, vHH, vZERO = 0, 1, 2, 3, 4
vNO = 6
vP0 = 8
vPO = 10
vL16 = 11
vA, vB = 12, 14

a = Asm()
lab = [0]
def newlab(p):
    lab[0] += 1; return f"L_{p}_{lab[0]}"

def srd(dst, ptr, size):
    a(f"s_mov_b32 s{dst}, s{ptr}\ns_mov_b32 s{dst+1}, s{ptr+1}\ns_mov_b32 s{dst+2}, {hx(size)}\ns_mov_b32 s{dst+3}, 0x20000")

nstamp = [0]
prev_stamp = [None]
stamp_names = {}
def stamp(name, first=False):
    if not OPT["stamps"]: return
    idx = stamp_names.setdefault(name, len(stamp_names))
    assert idx < 64
    if first: a("v_mov_b32 v5, 0")
    elif prev_stamp[0] is not None: a(f"v_writelane_b32 v5, s100, {prev_stamp[0]}")
    a("s_memrealtime s[100:101]" if OPT["stamps"] == 1 else "s_memtime s[100:101]")
    prev_stamp[0] = idx

def stamp_flush():
    if not OPT["stamps"]: return
    a(f"s_waitcnt lgkmcnt(0)\nv_writelane_b32 v5, s100, {prev_stamp[0]}")
    a(f"s_lshl_b32 s100, s2, 2\ns_add_u32 s100, s100, s{sW}\ns_lshl_b32 s100, s100, 8\ns_add_u32 s100, s100, {STAMP}")
    a(f"v_lshlrev_b32 v{vP0}, 2, v{vLANE}\nbuffer_store_dword v5, v{vP0}, s[{sWS}:{sWS+3}], s100 offen")

def get_nonce():
    L = newlab("no"); Dn = newlab("nod")
    a(f"s_mov_b32 s{sCNT}, {OPT['spin']}")
    a.label(L)
    a(f"buffer_load_dwordx2 v[{vNO}:{vNO+1}], v{vZERO}, s[{sDBG}:{sDBG+3}], 0 offen sc1")
    a.wait_all(lg=False)
    a(f"v_cmp_eq_u32 vcc, 0, v{vNO}\ns_cbranch_vccz {Dn}\ns_sub_u32 s{sCNT}, s{sCNT}, 1\ns_cbranch_scc1 {Dn}\ns_sleep 1\ns_branch {L}")
    a.label(Dn)

def check_nonce(keep=False):
    Dn = newlab("cn")
    q = list(a.vmq)
    a(f"v_cmp_eq_u32 vcc, 0, v{vNO}\ns_cbranch_vccz {Dn}")
    get_nonce()
    a.label(Dn)
    a.vmq = q

def poll(sleep=1):
    L = newlab("po"); Dn = newlab("pod")
    a(f"s_mov_b32 s{sCNT}, {OPT['spin']}")
    a.label(L)
    a(f"buffer_load_dwordx2 v[{vP0}:{vP0+1}], v{vPO}, s[{sWS}:{sWS+3}], 0 offen sc1")
    a.wait_all(lg=False)
    a(f"v_cmp_ne_u64 vcc, v[{vP0}:{vP0+1}], v[{vNO}:{vNO+1}]\ns_cbranch_vccz {Dn}\ns_sub_u32 s{sCNT}, s{sCNT}, 1\ns_cbranch_scc1 {Dn}\ns_sleep {sleep}\ns_branch {L}")
    a.label(Dn)

def publish(sflag, barrier=True):
    L = newlab("pub")
    if barrier:
        a.wait_all()
        a("s_barrier")
    a(f"s_cmp_lg_u32 s{sW}, 0\ns_cbranch_scc1 {L}\ns_mov_b64 exec, 1")
    a(f"buffer_store_dwordx2 v[{vNO}:{vNO+1}], v{vZERO}, s[{sWS}:{sWS+3}], s{sflag} offen sc1")
    a("s_mov_b64 exec, -1")
    a.label(L)
    a.flag_pending = True

def xhalf_add(v, t1, t2):
    a(f"v_mov_b32 v{t1}, v{v}\nv_mov_b32 v{t2}, v{v}\nv_permlane32_swap_b32 v{t1}, v{t2}\nv_add_f32 v{v}, v{t1}, v{t2}")

def ln_stats(vsum, vsq, t):
    a(f"v_mul_f32 v{vsum}, {hx(f2u(1.0/D))}, v{vsum}\nv_mul_f32 v{vsq}, {hx(f2u(1.0/D))}, v{vsq}")
    a(f"v_fma_f32 v{vsq}, -v{vsum}, v{vsum}, v{vsq}\nv_max_f32 v{vsq}, 0, v{vsq}")

def scale16(acc):
    for i in range(0, 16, 2):
        a(f"v_pk_mul_f32 v[{acc+i}:{acc+i+1}], v[{acc+i}:{acc+i+1}], v[{vA}:{vA+1}] op_sel_hi:[1,0]")
def shift16(acc, cs):
    for i in range(0, 16, 2):
        a(f"v_pk_fma_f32 v[{acc+i}:{acc+i+1}], v[{cs+i}:{cs+i+1}], v[{vB}:{vB+1}], v[{acc+i}:{acc+i+1}] op_sel_hi:[1,0,1]")

def gelu_consts(vC, va):
    a(f"v_mul_f32 v{vC}, {hx(f2u(GA))}, v{va}\nv_mul_f32 v{vC+2}, v{va}, v{va}\nv_rcp_f32 v{vC+4}, v{va}\nv_mul_f32 v{vC+2}, v{vC+2}, v{va}\nv_mul_f32 v{vC+2}, {hx(f2u(GB))}, v{vC+2}")

def gelu16(y, t, vC, hook=lambda: None):
    for i in range(0, 16, 2):
        a(f"v_pk_mul_f32 v[{t+i}:{t+i+1}], v[{y+i}:{y+i+1}], v[{y+i}:{y+i+1}]")
    for i in range(0, 16, 2):
        a(f"v_pk_fma_f32 v[{t+i}:{t+i+1}], v[{t+i}:{t+i+1}], v[{vC+2}:{vC+3}], v[{vC}:{vC+1}] op_sel_hi:[1,0,0]")
    hook()
    for i in range(0, 16, 2):
        a(f"v_pk_mul_f32 v[{t+i}:{t+i+1}], v[{t+i}:{t+i+1}], v[{y+i}:{y+i+1}]")
    for i in range(16):
        a(f"v_exp_f32 v{t+i}, v{t+i}")
        if i == 7: hook()
    for i in range(0, 16, 2):
        a(f"v_pk_fma_f32 v[{t+i}:{t+i+1}], v[{t+i}:{t+i+1}], v[{vC+4}:{vC+5}], v[{vC+4}:{vC+5}] op_sel_hi:[1,0,0]")
    hook()
    for i in range(16):
        a(f"v_rcp_f32 v{t+i}, v{t+i}")
        if i == 9: hook()
    for i in range(0, 16, 2):
        a(f"v_pk_mul_f32 v[{y+i}:{y+i+1}], v[{y+i}:{y+i+1}], v[{t+i}:{t+i+1}]")
    hook()

class Deferred:
    def __init__(self): self.groups = []
    def __enter__(self):
        self.orig = Asm.__call__; d = self
        def cap(asm, text):
            n = len(asm.ins); d.orig(asm, text); d.groups.append(asm.ins[n:]); del asm.ins[n:]
        Asm.__call__ = cap; return self
    def __exit__(self, *e): Asm.__call__ = self.orig
    def drip(self, ninstr):
        while self.groups and ninstr > 0:
            g = self.groups.pop(0); a.ins.extend(g); ninstr -= len(g)
    def flush(self): self.drip(1 << 30)

def cvt16(pk, y):
    for i in range(8): a(f"v_cvt_pk_bf16_f32 v{pk+i}, v{y+2*i}, v{y+2*i+1}")

PAD = [0]
def mfma(d, A, B, first=False):
    if PAD[0] > 0: a(f"s_nop {PAD[0]-1}")
    elif PAD[0] < 0:
        n = 0
        for i in reversed(a.ins):
            if i.kind == "mfma": break
            if not i.is_label: n += i.states * (OPT["dsw"] if i.kind in ("ds", "vmem", "dma") else 1)
            if n >= -PAD[0]: break
        if n < -PAD[0]: a(f"s_nop {-PAD[0]-n-1}")
    c = "0" if first else f"v[{d}:{d+15}]"
    a(f"v_mfma_f32_32x32x16_bf16 v[{d}:{d+15}], v[{A}:{A+3}], v[{B}:{B+3}], {c}")

def interleave(main, fill):
    n = len(main); k = 0
    for i, m in enumerate(main):
        m()
        upto = (len(fill) * (i + 1) + n - 1) // n
        while k < upto: fill[k](); k += 1

def rot7(dst, rot, n=7):
    for c in range(n):
        a(f"s_add_u32 s{dst+c}, s{rot}, {c}\ns_sub_u32 s{sT5}, s{dst+c}, 7\ns_cselect_b32 s{dst+c}, s{dst+c}, s{sT5}")

vGA = 254


def prologue():
    a("s_cmp_ge_u32 s2, 512\ns_cbranch_scc1 L_end")
    a("s_load_dwordx16 s[4:19], s[0:1], 0\ns_load_dwordx4 s[20:23], s[0:1], 64\ns_load_dwordx2 s[24:25], s[0:1], 80")
    a(f"s_memrealtime s[{sTAG}:{sTAG+1}]")
    a(f"v_lshrrev_b32 v8, 6, v0\nv_and_b32 v{vLANE}, 63, v0\nv_readfirstlane_b32 s{sW}, v8")
    a(f"v_and_b32 v{vT_}, 31, v0\nv_bfe_u32 v{vHH}, v0, 5, 1\nv_mov_b32 v{vZERO}, 0\nv_lshlrev_b32 v{vL16}, 4, v{vLANE}")
    a(f"s_mov_b32 s{sHI}, 0\ns_mov_b32 s{sHI+1}, -1\ns_mov_b32 s{sONES}, 0x3f803f80")
    a(f"s_and_b32 s{sXCD}, s2, 7\ns_bfe_u32 s{sLOC}, s2, {(5 << 16) | 3}")
    stamp("entry", first=True)
    a(f"s_or_b32 s{sT4}, s2, s{sW}\ns_cmp_lg_u32 s{sT4}, 0\ns_cbranch_scc1 L_notag\ns_waitcnt lgkmcnt(0)")
    srd(sDBG, 22, 256)
    a(f"s_or_b32 s{sTAG}, s{sTAG}, 1\nv_mov_b32 v{vNO}, s{sTAG}\nv_mov_b32 v{vNO+1}, s{sTAG+1}\ns_mov_b64 exec, 1")
    a(f"buffer_store_dwordx2 v[{vNO}:{vNO+1}], v{vZERO}, s[{sDBG}:{sDBG+3}], 0 offen sc1\ns_mov_b64 exec, -1")
    a.label("L_notag")
    a("s_cmp_ge_u32 s2, 256\n" + ("s_cbranch_scc0" if OPT["swap"] else "s_cbranch_scc1") + " L_roleB")

def make_sel(dst, t):
    a(f"v_bfe_u32 v{t}, v{vLANE}, 2, 1\nv_bfe_u32 v{t+1}, v{vLANE}, 4, 1\nv_cmp_eq_u32 vcc, v{t}, v{t+1}\nv_mov_b32 v{t}, s{sONES}\ns_nop 0\n"
      + "\n".join(f"v_cndmask_b32 v{dst+i}, 0, v{t}, vcc" for i in range(4)))

def mfma_sum(d, sel, B, first):
    c = "0" if first else f"v[{d}:{d+3}]"
    a(f"v_mfma_f32_16x16x32_bf16 v[{d}:{d+3}], v[{sel}:{sel+3}], v[{B}:{B+3}], {c}")

def check_record(REC, voff, soff, loaded=True):
    L = newlab("rec"); Dn = newlab("recd"); C = newlab("recc")
    a(f"s_mov_b32 s{sCNT}, {OPT['spin']}")
    if loaded: a(f"s_branch {C}")
    a.label(L)
    a(f"buffer_load_dwordx4 v[{REC}:{REC+3}], v{voff}, s[{sWS}:{sWS+3}], s{soff} offen sc1\ns_waitcnt vmcnt(0)")
    a.label(C)
    a(f"v_cmp_ne_u32 vcc, v{REC+1}, v{vNO}\nv_cmp_ne_u32 s[{sT2}:{sT3}], v{REC+3}, v{vNO}\ns_or_b64 vcc, vcc, s[{sT2}:{sT3}]")
    a(f"v_cmp_eq_u32 s[{sT2}:{sT3}], 0, v{vNO}\ns_or_b64 vcc, vcc, s[{sT2}:{sT3}]\ns_cbranch_vccz {Dn}")
    a(f"s_sub_u32 s{sCNT}, s{sCNT}, 1\ns_cbranch_scc1 {Dn}\ns_sleep 1\ns_branch {L}")
    a.label(Dn)
    if not loaded: a.vmq = []

def addr_xdma(dst, nq, t):
    for q in range(nq):
        a(f"v_lshrrev_b32 v{t}, 3, v{vLANE}\nv_add_u32 v{t}, {8*q}, v{t}")
        a(f"v_bfe_u32 v{t+1}, v{t}, 1, 3\nv_and_b32 v{t+2}, 7, v{vLANE}\nv_xor_b32 v{t+1}, v{t+1}, v{t+2}")
        a(f"v_mul_u32_u24 v{t}, 896, v{t}\nv_lshl_add_u32 v{t}, v{t+1}, 4, v{t}\nv_subrev_u32 v{dst+q}, {1024*q}, v{t}")

def addr_wdma128(dst, t):
    a(f"v_lshrrev_b32 v{t}, 3, v{vLANE}\nv_bfe_u32 v{t+1}, v{vLANE}, 4, 1\nv_lshlrev_b32 v{t+1}, 2, v{t+1}")
    a(f"v_and_b32 v{t+2}, 7, v{vLANE}\nv_xor_b32 v{t+1}, v{t+1}, v{t+2}")
    a(f"v_mul_u32_u24 v{t}, 896, v{t}\nv_lshl_add_u32 v{dst}, v{t+1}, 4, v{t}\nv_add_u32 v{dst+1}, {8*896-1024}, v{dst}")

def addr_wdma256(dst, sstride, t, mask=False):
    a(f"v_lshrrev_b32 v{t}, 4, v{vLANE}\nv_lshlrev_b32 v{t+1}, 2, v{t}\nv_sub_u32 v{t+1}, v{vLANE}, v{t+1}\nv_and_b32 v{t+1}, 15, v{t+1}")
    a(f"v_mul_u32_u24 v{t}, s{sstride}, v{t}\nv_lshl_add_u32 v{dst}, v{t+1}, 4, v{t}")
    if mask: a(f"v_mov_b32 v{t}, 0x7fff0000\nv_cmp_gt_u32 vcc, 14, v{t+1}\nv_cndmask_b32 v{dst}, v{t}, v{dst}, vcc")
    a(f"s_lshl_b32 s{sT5}, s{sstride}, 2\ns_sub_u32 s{sT5}, s{sT5}, 1024")
    for q in range(1, 4): a(f"v_add_u32 v{dst+q}, s{sT5}, v{dst+q-1}")

def addr_xrd(dst, sbase, t):
    a(f"v_bfe_u32 v{t}, v{vT_}, 1, 3\nv_xor_b32 v{t}, v{t}, v{vHH}\nv_lshlrev_b32 v{t}, 4, v{t}\nv_lshl_add_u32 v{t}, v{vT_}, 7, v{t}")
    for ks in range(4):
        a(f"v_xor_b32 v{dst+ks}, {32*ks}, v{t}\nv_add_u32 v{dst+ks}, s{sbase}, v{dst+ks}")

def lane_rcg(t):
    a(f"v_bfe_u32 v{t}, v{vLANE}, 2, 2\nv_and_b32 v{t+1}, 3, v{vLANE}\nv_lshlrev_b32 v{t+1}, 3, v{t+1}")
    a(f"v_bfe_u32 v{t+2}, v{vLANE}, 4, 1\nv_lshl_add_u32 v{t+1}, v{t+2}, 5, v{t+1}")

def addr_wrd256(dst, cs, t):
    lane_rcg(t)
    a(f"v_lshl_add_u32 v{t+1}, v{t}, 6, v{t+1}")
    a(f"v_lshl_add_u32 v{t}, v{vHH}, 3, v{t}\nv_lshlrev_b32 v{t}, 8, v{t}")
    for u in range(4):
        a(f"s_add_u32 s{sT0}, s{sW}, {u}\ns_and_b32 s{sT0}, s{sT0}, 3\ns_mul_i32 s{sT0}, s{sT0}, {cs}")
        a(f"v_add_u32 v{dst+u}, s{sT0}, v{t+1}\nv_and_b32 v{dst+u}, 255, v{dst+u}\nv_add_u32 v{dst+u}, v{dst+u}, v{t}")

def addr_wrd128(dst, hhmul, scol, sbase, t):
    lane_rcg(t)
    a(f"v_lshrrev_b32 v{t+2}, 1, v{t}\nv_xor_b32 v{t+2}, s{scol}, v{t+2}\nv_lshl_add_u32 v{t+1}, v{t+2}, 6, v{t+1}")
    a(f"v_mad_u32_u24 v{t}, v{vHH}, {hhmul}, v{t}\nv_lshl_add_u32 v{dst}, v{t}, 7, v{t+1}")
    if sbase is not None: a(f"v_add_u32 v{dst}, s{sbase}, v{dst}")

def set_m0(expr_sgpr, add):
    a(f"s_add_u32 m0, s{expr_sgpr}, {add}" if add else f"s_mov_b32 m0, s{expr_sgpr}")


def panel_mainloop(name, ACC, WF, vWrd, nslot, xfrag, issue_w, wtok, hooks, SEL, CS4, defer=None, stream=()):
    rd = {}
    hi = [False]
    pre = set(range(nslot)); stream = list(stream)
    def wreads(s):
        c, ks = divmod(s, 4); slot = c % nslot
        base = slot * 16384 + ks * 4096
        if slot == 4 and not hi[0]:
            for u in range(4): a(f"v_add_u32 v{vWrd+u}, 0x10000, v{vWrd+u}")
            hi[0] = True
        if slot != 4 and hi[0]:
            for u in range(4): a(f"v_subrev_u32 v{vWrd+u}, 0x10000, v{vWrd+u}")
            hi[0] = False
        if slot == 4: base -= 65536
        toks = []; rd[s] = toks; th = []
        for u in range(2 if OPT["xp"] & 8 else 4):
            for jj in range(2):
                r = WF + (s & 1) * 16 + u * 4 + jj * 2
                th.append(lambda r=r, u=u, jj=jj: toks.append(a.lg(f"ds_read_b64_tr_b16 v[{r}:{r+1}], v{vWrd+u} offset:{base + jj*1024}")))
        return th
    hooks["before_barrier"](0)
    a.wait(vm=wtok[0]); a("s_barrier")
    stamp(name + "_c0")
    for t in hooks["after_barrier"](0) + wreads(0): t()
    for s in range(28):
        c, ks = divmod(s, 4)
        a.wait(lg=rd[s] + hooks["lg_need"](s), vm=hooks["vm_need"](s))
        reads = []; late = []
        if ks == 3 and c < 6:
            hooks["before_barrier"](c + 1)
            a.wait(vm=wtok[c + 1]); a("s_barrier")
            if c in (1, 3, 5): stamp(name + f"_c{c+1}")
            reads += hooks["after_barrier"](c + 1)
        if s < 27: reads += wreads(s + 1)
        for cc, qs in ((c + nslot, (0, 1)) if ks == 3 else (c - 1 + nslot, (2, 3)) if ks == 0 and c > 0 else (99, ()),):
            if cc <= 6 and cc not in pre:
                for q in qs: late.append(lambda cc=cc, q=q: wtok.setdefault(cc, []).extend(issue_w(cc, (q,))))
        for k in range(2):
            if stream: late.append(stream.pop(0))
        late += hooks["kstep"](s)
        xf = xfrag(s); w = WF + (s & 1) * 16
        h = (len(reads) + 1) // 2
        mfma(ACC, w, xf, first=(s == 0))
        for t in reads[:h]: t()
        mfma(ACC + 16, w + 4, xf, first=(s == 0))
        for t in reads[h:]: t()
        h = (len(late) + 1) // 2
        mfma(ACC + 32, w + 8, xf, first=(s == 0))
        for t in late[:h]: t()
        if defer: defer.drip(3)
        mfma(ACC + 48, w + 12, xf, first=(s == 0))
        for t in late[h:]: t()
        if defer: defer.drip(3)
        if SEL is not None and not (OPT["xp"] & 4 and s > 0): mfma_sum(CS4, SEL, w, s == 0)
    if defer: defer.flush()

def addr_cs(vCW, vCA, csbase):
    a(f"s_lshl_b32 s{sT0}, s{sW}, 7\ns_add_u32 s{sT0}, s{sT0}, {csbase}\nv_lshl_add_u32 v{vCW}, v{vT_}, 2, s{sT0}")
    for u in range(4):
        a(f"s_add_u32 s{sT0}, s{sW}, {u}\ns_and_b32 s{sT0}, s{sT0}, 3\ns_lshl_b32 s{sT0}, s{sT0}, 7\ns_add_u32 s{sT0}, s{sT0}, {csbase}\nv_lshl_add_u32 v{vCA+u}, v{vHH}, 4, s{sT0}")

def read_cs(dst, vaddr):
    return [a.lg(f"ds_read_b128 v[{dst+4*i}:{dst+4*i+3}], v{vaddr} offset:{32*i}") for i in range(4)]

sTAG = 98
def stage_A1():
    a.comment("==== A1: 128 rows x 112 columns of LN(x) @ [wq | wk | wv | w1]")
    if OPT["prio_a1"]: a(f"s_setprio {OPT['prio_a1']}")
    ACC, XF, WF = 16, 80, 112
    vWd, vXd, vXr, vWr = 144, 148, 152, 156
    SEL, CS4, REC, vCA, vVw, vVr, vPA, vPB, vSt, vCW, vGA_, vRo = 160, 164, 168, 172, 176, 180, 182, 183, 184, 185, 186, 188
    T = 190
    GT, PK = 200, 216
    sRB, sCG, sROT = sA0, sA0 + 1, sA0 + 2
    sKC = sA0 + 3
    sWO_ = sA0 + 10
    sM0W, sM0X, sTY, sHQ, sSTR, sCST = sA0 + 17, sA0 + 18, sA0 + 19, sA0 + 20, sA0 + 21, sA0 + 22
    sD0, sD1, sFL, sRO, sSC, sGO, sG = 4, 8, 12, 13, 14, 15, 16
    a(f"s_lshr_b32 s{sT0}, s{sLOC}, 3\ns_lshr_b32 s{sT2}, s{sXCD}, 1\ns_lshl_b32 s{sT2}, s{sT2}, 2\ns_add_u32 s{sRB}, s{sT2}, s{sT0}")
    a(f"s_and_b32 s{sT2}, s{sXCD}, 1\ns_lshl_b32 s{sT2}, s{sT2}, 3\ns_and_b32 s{sT1}, s{sLOC}, 7\ns_add_u32 s{sCG}, s{sT2}, s{sT1}")
    a(f"s_lshr_b32 s{sTY}, s{sCG}, 2\ns_and_b32 s{sHQ}, s{sCG}, 3")
    a(f"s_cmp_eq_u32 s{sTY}, 3\ns_movk_i32 s{sSTR}, 2688\ns_cselect_b32 s{sSTR}, 896, s{sSTR}\ns_cselect_b32 s{sCST}, 64, 56\ns_cselect_b32 s{sT3}, s{sHQ}, s{sCG}")
    a(f"s_mul_i32 s{sT0}, s{sLOC}, 37\ns_lshr_b32 s{sT0}, s{sT0}, 8\ns_mul_i32 s{sT0}, s{sT0}, 7\ns_sub_u32 s{sROT}, s{sLOC}, s{sT0}")
    a(f"s_lshl_b32 s{sT0}, s{sRB}, 2\ns_add_u32 s{sT0}, s{sT0}, s{sW}\ns_mul_i32 s{sT0}, s{sT0}, {32*896}")
    a(f"s_lshl_b32 s{sT1}, s{sW}, 4\ns_mul_i32 s{sT1}, s{sT1}, s{sSTR}\ns_mul_i32 s{sT2}, s{sT3}, 224\ns_add_u32 s{sT1}, s{sT1}, s{sT2}")
    a(f"s_lshl_b32 s{sT2}, s{sSTR}, 6")
    def chunk_offsets(c):
        a(f"s_add_u32 s{sKC+c}, s{sROT}, {c}\ns_sub_u32 s{sT5}, s{sKC+c}, 7\ns_cselect_b32 s{sKC+c}, s{sKC+c}, s{sT5}")
        a(f"s_mul_i32 s{sWO_+c}, s{sKC+c}, s{sT2}\ns_add_u32 s{sWO_+c}, s{sWO_+c}, s{sT1}")
        a(f"s_lshl_b32 s{sKC+c}, s{sKC+c}, 7\ns_add_u32 s{sKC+c}, s{sKC+c}, s{sT0}")
    for c in range(2): chunk_offsets(c)
    a(f"s_lshl_b32 s{sM0W}, s{sW}, 12\ns_lshl_b32 s{sM0X}, s{sW}, 13\ns_add_u32 s{sM0X}, s{sM0X}, 49152")
    addr_xdma(vXd, 4, T); addr_wdma256(vWd, sSTR, T, mask=True)
    a("s_waitcnt lgkmcnt(0)")
    stamp("a1_karg")
    srd(sX, 4, S * D * 2)
    a(f"s_cmp_eq_u32 s{sTY}, 3\ns_cselect_b32 s{sWA}, s12, s6\ns_cselect_b32 s{sWA+1}, s13, s7\ns_mov_b32 s{sWA+2}, {D*3*D*2}\ns_cselect_b32 s{sWA+2}, {D*D*2}, s{sWA+2}\ns_mov_b32 s{sWA+3}, 0x20000")
    srd(sDBG, 22, 256)
    m0 = [None]
    def issue_x(c, qs=range(4)):
        if m0[0] != ("x", c): set_m0(sM0X, (c & 1) * 4096); m0[0] = ("x", c)
        if OPT["xp"] & 1 and c > 1: return []
        return [a.vm(f"buffer_load_dwordx4 v{vXd+q}, s[{sX}:{sX+3}], s{sKC+c} offen offset:{1024*q} lds") for q in qs]
    def issue_w(c, qs=range(4)):
        if m0[0] != ("w", c): set_m0(sM0W, (c % 3) * 16384); m0[0] = ("w", c)
        if OPT["xp"] & 2 and c > 2: return []
        return [a.vm(f"buffer_load_dwordx4 v{vWd+q}, s[{sWA}:{sWA+3}], s{sWO_+c} offen offset:{1024*q} lds") for q in qs]
    xt = {}; wt = {}
    xt[0] = issue_x(0); wt[0] = issue_w(0)
    for c in range(2, 7): chunk_offsets(c)
    addr_xrd(vXr, sM0X, T)
    xt[1] = issue_x(1)
    addr_wrd256(vWr, f"s{sCST}", T)
    make_sel(SEL, T)
    srd(sWS, 24, WS_SIZE)
    CSB = 16384
    with Deferred() as df:
        a(f"s_and_b32 s{sGO}, s2, 255\ns_lshl_b32 s{sGO}, s{sGO}, 7\ns_add_u32 s{sGO}, s{sGO}, {FLG + F_GO*FT}")
        a(f"s_lshl_b32 s{sT0}, s{sRB}, 2\ns_add_u32 s{sT4}, s{sT0}, s{sW}\ns_lshl_b32 s{sRO}, s{sT4}, 9\ns_add_u32 s{sRO}, s{sRO}, {ST0}")
        a(f"v_lshlrev_b32 v{vRo}, 4, v{vT_}")
        addr_cs(vCW, vCA, CSB)
        a(f"s_lshl_b32 s{sT0}, s{sRB}, 4\ns_add_u32 s{sT0}, s{sT0}, s{sCG}\ns_lshl_b32 s{sT0}, s{sT0}, 7\ns_add_u32 s{sFL}, s{sT0}, {FLG + F_QKV*FT}")
        a(f"s_lshl_b32 s{sT1}, s{sHQ}, 8\ns_add_u32 s{sT0}, s{sT4}, s{sT1}\ns_cmp_eq_u32 s{sTY}, 0\ns_cselect_b32 s{sSC}, 11, 12\ns_mov_b32 s{sT2}, {KV_ - 2048}\ns_cselect_b32 s{sT2}, {QB_}, s{sT2}")
        a(f"s_lshl_b32 s{sT0}, s{sT0}, s{sSC}\ns_lshl_b32 s{sT1}, s{sTY}, 11\ns_add_u32 s{sT0}, s{sT0}, s{sT1}\ns_add_u32 s{sT0}, s{sT0}, s{sT2}")
        a(f"s_lshl_b32 s{sT4}, s{sT4}, 9\ns_mul_i32 s{sT1}, s{sHQ}, {14*PL}\ns_add_u32 s{sT4}, s{sT4}, s{sT1}\ns_add_u32 s{sT4}, s{sT4}, {H_}")
        a(f"s_lshl_b32 s{sT1}, 64, s{sSC}\ns_movk_i32 s{sT2}, 1024\ns_movk_i32 s{sT3}, 512")
        a(f"s_cmp_eq_u32 s{sTY}, 3\ns_cselect_b32 s{sT0}, s{sT4}, s{sT0}\ns_cselect_b32 s{sT1}, {4*PL}, s{sT1}\ns_cselect_b32 s{sT2}, {2*PL}, s{sT2}\ns_cselect_b32 s{sT3}, {PL}, s{sT3}")
        a(f"v_mul_u32_u24 v{vSt}, s{sT3}, v{vHH}\nv_lshl_add_u32 v{vSt}, v{vT_}, 4, v{vSt}")
        for u in range(4):
            a(f"s_add_u32 s{sT3}, s{sW}, {u}\ns_and_b32 s{sT3}, s{sT3}, 3\ns_mul_i32 s{sD0+u}, s{sT3}, s{sT1}\ns_add_u32 s{sD0+u}, s{sD0+u}, s{sT0}")
            a(f"s_add_u32 s{sD1+u}, s{sD0+u}, s{sT2}\ns_lshl_b32 s{sT4}, s{sTY}, 2\ns_or_b32 s{sT3}, s{sT3}, s{sT4}")
            a(f"s_cmp_eq_u32 s{sT3}, 15\ns_cselect_b32 s{sD1+u}, 0x7fff0000, s{sD1+u}")
        a(f"s_cmp_eq_u32 s{sTY}, 1\ns_cselect_b32 s{sT1}, 0x3f803f80, 0\ns_cselect_b32 s{sT2}, 0x3f80, 0")
        a(f"s_cmp_eq_u32 s{sTY}, 2\ns_cselect_b32 s{sT1}, 0x3f80, s{sT1}")
        a(f"v_mov_b32 v{vPA}, s{sT1}\nv_mov_b32 v{vPB}, s{sT2}")
        a(f"s_cmp_eq_u32 s{sTY}, 0\ns_cselect_b32 s{sSC}, {hx(f2u(QSCALE))}, 1.0")
        a(f"v_bfe_u32 v{T}, v{vT_}, 1, 3\nv_xor_b32 v{T}, v{T}, v{vHH}\nv_lshlrev_b32 v{T}, 3, v{T}\nv_lshl_add_u32 v{T}, v{vT_}, 6, v{T}")
        for i in range(4): a(f"v_xor_b32 v{vVw+i}, {16*i}, v{T}\nv_add_u32 v{vVw+i}, s{sM0X}, v{vVw+i}")
        lane_rcg(T)
        for jj in range(2):
            a(f"v_lshl_add_u32 v{T+2}, v{vHH}, 2, v{T}\nv_add_u32 v{T+2}, {8*jj}, v{T+2}")
            a(f"v_bfe_u32 v{T+3}, v{T+2}, 1, 3\nv_lshlrev_b32 v{T+3}, 3, v{T+3}\nv_xor_b32 v{T+3}, v{T+3}, v{T+1}")
            a(f"v_lshl_add_u32 v{vVr+jj}, v{T+2}, 6, v{T+3}\nv_add_u32 v{vVr+jj}, s{sM0X}, v{vVr+jj}")
    if not OPT["defer"]: df.drip(70)
    wt[1] = issue_w(1)
    if not OPT["defer"]: df.flush()
    wt[2] = issue_w(2)
    stamp("a1_issued")
    xr = {}; rec = []
    def go():
        a.wait(vm=rec[0])
        check_nonce(keep=True)
        publish(sGO, barrier=False)
    def after_barrier(c):
        xr[c] = []
        return [lambda ks=ks: xr[c].append(a.lg(f"ds_read_b128 v[{XF+(c&1)*16+4*ks}:{XF+(c&1)*16+4*ks+3}], v{vXr+ks} offset:{(c&1)*4096}")) for ks in range(4)]
    def kstep(s):
        th = []
        c, ks = divmod(s, 4)
        if ks in (1, 2) and c + 2 <= 6:
            for q in (2 * ks - 2, 2 * ks - 1): th.append(lambda q=q: xt.setdefault(c + 2, []).extend(issue_x(c + 2, (q,))))
        if s == OPT["go"] - 5: th.append(lambda: rec.append(a.vm(f"buffer_load_dwordx2 v[{vNO}:{vNO+1}], v{vZERO}, s[{sDBG}:{sDBG+3}], 0 offen sc1")))
        if s == OPT["go"]: th.append(go)
        if s == 22: th.append(lambda: rec.append(a.vm(f"buffer_load_dwordx4 v[{REC}:{REC+3}], v{vRo}, s[{sWS}:{sWS+3}], s{sRO} offen sc1")))
        return th
    hooks = dict(before_barrier=lambda c: a.wait(vm=xt[c]), after_barrier=after_barrier,
                 lg_need=lambda s: xr[s // 4] if s % 4 == 0 else [], vm_need=lambda s: [], kstep=kstep)
    panel_mainloop("a1", ACC, WF, vWr, 3, lambda s: XF + ((s // 4) & 1) * 16 + 4 * (s % 4), issue_w, wt, hooks, SEL, CS4, df)
    stamp("a1_main")
    a.wait(vm=rec)
    check_record(REC, vRo, sRO)
    a.lg(f"ds_write_b32 v{vCW}, v{CS4}")
    a(f"v_mul_f32 v{T}, v{REC+2}, v{REC+2}\nv_mov_b32 v{T+1}, {hx(f2u(1.0 + EPS))}\nv_mov_b32 v{T+2}, {hx(f2u(-EPS))}\nv_fma_f32 v{T}, v{T}, v{T+2}, v{T+1}\nv_rsq_f32 v{T}, v{T}")
    a(f"s_cmp_eq_u32 s{sTY}, 3\ns_cselect_b64 vcc, -1, 0\nv_mov_b32 v{T+1}, s{sSC}\nv_cndmask_b32 v{T}, v{T+1}, v{T}, vcc")
    a(f"v_mul_f32 v{vA}, v{T}, v{REC+2}\nv_mul_f32 v{vB}, v{vA}, v{REC}\nv_sub_f32 v{vB}, 0, v{vB}")
    a.wait_all(vm=False); a("s_barrier")
    stamp("a1_csbar")
    CS = 80
    toks = [read_cs(CS + 16 * u, vCA + u) for u in range(3)]
    a(f"s_cmp_eq_u32 s{sTY}, 3\ns_cbranch_scc1 L_A1_nosc")
    for u in range(4): scale16(ACC + 16 * u)
    a.label("L_A1_nosc")
    a.wait(lg=toks[0])
    toks.append(read_cs(CS + 48, vCA + 3))
    def store(u, pk):
        a.vm(f"buffer_store_dwordx4 v[{pk}:{pk+3}], v{vSt}, s[{sWS}:{sWS+3}], s{sD0+u} offen sc1")
        a.vm(f"buffer_store_dwordx4 v[{pk+4}:{pk+7}], v{vSt}, s[{sWS}:{sWS+3}], s{sD1+u} offen sc1")
    def pads(pk): a(f"v_cndmask_b32 v{pk+6}, v{pk+6}, v{vPA}, s[{sHI}:{sHI+1}]\nv_cndmask_b32 v{pk+7}, v{pk+7}, v{vPB}, s[{sHI}:{sHI+1}]")
    lgq0 = list(a.lgq); vmq0 = list(a.vmq)
    a(f"s_cmp_eq_u32 s{sTY}, 2\ns_cbranch_scc1 L_A1_v\ns_cmp_eq_u32 s{sTY}, 3\ns_cbranch_scc1 L_A1_w1")
    for u in range(4):
        a.wait(lg=toks[u]); shift16(ACC + 16 * u, CS + 16 * u)
        cvt16(PK + 8 * u, ACC + 16 * u); pads(PK + 8 * u); store(u, PK + 8 * u)
    a("s_branch L_A1_pub")
    a.label("L_A1_v")
    a.lgq = list(lgq0); a.vmq = list(vmq0); tr = {}
    for u in range(4):
        pk = PK + 8 * u
        a.wait(lg=toks[u]); shift16(ACC + 16 * u, CS + 16 * u)
        cvt16(pk, ACC + 16 * u); pads(pk)
        if u == 0: a.wait(lg=toks[3])
        if u > 0: a.wait(lg=tr[u - 1]); store(u - 1, pk - 8)
        for i in range(4): a.lg(f"ds_write_b64 v{vVw+i}, v[{pk+2*i}:{pk+2*i+1}] offset:{2048*u}")
        tr[u] = [a.lg(f"ds_read_b64_tr_b16 v[{pk+4*m+2*jj}:{pk+4*m+2*jj+1}], v{vVr+jj} offset:{2048*u + 1024*m}") for m in range(2) for jj in range(2)]
    a.wait(lg=tr[3]); store(3, PK + 24)
    a("s_branch L_A1_pub")
    a.label("L_A1_w1")
    a.lgq = list(lgq0); a.vmq = list(vmq0)
    gelu_consts(T, vA)
    a(f"v_sub_f32 v{vB}, 0, v{REC}")
    for u in range(4):
        a.wait(lg=toks[u]); shift16(ACC + 16 * u, CS + 16 * u)
        gelu16(ACC + 16 * u, GT, T)
        cvt16(PK + 8 * u, ACC + 16 * u); store(u, PK + 8 * u)
    a.label("L_A1_pub")
    stamp("a1_epi")
    publish(sFL)
    stamp("a1_pub")

def rowmax(dst, s_, first):
    if first: a(f"v_max3_f32 v{dst}, v{s_}, v{s_+1}, v{s_+2}\nv_max_f32 v{dst}, v{dst}, v{s_+3}")
    else: a(f"v_max3_f32 v{dst}, v{dst}, v{s_}, v{s_+1}\nv_max3_f32 v{dst}, v{dst}, v{s_+2}, v{s_+3}")
    for i in range(4, 16, 2): a(f"v_max3_f32 v{dst}, v{dst}, v{s_+i}, v{s_+i+1}")

def stage_A2():
    a.comment("==== A2: attention, 128 queries of one head; wave = 512 keys; slot x holds query tile w^x^3")
    NR = OPT["nr"]
    Q, O, SS, P = 16, 48, 112, 144
    KB = 160; VB = KB + 8 * NR
    T = VB + 8 * NR; MX = 12
    assert T + 16 <= 256
    sH, sQB, sQ0, sK, sV, sK0, sRETRY, sKT0, sOD, sFL, sKVB, sPUB = sA0, sA0+1, sA0+2, sA0+3, sA0+4, sA0+5, sA0+6, sA0+7, sA0+8, sA0+10, sA0+11, sA0+12
    vOo, vW, vR, vKV = 0, 8, 9, 10
    a(f"s_lshr_b32 s{sT0}, s{sLOC}, 4\ns_lshl_b32 s{sH}, s{sXCD}, 1\ns_add_u32 s{sH}, s{sH}, s{sT0}\ns_and_b32 s{sQB}, s{sLOC}, 15")
    a(f"s_lshr_b32 s{sT0}, s{sH}, 2\ns_lshl_b32 s{sT1}, s{sQB}, 4\ns_add_u32 s{sT1}, s{sT1}, s{sT0}")
    a(f"s_lshl_b32 s{sT2}, s{sW}, 6\ns_add_u32 s{sT2}, s{sT2}, s{sT0}")
    a(f"v_subrev_u32 v{T}, 2, v{vLANE}\nv_and_b32 v{T+1}, 3, v{T}\nv_lshlrev_b32 v{T+1}, 4, v{T+1}")
    a(f"v_bfe_u32 v{T+2}, v{T}, 2, 1\nv_lshl_add_u32 v{T+1}, v{T+2}, 2, v{T+1}\nv_add_u32 v{T+1}, 4, v{T+1}\nv_add_u32 v{T+1}, s{sT2}, v{T+1}")
    a(f"v_mov_b32 v{vPO}, s{sT1}\nv_cmp_gt_u32 vcc, 8, v{T}\nv_cndmask_b32 v{vPO}, v{vPO}, v{T+1}, vcc")
    a(f"s_add_u32 s{sT0}, s{sT0}, 4\nv_mov_b32 v{T+1}, s{sT0}\nv_cmp_eq_u32 vcc, 1, v{vLANE}\nv_cndmask_b32 v{vPO}, v{vPO}, v{T+1}, vcc")
    a(f"v_lshlrev_b32 v{vPO}, 7, v{vPO}")
    if FLG + F_QKV * FT: a(f"v_add_u32 v{vPO}, {FLG + F_QKV*FT}, v{vPO}")
    a(f"s_lshl_b32 s{sK0}, s{sH}, 18\ns_add_u32 s{sK0}, s{sK0}, {KV_}\ns_lshl_b32 s{sT0}, s{sW}, 16\ns_add_u32 s{sT0}, s{sT0}, s{sK0}\ns_mov_b32 s{sKVB}, s{sT0}")
    a(f"s_lshl_b32 s{sQ0}, s{sH}, 17\ns_lshl_b32 s{sT0}, s{sQB}, 13\ns_add_u32 s{sQ0}, s{sQ0}, s{sT0}\ns_add_u32 s{sQ0}, s{sQ0}, {QB_}")
    a(f"s_lshl_b32 s{sKT0}, s{sQB}, 12")
    a(f"s_mov_b32 s{sRETRY}, 0\ns_mov_b32 s{sPUB}, 0")
    for x in range(4): a(f"s_xor_b32 s{4+x}, s{sW}, {x^3}\ns_lshl_b32 s{4+x}, s{4+x}, 11\ns_add_u32 s{4+x}, s{4+x}, s{sQ0}")
    a(f"v_mul_u32_u24 v{vOo}, {PL}, v{vHH}\nv_lshl_add_u32 v{vOo}, v{vT_}, 4, v{vOo}")
    a(f"s_lshl_b32 s{sT0}, s{sQB}, 2\ns_add_u32 s{sT0}, s{sT0}, s{sW}\ns_lshl_b32 s{sT0}, s{sT0}, 9")
    a(f"s_mul_i32 s{sT1}, s{sH}, {4*PL}\ns_add_u32 s{sT0}, s{sT0}, s{sT1}\ns_add_u32 s{sOD}, s{sT0}, {O_}\ns_add_u32 s{sOD+1}, s{sOD}, {2*PL}")
    a(f"s_lshl_b32 s{sT0}, s{sQB}, 4\ns_add_u32 s{sT0}, s{sT0}, s{sH}\ns_lshl_b32 s{sT0}, s{sT0}, 7\ns_add_u32 s{sFL}, s{sT0}, {FLG + F_O*FT}\ns_lshl_b32 s{sT0}, s{sW}, 3\ns_add_u32 s{sFL}, s{sFL}, s{sT0}")
    def ld(dst, soff, imm, vo=vL16): return a.vm(f"buffer_load_dwordx4 v[{dst}:{dst+3}], v{vo}, s[{sWS}:{sWS+3}], s{soff} offen offset:{imm} sc1")
    vPK = T + 8
    if OPT["split"]:
        a(f"v_mov_b32 v{vPK}, v{vPO}\nv_readlane_b32 s{sT0}, v{vPO}, 0\nv_cmp_gt_u32 vcc, 2, v{vLANE}\nv_mov_b32 v{T+9}, s{sT0}\nv_cndmask_b32 v{vPO}, v{T+9}, v{vPO}, vcc")
    poll()
    stamp("a2_poll")
    k0 = [ld(T, sK0, 0), ld(T + 4, sK0, 1024)]
    qt = [[ld(Q + 8 * x, 4 + x, 0), ld(Q + 8 * x + 4, 4 + x, 1024)] for x in range(4)]
    if OPT["split"]:
        ft = a.vm(f"buffer_load_dwordx2 v[{vP0}:{vP0+1}], v{vPK}, s[{sWS}:{sWS+3}], 0 offen sc1")
    order = []
    for kt in range(16):
        for kind in "KV":
            for half in range(2):
                need = 4 * kt - 2 if kind == "K" else 4 * kt + 1
                free = 4 * (kt - NR) + (3 if kind == "K" else 5)
                order.append((need, kind, kt, half, free))
    order.sort()
    tok = {}
    def issue(e):
        need, kind, kt, half, free = e
        if kind == "K": t = ld(KB + 8 * (kt % NR) + 4 * half, sK, 1024 * half, vKV)
        else: t = ld(VB + 8 * (kt % NR) + 4 * half, sV, 2048 + 1024 * half, vKV)
        tok.setdefault((kind, kt), []).append(t)
    def bump(e):
        r = sK if e[1] == "K" else sV
        if e[3] == 1: a(f"s_add_u32 s{r}, s{r}, 4096\ns_and_b32 s{r}, s{r}, 0xffff")
    NPRE = 6
    def first_loads():
        a(f"s_mov_b32 s{sK}, s{sKT0}\ns_mov_b32 s{sV}, s{sKT0}")
        for e in order[:NPRE]: issue(e); bump(e)
    def kv_start():
        a(f"v_add_u32 v{vKV}, s{sKVB}, v{vL16}")
        first_loads()
        a(f"s_mul_i32 s{sT0}, s{sW}, 12288\nv_add_u32 v{vW}, s{sT0}, v{vL16}")
    if not OPT["split"]: kv_start()
    pend = order[NPRE:]
    for x in range(4):
        a.wait(vm=k0 + qt[x])
        s_ = SS + 16 * (x & 1)
        mfma(s_, T, Q + 8 * x, first=True); mfma(s_, T + 4, Q + 8 * x + 4)
        if x == 0 and OPT["split"]:
            L = newlab("kvc")
            a.wait(vm=[ft])
            a(f"v_cmp_ne_u64 vcc, v[{vP0}:{vP0+1}], v[{vNO}:{vNO+1}]\ns_cbranch_vccz {L}\nv_mov_b32 v{vPO}, v{vPK}")
            poll()
            a.label(L)
            stamp("a2_kv")
            kv_start()
        if x > 0: rowmax(MX + x - 1, SS + 16 * ((x - 1) & 1), True)
    rowmax(MX + 3, SS + 16, True)
    stamp("a2_max")
    a.label("L_A2_setmax")
    for x in range(4):
        a(f"v_mov_b32 v{T+x}, v{MX+x}")
    for x in range(4):
        a(f"v_permlane32_swap_b32 v{T+x}, v{MX+x}")
    for x in range(4):
        a(f"v_max_f32 v{MX+x}, v{T+x}, v{MX+x}")
    for x in range(4):
        m = MX + x; t = T + 4 * x
        a(f"v_cvt_pk_bf16_f32 v{t}, -v{m}, -v{m}\nv_and_b32 v{t+1}, 0xffff0000, v{t}\nv_sub_f32 v{t+2}, -v{m}, v{t+1}")
        a(f"v_cvt_pk_bf16_f32 v{t+3}, v{t+2}, v{t+2}\nv_and_b32 v{t+3}, 0xffff0000, v{t+3}\nv_sub_f32 v{t+2}, v{t+2}, v{t+3}")
        a(f"v_and_b32 v{t}, 0xffff, v{t}\nv_or_b32 v{t}, v{t}, v{t+3}\nv_cvt_pk_bf16_f32 v{t+2}, v{t+2}, 0")
        a(f"v_cndmask_b32 v{Q+8*x+6}, v{Q+8*x+6}, v{t}, s[{sHI}:{sHI+1}]\nv_cndmask_b32 v{Q+8*x+7}, v{Q+8*x+7}, v{t+2}, s[{sHI}:{sHI+1}]")
        if x == 0:
            a.wait(vm=tok[("K", 0)])
            mfma(SS, KB, Q, first=True); mfma(SS, KB + 4, Q + 4)
    def QK(n, half):
        kt, x = divmod(n, 4)
        mfma(SS + 16 * (n & 1), KB + 8 * (kt % NR) + 4 * half, Q + 8 * x + 4 * half, first=(half == 0))
    def PV(n, half):
        kt, x = divmod(n, 4)
        mfma(O + 16 * x, VB + 8 * (kt % NR) + 4 * half, P + 8 * (n & 1) + 4 * half, first=(kt == 0 and half == 0))
    def owrite(x, i): a.lg(f"ds_write_b128 v{vW}, v[{O+16*x+4*i}:{O+16*x+4*i+3}] offset:{x*4096 + 1024*i}")
    stamp("a2_start")
    if OPT["prio_a1"]: a("s_setprio 0")
    a.hot = True
    for n in range(64):
        if n in (16, 32, 48): stamp(f"a2_b{n}")
        kt, x = divmod(n, 4)
        s_ = SS + 16 * (n & 1); p_ = P + 8 * (n & 1)
        e = lambda i: a(f"v_exp_f32 v{s_+i}, v{s_+i}")
        c = lambda i: a(f"v_cvt_pk_bf16_f32 v{p_+i}, v{s_+2*i}, v{s_+2*i+1}")
        sh = [[], [], [], []]
        pre = [[], [], [], []]
        ap = OPT["aprio"] if n < OPT["alate"] else OPT["aprio2"]
        if n == OPT["alate"] and ap == 5: pre[0].append(lambda: a("s_setprio 3"))
        for g in (0, 2):
            if pend and pend[0][4] <= n:
                ent = pend.pop(0)
                assert ent[0] > n + 1, (ent, n)
                hi = ap == 1 or (ap in (2, 3) and g == 2)
                if hi: pre[g].append(lambda: a("s_setprio 3"))
                sh[g].append(lambda ent=ent: issue(ent))
                if hi: sh[g].append(lambda: a("s_setprio 0"))
                sh[g + 1].append(lambda ent=ent: bump(ent))
        if ap == 2: sh[3].append(lambda: a("s_setprio 3")); sh[1].append(lambda: a("s_setprio 0"))
        if ap == 3: sh[3].append(lambda: a("s_setprio 3")); sh[0].append(lambda: a("s_setprio 0"))
        if ap == 4: sh[3].append(lambda: a("s_setprio 3")); sh[2].append(lambda: a("s_setprio 0"))
        if x == 2 and kt + 1 < 16: sh[3].append(lambda: a.wait(vm=tok[("K", kt + 1)]))
        if x == 1: sh[1].append(lambda: a.wait(vm=tok[("V", kt)]))
        if n == 62:
            for g in range(4): sh[g].append(lambda g=g: owrite(0, g))
        if n == 63:
            for g in range(4): sh[g].append(lambda g=g: owrite(1, g))
        mm = [(lambda: QK(n + 1, 0)) if n < 63 else None, (lambda: QK(n + 1, 1)) if n < 63 else None,
              (lambda: PV(n - 1, 0)) if n > 0 else None, (lambda: PV(n - 1, 1)) if n > 0 else None]
        seq = [[("e", 0), ("e", 1), ("e", 2), ("e", 3), ("c", 0)],
               [("e", 4), ("e", 5), ("c", 1), ("e", 6), ("e", 7), ("c", 2)],
               [("e", 8), ("e", 9), ("c", 3), ("e", 10), ("e", 11), ("c", 4)],
               [("e", 12), ("e", 13), ("c", 5), ("e", 14), ("e", 15), ("c", 6), ("c", 7)]]
        for g in range(4):
            for t in pre[g]: t()
            if mm[g]: mm[g]()
            for t in sh[g]: t()
            for k, i in seq[g]: (e if k == "e" else c)(i)
    assert not pend
    a.hot = False
    if OPT["prio_at"]: a(f"s_setprio {OPT['prio_at']}")
    PV(63, 0); PV(63, 1)
    stamp("a2_main")
    a(f"v_mov_b32 v{T+2}, 49152\nv_mov_b32 v{T+3}, 0")
    a.lg(f"ds_write_b32 v{T+2}, v{T+3}")
    for i in range(4): owrite(2, i)
    a.wait_all(vm=False); a("s_barrier")
    stamp("a2_cbar")
    tk = []
    for x in range(3):
        a(f"s_xor_b32 s{sT0}, s{sW}, {x^3}\ns_mul_i32 s{sT0}, s{sT0}, 12288\nv_add_u32 v{vR}, s{sT0}, v{vL16}")
        tk.append([a.lg(f"ds_read_b128 v[{O+16*x+4*i}:{O+16*x+4*i+3}], v{vR} offset:{x*4096 + 1024*i}") for i in range(4)])
    R = O + 48
    for x in range(3):
        a.wait(lg=tk[x])
        for i in range(0, 16, 2): a(f"v_pk_add_f32 v[{R+i}:{R+i+1}], v[{R+i}:{R+i+1}], v[{O+16*x+i}:{O+16*x+i+1}]")
    a(f"v_mov_b32 v{T+4}, v{R+12}\nv_mov_b32 v{T+5}, v{R+12}\nv_permlane32_swap_b32 v{T+4}, v{T+5}\nv_rcp_f32 v{vA}, v{T+5}")
    scale16(R)
    cvt16(P, R)
    a(f"v_cndmask_b32 v{P+6}, v{P+6}, v{vZERO}, s[{sHI}:{sHI+1}]\nv_cndmask_b32 v{P+7}, v{P+7}, v{vZERO}, s[{sHI}:{sHI+1}]")
    a(f"s_cmp_lg_u32 s{sPUB}, 0\ns_cbranch_scc1 L_A2_done")
    a.vm(f"buffer_store_dwordx4 v[{P}:{P+3}], v{vOo}, s[{sWS}:{sWS+3}], s{sOD} offen sc1")
    a.vm(f"buffer_store_dwordx4 v[{P+4}:{P+7}], v{vOo}, s[{sWS}:{sWS+3}], s{sOD+1} offen sc1")
    a(f"v_pk_mul_f32 v[{T+6}:{T+7}], v[{R}:{R+1}], 0 op_sel_hi:[1,0]")
    for i in range(2, 16, 2): a(f"v_pk_fma_f32 v[{T+6}:{T+7}], v[{R+i}:{R+i+1}], 0, v[{T+6}:{T+7}] op_sel_hi:[1,0,1]")
    a(f"s_mov_b32 s{sT0}, {hx(f2u(2.0**120))}\nv_cmp_nge_f32 vcc, s{sT0}, v{T+5}\nv_cmp_u_f32 s[{sT2}:{sT3}], v{T+6}, v{T+7}\ns_or_b64 vcc, vcc, s[{sT2}:{sT3}]")
    a(f"s_cmp_lg_u32 s{sRETRY}, 0\ns_cbranch_scc1 L_A2_good\ns_cbranch_vccz L_A2_good")
    a(f"v_mov_b32 v{T+3}, 1\nds_write_b32 v{T+2}, v{T+3}\ns_branch L_A2_done")
    a.label("L_A2_good")
    stamp("a2_st")
    a(f"s_mov_b32 s{sPUB}, 1\ns_mov_b64 exec, 1\ns_waitcnt vmcnt(0)")
    a(f"buffer_store_dwordx2 v[{vNO}:{vNO+1}], v{vZERO}, s[{sWS}:{sWS+3}], s{sFL} offen sc1\ns_mov_b64 exec, -1")
    stamp("a2_pub")
    a.label("L_A2_done")
    a.wait_all(vm=False); a("s_barrier")
    a(f"ds_read_b32 v{T+3}, v{T+2}\ns_waitcnt lgkmcnt(0)\nv_readfirstlane_b32 s{sT0}, v{T+3}")
    a(f"s_andn2_b32 s{sT0}, s{sT0}, s{sRETRY}\ns_cmp_lg_u32 s{sT0}, 0\ns_cbranch_scc1 L_A2_fallback")
    stamp_flush()
    a("s_endpgm")
    a.label("L_A2_fallback")
    a(f"s_mov_b32 s{sRETRY}, 1\ns_barrier")
    for x in range(4):
        a(f"v_cndmask_b32 v{Q+8*x+6}, v{Q+8*x+6}, v{vZERO}, s[{sHI}:{sHI+1}]\nv_cndmask_b32 v{Q+8*x+7}, v{Q+8*x+7}, v{vZERO}, s[{sHI}:{sHI+1}]")
        a(f"v_mov_b32 v{MX+x}, 0xff800000")
    a(f"s_mov_b32 s{sK}, 0\ns_mov_b32 s{sT4}, 16")
    a.label("L_A2_fb_loop")
    ld(T, sK, 0, vKV); ld(T + 4, sK, 1024, vKV); a.wait_all()
    for x in range(4):
        mfma(SS, T, Q + 8 * x, first=True); mfma(SS, T + 4, Q + 8 * x + 4)
        rowmax(MX + x, SS, False)
        a("s_nop 7")
    a(f"s_add_u32 s{sK}, s{sK}, 4096\ns_sub_u32 s{sT4}, s{sT4}, 1\ns_cmp_lg_u32 s{sT4}, 0\ns_cbranch_scc1 L_A2_fb_loop")
    a(f"v_lshlrev_b32 v{T+8}, 2, v{vLANE}")
    for x in range(4):
        a(f"s_xor_b32 s{sT0}, s{sW}, {x^3}\ns_lshl_b32 s{sT0}, s{sT0}, 8\ns_lshl_b32 s{sT1}, s{sW}, 10\ns_add_u32 s{sT0}, s{sT0}, s{sT1}")
        a(f"v_add_u32 v{T+9}, s{sT0}, v{T+8}\nds_write_b32 v{T+9}, v{MX+x}")
    a("s_waitcnt lgkmcnt(0)\ns_barrier")
    for x in range(4):
        a(f"s_xor_b32 s{sT0}, s{sW}, {x^3}\ns_lshl_b32 s{sT0}, s{sT0}, 8\nv_add_u32 v{T+9}, s{sT0}, v{T+8}")
        for w2 in range(4): a(f"ds_read_b32 v{T+10+w2}, v{T+9} offset:{1024*w2}")
        a(f"s_waitcnt lgkmcnt(0)\nv_max3_f32 v{MX+x}, v{T+10}, v{T+11}, v{T+12}\nv_max_f32 v{MX+x}, v{MX+x}, v{T+13}")
    a("s_barrier")
    first_loads()
    a.wait_all()
    a("s_nop 7\ns_branch L_A2_setmax")

RES, vWD, vPLN, vGo1, vWr4 = 232, 248, 250, 251, 252
vWd3, vWr3, vCA3, SEL3, CS43, vXo, vSo, vSH, vST, vCW3, TB = 194, 198, 202, 206, 210, 214, 215, 216, 220, 223, 224
sR64, sCT, sRW, sCW, sSO, sG2 = 75, 76, 77, 78, 79, 80
sRB3, sC3, sW3O, sM03, sK3 = 82, 83, 84, 91, 92
sG4, sW4o, sM04, sWOo, sOo, sX1D, sFX1, sFG, sOUTD, sST1D = 4, 11, 18, 19, 20, 21, 22, 23, 24, 25
sGS = 40
NZ = 9
CSB3 = 73728
B3 = {}; B4 = {}

def touch(srd_, soff, n):
    for i in range(n): a(f"s_buffer_load_dword s3, s[{srd_}:{srd_+3}], s{soff} offset:{128*i}")

def throttled(thunks, depth):
    toks = []
    for i, t in enumerate(thunks):
        toks += t()
        if len(toks) > depth: a.wait(vm=toks[:len(toks) - depth])
    return toks

def go_poll(st=True):
    if not OPT["go"]: return
    a(f"s_and_b32 s{sT3}, s2, 255\ns_lshl_b32 s{sT3}, s{sT3}, 7\ns_add_u32 s{sT3}, s{sT3}, {FLG + F_GO*FT}\nv_mov_b32 v{vPO}, s{sT3}")
    poll()
    if st: stamp("b0_go")

def stage_B0():
    a.comment("==== B0: row statistics of x, prefetches, set-up")
    a.label("L_roleB")
    prev_stamp[0] = 0
    a.vmq = []; a.lgq = []
    T = TB; XR = 16
    a(f"s_lshl_b32 s{sT0}, s{sXCD}, 5\ns_add_u32 s{sT0}, s{sT0}, s{sLOC}\ns_lshl_b32 s{sT0}, s{sT0}, 2\ns_add_u32 s{sT0}, s{sT0}, s{sW}")
    a(f"s_mul_i32 s{sT1}, s{sT0}, {2*896}\ns_lshl_b32 s{sT4}, s{sT0}, 5\ns_add_u32 s{sT4}, s{sT4}, {ST0}")
    a(f"v_mul_u32_u24 v{T}, 896, v{vHH}\nv_lshl_add_u32 v{T}, v{vT_}, 4, v{T}\nv_mov_b32 v{T+1}, 0x7fff0000\nv_cmp_gt_u32 vcc, 28, v{vT_}\nv_cndmask_b32 v{T}, v{T+1}, v{T}, vcc")
    a("s_waitcnt lgkmcnt(0)")
    srd(sX, 4, S * D * 2)
    xl = [a.vm(f"buffer_load_dwordx4 v[{XR+4*i}:{XR+4*i+3}], v{T}, s[{sX}:{sX+3}], s{sT1} offen offset:{448*i}") for i in range(2)]
    stamp("b0_karg")
    srd(sDBG, 22, 256); srd(sWS, 24, WS_SIZE); srd(sW2, 14, D * D * 2); srd(sW3, 16, D * F * 2); srd(sW4, 18, D * F * 2); srd(sWO, 8, D * D * 2); srd(sOUT, 20, S * D * 2)
    a(f"v_mov_b32 v{XR+8}, 0\nv_mov_b32 v{XR+10}, 0\nv_lshlrev_b32 v{T+2}, 4, v{vHH}")
    def touches(items, nwg=256):
        a(f"s_and_b32 s{sT0}, s2, 255\nv_lshlrev_b32 v193, 7, v{vLANE}")
        Lj = newlab("tj")
        for w, (sr_, n) in enumerate(items):
            L = newlab("tc")
            if w < 3: a(f"s_cmp_lg_u32 s{sW}, {w}\ns_cbranch_scc1 {L}")
            if sr_ == "code":
                a(f"s_getpc_b64 s[{sWA}:{sWA+1}]")
                a.label("L_pc")
                a(f"s_sub_u32 s{sWA}, s{sWA}, L_pc-{NAME}_kernel\ns_subb_u32 s{sWA+1}, s{sWA+1}, 0\ns_mov_b32 s{sWA+2}, L_code_end-{NAME}_kernel\ns_mov_b32 s{sWA+3}, 0x20000")
                a(f"s_mov_b32 s{sT0}, s{sLOC}"); sr_ = sWA
            if n <= 16: a("v_and_b32 v193, 0x7ff, v193")
            a(f"s_mul_i32 s{sT0}, s{sT0}, {n*128}\nbuffer_load_dword v192, v193, s[{sr_}:{sr_+3}], s{sT0} offen")
            if w < 3: a(f"s_branch {Lj}"); a.label(L)
        a.label(Lj)
        a.tok += 1; a.vmq.append(a.tok)
    if OPT["pf"] & 1: touches([(sW2, 13), ("code", 12), (sW2, 13), (sW2, 13)])
    if OPT["pf"] & 4: touches([(sW3, 49), (sW4, 49), (sWO, 13), (sWO, 13)])
    a(f"s_mul_i32 s{sT0}, s{sLOC}, 37\ns_lshr_b32 s{sT0}, s{sT0}, 8\ns_mul_i32 s{sT1}, s{sT0}, 7\ns_sub_u32 s{sCT}, s{sLOC}, s{sT1}")
    a(f"s_lshl_b32 s{sR64}, s{sXCD}, 2\ns_add_u32 s{sR64}, s{sR64}, s{sT0}\ns_lshr_b32 s{sRW}, s{sW}, 1\ns_and_b32 s{sCW}, s{sW}, 1")
    vXd = 60
    addr_wdma128(vWD, 64); addr_xdma(vXd, 2, 64)
    a.wait(vm=xl)
    stamp("b0_x")
    if OPT["pf"] & 16: touches([(sW3, 49), (sW4, 49), (sWO, 13), (sW2, 13)])
    no = a.vm(f"buffer_load_dwordx2 v[{vNO}:{vNO+1}], v{vZERO}, s[{sDBG}:{sDBG+3}], 0 offen sc1")
    for i in range(8): a(f"v_dot2c_f32_bf16 v{XR+8}, s{sONES}, v{XR+i}\nv_dot2c_f32_bf16 v{XR+10}, v{XR+i}, v{XR+i}")
    for r in (8, 4, 2, 1):
        for v in (XR + 8, XR + 10): a(f"v_add_f32_dpp v{v}, v{v}, v{v} row_ror:{r} row_mask:0xf bank_mask:0xf")
    for v in (XR + 8, XR + 10): a(f"v_mov_b32 v{v+1}, v{v}")
    for v in (XR + 8, XR + 10): a(f"v_permlane16_swap_b32 v{v}, v{v+1}")
    for v in (XR + 8, XR + 10): a(f"v_add_f32 v{v}, v{v}, v{v+1}")
    ln_stats(XR + 8, XR + 10, T)
    a(f"v_add_f32 v{XR+10}, {hx(f2u(EPS))}, v{XR+10}\nv_rsq_f32 v{XR+10}, v{XR+10}")
    a.wait(vm=no)
    check_nonce()
    a(f"v_mov_b32 v{XR+9}, v{vNO}\nv_mov_b32 v{XR+11}, v{vNO}\ns_mov_b32 exec_lo, 1\ns_mov_b32 exec_hi, 1")
    a(f"buffer_store_dwordx4 v[{XR+8}:{XR+11}], v{T+2}, s[{sWS}:{sWS+3}], s{sT4} offen sc1\ns_mov_b64 exec, -1")
    stamp("b0_rec")
    if OPT["nob"]: stamp_flush(); a("s_endpgm")
    if OPT["l2w3"]:
        nl = OPT["l2w3"]; rounds = (98 + nl - 1) // nl
        a(f"s_lshl_b32 s{sT0}, s{sLOC}, 2\ns_add_u32 s{sT0}, s{sT0}, s{sW}\ns_mul_i32 s{sT0}, s{sT0}, {98*128}\nv_min_u32 v193, {nl-1}, v{vLANE}\nv_lshlrev_b32 v193, 7, v193")
        for r in range(rounds):
            a(f"buffer_load_dword v192, v193, s[{sW3}:{sW3+3}], s{sT0} offen\ns_add_u32 s{sT0}, s{sT0}, {nl*128}\ns_waitcnt vmcnt(0)")
        a.vmq = []
        stamp("b0_l2")
    if OPT["pf"] & 2:
        go_poll(); touches([(sW3, 49), (sW4, 49), (sWO, 13), (sWO, 13)])
    a(f"s_cmp_ge_u32 s{sLOC}, 28\ns_cbranch_scc1 L_helper")
    if OPT["prio_b"]: a(f"s_setprio {OPT['prio_b']}")
    a(f"v_mul_u32_u24 v{vXo}, {PL}, v{vHH}\nv_lshl_add_u32 v{vXo}, v{vT_}, 4, v{vXo}\ns_lshl_b32 s{sT0}, s{sRW}, 9\nv_add_u32 v{vPLN}, s{sT0}, v{vXo}")
    a(f"s_xor_b32 s{sT0}, s{sT0}, 512\nv_add_u32 v{vGo1}, s{sT0}, v{vXo}")
    if OPT["map3"]:
        a(f"s_and_b32 s{sT0}, s{sXCD}, 1\ns_mul_i32 s{sT0}, s{sT0}, 7\ns_add_u32 s{sC3}, s{sT0}, s{sCT}")
        a(f"s_lshr_b32 s{sT0}, s{sXCD}, 1\ns_lshl_b32 s{sT0}, s{sT0}, 2\ns_and_b32 s{sT1}, s{sR64}, 3\ns_add_u32 s{sRB3}, s{sT0}, s{sT1}\ns_lshl_b32 s{sT0}, s{sT1}, 1")
    else:
        a(f"s_cmp_ge_u32 s{sLOC}, 14\ns_cselect_b32 s{sT0}, 1, 0\ns_cselect_b32 s{sT1}, 14, 0\ns_sub_u32 s{sC3}, s{sLOC}, s{sT1}")
        a(f"s_lshl_b32 s{sRB3}, s{sXCD}, 1\ns_add_u32 s{sRB3}, s{sRB3}, s{sT0}\ns_mul_i32 s{sT0}, s{sT0}, 3")
    a(f"s_add_u32 s{sT0}, s{sT0}, s{sCT}\ns_sub_u32 s{sT1}, s{sT0}, 7\ns_cselect_b32 s{sT0}, s{sT0}, s{sT1}")
    rot7(sK3, sT0)
    a(f"s_and_b32 s{sT0}, s{sR64}, 3\ns_lshl_b32 s{sT0}, s{sT0}, 1\ns_add_u32 s{sT0}, s{sT0}, s{sCT}\ns_sub_u32 s{sT1}, s{sT0}, 7\ns_cselect_b32 s{sT0}, s{sT0}, s{sT1}")
    rot7(sG4, sT0)
    a(f"s_mul_i32 s{sT1}, s{sW}, {16*3584}\ns_lshl_b32 s{sT2}, s{sC3}, 8\ns_add_u32 s{sT1}, s{sT1}, s{sT2}")
    a(f"s_mul_i32 s{sT0}, s{sW}, {448*896}\ns_lshl_b32 s{sT2}, s{sCT}, 7\ns_add_u32 s{sT0}, s{sT0}, s{sT2}")
    a(f"s_mul_i32 s{sWOo}, s{sW}, {112*896}\ns_add_u32 s{sWOo}, s{sWOo}, s{sT2}")
    a(f"s_lshl_b32 s{sT2}, s{sR64}, 10\ns_mul_i32 s{sT3}, s{sW}, {56*PL}\ns_add_u32 s{sT3}, s{sT3}, s{sT2}\ns_add_u32 s{sT3}, s{sT3}, {G_}")
    a(f"s_mul_i32 s{sOo}, s{sW}, {16*PL}\ns_add_u32 s{sOo}, s{sOo}, s{sT2}\ns_add_u32 s{sOo}, s{sOo}, {O_}")
    a(f"s_lshl_b32 s{sT4}, s{sRB3}, 2\ns_add_u32 s{sT4}, s{sT4}, s{sW}\ns_lshl_b32 s{sSO}, s{sT4}, 8\ns_add_u32 s{sSO}, s{sSO}, {ST1}\ns_lshl_b32 s{sT4}, s{sT4}, 9")
    for c in range(7):
        a(f"s_mul_i32 s{sW3O+c}, s{sK3+c}, {64*3584}\ns_add_u32 s{sW3O+c}, s{sW3O+c}, s{sT1}")
        a(f"s_mul_i32 s{sW4o+c}, s{sG4+c}, {64*896}\ns_add_u32 s{sW4o+c}, s{sW4o+c}, s{sT0}")
        a(f"s_mul_i32 s{sG4+c}, s{sG4+c}, {8*PL}\ns_add_u32 s{sG4+c}, s{sG4+c}, s{sT3}")
        a(f"s_mul_i32 s{sK3+c}, s{sK3+c}, {8*PL}\ns_add_u32 s{sK3+c}, s{sK3+c}, s{sT4}\ns_add_u32 s{sK3+c}, s{sK3+c}, {X1}")
    a(f"s_mul_i32 s{sT1}, s{sC3}, {16*PL}\ns_add_u32 s{sT4}, s{sT4}, s{sT1}\ns_add_u32 s{sT4}, s{sT4}, {G_}")
    for u in range(4): a(f"s_add_u32 s{sT0}, s{sW}, {u}\ns_and_b32 s{sT0}, s{sT0}, 3\ns_mul_i32 s{sT0}, s{sT0}, {4*PL}\ns_add_u32 s{sGS+u}, s{sT0}, s{sT4}")
    a(f"s_lshl_b32 s{sM03}, s{sW}, 12\ns_mul_i32 s{sM04}, s{sW}, {NZ*2048}")
    a(f"s_lshl_b32 s{sT2}, s{sCT}, 1\ns_add_u32 s{sT2}, s{sT2}, s{sCW}\ns_mul_i32 s{sT0}, s{sT2}, {4*PL}\ns_lshl_b32 s{sT1}, s{sR64}, 10")
    a(f"s_add_u32 s{sT0}, s{sT0}, s{sT1}\ns_add_u32 s{sX1D}, s{sT0}, {X1}\ns_lshl_b32 s{sST1D}, s{sT2}, 14\ns_add_u32 s{sST1D}, s{sST1D}, {ST1}")
    a(f"s_lshl_b32 s{sT2}, s{sT2}, 6\ns_lshl_b32 s{sT0}, s{sR64}, 1\ns_add_u32 s{sT0}, s{sT0}, s{sRW}\ns_mul_i32 s{sOUTD}, s{sT0}, {32*896}\ns_add_u32 s{sOUTD}, s{sOUTD}, s{sT2}")
    a(f"s_lshl_b32 s{sT0}, s{sR64}, 3\ns_add_u32 s{sT0}, s{sT0}, s{sCT}\ns_lshl_b32 s{sT0}, s{sT0}, 7\ns_add_u32 s{sFX1}, s{sT0}, {FLG + F_X1*FT}")
    a(f"s_lshl_b32 s{sT0}, s{sRB3}, 4\ns_add_u32 s{sT0}, s{sT0}, s{sC3}\ns_lshl_b32 s{sT0}, s{sT0}, 7\ns_add_u32 s{sFG}, s{sT0}, {FLG + F_G*FT}")
    a(f"s_movk_i32 s{sT3}, 3584")
    addr_wdma256(vWd3, sT3, T)
    addr_wrd256(vWr3, 64, T)
    a(f"s_lshl_b32 s{sT1}, s{sW}, 9\ns_add_u32 s{sT1}, s{sT1}, {CSB3}\nv_lshl_add_u32 v{vCW3}, v{vLANE}, 3, s{sT1}")
    for u in range(4):
        a(f"s_add_u32 s{sT0}, s{sW}, {u}\ns_and_b32 s{sT0}, s{sT0}, 3\ns_lshl_b32 s{sT0}, s{sT0}, 7\ns_add_u32 s{sT0}, s{sT0}, s{sT1}\nv_lshl_add_u32 v{vCA3+u}, v{vHH}, 4, s{sT0}")
    addr_wrd128(vWr4, 4, sCW, sM04, T)
    a(f"v_xor_b32 v{vWr4+1}, 64, v{vWr4}")
    a(f"v_mul_u32_u24 v{vSo}, {7*16384}, v{vHH}\nv_lshl_add_u32 v{vSo}, v{vT_}, 3, v{vSo}")
    a(f"s_lshl_b32 s{sT0}, s{sR64}, 6\ns_lshl_b32 s{sT1}, s{sRW}, 5\ns_add_u32 s{sT0}, s{sT0}, s{sT1}\nv_add_u32 v{T}, s{sT0}, v{vT_}")
    a(f"v_lshlrev_b32 v{vST+2}, 3, v{T}\nv_lshlrev_b32 v{T+4}, 4, v{T}")
    a(f"v_mul_u32_u24 v{T+1}, {PL}, v{vHH}\nv_mov_b32 v{T+3}, 0x7fff0000\ns_movk_i32 s{sT2}, 2048")
    a(f"s_add_u32 s{sT0}, s{sCW}, 1")
    for g, op in enumerate(("v_subrev_u32", "v_add_u32")):
        a(f"{op} v{T+2}, s{sT0}, v{T}\nv_cmp_gt_u32 vcc, s{sT2}, v{T+2}\nv_lshl_add_u32 v{vSH+g}, v{T+2}, 4, v{T+1}\nv_cndmask_b32 v{vSH+g}, v{T+3}, v{vSH+g}, vcc")
    if not OPT["pf"] & 2: go_poll()
    a(f"s_lshl_b32 s{sT0}, s{sR64}, 2\ns_add_u32 s{sT0}, s{sT0}, s{sW}\ns_mul_i32 s{sT0}, s{sT0}, {16*896}\ns_lshl_b32 s{sT1}, s{sCT}, 7\ns_add_u32 s{sT0}, s{sT0}, s{sT1}")
    a(f"s_lshl_b32 s{sT2}, s{sW}, 11"); set_m0(sT2, 57344)
    for q in range(2): a.vm(f"buffer_load_dwordx4 v{vXd+q}, s[{sX}:{sX+3}], s{sT0} offen offset:{1024*q} lds")
    a(f"s_mul_i32 s{sT0}, s{sW}, {112*896}\ns_add_u32 s{sT0}, s{sT0}, s{sT1}\ns_mul_i32 s{sT1}, s{sW}, 14336")
    a(f"s_and_b32 s{sT2}, s{sR64}, 3\ns_lshl_b32 s{sT2}, s{sT2}, 1")
    def w2q(q):
        a(f"s_mul_i32 s{sT4}, s{sT2}, {16*896}\ns_add_u32 s{sT4}, s{sT4}, s{sT0}\ns_lshl_b32 s{sT5}, s{sT2}, 11\ns_add_u32 m0, s{sT5}, s{sT1}")
        tk = [a.vm(f"buffer_load_dwordx4 v{vWD+j}, s[{sW2}:{sW2+3}], s{sT4} offen offset:{1024*j} lds") for j in range(2)]
        if q < 6: a(f"s_add_u32 s{sT2}, s{sT2}, 1\ns_cmp_eq_u32 s{sT2}, 7\ns_cselect_b32 s{sT2}, 0, s{sT2}")
        return tk
    throttled([lambda q=q: w2q(q) for q in range(7)], OPT["thr"])
    REC = 160
    a(f"s_mov_b32 s{sT4}, {ST0}")
    check_record(REC, T + 4, sT4, loaded=False)
    a("s_barrier")
    stamp("b0_w2")
    if OPT["pf"] & 8: touches([(sW3, 56), (sW4, 56), (sWO, 14), (sWO, 14)], 224)
    ACC, W2F, XV, vWr = 16, 48, 164, 172
    a(f"s_mul_i32 s{sT3}, s{sCW}, 28672")
    addr_wrd128(vWr, 4, sCW, sT3, T)
    a(f"v_xor_b32 v{vWr+1}, 64, v{vWr}")
    a(f"v_bfe_u32 v{T}, v{vT_}, 1, 3\ns_lshl_b32 s{sT0}, s{sCW}, 2\nv_xor_b32 v{T}, s{sT0}, v{T}\nv_lshlrev_b32 v{T}, 4, v{T}")
    a(f"v_lshl_add_u32 v{T}, v{vT_}, 7, v{T}\nv_lshl_add_u32 v{T}, v{vHH}, 3, v{T}\ns_lshl_b32 s{sT0}, s{sRW}, 12\nv_add_u32 v{T}, s{sT0}, v{T}")
    for i in range(4):
        a(f"v_xor_b32 v{T+1}, {16*i}, v{T}")
        a.lg(f"ds_read_b64 v[{XV+2*i}:{XV+2*i+1}], v{T+1} offset:57344")
    for s in range(14):
        for b in range(2):
            for jj in range(2): a.lg(f"ds_read_b64_tr_b16 v[{W2F+8*s+4*b+2*jj}:{W2F+8*s+4*b+2*jj+1}], v{vWr+b} offset:{s*2048 + jj*1024}")
            if len(a.lgq) > 12: a.wait(lg=a.lgq[-11])
    a.wait_all(vm=False); a("s_barrier")
    m0 = [None]
    def issue_w(c, qs=range(4)):
        if m0[0] != c: set_m0(sM03, (c % 5) * 16384); m0[0] = c
        return [a.vm(f"buffer_load_dwordx4 v{vWd3+q}, s[{sW3}:{sW3+3}], s{sW3O+c} offen offset:{1024*q} lds") for q in qs]
    B3["issue_w"] = issue_w; B3["wt"] = {}
    def w3c(c, q):
        t = issue_w(c, (q,)); B3["wt"].setdefault(c, []).extend(t); return t
    B3["pieces"] = [lambda c=c, q=q: w3c(c, q) for c in range(5) for q in range(4)]
    for t in B3["pieces"][:OPT["w3a"]]: t()
    for i in range(8):
        a(f"v_lshlrev_b32 v{RES+2*i}, 16, v{XV+i}\nv_and_b32 v{RES+2*i+1}, 0xffff0000, v{XV+i}")
    a(f"v_mov_b32 v{vA}, v{REC+2}\nv_mul_f32 v{vB}, v{REC}, v{REC+2}\nv_sub_f32 v{vB}, 0, v{vB}")
    for i in range(0, 16, 2):
        a(f"v_pk_fma_f32 v[{ACC+i}:{ACC+i+1}], v[{RES+i}:{RES+i+1}], v[{vA}:{vA+1}], v[{vB}:{vB+1}] op_sel_hi:[1,0,0]")

def helper():
    a.label("L_helper")
    a.vmq = []; a.lgq = []
    prev_stamp[0] = stamp_names.get("b0_rec")
    if OPT["prio_h"]: a(f"s_setprio {OPT['prio_h']}")
    T = TB
    a(f"s_lshr_b32 s{sT0}, s{sXCD}, 1\ns_lshl_b32 s{sT0}, s{sT0}, 2\ns_add_u32 s{sT0}, s{sT0}, 3\ns_lshl_b32 s{sT0}, s{sT0}, 4")
    a(f"s_and_b32 s{sT1}, s{sXCD}, 1\ns_lshl_b32 s{sT1}, s{sT1}, 3\ns_add_u32 s{sT0}, s{sT0}, s{sT1}\ns_and_b32 s{sT1}, s{sLOC}, 7\ns_add_u32 s{sT0}, s{sT0}, s{sT1}")
    a(f"s_lshl_b32 s{sT0}, s{sT0}, 7\ns_add_u32 s{sT0}, s{sT0}, {FLG + F_QKV*FT}\nv_mov_b32 v{vPO}, s{sT0}")
    if OPT["hwait"] == 1: poll()
    if OPT["hwait"] == 2: go_poll(False)
    stamp("h_go")
    sB = sT4; LD, SUM = 16, 80
    a(f"s_and_b32 s{sB}, s2, 255\ns_sub_u32 s{sB}, s{sB}, 224\ns_cmp_ge_u32 s{sB}, 28\ns_cbranch_scc1 L_nocs")
    a(f"s_mul_i32 s{sT0}, s{sW}, {112*3584}\ns_lshl_b32 s{sT1}, s{sB}, 7\ns_add_u32 s{sT0}, s{sT0}, s{sT1}")
    a(f"v_lshrrev_b32 v{T}, 3, v{vLANE}\nv_mul_u32_u24 v{T}, 3584, v{T}\nv_and_b32 v{T+1}, 7, v{vLANE}\nv_lshl_add_u32 v{T}, v{T+1}, 4, v{T}")
    tk = []
    for i in range(14):
        tk.append(a.vm(f"buffer_load_dwordx4 v[{LD+4*i}:{LD+4*i+3}], v{T}, s[{sW3}:{sW3+3}], s{sT0} offen"))
        if i < 13: a(f"s_add_u32 s{sT0}, s{sT0}, {8*3584}")
        if i >= OPT["hthr"]: a.wait(vm=tk[i - OPT["hthr"]])
    for k in range(8): a(f"v_mov_b32 v{SUM+k}, 0")
    for i in range(14):
        a.wait(vm=tk[i])
        for k in range(4):
            a(f"v_lshlrev_b32 v{T+2}, 16, v{LD+4*i+k}\nv_and_b32 v{T+3}, 0xffff0000, v{LD+4*i+k}\nv_pk_add_f32 v[{SUM+2*k}:{SUM+2*k+1}], v[{SUM+2*k}:{SUM+2*k+1}], v[{T+2}:{T+3}]")
    stamp("h_ld")
    for k in range(8): a(f"v_add_f32_dpp v{SUM+k}, v{SUM+k}, v{SUM+k} row_ror:8 row_mask:0xf bank_mask:0xf")
    for op in ("v_permlane16_swap_b32", "v_permlane32_swap_b32"):
        for k in range(8): a(f"v_mov_b32 v{SUM+8+k}, v{SUM+k}")
        for k in range(8): a(f"{op} v{SUM+k}, v{SUM+8+k}")
        for k in range(8): a(f"v_add_f32 v{SUM+k}, v{SUM+k}, v{SUM+8+k}")
    a(f"s_lshl_b32 s{sT0}, s{sW}, 8\nv_lshlrev_b32 v{T+1}, 5, v{T+1}\nv_add_u32 v{T+2}, s{sT0}, v{T+1}")
    a(f"ds_write_b128 v{T+2}, v[{SUM}:{SUM+3}]\nds_write_b128 v{T+2}, v[{SUM+4}:{SUM+7}] offset:16\ns_waitcnt lgkmcnt(0)\ns_barrier")
    a(f"v_lshlrev_b32 v{T+2}, 2, v{vLANE}")
    for w2 in range(4): a(f"ds_read_b32 v{SUM+w2}, v{T+2} offset:{256*w2}")
    a(f"s_waitcnt lgkmcnt(0)\nv_add_f32 v{SUM}, v{SUM}, v{SUM+1}\nv_add_f32 v{SUM+2}, v{SUM+2}, v{SUM+3}\nv_add_f32 v{SUM}, v{SUM}, v{SUM+2}")
    a(f"s_lshl_b32 s{sT0}, s{sB}, 8\ns_add_u32 s{sT0}, s{sT0}, {CS3}\ns_lshl_b32 s{sT1}, s{sB}, 7\ns_add_u32 s{sT1}, s{sT1}, {FLG + F_CS*FT}")
    a(f"s_cmp_lg_u32 s{sW}, 0\ns_cbranch_scc1 L_nocs")
    a(f"buffer_store_dword v{SUM}, v{T+2}, s[{sWS}:{sWS+3}], s{sT0} offen sc1\ns_waitcnt vmcnt(0)")
    publish(sT1, barrier=False)
    a.label("L_nocs")
    a.vmq = []
    stamp("h_cs")
    if OPT["l2w4"]:
        nl = OPT["l2w4"]
        a(f"s_sub_u32 s{sT1}, s{sLOC}, 28\ns_lshl_b32 s{sT1}, s{sT1}, 2\ns_add_u32 s{sT1}, s{sT1}, s{sW}\nv_min_u32 v193, {nl-1}, v{vLANE}\nv_lshlrev_b32 v193, 7, v193")
        for sr_, lines in ((sW4, 784), (sWO, 196)):
            L = newlab("pf"); R = (lines + nl - 1) // nl
            a(f"s_mul_i32 s{sT3}, s{sT1}, {lines*128}\ns_mul_i32 s{sT4}, s{sXCD}, {R}\ns_lshr_b32 s{sT4}, s{sT4}, 3\ns_mov_b32 s{sT2}, {R}")
            a.label(L)
            a(f"s_mul_i32 s{sT0}, s{sT4}, {nl*128}\ns_add_u32 s{sT0}, s{sT0}, s{sT3}")
            a(f"buffer_load_dword v192, v193, s[{sr_}:{sr_+3}], s{sT0} offen\ns_add_u32 s{sT4}, s{sT4}, 1\ns_cmp_eq_u32 s{sT4}, {R}\ns_cselect_b32 s{sT4}, 0, s{sT4}\ns_waitcnt vmcnt(0)")
            a(f"s_sub_u32 s{sT2}, s{sT2}, 1\ns_cmp_lg_u32 s{sT2}, 0\ns_cbranch_scc1 {L}")
    stamp("h_w4"); stamp_flush()
    if OPT["clr"]:
        a(f"s_and_b32 s{sT0}, s2, 255\ns_cmp_lg_u32 s{sT0}, 255\ns_cbranch_scc1 L_end")
        a(f"s_lshl_b32 s{sT0}, s{sW}, 13\ns_add_u32 s{sT0}, s{sT0}, {FLG + F_O*FT}\nv_lshl_add_u32 v{vPO}, v{vLANE}, 7, s{sT0}")
        poll(sleep=32)
        a(f"s_barrier\ns_cmp_lg_u32 s{sW}, 0\ns_cbranch_scc1 L_end\nv_mov_b32 v{vP0}, 0\nv_mov_b32 v{vP0+1}, 0\ns_mov_b64 exec, 1")
        a(f"buffer_store_dwordx2 v[{vP0}:{vP0+1}], v{vZERO}, s[{sDBG}:{sDBG+3}], 0 offen sc1")
    a("s_endpgm")

def stage_B2():
    a.comment("==== B2: x1 = xn + shift(h) @ w2, 64 x 64 tile")
    ACC, W2F, HF, NH = 16, 48, 160, 8
    T = TB
    a(f"s_lshr_b32 s{sT0}, s{sR64}, 1\ns_and_b32 s{sT1}, s{sR64}, 1\ns_lshl_b32 s{sT1}, s{sT1}, 1\ns_add_u32 s{sT1}, s{sT1}, s{sT0}\ns_sub_u32 s{sT1}, s{sT1}, 1")
    a(f"s_max_i32 s{sT1}, s{sT1}, 0\ns_min_i32 s{sT1}, s{sT1}, 15\ns_lshl_b32 s{sT2}, s{sCW}, 8\ns_add_u32 s{sT2}, s{sT2}, {FLG + F_QKV*FT + 12*128}")
    a(f"v_mov_b32 v{T}, s{sT0}\nv_mov_b32 v{T+1}, s{sT1}\nv_cmp_gt_u32 vcc, 2, v{vLANE}\nv_cndmask_b32 v{T}, v{T+1}, v{T}, vcc")
    a(f"v_and_b32 v{T+1}, 1, v{vLANE}\nv_lshl_add_u32 v{T}, v{T}, 4, v{T+1}\nv_lshlrev_b32 v{T}, 7, v{T}\nv_add_u32 v{vPO}, s{sT2}, v{T}")
    a(f"s_mul_i32 s{sT0}, s{sCW}, {28*PL}\ns_add_u32 s{sT0}, s{sT0}, {H_}\ns_add_u32 s{sT1}, s{sX1D}, {2*PL}")
    vW, vR = vSH + 2, vSH + 3
    a(f"s_lshl_b32 s{sT2}, s{sW}, 12\ns_add_u32 s{sT2}, s{sT2}, 65536\nv_add_u32 v{vW}, s{sT2}, v{vL16}\nv_xor_b32 v{vR}, 4096, v{vW}")
    stamp("b2_ready")
    poll()
    stamp("b2_poll")
    ht = []
    def hload():
        ks = len(ht); r = HF + 4 * (ks % NH)
        ht.append(a.vm(f"buffer_load_dwordx4 v[{r}:{r+3}], v{vSH + ks//7}, s[{sWS}:{sWS+3}], s{sT0} offen sc1"))
        if ks < 13: a(f"s_add_u32 s{sT0}, s{sT0}, {2*PL}")
    for ks in range(NH): hload()
    a(f"s_lshl_b32 s{sT2}, s{sRB3}, 1\ns_add_u32 s{sT2}, s{sT2}, s{sRW}\ns_lshl_b32 s{sT2}, s{sT2}, 10\ns_add_u32 s{sT2}, s{sT2}, {FLG + F_X1*FT}")
    a(f"v_min_u32 v{T}, 6, v{vLANE}\nv_lshl_add_u32 v{vPO}, v{T}, 7, s{sT2}")
    for s in range(14):
        a.wait(vm=ht[s])
        if s == 0: stamp("b2_h0")
        mfma(ACC + 16, W2F + 8 * s + 4, HF + 4 * (s % NH), first=(s == 0))
        mfma(ACC, W2F + 8 * s, HF + 4 * (s % NH))
        if len(ht) < 14: hload()
    stamp("b2_main")
    for i in range(4): a.lg(f"ds_write_b128 v{vW}, v[{ACC+16+4*i}:{ACC+16+4*i+3}] offset:{1024*i}")
    a.wait_all(vm=False); a("s_barrier")
    tk = [a.lg(f"ds_read_b128 v[{ACC+16+4*i}:{ACC+16+4*i+3}], v{vR} offset:{1024*i}") for i in range(4)]
    for i in range(4):
        a.wait(lg=tk[i])
        for k in (0, 2): a(f"v_pk_add_f32 v[{ACC+4*i+k}:{ACC+4*i+k+1}], v[{ACC+4*i+k}:{ACC+4*i+k+1}], v[{ACC+16+4*i+k}:{ACC+16+4*i+k+1}]")
    PK = 48; sts = []
    cvt16(PK, ACC)
    for p in range(2):
        a(f"v_permlane32_swap_b32 v{PK+4*p}, v{PK+4*p+2}\nv_permlane32_swap_b32 v{PK+4*p+1}, v{PK+4*p+3}")
        sts.append(a.vm(f"buffer_store_dwordx4 v[{PK+4*p}:{PK+4*p+3}], v{vPLN}, s[{sWS}:{sWS+3}], s{sT1 if p else sX1D} offen sc1"))
    a(f"v_pk_add_f32 v[{T}:{T+1}], v[{ACC}:{ACC+1}], v[{ACC+2}:{ACC+3}]\nv_pk_mul_f32 v[{T+2}:{T+3}], v[{ACC}:{ACC+1}], v[{ACC}:{ACC+1}]")
    a(f"v_pk_fma_f32 v[{T+2}:{T+3}], v[{ACC+2}:{ACC+3}], v[{ACC+2}:{ACC+3}], v[{T+2}:{T+3}]")
    for i in range(4, 16, 2):
        a(f"v_pk_add_f32 v[{T}:{T+1}], v[{T}:{T+1}], v[{ACC+i}:{ACC+i+1}]\nv_pk_fma_f32 v[{T+2}:{T+3}], v[{ACC+i}:{ACC+i+1}], v[{ACC+i}:{ACC+i+1}], v[{T+2}:{T+3}]")
    a(f"v_add_f32 v{T}, v{T}, v{T+1}\nv_add_f32 v{T+2}, v{T+2}, v{T+3}\nv_mov_b32 v{T+1}, v{T}\nv_mov_b32 v{T+3}, v{T+2}")
    a(f"v_permlane32_swap_b32 v{T}, v{T+1}\nv_permlane32_swap_b32 v{T+2}, v{T+3}\nv_add_f32 v{vST}, v{T}, v{T+1}\nv_add_f32 v{vST+1}, v{T+2}, v{T+3}")
    sts.append(a.vm(f"buffer_store_dwordx2 v[{vST}:{vST+1}], v{vST+2}, s[{sWS}:{sWS+3}], s{sST1D} offen sc1"))
    for i in range(0, 16, 2): a(f"v_pk_add_f32 v[{RES+i}:{RES+i+1}], v[{RES+i}:{RES+i+1}], v[{ACC+i}:{ACC+i+1}]")
    stamp("b2_st")
    n0 = OPT["w3a"]; n1 = max(n0, OPT["w3b"])
    for t in B3["pieces"][n0:n1]: t()
    a.wait(vm=sts); a("s_barrier")
    publish(sFX1, barrier=False)
    stamp("b2_pub")
    n2 = max(n1, OPT["w3c"])
    for t in B3["pieces"][n1:n2]: t()
    B3["stream"] = B3["pieces"][n2:]

def stage_B3():
    a.comment("==== B3: g = gelu(LN(x1) @ w3), 128 x 128 tile")
    ACC, XF, NX, WF, ST = 16, 80, 16, 144, 176
    T = TB
    poll()
    stamp("b3_poll")
    xt = []
    def xload():
        s = len(xt); c, ks = divmod(s, 4); r = XF + 4 * (s % NX)
        so = sK3 + c
        if ks: a(f"s_add_u32 s{sT0}, s{sK3+c}, {2*ks*PL}"); so = sT0
        xt.append(a.vm(f"buffer_load_dwordx4 v[{r}:{r+3}], v{vXo}, s[{sWS}:{sWS+3}], s{so} offen sc1"))
    for s in range(6): xload()
    stt = []; cst = []; cft = []
    def stat_load():
        i = len(stt)
        if i: a(f"s_add_u32 s{sSO}, s{sSO}, 16384")
        stt.append(a.vm(f"buffer_load_dwordx2 v[{ST+2*i}:{ST+2*i+1}], v{vSo}, s[{sWS}:{sWS+3}], s{sSO} offen sc1"))
    def kstep(s):
        th = []
        n = len(xt)
        for k in range(2):
            if n + k < 28 and n + k < s + NX and n + k <= s + 13: th.append(xload)
        if 16 <= s < 23: th.append(stat_load)
        if s == 14:
            def csflag():
                a(f"s_lshl_b32 s{sT0}, s{sC3}, 8\ns_add_u32 s{sT0}, s{sT0}, {FLG + F_CS*FT}\nv_and_b32 v{vPO}, 1, v{vLANE}\nv_lshl_add_u32 v{vPO}, v{vPO}, 7, s{sT0}")
                cft.append(a.vm(f"buffer_load_dwordx2 v[{vP0}:{vP0+1}], v{vPO}, s[{sWS}:{sWS+3}], 0 offen sc1"))
            th.append(csflag)
        if s == 19:
            def csload():
                L = newlab("cc")
                a.wait(vm=cft); q = list(a.vmq)
                a(f"v_cmp_ne_u64 vcc, v[{vP0}:{vP0+1}], v[{vNO}:{vNO+1}]\ns_cbranch_vccz {L}")
                poll(); a.label(L); a.vmq = q
                a(f"s_lshl_b32 s{sT0}, s{sC3}, 9\ns_add_u32 s{sT0}, s{sT0}, {CS3}\nv_lshlrev_b32 v{SEL3}, 3, v{vLANE}")
                cst.append(a.vm(f"buffer_load_dwordx2 v[{CS43}:{CS43+1}], v{SEL3}, s[{sWS}:{sWS+3}], s{sT0} offen sc1"))
            th.append(csload)
        if s == 25:
            def cswrite():
                a.wait(vm=cst); a.lg(f"ds_write_b64 v{vCW3}, v[{CS43}:{CS43+1}]")
            th.append(cswrite)
        return th
    hooks = dict(before_barrier=lambda c: None, after_barrier=lambda c: [], lg_need=lambda s: [], vm_need=lambda s: [xt[s]], kstep=kstep)
    PAD[0] = OPT["pad3"]
    panel_mainloop("b3", ACC, WF, vWr3, 5, lambda s: XF + 4 * (s % NX), B3["issue_w"], B3["wt"], hooks, None, None, stream=B3["stream"])
    PAD[0] = 0
    stamp("b3_main")
    CS, GT, PK = 80, 144, 160
    toks = [read_cs(CS + 16 * u, vCA3 + u) for u in range(3)]
    a.wait(vm=stt)
    for i in (2, 4): a(f"v_pk_add_f32 v[{ST}:{ST+1}], v[{ST}:{ST+1}], v[{ST+i}:{ST+i+1}]\nv_pk_add_f32 v[{ST+6}:{ST+7}], v[{ST+6}:{ST+7}], v[{ST+6+i}:{ST+7+i}]")
    a(f"v_pk_add_f32 v[{ST}:{ST+1}], v[{ST}:{ST+1}], v[{ST+12}:{ST+13}]\nv_pk_add_f32 v[{ST}:{ST+1}], v[{ST}:{ST+1}], v[{ST+6}:{ST+7}]")
    a(f"v_mov_b32 v{ST+2}, v{ST}\nv_mov_b32 v{ST+3}, v{ST+1}\nv_permlane32_swap_b32 v{ST}, v{ST+2}\nv_permlane32_swap_b32 v{ST+1}, v{ST+3}")
    a(f"v_pk_add_f32 v[{ST}:{ST+1}], v[{ST}:{ST+1}], v[{ST+2}:{ST+3}]")
    ln_stats(ST, ST + 1, T)
    a(f"v_add_f32 v{ST+1}, {hx(f2u(EPS))}, v{ST+1}\nv_rsq_f32 v{vA}, v{ST+1}\nv_sub_f32 v{vB}, 0, v{ST}")
    gelu_consts(ST + 2, vA)
    a.wait(lg=toks[0])
    toks.append(read_cs(CS + 48, vCA3 + 3))
    stamp("b3_csbar")
    def issue_w4(j):
        set_m0(sM04, (j % NZ) * 2048)
        if j < 28:
            c, ks = divmod(j, 4); srd_, base, add = sW4, sW4o + c, ks * 16 * 896
        else:
            hd, m = divmod(j - 28, 2); srd_, base, add = sWO, sWOo, (28 * hd + 16 * m) * 896
        so = base
        if add: a(f"s_add_u32 s{sT5}, s{base}, {add}"); so = sT5
        return [a.vm(f"buffer_load_dwordx4 v{vWD+q}, s[{srd_}:{srd_+3}], s{so} offen offset:{1024*q} lds") for q in range(2)]
    B4["issue_w"] = issue_w4; B4["wt"] = {}
    cnt = [0]
    def hook():
        cnt[0] += 1
        j = len(B4["wt"])
        if cnt[0] == 1: a("s_barrier")
        if j < NZ and cnt[0] % 2 == 0: B4["wt"][j] = issue_w4(j)
    for u in range(4):
        a.wait(lg=toks[u]); shift16(ACC + 16 * u, CS + 16 * u)
        gelu16(ACC + 16 * u, GT, ST + 2, hook)
        pk = PK + 8 * (u & 1)
        cvt16(pk, ACC + 16 * u)
        a(f"s_add_u32 s{sT1}, s{sGS+u}, {2*PL}")
        a.vm(f"buffer_store_dwordx4 v[{pk}:{pk+3}], v{vXo}, s[{sWS}:{sWS+3}], s{sGS+u} offen sc1")
        a.vm(f"buffer_store_dwordx4 v[{pk+4}:{pk+7}], v{vXo}, s[{sWS}:{sWS+3}], s{sT1} offen sc1")
    assert len(B4["wt"]) == NZ
    stamp("b3_epi")
    sts = a.vmq[-2:]
    NRG = OPT["nrg"]; WR = 144
    for j in range(NRG):
        a.wait(vm=B4["wt"][j])
        for b in range(2):
            for jj in range(2):
                r = WR + 8 * j + 4 * b + 2 * jj
                a.lg(f"ds_read_b64_tr_b16 v[{r}:{r+1}], v{vWr4+b} offset:{j*2048 + jj*1024}")
        if len(a.lgq) > 8: a.wait(lg=a.lgq[-5])
        if j == 0:
            for i in range(16): a(f"v_mov_b32 v{ACC+i}, v{RES+i}")
    a(f"s_lshr_b32 s{sT0}, s{sR64}, 1\ns_lshl_b32 s{sT0}, s{sT0}, 4\ns_mul_i32 s{sT1}, s{sW}, 7\ns_lshr_b32 s{sT1}, s{sT1}, 1\ns_add_u32 s{sT1}, s{sT1}, s{sT0}")
    a(f"v_and_b32 v{T}, 3, v{vLANE}\nv_add_u32 v{T+1}, s{sT1}, v{T}\nv_lshlrev_b32 v{T+1}, 7, v{T+1}\nv_add_u32 v{vPO}, {FLG + F_G*FT}, v{T+1}")
    a(f"s_lshl_b32 s{sT1}, s{sW}, 2\ns_add_u32 s{sT1}, s{sT1}, s{sT0}\nv_add_u32 v{T+1}, s{sT1}, v{T}\nv_lshlrev_b32 v{T+1}, 7, v{T+1}\nv_add_u32 v{T+7}, {FLG + F_O*FT}, v{T+1}")
    a(f"s_and_b32 s{sT1}, s{sR64}, 1\ns_lshl_b32 s{sT1}, s{sT1}, 4\nv_bfe_u32 v{T+1}, v{vLANE}, 2, 1\nv_lshl_add_u32 v{T+1}, v{T+1}, 3, s{sT1}\nv_add_u32 v{T+7}, v{T+7}, v{T+1}")
    if not NRG:
        for i in range(16): a(f"v_mov_b32 v{ACC+i}, v{RES+i}")
    a.wait_all(vm=False)
    n1 = min(NRG, OPT["w4b"])
    for j in range(n1): B4["wt"][NZ + j] = issue_w4(NZ + j)
    a.wait(vm=sts); a("s_barrier")
    publish(sFG, barrier=False)
    stamp("b3_pub")
    for j in range(n1, NRG): B4["wt"][NZ + j] = issue_w4(NZ + j)

def stage_B4():
    a.comment("==== B4: out = x + x1 + g @ w4 + o @ wo, 64 x 64 tile, k split over the waves")
    ACC, GF, WR, WF, T = 16, 80, 144, 208, TB
    NRG = OPT["nrg"]
    vGo = [vPLN, vGo1]; vPO2 = T + 7
    wt = B4["wt"]; issue_w = B4["issue_w"]
    rd = {}; gt = {}
    def reads(j):
        rd[j] = []
        if j < NRG: return []
        a.wait(vm=wt[j])
        return [lambda b=b, jj=jj: rd[j].append(a.lg(f"ds_read_b64_tr_b16 v[{WF+8*(j&1)+4*b+2*jj}:{WF+8*(j&1)+4*b+2*jj+1}], v{vWr4+b} offset:{(j%NZ)*2048 + jj*1024}")) for b in range(2) for jj in range(2)]
    def gload(j):
        if j < 28:
            c, ks = divmod(j, 4); base, add = sG4 + c, 2 * ks * PL
        else: base, add = sOo, 2 * (j - 28) * PL
        so = base
        if add: a(f"s_add_u32 s{sT4}, s{base}, {add}"); so = sT4
        r = GF + 8 * (j % 8)
        gt[j] = [a.vm(f"buffer_load_dwordx4 v[{r+4*aa}:{r+4*aa+3}], v{vGo[aa]}, s[{sWS}:{sWS+3}], s{so} offen sc1") for aa in range(2)]
    ot = []
    def ocheck():
        L = newlab("oc"); q = None
        a.wait(vm=ot)
        q = list(a.vmq)
        a(f"v_cmp_ne_u64 vcc, v[{vP0}:{vP0+1}], v[{vNO}:{vNO+1}]\ns_cbranch_vccz {L}\nv_mov_b32 v{vPO}, v{vPO2}")
        poll()
        a.label(L)
        a.vmq = q
        stamp("b4_opoll")
    for t in reads(0): t()
    poll()
    stamp("b4_poll")
    for j in range(4): gload(j)
    PAD[0] = OPT["pad4"]
    for j in range(36):
        if j == 28: stamp("b4_g")
        a.wait(vm=gt[j], lg=rd[j])
        if j in (0, 14): stamp(f"b4_j{j}")
        rds = reads(j + 1) if j + 1 < 36 else []
        late = []
        n = len(gt)
        jo = 28 - OPT["olead"]
        if j == jo - 3 and not OPT["noattn"]:
            late.append(lambda: ot.append(a.vm(f"buffer_load_dwordx2 v[{vP0}:{vP0+1}], v{vPO2}, s[{sWS}:{sWS+3}], 0 offen sc1")))
        if j == jo - 1 and not OPT["noattn"]: late.append(ocheck)
        for k in range(2):
            if n + k < 36 and n + k <= j + 7 and (n + k < 28 or j >= jo): late.append(lambda k=n + k: gload(k))
        if j + NZ < 36 and j >= NRG: late.append(lambda j=j: wt.__setitem__(j + NZ, issue_w(j + NZ)))
        g = GF + 8 * (j % 8); w = WF + 8 * (j & 1) if j >= NRG else WR + 8 * j
        for u in range(4):
            aa, b = divmod(u, 2)
            mfma(ACC + 16 * u, w + 4 * b, g + 4 * aa, first=(j == 0 and u > 0))
            if u == 0:
                for t in rds: t()
            elif late: late.pop(0)()
        for t in late: t()
    PAD[0] = 0
    stamp("b4_o")
    vW, vR = T, T + 1
    a(f"v_add_u32 v{vW}, s{sM04}, v{vL16}\nv_mul_u32_u24 v{T+2}, 896, v{vT_}\nv_lshl_add_u32 v{T+2}, v{vHH}, 4, v{T+2}")
    for u in range(1, 4):
        for i in range(4): a.lg(f"ds_write_b128 v{vW}, v[{ACC+16*u+4*i}:{ACC+16*u+4*i+3}] offset:{(u-1)*4096 + 1024*i}")
    a.wait_all(vm=False); a("s_barrier")
    stamp("b4_rbar")
    tk = []
    for u in range(1, 4):
        a(f"s_xor_b32 s{sT0}, s{sW}, {u}\ns_mul_i32 s{sT0}, s{sT0}, {NZ*2048}\nv_add_u32 v{vR}, s{sT0}, v{vL16}")
        tk.append([a.lg(f"ds_read_b128 v[{ACC+16*u+4*i}:{ACC+16*u+4*i+3}], v{vR} offset:{(u-1)*4096 + 1024*i}") for i in range(4)])
    for u in range(1, 4):
        a.wait(lg=tk[u - 1])
        for i in range(0, 16, 2): a(f"v_pk_add_f32 v[{ACC+i}:{ACC+i+1}], v[{ACC+i}:{ACC+i+1}], v[{ACC+16*u+i}:{ACC+16*u+i+1}]")
    PK = GF
    cvt16(PK, ACC)
    for p in range(2):
        a(f"v_permlane32_swap_b32 v{PK+4*p}, v{PK+4*p+2}\nv_permlane32_swap_b32 v{PK+4*p+1}, v{PK+4*p+3}")
        a.vm(f"buffer_store_dwordx4 v[{PK+4*p}:{PK+4*p+3}], v{T+2}, s[{sOUT}:{sOUT+3}], s{sOUTD} offen offset:{32*p}" + ["", " sc1", " nt", " sc0 sc1"][OPT["outsc"]])
    stamp("b4_end"); stamp_flush()

HEAD = f"""; parallel sum of an attention block and a spatial-shift MLP mixer.  One persistent launch, two workgroups per CU:
; @launch grid=(512,1,1) block=(256,1,1) lds={LDS_BYTES}
.amdgcn_target "amdgcn-amd-amdhsa--gfx950"
.text
.globl {NAME}_kernel
.p2align 8
.type {NAME}_kernel,@function
{NAME}_kernel:
"""
TAIL = f""".section .rodata,"a"
.p2align 6
.amdhsa_kernel {NAME}_kernel
  .amdhsa_next_free_vgpr 256
  .amdhsa_next_free_sgpr 102
  .amdhsa_accum_offset 256
  .amdhsa_group_segment_fixed_size 0
  .amdhsa_kernarg_size 88
  .amdhsa_user_sgpr_count 2
  .amdhsa_user_sgpr_kernarg_segment_ptr 1
  .amdhsa_system_sgpr_workgroup_id_x 1
.end_amdhsa_kernel
"""

def build():
    prologue()
    stage_A1()
    if OPT["noattn"]: stamp_flush(); a("s_endpgm")
    else: stage_A2()
    stage_B0()
    stage_B2()
    stage_B3()
    stage_B4()
    a.label("L_end")
    a("s_endpgm")
    helper()
    a.label("L_code_end")
    a.pad_hazards()
    size, nprom, nnop = fix_straddles(a, HEAD, TAIL, verbose=True)
    print(f"code bytes {size}, hazard nops {a.nops_inserted}, promoted {nprom}, straddle nops {nnop}")
    open(sys.argv[1], "w").write(HEAD + a.text() + TAIL + (("; roles: BA\n" if OPT["swap"] else "") + "; stamps: " + ",".join(stamp_names) + "\n" if OPT["stamps"] else ""))

if __name__ == "__main__":
    build()
```

```python
import sys, math, struct
from asmlib import *

NAME = "parallel_sum__mha_block__mixer_s_mlp__prompt"
OPT = dict(stamps=0, spin=400000, prio_b=1, pf=1, outsc=0, noattn=0, nob=0, nr=5, thr=64, go=12, prio_a1=2, prio_at=2, w2late=1, thra=6, swap=1, anf=1, thr3=64, w3a=0, w3b=3, aprio=1, pad3=2, pad4=0, xp=0, defer=0, w3c=20, l2w3=0, l2w4=0, clr=1, map3=1, split=0, prio_h=1, hwait=1, hthr=14, alate=64, aprio2=1, nrg=8, w4b=0, olead=5, dsw=1, a1s=2, w3t=1)
for a in sys.argv[2:]:
    k, v = a.split("="); OPT[k] = int(v, 0)

def f2u(x): return struct.unpack("<I", struct.pack("<f", x))[0]
def hx(x): return hex(x & 0xffffffff)

S, D, F = 2048, 448, 1792
PL = 32768 + 256
FLG = 0; FT = 0x8000
F_QKV, F_GO, F_X1, F_G, F_O, F_CS = 0, 1, 2, 3, 4, 5
QB_ = 0x40000
KV_ = QB_ + 16 * 64 * 2048
H_ = KV_ + 16 * 64 * 4096
X1 = H_ + 0x1C4000
O_ = X1 + 0x1C4000
G_ = O_ + 0x204000
CS3 = G_ + 0x70E000
ST0 = CS3 + 0x2000
ST1 = ST0 + 0x8000
WS_SIZE = ST1 + 14 * 0x4000
STAMP = 0x1600000
if OPT['stamps']: WS_SIZE = STAMP + 0x80000
LDS_BYTES = 81920
EPS = 1e-5
QSCALE = (28 ** -0.5) * math.log2(math.e)
GA = -2.0 * math.log2(math.e) * math.sqrt(2.0 / math.pi)
GB = GA * 0.044715

sX, sWS, sDBG, sWA, sW2, sW3, sW4, sWO, sOUT = 28, 32, 36, 40, 44, 48, 52, 56, 60
sHI = 26
sW, sXCD, sLOC = 64, 65, 66
sONES = 67
sT0, sT1, sT2, sT3, sT4, sT5 = 68, 69, 70, 71, 72, 73
sCNT = 74
sA0 = 75
vTID, vLANE, vT_, vHH, vZERO = 0, 1, 2, 3, 4
vNO = 6
vP0 = 8
vPO = 10
vL16 = 11
vA, vB = 12, 14

a = Asm()
lab = [0]
def newlab(p):
    lab[0] += 1; return f"L_{p}_{lab[0]}"

def srd(dst, ptr, size):
    a(f"s_mov_b32 s{dst}, s{ptr}\ns_mov_b32 s{dst+1}, s{ptr+1}\ns_mov_b32 s{dst+2}, {hx(size)}\ns_mov_b32 s{dst+3}, 0x20000")

nstamp = [0]
prev_stamp = [None]
stamp_names = {}
def stamp(name, first=False):
    if not OPT["stamps"]: return
    idx = stamp_names.setdefault(name, len(stamp_names))
    assert idx < 64
    if first: a("v_mov_b32 v5, 0")
    elif prev_stamp[0] is not None: a(f"v_writelane_b32 v5, s100, {prev_stamp[0]}")
    a("s_memrealtime s[100:101]" if OPT["stamps"] == 1 else "s_memtime s[100:101]")
    prev_stamp[0] = idx

def stamp_flush():
    if not OPT["stamps"]: return
    a(f"s_waitcnt lgkmcnt(0)\nv_writelane_b32 v5, s100, {prev_stamp[0]}")
    a(f"s_lshl_b32 s100, s2, 2\ns_add_u32 s100, s100, s{sW}\ns_lshl_b32 s100, s100, 8\ns_add_u32 s100, s100, {STAMP}")
    a(f"v_lshlrev_b32 v{vP0}, 2, v{vLANE}\nbuffer_store_dword v5, v{vP0}, s[{sWS}:{sWS+3}], s100 offen")

def get_nonce():
    L = newlab("no"); Dn = newlab("nod")
    a(f"s_mov_b32 s{sCNT}, {OPT['spin']}")
    a.label(L)
    a(f"buffer_load_dwordx2 v[{vNO}:{vNO+1}], v{vZERO}, s[{sDBG}:{sDBG+3}], 0 offen sc1")
    a.wait_all(lg=False)
    a(f"v_cmp_eq_u32 vcc, 0, v{vNO}\ns_cbranch_vccz {Dn}\ns_sub_u32 s{sCNT}, s{sCNT}, 1\ns_cbranch_scc1 {Dn}\ns_sleep 1\ns_branch {L}")
    a.label(Dn)

def check_nonce(keep=False):
    Dn = newlab("cn")
    q = list(a.vmq)
    a(f"v_cmp_eq_u32 vcc, 0, v{vNO}\ns_cbranch_vccz {Dn}")
    get_nonce()
    a.label(Dn)
    a.vmq = q

def poll(sleep=1):
    L = newlab("po"); Dn = newlab("pod")
    a(f"s_mov_b32 s{sCNT}, {OPT['spin']}")
    a.label(L)
    a(f"buffer_load_dwordx2 v[{vP0}:{vP0+1}], v{vPO}, s[{sWS}:{sWS+3}], 0 offen sc1")
    a.wait_all(lg=False)
    a(f"v_cmp_ne_u64 vcc, v[{vP0}:{vP0+1}], v[{vNO}:{vNO+1}]\ns_cbranch_vccz {Dn}\ns_sub_u32 s{sCNT}, s{sCNT}, 1\ns_cbranch_scc1 {Dn}\ns_sleep {sleep}\ns_branch {L}")
    a.label(Dn)

def publish(sflag, barrier=True):
    L = newlab("pub")
    if barrier:
        a.wait_all()
        a("s_barrier")
    a(f"s_cmp_lg_u32 s{sW}, 0\ns_cbranch_scc1 {L}\ns_mov_b64 exec, 1")
    a(f"buffer_store_dwordx2 v[{vNO}:{vNO+1}], v{vZERO}, s[{sWS}:{sWS+3}], s{sflag} offen sc1")
    a("s_mov_b64 exec, -1")
    a.label(L)
    a.flag_pending = True

def xhalf_add(v, t1, t2):
    a(f"v_mov_b32 v{t1}, v{v}\nv_mov_b32 v{t2}, v{v}\nv_permlane32_swap_b32 v{t1}, v{t2}\nv_add_f32 v{v}, v{t1}, v{t2}")

def ln_stats(vsum, vsq, t):
    a(f"v_mul_f32 v{vsum}, {hx(f2u(1.0/D))}, v{vsum}\nv_mul_f32 v{vsq}, {hx(f2u(1.0/D))}, v{vsq}")
    a(f"v_fma_f32 v{vsq}, -v{vsum}, v{vsum}, v{vsq}\nv_max_f32 v{vsq}, 0, v{vsq}")

def scale16(acc):
    for i in range(0, 16, 2):
        a(f"v_pk_mul_f32 v[{acc+i}:{acc+i+1}], v[{acc+i}:{acc+i+1}], v[{vA}:{vA+1}] op_sel_hi:[1,0]")
def shift16(acc, cs):
    for i in range(0, 16, 2):
        a(f"v_pk_fma_f32 v[{acc+i}:{acc+i+1}], v[{cs+i}:{cs+i+1}], v[{vB}:{vB+1}], v[{acc+i}:{acc+i+1}] op_sel_hi:[1,0,1]")

def gelu_consts(vC, va):
    a(f"v_mul_f32 v{vC}, {hx(f2u(GA))}, v{va}\nv_mul_f32 v{vC+2}, v{va}, v{va}\nv_rcp_f32 v{vC+4}, v{va}\nv_mul_f32 v{vC+2}, v{vC+2}, v{va}\nv_mul_f32 v{vC+2}, {hx(f2u(GB))}, v{vC+2}")

def gelu16(y, t, vC, hook=lambda: None):
    for i in range(0, 16, 2):
        a(f"v_pk_mul_f32 v[{t+i}:{t+i+1}], v[{y+i}:{y+i+1}], v[{y+i}:{y+i+1}]")
    for i in range(0, 16, 2):
        a(f"v_pk_fma_f32 v[{t+i}:{t+i+1}], v[{t+i}:{t+i+1}], v[{vC+2}:{vC+3}], v[{vC}:{vC+1}] op_sel_hi:[1,0,0]")
    hook()
    for i in range(0, 16, 2):
        a(f"v_pk_mul_f32 v[{t+i}:{t+i+1}], v[{t+i}:{t+i+1}], v[{y+i}:{y+i+1}]")
    for i in range(16):
        a(f"v_exp_f32 v{t+i}, v{t+i}")
        if i == 7: hook()
    for i in range(0, 16, 2):
        a(f"v_pk_fma_f32 v[{t+i}:{t+i+1}], v[{t+i}:{t+i+1}], v[{vC+4}:{vC+5}], v[{vC+4}:{vC+5}] op_sel_hi:[1,0,0]")
    hook()
    for i in range(16):
        a(f"v_rcp_f32 v{t+i}, v{t+i}")
        if i == 9: hook()
    for i in range(0, 16, 2):
        a(f"v_pk_mul_f32 v[{y+i}:{y+i+1}], v[{y+i}:{y+i+1}], v[{t+i}:{t+i+1}]")
    hook()

class Deferred:
    def __init__(self): self.groups = []
    def __enter__(self):
        self.orig = Asm.__call__; d = self
        def cap(asm, text):
            n = len(asm.ins); d.orig(asm, text); d.groups.append(asm.ins[n:]); del asm.ins[n:]
        Asm.__call__ = cap; return self
    def __exit__(self, *e): Asm.__call__ = self.orig
    def drip(self, ninstr):
        while self.groups and ninstr > 0:
            g = self.groups.pop(0); a.ins.extend(g); ninstr -= len(g)
    def flush(self): self.drip(1 << 30)

def cvt16(pk, y):
    for i in range(8): a(f"v_cvt_pk_bf16_f32 v{pk+i}, v{y+2*i}, v{y+2*i+1}")

PAD = [0]
def mfma(d, A, B, first=False):
    if PAD[0] > 0: a(f"s_nop {PAD[0]-1}")
    elif PAD[0] < 0:
        n = 0
        for i in reversed(a.ins):
            if i.kind == "mfma": break
            if not i.is_label: n += i.states * (OPT["dsw"] if i.kind in ("ds", "vmem", "dma") else 1)
            if n >= -PAD[0]: break
        if n < -PAD[0]: a(f"s_nop {-PAD[0]-n-1}")
    c = "0" if first else f"v[{d}:{d+15}]"
    a(f"v_mfma_f32_32x32x16_bf16 v[{d}:{d+15}], v[{A}:{A+3}], v[{B}:{B+3}], {c}")

def interleave(main, fill):
    n = len(main); k = 0
    for i, m in enumerate(main):
        m()
        upto = (len(fill) * (i + 1) + n - 1) // n
        while k < upto: fill[k](); k += 1

def rot7(dst, rot, n=7):
    for c in range(n):
        a(f"s_add_u32 s{dst+c}, s{rot}, {c}\ns_sub_u32 s{sT5}, s{dst+c}, 7\ns_cselect_b32 s{dst+c}, s{dst+c}, s{sT5}")

vGA = 254


def prologue():
    a("s_cmp_ge_u32 s2, 512\ns_cbranch_scc1 L_end")
    a("s_load_dwordx16 s[4:19], s[0:1], 0\ns_load_dwordx4 s[20:23], s[0:1], 64\ns_load_dwordx2 s[24:25], s[0:1], 80")
    a(f"s_memrealtime s[{sTAG}:{sTAG+1}]")
    a(f"v_lshrrev_b32 v8, 6, v0\nv_and_b32 v{vLANE}, 63, v0\nv_readfirstlane_b32 s{sW}, v8")
    a(f"v_and_b32 v{vT_}, 31, v0\nv_bfe_u32 v{vHH}, v0, 5, 1\nv_mov_b32 v{vZERO}, 0\nv_lshlrev_b32 v{vL16}, 4, v{vLANE}")
    a(f"s_mov_b32 s{sHI}, 0\ns_mov_b32 s{sHI+1}, -1\ns_mov_b32 s{sONES}, 0x3f803f80")
    a(f"s_and_b32 s{sXCD}, s2, 7\ns_bfe_u32 s{sLOC}, s2, {(5 << 16) | 3}")
    stamp("entry", first=True)
    a(f"s_or_b32 s{sT4}, s2, s{sW}\ns_cmp_lg_u32 s{sT4}, 0\ns_cbranch_scc1 L_notag\ns_waitcnt lgkmcnt(0)")
    srd(sDBG, 22, 256)
    a(f"s_or_b32 s{sTAG}, s{sTAG}, 1\nv_mov_b32 v{vNO}, s{sTAG}\nv_mov_b32 v{vNO+1}, s{sTAG+1}\ns_mov_b64 exec, 1")
    a(f"buffer_store_dwordx2 v[{vNO}:{vNO+1}], v{vZERO}, s[{sDBG}:{sDBG+3}], 0 offen sc1\ns_mov_b64 exec, -1")
    a.label("L_notag")
    a("s_cmp_ge_u32 s2, 256\n" + ("s_cbranch_scc0" if OPT["swap"] else "s_cbranch_scc1") + " L_roleB")

def make_sel(dst, t):
    a(f"v_bfe_u32 v{t}, v{vLANE}, 2, 1\nv_bfe_u32 v{t+1}, v{vLANE}, 4, 1\nv_cmp_eq_u32 vcc, v{t}, v{t+1}\nv_mov_b32 v{t}, s{sONES}\ns_nop 0\n"
      + "\n".join(f"v_cndmask_b32 v{dst+i}, 0, v{t}, vcc" for i in range(4)))

def mfma_sum(d, sel, B, first):
    c = "0" if first else f"v[{d}:{d+3}]"
    a(f"v_mfma_f32_16x16x32_bf16 v[{d}:{d+3}], v[{sel}:{sel+3}], v[{B}:{B+3}], {c}")

def check_record(REC, voff, soff, loaded=True):
    L = newlab("rec"); Dn = newlab("recd"); C = newlab("recc")
    a(f"s_mov_b32 s{sCNT}, {OPT['spin']}")
    if loaded: a(f"s_branch {C}")
    a.label(L)
    a(f"buffer_load_dwordx4 v[{REC}:{REC+3}], v{voff}, s[{sWS}:{sWS+3}], s{soff} offen sc1\ns_waitcnt vmcnt(0)")
    a.label(C)
    a(f"v_cmp_ne_u32 vcc, v{REC+1}, v{vNO}\nv_cmp_ne_u32 s[{sT2}:{sT3}], v{REC+3}, v{vNO}\ns_or_b64 vcc, vcc, s[{sT2}:{sT3}]")
    a(f"v_cmp_eq_u32 s[{sT2}:{sT3}], 0, v{vNO}\ns_or_b64 vcc, vcc, s[{sT2}:{sT3}]\ns_cbranch_vccz {Dn}")
    a(f"s_sub_u32 s{sCNT}, s{sCNT}, 1\ns_cbranch_scc1 {Dn}\ns_sleep 1\ns_branch {L}")
    a.label(Dn)
    if not loaded: a.vmq = []

def addr_xdma(dst, nq, t):
    for q in range(nq):
        a(f"v_lshrrev_b32 v{t}, 3, v{vLANE}\nv_add_u32 v{t}, {8*q}, v{t}")
        a(f"v_bfe_u32 v{t+1}, v{t}, 1, 3\nv_and_b32 v{t+2}, 7, v{vLANE}\nv_xor_b32 v{t+1}, v{t+1}, v{t+2}")
        a(f"v_mul_u32_u24 v{t}, 896, v{t}\nv_lshl_add_u32 v{t}, v{t+1}, 4, v{t}\nv_subrev_u32 v{dst+q}, {1024*q}, v{t}")

def addr_wdma128(dst, t):
    a(f"v_lshrrev_b32 v{t}, 3, v{vLANE}\nv_bfe_u32 v{t+1}, v{vLANE}, 4, 1\nv_lshlrev_b32 v{t+1}, 2, v{t+1}")
    a(f"v_and_b32 v{t+2}, 7, v{vLANE}\nv_xor_b32 v{t+1}, v{t+1}, v{t+2}")
    a(f"v_mul_u32_u24 v{t}, 896, v{t}\nv_lshl_add_u32 v{dst}, v{t+1}, 4, v{t}\nv_add_u32 v{dst+1}, {8*896-1024}, v{dst}")

def addr_wdma256(dst, sstride, t, mask=False):
    a(f"v_lshrrev_b32 v{t}, 4, v{vLANE}\nv_lshlrev_b32 v{t+1}, 2, v{t}\nv_sub_u32 v{t+1}, v{vLANE}, v{t+1}\nv_and_b32 v{t+1}, 15, v{t+1}")
    a(f"v_mul_u32_u24 v{t}, s{sstride}, v{t}\nv_lshl_add_u32 v{dst}, v{t+1}, 4, v{t}")
    if mask: a(f"v_mov_b32 v{t}, 0x7fff0000\nv_cmp_gt_u32 vcc, 14, v{t+1}\nv_cndmask_b32 v{dst}, v{t}, v{dst}, vcc")
    a(f"s_lshl_b32 s{sT5}, s{sstride}, 2\ns_sub_u32 s{sT5}, s{sT5}, 1024")
    for q in range(1, 4): a(f"v_add_u32 v{dst+q}, s{sT5}, v{dst+q-1}")

def addr_xrd(dst, sbase, t):
    a(f"v_bfe_u32 v{t}, v{vT_}, 1, 3\nv_xor_b32 v{t}, v{t}, v{vHH}\nv_lshlrev_b32 v{t}, 4, v{t}\nv_lshl_add_u32 v{t}, v{vT_}, 7, v{t}")
    for ks in range(4):
        a(f"v_xor_b32 v{dst+ks}, {32*ks}, v{t}\nv_add_u32 v{dst+ks}, s{sbase}, v{dst+ks}")

def lane_rcg(t):
    a(f"v_bfe_u32 v{t}, v{vLANE}, 2, 2\nv_and_b32 v{t+1}, 3, v{vLANE}\nv_lshlrev_b32 v{t+1}, 3, v{t+1}")
    a(f"v_bfe_u32 v{t+2}, v{vLANE}, 4, 1\nv_lshl_add_u32 v{t+1}, v{t+2}, 5, v{t+1}")

def addr_wrd256(dst, cs, t):
    lane_rcg(t)
    a(f"v_lshl_add_u32 v{t+1}, v{t}, 6, v{t+1}")
    a(f"v_lshl_add_u32 v{t}, v{vHH}, 3, v{t}\nv_lshlrev_b32 v{t}, 8, v{t}")
    for u in range(4):
        a(f"s_add_u32 s{sT0}, s{sW}, {u}\ns_and_b32 s{sT0}, s{sT0}, 3\ns_mul_i32 s{sT0}, s{sT0}, {cs}")
        a(f"v_add_u32 v{dst+u}, s{sT0}, v{t+1}\nv_and_b32 v{dst+u}, 255, v{dst+u}\nv_add_u32 v{dst+u}, v{dst+u}, v{t}")

def addr_wrd128(dst, hhmul, scol, sbase, t):
    lane_rcg(t)
    a(f"v_lshrrev_b32 v{t+2}, 1, v{t}\nv_xor_b32 v{t+2}, s{scol}, v{t+2}\nv_lshl_add_u32 v{t+1}, v{t+2}, 6, v{t+1}")
    a(f"v_mad_u32_u24 v{t}, v{vHH}, {hhmul}, v{t}\nv_lshl_add_u32 v{dst}, v{t}, 7, v{t+1}")
    if sbase is not None: a(f"v_add_u32 v{dst}, s{sbase}, v{dst}")

def set_m0(expr_sgpr, add):
    a(f"s_add_u32 m0, s{expr_sgpr}, {add}" if add else f"s_mov_b32 m0, s{expr_sgpr}")


def panel_mainloop(name, ACC, WF, vWrd, nslot, xfrag, issue_w, wtok, hooks, SEL, CS4, defer=None, stream=()):
    rd = {}
    hi = [False]
    pre = set(range(nslot)); stream = list(stream)
    def wreads(s):
        c, ks = divmod(s, 4); slot = c % nslot
        base = slot * 16384 + ks * 4096
        if slot == 4 and not hi[0]:
            for u in range(4): a(f"v_add_u32 v{vWrd+u}, 0x10000, v{vWrd+u}")
            hi[0] = True
        if slot != 4 and hi[0]:
            for u in range(4): a(f"v_subrev_u32 v{vWrd+u}, 0x10000, v{vWrd+u}")
            hi[0] = False
        if slot == 4: base -= 65536
        toks = []; rd[s] = toks; th = []
        for u in range(2 if OPT["xp"] & 8 else 4):
            for jj in range(2):
                r = WF + (s & 1) * 16 + u * 4 + jj * 2
                th.append(lambda r=r, u=u, jj=jj: toks.append(a.lg(f"ds_read_b64_tr_b16 v[{r}:{r+1}], v{vWrd+u} offset:{base + jj*1024}")))
        return th
    hooks["before_barrier"](0)
    a.wait(vm=wtok[0]); a("s_barrier")
    stamp(name + "_c0")
    for t in hooks["after_barrier"](0) + wreads(0): t()
    for s in range(28):
        c, ks = divmod(s, 4)
        a.wait(lg=rd[s] + hooks["lg_need"](s), vm=hooks["vm_need"](s))
        reads = []; late = []
        if ks == 3 and c < 6:
            hooks["before_barrier"](c + 1)
            a.wait(vm=wtok[c + 1]); a("s_barrier")
            if c in (1, 3, 5): stamp(name + f"_c{c+1}")
            reads += hooks["after_barrier"](c + 1)
        if s < 27: reads += wreads(s + 1)
        for cc, qs in ((c + nslot, (0, 1)) if ks == 3 else (c - 1 + nslot, (2, 3)) if ks == 0 and c > 0 else (99, ()),):
            if cc <= 6 and cc not in pre:
                for q in qs: late.append(lambda cc=cc, q=q: wtok.setdefault(cc, []).extend(issue_w(cc, (q,))))
        for k in range(2):
            if stream: late.append(stream.pop(0))
        late += hooks["kstep"](s)
        xf = xfrag(s); w = WF + (s & 1) * 16
        h = (len(reads) + 1) // 2
        mfma(ACC, w, xf, first=(s == 0))
        for t in reads[:h]: t()
        mfma(ACC + 16, w + 4, xf, first=(s == 0))
        for t in reads[h:]: t()
        h = (len(late) + 1) // 2
        mfma(ACC + 32, w + 8, xf, first=(s == 0))
        for t in late[:h]: t()
        if defer: defer.drip(3)
        mfma(ACC + 48, w + 12, xf, first=(s == 0))
        for t in late[h:]: t()
        if defer: defer.drip(3)
        if SEL is not None and not (OPT["xp"] & 4 and s > 0): mfma_sum(CS4, SEL, w, s == 0)
    if defer: defer.flush()

def addr_cs(vCW, vCA, csbase):
    a(f"s_lshl_b32 s{sT0}, s{sW}, 7\ns_add_u32 s{sT0}, s{sT0}, {csbase}\nv_lshl_add_u32 v{vCW}, v{vT_}, 2, s{sT0}")
    for u in range(4):
        a(f"s_add_u32 s{sT0}, s{sW}, {u}\ns_and_b32 s{sT0}, s{sT0}, 3\ns_lshl_b32 s{sT0}, s{sT0}, 7\ns_add_u32 s{sT0}, s{sT0}, {csbase}\nv_lshl_add_u32 v{vCA+u}, v{vHH}, 4, s{sT0}")

def read_cs(dst, vaddr):
    return [a.lg(f"ds_read_b128 v[{dst+4*i}:{dst+4*i+3}], v{vaddr} offset:{32*i}") for i in range(4)]

sTAG = 98
def stage_A1():
    a.comment("==== A1: 128 rows x 112 columns of LN(x) @ [wq | wk | wv | w1]")
    if OPT["prio_a1"]: a(f"s_setprio {OPT['prio_a1']}")
    ACC, XF, WF = 16, 80, 112
    vWd, vXd, vXr, vWr = 144, 148, 152, 156
    SEL, CS4, REC, vCA, vVw, vVr, vPA, vPB, vSt, vCW, vGA_, vRo = 160, 164, 168, 172, 176, 180, 182, 183, 184, 185, 186, 188
    T = 190
    GT, PK = 200, 216
    sRB, sCG, sROT = sA0, sA0 + 1, sA0 + 2
    sKC = sA0 + 3
    sWO_ = sA0 + 10
    sM0W, sM0X, sTY, sHQ, sSTR, sCST = sA0 + 17, sA0 + 18, sA0 + 19, sA0 + 20, sA0 + 21, sA0 + 22
    sD0, sD1, sFL, sRO, sSC, sGO, sG = 4, 8, 12, 13, 14, 15, 16
    a(f"s_lshr_b32 s{sT0}, s{sLOC}, 3\ns_lshr_b32 s{sT2}, s{sXCD}, 1\ns_lshl_b32 s{sT2}, s{sT2}, 2\ns_add_u32 s{sRB}, s{sT2}, s{sT0}")
    a(f"s_and_b32 s{sT2}, s{sXCD}, 1\ns_lshl_b32 s{sT2}, s{sT2}, 3\ns_and_b32 s{sT1}, s{sLOC}, 7\ns_add_u32 s{sCG}, s{sT2}, s{sT1}")
    a(f"s_lshr_b32 s{sTY}, s{sCG}, 2\ns_and_b32 s{sHQ}, s{sCG}, 3")
    a(f"s_cmp_eq_u32 s{sTY}, 3\ns_movk_i32 s{sSTR}, 2688\ns_cselect_b32 s{sSTR}, 896, s{sSTR}\ns_cselect_b32 s{sCST}, 64, 56\ns_cselect_b32 s{sT3}, s{sHQ}, s{sCG}")
    a(f"s_mul_i32 s{sT0}, s{sLOC}, 37\ns_lshr_b32 s{sT0}, s{sT0}, 8\ns_mul_i32 s{sT0}, s{sT0}, 7\ns_sub_u32 s{sROT}, s{sLOC}, s{sT0}")
    a(f"s_lshl_b32 s{sT0}, s{sRB}, 2\ns_add_u32 s{sT0}, s{sT0}, s{sW}\ns_mul_i32 s{sT0}, s{sT0}, {32*896}")
    a(f"s_lshl_b32 s{sT1}, s{sW}, 4\ns_mul_i32 s{sT1}, s{sT1}, s{sSTR}\ns_mul_i32 s{sT2}, s{sT3}, 224\ns_add_u32 s{sT1}, s{sT1}, s{sT2}")
    a(f"s_lshl_b32 s{sT2}, s{sSTR}, 6")
    def chunk_offsets(c):
        a(f"s_add_u32 s{sKC+c}, s{sROT}, {c}\ns_sub_u32 s{sT5}, s{sKC+c}, 7\ns_cselect_b32 s{sKC+c}, s{sKC+c}, s{sT5}")
        a(f"s_mul_i32 s{sWO_+c}, s{sKC+c}, s{sT2}\ns_add_u32 s{sWO_+c}, s{sWO_+c}, s{sT1}")
        a(f"s_lshl_b32 s{sKC+c}, s{sKC+c}, 7\ns_add_u32 s{sKC+c}, s{sKC+c}, s{sT0}")
    for c in range(2): chunk_offsets(c)
    a(f"s_lshl_b32 s{sM0W}, s{sW}, 12\ns_lshl_b32 s{sM0X}, s{sW}, 13\ns_add_u32 s{sM0X}, s{sM0X}, 49152")
    addr_xdma(vXd, 4, T); addr_wdma256(vWd, sSTR, T, mask=True)
    a("s_waitcnt lgkmcnt(0)")
    stamp("a1_karg")
    srd(sX, 4, S * D * 2)
    a(f"s_cmp_eq_u32 s{sTY}, 3\ns_cselect_b32 s{sWA}, s12, s6\ns_cselect_b32 s{sWA+1}, s13, s7\ns_mov_b32 s{sWA+2}, {D*3*D*2}\ns_cselect_b32 s{sWA+2}, {D*D*2}, s{sWA+2}\ns_mov_b32 s{sWA+3}, 0x20000")
    srd(sDBG, 22, 256)
    m0 = [None]
    def issue_x(c, qs=range(4)):
        if m0[0] != ("x", c): set_m0(sM0X, (c & 1) * 4096); m0[0] = ("x", c)
        if OPT["xp"] & 1 and c > 1: return []
        return [a.vm(f"buffer_load_dwordx4 v{vXd+q}, s[{sX}:{sX+3}], s{sKC+c} offen offset:{1024*q} lds") for q in qs]
    def issue_w(c, qs=range(4)):
        if m0[0] != ("w", c): set_m0(sM0W, (c % 3) * 16384); m0[0] = ("w", c)
        if OPT["xp"] & 2 and c > 2: return []
        return [a.vm(f"buffer_load_dwordx4 v{vWd+q}, s[{sWA}:{sWA+3}], s{sWO_+c} offen offset:{1024*q} lds") for q in qs]
    xt = {}; wt = {}
    xt[0] = issue_x(0); wt[0] = issue_w(0)
    for c in range(2, 7): chunk_offsets(c)
    addr_xrd(vXr, sM0X, T)
    if OPT["a1s"] < 2: xt[1] = issue_x(1)
    addr_wrd256(vWr, f"s{sCST}", T)
    make_sel(SEL, T)
    srd(sWS, 24, WS_SIZE)
    CSB = 16384
    with Deferred() as df:
        a(f"s_and_b32 s{sGO}, s2, 255\ns_lshl_b32 s{sGO}, s{sGO}, 7\ns_add_u32 s{sGO}, s{sGO}, {FLG + F_GO*FT}")
        a(f"s_lshl_b32 s{sT0}, s{sRB}, 2\ns_add_u32 s{sT4}, s{sT0}, s{sW}\ns_lshl_b32 s{sRO}, s{sT4}, 9\ns_add_u32 s{sRO}, s{sRO}, {ST0}")
        a(f"v_lshlrev_b32 v{vRo}, 4, v{vT_}")
        addr_cs(vCW, vCA, CSB)
        a(f"s_lshl_b32 s{sT0}, s{sRB}, 4\ns_add_u32 s{sT0}, s{sT0}, s{sCG}\ns_lshl_b32 s{sT0}, s{sT0}, 7\ns_add_u32 s{sFL}, s{sT0}, {FLG + F_QKV*FT}")
        a(f"s_lshl_b32 s{sT1}, s{sHQ}, 8\ns_add_u32 s{sT0}, s{sT4}, s{sT1}\ns_cmp_eq_u32 s{sTY}, 0\ns_cselect_b32 s{sSC}, 11, 12\ns_mov_b32 s{sT2}, {KV_ - 2048}\ns_cselect_b32 s{sT2}, {QB_}, s{sT2}")
        a(f"s_lshl_b32 s{sT0}, s{sT0}, s{sSC}\ns_lshl_b32 s{sT1}, s{sTY}, 11\ns_add_u32 s{sT0}, s{sT0}, s{sT1}\ns_add_u32 s{sT0}, s{sT0}, s{sT2}")
        a(f"s_lshl_b32 s{sT4}, s{sT4}, 9\ns_mul_i32 s{sT1}, s{sHQ}, {14*PL}\ns_add_u32 s{sT4}, s{sT4}, s{sT1}\ns_add_u32 s{sT4}, s{sT4}, {H_}")
        a(f"s_lshl_b32 s{sT1}, 64, s{sSC}\ns_movk_i32 s{sT2}, 1024\ns_movk_i32 s{sT3}, 512")
        a(f"s_cmp_eq_u32 s{sTY}, 3\ns_cselect_b32 s{sT0}, s{sT4}, s{sT0}\ns_cselect_b32 s{sT1}, {4*PL}, s{sT1}\ns_cselect_b32 s{sT2}, {2*PL}, s{sT2}\ns_cselect_b32 s{sT3}, {PL}, s{sT3}")
        a(f"v_mul_u32_u24 v{vSt}, s{sT3}, v{vHH}\nv_lshl_add_u32 v{vSt}, v{vT_}, 4, v{vSt}")
        for u in range(4):
            a(f"s_add_u32 s{sT3}, s{sW}, {u}\ns_and_b32 s{sT3}, s{sT3}, 3\ns_mul_i32 s{sD0+u}, s{sT3}, s{sT1}\ns_add_u32 s{sD0+u}, s{sD0+u}, s{sT0}")
            a(f"s_add_u32 s{sD1+u}, s{sD0+u}, s{sT2}\ns_lshl_b32 s{sT4}, s{sTY}, 2\ns_or_b32 s{sT3}, s{sT3}, s{sT4}")
            a(f"s_cmp_eq_u32 s{sT3}, 15\ns_cselect_b32 s{sD1+u}, 0x7fff0000, s{sD1+u}")
        a(f"s_cmp_eq_u32 s{sTY}, 1\ns_cselect_b32 s{sT1}, 0x3f803f80, 0\ns_cselect_b32 s{sT2}, 0x3f80, 0")
        a(f"s_cmp_eq_u32 s{sTY}, 2\ns_cselect_b32 s{sT1}, 0x3f80, s{sT1}")
        a(f"v_mov_b32 v{vPA}, s{sT1}\nv_mov_b32 v{vPB}, s{sT2}")
        a(f"s_cmp_eq_u32 s{sTY}, 0\ns_cselect_b32 s{sSC}, {hx(f2u(QSCALE))}, 1.0")
        a(f"v_bfe_u32 v{T}, v{vT_}, 1, 3\nv_xor_b32 v{T}, v{T}, v{vHH}\nv_lshlrev_b32 v{T}, 3, v{T}\nv_lshl_add_u32 v{T}, v{vT_}, 6, v{T}")
        for i in range(4): a(f"v_xor_b32 v{vVw+i}, {16*i}, v{T}\nv_add_u32 v{vVw+i}, s{sM0X}, v{vVw+i}")
        lane_rcg(T)
        for jj in range(2):
            a(f"v_lshl_add_u32 v{T+2}, v{vHH}, 2, v{T}\nv_add_u32 v{T+2}, {8*jj}, v{T+2}")
            a(f"v_bfe_u32 v{T+3}, v{T+2}, 1, 3\nv_lshlrev_b32 v{T+3}, 3, v{T+3}\nv_xor_b32 v{T+3}, v{T+3}, v{T+1}")
            a(f"v_lshl_add_u32 v{vVr+jj}, v{T+2}, 6, v{T+3}\nv_add_u32 v{vVr+jj}, s{sM0X}, v{vVr+jj}")
    if not OPT["defer"]: df.drip(70 if OPT["a1s"] < 2 else 999)
    if OPT["a1s"] >= 2: xt[1] = issue_x(1)
    wt[1] = issue_w(1)
    if not OPT["defer"]: df.flush()
    st1 = []
    if OPT["a1s"]: st1 = [lambda q=q: wt.setdefault(2, []).extend(issue_w(2, (q,))) for q in range(4)]
    else: wt[2] = issue_w(2)
    stamp("a1_issued")
    xr = {}; rec = []
    def go():
        a.wait(vm=rec[0])
        check_nonce(keep=True)
        publish(sGO, barrier=False)
    def after_barrier(c):
        xr[c] = []
        return [lambda ks=ks: xr[c].append(a.lg(f"ds_read_b128 v[{XF+(c&1)*16+4*ks}:{XF+(c&1)*16+4*ks+3}], v{vXr+ks} offset:{(c&1)*4096}")) for ks in range(4)]
    def kstep(s):
        th = []
        c, ks = divmod(s, 4)
        if ks in (1, 2) and c + 2 <= 6:
            for q in (2 * ks - 2, 2 * ks - 1): th.append(lambda q=q: xt.setdefault(c + 2, []).extend(issue_x(c + 2, (q,))))
        if s == OPT["go"] - 5: th.append(lambda: rec.append(a.vm(f"buffer_load_dwordx2 v[{vNO}:{vNO+1}], v{vZERO}, s[{sDBG}:{sDBG+3}], 0 offen sc1")))
        if s == OPT["go"]: th.append(go)
        if s == 22: th.append(lambda: rec.append(a.vm(f"buffer_load_dwordx4 v[{REC}:{REC+3}], v{vRo}, s[{sWS}:{sWS+3}], s{sRO} offen sc1")))
        return th
    hooks = dict(before_barrier=lambda c: a.wait(vm=xt[c]), after_barrier=after_barrier,
                 lg_need=lambda s: xr[s // 4] if s % 4 == 0 else [], vm_need=lambda s: [], kstep=kstep)
    panel_mainloop("a1", ACC, WF, vWr, 3, lambda s: XF + ((s // 4) & 1) * 16 + 4 * (s % 4), issue_w, wt, hooks, SEL, CS4, df, stream=st1)
    stamp("a1_main")
    a.wait(vm=rec)
    check_record(REC, vRo, sRO)
    a.lg(f"ds_write_b32 v{vCW}, v{CS4}")
    a(f"v_mul_f32 v{T}, v{REC+2}, v{REC+2}\nv_mov_b32 v{T+1}, {hx(f2u(1.0 + EPS))}\nv_mov_b32 v{T+2}, {hx(f2u(-EPS))}\nv_fma_f32 v{T}, v{T}, v{T+2}, v{T+1}\nv_rsq_f32 v{T}, v{T}")
    a(f"s_cmp_eq_u32 s{sTY}, 3\ns_cselect_b64 vcc, -1, 0\nv_mov_b32 v{T+1}, s{sSC}\nv_cndmask_b32 v{T}, v{T+1}, v{T}, vcc")
    a(f"v_mul_f32 v{vA}, v{T}, v{REC+2}\nv_mul_f32 v{vB}, v{vA}, v{REC}\nv_sub_f32 v{vB}, 0, v{vB}")
    a.wait_all(vm=False); a("s_barrier")
    stamp("a1_csbar")
    CS = 80
    toks = [read_cs(CS + 16 * u, vCA + u) for u in range(3)]
    a(f"s_cmp_eq_u32 s{sTY}, 3\ns_cbranch_scc1 L_A1_nosc")
    for u in range(4): scale16(ACC + 16 * u)
    a.label("L_A1_nosc")
    a.wait(lg=toks[0])
    toks.append(read_cs(CS + 48, vCA + 3))
    def store(u, pk):
        a.vm(f"buffer_store_dwordx4 v[{pk}:{pk+3}], v{vSt}, s[{sWS}:{sWS+3}], s{sD0+u} offen sc1")
        a.vm(f"buffer_store_dwordx4 v[{pk+4}:{pk+7}], v{vSt}, s[{sWS}:{sWS+3}], s{sD1+u} offen sc1")
    def pads(pk): a(f"v_cndmask_b32 v{pk+6}, v{pk+6}, v{vPA}, s[{sHI}:{sHI+1}]\nv_cndmask_b32 v{pk+7}, v{pk+7}, v{vPB}, s[{sHI}:{sHI+1}]")
    lgq0 = list(a.lgq); vmq0 = list(a.vmq)
    a(f"s_cmp_eq_u32 s{sTY}, 2\ns_cbranch_scc1 L_A1_v\ns_cmp_eq_u32 s{sTY}, 3\ns_cbranch_scc1 L_A1_w1")
    for u in range(4):
        a.wait(lg=toks[u]); shift16(ACC + 16 * u, CS + 16 * u)
        cvt16(PK + 8 * u, ACC + 16 * u); pads(PK + 8 * u); store(u, PK + 8 * u)
    a("s_branch L_A1_pub")
    a.label("L_A1_v")
    a.lgq = list(lgq0); a.vmq = list(vmq0); tr = {}
    for u in range(4):
        pk = PK + 8 * u
        a.wait(lg=toks[u]); shift16(ACC + 16 * u, CS + 16 * u)
        cvt16(pk, ACC + 16 * u); pads(pk)
        if u == 0: a.wait(lg=toks[3])
        if u > 0: a.wait(lg=tr[u - 1]); store(u - 1, pk - 8)
        for i in range(4): a.lg(f"ds_write_b64 v{vVw+i}, v[{pk+2*i}:{pk+2*i+1}] offset:{2048*u}")
        tr[u] = [a.lg(f"ds_read_b64_tr_b16 v[{pk+4*m+2*jj}:{pk+4*m+2*jj+1}], v{vVr+jj} offset:{2048*u + 1024*m}") for m in range(2) for jj in range(2)]
    a.wait(lg=tr[3]); store(3, PK + 24)
    a("s_branch L_A1_pub")
    a.label("L_A1_w1")
    a.lgq = list(lgq0); a.vmq = list(vmq0)
    gelu_consts(T, vA)
    a(f"v_sub_f32 v{vB}, 0, v{REC}")
    for u in range(4):
        a.wait(lg=toks[u]); shift16(ACC + 16 * u, CS + 16 * u)
        gelu16(ACC + 16 * u, GT, T)
        cvt16(PK + 8 * u, ACC + 16 * u); store(u, PK + 8 * u)
    a.label("L_A1_pub")
    stamp("a1_epi")
    publish(sFL)
    stamp("a1_pub")

def rowmax(dst, s_, first):
    if first: a(f"v_max3_f32 v{dst}, v{s_}, v{s_+1}, v{s_+2}\nv_max_f32 v{dst}, v{dst}, v{s_+3}")
    else: a(f"v_max3_f32 v{dst}, v{dst}, v{s_}, v{s_+1}\nv_max3_f32 v{dst}, v{dst}, v{s_+2}, v{s_+3}")
    for i in range(4, 16, 2): a(f"v_max3_f32 v{dst}, v{dst}, v{s_+i}, v{s_+i+1}")

def stage_A2():
    a.comment("==== A2: attention, 128 queries of one head; wave = 512 keys; slot x holds query tile w^x^3")
    NR = OPT["nr"]
    Q, O, SS, P = 16, 48, 112, 144
    KB = 160; VB = KB + 8 * NR
    T = VB + 8 * NR; MX = 12
    assert T + 16 <= 256
    sH, sQB, sQ0, sK, sV, sK0, sRETRY, sKT0, sOD, sFL, sKVB, sPUB = sA0, sA0+1, sA0+2, sA0+3, sA0+4, sA0+5, sA0+6, sA0+7, sA0+8, sA0+10, sA0+11, sA0+12
    vOo, vW, vR, vKV = 0, 8, 9, 10
    a(f"s_lshr_b32 s{sT0}, s{sLOC}, 4\ns_lshl_b32 s{sH}, s{sXCD}, 1\ns_add_u32 s{sH}, s{sH}, s{sT0}\ns_and_b32 s{sQB}, s{sLOC}, 15")
    a(f"s_lshr_b32 s{sT0}, s{sH}, 2\ns_lshl_b32 s{sT1}, s{sQB}, 4\ns_add_u32 s{sT1}, s{sT1}, s{sT0}")
    a(f"s_lshl_b32 s{sT2}, s{sW}, 6\ns_add_u32 s{sT2}, s{sT2}, s{sT0}")
    a(f"v_subrev_u32 v{T}, 2, v{vLANE}\nv_and_b32 v{T+1}, 3, v{T}\nv_lshlrev_b32 v{T+1}, 4, v{T+1}")
    a(f"v_bfe_u32 v{T+2}, v{T}, 2, 1\nv_lshl_add_u32 v{T+1}, v{T+2}, 2, v{T+1}\nv_add_u32 v{T+1}, 4, v{T+1}\nv_add_u32 v{T+1}, s{sT2}, v{T+1}")
    a(f"v_mov_b32 v{vPO}, s{sT1}\nv_cmp_gt_u32 vcc, 8, v{T}\nv_cndmask_b32 v{vPO}, v{vPO}, v{T+1}, vcc")
    a(f"s_add_u32 s{sT0}, s{sT0}, 4\nv_mov_b32 v{T+1}, s{sT0}\nv_cmp_eq_u32 vcc, 1, v{vLANE}\nv_cndmask_b32 v{vPO}, v{vPO}, v{T+1}, vcc")
    a(f"v_lshlrev_b32 v{vPO}, 7, v{vPO}")
    if FLG + F_QKV * FT: a(f"v_add_u32 v{vPO}, {FLG + F_QKV*FT}, v{vPO}")
    a(f"s_lshl_b32 s{sK0}, s{sH}, 18\ns_add_u32 s{sK0}, s{sK0}, {KV_}\ns_lshl_b32 s{sT0}, s{sW}, 16\ns_add_u32 s{sT0}, s{sT0}, s{sK0}\ns_mov_b32 s{sKVB}, s{sT0}")
    a(f"s_lshl_b32 s{sQ0}, s{sH}, 17\ns_lshl_b32 s{sT0}, s{sQB}, 13\ns_add_u32 s{sQ0}, s{sQ0}, s{sT0}\ns_add_u32 s{sQ0}, s{sQ0}, {QB_}")
    for kt in range(16): a(f"s_add_u32 s{8+kt}, s{sQB}, {kt}\ns_and_b32 s{8+kt}, s{8+kt}, 15\ns_lshl_b32 s{8+kt}, s{8+kt}, 12")
    a(f"s_mov_b32 s{sRETRY}, 0\ns_mov_b32 s{sPUB}, 0")
    for x in range(4): a(f"s_xor_b32 s{4+x}, s{sW}, {x^3}\ns_lshl_b32 s{4+x}, s{4+x}, 11\ns_add_u32 s{4+x}, s{4+x}, s{sQ0}")
    a(f"v_mul_u32_u24 v{vOo}, {PL}, v{vHH}\nv_lshl_add_u32 v{vOo}, v{vT_}, 4, v{vOo}")
    a(f"s_lshl_b32 s{sT0}, s{sQB}, 2\ns_add_u32 s{sT0}, s{sT0}, s{sW}\ns_lshl_b32 s{sT0}, s{sT0}, 9")
    a(f"s_mul_i32 s{sT1}, s{sH}, {4*PL}\ns_add_u32 s{sT0}, s{sT0}, s{sT1}\ns_add_u32 s{sOD}, s{sT0}, {O_}\ns_add_u32 s{sOD+1}, s{sOD}, {2*PL}")
    a(f"s_lshl_b32 s{sT0}, s{sQB}, 4\ns_add_u32 s{sT0}, s{sT0}, s{sH}\ns_lshl_b32 s{sT0}, s{sT0}, 7\ns_add_u32 s{sFL}, s{sT0}, {FLG + F_O*FT}\ns_lshl_b32 s{sT0}, s{sW}, 3\ns_add_u32 s{sFL}, s{sFL}, s{sT0}")
    def ld(dst, soff, imm, vo=vL16): return a.vm(f"buffer_load_dwordx4 v[{dst}:{dst+3}], v{vo}, s[{sWS}:{sWS+3}], s{soff} offen offset:{imm} sc1")
    vPK = T + 8
    if OPT["split"]:
        a(f"v_mov_b32 v{vPK}, v{vPO}\nv_readlane_b32 s{sT0}, v{vPO}, 0\nv_cmp_gt_u32 vcc, 2, v{vLANE}\nv_mov_b32 v{T+9}, s{sT0}\nv_cndmask_b32 v{vPO}, v{T+9}, v{vPO}, vcc")
    poll()
    stamp("a2_poll")
    k0 = [ld(T, sK0, 0), ld(T + 4, sK0, 1024)]
    qt = [[ld(Q + 8 * x, 4 + x, 0), ld(Q + 8 * x + 4, 4 + x, 1024)] for x in range(4)]
    if OPT["split"]:
        ft = a.vm(f"buffer_load_dwordx2 v[{vP0}:{vP0+1}], v{vPK}, s[{sWS}:{sWS+3}], 0 offen sc1")
    order = []
    for kt in range(16):
        for kind in "KV":
            for half in range(2):
                need = 4 * kt - 2 if kind == "K" else 4 * kt + 1
                free = 4 * (kt - NR) + (3 if kind == "K" else 5)
                order.append((need, kind, kt, half, free))
    order.sort()
    tok = {}
    sKT = 8
    def issue(e):
        need, kind, kt, half, free = e
        if kind == "K": t = ld(KB + 8 * (kt % NR) + 4 * half, sKT + kt, 1024 * half, vKV)
        else: t = ld(VB + 8 * (kt % NR) + 4 * half, sKT + kt, 2048 + 1024 * half, vKV)
        tok.setdefault((kind, kt), []).append(t)
    def bump(e): pass
    NPRE = 6
    def first_loads():
        for e in order[:NPRE]: issue(e); bump(e)
    def kv_start():
        a(f"v_add_u32 v{vKV}, s{sKVB}, v{vL16}")
        first_loads()
        a(f"s_mul_i32 s{sT0}, s{sW}, 12288\nv_add_u32 v{vW}, s{sT0}, v{vL16}")
    if not OPT["split"]: kv_start()
    pend = order[NPRE:]
    for x in range(4):
        a.wait(vm=k0 + qt[x])
        s_ = SS + 16 * (x & 1)
        mfma(s_, T, Q + 8 * x, first=True); mfma(s_, T + 4, Q + 8 * x + 4)
        if x == 0 and OPT["split"]:
            L = newlab("kvc")
            a.wait(vm=[ft])
            a(f"v_cmp_ne_u64 vcc, v[{vP0}:{vP0+1}], v[{vNO}:{vNO+1}]\ns_cbranch_vccz {L}\nv_mov_b32 v{vPO}, v{vPK}")
            poll()
            a.label(L)
            stamp("a2_kv")
            kv_start()
        if x > 0: rowmax(MX + x - 1, SS + 16 * ((x - 1) & 1), True)
    rowmax(MX + 3, SS + 16, True)
    stamp("a2_max")
    a.label("L_A2_setmax")
    for x in range(4):
        a(f"v_mov_b32 v{T+x}, v{MX+x}")
    for x in range(4):
        a(f"v_permlane32_swap_b32 v{T+x}, v{MX+x}")
    for x in range(4):
        a(f"v_max_f32 v{MX+x}, v{T+x}, v{MX+x}")
    for x in range(4):
        m = MX + x; t = T + 4 * x
        a(f"v_cvt_pk_bf16_f32 v{t}, -v{m}, -v{m}\nv_and_b32 v{t+1}, 0xffff0000, v{t}\nv_sub_f32 v{t+2}, -v{m}, v{t+1}")
        a(f"v_cvt_pk_bf16_f32 v{t+3}, v{t+2}, v{t+2}\nv_and_b32 v{t+3}, 0xffff0000, v{t+3}\nv_sub_f32 v{t+2}, v{t+2}, v{t+3}")
        a(f"v_and_b32 v{t}, 0xffff, v{t}\nv_or_b32 v{t}, v{t}, v{t+3}\nv_cvt_pk_bf16_f32 v{t+2}, v{t+2}, 0")
        a(f"v_cndmask_b32 v{Q+8*x+6}, v{Q+8*x+6}, v{t}, s[{sHI}:{sHI+1}]\nv_cndmask_b32 v{Q+8*x+7}, v{Q+8*x+7}, v{t+2}, s[{sHI}:{sHI+1}]")
        if x == 0:
            a.wait(vm=tok[("K", 0)])
            mfma(SS, KB, Q, first=True); mfma(SS, KB + 4, Q + 4)
    def QK(n, half):
        kt, x = divmod(n, 4)
        mfma(SS + 16 * (n & 1), KB + 8 * (kt % NR) + 4 * half, Q + 8 * x + 4 * half, first=(half == 0))
    def PV(n, half):
        kt, x = divmod(n, 4)
        mfma(O + 16 * x, VB + 8 * (kt % NR) + 4 * half, P + 8 * (n & 1) + 4 * half, first=(kt == 0 and half == 0))
    def owrite(x, i): a.lg(f"ds_write_b128 v{vW}, v[{O+16*x+4*i}:{O+16*x+4*i+3}] offset:{x*4096 + 1024*i}")
    stamp("a2_start")
    if OPT["prio_a1"]: a("s_setprio 0")
    a.hot = True
    for n in range(64):
        if n in (16, 32, 48): stamp(f"a2_b{n}")
        kt, x = divmod(n, 4)
        s_ = SS + 16 * (n & 1); p_ = P + 8 * (n & 1)
        e = lambda i: a(f"v_exp_f32 v{s_+i}, v{s_+i}")
        c = lambda i: a(f"v_cvt_pk_bf16_f32 v{p_+i}, v{s_+2*i}, v{s_+2*i+1}")
        sh = [[], [], [], []]
        pre = [[], [], [], []]
        ap = OPT["aprio"] if n < OPT["alate"] else OPT["aprio2"]
        if n == OPT["alate"] and ap == 5: pre[0].append(lambda: a("s_setprio 3"))
        for g in (0, 2):
            if pend and pend[0][4] <= n:
                ent = pend.pop(0)
                assert ent[0] > n + 1, (ent, n)
                hi = ap == 1 or (ap in (2, 3) and g == 2)
                if hi: pre[g].append(lambda: a("s_setprio 3"))
                sh[g].append(lambda ent=ent: issue(ent))
                if hi: sh[g].append(lambda: a("s_setprio 0"))
                sh[g + 1].append(lambda ent=ent: bump(ent))
        if ap == 2: sh[3].append(lambda: a("s_setprio 3")); sh[1].append(lambda: a("s_setprio 0"))
        if ap == 3: sh[3].append(lambda: a("s_setprio 3")); sh[0].append(lambda: a("s_setprio 0"))
        if ap == 4: sh[3].append(lambda: a("s_setprio 3")); sh[2].append(lambda: a("s_setprio 0"))
        if x == 2 and kt + 1 < 16: sh[3].append(lambda: a.wait(vm=tok[("K", kt + 1)]))
        if x == 1: sh[1].append(lambda: a.wait(vm=tok[("V", kt)]))
        if n == 62:
            for g in range(4): sh[g].append(lambda g=g: owrite(0, g))
        if n == 63:
            for g in range(4): sh[g].append(lambda g=g: owrite(1, g))
        mm = [(lambda: QK(n + 1, 0)) if n < 63 else None, (lambda: QK(n + 1, 1)) if n < 63 else None,
              (lambda: PV(n - 1, 0)) if n > 0 else None, (lambda: PV(n - 1, 1)) if n > 0 else None]
        seq = [[("e", 0), ("e", 1), ("e", 2), ("e", 3), ("c", 0)],
               [("e", 4), ("e", 5), ("c", 1), ("e", 6), ("e", 7), ("c", 2)],
               [("e", 8), ("e", 9), ("c", 3), ("e", 10), ("e", 11), ("c", 4)],
               [("e", 12), ("e", 13), ("c", 5), ("e", 14), ("e", 15), ("c", 6), ("c", 7)]]
        for g in range(4):
            for t in pre[g]: t()
            if mm[g]: mm[g]()
            for t in sh[g]: t()
            for k, i in seq[g]: (e if k == "e" else c)(i)
    assert not pend
    a.hot = False
    if OPT["prio_at"]: a(f"s_setprio {OPT['prio_at']}")
    PV(63, 0); PV(63, 1)
    stamp("a2_main")
    a(f"v_mov_b32 v{T+2}, 49152\nv_mov_b32 v{T+3}, 0")
    a.lg(f"ds_write_b32 v{T+2}, v{T+3}")
    for i in range(4): owrite(2, i)
    a.wait_all(vm=False); a("s_barrier")
    stamp("a2_cbar")
    tk = []
    for x in range(3):
        a(f"s_xor_b32 s{sT0}, s{sW}, {x^3}\ns_mul_i32 s{sT0}, s{sT0}, 12288\nv_add_u32 v{vR}, s{sT0}, v{vL16}")
        tk.append([a.lg(f"ds_read_b128 v[{O+16*x+4*i}:{O+16*x+4*i+3}], v{vR} offset:{x*4096 + 1024*i}") for i in range(4)])
    R = O + 48
    for x in range(3):
        a.wait(lg=tk[x])
        for i in range(0, 16, 2): a(f"v_pk_add_f32 v[{R+i}:{R+i+1}], v[{R+i}:{R+i+1}], v[{O+16*x+i}:{O+16*x+i+1}]")
    a(f"v_mov_b32 v{T+4}, v{R+12}\nv_mov_b32 v{T+5}, v{R+12}\nv_permlane32_swap_b32 v{T+4}, v{T+5}\nv_rcp_f32 v{vA}, v{T+5}")
    scale16(R)
    cvt16(P, R)
    a(f"v_cndmask_b32 v{P+6}, v{P+6}, v{vZERO}, s[{sHI}:{sHI+1}]\nv_cndmask_b32 v{P+7}, v{P+7}, v{vZERO}, s[{sHI}:{sHI+1}]")
    a(f"s_cmp_lg_u32 s{sPUB}, 0\ns_cbranch_scc1 L_A2_done")
    a.vm(f"buffer_store_dwordx4 v[{P}:{P+3}], v{vOo}, s[{sWS}:{sWS+3}], s{sOD} offen sc1")
    a.vm(f"buffer_store_dwordx4 v[{P+4}:{P+7}], v{vOo}, s[{sWS}:{sWS+3}], s{sOD+1} offen sc1")
    a(f"v_pk_mul_f32 v[{T+6}:{T+7}], v[{R}:{R+1}], 0 op_sel_hi:[1,0]")
    for i in range(2, 16, 2): a(f"v_pk_fma_f32 v[{T+6}:{T+7}], v[{R+i}:{R+i+1}], 0, v[{T+6}:{T+7}] op_sel_hi:[1,0,1]")
    a(f"s_mov_b32 s{sT0}, {hx(f2u(2.0**120))}\nv_cmp_nge_f32 vcc, s{sT0}, v{T+5}\nv_cmp_u_f32 s[{sT2}:{sT3}], v{T+6}, v{T+7}\ns_or_b64 vcc, vcc, s[{sT2}:{sT3}]")
    a(f"s_cmp_lg_u32 s{sRETRY}, 0\ns_cbranch_scc1 L_A2_good\ns_cbranch_vccz L_A2_good")
    a(f"v_mov_b32 v{T+3}, 1\nds_write_b32 v{T+2}, v{T+3}\ns_branch L_A2_done")
    a.label("L_A2_good")
    stamp("a2_st")
    a(f"s_mov_b32 s{sPUB}, 1\ns_mov_b64 exec, 1\ns_waitcnt vmcnt(0)")
    a(f"buffer_store_dwordx2 v[{vNO}:{vNO+1}], v{vZERO}, s[{sWS}:{sWS+3}], s{sFL} offen sc1\ns_mov_b64 exec, -1")
    stamp("a2_pub")
    a.label("L_A2_done")
    a.wait_all(vm=False); a("s_barrier")
    a(f"ds_read_b32 v{T+3}, v{T+2}\ns_waitcnt lgkmcnt(0)\nv_readfirstlane_b32 s{sT0}, v{T+3}")
    a(f"s_andn2_b32 s{sT0}, s{sT0}, s{sRETRY}\ns_cmp_lg_u32 s{sT0}, 0\ns_cbranch_scc1 L_A2_fallback")
    stamp_flush()
    a("s_endpgm")
    a.label("L_A2_fallback")
    a(f"s_mov_b32 s{sRETRY}, 1\ns_barrier")
    for x in range(4):
        a(f"v_cndmask_b32 v{Q+8*x+6}, v{Q+8*x+6}, v{vZERO}, s[{sHI}:{sHI+1}]\nv_cndmask_b32 v{Q+8*x+7}, v{Q+8*x+7}, v{vZERO}, s[{sHI}:{sHI+1}]")
        a(f"v_mov_b32 v{MX+x}, 0xff800000")
    a(f"s_mov_b32 s{sK}, 0\ns_mov_b32 s{sT4}, 16")
    a.label("L_A2_fb_loop")
    ld(T, sK, 0, vKV); ld(T + 4, sK, 1024, vKV); a.wait_all()
    for x in range(4):
        mfma(SS, T, Q + 8 * x, first=True); mfma(SS, T + 4, Q + 8 * x + 4)
        rowmax(MX + x, SS, False)
        a("s_nop 7")
    a(f"s_add_u32 s{sK}, s{sK}, 4096\ns_sub_u32 s{sT4}, s{sT4}, 1\ns_cmp_lg_u32 s{sT4}, 0\ns_cbranch_scc1 L_A2_fb_loop")
    a(f"v_lshlrev_b32 v{T+8}, 2, v{vLANE}")
    for x in range(4):
        a(f"s_xor_b32 s{sT0}, s{sW}, {x^3}\ns_lshl_b32 s{sT0}, s{sT0}, 8\ns_lshl_b32 s{sT1}, s{sW}, 10\ns_add_u32 s{sT0}, s{sT0}, s{sT1}")
        a(f"v_add_u32 v{T+9}, s{sT0}, v{T+8}\nds_write_b32 v{T+9}, v{MX+x}")
    a("s_waitcnt lgkmcnt(0)\ns_barrier")
    for x in range(4):
        a(f"s_xor_b32 s{sT0}, s{sW}, {x^3}\ns_lshl_b32 s{sT0}, s{sT0}, 8\nv_add_u32 v{T+9}, s{sT0}, v{T+8}")
        for w2 in range(4): a(f"ds_read_b32 v{T+10+w2}, v{T+9} offset:{1024*w2}")
        a(f"s_waitcnt lgkmcnt(0)\nv_max3_f32 v{MX+x}, v{T+10}, v{T+11}, v{T+12}\nv_max_f32 v{MX+x}, v{MX+x}, v{T+13}")
    a("s_barrier")
    first_loads()
    a.wait_all()
    a("s_nop 7\ns_branch L_A2_setmax")

RES, vWD, vPLN, vGo1, vWr4 = 232, 248, 250, 251, 252
vWd3, vWr3, vCA3, SEL3, CS43, vXo, vSo, vSH, vST, vCW3, TB = 194, 198, 202, 206, 210, 214, 215, 216, 220, 223, 224
sR64, sCT, sRW, sCW, sSO, sG2 = 75, 76, 77, 78, 79, 80
sRB3, sC3, sW3O, sM03, sK3 = 82, 83, 84, 91, 92
sG4, sW4o, sM04, sWOo, sOo, sX1D, sFX1, sFG, sOUTD, sST1D = 4, 11, 18, 19, 20, 21, 22, 23, 24, 25
sGS = 40
NZ = 9
CSB3 = 73728
B3 = {}; B4 = {}

def touch(srd_, soff, n):
    for i in range(n): a(f"s_buffer_load_dword s3, s[{srd_}:{srd_+3}], s{soff} offset:{128*i}")

def throttled(thunks, depth):
    toks = []
    for i, t in enumerate(thunks):
        toks += t()
        if len(toks) > depth: a.wait(vm=toks[:len(toks) - depth])
    return toks

def go_poll(st=True):
    if not OPT["go"]: return
    a(f"s_and_b32 s{sT3}, s2, 255\ns_lshl_b32 s{sT3}, s{sT3}, 7\ns_add_u32 s{sT3}, s{sT3}, {FLG + F_GO*FT}\nv_mov_b32 v{vPO}, s{sT3}")
    poll()
    if st: stamp("b0_go")

def stage_B0():
    a.comment("==== B0: row statistics of x, prefetches, set-up")
    a.label("L_roleB")
    prev_stamp[0] = 0
    a.vmq = []; a.lgq = []
    T = TB; XR = 16
    a(f"s_lshl_b32 s{sT0}, s{sXCD}, 5\ns_add_u32 s{sT0}, s{sT0}, s{sLOC}\ns_lshl_b32 s{sT0}, s{sT0}, 2\ns_add_u32 s{sT0}, s{sT0}, s{sW}")
    a(f"s_mul_i32 s{sT1}, s{sT0}, {2*896}\ns_lshl_b32 s{sT4}, s{sT0}, 5\ns_add_u32 s{sT4}, s{sT4}, {ST0}")
    a(f"v_mul_u32_u24 v{T}, 896, v{vHH}\nv_lshl_add_u32 v{T}, v{vT_}, 4, v{T}\nv_mov_b32 v{T+1}, 0x7fff0000\nv_cmp_gt_u32 vcc, 28, v{vT_}\nv_cndmask_b32 v{T}, v{T+1}, v{T}, vcc")
    a("s_waitcnt lgkmcnt(0)")
    srd(sX, 4, S * D * 2)
    xl = [a.vm(f"buffer_load_dwordx4 v[{XR+4*i}:{XR+4*i+3}], v{T}, s[{sX}:{sX+3}], s{sT1} offen offset:{448*i}") for i in range(2)]
    stamp("b0_karg")
    srd(sDBG, 22, 256); srd(sWS, 24, WS_SIZE); srd(sW2, 14, D * D * 2); srd(sW3, 16, D * F * 2); srd(sW4, 18, D * F * 2); srd(sWO, 8, D * D * 2); srd(sOUT, 20, S * D * 2)
    a(f"v_mov_b32 v{XR+8}, 0\nv_mov_b32 v{XR+10}, 0\nv_lshlrev_b32 v{T+2}, 4, v{vHH}")
    def touches(items, nwg=256):
        a(f"s_and_b32 s{sT0}, s2, 255\nv_lshlrev_b32 v193, 7, v{vLANE}")
        Lj = newlab("tj")
        for w, (sr_, n) in enumerate(items):
            L = newlab("tc")
            if w < 3: a(f"s_cmp_lg_u32 s{sW}, {w}\ns_cbranch_scc1 {L}")
            if sr_ == "code":
                a(f"s_getpc_b64 s[{sWA}:{sWA+1}]")
                a.label("L_pc")
                a(f"s_sub_u32 s{sWA}, s{sWA}, L_pc-{NAME}_kernel\ns_subb_u32 s{sWA+1}, s{sWA+1}, 0\ns_mov_b32 s{sWA+2}, L_code_end-{NAME}_kernel\ns_mov_b32 s{sWA+3}, 0x20000")
                a(f"s_mov_b32 s{sT0}, s{sLOC}"); sr_ = sWA
            if n <= 16: a("v_and_b32 v193, 0x7ff, v193")
            a(f"s_mul_i32 s{sT0}, s{sT0}, {n*128}\nbuffer_load_dword v192, v193, s[{sr_}:{sr_+3}], s{sT0} offen")
            if w < 3: a(f"s_branch {Lj}"); a.label(L)
        a.label(Lj)
        a.tok += 1; a.vmq.append(a.tok)
    if OPT["pf"] & 1: touches([(sW2, 13), ("code", 12), (sW2, 13), (sW2, 13)])
    if OPT["pf"] & 4: touches([(sW3, 49), (sW4, 49), (sWO, 13), (sWO, 13)])
    a(f"s_mul_i32 s{sT0}, s{sLOC}, 37\ns_lshr_b32 s{sT0}, s{sT0}, 8\ns_mul_i32 s{sT1}, s{sT0}, 7\ns_sub_u32 s{sCT}, s{sLOC}, s{sT1}")
    a(f"s_lshl_b32 s{sR64}, s{sXCD}, 2\ns_add_u32 s{sR64}, s{sR64}, s{sT0}\ns_lshr_b32 s{sRW}, s{sW}, 1\ns_and_b32 s{sCW}, s{sW}, 1")
    vXd = 60
    addr_wdma128(vWD, 64); addr_xdma(vXd, 2, 64)
    a.wait(vm=xl)
    stamp("b0_x")
    if OPT["pf"] & 16: touches([(sW3, 49), (sW4, 49), (sWO, 13), (sW2, 13)])
    no = a.vm(f"buffer_load_dwordx2 v[{vNO}:{vNO+1}], v{vZERO}, s[{sDBG}:{sDBG+3}], 0 offen sc1")
    for i in range(8): a(f"v_dot2c_f32_bf16 v{XR+8}, s{sONES}, v{XR+i}\nv_dot2c_f32_bf16 v{XR+10}, v{XR+i}, v{XR+i}")
    for r in (8, 4, 2, 1):
        for v in (XR + 8, XR + 10): a(f"v_add_f32_dpp v{v}, v{v}, v{v} row_ror:{r} row_mask:0xf bank_mask:0xf")
    for v in (XR + 8, XR + 10): a(f"v_mov_b32 v{v+1}, v{v}")
    for v in (XR + 8, XR + 10): a(f"v_permlane16_swap_b32 v{v}, v{v+1}")
    for v in (XR + 8, XR + 10): a(f"v_add_f32 v{v}, v{v}, v{v+1}")
    ln_stats(XR + 8, XR + 10, T)
    a(f"v_add_f32 v{XR+10}, {hx(f2u(EPS))}, v{XR+10}\nv_rsq_f32 v{XR+10}, v{XR+10}")
    a.wait(vm=no)
    check_nonce()
    a(f"v_mov_b32 v{XR+9}, v{vNO}\nv_mov_b32 v{XR+11}, v{vNO}\ns_mov_b32 exec_lo, 1\ns_mov_b32 exec_hi, 1")
    a(f"buffer_store_dwordx4 v[{XR+8}:{XR+11}], v{T+2}, s[{sWS}:{sWS+3}], s{sT4} offen sc1\ns_mov_b64 exec, -1")
    stamp("b0_rec")
    if OPT["nob"]: stamp_flush(); a("s_endpgm")
    if OPT["l2w3"]:
        nl = OPT["l2w3"]; rounds = (98 + nl - 1) // nl
        a(f"s_lshl_b32 s{sT0}, s{sLOC}, 2\ns_add_u32 s{sT0}, s{sT0}, s{sW}\ns_mul_i32 s{sT0}, s{sT0}, {98*128}\nv_min_u32 v193, {nl-1}, v{vLANE}\nv_lshlrev_b32 v193, 7, v193")
        for r in range(rounds):
            a(f"buffer_load_dword v192, v193, s[{sW3}:{sW3+3}], s{sT0} offen\ns_add_u32 s{sT0}, s{sT0}, {nl*128}\ns_waitcnt vmcnt(0)")
        a.vmq = []
        stamp("b0_l2")
    if OPT["pf"] & 2:
        go_poll(); touches([(sW3, 49), (sW4, 49), (sWO, 13), (sWO, 13)])
    a(f"s_cmp_ge_u32 s{sLOC}, 28\ns_cbranch_scc1 L_helper")
    if OPT["prio_b"]: a(f"s_setprio {OPT['prio_b']}")
    a(f"v_mul_u32_u24 v{vXo}, {PL}, v{vHH}\nv_lshl_add_u32 v{vXo}, v{vT_}, 4, v{vXo}\ns_lshl_b32 s{sT0}, s{sRW}, 9\nv_add_u32 v{vPLN}, s{sT0}, v{vXo}")
    a(f"s_xor_b32 s{sT0}, s{sT0}, 512\nv_add_u32 v{vGo1}, s{sT0}, v{vXo}")
    if OPT["map3"]:
        a(f"s_and_b32 s{sT0}, s{sXCD}, 1\ns_mul_i32 s{sT0}, s{sT0}, 7\ns_add_u32 s{sC3}, s{sT0}, s{sCT}")
        a(f"s_lshr_b32 s{sT0}, s{sXCD}, 1\ns_lshl_b32 s{sT0}, s{sT0}, 2\ns_and_b32 s{sT1}, s{sR64}, 3\ns_add_u32 s{sRB3}, s{sT0}, s{sT1}\ns_lshl_b32 s{sT0}, s{sT1}, 1")
    else:
        a(f"s_cmp_ge_u32 s{sLOC}, 14\ns_cselect_b32 s{sT0}, 1, 0\ns_cselect_b32 s{sT1}, 14, 0\ns_sub_u32 s{sC3}, s{sLOC}, s{sT1}")
        a(f"s_lshl_b32 s{sRB3}, s{sXCD}, 1\ns_add_u32 s{sRB3}, s{sRB3}, s{sT0}\ns_mul_i32 s{sT0}, s{sT0}, 3")
    a(f"s_add_u32 s{sT0}, s{sT0}, s{sCT}\ns_sub_u32 s{sT1}, s{sT0}, 7\ns_cselect_b32 s{sT0}, s{sT0}, s{sT1}")
    rot7(sK3, sT0)
    a(f"s_and_b32 s{sT0}, s{sR64}, 3\ns_lshl_b32 s{sT0}, s{sT0}, 1\ns_add_u32 s{sT0}, s{sT0}, s{sCT}\ns_sub_u32 s{sT1}, s{sT0}, 7\ns_cselect_b32 s{sT0}, s{sT0}, s{sT1}")
    rot7(sG4, sT0)
    a(f"s_mul_i32 s{sT1}, s{sW}, {16*3584}\ns_lshl_b32 s{sT2}, s{sC3}, 8\ns_add_u32 s{sT1}, s{sT1}, s{sT2}")
    a(f"s_mul_i32 s{sT0}, s{sW}, {448*896}\ns_lshl_b32 s{sT2}, s{sCT}, 7\ns_add_u32 s{sT0}, s{sT0}, s{sT2}")
    a(f"s_mul_i32 s{sWOo}, s{sW}, {112*896}\ns_add_u32 s{sWOo}, s{sWOo}, s{sT2}")
    a(f"s_lshl_b32 s{sT2}, s{sR64}, 10\ns_mul_i32 s{sT3}, s{sW}, {56*PL}\ns_add_u32 s{sT3}, s{sT3}, s{sT2}\ns_add_u32 s{sT3}, s{sT3}, {G_}")
    a(f"s_mul_i32 s{sOo}, s{sW}, {16*PL}\ns_add_u32 s{sOo}, s{sOo}, s{sT2}\ns_add_u32 s{sOo}, s{sOo}, {O_}")
    a(f"s_lshl_b32 s{sT4}, s{sRB3}, 2\ns_add_u32 s{sT4}, s{sT4}, s{sW}\ns_lshl_b32 s{sSO}, s{sT4}, 8\ns_add_u32 s{sSO}, s{sSO}, {ST1}\ns_lshl_b32 s{sT4}, s{sT4}, 9")
    for c in range(7):
        a(f"s_mul_i32 s{sW3O+c}, s{sK3+c}, {64*3584}\ns_add_u32 s{sW3O+c}, s{sW3O+c}, s{sT1}")
        a(f"s_mul_i32 s{sW4o+c}, s{sG4+c}, {64*896}\ns_add_u32 s{sW4o+c}, s{sW4o+c}, s{sT0}")
        a(f"s_mul_i32 s{sG4+c}, s{sG4+c}, {8*PL}\ns_add_u32 s{sG4+c}, s{sG4+c}, s{sT3}")
        a(f"s_mul_i32 s{sK3+c}, s{sK3+c}, {8*PL}\ns_add_u32 s{sK3+c}, s{sK3+c}, s{sT4}\ns_add_u32 s{sK3+c}, s{sK3+c}, {X1}")
    a(f"s_mul_i32 s{sT1}, s{sC3}, {16*PL}\ns_add_u32 s{sT4}, s{sT4}, s{sT1}\ns_add_u32 s{sT4}, s{sT4}, {G_}")
    for u in range(4): a(f"s_add_u32 s{sT0}, s{sW}, {u}\ns_and_b32 s{sT0}, s{sT0}, 3\ns_mul_i32 s{sT0}, s{sT0}, {4*PL}\ns_add_u32 s{sGS+u}, s{sT0}, s{sT4}")
    a(f"s_lshl_b32 s{sM03}, s{sW}, 12\ns_mul_i32 s{sM04}, s{sW}, {NZ*2048}")
    a(f"s_lshl_b32 s{sT2}, s{sCT}, 1\ns_add_u32 s{sT2}, s{sT2}, s{sCW}\ns_mul_i32 s{sT0}, s{sT2}, {4*PL}\ns_lshl_b32 s{sT1}, s{sR64}, 10")
    a(f"s_add_u32 s{sT0}, s{sT0}, s{sT1}\ns_add_u32 s{sX1D}, s{sT0}, {X1}\ns_lshl_b32 s{sST1D}, s{sT2}, 14\ns_add_u32 s{sST1D}, s{sST1D}, {ST1}")
    a(f"s_lshl_b32 s{sT2}, s{sT2}, 6\ns_lshl_b32 s{sT0}, s{sR64}, 1\ns_add_u32 s{sT0}, s{sT0}, s{sRW}\ns_mul_i32 s{sOUTD}, s{sT0}, {32*896}\ns_add_u32 s{sOUTD}, s{sOUTD}, s{sT2}")
    a(f"s_lshl_b32 s{sT0}, s{sR64}, 3\ns_add_u32 s{sT0}, s{sT0}, s{sCT}\ns_lshl_b32 s{sT0}, s{sT0}, 7\ns_add_u32 s{sFX1}, s{sT0}, {FLG + F_X1*FT}")
    a(f"s_lshl_b32 s{sT0}, s{sRB3}, 4\ns_add_u32 s{sT0}, s{sT0}, s{sC3}\ns_lshl_b32 s{sT0}, s{sT0}, 7\ns_add_u32 s{sFG}, s{sT0}, {FLG + F_G*FT}")
    a(f"s_movk_i32 s{sT3}, 3584")
    addr_wdma256(vWd3, sT3, T)
    addr_wrd256(vWr3, 64, T)
    a(f"s_lshl_b32 s{sT1}, s{sW}, 9\ns_add_u32 s{sT1}, s{sT1}, {CSB3}\nv_lshl_add_u32 v{vCW3}, v{vLANE}, 3, s{sT1}")
    for u in range(4):
        a(f"s_add_u32 s{sT0}, s{sW}, {u}\ns_and_b32 s{sT0}, s{sT0}, 3\ns_lshl_b32 s{sT0}, s{sT0}, 7\ns_add_u32 s{sT0}, s{sT0}, s{sT1}\nv_lshl_add_u32 v{vCA3+u}, v{vHH}, 4, s{sT0}")
    addr_wrd128(vWr4, 4, sCW, sM04, T)
    a(f"v_xor_b32 v{vWr4+1}, 64, v{vWr4}")
    a(f"v_mul_u32_u24 v{vSo}, {7*16384}, v{vHH}\nv_lshl_add_u32 v{vSo}, v{vT_}, 3, v{vSo}")
    a(f"s_lshl_b32 s{sT0}, s{sR64}, 6\ns_lshl_b32 s{sT1}, s{sRW}, 5\ns_add_u32 s{sT0}, s{sT0}, s{sT1}\nv_add_u32 v{T}, s{sT0}, v{vT_}")
    a(f"v_lshlrev_b32 v{vST+2}, 3, v{T}\nv_lshlrev_b32 v{T+4}, 4, v{T}")
    a(f"v_mul_u32_u24 v{T+1}, {PL}, v{vHH}\nv_mov_b32 v{T+3}, 0x7fff0000\ns_movk_i32 s{sT2}, 2048")
    a(f"s_add_u32 s{sT0}, s{sCW}, 1")
    for g, op in enumerate(("v_subrev_u32", "v_add_u32")):
        a(f"{op} v{T+2}, s{sT0}, v{T}\nv_cmp_gt_u32 vcc, s{sT2}, v{T+2}\nv_lshl_add_u32 v{vSH+g}, v{T+2}, 4, v{T+1}\nv_cndmask_b32 v{vSH+g}, v{T+3}, v{vSH+g}, vcc")
    if not OPT["pf"] & 2: go_poll()
    a(f"s_lshl_b32 s{sT0}, s{sR64}, 2\ns_add_u32 s{sT0}, s{sT0}, s{sW}\ns_mul_i32 s{sT0}, s{sT0}, {16*896}\ns_lshl_b32 s{sT1}, s{sCT}, 7\ns_add_u32 s{sT0}, s{sT0}, s{sT1}")
    a(f"s_lshl_b32 s{sT2}, s{sW}, 11"); set_m0(sT2, 57344)
    for q in range(2): a.vm(f"buffer_load_dwordx4 v{vXd+q}, s[{sX}:{sX+3}], s{sT0} offen offset:{1024*q} lds")
    a(f"s_mul_i32 s{sT0}, s{sW}, {112*896}\ns_add_u32 s{sT0}, s{sT0}, s{sT1}\ns_mul_i32 s{sT1}, s{sW}, 14336")
    a(f"s_and_b32 s{sT2}, s{sR64}, 3\ns_lshl_b32 s{sT2}, s{sT2}, 1")
    def w2q(q):
        a(f"s_mul_i32 s{sT4}, s{sT2}, {16*896}\ns_add_u32 s{sT4}, s{sT4}, s{sT0}\ns_lshl_b32 s{sT5}, s{sT2}, 11\ns_add_u32 m0, s{sT5}, s{sT1}")
        tk = [a.vm(f"buffer_load_dwordx4 v{vWD+j}, s[{sW2}:{sW2+3}], s{sT4} offen offset:{1024*j} lds") for j in range(2)]
        if q < 6: a(f"s_add_u32 s{sT2}, s{sT2}, 1\ns_cmp_eq_u32 s{sT2}, 7\ns_cselect_b32 s{sT2}, 0, s{sT2}")
        return tk
    throttled([lambda q=q: w2q(q) for q in range(7)], OPT["thr"])
    REC = 160
    a(f"s_mov_b32 s{sT4}, {ST0}")
    check_record(REC, T + 4, sT4, loaded=False)
    a("s_barrier")
    stamp("b0_w2")
    if OPT["pf"] & 8: touches([(sW3, 56), (sW4, 56), (sWO, 14), (sWO, 14)], 224)
    ACC, W2F, XV, vWr = 16, 48, 164, 172
    a(f"s_mul_i32 s{sT3}, s{sCW}, 28672")
    addr_wrd128(vWr, 4, sCW, sT3, T)
    a(f"v_xor_b32 v{vWr+1}, 64, v{vWr}")
    a(f"v_bfe_u32 v{T}, v{vT_}, 1, 3\ns_lshl_b32 s{sT0}, s{sCW}, 2\nv_xor_b32 v{T}, s{sT0}, v{T}\nv_lshlrev_b32 v{T}, 4, v{T}")
    a(f"v_lshl_add_u32 v{T}, v{vT_}, 7, v{T}\nv_lshl_add_u32 v{T}, v{vHH}, 3, v{T}\ns_lshl_b32 s{sT0}, s{sRW}, 12\nv_add_u32 v{T}, s{sT0}, v{T}")
    for i in range(4):
        a(f"v_xor_b32 v{T+1}, {16*i}, v{T}")
        a.lg(f"ds_read_b64 v[{XV+2*i}:{XV+2*i+1}], v{T+1} offset:57344")
    for s in range(14):
        for b in range(2):
            for jj in range(2): a.lg(f"ds_read_b64_tr_b16 v[{W2F+8*s+4*b+2*jj}:{W2F+8*s+4*b+2*jj+1}], v{vWr+b} offset:{s*2048 + jj*1024}")
            if len(a.lgq) > 12: a.wait(lg=a.lgq[-11])
    a.wait_all(vm=False); a("s_barrier")
    m0 = [None]
    def issue_w(c, qs=range(4)):
        if m0[0] != c: set_m0(sM03, (c % 5) * 16384); m0[0] = c
        return [a.vm(f"buffer_load_dwordx4 v{vWd3+q}, s[{sW3}:{sW3+3}], s{sW3O+c} offen offset:{1024*q} lds") for q in qs]
    B3["issue_w"] = issue_w; B3["wt"] = {}
    def w3c(c, q):
        t = issue_w(c, (q,)); B3["wt"].setdefault(c, []).extend(t); return t
    B3["pieces"] = [lambda c=c, q=q: w3c(c, q) for c in range(5) for q in range(4)]
    if OPT["w3a"] and OPT["w3t"]:
        a(f"s_lshr_b32 s{sT0}, s{sXCD}, 1\ns_lshl_b32 s{sT0}, s{sT0}, 2\ns_lshr_b32 s{sT1}, s{sLOC}, 3\ns_add_u32 s{sT0}, s{sT0}, s{sT1}\ns_lshl_b32 s{sT0}, s{sT0}, 4")
        a(f"s_and_b32 s{sT1}, s{sXCD}, 1\ns_lshl_b32 s{sT1}, s{sT1}, 3\ns_add_u32 s{sT0}, s{sT0}, s{sT1}\ns_and_b32 s{sT1}, s{sLOC}, 7\ns_add_u32 s{sT0}, s{sT0}, s{sT1}")
        a(f"s_lshl_b32 s{sT0}, s{sT0}, 7\ns_add_u32 s{sT0}, s{sT0}, {FLG + F_QKV*FT}\nv_mov_b32 v{vPO}, s{sT0}")
        poll()
        stamp("b0_ap")
    for t in B3["pieces"][:OPT["w3a"]]: t()
    for i in range(8):
        a(f"v_lshlrev_b32 v{RES+2*i}, 16, v{XV+i}\nv_and_b32 v{RES+2*i+1}, 0xffff0000, v{XV+i}")
    a(f"v_mov_b32 v{vA}, v{REC+2}\nv_mul_f32 v{vB}, v{REC}, v{REC+2}\nv_sub_f32 v{vB}, 0, v{vB}")
    for i in range(0, 16, 2):
        a(f"v_pk_fma_f32 v[{ACC+i}:{ACC+i+1}], v[{RES+i}:{RES+i+1}], v[{vA}:{vA+1}], v[{vB}:{vB+1}] op_sel_hi:[1,0,0]")

def helper():
    a.label("L_helper")
    a.vmq = []; a.lgq = []
    prev_stamp[0] = stamp_names.get("b0_rec")
    if OPT["prio_h"]: a(f"s_setprio {OPT['prio_h']}")
    T = TB
    a(f"s_lshr_b32 s{sT0}, s{sXCD}, 1\ns_lshl_b32 s{sT0}, s{sT0}, 2\ns_add_u32 s{sT0}, s{sT0}, 3\ns_lshl_b32 s{sT0}, s{sT0}, 4")
    a(f"s_and_b32 s{sT1}, s{sXCD}, 1\ns_lshl_b32 s{sT1}, s{sT1}, 3\ns_add_u32 s{sT0}, s{sT0}, s{sT1}\ns_and_b32 s{sT1}, s{sLOC}, 7\ns_add_u32 s{sT0}, s{sT0}, s{sT1}")
    a(f"s_lshl_b32 s{sT0}, s{sT0}, 7\ns_add_u32 s{sT0}, s{sT0}, {FLG + F_QKV*FT}\nv_mov_b32 v{vPO}, s{sT0}")
    if OPT["hwait"] == 1: poll()
    if OPT["hwait"] == 2: go_poll(False)
    stamp("h_go")
    sB = sT4; LD, SUM = 16, 80
    a(f"s_and_b32 s{sB}, s2, 255\ns_sub_u32 s{sB}, s{sB}, 224\ns_cmp_ge_u32 s{sB}, 28\ns_cbranch_scc1 L_nocs")
    a(f"s_mul_i32 s{sT0}, s{sW}, {112*3584}\ns_lshl_b32 s{sT1}, s{sB}, 7\ns_add_u32 s{sT0}, s{sT0}, s{sT1}")
    a(f"v_lshrrev_b32 v{T}, 3, v{vLANE}\nv_mul_u32_u24 v{T}, 3584, v{T}\nv_and_b32 v{T+1}, 7, v{vLANE}\nv_lshl_add_u32 v{T}, v{T+1}, 4, v{T}")
    tk = []
    for i in range(14):
        tk.append(a.vm(f"buffer_load_dwordx4 v[{LD+4*i}:{LD+4*i+3}], v{T}, s[{sW3}:{sW3+3}], s{sT0} offen"))
        if i < 13: a(f"s_add_u32 s{sT0}, s{sT0}, {8*3584}")
        if i >= OPT["hthr"]: a.wait(vm=tk[i - OPT["hthr"]])
    for k in range(8): a(f"v_mov_b32 v{SUM+k}, 0")
    for i in range(14):
        a.wait(vm=tk[i])
        for k in range(4):
            a(f"v_lshlrev_b32 v{T+2}, 16, v{LD+4*i+k}\nv_and_b32 v{T+3}, 0xffff0000, v{LD+4*i+k}\nv_pk_add_f32 v[{SUM+2*k}:{SUM+2*k+1}], v[{SUM+2*k}:{SUM+2*k+1}], v[{T+2}:{T+3}]")
    stamp("h_ld")
    for k in range(8): a(f"v_add_f32_dpp v{SUM+k}, v{SUM+k}, v{SUM+k} row_ror:8 row_mask:0xf bank_mask:0xf")
    for op in ("v_permlane16_swap_b32", "v_permlane32_swap_b32"):
        for k in range(8): a(f"v_mov_b32 v{SUM+8+k}, v{SUM+k}")
        for k in range(8): a(f"{op} v{SUM+k}, v{SUM+8+k}")
        for k in range(8): a(f"v_add_f32 v{SUM+k}, v{SUM+k}, v{SUM+8+k}")
    a(f"s_lshl_b32 s{sT0}, s{sW}, 8\nv_lshlrev_b32 v{T+1}, 5, v{T+1}\nv_add_u32 v{T+2}, s{sT0}, v{T+1}")
    a(f"ds_write_b128 v{T+2}, v[{SUM}:{SUM+3}]\nds_write_b128 v{T+2}, v[{SUM+4}:{SUM+7}] offset:16\ns_waitcnt lgkmcnt(0)\ns_barrier")
    a(f"v_lshlrev_b32 v{T+2}, 2, v{vLANE}")
    for w2 in range(4): a(f"ds_read_b32 v{SUM+w2}, v{T+2} offset:{256*w2}")
    a(f"s_waitcnt lgkmcnt(0)\nv_add_f32 v{SUM}, v{SUM}, v{SUM+1}\nv_add_f32 v{SUM+2}, v{SUM+2}, v{SUM+3}\nv_add_f32 v{SUM}, v{SUM}, v{SUM+2}")
    a(f"s_lshl_b32 s{sT0}, s{sB}, 8\ns_add_u32 s{sT0}, s{sT0}, {CS3}\ns_lshl_b32 s{sT1}, s{sB}, 7\ns_add_u32 s{sT1}, s{sT1}, {FLG + F_CS*FT}")
    a(f"s_cmp_lg_u32 s{sW}, 0\ns_cbranch_scc1 L_nocs")
    a(f"buffer_store_dword v{SUM}, v{T+2}, s[{sWS}:{sWS+3}], s{sT0} offen sc1\ns_waitcnt vmcnt(0)")
    publish(sT1, barrier=False)
    a.label("L_nocs")
    a.vmq = []
    stamp("h_cs")
    if OPT["l2w4"]:
        nl = OPT["l2w4"]
        a(f"s_sub_u32 s{sT1}, s{sLOC}, 28\ns_lshl_b32 s{sT1}, s{sT1}, 2\ns_add_u32 s{sT1}, s{sT1}, s{sW}\nv_min_u32 v193, {nl-1}, v{vLANE}\nv_lshlrev_b32 v193, 7, v193")
        for sr_, lines in ((sW4, 784), (sWO, 196)):
            L = newlab("pf"); R = (lines + nl - 1) // nl
            a(f"s_mul_i32 s{sT3}, s{sT1}, {lines*128}\ns_mul_i32 s{sT4}, s{sXCD}, {R}\ns_lshr_b32 s{sT4}, s{sT4}, 3\ns_mov_b32 s{sT2}, {R}")
            a.label(L)
            a(f"s_mul_i32 s{sT0}, s{sT4}, {nl*128}\ns_add_u32 s{sT0}, s{sT0}, s{sT3}")
            a(f"buffer_load_dword v192, v193, s[{sr_}:{sr_+3}], s{sT0} offen\ns_add_u32 s{sT4}, s{sT4}, 1\ns_cmp_eq_u32 s{sT4}, {R}\ns_cselect_b32 s{sT4}, 0, s{sT4}\ns_waitcnt vmcnt(0)")
            a(f"s_sub_u32 s{sT2}, s{sT2}, 1\ns_cmp_lg_u32 s{sT2}, 0\ns_cbranch_scc1 {L}")
    stamp("h_w4"); stamp_flush()
    if OPT["clr"]:
        a(f"s_and_b32 s{sT0}, s2, 255\ns_cmp_lg_u32 s{sT0}, 255\ns_cbranch_scc1 L_end")
        a(f"s_lshl_b32 s{sT0}, s{sW}, 13\ns_add_u32 s{sT0}, s{sT0}, {FLG + F_O*FT}\nv_lshl_add_u32 v{vPO}, v{vLANE}, 7, s{sT0}")
        poll(sleep=32)
        a(f"s_barrier\ns_cmp_lg_u32 s{sW}, 0\ns_cbranch_scc1 L_end\nv_mov_b32 v{vP0}, 0\nv_mov_b32 v{vP0+1}, 0\ns_mov_b64 exec, 1")
        a(f"buffer_store_dwordx2 v[{vP0}:{vP0+1}], v{vZERO}, s[{sDBG}:{sDBG+3}], 0 offen sc1")
    a("s_endpgm")

def stage_B2():
    a.comment("==== B2: x1 = xn + shift(h) @ w2, 64 x 64 tile")
    ACC, W2F, HF, NH = 16, 48, 160, 8
    T = TB
    a(f"s_lshr_b32 s{sT0}, s{sR64}, 1\ns_and_b32 s{sT1}, s{sR64}, 1\ns_lshl_b32 s{sT1}, s{sT1}, 1\ns_add_u32 s{sT1}, s{sT1}, s{sT0}\ns_sub_u32 s{sT1}, s{sT1}, 1")
    a(f"s_max_i32 s{sT1}, s{sT1}, 0\ns_min_i32 s{sT1}, s{sT1}, 15\ns_lshl_b32 s{sT2}, s{sCW}, 8\ns_add_u32 s{sT2}, s{sT2}, {FLG + F_QKV*FT + 12*128}")
    a(f"v_mov_b32 v{T}, s{sT0}\nv_mov_b32 v{T+1}, s{sT1}\nv_cmp_gt_u32 vcc, 2, v{vLANE}\nv_cndmask_b32 v{T}, v{T+1}, v{T}, vcc")
    a(f"v_and_b32 v{T+1}, 1, v{vLANE}\nv_lshl_add_u32 v{T}, v{T}, 4, v{T+1}\nv_lshlrev_b32 v{T}, 7, v{T}\nv_add_u32 v{vPO}, s{sT2}, v{T}")
    a(f"s_mul_i32 s{sT0}, s{sCW}, {28*PL}\ns_add_u32 s{sT0}, s{sT0}, {H_}\ns_add_u32 s{sT1}, s{sX1D}, {2*PL}")
    vW, vR = vSH + 2, vSH + 3
    a(f"s_lshl_b32 s{sT2}, s{sW}, 12\ns_add_u32 s{sT2}, s{sT2}, 65536\nv_add_u32 v{vW}, s{sT2}, v{vL16}\nv_xor_b32 v{vR}, 4096, v{vW}")
    stamp("b2_ready")
    poll()
    stamp("b2_poll")
    ht = []
    def hload():
        ks = len(ht); r = HF + 4 * (ks % NH)
        ht.append(a.vm(f"buffer_load_dwordx4 v[{r}:{r+3}], v{vSH + ks//7}, s[{sWS}:{sWS+3}], s{sT0} offen sc1"))
        if ks < 13: a(f"s_add_u32 s{sT0}, s{sT0}, {2*PL}")
    for ks in range(NH): hload()
    a(f"s_lshl_b32 s{sT2}, s{sRB3}, 1\ns_add_u32 s{sT2}, s{sT2}, s{sRW}\ns_lshl_b32 s{sT2}, s{sT2}, 10\ns_add_u32 s{sT2}, s{sT2}, {FLG + F_X1*FT}")
    a(f"v_min_u32 v{T}, 6, v{vLANE}\nv_lshl_add_u32 v{vPO}, v{T}, 7, s{sT2}")
    for s in range(14):
        a.wait(vm=ht[s])
        if s == 0: stamp("b2_h0")
        mfma(ACC + 16, W2F + 8 * s + 4, HF + 4 * (s % NH), first=(s == 0))
        mfma(ACC, W2F + 8 * s, HF + 4 * (s % NH))
        if len(ht) < 14: hload()
    stamp("b2_main")
    for i in range(4): a.lg(f"ds_write_b128 v{vW}, v[{ACC+16+4*i}:{ACC+16+4*i+3}] offset:{1024*i}")
    a.wait_all(vm=False); a("s_barrier")
    tk = [a.lg(f"ds_read_b128 v[{ACC+16+4*i}:{ACC+16+4*i+3}], v{vR} offset:{1024*i}") for i in range(4)]
    for i in range(4):
        a.wait(lg=tk[i])
        for k in (0, 2): a(f"v_pk_add_f32 v[{ACC+4*i+k}:{ACC+4*i+k+1}], v[{ACC+4*i+k}:{ACC+4*i+k+1}], v[{ACC+16+4*i+k}:{ACC+16+4*i+k+1}]")
    PK = 48; sts = []
    cvt16(PK, ACC)
    for p in range(2):
        a(f"v_permlane32_swap_b32 v{PK+4*p}, v{PK+4*p+2}\nv_permlane32_swap_b32 v{PK+4*p+1}, v{PK+4*p+3}")
        sts.append(a.vm(f"buffer_store_dwordx4 v[{PK+4*p}:{PK+4*p+3}], v{vPLN}, s[{sWS}:{sWS+3}], s{sT1 if p else sX1D} offen sc1"))
    a(f"v_pk_add_f32 v[{T}:{T+1}], v[{ACC}:{ACC+1}], v[{ACC+2}:{ACC+3}]\nv_pk_mul_f32 v[{T+2}:{T+3}], v[{ACC}:{ACC+1}], v[{ACC}:{ACC+1}]")
    a(f"v_pk_fma_f32 v[{T+2}:{T+3}], v[{ACC+2}:{ACC+3}], v[{ACC+2}:{ACC+3}], v[{T+2}:{T+3}]")
    for i in range(4, 16, 2):
        a(f"v_pk_add_f32 v[{T}:{T+1}], v[{T}:{T+1}], v[{ACC+i}:{ACC+i+1}]\nv_pk_fma_f32 v[{T+2}:{T+3}], v[{ACC+i}:{ACC+i+1}], v[{ACC+i}:{ACC+i+1}], v[{T+2}:{T+3}]")
    a(f"v_add_f32 v{T}, v{T}, v{T+1}\nv_add_f32 v{T+2}, v{T+2}, v{T+3}\nv_mov_b32 v{T+1}, v{T}\nv_mov_b32 v{T+3}, v{T+2}")
    a(f"v_permlane32_swap_b32 v{T}, v{T+1}\nv_permlane32_swap_b32 v{T+2}, v{T+3}\nv_add_f32 v{vST}, v{T}, v{T+1}\nv_add_f32 v{vST+1}, v{T+2}, v{T+3}")
    sts.append(a.vm(f"buffer_store_dwordx2 v[{vST}:{vST+1}], v{vST+2}, s[{sWS}:{sWS+3}], s{sST1D} offen sc1"))
    for i in range(0, 16, 2): a(f"v_pk_add_f32 v[{RES+i}:{RES+i+1}], v[{RES+i}:{RES+i+1}], v[{ACC+i}:{ACC+i+1}]")
    stamp("b2_st")
    n0 = OPT["w3a"]; n1 = max(n0, OPT["w3b"])
    for t in B3["pieces"][n0:n1]: t()
    a.wait(vm=sts); a("s_barrier")
    publish(sFX1, barrier=False)
    stamp("b2_pub")
    n2 = max(n1, OPT["w3c"])
    for t in B3["pieces"][n1:n2]: t()
    B3["stream"] = B3["pieces"][n2:]

def stage_B3():
    a.comment("==== B3: g = gelu(LN(x1) @ w3), 128 x 128 tile")
    ACC, XF, NX, WF, ST = 16, 80, 16, 144, 176
    T = TB
    poll()
    stamp("b3_poll")
    xt = []
    def xload():
        s = len(xt); c, ks = divmod(s, 4); r = XF + 4 * (s % NX)
        so = sK3 + c
        if ks: a(f"s_add_u32 s{sT0}, s{sK3+c}, {2*ks*PL}"); so = sT0
        xt.append(a.vm(f"buffer_load_dwordx4 v[{r}:{r+3}], v{vXo}, s[{sWS}:{sWS+3}], s{so} offen sc1"))
    for s in range(6): xload()
    stt = []; cst = []; cft = []
    def stat_load():
        i = len(stt)
        if i: a(f"s_add_u32 s{sSO}, s{sSO}, 16384")
        stt.append(a.vm(f"buffer_load_dwordx2 v[{ST+2*i}:{ST+2*i+1}], v{vSo}, s[{sWS}:{sWS+3}], s{sSO} offen sc1"))
    def kstep(s):
        th = []
        n = len(xt)
        for k in range(2):
            if n + k < 28 and n + k < s + NX and n + k <= s + 13: th.append(xload)
        if 16 <= s < 23: th.append(stat_load)
        if s == 14:
            def csflag():
                a(f"s_lshl_b32 s{sT0}, s{sC3}, 8\ns_add_u32 s{sT0}, s{sT0}, {FLG + F_CS*FT}\nv_and_b32 v{vPO}, 1, v{vLANE}\nv_lshl_add_u32 v{vPO}, v{vPO}, 7, s{sT0}")
                cft.append(a.vm(f"buffer_load_dwordx2 v[{vP0}:{vP0+1}], v{vPO}, s[{sWS}:{sWS+3}], 0 offen sc1"))
            th.append(csflag)
        if s == 19:
            def csload():
                L = newlab("cc")
                a.wait(vm=cft); q = list(a.vmq)
                a(f"v_cmp_ne_u64 vcc, v[{vP0}:{vP0+1}], v[{vNO}:{vNO+1}]\ns_cbranch_vccz {L}")
                poll(); a.label(L); a.vmq = q
                a(f"s_lshl_b32 s{sT0}, s{sC3}, 9\ns_add_u32 s{sT0}, s{sT0}, {CS3}\nv_lshlrev_b32 v{SEL3}, 3, v{vLANE}")
                cst.append(a.vm(f"buffer_load_dwordx2 v[{CS43}:{CS43+1}], v{SEL3}, s[{sWS}:{sWS+3}], s{sT0} offen sc1"))
            th.append(csload)
        if s == 25:
            def cswrite():
                a.wait(vm=cst); a.lg(f"ds_write_b64 v{vCW3}, v[{CS43}:{CS43+1}]")
            th.append(cswrite)
        return th
    hooks = dict(before_barrier=lambda c: None, after_barrier=lambda c: [], lg_need=lambda s: [], vm_need=lambda s: [xt[s]], kstep=kstep)
    PAD[0] = OPT["pad3"]
    panel_mainloop("b3", ACC, WF, vWr3, 5, lambda s: XF + 4 * (s % NX), B3["issue_w"], B3["wt"], hooks, None, None, stream=B3["stream"])
    PAD[0] = 0
    stamp("b3_main")
    CS, GT, PK = 80, 144, 160
    toks = [read_cs(CS + 16 * u, vCA3 + u) for u in range(3)]
    a.wait(vm=stt)
    for i in (2, 4): a(f"v_pk_add_f32 v[{ST}:{ST+1}], v[{ST}:{ST+1}], v[{ST+i}:{ST+i+1}]\nv_pk_add_f32 v[{ST+6}:{ST+7}], v[{ST+6}:{ST+7}], v[{ST+6+i}:{ST+7+i}]")
    a(f"v_pk_add_f32 v[{ST}:{ST+1}], v[{ST}:{ST+1}], v[{ST+12}:{ST+13}]\nv_pk_add_f32 v[{ST}:{ST+1}], v[{ST}:{ST+1}], v[{ST+6}:{ST+7}]")
    a(f"v_mov_b32 v{ST+2}, v{ST}\nv_mov_b32 v{ST+3}, v{ST+1}\nv_permlane32_swap_b32 v{ST}, v{ST+2}\nv_permlane32_swap_b32 v{ST+1}, v{ST+3}")
    a(f"v_pk_add_f32 v[{ST}:{ST+1}], v[{ST}:{ST+1}], v[{ST+2}:{ST+3}]")
    ln_stats(ST, ST + 1, T)
    a(f"v_add_f32 v{ST+1}, {hx(f2u(EPS))}, v{ST+1}\nv_rsq_f32 v{vA}, v{ST+1}\nv_sub_f32 v{vB}, 0, v{ST}")
    gelu_consts(ST + 2, vA)
    a.wait(lg=toks[0])
    toks.append(read_cs(CS + 48, vCA3 + 3))
    stamp("b3_csbar")
    def issue_w4(j):
        set_m0(sM04, (j % NZ) * 2048)
        if j < 28:
            c, ks = divmod(j, 4); srd_, base, add = sW4, sW4o + c, ks * 16 * 896
        else:
            hd, m = divmod(j - 28, 2); srd_, base, add = sWO, sWOo, (28 * hd + 16 * m) * 896
        so = base
        if add: a(f"s_add_u32 s{sT5}, s{base}, {add}"); so = sT5
        return [a.vm(f"buffer_load_dwordx4 v{vWD+q}, s[{srd_}:{srd_+3}], s{so} offen offset:{1024*q} lds") for q in range(2)]
    B4["issue_w"] = issue_w4; B4["wt"] = {}
    cnt = [0]
    def hook():
        cnt[0] += 1
        j = len(B4["wt"])
        if cnt[0] == 1: a("s_barrier")
        if j < NZ and cnt[0] % 2 == 0: B4["wt"][j] = issue_w4(j)
    for u in range(4):
        a.wait(lg=toks[u]); shift16(ACC + 16 * u, CS + 16 * u)
        gelu16(ACC + 16 * u, GT, ST + 2, hook)
        pk = PK + 8 * (u & 1)
        cvt16(pk, ACC + 16 * u)
        a(f"s_add_u32 s{sT1}, s{sGS+u}, {2*PL}")
        a.vm(f"buffer_store_dwordx4 v[{pk}:{pk+3}], v{vXo}, s[{sWS}:{sWS+3}], s{sGS+u} offen sc1")
        a.vm(f"buffer_store_dwordx4 v[{pk+4}:{pk+7}], v{vXo}, s[{sWS}:{sWS+3}], s{sT1} offen sc1")
    assert len(B4["wt"]) == NZ
    stamp("b3_epi")
    sts = a.vmq[-2:]
    NRG = OPT["nrg"]; WR = 144
    for j in range(NRG):
        a.wait(vm=B4["wt"][j])
        for b in range(2):
            for jj in range(2):
                r = WR + 8 * j + 4 * b + 2 * jj
                a.lg(f"ds_read_b64_tr_b16 v[{r}:{r+1}], v{vWr4+b} offset:{j*2048 + jj*1024}")
        if len(a.lgq) > 8: a.wait(lg=a.lgq[-5])
        if j == 0:
            for i in range(16): a(f"v_mov_b32 v{ACC+i}, v{RES+i}")
    a(f"s_lshr_b32 s{sT0}, s{sR64}, 1\ns_lshl_b32 s{sT0}, s{sT0}, 4\ns_mul_i32 s{sT1}, s{sW}, 7\ns_lshr_b32 s{sT1}, s{sT1}, 1\ns_add_u32 s{sT1}, s{sT1}, s{sT0}")
    a(f"v_and_b32 v{T}, 3, v{vLANE}\nv_add_u32 v{T+1}, s{sT1}, v{T}\nv_lshlrev_b32 v{T+1}, 7, v{T+1}\nv_add_u32 v{vPO}, {FLG + F_G*FT}, v{T+1}")
    a(f"s_lshl_b32 s{sT1}, s{sW}, 2\ns_add_u32 s{sT1}, s{sT1}, s{sT0}\nv_add_u32 v{T+1}, s{sT1}, v{T}\nv_lshlrev_b32 v{T+1}, 7, v{T+1}\nv_add_u32 v{T+7}, {FLG + F_O*FT}, v{T+1}")
    a(f"s_and_b32 s{sT1}, s{sR64}, 1\ns_lshl_b32 s{sT1}, s{sT1}, 4\nv_bfe_u32 v{T+1}, v{vLANE}, 2, 1\nv_lshl_add_u32 v{T+1}, v{T+1}, 3, s{sT1}\nv_add_u32 v{T+7}, v{T+7}, v{T+1}")
    if not NRG:
        for i in range(16): a(f"v_mov_b32 v{ACC+i}, v{RES+i}")
    a.wait_all(vm=False)
    n1 = min(NRG, OPT["w4b"])
    for j in range(n1): B4["wt"][NZ + j] = issue_w4(NZ + j)
    a.wait(vm=sts); a("s_barrier")
    publish(sFG, barrier=False)
    stamp("b3_pub")
    for j in range(n1, NRG): B4["wt"][NZ + j] = issue_w4(NZ + j)

def stage_B4():
    a.comment("==== B4: out = x + x1 + g @ w4 + o @ wo, 64 x 64 tile, k split over the waves")
    ACC, GF, WR, WF, T = 16, 80, 144, 208, TB
    NRG = OPT["nrg"]
    vGo = [vPLN, vGo1]; vPO2 = T + 7
    wt = B4["wt"]; issue_w = B4["issue_w"]
    rd = {}; gt = {}
    def reads(j):
        rd[j] = []
        if j < NRG: return []
        a.wait(vm=wt[j])
        return [lambda b=b, jj=jj: rd[j].append(a.lg(f"ds_read_b64_tr_b16 v[{WF+8*(j&1)+4*b+2*jj}:{WF+8*(j&1)+4*b+2*jj+1}], v{vWr4+b} offset:{(j%NZ)*2048 + jj*1024}")) for b in range(2) for jj in range(2)]
    def gload(j):
        if j < 28:
            c, ks = divmod(j, 4); base, add = sG4 + c, 2 * ks * PL
        else: base, add = sOo, 2 * (j - 28) * PL
        so = base
        if add: a(f"s_add_u32 s{sT4}, s{base}, {add}"); so = sT4
        r = GF + 8 * (j % 8)
        gt[j] = [a.vm(f"buffer_load_dwordx4 v[{r+4*aa}:{r+4*aa+3}], v{vGo[aa]}, s[{sWS}:{sWS+3}], s{so} offen sc1") for aa in range(2)]
    ot = []
    def ocheck():
        L = newlab("oc"); q = None
        a.wait(vm=ot)
        q = list(a.vmq)
        a(f"v_cmp_ne_u64 vcc, v[{vP0}:{vP0+1}], v[{vNO}:{vNO+1}]\ns_cbranch_vccz {L}\nv_mov_b32 v{vPO}, v{vPO2}")
        poll()
        a.label(L)
        a.vmq = q
        stamp("b4_opoll")
    for t in reads(0): t()
    poll()
    stamp("b4_poll")
    for j in range(4): gload(j)
    PAD[0] = OPT["pad4"]
    for j in range(36):
        if j == 28: stamp("b4_g")
        a.wait(vm=gt[j], lg=rd[j])
        if j in (0, 14): stamp(f"b4_j{j}")
        rds = reads(j + 1) if j + 1 < 36 else []
        late = []
        n = len(gt)
        jo = 28 - OPT["olead"]
        if j == jo - 3 and not OPT["noattn"]:
            late.append(lambda: ot.append(a.vm(f"buffer_load_dwordx2 v[{vP0}:{vP0+1}], v{vPO2}, s[{sWS}:{sWS+3}], 0 offen sc1")))
        if j == jo - 1 and not OPT["noattn"]: late.append(ocheck)
        for k in range(2):
            if n + k < 36 and n + k <= j + 7 and (n + k < 28 or j >= jo): late.append(lambda k=n + k: gload(k))
        if j + NZ < 36 and j >= NRG: late.append(lambda j=j: wt.__setitem__(j + NZ, issue_w(j + NZ)))
        g = GF + 8 * (j % 8); w = WF + 8 * (j & 1) if j >= NRG else WR + 8 * j
        for u in range(4):
            aa, b = divmod(u, 2)
            mfma(ACC + 16 * u, w + 4 * b, g + 4 * aa, first=(j == 0 and u > 0))
            if u == 0:
                for t in rds: t()
            elif late: late.pop(0)()
        for t in late: t()
    PAD[0] = 0
    stamp("b4_o")
    vW, vR = T, T + 1
    a(f"v_add_u32 v{vW}, s{sM04}, v{vL16}\nv_mul_u32_u24 v{T+2}, 896, v{vT_}\nv_lshl_add_u32 v{T+2}, v{vHH}, 4, v{T+2}")
    for u in range(1, 4):
        for i in range(4): a.lg(f"ds_write_b128 v{vW}, v[{ACC+16*u+4*i}:{ACC+16*u+4*i+3}] offset:{(u-1)*4096 + 1024*i}")
    a.wait_all(vm=False); a("s_barrier")
    stamp("b4_rbar")
    tk = []
    for u in range(1, 4):
        a(f"s_xor_b32 s{sT0}, s{sW}, {u}\ns_mul_i32 s{sT0}, s{sT0}, {NZ*2048}\nv_add_u32 v{vR}, s{sT0}, v{vL16}")
        tk.append([a.lg(f"ds_read_b128 v[{ACC+16*u+4*i}:{ACC+16*u+4*i+3}], v{vR} offset:{(u-1)*4096 + 1024*i}") for i in range(4)])
    for u in range(1, 4):
        a.wait(lg=tk[u - 1])
        for i in range(0, 16, 2): a(f"v_pk_add_f32 v[{ACC+i}:{ACC+i+1}], v[{ACC+i}:{ACC+i+1}], v[{ACC+16*u+i}:{ACC+16*u+i+1}]")
    PK = GF
    cvt16(PK, ACC)
    for p in range(2):
        a(f"v_permlane32_swap_b32 v{PK+4*p}, v{PK+4*p+2}\nv_permlane32_swap_b32 v{PK+4*p+1}, v{PK+4*p+3}")
        a.vm(f"buffer_store_dwordx4 v[{PK+4*p}:{PK+4*p+3}], v{T+2}, s[{sOUT}:{sOUT+3}], s{sOUTD} offen offset:{32*p}" + ["", " sc1", " nt", " sc0 sc1"][OPT["outsc"]])
    stamp("b4_end"); stamp_flush()

HEAD = f"""; parallel sum of an attention block and a spatial-shift MLP mixer.  One persistent launch, two workgroups per CU:
; @launch grid=(512,1,1) block=(256,1,1) lds={LDS_BYTES}
.amdgcn_target "amdgcn-amd-amdhsa--gfx950"
.text
.globl {NAME}_kernel
.p2align 8
.type {NAME}_kernel,@function
{NAME}_kernel:
"""
TAIL = f""".section .rodata,"a"
.p2align 6
.amdhsa_kernel {NAME}_kernel
  .amdhsa_next_free_vgpr 256
  .amdhsa_next_free_sgpr 102
  .amdhsa_accum_offset 256
  .amdhsa_group_segment_fixed_size 0
  .amdhsa_kernarg_size 88
  .amdhsa_user_sgpr_count 2
  .amdhsa_user_sgpr_kernarg_segment_ptr 1
  .amdhsa_system_sgpr_workgroup_id_x 1
.end_amdhsa_kernel
"""

def build():
    prologue()
    stage_A1()
    if OPT["noattn"]: stamp_flush(); a("s_endpgm")
    else: stage_A2()
    stage_B0()
    stage_B2()
    stage_B3()
    stage_B4()
    a.label("L_end")
    a("s_endpgm")
    helper()
    a.label("L_code_end")
    a.pad_hazards()
    size, nprom, nnop = fix_straddles(a, HEAD, TAIL, verbose=True)
    print(f"code bytes {size}, hazard nops {a.nops_inserted}, promoted {nprom}, straddle nops {nnop}")
    open(sys.argv[1], "w").write(HEAD + a.text() + TAIL + (("; roles: BA\n" if OPT["swap"] else "") + "; stamps: " + ",".join(stamp_names) + "\n" if OPT["stamps"] else ""))

if __name__ == "__main__":
    build()
```

```python
import sys, math, struct
from asmlib import *

NAME = "parallel_sum__mha_block__mixer_s_mlp__prompt"
OPT = dict(stamps=0, spin=400000, prio_b=1, pf=1, outsc=0, noattn=0, nob=0, nr=5, thr=64, go=12, prio_a1=2, prio_at=2, w2late=1, thra=6, swap=1, anf=1, thr3=64, w3a=0, w3b=3, aprio=1, pad3=2, pad4=0, xp=0, defer=0, w3c=20, l2w3=0, l2w4=0, clr=1, map3=1, split=0, prio_h=1, hwait=1, hthr=14, alate=64, aprio2=1, nrg=8, w4b=0, olead=5, dsw=1, a1s=2, w3t=1, dbgst=0)
for a in sys.argv[2:]:
    k, v = a.split("="); OPT[k] = int(v, 0)

def f2u(x): return struct.unpack("<I", struct.pack("<f", x))[0]
def hx(x): return hex(x & 0xffffffff)

S, D, F = 2048, 448, 1792
PL = 32768 + 256
FLG = 0; FT = 0x8000
F_QKV, F_GO, F_X1, F_G, F_O, F_CS = 0, 1, 2, 3, 4, 5
QB_ = 0x40000
KV_ = QB_ + 16 * 64 * 2048
H_ = KV_ + 16 * 64 * 4096
X1 = H_ + 0x1C4000
O_ = X1 + 0x1C4000
G_ = O_ + 0x204000
CS3 = G_ + 0x70E000
ST0 = CS3 + 0x2000
ST1 = ST0 + 0x8000
WS_SIZE = ST1 + 14 * 0x4000
STAMP = 0x1600000
if OPT['stamps']: WS_SIZE = STAMP + 0x80000
LDS_BYTES = 81920
EPS = 1e-5
QSCALE = (28 ** -0.5) * math.log2(math.e)
GA = -2.0 * math.log2(math.e) * math.sqrt(2.0 / math.pi)
GB = GA * 0.044715

sX, sWS, sDBG, sWA, sW2, sW3, sW4, sWO, sOUT = 28, 32, 36, 40, 44, 48, 52, 56, 60
sHI = 26
sW, sXCD, sLOC = 64, 65, 66
sONES = 67
sT0, sT1, sT2, sT3, sT4, sT5 = 68, 69, 70, 71, 72, 73
sCNT = 74
sA0 = 75
vTID, vLANE, vT_, vHH, vZERO = 0, 1, 2, 3, 4
vNO = 6
vP0 = 8
vPO = 10
vL16 = 11
vA, vB = 12, 14

a = Asm()
lab = [0]
def newlab(p):
    lab[0] += 1; return f"L_{p}_{lab[0]}"

def srd(dst, ptr, size):
    a(f"s_mov_b32 s{dst}, s{ptr}\ns_mov_b32 s{dst+1}, s{ptr+1}\ns_mov_b32 s{dst+2}, {hx(size)}\ns_mov_b32 s{dst+3}, 0x20000")

nstamp = [0]
prev_stamp = [None]
stamp_names = {}
def stamp(name, first=False):
    if not OPT["stamps"]: return
    idx = stamp_names.setdefault(name, len(stamp_names))
    assert idx < 64
    if first: a("v_mov_b32 v5, 0")
    elif prev_stamp[0] is not None: a(f"v_writelane_b32 v5, s100, {prev_stamp[0]}")
    a("s_memrealtime s[100:101]" if OPT["stamps"] == 1 else "s_memtime s[100:101]")
    prev_stamp[0] = idx

def stamp_flush():
    if not OPT["stamps"]: return
    if OPT["dbgst"]:
        L = newlab("dbg")
        role = "a" if prev_stamp[0] in [v for k, v in stamp_names.items() if k.startswith("a")] else "b"
        want = {"a": ["a1_c0", "a1_main", "a1_pub", "a2_poll", "a2_start", "a2_main", "a2_pub"], "b": ["b0_rec", "b2_poll", "b2_pub", "b3_poll", "b3_main", "b4_poll", "b4_end"]}[role]
        if not all(w in stamp_names for w in want) or list(stamp_names)[prev_stamp[0]] != want[-1]: return
        a(f"s_waitcnt lgkmcnt(0)\nv_writelane_b32 v5, s100, {prev_stamp[0]}\ns_and_b32 s100, s2, 255\ns_lshl_b32 s100, s100, 2\ns_add_u32 s100, s100, s{sW}\ns_cmp_lg_u32 s100, {OPT['dbgst']*4}\ns_cbranch_scc1 {L}")
        a(f"v_readlane_b32 s100, v5, 0\ns_mov_b64 exec, 1")
        for i, w in enumerate(want):
            a(f"v_readlane_b32 s101, v5, {stamp_names[w]}\ns_sub_u32 s101, s101, s100\nv_mov_b32 v{vP0}, s101\nbuffer_store_dword v{vP0}, v{vZERO}, s[{sDBG}:{sDBG+3}], 0 offen offset:{8 + 4*i + (28 if role == 'b' else 0)}\ns_nop 1")
        a("s_mov_b64 exec, -1")
        a.label(L)
        return
    a(f"s_waitcnt lgkmcnt(0)\nv_writelane_b32 v5, s100, {prev_stamp[0]}")
    a(f"s_lshl_b32 s100, s2, 2\ns_add_u32 s100, s100, s{sW}\ns_lshl_b32 s100, s100, 8\ns_add_u32 s100, s100, {STAMP}")
    a(f"v_lshlrev_b32 v{vP0}, 2, v{vLANE}\nbuffer_store_dword v5, v{vP0}, s[{sWS}:{sWS+3}], s100 offen")

def get_nonce():
    L = newlab("no"); Dn = newlab("nod")
    a(f"s_mov_b32 s{sCNT}, {OPT['spin']}")
    a.label(L)
    a(f"buffer_load_dwordx2 v[{vNO}:{vNO+1}], v{vZERO}, s[{sDBG}:{sDBG+3}], 0 offen sc1")
    a.wait_all(lg=False)
    a(f"v_cmp_eq_u32 vcc, 0, v{vNO}\ns_cbranch_vccz {Dn}\ns_sub_u32 s{sCNT}, s{sCNT}, 1\ns_cbranch_scc1 {Dn}\ns_sleep 1\ns_branch {L}")
    a.label(Dn)

def check_nonce(keep=False):
    Dn = newlab("cn")
    q = list(a.vmq)
    a(f"v_cmp_eq_u32 vcc, 0, v{vNO}\ns_cbranch_vccz {Dn}")
    get_nonce()
    a.label(Dn)
    a.vmq = q

def poll(sleep=1):
    L = newlab("po"); Dn = newlab("pod")
    a(f"s_mov_b32 s{sCNT}, {OPT['spin']}")
    a.label(L)
    a(f"buffer_load_dwordx2 v[{vP0}:{vP0+1}], v{vPO}, s[{sWS}:{sWS+3}], 0 offen sc1")
    a.wait_all(lg=False)
    a(f"v_cmp_ne_u64 vcc, v[{vP0}:{vP0+1}], v[{vNO}:{vNO+1}]\ns_cbranch_vccz {Dn}\ns_sub_u32 s{sCNT}, s{sCNT}, 1\ns_cbranch_scc1 {Dn}\ns_sleep {sleep}\ns_branch {L}")
    a.label(Dn)

def publish(sflag, barrier=True):
    L = newlab("pub")
    if barrier:
        a.wait_all()
        a("s_barrier")
    a(f"s_cmp_lg_u32 s{sW}, 0\ns_cbranch_scc1 {L}\ns_mov_b64 exec, 1")
    a(f"buffer_store_dwordx2 v[{vNO}:{vNO+1}], v{vZERO}, s[{sWS}:{sWS+3}], s{sflag} offen sc1")
    a("s_mov_b64 exec, -1")
    a.label(L)
    a.flag_pending = True

def xhalf_add(v, t1, t2):
    a(f"v_mov_b32 v{t1}, v{v}\nv_mov_b32 v{t2}, v{v}\nv_permlane32_swap_b32 v{t1}, v{t2}\nv_add_f32 v{v}, v{t1}, v{t2}")

def ln_stats(vsum, vsq, t):
    a(f"v_mul_f32 v{vsum}, {hx(f2u(1.0/D))}, v{vsum}\nv_mul_f32 v{vsq}, {hx(f2u(1.0/D))}, v{vsq}")
    a(f"v_fma_f32 v{vsq}, -v{vsum}, v{vsum}, v{vsq}\nv_max_f32 v{vsq}, 0, v{vsq}")

def scale16(acc):
    for i in range(0, 16, 2):
        a(f"v_pk_mul_f32 v[{acc+i}:{acc+i+1}], v[{acc+i}:{acc+i+1}], v[{vA}:{vA+1}] op_sel_hi:[1,0]")
def shift16(acc, cs):
    for i in range(0, 16, 2):
        a(f"v_pk_fma_f32 v[{acc+i}:{acc+i+1}], v[{cs+i}:{cs+i+1}], v[{vB}:{vB+1}], v[{acc+i}:{acc+i+1}] op_sel_hi:[1,0,1]")

def gelu_consts(vC, va):
    a(f"v_mul_f32 v{vC}, {hx(f2u(GA))}, v{va}\nv_mul_f32 v{vC+2}, v{va}, v{va}\nv_rcp_f32 v{vC+4}, v{va}\nv_mul_f32 v{vC+2}, v{vC+2}, v{va}\nv_mul_f32 v{vC+2}, {hx(f2u(GB))}, v{vC+2}")

def gelu16(y, t, vC, hook=lambda: None):
    for i in range(0, 16, 2):
        a(f"v_pk_mul_f32 v[{t+i}:{t+i+1}], v[{y+i}:{y+i+1}], v[{y+i}:{y+i+1}]")
    for i in range(0, 16, 2):
        a(f"v_pk_fma_f32 v[{t+i}:{t+i+1}], v[{t+i}:{t+i+1}], v[{vC+2}:{vC+3}], v[{vC}:{vC+1}] op_sel_hi:[1,0,0]")
    hook()
    for i in range(0, 16, 2):
        a(f"v_pk_mul_f32 v[{t+i}:{t+i+1}], v[{t+i}:{t+i+1}], v[{y+i}:{y+i+1}]")
    for i in range(16):
        a(f"v_exp_f32 v{t+i}, v{t+i}")
        if i == 7: hook()
    for i in range(0, 16, 2):
        a(f"v_pk_fma_f32 v[{t+i}:{t+i+1}], v[{t+i}:{t+i+1}], v[{vC+4}:{vC+5}], v[{vC+4}:{vC+5}] op_sel_hi:[1,0,0]")
    hook()
    for i in range(16):
        a(f"v_rcp_f32 v{t+i}, v{t+i}")
        if i == 9: hook()
    for i in range(0, 16, 2):
        a(f"v_pk_mul_f32 v[{y+i}:{y+i+1}], v[{y+i}:{y+i+1}], v[{t+i}:{t+i+1}]")
    hook()

class Deferred:
    def __init__(self): self.groups = []
    def __enter__(self):
        self.orig = Asm.__call__; d = self
        def cap(asm, text):
            n = len(asm.ins); d.orig(asm, text); d.groups.append(asm.ins[n:]); del asm.ins[n:]
        Asm.__call__ = cap; return self
    def __exit__(self, *e): Asm.__call__ = self.orig
    def drip(self, ninstr):
        while self.groups and ninstr > 0:
            g = self.groups.pop(0); a.ins.extend(g); ninstr -= len(g)
    def flush(self): self.drip(1 << 30)

def cvt16(pk, y):
    for i in range(8): a(f"v_cvt_pk_bf16_f32 v{pk+i}, v{y+2*i}, v{y+2*i+1}")

PAD = [0]
def mfma(d, A, B, first=False):
    if PAD[0] > 0: a(f"s_nop {PAD[0]-1}")
    elif PAD[0] < 0:
        n = 0
        for i in reversed(a.ins):
            if i.kind == "mfma": break
            if not i.is_label: n += i.states * (OPT["dsw"] if i.kind in ("ds", "vmem", "dma") else 1)
            if n >= -PAD[0]: break
        if n < -PAD[0]: a(f"s_nop {-PAD[0]-n-1}")
    c = "0" if first else f"v[{d}:{d+15}]"
    a(f"v_mfma_f32_32x32x16_bf16 v[{d}:{d+15}], v[{A}:{A+3}], v[{B}:{B+3}], {c}")

def interleave(main, fill):
    n = len(main); k = 0
    for i, m in enumerate(main):
        m()
        upto = (len(fill) * (i + 1) + n - 1) // n
        while k < upto: fill[k](); k += 1

def rot7(dst, rot, n=7):
    for c in range(n):
        a(f"s_add_u32 s{dst+c}, s{rot}, {c}\ns_sub_u32 s{sT5}, s{dst+c}, 7\ns_cselect_b32 s{dst+c}, s{dst+c}, s{sT5}")

vGA = 254


def prologue():
    a("s_cmp_ge_u32 s2, 512\ns_cbranch_scc1 L_end")
    a("s_load_dwordx16 s[4:19], s[0:1], 0\ns_load_dwordx4 s[20:23], s[0:1], 64\ns_load_dwordx2 s[24:25], s[0:1], 80")
    a(f"s_memrealtime s[{sTAG}:{sTAG+1}]")
    a(f"v_lshrrev_b32 v8, 6, v0\nv_and_b32 v{vLANE}, 63, v0\nv_readfirstlane_b32 s{sW}, v8")
    a(f"v_and_b32 v{vT_}, 31, v0\nv_bfe_u32 v{vHH}, v0, 5, 1\nv_mov_b32 v{vZERO}, 0\nv_lshlrev_b32 v{vL16}, 4, v{vLANE}")
    a(f"s_mov_b32 s{sHI}, 0\ns_mov_b32 s{sHI+1}, -1\ns_mov_b32 s{sONES}, 0x3f803f80")
    a(f"s_and_b32 s{sXCD}, s2, 7\ns_bfe_u32 s{sLOC}, s2, {(5 << 16) | 3}")
    stamp("entry", first=True)
    a(f"s_or_b32 s{sT4}, s2, s{sW}\ns_cmp_lg_u32 s{sT4}, 0\ns_cbranch_scc1 L_notag\ns_waitcnt lgkmcnt(0)")
    srd(sDBG, 22, 256)
    a(f"s_or_b32 s{sTAG}, s{sTAG}, 1\nv_mov_b32 v{vNO}, s{sTAG}\nv_mov_b32 v{vNO+1}, s{sTAG+1}\ns_mov_b64 exec, 1")
    a(f"buffer_store_dwordx2 v[{vNO}:{vNO+1}], v{vZERO}, s[{sDBG}:{sDBG+3}], 0 offen sc1\ns_mov_b64 exec, -1")
    a.label("L_notag")
    a("s_cmp_ge_u32 s2, 256\n" + ("s_cbranch_scc0" if OPT["swap"] else "s_cbranch_scc1") + " L_roleB")

def make_sel(dst, t):
    a(f"v_bfe_u32 v{t}, v{vLANE}, 2, 1\nv_bfe_u32 v{t+1}, v{vLANE}, 4, 1\nv_cmp_eq_u32 vcc, v{t}, v{t+1}\nv_mov_b32 v{t}, s{sONES}\ns_nop 0\n"
      + "\n".join(f"v_cndmask_b32 v{dst+i}, 0, v{t}, vcc" for i in range(4)))

def mfma_sum(d, sel, B, first):
    c = "0" if first else f"v[{d}:{d+3}]"
    a(f"v_mfma_f32_16x16x32_bf16 v[{d}:{d+3}], v[{sel}:{sel+3}], v[{B}:{B+3}], {c}")

def check_record(REC, voff, soff, loaded=True):
    L = newlab("rec"); Dn = newlab("recd"); C = newlab("recc")
    a(f"s_mov_b32 s{sCNT}, {OPT['spin']}")
    if loaded: a(f"s_branch {C}")
    a.label(L)
    a(f"buffer_load_dwordx4 v[{REC}:{REC+3}], v{voff}, s[{sWS}:{sWS+3}], s{soff} offen sc1\ns_waitcnt vmcnt(0)")
    a.label(C)
    a(f"v_cmp_ne_u32 vcc, v{REC+1}, v{vNO}\nv_cmp_ne_u32 s[{sT2}:{sT3}], v{REC+3}, v{vNO}\ns_or_b64 vcc, vcc, s[{sT2}:{sT3}]")
    a(f"v_cmp_eq_u32 s[{sT2}:{sT3}], 0, v{vNO}\ns_or_b64 vcc, vcc, s[{sT2}:{sT3}]\ns_cbranch_vccz {Dn}")
    a(f"s_sub_u32 s{sCNT}, s{sCNT}, 1\ns_cbranch_scc1 {Dn}\ns_sleep 1\ns_branch {L}")
    a.label(Dn)
    if not loaded: a.vmq = []

def addr_xdma(dst, nq, t):
    for q in range(nq):
        a(f"v_lshrrev_b32 v{t}, 3, v{vLANE}\nv_add_u32 v{t}, {8*q}, v{t}")
        a(f"v_bfe_u32 v{t+1}, v{t}, 1, 3\nv_and_b32 v{t+2}, 7, v{vLANE}\nv_xor_b32 v{t+1}, v{t+1}, v{t+2}")
        a(f"v_mul_u32_u24 v{t}, 896, v{t}\nv_lshl_add_u32 v{t}, v{t+1}, 4, v{t}\nv_subrev_u32 v{dst+q}, {1024*q}, v{t}")

def addr_wdma128(dst, t):
    a(f"v_lshrrev_b32 v{t}, 3, v{vLANE}\nv_bfe_u32 v{t+1}, v{vLANE}, 4, 1\nv_lshlrev_b32 v{t+1}, 2, v{t+1}")
    a(f"v_and_b32 v{t+2}, 7, v{vLANE}\nv_xor_b32 v{t+1}, v{t+1}, v{t+2}")
    a(f"v_mul_u32_u24 v{t}, 896, v{t}\nv_lshl_add_u32 v{dst}, v{t+1}, 4, v{t}\nv_add_u32 v{dst+1}, {8*896-1024}, v{dst}")

def addr_wdma256(dst, sstride, t, mask=False):
    a(f"v_lshrrev_b32 v{t}, 4, v{vLANE}\nv_lshlrev_b32 v{t+1}, 2, v{t}\nv_sub_u32 v{t+1}, v{vLANE}, v{t+1}\nv_and_b32 v{t+1}, 15, v{t+1}")
    a(f"v_mul_u32_u24 v{t}, s{sstride}, v{t}\nv_lshl_add_u32 v{dst}, v{t+1}, 4, v{t}")
    if mask: a(f"v_mov_b32 v{t}, 0x7fff0000\nv_cmp_gt_u32 vcc, 14, v{t+1}\nv_cndmask_b32 v{dst}, v{t}, v{dst}, vcc")
    a(f"s_lshl_b32 s{sT5}, s{sstride}, 2\ns_sub_u32 s{sT5}, s{sT5}, 1024")
    for q in range(1, 4): a(f"v_add_u32 v{dst+q}, s{sT5}, v{dst+q-1}")

def addr_xrd(dst, sbase, t):
    a(f"v_bfe_u32 v{t}, v{vT_}, 1, 3\nv_xor_b32 v{t}, v{t}, v{vHH}\nv_lshlrev_b32 v{t}, 4, v{t}\nv_lshl_add_u32 v{t}, v{vT_}, 7, v{t}")
    for ks in range(4):
        a(f"v_xor_b32 v{dst+ks}, {32*ks}, v{t}\nv_add_u32 v{dst+ks}, s{sbase}, v{dst+ks}")

def lane_rcg(t):
    a(f"v_bfe_u32 v{t}, v{vLANE}, 2, 2\nv_and_b32 v{t+1}, 3, v{vLANE}\nv_lshlrev_b32 v{t+1}, 3, v{t+1}")
    a(f"v_bfe_u32 v{t+2}, v{vLANE}, 4, 1\nv_lshl_add_u32 v{t+1}, v{t+2}, 5, v{t+1}")

def addr_wrd256(dst, cs, t):
    lane_rcg(t)
    a(f"v_lshl_add_u32 v{t+1}, v{t}, 6, v{t+1}")
    a(f"v_lshl_add_u32 v{t}, v{vHH}, 3, v{t}\nv_lshlrev_b32 v{t}, 8, v{t}")
    for u in range(4):
        a(f"s_add_u32 s{sT0}, s{sW}, {u}\ns_and_b32 s{sT0}, s{sT0}, 3\ns_mul_i32 s{sT0}, s{sT0}, {cs}")
        a(f"v_add_u32 v{dst+u}, s{sT0}, v{t+1}\nv_and_b32 v{dst+u}, 255, v{dst+u}\nv_add_u32 v{dst+u}, v{dst+u}, v{t}")

def addr_wrd128(dst, hhmul, scol, sbase, t):
    lane_rcg(t)
    a(f"v_lshrrev_b32 v{t+2}, 1, v{t}\nv_xor_b32 v{t+2}, s{scol}, v{t+2}\nv_lshl_add_u32 v{t+1}, v{t+2}, 6, v{t+1}")
    a(f"v_mad_u32_u24 v{t}, v{vHH}, {hhmul}, v{t}\nv_lshl_add_u32 v{dst}, v{t}, 7, v{t+1}")
    if sbase is not None: a(f"v_add_u32 v{dst}, s{sbase}, v{dst}")

def set_m0(expr_sgpr, add):
    a(f"s_add_u32 m0, s{expr_sgpr}, {add}" if add else f"s_mov_b32 m0, s{expr_sgpr}")


def panel_mainloop(name, ACC, WF, vWrd, nslot, xfrag, issue_w, wtok, hooks, SEL, CS4, defer=None, stream=()):
    rd = {}
    hi = [False]
    pre = set(range(nslot)); stream = list(stream)
    def wreads(s):
        c, ks = divmod(s, 4); slot = c % nslot
        base = slot * 16384 + ks * 4096
        if slot == 4 and not hi[0]:
            for u in range(4): a(f"v_add_u32 v{vWrd+u}, 0x10000, v{vWrd+u}")
            hi[0] = True
        if slot != 4 and hi[0]:
            for u in range(4): a(f"v_subrev_u32 v{vWrd+u}, 0x10000, v{vWrd+u}")
            hi[0] = False
        if slot == 4: base -= 65536
        toks = []; rd[s] = toks; th = []
        for u in range(2 if OPT["xp"] & 8 else 4):
            for jj in range(2):
                r = WF + (s & 1) * 16 + u * 4 + jj * 2
                th.append(lambda r=r, u=u, jj=jj: toks.append(a.lg(f"ds_read_b64_tr_b16 v[{r}:{r+1}], v{vWrd+u} offset:{base + jj*1024}")))
        return th
    hooks["before_barrier"](0)
    a.wait(vm=wtok[0]); a("s_barrier")
    stamp(name + "_c0")
    for t in hooks["after_barrier"](0) + wreads(0): t()
    for s in range(28):
        c, ks = divmod(s, 4)
        a.wait(lg=rd[s] + hooks["lg_need"](s), vm=hooks["vm_need"](s))
        reads = []; late = []
        if ks == 3 and c < 6:
            hooks["before_barrier"](c + 1)
            a.wait(vm=wtok[c + 1]); a("s_barrier")
            if c in (1, 3, 5): stamp(name + f"_c{c+1}")
            reads += hooks["after_barrier"](c + 1)
        if s < 27: reads += wreads(s + 1)
        for cc, qs in ((c + nslot, (0, 1)) if ks == 3 else (c - 1 + nslot, (2, 3)) if ks == 0 and c > 0 else (99, ()),):
            if cc <= 6 and cc not in pre:
                for q in qs: late.append(lambda cc=cc, q=q: wtok.setdefault(cc, []).extend(issue_w(cc, (q,))))
        for k in range(2):
            if stream: late.append(stream.pop(0))
        late += hooks["kstep"](s)
        xf = xfrag(s); w = WF + (s & 1) * 16
        h = (len(reads) + 1) // 2
        mfma(ACC, w, xf, first=(s == 0))
        for t in reads[:h]: t()
        mfma(ACC + 16, w + 4, xf, first=(s == 0))
        for t in reads[h:]: t()
        h = (len(late) + 1) // 2
        mfma(ACC + 32, w + 8, xf, first=(s == 0))
        for t in late[:h]: t()
        if defer: defer.drip(3)
        mfma(ACC + 48, w + 12, xf, first=(s == 0))
        for t in late[h:]: t()
        if defer: defer.drip(3)
        if SEL is not None and not (OPT["xp"] & 4 and s > 0): mfma_sum(CS4, SEL, w, s == 0)
    if defer: defer.flush()

def addr_cs(vCW, vCA, csbase):
    a(f"s_lshl_b32 s{sT0}, s{sW}, 7\ns_add_u32 s{sT0}, s{sT0}, {csbase}\nv_lshl_add_u32 v{vCW}, v{vT_}, 2, s{sT0}")
    for u in range(4):
        a(f"s_add_u32 s{sT0}, s{sW}, {u}\ns_and_b32 s{sT0}, s{sT0}, 3\ns_lshl_b32 s{sT0}, s{sT0}, 7\ns_add_u32 s{sT0}, s{sT0}, {csbase}\nv_lshl_add_u32 v{vCA+u}, v{vHH}, 4, s{sT0}")

def read_cs(dst, vaddr):
    return [a.lg(f"ds_read_b128 v[{dst+4*i}:{dst+4*i+3}], v{vaddr} offset:{32*i}") for i in range(4)]

sTAG = 98
def stage_A1():
    a.comment("==== A1: 128 rows x 112 columns of LN(x) @ [wq | wk | wv | w1]")
    if OPT["prio_a1"]: a(f"s_setprio {OPT['prio_a1']}")
    ACC, XF, WF = 16, 80, 112
    vWd, vXd, vXr, vWr = 144, 148, 152, 156
    SEL, CS4, REC, vCA, vVw, vVr, vPA, vPB, vSt, vCW, vGA_, vRo = 160, 164, 168, 172, 176, 180, 182, 183, 184, 185, 186, 188
    T = 190
    GT, PK = 200, 216
    sRB, sCG, sROT = sA0, sA0 + 1, sA0 + 2
    sKC = sA0 + 3
    sWO_ = sA0 + 10
    sM0W, sM0X, sTY, sHQ, sSTR, sCST = sA0 + 17, sA0 + 18, sA0 + 19, sA0 + 20, sA0 + 21, sA0 + 22
    sD0, sD1, sFL, sRO, sSC, sGO, sG = 4, 8, 12, 13, 14, 15, 16
    a(f"s_lshr_b32 s{sT0}, s{sLOC}, 3\ns_lshr_b32 s{sT2}, s{sXCD}, 1\ns_lshl_b32 s{sT2}, s{sT2}, 2\ns_add_u32 s{sRB}, s{sT2}, s{sT0}")
    a(f"s_and_b32 s{sT2}, s{sXCD}, 1\ns_lshl_b32 s{sT2}, s{sT2}, 3\ns_and_b32 s{sT1}, s{sLOC}, 7\ns_add_u32 s{sCG}, s{sT2}, s{sT1}")
    a(f"s_lshr_b32 s{sTY}, s{sCG}, 2\ns_and_b32 s{sHQ}, s{sCG}, 3")
    a(f"s_cmp_eq_u32 s{sTY}, 3\ns_movk_i32 s{sSTR}, 2688\ns_cselect_b32 s{sSTR}, 896, s{sSTR}\ns_cselect_b32 s{sCST}, 64, 56\ns_cselect_b32 s{sT3}, s{sHQ}, s{sCG}")
    a(f"s_mul_i32 s{sT0}, s{sLOC}, 37\ns_lshr_b32 s{sT0}, s{sT0}, 8\ns_mul_i32 s{sT0}, s{sT0}, 7\ns_sub_u32 s{sROT}, s{sLOC}, s{sT0}")
    a(f"s_lshl_b32 s{sT0}, s{sRB}, 2\ns_add_u32 s{sT0}, s{sT0}, s{sW}\ns_mul_i32 s{sT0}, s{sT0}, {32*896}")
    a(f"s_lshl_b32 s{sT1}, s{sW}, 4\ns_mul_i32 s{sT1}, s{sT1}, s{sSTR}\ns_mul_i32 s{sT2}, s{sT3}, 224\ns_add_u32 s{sT1}, s{sT1}, s{sT2}")
    a(f"s_lshl_b32 s{sT2}, s{sSTR}, 6")
    def chunk_offsets(c):
        a(f"s_add_u32 s{sKC+c}, s{sROT}, {c}\ns_sub_u32 s{sT5}, s{sKC+c}, 7\ns_cselect_b32 s{sKC+c}, s{sKC+c}, s{sT5}")
        a(f"s_mul_i32 s{sWO_+c}, s{sKC+c}, s{sT2}\ns_add_u32 s{sWO_+c}, s{sWO_+c}, s{sT1}")
        a(f"s_lshl_b32 s{sKC+c}, s{sKC+c}, 7\ns_add_u32 s{sKC+c}, s{sKC+c}, s{sT0}")
    for c in range(2): chunk_offsets(c)
    a(f"s_lshl_b32 s{sM0W}, s{sW}, 12\ns_lshl_b32 s{sM0X}, s{sW}, 13\ns_add_u32 s{sM0X}, s{sM0X}, 49152")
    addr_xdma(vXd, 4, T); addr_wdma256(vWd, sSTR, T, mask=True)
    a("s_waitcnt lgkmcnt(0)")
    stamp("a1_karg")
    srd(sX, 4, S * D * 2)
    a(f"s_cmp_eq_u32 s{sTY}, 3\ns_cselect_b32 s{sWA}, s12, s6\ns_cselect_b32 s{sWA+1}, s13, s7\ns_mov_b32 s{sWA+2}, {D*3*D*2}\ns_cselect_b32 s{sWA+2}, {D*D*2}, s{sWA+2}\ns_mov_b32 s{sWA+3}, 0x20000")
    srd(sDBG, 22, 256)
    m0 = [None]
    def issue_x(c, qs=range(4)):
        if m0[0] != ("x", c): set_m0(sM0X, (c & 1) * 4096); m0[0] = ("x", c)
        if OPT["xp"] & 1 and c > 1: return []
        return [a.vm(f"buffer_load_dwordx4 v{vXd+q}, s[{sX}:{sX+3}], s{sKC+c} offen offset:{1024*q} lds") for q in qs]
    def issue_w(c, qs=range(4)):
        if m0[0] != ("w", c): set_m0(sM0W, (c % 3) * 16384); m0[0] = ("w", c)
        if OPT["xp"] & 2 and c > 2: return []
        return [a.vm(f"buffer_load_dwordx4 v{vWd+q}, s[{sWA}:{sWA+3}], s{sWO_+c} offen offset:{1024*q} lds") for q in qs]
    xt = {}; wt = {}
    xt[0] = issue_x(0); wt[0] = issue_w(0)
    for c in range(2, 7): chunk_offsets(c)
    addr_xrd(vXr, sM0X, T)
    if OPT["a1s"] < 2: xt[1] = issue_x(1)
    addr_wrd256(vWr, f"s{sCST}", T)
    make_sel(SEL, T)
    srd(sWS, 24, WS_SIZE)
    CSB = 16384
    with Deferred() as df:
        a(f"s_and_b32 s{sGO}, s2, 255\ns_lshl_b32 s{sGO}, s{sGO}, 7\ns_add_u32 s{sGO}, s{sGO}, {FLG + F_GO*FT}")
        a(f"s_lshl_b32 s{sT0}, s{sRB}, 2\ns_add_u32 s{sT4}, s{sT0}, s{sW}\ns_lshl_b32 s{sRO}, s{sT4}, 9\ns_add_u32 s{sRO}, s{sRO}, {ST0}")
        a(f"v_lshlrev_b32 v{vRo}, 4, v{vT_}")
        addr_cs(vCW, vCA, CSB)
        a(f"s_lshl_b32 s{sT0}, s{sRB}, 4\ns_add_u32 s{sT0}, s{sT0}, s{sCG}\ns_lshl_b32 s{sT0}, s{sT0}, 7\ns_add_u32 s{sFL}, s{sT0}, {FLG + F_QKV*FT}")
        a(f"s_lshl_b32 s{sT1}, s{sHQ}, 8\ns_add_u32 s{sT0}, s{sT4}, s{sT1}\ns_cmp_eq_u32 s{sTY}, 0\ns_cselect_b32 s{sSC}, 11, 12\ns_mov_b32 s{sT2}, {KV_ - 2048}\ns_cselect_b32 s{sT2}, {QB_}, s{sT2}")
        a(f"s_lshl_b32 s{sT0}, s{sT0}, s{sSC}\ns_lshl_b32 s{sT1}, s{sTY}, 11\ns_add_u32 s{sT0}, s{sT0}, s{sT1}\ns_add_u32 s{sT0}, s{sT0}, s{sT2}")
        a(f"s_lshl_b32 s{sT4}, s{sT4}, 9\ns_mul_i32 s{sT1}, s{sHQ}, {14*PL}\ns_add_u32 s{sT4}, s{sT4}, s{sT1}\ns_add_u32 s{sT4}, s{sT4}, {H_}")
        a(f"s_lshl_b32 s{sT1}, 64, s{sSC}\ns_movk_i32 s{sT2}, 1024\ns_movk_i32 s{sT3}, 512")
        a(f"s_cmp_eq_u32 s{sTY}, 3\ns_cselect_b32 s{sT0}, s{sT4}, s{sT0}\ns_cselect_b32 s{sT1}, {4*PL}, s{sT1}\ns_cselect_b32 s{sT2}, {2*PL}, s{sT2}\ns_cselect_b32 s{sT3}, {PL}, s{sT3}")
        a(f"v_mul_u32_u24 v{vSt}, s{sT3}, v{vHH}\nv_lshl_add_u32 v{vSt}, v{vT_}, 4, v{vSt}")
        for u in range(4):
            a(f"s_add_u32 s{sT3}, s{sW}, {u}\ns_and_b32 s{sT3}, s{sT3}, 3\ns_mul_i32 s{sD0+u}, s{sT3}, s{sT1}\ns_add_u32 s{sD0+u}, s{sD0+u}, s{sT0}")
            a(f"s_add_u32 s{sD1+u}, s{sD0+u}, s{sT2}\ns_lshl_b32 s{sT4}, s{sTY}, 2\ns_or_b32 s{sT3}, s{sT3}, s{sT4}")
            a(f"s_cmp_eq_u32 s{sT3}, 15\ns_cselect_b32 s{sD1+u}, 0x7fff0000, s{sD1+u}")
        a(f"s_cmp_eq_u32 s{sTY}, 1\ns_cselect_b32 s{sT1}, 0x3f803f80, 0\ns_cselect_b32 s{sT2}, 0x3f80, 0")
        a(f"s_cmp_eq_u32 s{sTY}, 2\ns_cselect_b32 s{sT1}, 0x3f80, s{sT1}")
        a(f"v_mov_b32 v{vPA}, s{sT1}\nv_mov_b32 v{vPB}, s{sT2}")
        a(f"s_cmp_eq_u32 s{sTY}, 0\ns_cselect_b32 s{sSC}, {hx(f2u(QSCALE))}, 1.0")
        a(f"v_bfe_u32 v{T}, v{vT_}, 1, 3\nv_xor_b32 v{T}, v{T}, v{vHH}\nv_lshlrev_b32 v{T}, 3, v{T}\nv_lshl_add_u32 v{T}, v{vT_}, 6, v{T}")
        for i in range(4): a(f"v_xor_b32 v{vVw+i}, {16*i}, v{T}\nv_add_u32 v{vVw+i}, s{sM0X}, v{vVw+i}")
        lane_rcg(T)
        for jj in range(2):
            a(f"v_lshl_add_u32 v{T+2}, v{vHH}, 2, v{T}\nv_add_u32 v{T+2}, {8*jj}, v{T+2}")
            a(f"v_bfe_u32 v{T+3}, v{T+2}, 1, 3\nv_lshlrev_b32 v{T+3}, 3, v{T+3}\nv_xor_b32 v{T+3}, v{T+3}, v{T+1}")
            a(f"v_lshl_add_u32 v{vVr+jj}, v{T+2}, 6, v{T+3}\nv_add_u32 v{vVr+jj}, s{sM0X}, v{vVr+jj}")
    if not OPT["defer"]: df.drip(70 if OPT["a1s"] < 2 else 999)
    if OPT["a1s"] >= 2: xt[1] = issue_x(1)
    wt[1] = issue_w(1)
    if not OPT["defer"]: df.flush()
    st1 = []
    if OPT["a1s"]: st1 = [lambda q=q: wt.setdefault(2, []).extend(issue_w(2, (q,))) for q in range(4)]
    else: wt[2] = issue_w(2)
    stamp("a1_issued")
    xr = {}; rec = []
    def go():
        a.wait(vm=rec[0])
        check_nonce(keep=True)
        publish(sGO, barrier=False)
    def after_barrier(c):
        xr[c] = []
        return [lambda ks=ks: xr[c].append(a.lg(f"ds_read_b128 v[{XF+(c&1)*16+4*ks}:{XF+(c&1)*16+4*ks+3}], v{vXr+ks} offset:{(c&1)*4096}")) for ks in range(4)]
    def kstep(s):
        th = []
        c, ks = divmod(s, 4)
        if ks in (1, 2) and c + 2 <= 6:
            for q in (2 * ks - 2, 2 * ks - 1): th.append(lambda q=q: xt.setdefault(c + 2, []).extend(issue_x(c + 2, (q,))))
        if s == OPT["go"] - 5: th.append(lambda: rec.append(a.vm(f"buffer_load_dwordx2 v[{vNO}:{vNO+1}], v{vZERO}, s[{sDBG}:{sDBG+3}], 0 offen sc1")))
        if s == OPT["go"]: th.append(go)
        if s == 22: th.append(lambda: rec.append(a.vm(f"buffer_load_dwordx4 v[{REC}:{REC+3}], v{vRo}, s[{sWS}:{sWS+3}], s{sRO} offen sc1")))
        return th
    hooks = dict(before_barrier=lambda c: a.wait(vm=xt[c]), after_barrier=after_barrier,
                 lg_need=lambda s: xr[s // 4] if s % 4 == 0 else [], vm_need=lambda s: [], kstep=kstep)
    panel_mainloop("a1", ACC, WF, vWr, 3, lambda s: XF + ((s // 4) & 1) * 16 + 4 * (s % 4), issue_w, wt, hooks, SEL, CS4, df, stream=st1)
    stamp("a1_main")
    a.wait(vm=rec)
    check_record(REC, vRo, sRO)
    a.lg(f"ds_write_b32 v{vCW}, v{CS4}")
    a(f"v_mul_f32 v{T}, v{REC+2}, v{REC+2}\nv_mov_b32 v{T+1}, {hx(f2u(1.0 + EPS))}\nv_mov_b32 v{T+2}, {hx(f2u(-EPS))}\nv_fma_f32 v{T}, v{T}, v{T+2}, v{T+1}\nv_rsq_f32 v{T}, v{T}")
    a(f"s_cmp_eq_u32 s{sTY}, 3\ns_cselect_b64 vcc, -1, 0\nv_mov_b32 v{T+1}, s{sSC}\nv_cndmask_b32 v{T}, v{T+1}, v{T}, vcc")
    a(f"v_mul_f32 v{vA}, v{T}, v{REC+2}\nv_mul_f32 v{vB}, v{vA}, v{REC}\nv_sub_f32 v{vB}, 0, v{vB}")
    a.wait_all(vm=False); a("s_barrier")
    stamp("a1_csbar")
    CS = 80
    toks = [read_cs(CS + 16 * u, vCA + u) for u in range(3)]
    a(f"s_cmp_eq_u32 s{sTY}, 3\ns_cbranch_scc1 L_A1_nosc")
    for u in range(4): scale16(ACC + 16 * u)
    a.label("L_A1_nosc")
    a.wait(lg=toks[0])
    toks.append(read_cs(CS + 48, vCA + 3))
    def store(u, pk):
        a.vm(f"buffer_store_dwordx4 v[{pk}:{pk+3}], v{vSt}, s[{sWS}:{sWS+3}], s{sD0+u} offen sc1")
        a.vm(f"buffer_store_dwordx4 v[{pk+4}:{pk+7}], v{vSt}, s[{sWS}:{sWS+3}], s{sD1+u} offen sc1")
    def pads(pk): a(f"v_cndmask_b32 v{pk+6}, v{pk+6}, v{vPA}, s[{sHI}:{sHI+1}]\nv_cndmask_b32 v{pk+7}, v{pk+7}, v{vPB}, s[{sHI}:{sHI+1}]")
    lgq0 = list(a.lgq); vmq0 = list(a.vmq)
    a(f"s_cmp_eq_u32 s{sTY}, 2\ns_cbranch_scc1 L_A1_v\ns_cmp_eq_u32 s{sTY}, 3\ns_cbranch_scc1 L_A1_w1")
    for u in range(4):
        a.wait(lg=toks[u]); shift16(ACC + 16 * u, CS + 16 * u)
        cvt16(PK + 8 * u, ACC + 16 * u); pads(PK + 8 * u); store(u, PK + 8 * u)
    a("s_branch L_A1_pub")
    a.label("L_A1_v")
    a.lgq = list(lgq0); a.vmq = list(vmq0); tr = {}
    for u in range(4):
        pk = PK + 8 * u
        a.wait(lg=toks[u]); shift16(ACC + 16 * u, CS + 16 * u)
        cvt16(pk, ACC + 16 * u); pads(pk)
        if u == 0: a.wait(lg=toks[3])
        if u > 0: a.wait(lg=tr[u - 1]); store(u - 1, pk - 8)
        for i in range(4): a.lg(f"ds_write_b64 v{vVw+i}, v[{pk+2*i}:{pk+2*i+1}] offset:{2048*u}")
        tr[u] = [a.lg(f"ds_read_b64_tr_b16 v[{pk+4*m+2*jj}:{pk+4*m+2*jj+1}], v{vVr+jj} offset:{2048*u + 1024*m}") for m in range(2) for jj in range(2)]
    a.wait(lg=tr[3]); store(3, PK + 24)
    a("s_branch L_A1_pub")
    a.label("L_A1_w1")
    a.lgq = list(lgq0); a.vmq = list(vmq0)
    gelu_consts(T, vA)
    a(f"v_sub_f32 v{vB}, 0, v{REC}")
    for u in range(4):
        a.wait(lg=toks[u]); shift16(ACC + 16 * u, CS + 16 * u)
        gelu16(ACC + 16 * u, GT, T)
        cvt16(PK + 8 * u, ACC + 16 * u); store(u, PK + 8 * u)
    a.label("L_A1_pub")
    stamp("a1_epi")
    publish(sFL)
    stamp("a1_pub")

def rowmax(dst, s_, first):
    if first: a(f"v_max3_f32 v{dst}, v{s_}, v{s_+1}, v{s_+2}\nv_max_f32 v{dst}, v{dst}, v{s_+3}")
    else: a(f"v_max3_f32 v{dst}, v{dst}, v{s_}, v{s_+1}\nv_max3_f32 v{dst}, v{dst}, v{s_+2}, v{s_+3}")
    for i in range(4, 16, 2): a(f"v_max3_f32 v{dst}, v{dst}, v{s_+i}, v{s_+i+1}")

def stage_A2():
    a.comment("==== A2: attention, 128 queries of one head; wave = 512 keys; slot x holds query tile w^x^3")
    NR = OPT["nr"]
    Q, O, SS, P = 16, 48, 112, 144
    KB = 160; VB = KB + 8 * NR
    T = VB + 8 * NR; MX = 12
    assert T + 16 <= 256
    sH, sQB, sQ0, sK, sV, sK0, sRETRY, sKT0, sOD, sFL, sKVB, sPUB = sA0, sA0+1, sA0+2, sA0+3, sA0+4, sA0+5, sA0+6, sA0+7, sA0+8, sA0+10, sA0+11, sA0+12
    vOo, vW, vR, vKV = 0, 8, 9, 10
    a(f"s_lshr_b32 s{sT0}, s{sLOC}, 4\ns_lshl_b32 s{sH}, s{sXCD}, 1\ns_add_u32 s{sH}, s{sH}, s{sT0}\ns_and_b32 s{sQB}, s{sLOC}, 15")
    a(f"s_lshr_b32 s{sT0}, s{sH}, 2\ns_lshl_b32 s{sT1}, s{sQB}, 4\ns_add_u32 s{sT1}, s{sT1}, s{sT0}")
    a(f"s_lshl_b32 s{sT2}, s{sW}, 6\ns_add_u32 s{sT2}, s{sT2}, s{sT0}")
    a(f"v_subrev_u32 v{T}, 2, v{vLANE}\nv_and_b32 v{T+1}, 3, v{T}\nv_lshlrev_b32 v{T+1}, 4, v{T+1}")
    a(f"v_bfe_u32 v{T+2}, v{T}, 2, 1\nv_lshl_add_u32 v{T+1}, v{T+2}, 2, v{T+1}\nv_add_u32 v{T+1}, 4, v{T+1}\nv_add_u32 v{T+1}, s{sT2}, v{T+1}")
    a(f"v_mov_b32 v{vPO}, s{sT1}\nv_cmp_gt_u32 vcc, 8, v{T}\nv_cndmask_b32 v{vPO}, v{vPO}, v{T+1}, vcc")
    a(f"s_add_u32 s{sT0}, s{sT0}, 4\nv_mov_b32 v{T+1}, s{sT0}\nv_cmp_eq_u32 vcc, 1, v{vLANE}\nv_cndmask_b32 v{vPO}, v{vPO}, v{T+1}, vcc")
    a(f"v_lshlrev_b32 v{vPO}, 7, v{vPO}")
    if FLG + F_QKV * FT: a(f"v_add_u32 v{vPO}, {FLG + F_QKV*FT}, v{vPO}")
    a(f"s_lshl_b32 s{sK0}, s{sH}, 18\ns_add_u32 s{sK0}, s{sK0}, {KV_}\ns_lshl_b32 s{sT0}, s{sW}, 16\ns_add_u32 s{sT0}, s{sT0}, s{sK0}\ns_mov_b32 s{sKVB}, s{sT0}")
    a(f"s_lshl_b32 s{sQ0}, s{sH}, 17\ns_lshl_b32 s{sT0}, s{sQB}, 13\ns_add_u32 s{sQ0}, s{sQ0}, s{sT0}\ns_add_u32 s{sQ0}, s{sQ0}, {QB_}")
    for kt in range(16): a(f"s_add_u32 s{8+kt}, s{sQB}, {kt}\ns_and_b32 s{8+kt}, s{8+kt}, 15\ns_lshl_b32 s{8+kt}, s{8+kt}, 12")
    a(f"s_mov_b32 s{sRETRY}, 0\ns_mov_b32 s{sPUB}, 0")
    for x in range(4): a(f"s_xor_b32 s{4+x}, s{sW}, {x^3}\ns_lshl_b32 s{4+x}, s{4+x}, 11\ns_add_u32 s{4+x}, s{4+x}, s{sQ0}")
    a(f"v_mul_u32_u24 v{vOo}, {PL}, v{vHH}\nv_lshl_add_u32 v{vOo}, v{vT_}, 4, v{vOo}")
    a(f"s_lshl_b32 s{sT0}, s{sQB}, 2\ns_add_u32 s{sT0}, s{sT0}, s{sW}\ns_lshl_b32 s{sT0}, s{sT0}, 9")
    a(f"s_mul_i32 s{sT1}, s{sH}, {4*PL}\ns_add_u32 s{sT0}, s{sT0}, s{sT1}\ns_add_u32 s{sOD}, s{sT0}, {O_}\ns_add_u32 s{sOD+1}, s{sOD}, {2*PL}")
    a(f"s_lshl_b32 s{sT0}, s{sQB}, 4\ns_add_u32 s{sT0}, s{sT0}, s{sH}\ns_lshl_b32 s{sT0}, s{sT0}, 7\ns_add_u32 s{sFL}, s{sT0}, {FLG + F_O*FT}\ns_lshl_b32 s{sT0}, s{sW}, 3\ns_add_u32 s{sFL}, s{sFL}, s{sT0}")
    def ld(dst, soff, imm, vo=vL16): return a.vm(f"buffer_load_dwordx4 v[{dst}:{dst+3}], v{vo}, s[{sWS}:{sWS+3}], s{soff} offen offset:{imm} sc1")
    vPK = T + 8
    if OPT["split"]:
        a(f"v_mov_b32 v{vPK}, v{vPO}\nv_readlane_b32 s{sT0}, v{vPO}, 0\nv_cmp_gt_u32 vcc, 2, v{vLANE}\nv_mov_b32 v{T+9}, s{sT0}\nv_cndmask_b32 v{vPO}, v{T+9}, v{vPO}, vcc")
    poll()
    stamp("a2_poll")
    k0 = [ld(T, sK0, 0), ld(T + 4, sK0, 1024)]
    qt = [[ld(Q + 8 * x, 4 + x, 0), ld(Q + 8 * x + 4, 4 + x, 1024)] for x in range(4)]
    if OPT["split"]:
        ft = a.vm(f"buffer_load_dwordx2 v[{vP0}:{vP0+1}], v{vPK}, s[{sWS}:{sWS+3}], 0 offen sc1")
    order = []
    for kt in range(16):
        for kind in "KV":
            for half in range(2):
                need = 4 * kt - 2 if kind == "K" else 4 * kt + 1
                free = 4 * (kt - NR) + (3 if kind == "K" else 5)
                order.append((need, kind, kt, half, free))
    order.sort()
    tok = {}
    sKT = 8
    def issue(e):
        need, kind, kt, half, free = e
        if kind == "K": t = ld(KB + 8 * (kt % NR) + 4 * half, sKT + kt, 1024 * half, vKV)
        else: t = ld(VB + 8 * (kt % NR) + 4 * half, sKT + kt, 2048 + 1024 * half, vKV)
        tok.setdefault((kind, kt), []).append(t)
    def bump(e): pass
    NPRE = 6
    def first_loads():
        for e in order[:NPRE]: issue(e); bump(e)
    def kv_start():
        a(f"v_add_u32 v{vKV}, s{sKVB}, v{vL16}")
        first_loads()
        a(f"s_mul_i32 s{sT0}, s{sW}, 12288\nv_add_u32 v{vW}, s{sT0}, v{vL16}")
    if not OPT["split"]: kv_start()
    pend = order[NPRE:]
    for x in range(4):
        a.wait(vm=k0 + qt[x])
        s_ = SS + 16 * (x & 1)
        mfma(s_, T, Q + 8 * x, first=True); mfma(s_, T + 4, Q + 8 * x + 4)
        if x == 0 and OPT["split"]:
            L = newlab("kvc")
            a.wait(vm=[ft])
            a(f"v_cmp_ne_u64 vcc, v[{vP0}:{vP0+1}], v[{vNO}:{vNO+1}]\ns_cbranch_vccz {L}\nv_mov_b32 v{vPO}, v{vPK}")
            poll()
            a.label(L)
            stamp("a2_kv")
            kv_start()
        if x > 0: rowmax(MX + x - 1, SS + 16 * ((x - 1) & 1), True)
    rowmax(MX + 3, SS + 16, True)
    stamp("a2_max")
    a.label("L_A2_setmax")
    for x in range(4):
        a(f"v_mov_b32 v{T+x}, v{MX+x}")
    for x in range(4):
        a(f"v_permlane32_swap_b32 v{T+x}, v{MX+x}")
    for x in range(4):
        a(f"v_max_f32 v{MX+x}, v{T+x}, v{MX+x}")
    for x in range(4):
        m = MX + x; t = T + 4 * x
        a(f"v_cvt_pk_bf16_f32 v{t}, -v{m}, -v{m}\nv_and_b32 v{t+1}, 0xffff0000, v{t}\nv_sub_f32 v{t+2}, -v{m}, v{t+1}")
        a(f"v_cvt_pk_bf16_f32 v{t+3}, v{t+2}, v{t+2}\nv_and_b32 v{t+3}, 0xffff0000, v{t+3}\nv_sub_f32 v{t+2}, v{t+2}, v{t+3}")
        a(f"v_and_b32 v{t}, 0xffff, v{t}\nv_or_b32 v{t}, v{t}, v{t+3}\nv_cvt_pk_bf16_f32 v{t+2}, v{t+2}, 0")
        a(f"v_cndmask_b32 v{Q+8*x+6}, v{Q+8*x+6}, v{t}, s[{sHI}:{sHI+1}]\nv_cndmask_b32 v{Q+8*x+7}, v{Q+8*x+7}, v{t+2}, s[{sHI}:{sHI+1}]")
        if x == 0:
            a.wait(vm=tok[("K", 0)])
            mfma(SS, KB, Q, first=True); mfma(SS, KB + 4, Q + 4)
    def QK(n, half):
        kt, x = divmod(n, 4)
        mfma(SS + 16 * (n & 1), KB + 8 * (kt % NR) + 4 * half, Q + 8 * x + 4 * half, first=(half == 0))
    def PV(n, half):
        kt, x = divmod(n, 4)
        mfma(O + 16 * x, VB + 8 * (kt % NR) + 4 * half, P + 8 * (n & 1) + 4 * half, first=(kt == 0 and half == 0))
    def owrite(x, i): a.lg(f"ds_write_b128 v{vW}, v[{O+16*x+4*i}:{O+16*x+4*i+3}] offset:{x*4096 + 1024*i}")
    stamp("a2_start")
    if OPT["prio_a1"]: a("s_setprio 0")
    a.hot = True
    for n in range(64):
        if n in (16, 32, 48): stamp(f"a2_b{n}")
        kt, x = divmod(n, 4)
        s_ = SS + 16 * (n & 1); p_ = P + 8 * (n & 1)
        e = lambda i: a(f"v_exp_f32 v{s_+i}, v{s_+i}")
        c = lambda i: a(f"v_cvt_pk_bf16_f32 v{p_+i}, v{s_+2*i}, v{s_+2*i+1}")
        sh = [[], [], [], []]
        pre = [[], [], [], []]
        ap = OPT["aprio"] if n < OPT["alate"] else OPT["aprio2"]
        if n == OPT["alate"] and ap == 5: pre[0].append(lambda: a("s_setprio 3"))
        for g in (0, 2):
            if pend and pend[0][4] <= n:
                ent = pend.pop(0)
                assert ent[0] > n + 1, (ent, n)
                hi = ap == 1 or (ap in (2, 3) and g == 2)
                if hi: pre[g].append(lambda: a("s_setprio 3"))
                sh[g].append(lambda ent=ent: issue(ent))
                if hi: sh[g].append(lambda: a("s_setprio 0"))
                sh[g + 1].append(lambda ent=ent: bump(ent))
        if ap == 2: sh[3].append(lambda: a("s_setprio 3")); sh[1].append(lambda: a("s_setprio 0"))
        if ap == 3: sh[3].append(lambda: a("s_setprio 3")); sh[0].append(lambda: a("s_setprio 0"))
        if ap == 4: sh[3].append(lambda: a("s_setprio 3")); sh[2].append(lambda: a("s_setprio 0"))
        if x == 2 and kt + 1 < 16: sh[3].append(lambda: a.wait(vm=tok[("K", kt + 1)]))
        if x == 1: sh[1].append(lambda: a.wait(vm=tok[("V", kt)]))
        if n == 62:
            for g in range(4): sh[g].append(lambda g=g: owrite(0, g))
        if n == 63:
            for g in range(4): sh[g].append(lambda g=g: owrite(1, g))
        mm = [(lambda: QK(n + 1, 0)) if n < 63 else None, (lambda: QK(n + 1, 1)) if n < 63 else None,
              (lambda: PV(n - 1, 0)) if n > 0 else None, (lambda: PV(n - 1, 1)) if n > 0 else None]
        seq = [[("e", 0), ("e", 1), ("e", 2), ("e", 3), ("c", 0)],
               [("e", 4), ("e", 5), ("c", 1), ("e", 6), ("e", 7), ("c", 2)],
               [("e", 8), ("e", 9), ("c", 3), ("e", 10), ("e", 11), ("c", 4)],
               [("e", 12), ("e", 13), ("c", 5), ("e", 14), ("e", 15), ("c", 6), ("c", 7)]]
        for g in range(4):
            for t in pre[g]: t()
            if mm[g]: mm[g]()
            for t in sh[g]: t()
            for k, i in seq[g]: (e if k == "e" else c)(i)
    assert not pend
    a.hot = False
    if OPT["prio_at"]: a(f"s_setprio {OPT['prio_at']}")
    PV(63, 0); PV(63, 1)
    stamp("a2_main")
    a(f"v_mov_b32 v{T+2}, 49152\nv_mov_b32 v{T+3}, 0")
    a.lg(f"ds_write_b32 v{T+2}, v{T+3}")
    for i in range(4): owrite(2, i)
    a.wait_all(vm=False); a("s_barrier")
    stamp("a2_cbar")
    tk = []
    for x in range(3):
        a(f"s_xor_b32 s{sT0}, s{sW}, {x^3}\ns_mul_i32 s{sT0}, s{sT0}, 12288\nv_add_u32 v{vR}, s{sT0}, v{vL16}")
        tk.append([a.lg(f"ds_read_b128 v[{O+16*x+4*i}:{O+16*x+4*i+3}], v{vR} offset:{x*4096 + 1024*i}") for i in range(4)])
    R = O + 48
    for x in range(3):
        a.wait(lg=tk[x])
        for i in range(0, 16, 2): a(f"v_pk_add_f32 v[{R+i}:{R+i+1}], v[{R+i}:{R+i+1}], v[{O+16*x+i}:{O+16*x+i+1}]")
    a(f"v_mov_b32 v{T+4}, v{R+12}\nv_mov_b32 v{T+5}, v{R+12}\nv_permlane32_swap_b32 v{T+4}, v{T+5}\nv_rcp_f32 v{vA}, v{T+5}")
    scale16(R)
    cvt16(P, R)
    a(f"v_cndmask_b32 v{P+6}, v{P+6}, v{vZERO}, s[{sHI}:{sHI+1}]\nv_cndmask_b32 v{P+7}, v{P+7}, v{vZERO}, s[{sHI}:{sHI+1}]")
    a(f"s_cmp_lg_u32 s{sPUB}, 0\ns_cbranch_scc1 L_A2_done")
    a.vm(f"buffer_store_dwordx4 v[{P}:{P+3}], v{vOo}, s[{sWS}:{sWS+3}], s{sOD} offen sc1")
    a.vm(f"buffer_store_dwordx4 v[{P+4}:{P+7}], v{vOo}, s[{sWS}:{sWS+3}], s{sOD+1} offen sc1")
    a(f"v_pk_mul_f32 v[{T+6}:{T+7}], v[{R}:{R+1}], 0 op_sel_hi:[1,0]")
    for i in range(2, 16, 2): a(f"v_pk_fma_f32 v[{T+6}:{T+7}], v[{R+i}:{R+i+1}], 0, v[{T+6}:{T+7}] op_sel_hi:[1,0,1]")
    a(f"s_mov_b32 s{sT0}, {hx(f2u(2.0**120))}\nv_cmp_nge_f32 vcc, s{sT0}, v{T+5}\nv_cmp_u_f32 s[{sT2}:{sT3}], v{T+6}, v{T+7}\ns_or_b64 vcc, vcc, s[{sT2}:{sT3}]")
    a(f"s_cmp_lg_u32 s{sRETRY}, 0\ns_cbranch_scc1 L_A2_good\ns_cbranch_vccz L_A2_good")
    a(f"v_mov_b32 v{T+3}, 1\nds_write_b32 v{T+2}, v{T+3}\ns_branch L_A2_done")
    a.label("L_A2_good")
    stamp("a2_st")
    a(f"s_mov_b32 s{sPUB}, 1\ns_mov_b64 exec, 1\ns_waitcnt vmcnt(0)")
    a(f"buffer_store_dwordx2 v[{vNO}:{vNO+1}], v{vZERO}, s[{sWS}:{sWS+3}], s{sFL} offen sc1\ns_mov_b64 exec, -1")
    stamp("a2_pub")
    a.label("L_A2_done")
    a.wait_all(vm=False); a("s_barrier")
    a(f"ds_read_b32 v{T+3}, v{T+2}\ns_waitcnt lgkmcnt(0)\nv_readfirstlane_b32 s{sT0}, v{T+3}")
    a(f"s_andn2_b32 s{sT0}, s{sT0}, s{sRETRY}\ns_cmp_lg_u32 s{sT0}, 0\ns_cbranch_scc1 L_A2_fallback")
    stamp_flush()
    a("s_endpgm")
    a.label("L_A2_fallback")
    a(f"s_mov_b32 s{sRETRY}, 1\ns_barrier")
    for x in range(4):
        a(f"v_cndmask_b32 v{Q+8*x+6}, v{Q+8*x+6}, v{vZERO}, s[{sHI}:{sHI+1}]\nv_cndmask_b32 v{Q+8*x+7}, v{Q+8*x+7}, v{vZERO}, s[{sHI}:{sHI+1}]")
        a(f"v_mov_b32 v{MX+x}, 0xff800000")
    a(f"s_mov_b32 s{sK}, 0\ns_mov_b32 s{sT4}, 16")
    a.label("L_A2_fb_loop")
    ld(T, sK, 0, vKV); ld(T + 4, sK, 1024, vKV); a.wait_all()
    for x in range(4):
        mfma(SS, T, Q + 8 * x, first=True); mfma(SS, T + 4, Q + 8 * x + 4)
        rowmax(MX + x, SS, False)
        a("s_nop 7")
    a(f"s_add_u32 s{sK}, s{sK}, 4096\ns_sub_u32 s{sT4}, s{sT4}, 1\ns_cmp_lg_u32 s{sT4}, 0\ns_cbranch_scc1 L_A2_fb_loop")
    a(f"v_lshlrev_b32 v{T+8}, 2, v{vLANE}")
    for x in range(4):
        a(f"s_xor_b32 s{sT0}, s{sW}, {x^3}\ns_lshl_b32 s{sT0}, s{sT0}, 8\ns_lshl_b32 s{sT1}, s{sW}, 10\ns_add_u32 s{sT0}, s{sT0}, s{sT1}")
        a(f"v_add_u32 v{T+9}, s{sT0}, v{T+8}\nds_write_b32 v{T+9}, v{MX+x}")
    a("s_waitcnt lgkmcnt(0)\ns_barrier")
    for x in range(4):
        a(f"s_xor_b32 s{sT0}, s{sW}, {x^3}\ns_lshl_b32 s{sT0}, s{sT0}, 8\nv_add_u32 v{T+9}, s{sT0}, v{T+8}")
        for w2 in range(4): a(f"ds_read_b32 v{T+10+w2}, v{T+9} offset:{1024*w2}")
        a(f"s_waitcnt lgkmcnt(0)\nv_max3_f32 v{MX+x}, v{T+10}, v{T+11}, v{T+12}\nv_max_f32 v{MX+x}, v{MX+x}, v{T+13}")
    a("s_barrier")
    first_loads()
    a.wait_all()
    a("s_nop 7\ns_branch L_A2_setmax")

RES, vWD, vPLN, vGo1, vWr4 = 232, 248, 250, 251, 252
vWd3, vWr3, vCA3, SEL3, CS43, vXo, vSo, vSH, vST, vCW3, TB = 194, 198, 202, 206, 210, 214, 215, 216, 220, 223, 224
sR64, sCT, sRW, sCW, sSO, sG2 = 75, 76, 77, 78, 79, 80
sRB3, sC3, sW3O, sM03, sK3 = 82, 83, 84, 91, 92
sG4, sW4o, sM04, sWOo, sOo, sX1D, sFX1, sFG, sOUTD, sST1D = 4, 11, 18, 19, 20, 21, 22, 23, 24, 25
sGS = 40
NZ = 9
CSB3 = 73728
B3 = {}; B4 = {}

def touch(srd_, soff, n):
    for i in range(n): a(f"s_buffer_load_dword s3, s[{srd_}:{srd_+3}], s{soff} offset:{128*i}")

def throttled(thunks, depth):
    toks = []
    for i, t in enumerate(thunks):
        toks += t()
        if len(toks) > depth: a.wait(vm=toks[:len(toks) - depth])
    return toks

def go_poll(st=True):
    if not OPT["go"]: return
    a(f"s_and_b32 s{sT3}, s2, 255\ns_lshl_b32 s{sT3}, s{sT3}, 7\ns_add_u32 s{sT3}, s{sT3}, {FLG + F_GO*FT}\nv_mov_b32 v{vPO}, s{sT3}")
    poll()
    if st: stamp("b0_go")

def stage_B0():
    a.comment("==== B0: row statistics of x, prefetches, set-up")
    a.label("L_roleB")
    prev_stamp[0] = 0
    a.vmq = []; a.lgq = []
    T = TB; XR = 16
    a(f"s_lshl_b32 s{sT0}, s{sXCD}, 5\ns_add_u32 s{sT0}, s{sT0}, s{sLOC}\ns_lshl_b32 s{sT0}, s{sT0}, 2\ns_add_u32 s{sT0}, s{sT0}, s{sW}")
    a(f"s_mul_i32 s{sT1}, s{sT0}, {2*896}\ns_lshl_b32 s{sT4}, s{sT0}, 5\ns_add_u32 s{sT4}, s{sT4}, {ST0}")
    a(f"v_mul_u32_u24 v{T}, 896, v{vHH}\nv_lshl_add_u32 v{T}, v{vT_}, 4, v{T}\nv_mov_b32 v{T+1}, 0x7fff0000\nv_cmp_gt_u32 vcc, 28, v{vT_}\nv_cndmask_b32 v{T}, v{T+1}, v{T}, vcc")
    a("s_waitcnt lgkmcnt(0)")
    srd(sX, 4, S * D * 2)
    xl = [a.vm(f"buffer_load_dwordx4 v[{XR+4*i}:{XR+4*i+3}], v{T}, s[{sX}:{sX+3}], s{sT1} offen offset:{448*i}") for i in range(2)]
    stamp("b0_karg")
    srd(sDBG, 22, 256); srd(sWS, 24, WS_SIZE); srd(sW2, 14, D * D * 2); srd(sW3, 16, D * F * 2); srd(sW4, 18, D * F * 2); srd(sWO, 8, D * D * 2); srd(sOUT, 20, S * D * 2)
    a(f"v_mov_b32 v{XR+8}, 0\nv_mov_b32 v{XR+10}, 0\nv_lshlrev_b32 v{T+2}, 4, v{vHH}")
    def touches(items, nwg=256):
        a(f"s_and_b32 s{sT0}, s2, 255\nv_lshlrev_b32 v193, 7, v{vLANE}")
        Lj = newlab("tj")
        for w, (sr_, n) in enumerate(items):
            L = newlab("tc")
            if w < 3: a(f"s_cmp_lg_u32 s{sW}, {w}\ns_cbranch_scc1 {L}")
            if sr_ == "code":
                a(f"s_getpc_b64 s[{sWA}:{sWA+1}]")
                a.label("L_pc")
                a(f"s_sub_u32 s{sWA}, s{sWA}, L_pc-{NAME}_kernel\ns_subb_u32 s{sWA+1}, s{sWA+1}, 0\ns_mov_b32 s{sWA+2}, L_code_end-{NAME}_kernel\ns_mov_b32 s{sWA+3}, 0x20000")
                a(f"s_mov_b32 s{sT0}, s{sLOC}"); sr_ = sWA
            if n <= 16: a("v_and_b32 v193, 0x7ff, v193")
            a(f"s_mul_i32 s{sT0}, s{sT0}, {n*128}\nbuffer_load_dword v192, v193, s[{sr_}:{sr_+3}], s{sT0} offen")
            if w < 3: a(f"s_branch {Lj}"); a.label(L)
        a.label(Lj)
        a.tok += 1; a.vmq.append(a.tok)
    if OPT["pf"] & 1: touches([(sW2, 13), ("code", 12), (sW2, 13), (sW2, 13)])
    if OPT["pf"] & 4: touches([(sW3, 49), (sW4, 49), (sWO, 13), (sWO, 13)])
    a(f"s_mul_i32 s{sT0}, s{sLOC}, 37\ns_lshr_b32 s{sT0}, s{sT0}, 8\ns_mul_i32 s{sT1}, s{sT0}, 7\ns_sub_u32 s{sCT}, s{sLOC}, s{sT1}")
    a(f"s_lshl_b32 s{sR64}, s{sXCD}, 2\ns_add_u32 s{sR64}, s{sR64}, s{sT0}\ns_lshr_b32 s{sRW}, s{sW}, 1\ns_and_b32 s{sCW}, s{sW}, 1")
    vXd = 60
    addr_wdma128(vWD, 64); addr_xdma(vXd, 2, 64)
    a.wait(vm=xl)
    stamp("b0_x")
    if OPT["pf"] & 16: touches([(sW3, 49), (sW4, 49), (sWO, 13), (sW2, 13)])
    no = a.vm(f"buffer_load_dwordx2 v[{vNO}:{vNO+1}], v{vZERO}, s[{sDBG}:{sDBG+3}], 0 offen sc1")
    for i in range(8): a(f"v_dot2c_f32_bf16 v{XR+8}, s{sONES}, v{XR+i}\nv_dot2c_f32_bf16 v{XR+10}, v{XR+i}, v{XR+i}")
    for r in (8, 4, 2, 1):
        for v in (XR + 8, XR + 10): a(f"v_add_f32_dpp v{v}, v{v}, v{v} row_ror:{r} row_mask:0xf bank_mask:0xf")
    for v in (XR + 8, XR + 10): a(f"v_mov_b32 v{v+1}, v{v}")
    for v in (XR + 8, XR + 10): a(f"v_permlane16_swap_b32 v{v}, v{v+1}")
    for v in (XR + 8, XR + 10): a(f"v_add_f32 v{v}, v{v}, v{v+1}")
    ln_stats(XR + 8, XR + 10, T)
    a(f"v_add_f32 v{XR+10}, {hx(f2u(EPS))}, v{XR+10}\nv_rsq_f32 v{XR+10}, v{XR+10}")
    a.wait(vm=no)
    check_nonce()
    a(f"v_mov_b32 v{XR+9}, v{vNO}\nv_mov_b32 v{XR+11}, v{vNO}\ns_mov_b32 exec_lo, 1\ns_mov_b32 exec_hi, 1")
    a(f"buffer_store_dwordx4 v[{XR+8}:{XR+11}], v{T+2}, s[{sWS}:{sWS+3}], s{sT4} offen sc1\ns_mov_b64 exec, -1")
    stamp("b0_rec")
    if OPT["nob"]: stamp_flush(); a("s_endpgm")
    if OPT["l2w3"]:
        nl = OPT["l2w3"]; rounds = (98 + nl - 1) // nl
        a(f"s_lshl_b32 s{sT0}, s{sLOC}, 2\ns_add_u32 s{sT0}, s{sT0}, s{sW}\ns_mul_i32 s{sT0}, s{sT0}, {98*128}\nv_min_u32 v193, {nl-1}, v{vLANE}\nv_lshlrev_b32 v193, 7, v193")
        for r in range(rounds):
            a(f"buffer_load_dword v192, v193, s[{sW3}:{sW3+3}], s{sT0} offen\ns_add_u32 s{sT0}, s{sT0}, {nl*128}\ns_waitcnt vmcnt(0)")
        a.vmq = []
        stamp("b0_l2")
    if OPT["pf"] & 2:
        go_poll(); touches([(sW3, 49), (sW4, 49), (sWO, 13), (sWO, 13)])
    a(f"s_cmp_ge_u32 s{sLOC}, 28\ns_cbranch_scc1 L_helper")
    if OPT["prio_b"]: a(f"s_setprio {OPT['prio_b']}")
    a(f"v_mul_u32_u24 v{vXo}, {PL}, v{vHH}\nv_lshl_add_u32 v{vXo}, v{vT_}, 4, v{vXo}\ns_lshl_b32 s{sT0}, s{sRW}, 9\nv_add_u32 v{vPLN}, s{sT0}, v{vXo}")
    a(f"s_xor_b32 s{sT0}, s{sT0}, 512\nv_add_u32 v{vGo1}, s{sT0}, v{vXo}")
    if OPT["map3"]:
        a(f"s_and_b32 s{sT0}, s{sXCD}, 1\ns_mul_i32 s{sT0}, s{sT0}, 7\ns_add_u32 s{sC3}, s{sT0}, s{sCT}")
        a(f"s_lshr_b32 s{sT0}, s{sXCD}, 1\ns_lshl_b32 s{sT0}, s{sT0}, 2\ns_and_b32 s{sT1}, s{sR64}, 3\ns_add_u32 s{sRB3}, s{sT0}, s{sT1}\ns_lshl_b32 s{sT0}, s{sT1}, 1")
    else:
        a(f"s_cmp_ge_u32 s{sLOC}, 14\ns_cselect_b32 s{sT0}, 1, 0\ns_cselect_b32 s{sT1}, 14, 0\ns_sub_u32 s{sC3}, s{sLOC}, s{sT1}")
        a(f"s_lshl_b32 s{sRB3}, s{sXCD}, 1\ns_add_u32 s{sRB3}, s{sRB3}, s{sT0}\ns_mul_i32 s{sT0}, s{sT0}, 3")
    a(f"s_add_u32 s{sT0}, s{sT0}, s{sCT}\ns_sub_u32 s{sT1}, s{sT0}, 7\ns_cselect_b32 s{sT0}, s{sT0}, s{sT1}")
    rot7(sK3, sT0)
    a(f"s_and_b32 s{sT0}, s{sR64}, 3\ns_lshl_b32 s{sT0}, s{sT0}, 1\ns_add_u32 s{sT0}, s{sT0}, s{sCT}\ns_sub_u32 s{sT1}, s{sT0}, 7\ns_cselect_b32 s{sT0}, s{sT0}, s{sT1}")
    rot7(sG4, sT0)
    a(f"s_mul_i32 s{sT1}, s{sW}, {16*3584}\ns_lshl_b32 s{sT2}, s{sC3}, 8\ns_add_u32 s{sT1}, s{sT1}, s{sT2}")
    a(f"s_mul_i32 s{sT0}, s{sW}, {448*896}\ns_lshl_b32 s{sT2}, s{sCT}, 7\ns_add_u32 s{sT0}, s{sT0}, s{sT2}")
    a(f"s_mul_i32 s{sWOo}, s{sW}, {112*896}\ns_add_u32 s{sWOo}, s{sWOo}, s{sT2}")
    a(f"s_lshl_b32 s{sT2}, s{sR64}, 10\ns_mul_i32 s{sT3}, s{sW}, {56*PL}\ns_add_u32 s{sT3}, s{sT3}, s{sT2}\ns_add_u32 s{sT3}, s{sT3}, {G_}")
    a(f"s_mul_i32 s{sOo}, s{sW}, {16*PL}\ns_add_u32 s{sOo}, s{sOo}, s{sT2}\ns_add_u32 s{sOo}, s{sOo}, {O_}")
    a(f"s_lshl_b32 s{sT4}, s{sRB3}, 2\ns_add_u32 s{sT4}, s{sT4}, s{sW}\ns_lshl_b32 s{sSO}, s{sT4}, 8\ns_add_u32 s{sSO}, s{sSO}, {ST1}\ns_lshl_b32 s{sT4}, s{sT4}, 9")
    for c in range(7):
        a(f"s_mul_i32 s{sW3O+c}, s{sK3+c}, {64*3584}\ns_add_u32 s{sW3O+c}, s{sW3O+c}, s{sT1}")
        a(f"s_mul_i32 s{sW4o+c}, s{sG4+c}, {64*896}\ns_add_u32 s{sW4o+c}, s{sW4o+c}, s{sT0}")
        a(f"s_mul_i32 s{sG4+c}, s{sG4+c}, {8*PL}\ns_add_u32 s{sG4+c}, s{sG4+c}, s{sT3}")
        a(f"s_mul_i32 s{sK3+c}, s{sK3+c}, {8*PL}\ns_add_u32 s{sK3+c}, s{sK3+c}, s{sT4}\ns_add_u32 s{sK3+c}, s{sK3+c}, {X1}")
    a(f"s_mul_i32 s{sT1}, s{sC3}, {16*PL}\ns_add_u32 s{sT4}, s{sT4}, s{sT1}\ns_add_u32 s{sT4}, s{sT4}, {G_}")
    for u in range(4): a(f"s_add_u32 s{sT0}, s{sW}, {u}\ns_and_b32 s{sT0}, s{sT0}, 3\ns_mul_i32 s{sT0}, s{sT0}, {4*PL}\ns_add_u32 s{sGS+u}, s{sT0}, s{sT4}")
    a(f"s_lshl_b32 s{sM03}, s{sW}, 12\ns_mul_i32 s{sM04}, s{sW}, {NZ*2048}")
    a(f"s_lshl_b32 s{sT2}, s{sCT}, 1\ns_add_u32 s{sT2}, s{sT2}, s{sCW}\ns_mul_i32 s{sT0}, s{sT2}, {4*PL}\ns_lshl_b32 s{sT1}, s{sR64}, 10")
    a(f"s_add_u32 s{sT0}, s{sT0}, s{sT1}\ns_add_u32 s{sX1D}, s{sT0}, {X1}\ns_lshl_b32 s{sST1D}, s{sT2}, 14\ns_add_u32 s{sST1D}, s{sST1D}, {ST1}")
    a(f"s_lshl_b32 s{sT2}, s{sT2}, 6\ns_lshl_b32 s{sT0}, s{sR64}, 1\ns_add_u32 s{sT0}, s{sT0}, s{sRW}\ns_mul_i32 s{sOUTD}, s{sT0}, {32*896}\ns_add_u32 s{sOUTD}, s{sOUTD}, s{sT2}")
    a(f"s_lshl_b32 s{sT0}, s{sR64}, 3\ns_add_u32 s{sT0}, s{sT0}, s{sCT}\ns_lshl_b32 s{sT0}, s{sT0}, 7\ns_add_u32 s{sFX1}, s{sT0}, {FLG + F_X1*FT}")
    a(f"s_lshl_b32 s{sT0}, s{sRB3}, 4\ns_add_u32 s{sT0}, s{sT0}, s{sC3}\ns_lshl_b32 s{sT0}, s{sT0}, 7\ns_add_u32 s{sFG}, s{sT0}, {FLG + F_G*FT}")
    a(f"s_movk_i32 s{sT3}, 3584")
    addr_wdma256(vWd3, sT3, T)
    addr_wrd256(vWr3, 64, T)
    a(f"s_lshl_b32 s{sT1}, s{sW}, 9\ns_add_u32 s{sT1}, s{sT1}, {CSB3}\nv_lshl_add_u32 v{vCW3}, v{vLANE}, 3, s{sT1}")
    for u in range(4):
        a(f"s_add_u32 s{sT0}, s{sW}, {u}\ns_and_b32 s{sT0}, s{sT0}, 3\ns_lshl_b32 s{sT0}, s{sT0}, 7\ns_add_u32 s{sT0}, s{sT0}, s{sT1}\nv_lshl_add_u32 v{vCA3+u}, v{vHH}, 4, s{sT0}")
    addr_wrd128(vWr4, 4, sCW, sM04, T)
    a(f"v_xor_b32 v{vWr4+1}, 64, v{vWr4}")
    a(f"v_mul_u32_u24 v{vSo}, {7*16384}, v{vHH}\nv_lshl_add_u32 v{vSo}, v{vT_}, 3, v{vSo}")
    a(f"s_lshl_b32 s{sT0}, s{sR64}, 6\ns_lshl_b32 s{sT1}, s{sRW}, 5\ns_add_u32 s{sT0}, s{sT0}, s{sT1}\nv_add_u32 v{T}, s{sT0}, v{vT_}")
    a(f"v_lshlrev_b32 v{vST+2}, 3, v{T}\nv_lshlrev_b32 v{T+4}, 4, v{T}")
    a(f"v_mul_u32_u24 v{T+1}, {PL}, v{vHH}\nv_mov_b32 v{T+3}, 0x7fff0000\ns_movk_i32 s{sT2}, 2048")
    a(f"s_add_u32 s{sT0}, s{sCW}, 1")
    for g, op in enumerate(("v_subrev_u32", "v_add_u32")):
        a(f"{op} v{T+2}, s{sT0}, v{T}\nv_cmp_gt_u32 vcc, s{sT2}, v{T+2}\nv_lshl_add_u32 v{vSH+g}, v{T+2}, 4, v{T+1}\nv_cndmask_b32 v{vSH+g}, v{T+3}, v{vSH+g}, vcc")
    if not OPT["pf"] & 2: go_poll()
    a(f"s_lshl_b32 s{sT0}, s{sR64}, 2\ns_add_u32 s{sT0}, s{sT0}, s{sW}\ns_mul_i32 s{sT0}, s{sT0}, {16*896}\ns_lshl_b32 s{sT1}, s{sCT}, 7\ns_add_u32 s{sT0}, s{sT0}, s{sT1}")
    a(f"s_lshl_b32 s{sT2}, s{sW}, 11"); set_m0(sT2, 57344)
    for q in range(2): a.vm(f"buffer_load_dwordx4 v{vXd+q}, s[{sX}:{sX+3}], s{sT0} offen offset:{1024*q} lds")
    a(f"s_mul_i32 s{sT0}, s{sW}, {112*896}\ns_add_u32 s{sT0}, s{sT0}, s{sT1}\ns_mul_i32 s{sT1}, s{sW}, 14336")
    a(f"s_and_b32 s{sT2}, s{sR64}, 3\ns_lshl_b32 s{sT2}, s{sT2}, 1")
    def w2q(q):
        a(f"s_mul_i32 s{sT4}, s{sT2}, {16*896}\ns_add_u32 s{sT4}, s{sT4}, s{sT0}\ns_lshl_b32 s{sT5}, s{sT2}, 11\ns_add_u32 m0, s{sT5}, s{sT1}")
        tk = [a.vm(f"buffer_load_dwordx4 v{vWD+j}, s[{sW2}:{sW2+3}], s{sT4} offen offset:{1024*j} lds") for j in range(2)]
        if q < 6: a(f"s_add_u32 s{sT2}, s{sT2}, 1\ns_cmp_eq_u32 s{sT2}, 7\ns_cselect_b32 s{sT2}, 0, s{sT2}")
        return tk
    throttled([lambda q=q: w2q(q) for q in range(7)], OPT["thr"])
    REC = 160
    a(f"s_mov_b32 s{sT4}, {ST0}")
    check_record(REC, T + 4, sT4, loaded=False)
    a("s_barrier")
    stamp("b0_w2")
    if OPT["pf"] & 8: touches([(sW3, 56), (sW4, 56), (sWO, 14), (sWO, 14)], 224)
    ACC, W2F, XV, vWr = 16, 48, 164, 172
    a(f"s_mul_i32 s{sT3}, s{sCW}, 28672")
    addr_wrd128(vWr, 4, sCW, sT3, T)
    a(f"v_xor_b32 v{vWr+1}, 64, v{vWr}")
    a(f"v_bfe_u32 v{T}, v{vT_}, 1, 3\ns_lshl_b32 s{sT0}, s{sCW}, 2\nv_xor_b32 v{T}, s{sT0}, v{T}\nv_lshlrev_b32 v{T}, 4, v{T}")
    a(f"v_lshl_add_u32 v{T}, v{vT_}, 7, v{T}\nv_lshl_add_u32 v{T}, v{vHH}, 3, v{T}\ns_lshl_b32 s{sT0}, s{sRW}, 12\nv_add_u32 v{T}, s{sT0}, v{T}")
    for i in range(4):
        a(f"v_xor_b32 v{T+1}, {16*i}, v{T}")
        a.lg(f"ds_read_b64 v[{XV+2*i}:{XV+2*i+1}], v{T+1} offset:57344")
    for s in range(14):
        for b in range(2):
            for jj in range(2): a.lg(f"ds_read_b64_tr_b16 v[{W2F+8*s+4*b+2*jj}:{W2F+8*s+4*b+2*jj+1}], v{vWr+b} offset:{s*2048 + jj*1024}")
            if len(a.lgq) > 12: a.wait(lg=a.lgq[-11])
    a.wait_all(vm=False); a("s_barrier")
    m0 = [None]
    def issue_w(c, qs=range(4)):
        if m0[0] != c: set_m0(sM03, (c % 5) * 16384); m0[0] = c
        return [a.vm(f"buffer_load_dwordx4 v{vWd3+q}, s[{sW3}:{sW3+3}], s{sW3O+c} offen offset:{1024*q} lds") for q in qs]
    B3["issue_w"] = issue_w; B3["wt"] = {}
    def w3c(c, q):
        t = issue_w(c, (q,)); B3["wt"].setdefault(c, []).extend(t); return t
    B3["pieces"] = [lambda c=c, q=q: w3c(c, q) for c in range(5) for q in range(4)]
    if OPT["w3a"] and OPT["w3t"]:
        a(f"s_lshr_b32 s{sT0}, s{sXCD}, 1\ns_lshl_b32 s{sT0}, s{sT0}, 2\ns_lshr_b32 s{sT1}, s{sLOC}, 3\ns_add_u32 s{sT0}, s{sT0}, s{sT1}\ns_lshl_b32 s{sT0}, s{sT0}, 4")
        a(f"s_and_b32 s{sT1}, s{sXCD}, 1\ns_lshl_b32 s{sT1}, s{sT1}, 3\ns_add_u32 s{sT0}, s{sT0}, s{sT1}\ns_and_b32 s{sT1}, s{sLOC}, 7\ns_add_u32 s{sT0}, s{sT0}, s{sT1}")
        a(f"s_lshl_b32 s{sT0}, s{sT0}, 7\ns_add_u32 s{sT0}, s{sT0}, {FLG + F_QKV*FT}\nv_mov_b32 v{vPO}, s{sT0}")
        poll()
        stamp("b0_ap")
    for t in B3["pieces"][:OPT["w3a"]]: t()
    for i in range(8):
        a(f"v_lshlrev_b32 v{RES+2*i}, 16, v{XV+i}\nv_and_b32 v{RES+2*i+1}, 0xffff0000, v{XV+i}")
    a(f"v_mov_b32 v{vA}, v{REC+2}\nv_mul_f32 v{vB}, v{REC}, v{REC+2}\nv_sub_f32 v{vB}, 0, v{vB}")
    for i in range(0, 16, 2):
        a(f"v_pk_fma_f32 v[{ACC+i}:{ACC+i+1}], v[{RES+i}:{RES+i+1}], v[{vA}:{vA+1}], v[{vB}:{vB+1}] op_sel_hi:[1,0,0]")

def helper():
    a.label("L_helper")
    a.vmq = []; a.lgq = []
    prev_stamp[0] = stamp_names.get("b0_rec")
    if OPT["prio_h"]: a(f"s_setprio {OPT['prio_h']}")
    T = TB
    a(f"s_lshr_b32 s{sT0}, s{sXCD}, 1\ns_lshl_b32 s{sT0}, s{sT0}, 2\ns_add_u32 s{sT0}, s{sT0}, 3\ns_lshl_b32 s{sT0}, s{sT0}, 4")
    a(f"s_and_b32 s{sT1}, s{sXCD}, 1\ns_lshl_b32 s{sT1}, s{sT1}, 3\ns_add_u32 s{sT0}, s{sT0}, s{sT1}\ns_and_b32 s{sT1}, s{sLOC}, 7\ns_add_u32 s{sT0}, s{sT0}, s{sT1}")
    a(f"s_lshl_b32 s{sT0}, s{sT0}, 7\ns_add_u32 s{sT0}, s{sT0}, {FLG + F_QKV*FT}\nv_mov_b32 v{vPO}, s{sT0}")
    if OPT["hwait"] == 1: poll()
    if OPT["hwait"] == 2: go_poll(False)
    stamp("h_go")
    sB = sT4; LD, SUM = 16, 80
    a(f"s_and_b32 s{sB}, s2, 255\ns_sub_u32 s{sB}, s{sB}, 224\ns_cmp_ge_u32 s{sB}, 28\ns_cbranch_scc1 L_nocs")
    a(f"s_mul_i32 s{sT0}, s{sW}, {112*3584}\ns_lshl_b32 s{sT1}, s{sB}, 7\ns_add_u32 s{sT0}, s{sT0}, s{sT1}")
    a(f"v_lshrrev_b32 v{T}, 3, v{vLANE}\nv_mul_u32_u24 v{T}, 3584, v{T}\nv_and_b32 v{T+1}, 7, v{vLANE}\nv_lshl_add_u32 v{T}, v{T+1}, 4, v{T}")
    tk = []
    for i in range(14):
        tk.append(a.vm(f"buffer_load_dwordx4 v[{LD+4*i}:{LD+4*i+3}], v{T}, s[{sW3}:{sW3+3}], s{sT0} offen"))
        if i < 13: a(f"s_add_u32 s{sT0}, s{sT0}, {8*3584}")
        if i >= OPT["hthr"]: a.wait(vm=tk[i - OPT["hthr"]])
    for k in range(8): a(f"v_mov_b32 v{SUM+k}, 0")
    for i in range(14):
        a.wait(vm=tk[i])
        for k in range(4):
            a(f"v_lshlrev_b32 v{T+2}, 16, v{LD+4*i+k}\nv_and_b32 v{T+3}, 0xffff0000, v{LD+4*i+k}\nv_pk_add_f32 v[{SUM+2*k}:{SUM+2*k+1}], v[{SUM+2*k}:{SUM+2*k+1}], v[{T+2}:{T+3}]")
    stamp("h_ld")
    for k in range(8): a(f"v_add_f32_dpp v{SUM+k}, v{SUM+k}, v{SUM+k} row_ror:8 row_mask:0xf bank_mask:0xf")
    for op in ("v_permlane16_swap_b32", "v_permlane32_swap_b32"):
        for k in range(8): a(f"v_mov_b32 v{SUM+8+k}, v{SUM+k}")
        for k in range(8): a(f"{op} v{SUM+k}, v{SUM+8+k}")
        for k in range(8): a(f"v_add_f32 v{SUM+k}, v{SUM+k}, v{SUM+8+k}")
    a(f"s_lshl_b32 s{sT0}, s{sW}, 8\nv_lshlrev_b32 v{T+1}, 5, v{T+1}\nv_add_u32 v{T+2}, s{sT0}, v{T+1}")
    a(f"ds_write_b128 v{T+2}, v[{SUM}:{SUM+3}]\nds_write_b128 v{T+2}, v[{SUM+4}:{SUM+7}] offset:16\ns_waitcnt lgkmcnt(0)\ns_barrier")
    a(f"v_lshlrev_b32 v{T+2}, 2, v{vLANE}")
    for w2 in range(4): a(f"ds_read_b32 v{SUM+w2}, v{T+2} offset:{256*w2}")
    a(f"s_waitcnt lgkmcnt(0)\nv_add_f32 v{SUM}, v{SUM}, v{SUM+1}\nv_add_f32 v{SUM+2}, v{SUM+2}, v{SUM+3}\nv_add_f32 v{SUM}, v{SUM}, v{SUM+2}")
    a(f"s_lshl_b32 s{sT0}, s{sB}, 8\ns_add_u32 s{sT0}, s{sT0}, {CS3}\ns_lshl_b32 s{sT1}, s{sB}, 7\ns_add_u32 s{sT1}, s{sT1}, {FLG + F_CS*FT}")
    a(f"s_cmp_lg_u32 s{sW}, 0\ns_cbranch_scc1 L_nocs")
    a(f"buffer_store_dword v{SUM}, v{T+2}, s[{sWS}:{sWS+3}], s{sT0} offen sc1\ns_waitcnt vmcnt(0)")
    publish(sT1, barrier=False)
    a.label("L_nocs")
    a.vmq = []
    stamp("h_cs")
    if OPT["l2w4"]:
        nl = OPT["l2w4"]
        a(f"s_sub_u32 s{sT1}, s{sLOC}, 28\ns_lshl_b32 s{sT1}, s{sT1}, 2\ns_add_u32 s{sT1}, s{sT1}, s{sW}\nv_min_u32 v193, {nl-1}, v{vLANE}\nv_lshlrev_b32 v193, 7, v193")
        for sr_, lines in ((sW4, 784), (sWO, 196)):
            L = newlab("pf"); R = (lines + nl - 1) // nl
            a(f"s_mul_i32 s{sT3}, s{sT1}, {lines*128}\ns_mul_i32 s{sT4}, s{sXCD}, {R}\ns_lshr_b32 s{sT4}, s{sT4}, 3\ns_mov_b32 s{sT2}, {R}")
            a.label(L)
            a(f"s_mul_i32 s{sT0}, s{sT4}, {nl*128}\ns_add_u32 s{sT0}, s{sT0}, s{sT3}")
            a(f"buffer_load_dword v192, v193, s[{sr_}:{sr_+3}], s{sT0} offen\ns_add_u32 s{sT4}, s{sT4}, 1\ns_cmp_eq_u32 s{sT4}, {R}\ns_cselect_b32 s{sT4}, 0, s{sT4}\ns_waitcnt vmcnt(0)")
            a(f"s_sub_u32 s{sT2}, s{sT2}, 1\ns_cmp_lg_u32 s{sT2}, 0\ns_cbranch_scc1 {L}")
    stamp("h_w4"); stamp_flush()
    if OPT["clr"]:
        a(f"s_and_b32 s{sT0}, s2, 255\ns_cmp_lg_u32 s{sT0}, 255\ns_cbranch_scc1 L_end")
        a(f"s_lshl_b32 s{sT0}, s{sW}, 13\ns_add_u32 s{sT0}, s{sT0}, {FLG + F_O*FT}\nv_lshl_add_u32 v{vPO}, v{vLANE}, 7, s{sT0}")
        poll(sleep=32)
        a(f"s_barrier\ns_cmp_lg_u32 s{sW}, 0\ns_cbranch_scc1 L_end\nv_mov_b32 v{vP0}, 0\nv_mov_b32 v{vP0+1}, 0\ns_mov_b64 exec, 1")
        a(f"buffer_store_dwordx2 v[{vP0}:{vP0+1}], v{vZERO}, s[{sDBG}:{sDBG+3}], 0 offen sc1")
    a("s_endpgm")

def stage_B2():
    a.comment("==== B2: x1 = xn + shift(h) @ w2, 64 x 64 tile")
    ACC, W2F, HF, NH = 16, 48, 160, 8
    T = TB
    a(f"s_lshr_b32 s{sT0}, s{sR64}, 1\ns_and_b32 s{sT1}, s{sR64}, 1\ns_lshl_b32 s{sT1}, s{sT1}, 1\ns_add_u32 s{sT1}, s{sT1}, s{sT0}\ns_sub_u32 s{sT1}, s{sT1}, 1")
    a(f"s_max_i32 s{sT1}, s{sT1}, 0\ns_min_i32 s{sT1}, s{sT1}, 15\ns_lshl_b32 s{sT2}, s{sCW}, 8\ns_add_u32 s{sT2}, s{sT2}, {FLG + F_QKV*FT + 12*128}")
    a(f"v_mov_b32 v{T}, s{sT0}\nv_mov_b32 v{T+1}, s{sT1}\nv_cmp_gt_u32 vcc, 2, v{vLANE}\nv_cndmask_b32 v{T}, v{T+1}, v{T}, vcc")
    a(f"v_and_b32 v{T+1}, 1, v{vLANE}\nv_lshl_add_u32 v{T}, v{T}, 4, v{T+1}\nv_lshlrev_b32 v{T}, 7, v{T}\nv_add_u32 v{vPO}, s{sT2}, v{T}")
    a(f"s_mul_i32 s{sT0}, s{sCW}, {28*PL}\ns_add_u32 s{sT0}, s{sT0}, {H_}\ns_add_u32 s{sT1}, s{sX1D}, {2*PL}")
    vW, vR = vSH + 2, vSH + 3
    a(f"s_lshl_b32 s{sT2}, s{sW}, 12\ns_add_u32 s{sT2}, s{sT2}, 65536\nv_add_u32 v{vW}, s{sT2}, v{vL16}\nv_xor_b32 v{vR}, 4096, v{vW}")
    stamp("b2_ready")
    poll()
    stamp("b2_poll")
    ht = []
    def hload():
        ks = len(ht); r = HF + 4 * (ks % NH)
        ht.append(a.vm(f"buffer_load_dwordx4 v[{r}:{r+3}], v{vSH + ks//7}, s[{sWS}:{sWS+3}], s{sT0} offen sc1"))
        if ks < 13: a(f"s_add_u32 s{sT0}, s{sT0}, {2*PL}")
    for ks in range(NH): hload()
    a(f"s_lshl_b32 s{sT2}, s{sRB3}, 1\ns_add_u32 s{sT2}, s{sT2}, s{sRW}\ns_lshl_b32 s{sT2}, s{sT2}, 10\ns_add_u32 s{sT2}, s{sT2}, {FLG + F_X1*FT}")
    a(f"v_min_u32 v{T}, 6, v{vLANE}\nv_lshl_add_u32 v{vPO}, v{T}, 7, s{sT2}")
    for s in range(14):
        a.wait(vm=ht[s])
        if s == 0: stamp("b2_h0")
        mfma(ACC + 16, W2F + 8 * s + 4, HF + 4 * (s % NH), first=(s == 0))
        mfma(ACC, W2F + 8 * s, HF + 4 * (s % NH))
        if len(ht) < 14: hload()
    stamp("b2_main")
    for i in range(4): a.lg(f"ds_write_b128 v{vW}, v[{ACC+16+4*i}:{ACC+16+4*i+3}] offset:{1024*i}")
    a.wait_all(vm=False); a("s_barrier")
    tk = [a.lg(f"ds_read_b128 v[{ACC+16+4*i}:{ACC+16+4*i+3}], v{vR} offset:{1024*i}") for i in range(4)]
    for i in range(4):
        a.wait(lg=tk[i])
        for k in (0, 2): a(f"v_pk_add_f32 v[{ACC+4*i+k}:{ACC+4*i+k+1}], v[{ACC+4*i+k}:{ACC+4*i+k+1}], v[{ACC+16+4*i+k}:{ACC+16+4*i+k+1}]")
    PK = 48; sts = []
    cvt16(PK, ACC)
    for p in range(2):
        a(f"v_permlane32_swap_b32 v{PK+4*p}, v{PK+4*p+2}\nv_permlane32_swap_b32 v{PK+4*p+1}, v{PK+4*p+3}")
        sts.append(a.vm(f"buffer_store_dwordx4 v[{PK+4*p}:{PK+4*p+3}], v{vPLN}, s[{sWS}:{sWS+3}], s{sT1 if p else sX1D} offen sc1"))
    a(f"v_pk_add_f32 v[{T}:{T+1}], v[{ACC}:{ACC+1}], v[{ACC+2}:{ACC+3}]\nv_pk_mul_f32 v[{T+2}:{T+3}], v[{ACC}:{ACC+1}], v[{ACC}:{ACC+1}]")
    a(f"v_pk_fma_f32 v[{T+2}:{T+3}], v[{ACC+2}:{ACC+3}], v[{ACC+2}:{ACC+3}], v[{T+2}:{T+3}]")
    for i in range(4, 16, 2):
        a(f"v_pk_add_f32 v[{T}:{T+1}], v[{T}:{T+1}], v[{ACC+i}:{ACC+i+1}]\nv_pk_fma_f32 v[{T+2}:{T+3}], v[{ACC+i}:{ACC+i+1}], v[{ACC+i}:{ACC+i+1}], v[{T+2}:{T+3}]")
    a(f"v_add_f32 v{T}, v{T}, v{T+1}\nv_add_f32 v{T+2}, v{T+2}, v{T+3}\nv_mov_b32 v{T+1}, v{T}\nv_mov_b32 v{T+3}, v{T+2}")
    a(f"v_permlane32_swap_b32 v{T}, v{T+1}\nv_permlane32_swap_b32 v{T+2}, v{T+3}\nv_add_f32 v{vST}, v{T}, v{T+1}\nv_add_f32 v{vST+1}, v{T+2}, v{T+3}")
    sts.append(a.vm(f"buffer_store_dwordx2 v[{vST}:{vST+1}], v{vST+2}, s[{sWS}:{sWS+3}], s{sST1D} offen sc1"))
    for i in range(0, 16, 2): a(f"v_pk_add_f32 v[{RES+i}:{RES+i+1}], v[{RES+i}:{RES+i+1}], v[{ACC+i}:{ACC+i+1}]")
    stamp("b2_st")
    n0 = OPT["w3a"]; n1 = max(n0, OPT["w3b"])
    for t in B3["pieces"][n0:n1]: t()
    a.wait(vm=sts); a("s_barrier")
    publish(sFX1, barrier=False)
    stamp("b2_pub")
    n2 = max(n1, OPT["w3c"])
    for t in B3["pieces"][n1:n2]: t()
    B3["stream"] = B3["pieces"][n2:]

def stage_B3():
    a.comment("==== B3: g = gelu(LN(x1) @ w3), 128 x 128 tile")
    ACC, XF, NX, WF, ST = 16, 80, 16, 144, 176
    T = TB
    poll()
    stamp("b3_poll")
    xt = []
    def xload():
        s = len(xt); c, ks = divmod(s, 4); r = XF + 4 * (s % NX)
        so = sK3 + c
        if ks: a(f"s_add_u32 s{sT0}, s{sK3+c}, {2*ks*PL}"); so = sT0
        xt.append(a.vm(f"buffer_load_dwordx4 v[{r}:{r+3}], v{vXo}, s[{sWS}:{sWS+3}], s{so} offen sc1"))
    for s in range(6): xload()
    stt = []; cst = []; cft = []
    def stat_load():
        i = len(stt)
        if i: a(f"s_add_u32 s{sSO}, s{sSO}, 16384")
        stt.append(a.vm(f"buffer_load_dwordx2 v[{ST+2*i}:{ST+2*i+1}], v{vSo}, s[{sWS}:{sWS+3}], s{sSO} offen sc1"))
    def kstep(s):
        th = []
        n = len(xt)
        for k in range(2):
            if n + k < 28 and n + k < s + NX and n + k <= s + 13: th.append(xload)
        if 16 <= s < 23: th.append(stat_load)
        if s == 14:
            def csflag():
                a(f"s_lshl_b32 s{sT0}, s{sC3}, 8\ns_add_u32 s{sT0}, s{sT0}, {FLG + F_CS*FT}\nv_and_b32 v{vPO}, 1, v{vLANE}\nv_lshl_add_u32 v{vPO}, v{vPO}, 7, s{sT0}")
                cft.append(a.vm(f"buffer_load_dwordx2 v[{vP0}:{vP0+1}], v{vPO}, s[{sWS}:{sWS+3}], 0 offen sc1"))
            th.append(csflag)
        if s == 19:
            def csload():
                L = newlab("cc")
                a.wait(vm=cft); q = list(a.vmq)
                a(f"v_cmp_ne_u64 vcc, v[{vP0}:{vP0+1}], v[{vNO}:{vNO+1}]\ns_cbranch_vccz {L}")
                poll(); a.label(L); a.vmq = q
                a(f"s_lshl_b32 s{sT0}, s{sC3}, 9\ns_add_u32 s{sT0}, s{sT0}, {CS3}\nv_lshlrev_b32 v{SEL3}, 3, v{vLANE}")
                cst.append(a.vm(f"buffer_load_dwordx2 v[{CS43}:{CS43+1}], v{SEL3}, s[{sWS}:{sWS+3}], s{sT0} offen sc1"))
            th.append(csload)
        if s == 25:
            def cswrite():
                a.wait(vm=cst); a.lg(f"ds_write_b64 v{vCW3}, v[{CS43}:{CS43+1}]")
            th.append(cswrite)
        return th
    hooks = dict(before_barrier=lambda c: None, after_barrier=lambda c: [], lg_need=lambda s: [], vm_need=lambda s: [xt[s]], kstep=kstep)
    PAD[0] = OPT["pad3"]
    panel_mainloop("b3", ACC, WF, vWr3, 5, lambda s: XF + 4 * (s % NX), B3["issue_w"], B3["wt"], hooks, None, None, stream=B3["stream"])
    PAD[0] = 0
    stamp("b3_main")
    CS, GT, PK = 80, 144, 160
    toks = [read_cs(CS + 16 * u, vCA3 + u) for u in range(3)]
    a.wait(vm=stt)
    for i in (2, 4): a(f"v_pk_add_f32 v[{ST}:{ST+1}], v[{ST}:{ST+1}], v[{ST+i}:{ST+i+1}]\nv_pk_add_f32 v[{ST+6}:{ST+7}], v[{ST+6}:{ST+7}], v[{ST+6+i}:{ST+7+i}]")
    a(f"v_pk_add_f32 v[{ST}:{ST+1}], v[{ST}:{ST+1}], v[{ST+12}:{ST+13}]\nv_pk_add_f32 v[{ST}:{ST+1}], v[{ST}:{ST+1}], v[{ST+6}:{ST+7}]")
    a(f"v_mov_b32 v{ST+2}, v{ST}\nv_mov_b32 v{ST+3}, v{ST+1}\nv_permlane32_swap_b32 v{ST}, v{ST+2}\nv_permlane32_swap_b32 v{ST+1}, v{ST+3}")
    a(f"v_pk_add_f32 v[{ST}:{ST+1}], v[{ST}:{ST+1}], v[{ST+2}:{ST+3}]")
    ln_stats(ST, ST + 1, T)
    a(f"v_add_f32 v{ST+1}, {hx(f2u(EPS))}, v{ST+1}\nv_rsq_f32 v{vA}, v{ST+1}\nv_sub_f32 v{vB}, 0, v{ST}")
    gelu_consts(ST + 2, vA)
    a.wait(lg=toks[0])
    toks.append(read_cs(CS + 48, vCA3 + 3))
    stamp("b3_csbar")
    def issue_w4(j):
        set_m0(sM04, (j % NZ) * 2048)
        if j < 28:
            c, ks = divmod(j, 4); srd_, base, add = sW4, sW4o + c, ks * 16 * 896
        else:
            hd, m = divmod(j - 28, 2); srd_, base, add = sWO, sWOo, (28 * hd + 16 * m) * 896
        so = base
        if add: a(f"s_add_u32 s{sT5}, s{base}, {add}"); so = sT5
        return [a.vm(f"buffer_load_dwordx4 v{vWD+q}, s[{srd_}:{srd_+3}], s{so} offen offset:{1024*q} lds") for q in range(2)]
    B4["issue_w"] = issue_w4; B4["wt"] = {}
    cnt = [0]
    def hook():
        cnt[0] += 1
        j = len(B4["wt"])
        if cnt[0] == 1: a("s_barrier")
        if j < NZ and cnt[0] % 2 == 0: B4["wt"][j] = issue_w4(j)
    for u in range(4):
        a.wait(lg=toks[u]); shift16(ACC + 16 * u, CS + 16 * u)
        gelu16(ACC + 16 * u, GT, ST + 2, hook)
        pk = PK + 8 * (u & 1)
        cvt16(pk, ACC + 16 * u)
        a(f"s_add_u32 s{sT1}, s{sGS+u}, {2*PL}")
        a.vm(f"buffer_store_dwordx4 v[{pk}:{pk+3}], v{vXo}, s[{sWS}:{sWS+3}], s{sGS+u} offen sc1")
        a.vm(f"buffer_store_dwordx4 v[{pk+4}:{pk+7}], v{vXo}, s[{sWS}:{sWS+3}], s{sT1} offen sc1")
    assert len(B4["wt"]) == NZ
    stamp("b3_epi")
    sts = a.vmq[-2:]
    NRG = OPT["nrg"]; WR = 144
    for j in range(NRG):
        a.wait(vm=B4["wt"][j])
        for b in range(2):
            for jj in range(2):
                r = WR + 8 * j + 4 * b + 2 * jj
                a.lg(f"ds_read_b64_tr_b16 v[{r}:{r+1}], v{vWr4+b} offset:{j*2048 + jj*1024}")
        if len(a.lgq) > 8: a.wait(lg=a.lgq[-5])
        if j == 0:
            for i in range(16): a(f"v_mov_b32 v{ACC+i}, v{RES+i}")
    a(f"s_lshr_b32 s{sT0}, s{sR64}, 1\ns_lshl_b32 s{sT0}, s{sT0}, 4\ns_mul_i32 s{sT1}, s{sW}, 7\ns_lshr_b32 s{sT1}, s{sT1}, 1\ns_add_u32 s{sT1}, s{sT1}, s{sT0}")
    a(f"v_and_b32 v{T}, 3, v{vLANE}\nv_add_u32 v{T+1}, s{sT1}, v{T}\nv_lshlrev_b32 v{T+1}, 7, v{T+1}\nv_add_u32 v{vPO}, {FLG + F_G*FT}, v{T+1}")
    a(f"s_lshl_b32 s{sT1}, s{sW}, 2\ns_add_u32 s{sT1}, s{sT1}, s{sT0}\nv_add_u32 v{T+1}, s{sT1}, v{T}\nv_lshlrev_b32 v{T+1}, 7, v{T+1}\nv_add_u32 v{T+7}, {FLG + F_O*FT}, v{T+1}")
    a(f"s_and_b32 s{sT1}, s{sR64}, 1\ns_lshl_b32 s{sT1}, s{sT1}, 4\nv_bfe_u32 v{T+1}, v{vLANE}, 2, 1\nv_lshl_add_u32 v{T+1}, v{T+1}, 3, s{sT1}\nv_add_u32 v{T+7}, v{T+7}, v{T+1}")
    if not NRG:
        for i in range(16): a(f"v_mov_b32 v{ACC+i}, v{RES+i}")
    a.wait_all(vm=False)
    n1 = min(NRG, OPT["w4b"])
    for j in range(n1): B4["wt"][NZ + j] = issue_w4(NZ + j)
    a.wait(vm=sts); a("s_barrier")
    publish(sFG, barrier=False)
    stamp("b3_pub")
    for j in range(n1, NRG): B4["wt"][NZ + j] = issue_w4(NZ + j)

def stage_B4():
    a.comment("==== B4: out = x + x1 + g @ w4 + o @ wo, 64 x 64 tile, k split over the waves")
    ACC, GF, WR, WF, T = 16, 80, 144, 208, TB
    NRG = OPT["nrg"]
    vGo = [vPLN, vGo1]; vPO2 = T + 7
    wt = B4["wt"]; issue_w = B4["issue_w"]
    rd = {}; gt = {}
    def reads(j):
        rd[j] = []
        if j < NRG: return []
        a.wait(vm=wt[j])
        return [lambda b=b, jj=jj: rd[j].append(a.lg(f"ds_read_b64_tr_b16 v[{WF+8*(j&1)+4*b+2*jj}:{WF+8*(j&1)+4*b+2*jj+1}], v{vWr4+b} offset:{(j%NZ)*2048 + jj*1024}")) for b in range(2) for jj in range(2)]
    def gload(j):
        if j < 28:
            c, ks = divmod(j, 4); base, add = sG4 + c, 2 * ks * PL
        else: base, add = sOo, 2 * (j - 28) * PL
        so = base
        if add: a(f"s_add_u32 s{sT4}, s{base}, {add}"); so = sT4
        r = GF + 8 * (j % 8)
        gt[j] = [a.vm(f"buffer_load_dwordx4 v[{r+4*aa}:{r+4*aa+3}], v{vGo[aa]}, s[{sWS}:{sWS+3}], s{so} offen sc1") for aa in range(2)]
    ot = []
    def ocheck():
        L = newlab("oc"); q = None
        a.wait(vm=ot)
        q = list(a.vmq)
        a(f"v_cmp_ne_u64 vcc, v[{vP0}:{vP0+1}], v[{vNO}:{vNO+1}]\ns_cbranch_vccz {L}\nv_mov_b32 v{vPO}, v{vPO2}")
        poll()
        a.label(L)
        a.vmq = q
        stamp("b4_opoll")
    for t in reads(0): t()
    poll()
    stamp("b4_poll")
    for j in range(4): gload(j)
    PAD[0] = OPT["pad4"]
    for j in range(36):
        if j == 28: stamp("b4_g")
        a.wait(vm=gt[j], lg=rd[j])
        if j in (0, 14): stamp(f"b4_j{j}")
        rds = reads(j + 1) if j + 1 < 36 else []
        late = []
        n = len(gt)
        jo = 28 - OPT["olead"]
        if j == jo - 3 and not OPT["noattn"]:
            late.append(lambda: ot.append(a.vm(f"buffer_load_dwordx2 v[{vP0}:{vP0+1}], v{vPO2}, s[{sWS}:{sWS+3}], 0 offen sc1")))
        if j == jo - 1 and not OPT["noattn"]: late.append(ocheck)
        for k in range(2):
            if n + k < 36 and n + k <= j + 7 and (n + k < 28 or j >= jo): late.append(lambda k=n + k: gload(k))
        if j + NZ < 36 and j >= NRG: late.append(lambda j=j: wt.__setitem__(j + NZ, issue_w(j + NZ)))
        g = GF + 8 * (j % 8); w = WF + 8 * (j & 1) if j >= NRG else WR + 8 * j
        for u in range(4):
            aa, b = divmod(u, 2)
            mfma(ACC + 16 * u, w + 4 * b, g + 4 * aa, first=(j == 0 and u > 0))
            if u == 0:
                for t in rds: t()
            elif late: late.pop(0)()
        for t in late: t()
    PAD[0] = 0
    stamp("b4_o")
    vW, vR = T, T + 1
    a(f"v_add_u32 v{vW}, s{sM04}, v{vL16}\nv_mul_u32_u24 v{T+2}, 896, v{vT_}\nv_lshl_add_u32 v{T+2}, v{vHH}, 4, v{T+2}")
    for u in range(1, 4):
        for i in range(4): a.lg(f"ds_write_b128 v{vW}, v[{ACC+16*u+4*i}:{ACC+16*u+4*i+3}] offset:{(u-1)*4096 + 1024*i}")
    a.wait_all(vm=False); a("s_barrier")
    stamp("b4_rbar")
    tk = []
    for u in range(1, 4):
        a(f"s_xor_b32 s{sT0}, s{sW}, {u}\ns_mul_i32 s{sT0}, s{sT0}, {NZ*2048}\nv_add_u32 v{vR}, s{sT0}, v{vL16}")
        tk.append([a.lg(f"ds_read_b128 v[{ACC+16*u+4*i}:{ACC+16*u+4*i+3}], v{vR} offset:{(u-1)*4096 + 1024*i}") for i in range(4)])
    for u in range(1, 4):
        a.wait(lg=tk[u - 1])
        for i in range(0, 16, 2): a(f"v_pk_add_f32 v[{ACC+i}:{ACC+i+1}], v[{ACC+i}:{ACC+i+1}], v[{ACC+16*u+i}:{ACC+16*u+i+1}]")
    PK = GF
    cvt16(PK, ACC)
    for p in range(2):
        a(f"v_permlane32_swap_b32 v{PK+4*p}, v{PK+4*p+2}\nv_permlane32_swap_b32 v{PK+4*p+1}, v{PK+4*p+3}")
        a.vm(f"buffer_store_dwordx4 v[{PK+4*p}:{PK+4*p+3}], v{T+2}, s[{sOUT}:{sOUT+3}], s{sOUTD} offen offset:{32*p}" + ["", " sc1", " nt", " sc0 sc1"][OPT["outsc"]])
    stamp("b4_end"); stamp_flush()

HEAD = f"""; parallel sum of an attention block and a spatial-shift MLP mixer.  One persistent launch, two workgroups per CU:
; @launch grid=(512,1,1) block=(256,1,1) lds={LDS_BYTES}
.amdgcn_target "amdgcn-amd-amdhsa--gfx950"
.text
.globl {NAME}_kernel
.p2align 8
.type {NAME}_kernel,@function
{NAME}_kernel:
"""
TAIL = f""".section .rodata,"a"
.p2align 6
.amdhsa_kernel {NAME}_kernel
  .amdhsa_next_free_vgpr 256
  .amdhsa_next_free_sgpr 102
  .amdhsa_accum_offset 256
  .amdhsa_group_segment_fixed_size 0
  .amdhsa_kernarg_size 88
  .amdhsa_user_sgpr_count 2
  .amdhsa_user_sgpr_kernarg_segment_ptr 1
  .amdhsa_system_sgpr_workgroup_id_x 1
.end_amdhsa_kernel
"""

def build():
    prologue()
    stage_A1()
    if OPT["noattn"]: stamp_flush(); a("s_endpgm")
    else: stage_A2()
    stage_B0()
    stage_B2()
    stage_B3()
    stage_B4()
    a.label("L_end")
    a("s_endpgm")
    helper()
    a.label("L_code_end")
    a.pad_hazards()
    size, nprom, nnop = fix_straddles(a, HEAD, TAIL, verbose=True)
    print(f"code bytes {size}, hazard nops {a.nops_inserted}, promoted {nprom}, straddle nops {nnop}")
    open(sys.argv[1], "w").write(HEAD + a.text() + TAIL + (("; roles: BA\n" if OPT["swap"] else "") + "; stamps: " + ",".join(stamp_names) + "\n" if OPT["stamps"] else ""))

if __name__ == "__main__":
    build()
```

```python
import sys, math, struct
from asmlib import *

NAME = "parallel_sum__mha_block__mixer_s_mlp__prompt"
OPT = dict(stamps=0, spin=400000, prio_b=1, pf=1, outsc=0, noattn=0, nob=0, nr=5, thr=64, go=12, prio_a1=2, prio_at=2, w2late=1, thra=6, swap=1, anf=1, thr3=6, w3a=0, w3b=3, aprio=1, pad3=2, pad4=0, xp=0, defer=0, w3c=20, l2w3=0, l2w4=0, clr=1, map3=1, split=0, prio_h=1, hwait=1, hthr=14, alate=64, aprio2=1, nrg=8, w4b=0, olead=5, dsw=1, a1s=2, w3t=1, dbgst=0, thr4=64, tw4=16, tw4d=3, tw3=0, wsoff=0)
for a in sys.argv[2:]:
    k, v = a.split("="); OPT[k] = int(v, 0)

def f2u(x): return struct.unpack("<I", struct.pack("<f", x))[0]
def hx(x): return hex(x & 0xffffffff)

S, D, F = 2048, 448, 1792
PL = 32768 + 256
FLG = 0; FT = 0x8000
F_QKV, F_GO, F_X1, F_G, F_O, F_CS = 0, 1, 2, 3, 4, 5
QB_ = 0x40000
KV_ = QB_ + 16 * 64 * 2048
H_ = KV_ + 16 * 64 * 4096
X1 = H_ + 0x1C4000
O_ = X1 + 0x1C4000
G_ = O_ + 0x204000
CS3 = G_ + 0x70E000
ST0 = CS3 + 0x2000
ST1 = ST0 + 0x8000
WS_SIZE = ST1 + 14 * 0x4000
STAMP = 0x1600000
if OPT['stamps']: WS_SIZE = STAMP + 0x80000
LDS_BYTES = 81920
EPS = 1e-5
QSCALE = (28 ** -0.5) * math.log2(math.e)
GA = -2.0 * math.log2(math.e) * math.sqrt(2.0 / math.pi)
GB = GA * 0.044715

sX, sWS, sDBG, sWA, sW2, sW3, sW4, sWO, sOUT = 28, 32, 36, 40, 44, 48, 52, 56, 60
sHI = 26
sW, sXCD, sLOC = 64, 65, 66
sONES = 67
sT0, sT1, sT2, sT3, sT4, sT5 = 68, 69, 70, 71, 72, 73
sCNT = 74
sA0 = 75
vTID, vLANE, vT_, vHH, vZERO = 0, 1, 2, 3, 4
vNO = 6
vP0 = 8
vPO = 10
vL16 = 11
vA, vB = 12, 14

a = Asm()
lab = [0]
def newlab(p):
    lab[0] += 1; return f"L_{p}_{lab[0]}"

def srd(dst, ptr, size):
    if dst == sWS and OPT["wsoff"]:
        a(f"s_add_u32 s{dst}, s{ptr}, {OPT['wsoff'] << 20}\ns_addc_u32 s{dst+1}, s{ptr+1}, 0\ns_mov_b32 s{dst+2}, {hx(size)}\ns_mov_b32 s{dst+3}, 0x20000")
        return
    a(f"s_mov_b32 s{dst}, s{ptr}\ns_mov_b32 s{dst+1}, s{ptr+1}\ns_mov_b32 s{dst+2}, {hx(size)}\ns_mov_b32 s{dst+3}, 0x20000")

nstamp = [0]
prev_stamp = [None]
stamp_names = {}
def stamp(name, first=False):
    if not OPT["stamps"]: return
    idx = stamp_names.setdefault(name, len(stamp_names))
    assert idx < 64
    if first: a("v_mov_b32 v5, 0")
    elif prev_stamp[0] is not None: a(f"v_writelane_b32 v5, s100, {prev_stamp[0]}")
    a("s_memrealtime s[100:101]" if OPT["stamps"] == 1 else "s_memtime s[100:101]")
    prev_stamp[0] = idx

def stamp_flush():
    if not OPT["stamps"]: return
    if OPT["dbgst"]:
        L = newlab("dbg")
        role = "a" if prev_stamp[0] in [v for k, v in stamp_names.items() if k.startswith("a")] else "b"
        want = {"a": ["a1_c0", "a1_main", "a1_pub", "a2_poll", "a2_start", "a2_main", "a2_pub"], "b": ["b0_rec", "b2_poll", "b2_pub", "b3_poll", "b3_main", "b4_poll", "b4_end"]}[role]
        if not all(w in stamp_names for w in want) or list(stamp_names)[prev_stamp[0]] != want[-1]: return
        a(f"s_waitcnt lgkmcnt(0)\nv_writelane_b32 v5, s100, {prev_stamp[0]}\ns_and_b32 s100, s2, 255\ns_lshl_b32 s100, s100, 2\ns_add_u32 s100, s100, s{sW}\ns_cmp_lg_u32 s100, {OPT['dbgst']*4}\ns_cbranch_scc1 {L}")
        a(f"v_readlane_b32 s100, v5, 0\ns_mov_b64 exec, 1")
        for i, w in enumerate(want):
            a(f"v_readlane_b32 s101, v5, {stamp_names[w]}\ns_sub_u32 s101, s101, s100\nv_mov_b32 v{vP0}, s101\nbuffer_store_dword v{vP0}, v{vZERO}, s[{sDBG}:{sDBG+3}], 0 offen offset:{8 + 4*i + (28 if role == 'b' else 0)}\ns_nop 1")
        a("s_mov_b64 exec, -1")
        a.label(L)
        return
    a(f"s_waitcnt lgkmcnt(0)\nv_writelane_b32 v5, s100, {prev_stamp[0]}")
    a(f"s_lshl_b32 s100, s2, 2\ns_add_u32 s100, s100, s{sW}\ns_lshl_b32 s100, s100, 8\ns_add_u32 s100, s100, {STAMP}")
    a(f"v_lshlrev_b32 v{vP0}, 2, v{vLANE}\nbuffer_store_dword v5, v{vP0}, s[{sWS}:{sWS+3}], s100 offen")

def get_nonce():
    L = newlab("no"); Dn = newlab("nod")
    a(f"s_mov_b32 s{sCNT}, {OPT['spin']}")
    a.label(L)
    a(f"buffer_load_dwordx2 v[{vNO}:{vNO+1}], v{vZERO}, s[{sDBG}:{sDBG+3}], 0 offen sc1")
    a.wait_all(lg=False)
    a(f"v_cmp_eq_u32 vcc, 0, v{vNO}\ns_cbranch_vccz {Dn}\ns_sub_u32 s{sCNT}, s{sCNT}, 1\ns_cbranch_scc1 {Dn}\ns_sleep 1\ns_branch {L}")
    a.label(Dn)

def check_nonce(keep=False):
    Dn = newlab("cn")
    q = list(a.vmq)
    a(f"v_cmp_eq_u32 vcc, 0, v{vNO}\ns_cbranch_vccz {Dn}")
    get_nonce()
    a.label(Dn)
    a.vmq = q

def poll(sleep=1):
    L = newlab("po"); Dn = newlab("pod")
    a(f"s_mov_b32 s{sCNT}, {OPT['spin']}")
    a.label(L)
    a(f"buffer_load_dwordx2 v[{vP0}:{vP0+1}], v{vPO}, s[{sWS}:{sWS+3}], 0 offen sc1")
    a.wait_all(lg=False)
    a(f"v_cmp_ne_u64 vcc, v[{vP0}:{vP0+1}], v[{vNO}:{vNO+1}]\ns_cbranch_vccz {Dn}\ns_sub_u32 s{sCNT}, s{sCNT}, 1\ns_cbranch_scc1 {Dn}\ns_sleep {sleep}\ns_branch {L}")
    a.label(Dn)

def publish(sflag, barrier=True):
    L = newlab("pub")
    if barrier:
        a.wait_all()
        a("s_barrier")
    a(f"s_cmp_lg_u32 s{sW}, 0\ns_cbranch_scc1 {L}\ns_mov_b64 exec, 1")
    a(f"buffer_store_dwordx2 v[{vNO}:{vNO+1}], v{vZERO}, s[{sWS}:{sWS+3}], s{sflag} offen sc1")
    a("s_mov_b64 exec, -1")
    a.label(L)
    a.flag_pending = True

def xhalf_add(v, t1, t2):
    a(f"v_mov_b32 v{t1}, v{v}\nv_mov_b32 v{t2}, v{v}\nv_permlane32_swap_b32 v{t1}, v{t2}\nv_add_f32 v{v}, v{t1}, v{t2}")

def ln_stats(vsum, vsq, t):
    a(f"v_mul_f32 v{vsum}, {hx(f2u(1.0/D))}, v{vsum}\nv_mul_f32 v{vsq}, {hx(f2u(1.0/D))}, v{vsq}")
    a(f"v_fma_f32 v{vsq}, -v{vsum}, v{vsum}, v{vsq}\nv_max_f32 v{vsq}, 0, v{vsq}")

def scale16(acc):
    for i in range(0, 16, 2):
        a(f"v_pk_mul_f32 v[{acc+i}:{acc+i+1}], v[{acc+i}:{acc+i+1}], v[{vA}:{vA+1}] op_sel_hi:[1,0]")
def shift16(acc, cs):
    for i in range(0, 16, 2):
        a(f"v_pk_fma_f32 v[{acc+i}:{acc+i+1}], v[{cs+i}:{cs+i+1}], v[{vB}:{vB+1}], v[{acc+i}:{acc+i+1}] op_sel_hi:[1,0,1]")

def gelu_consts(vC, va):
    a(f"v_mul_f32 v{vC}, {hx(f2u(GA))}, v{va}\nv_mul_f32 v{vC+2}, v{va}, v{va}\nv_rcp_f32 v{vC+4}, v{va}\nv_mul_f32 v{vC+2}, v{vC+2}, v{va}\nv_mul_f32 v{vC+2}, {hx(f2u(GB))}, v{vC+2}")

def gelu16(y, t, vC, hook=lambda: None):
    for i in range(0, 16, 2):
        a(f"v_pk_mul_f32 v[{t+i}:{t+i+1}], v[{y+i}:{y+i+1}], v[{y+i}:{y+i+1}]")
    for i in range(0, 16, 2):
        a(f"v_pk_fma_f32 v[{t+i}:{t+i+1}], v[{t+i}:{t+i+1}], v[{vC+2}:{vC+3}], v[{vC}:{vC+1}] op_sel_hi:[1,0,0]")
    hook()
    for i in range(0, 16, 2):
        a(f"v_pk_mul_f32 v[{t+i}:{t+i+1}], v[{t+i}:{t+i+1}], v[{y+i}:{y+i+1}]")
    for i in range(16):
        a(f"v_exp_f32 v{t+i}, v{t+i}")
        if i == 7: hook()
    for i in range(0, 16, 2):
        a(f"v_pk_fma_f32 v[{t+i}:{t+i+1}], v[{t+i}:{t+i+1}], v[{vC+4}:{vC+5}], v[{vC+4}:{vC+5}] op_sel_hi:[1,0,0]")
    hook()
    for i in range(16):
        a(f"v_rcp_f32 v{t+i}, v{t+i}")
        if i == 9: hook()
    for i in range(0, 16, 2):
        a(f"v_pk_mul_f32 v[{y+i}:{y+i+1}], v[{y+i}:{y+i+1}], v[{t+i}:{t+i+1}]")
    hook()

class Deferred:
    def __init__(self): self.groups = []
    def __enter__(self):
        self.orig = Asm.__call__; d = self
        def cap(asm, text):
            n = len(asm.ins); d.orig(asm, text); d.groups.append(asm.ins[n:]); del asm.ins[n:]
        Asm.__call__ = cap; return self
    def __exit__(self, *e): Asm.__call__ = self.orig
    def drip(self, ninstr):
        while self.groups and ninstr > 0:
            g = self.groups.pop(0); a.ins.extend(g); ninstr -= len(g)
    def flush(self): self.drip(1 << 30)

def cvt16(pk, y):
    for i in range(8): a(f"v_cvt_pk_bf16_f32 v{pk+i}, v{y+2*i}, v{y+2*i+1}")

PAD = [0]
def mfma(d, A, B, first=False):
    if PAD[0] > 0: a(f"s_nop {PAD[0]-1}")
    elif PAD[0] < 0:
        n = 0
        for i in reversed(a.ins):
            if i.kind == "mfma": break
            if not i.is_label: n += i.states * (OPT["dsw"] if i.kind in ("ds", "vmem", "dma") else 1)
            if n >= -PAD[0]: break
        if n < -PAD[0]: a(f"s_nop {-PAD[0]-n-1}")
    c = "0" if first else f"v[{d}:{d+15}]"
    a(f"v_mfma_f32_32x32x16_bf16 v[{d}:{d+15}], v[{A}:{A+3}], v[{B}:{B+3}], {c}")

def interleave(main, fill):
    n = len(main); k = 0
    for i, m in enumerate(main):
        m()
        upto = (len(fill) * (i + 1) + n - 1) // n
        while k < upto: fill[k](); k += 1

def rot7(dst, rot, n=7):
    for c in range(n):
        a(f"s_add_u32 s{dst+c}, s{rot}, {c}\ns_sub_u32 s{sT5}, s{dst+c}, 7\ns_cselect_b32 s{dst+c}, s{dst+c}, s{sT5}")

vGA = 254


def prologue():
    a("s_cmp_ge_u32 s2, 512\ns_cbranch_scc1 L_end")
    a("s_load_dwordx16 s[4:19], s[0:1], 0\ns_load_dwordx4 s[20:23], s[0:1], 64\ns_load_dwordx2 s[24:25], s[0:1], 80")
    a(f"s_memrealtime s[{sTAG}:{sTAG+1}]")
    a(f"v_lshrrev_b32 v8, 6, v0\nv_and_b32 v{vLANE}, 63, v0\nv_readfirstlane_b32 s{sW}, v8")
    a(f"v_and_b32 v{vT_}, 31, v0\nv_bfe_u32 v{vHH}, v0, 5, 1\nv_mov_b32 v{vZERO}, 0\nv_lshlrev_b32 v{vL16}, 4, v{vLANE}")
    a(f"s_mov_b32 s{sHI}, 0\ns_mov_b32 s{sHI+1}, -1\ns_mov_b32 s{sONES}, 0x3f803f80")
    a(f"s_and_b32 s{sXCD}, s2, 7\ns_bfe_u32 s{sLOC}, s2, {(5 << 16) | 3}")
    stamp("entry", first=True)
    a(f"s_or_b32 s{sT4}, s2, s{sW}\ns_cmp_lg_u32 s{sT4}, 0\ns_cbranch_scc1 L_notag\ns_waitcnt lgkmcnt(0)")
    srd(sDBG, 22, 256)
    a(f"s_or_b32 s{sTAG}, s{sTAG}, 1\nv_mov_b32 v{vNO}, s{sTAG}\nv_mov_b32 v{vNO+1}, s{sTAG+1}\ns_mov_b64 exec, 1")
    a(f"buffer_store_dwordx2 v[{vNO}:{vNO+1}], v{vZERO}, s[{sDBG}:{sDBG+3}], 0 offen sc1\ns_mov_b64 exec, -1")
    a.label("L_notag")
    a("s_cmp_ge_u32 s2, 256\n" + ("s_cbranch_scc0" if OPT["swap"] else "s_cbranch_scc1") + " L_roleB")

def make_sel(dst, t):
    a(f"v_bfe_u32 v{t}, v{vLANE}, 2, 1\nv_bfe_u32 v{t+1}, v{vLANE}, 4, 1\nv_cmp_eq_u32 vcc, v{t}, v{t+1}\nv_mov_b32 v{t}, s{sONES}\ns_nop 0\n"
      + "\n".join(f"v_cndmask_b32 v{dst+i}, 0, v{t}, vcc" for i in range(4)))

def mfma_sum(d, sel, B, first):
    c = "0" if first else f"v[{d}:{d+3}]"
    a(f"v_mfma_f32_16x16x32_bf16 v[{d}:{d+3}], v[{sel}:{sel+3}], v[{B}:{B+3}], {c}")

def check_record(REC, voff, soff, loaded=True):
    L = newlab("rec"); Dn = newlab("recd"); C = newlab("recc")
    a(f"s_mov_b32 s{sCNT}, {OPT['spin']}")
    if loaded: a(f"s_branch {C}")
    a.label(L)
    a(f"buffer_load_dwordx4 v[{REC}:{REC+3}], v{voff}, s[{sWS}:{sWS+3}], s{soff} offen sc1\ns_waitcnt vmcnt(0)")
    a.label(C)
    a(f"v_cmp_ne_u32 vcc, v{REC+1}, v{vNO}\nv_cmp_ne_u32 s[{sT2}:{sT3}], v{REC+3}, v{vNO}\ns_or_b64 vcc, vcc, s[{sT2}:{sT3}]")
    a(f"v_cmp_eq_u32 s[{sT2}:{sT3}], 0, v{vNO}\ns_or_b64 vcc, vcc, s[{sT2}:{sT3}]\ns_cbranch_vccz {Dn}")
    a(f"s_sub_u32 s{sCNT}, s{sCNT}, 1\ns_cbranch_scc1 {Dn}\ns_sleep 1\ns_branch {L}")
    a.label(Dn)
    if not loaded: a.vmq = []

def addr_xdma(dst, nq, t):
    for q in range(nq):
        a(f"v_lshrrev_b32 v{t}, 3, v{vLANE}\nv_add_u32 v{t}, {8*q}, v{t}")
        a(f"v_bfe_u32 v{t+1}, v{t}, 1, 3\nv_and_b32 v{t+2}, 7, v{vLANE}\nv_xor_b32 v{t+1}, v{t+1}, v{t+2}")
        a(f"v_mul_u32_u24 v{t}, 896, v{t}\nv_lshl_add_u32 v{t}, v{t+1}, 4, v{t}\nv_subrev_u32 v{dst+q}, {1024*q}, v{t}")

def addr_wdma128(dst, t):
    a(f"v_lshrrev_b32 v{t}, 3, v{vLANE}\nv_bfe_u32 v{t+1}, v{vLANE}, 4, 1\nv_lshlrev_b32 v{t+1}, 2, v{t+1}")
    a(f"v_and_b32 v{t+2}, 7, v{vLANE}\nv_xor_b32 v{t+1}, v{t+1}, v{t+2}")
    a(f"v_mul_u32_u24 v{t}, 896, v{t}\nv_lshl_add_u32 v{dst}, v{t+1}, 4, v{t}\nv_add_u32 v{dst+1}, {8*896-1024}, v{dst}")

def addr_wdma256(dst, sstride, t, mask=False):
    a(f"v_lshrrev_b32 v{t}, 4, v{vLANE}\nv_lshlrev_b32 v{t+1}, 2, v{t}\nv_sub_u32 v{t+1}, v{vLANE}, v{t+1}\nv_and_b32 v{t+1}, 15, v{t+1}")
    a(f"v_mul_u32_u24 v{t}, s{sstride}, v{t}\nv_lshl_add_u32 v{dst}, v{t+1}, 4, v{t}")
    if mask: a(f"v_mov_b32 v{t}, 0x7fff0000\nv_cmp_gt_u32 vcc, 14, v{t+1}\nv_cndmask_b32 v{dst}, v{t}, v{dst}, vcc")
    a(f"s_lshl_b32 s{sT5}, s{sstride}, 2\ns_sub_u32 s{sT5}, s{sT5}, 1024")
    for q in range(1, 4): a(f"v_add_u32 v{dst+q}, s{sT5}, v{dst+q-1}")

def addr_xrd(dst, sbase, t):
    a(f"v_bfe_u32 v{t}, v{vT_}, 1, 3\nv_xor_b32 v{t}, v{t}, v{vHH}\nv_lshlrev_b32 v{t}, 4, v{t}\nv_lshl_add_u32 v{t}, v{vT_}, 7, v{t}")
    for ks in range(4):
        a(f"v_xor_b32 v{dst+ks}, {32*ks}, v{t}\nv_add_u32 v{dst+ks}, s{sbase}, v{dst+ks}")

def lane_rcg(t):
    a(f"v_bfe_u32 v{t}, v{vLANE}, 2, 2\nv_and_b32 v{t+1}, 3, v{vLANE}\nv_lshlrev_b32 v{t+1}, 3, v{t+1}")
    a(f"v_bfe_u32 v{t+2}, v{vLANE}, 4, 1\nv_lshl_add_u32 v{t+1}, v{t+2}, 5, v{t+1}")

def addr_wrd256(dst, cs, t):
    lane_rcg(t)
    a(f"v_lshl_add_u32 v{t+1}, v{t}, 6, v{t+1}")
    a(f"v_lshl_add_u32 v{t}, v{vHH}, 3, v{t}\nv_lshlrev_b32 v{t}, 8, v{t}")
    for u in range(4):
        a(f"s_add_u32 s{sT0}, s{sW}, {u}\ns_and_b32 s{sT0}, s{sT0}, 3\ns_mul_i32 s{sT0}, s{sT0}, {cs}")
        a(f"v_add_u32 v{dst+u}, s{sT0}, v{t+1}\nv_and_b32 v{dst+u}, 255, v{dst+u}\nv_add_u32 v{dst+u}, v{dst+u}, v{t}")

def addr_wrd128(dst, hhmul, scol, sbase, t):
    lane_rcg(t)
    a(f"v_lshrrev_b32 v{t+2}, 1, v{t}\nv_xor_b32 v{t+2}, s{scol}, v{t+2}\nv_lshl_add_u32 v{t+1}, v{t+2}, 6, v{t+1}")
    a(f"v_mad_u32_u24 v{t}, v{vHH}, {hhmul}, v{t}\nv_lshl_add_u32 v{dst}, v{t}, 7, v{t+1}")
    if sbase is not None: a(f"v_add_u32 v{dst}, s{sbase}, v{dst}")

def set_m0(expr_sgpr, add):
    a(f"s_add_u32 m0, s{expr_sgpr}, {add}" if add else f"s_mov_b32 m0, s{expr_sgpr}")


def panel_mainloop(name, ACC, WF, vWrd, nslot, xfrag, issue_w, wtok, hooks, SEL, CS4, defer=None, stream=()):
    rd = {}
    hi = [False]
    pre = set(range(nslot)); stream = list(stream)
    def wreads(s):
        c, ks = divmod(s, 4); slot = c % nslot
        base = slot * 16384 + ks * 4096
        if slot == 4 and not hi[0]:
            for u in range(4): a(f"v_add_u32 v{vWrd+u}, 0x10000, v{vWrd+u}")
            hi[0] = True
        if slot != 4 and hi[0]:
            for u in range(4): a(f"v_subrev_u32 v{vWrd+u}, 0x10000, v{vWrd+u}")
            hi[0] = False
        if slot == 4: base -= 65536
        toks = []; rd[s] = toks; th = []
        for u in range(2 if OPT["xp"] & 8 else 4):
            for jj in range(2):
                r = WF + (s & 1) * 16 + u * 4 + jj * 2
                th.append(lambda r=r, u=u, jj=jj: toks.append(a.lg(f"ds_read_b64_tr_b16 v[{r}:{r+1}], v{vWrd+u} offset:{base + jj*1024}")))
        return th
    hooks["before_barrier"](0)
    a.wait(vm=wtok[0]); a("s_barrier")
    stamp(name + "_c0")
    for t in hooks["after_barrier"](0) + wreads(0): t()
    for s in range(28):
        c, ks = divmod(s, 4)
        a.wait(lg=rd[s] + hooks["lg_need"](s), vm=hooks["vm_need"](s))
        reads = []; late = []
        if ks == 3 and c < 6:
            hooks["before_barrier"](c + 1)
            a.wait(vm=wtok[c + 1]); a("s_barrier")
            if c in (1, 3, 5): stamp(name + f"_c{c+1}")
            reads += hooks["after_barrier"](c + 1)
        if s < 27: reads += wreads(s + 1)
        for cc, qs in ((c + nslot, (0, 1)) if ks == 3 else (c - 1 + nslot, (2, 3)) if ks == 0 and c > 0 else (99, ()),):
            if cc <= 6 and cc not in pre:
                for q in qs: late.append(lambda cc=cc, q=q: wtok.setdefault(cc, []).extend(issue_w(cc, (q,))))
        for k in range(2):
            if stream: late.append(stream.pop(0))
        late += hooks["kstep"](s)
        xf = xfrag(s); w = WF + (s & 1) * 16
        h = (len(reads) + 1) // 2
        mfma(ACC, w, xf, first=(s == 0))
        for t in reads[:h]: t()
        mfma(ACC + 16, w + 4, xf, first=(s == 0))
        for t in reads[h:]: t()
        h = (len(late) + 1) // 2
        mfma(ACC + 32, w + 8, xf, first=(s == 0))
        for t in late[:h]: t()
        if defer: defer.drip(3)
        mfma(ACC + 48, w + 12, xf, first=(s == 0))
        for t in late[h:]: t()
        if defer: defer.drip(3)
        if SEL is not None and not (OPT["xp"] & 4 and s > 0): mfma_sum(CS4, SEL, w, s == 0)
    if defer: defer.flush()

def addr_cs(vCW, vCA, csbase):
    a(f"s_lshl_b32 s{sT0}, s{sW}, 7\ns_add_u32 s{sT0}, s{sT0}, {csbase}\nv_lshl_add_u32 v{vCW}, v{vT_}, 2, s{sT0}")
    for u in range(4):
        a(f"s_add_u32 s{sT0}, s{sW}, {u}\ns_and_b32 s{sT0}, s{sT0}, 3\ns_lshl_b32 s{sT0}, s{sT0}, 7\ns_add_u32 s{sT0}, s{sT0}, {csbase}\nv_lshl_add_u32 v{vCA+u}, v{vHH}, 4, s{sT0}")

def read_cs(dst, vaddr):
    return [a.lg(f"ds_read_b128 v[{dst+4*i}:{dst+4*i+3}], v{vaddr} offset:{32*i}") for i in range(4)]

sTAG = 98
def stage_A1():
    a.comment("==== A1: 128 rows x 112 columns of LN(x) @ [wq | wk | wv | w1]")
    if OPT["prio_a1"]: a(f"s_setprio {OPT['prio_a1']}")
    ACC, XF, WF = 16, 80, 112
    vWd, vXd, vXr, vWr = 144, 148, 152, 156
    SEL, CS4, REC, vCA, vVw, vVr, vPA, vPB, vSt, vCW, vGA_, vRo = 160, 164, 168, 172, 176, 180, 182, 183, 184, 185, 186, 188
    T = 190
    GT, PK = 200, 216
    sRB, sCG, sROT = sA0, sA0 + 1, sA0 + 2
    sKC = sA0 + 3
    sWO_ = sA0 + 10
    sM0W, sM0X, sTY, sHQ, sSTR, sCST = sA0 + 17, sA0 + 18, sA0 + 19, sA0 + 20, sA0 + 21, sA0 + 22
    sD0, sD1, sFL, sRO, sSC, sGO, sG = 4, 8, 12, 13, 14, 15, 16
    a(f"s_lshr_b32 s{sT0}, s{sLOC}, 3\ns_lshr_b32 s{sT2}, s{sXCD}, 1\ns_lshl_b32 s{sT2}, s{sT2}, 2\ns_add_u32 s{sRB}, s{sT2}, s{sT0}")
    a(f"s_and_b32 s{sT2}, s{sXCD}, 1\ns_lshl_b32 s{sT2}, s{sT2}, 3\ns_and_b32 s{sT1}, s{sLOC}, 7\ns_add_u32 s{sCG}, s{sT2}, s{sT1}")
    a(f"s_lshr_b32 s{sTY}, s{sCG}, 2\ns_and_b32 s{sHQ}, s{sCG}, 3")
    a(f"s_cmp_eq_u32 s{sTY}, 3\ns_movk_i32 s{sSTR}, 2688\ns_cselect_b32 s{sSTR}, 896, s{sSTR}\ns_cselect_b32 s{sCST}, 64, 56\ns_cselect_b32 s{sT3}, s{sHQ}, s{sCG}")
    a(f"s_mul_i32 s{sT0}, s{sLOC}, 37\ns_lshr_b32 s{sT0}, s{sT0}, 8\ns_mul_i32 s{sT0}, s{sT0}, 7\ns_sub_u32 s{sROT}, s{sLOC}, s{sT0}")
    a(f"s_lshl_b32 s{sT0}, s{sRB}, 2\ns_add_u32 s{sT0}, s{sT0}, s{sW}\ns_mul_i32 s{sT0}, s{sT0}, {32*896}")
    a(f"s_lshl_b32 s{sT1}, s{sW}, 4\ns_mul_i32 s{sT1}, s{sT1}, s{sSTR}\ns_mul_i32 s{sT2}, s{sT3}, 224\ns_add_u32 s{sT1}, s{sT1}, s{sT2}")
    a(f"s_lshl_b32 s{sT2}, s{sSTR}, 6")
    def chunk_offsets(c):
        a(f"s_add_u32 s{sKC+c}, s{sROT}, {c}\ns_sub_u32 s{sT5}, s{sKC+c}, 7\ns_cselect_b32 s{sKC+c}, s{sKC+c}, s{sT5}")
        a(f"s_mul_i32 s{sWO_+c}, s{sKC+c}, s{sT2}\ns_add_u32 s{sWO_+c}, s{sWO_+c}, s{sT1}")
        a(f"s_lshl_b32 s{sKC+c}, s{sKC+c}, 7\ns_add_u32 s{sKC+c}, s{sKC+c}, s{sT0}")
    for c in range(2): chunk_offsets(c)
    a(f"s_lshl_b32 s{sM0W}, s{sW}, 12\ns_lshl_b32 s{sM0X}, s{sW}, 13\ns_add_u32 s{sM0X}, s{sM0X}, 49152")
    addr_xdma(vXd, 4, T); addr_wdma256(vWd, sSTR, T, mask=True)
    a("s_waitcnt lgkmcnt(0)")
    stamp("a1_karg")
    srd(sX, 4, S * D * 2)
    a(f"s_cmp_eq_u32 s{sTY}, 3\ns_cselect_b32 s{sWA}, s12, s6\ns_cselect_b32 s{sWA+1}, s13, s7\ns_mov_b32 s{sWA+2}, {D*3*D*2}\ns_cselect_b32 s{sWA+2}, {D*D*2}, s{sWA+2}\ns_mov_b32 s{sWA+3}, 0x20000")
    srd(sDBG, 22, 256)
    m0 = [None]
    def issue_x(c, qs=range(4)):
        if m0[0] != ("x", c): set_m0(sM0X, (c & 1) * 4096); m0[0] = ("x", c)
        if OPT["xp"] & 1 and c > 1: return []
        return [a.vm(f"buffer_load_dwordx4 v{vXd+q}, s[{sX}:{sX+3}], s{sKC+c} offen offset:{1024*q} lds") for q in qs]
    def issue_w(c, qs=range(4)):
        if m0[0] != ("w", c): set_m0(sM0W, (c % 3) * 16384); m0[0] = ("w", c)
        if OPT["xp"] & 2 and c > 2: return []
        return [a.vm(f"buffer_load_dwordx4 v{vWd+q}, s[{sWA}:{sWA+3}], s{sWO_+c} offen offset:{1024*q} lds") for q in qs]
    xt = {}; wt = {}
    xt[0] = issue_x(0); wt[0] = issue_w(0)
    for c in range(2, 7): chunk_offsets(c)
    addr_xrd(vXr, sM0X, T)
    if OPT["a1s"] < 2: xt[1] = issue_x(1)
    addr_wrd256(vWr, f"s{sCST}", T)
    make_sel(SEL, T)
    srd(sWS, 24, WS_SIZE)
    CSB = 16384
    with Deferred() as df:
        a(f"s_and_b32 s{sGO}, s2, 255\ns_lshl_b32 s{sGO}, s{sGO}, 7\ns_add_u32 s{sGO}, s{sGO}, {FLG + F_GO*FT}")
        a(f"s_lshl_b32 s{sT0}, s{sRB}, 2\ns_add_u32 s{sT4}, s{sT0}, s{sW}\ns_lshl_b32 s{sRO}, s{sT4}, 9\ns_add_u32 s{sRO}, s{sRO}, {ST0}")
        a(f"v_lshlrev_b32 v{vRo}, 4, v{vT_}")
        addr_cs(vCW, vCA, CSB)
        a(f"s_lshl_b32 s{sT0}, s{sRB}, 4\ns_add_u32 s{sT0}, s{sT0}, s{sCG}\ns_lshl_b32 s{sT0}, s{sT0}, 7\ns_add_u32 s{sFL}, s{sT0}, {FLG + F_QKV*FT}")
        a(f"s_lshl_b32 s{sT1}, s{sHQ}, 8\ns_add_u32 s{sT0}, s{sT4}, s{sT1}\ns_cmp_eq_u32 s{sTY}, 0\ns_cselect_b32 s{sSC}, 11, 12\ns_mov_b32 s{sT2}, {KV_ - 2048}\ns_cselect_b32 s{sT2}, {QB_}, s{sT2}")
        a(f"s_lshl_b32 s{sT0}, s{sT0}, s{sSC}\ns_lshl_b32 s{sT1}, s{sTY}, 11\ns_add_u32 s{sT0}, s{sT0}, s{sT1}\ns_add_u32 s{sT0}, s{sT0}, s{sT2}")
        a(f"s_lshl_b32 s{sT4}, s{sT4}, 9\ns_mul_i32 s{sT1}, s{sHQ}, {14*PL}\ns_add_u32 s{sT4}, s{sT4}, s{sT1}\ns_add_u32 s{sT4}, s{sT4}, {H_}")
        a(f"s_lshl_b32 s{sT1}, 64, s{sSC}\ns_movk_i32 s{sT2}, 1024\ns_movk_i32 s{sT3}, 512")
        a(f"s_cmp_eq_u32 s{sTY}, 3\ns_cselect_b32 s{sT0}, s{sT4}, s{sT0}\ns_cselect_b32 s{sT1}, {4*PL}, s{sT1}\ns_cselect_b32 s{sT2}, {2*PL}, s{sT2}\ns_cselect_b32 s{sT3}, {PL}, s{sT3}")
        a(f"v_mul_u32_u24 v{vSt}, s{sT3}, v{vHH}\nv_lshl_add_u32 v{vSt}, v{vT_}, 4, v{vSt}")
        for u in range(4):
            a(f"s_add_u32 s{sT3}, s{sW}, {u}\ns_and_b32 s{sT3}, s{sT3}, 3\ns_mul_i32 s{sD0+u}, s{sT3}, s{sT1}\ns_add_u32 s{sD0+u}, s{sD0+u}, s{sT0}")
            a(f"s_add_u32 s{sD1+u}, s{sD0+u}, s{sT2}\ns_lshl_b32 s{sT4}, s{sTY}, 2\ns_or_b32 s{sT3}, s{sT3}, s{sT4}")
            a(f"s_cmp_eq_u32 s{sT3}, 15\ns_cselect_b32 s{sD1+u}, 0x7fff0000, s{sD1+u}")
        a(f"s_cmp_eq_u32 s{sTY}, 1\ns_cselect_b32 s{sT1}, 0x3f803f80, 0\ns_cselect_b32 s{sT2}, 0x3f80, 0")
        a(f"s_cmp_eq_u32 s{sTY}, 2\ns_cselect_b32 s{sT1}, 0x3f80, s{sT1}")
        a(f"v_mov_b32 v{vPA}, s{sT1}\nv_mov_b32 v{vPB}, s{sT2}")
        a(f"s_cmp_eq_u32 s{sTY}, 0\ns_cselect_b32 s{sSC}, {hx(f2u(QSCALE))}, 1.0")
        a(f"v_bfe_u32 v{T}, v{vT_}, 1, 3\nv_xor_b32 v{T}, v{T}, v{vHH}\nv_lshlrev_b32 v{T}, 3, v{T}\nv_lshl_add_u32 v{T}, v{vT_}, 6, v{T}")
        for i in range(4): a(f"v_xor_b32 v{vVw+i}, {16*i}, v{T}\nv_add_u32 v{vVw+i}, s{sM0X}, v{vVw+i}")
        lane_rcg(T)
        for jj in range(2):
            a(f"v_lshl_add_u32 v{T+2}, v{vHH}, 2, v{T}\nv_add_u32 v{T+2}, {8*jj}, v{T+2}")
            a(f"v_bfe_u32 v{T+3}, v{T+2}, 1, 3\nv_lshlrev_b32 v{T+3}, 3, v{T+3}\nv_xor_b32 v{T+3}, v{T+3}, v{T+1}")
            a(f"v_lshl_add_u32 v{vVr+jj}, v{T+2}, 6, v{T+3}\nv_add_u32 v{vVr+jj}, s{sM0X}, v{vVr+jj}")
    if not OPT["defer"]: df.drip(70 if OPT["a1s"] < 2 else 999)
    if OPT["a1s"] >= 2: xt[1] = issue_x(1)
    wt[1] = issue_w(1)
    if not OPT["defer"]: df.flush()
    st1 = []
    if OPT["a1s"]: st1 = [lambda q=q: wt.setdefault(2, []).extend(issue_w(2, (q,))) for q in range(4)]
    else: wt[2] = issue_w(2)
    stamp("a1_issued")
    xr = {}; rec = []
    def go():
        a.wait(vm=rec[0])
        check_nonce(keep=True)
        publish(sGO, barrier=False)
    def after_barrier(c):
        xr[c] = []
        return [lambda ks=ks: xr[c].append(a.lg(f"ds_read_b128 v[{XF+(c&1)*16+4*ks}:{XF+(c&1)*16+4*ks+3}], v{vXr+ks} offset:{(c&1)*4096}")) for ks in range(4)]
    def kstep(s):
        th = []
        c, ks = divmod(s, 4)
        if ks in (1, 2) and c + 2 <= 6:
            for q in (2 * ks - 2, 2 * ks - 1): th.append(lambda q=q: xt.setdefault(c + 2, []).extend(issue_x(c + 2, (q,))))
        if s == OPT["go"] - 5: th.append(lambda: rec.append(a.vm(f"buffer_load_dwordx2 v[{vNO}:{vNO+1}], v{vZERO}, s[{sDBG}:{sDBG+3}], 0 offen sc1")))
        if s == OPT["go"]: th.append(go)
        if s == 22: th.append(lambda: rec.append(a.vm(f"buffer_load_dwordx4 v[{REC}:{REC+3}], v{vRo}, s[{sWS}:{sWS+3}], s{sRO} offen sc1")))
        return th
    hooks = dict(before_barrier=lambda c: a.wait(vm=xt[c]), after_barrier=after_barrier,
                 lg_need=lambda s: xr[s // 4] if s % 4 == 0 else [], vm_need=lambda s: [], kstep=kstep)
    panel_mainloop("a1", ACC, WF, vWr, 3, lambda s: XF + ((s // 4) & 1) * 16 + 4 * (s % 4), issue_w, wt, hooks, SEL, CS4, df, stream=st1)
    stamp("a1_main")
    a.wait(vm=rec)
    check_record(REC, vRo, sRO)
    a.lg(f"ds_write_b32 v{vCW}, v{CS4}")
    a(f"v_mul_f32 v{T}, v{REC+2}, v{REC+2}\nv_mov_b32 v{T+1}, {hx(f2u(1.0 + EPS))}\nv_mov_b32 v{T+2}, {hx(f2u(-EPS))}\nv_fma_f32 v{T}, v{T}, v{T+2}, v{T+1}\nv_rsq_f32 v{T}, v{T}")
    a(f"s_cmp_eq_u32 s{sTY}, 3\ns_cselect_b64 vcc, -1, 0\nv_mov_b32 v{T+1}, s{sSC}\nv_cndmask_b32 v{T}, v{T+1}, v{T}, vcc")
    a(f"v_mul_f32 v{vA}, v{T}, v{REC+2}\nv_mul_f32 v{vB}, v{vA}, v{REC}\nv_sub_f32 v{vB}, 0, v{vB}")
    a.wait_all(vm=False); a("s_barrier")
    stamp("a1_csbar")
    CS = 80
    toks = [read_cs(CS + 16 * u, vCA + u) for u in range(3)]
    a(f"s_cmp_eq_u32 s{sTY}, 3\ns_cbranch_scc1 L_A1_nosc")
    for u in range(4): scale16(ACC + 16 * u)
    a.label("L_A1_nosc")
    a.wait(lg=toks[0])
    toks.append(read_cs(CS + 48, vCA + 3))
    def store(u, pk):
        a.vm(f"buffer_store_dwordx4 v[{pk}:{pk+3}], v{vSt}, s[{sWS}:{sWS+3}], s{sD0+u} offen sc1")
        a.vm(f"buffer_store_dwordx4 v[{pk+4}:{pk+7}], v{vSt}, s[{sWS}:{sWS+3}], s{sD1+u} offen sc1")
    def pads(pk): a(f"v_cndmask_b32 v{pk+6}, v{pk+6}, v{vPA}, s[{sHI}:{sHI+1}]\nv_cndmask_b32 v{pk+7}, v{pk+7}, v{vPB}, s[{sHI}:{sHI+1}]")
    lgq0 = list(a.lgq); vmq0 = list(a.vmq)
    a(f"s_cmp_eq_u32 s{sTY}, 2\ns_cbranch_scc1 L_A1_v\ns_cmp_eq_u32 s{sTY}, 3\ns_cbranch_scc1 L_A1_w1")
    for u in range(4):
        a.wait(lg=toks[u]); shift16(ACC + 16 * u, CS + 16 * u)
        cvt16(PK + 8 * u, ACC + 16 * u); pads(PK + 8 * u); store(u, PK + 8 * u)
    a("s_branch L_A1_pub")
    a.label("L_A1_v")
    a.lgq = list(lgq0); a.vmq = list(vmq0); tr = {}
    for u in range(4):
        pk = PK + 8 * u
        a.wait(lg=toks[u]); shift16(ACC + 16 * u, CS + 16 * u)
        cvt16(pk, ACC + 16 * u); pads(pk)
        if u == 0: a.wait(lg=toks[3])
        if u > 0: a.wait(lg=tr[u - 1]); store(u - 1, pk - 8)
        for i in range(4): a.lg(f"ds_write_b64 v{vVw+i}, v[{pk+2*i}:{pk+2*i+1}] offset:{2048*u}")
        tr[u] = [a.lg(f"ds_read_b64_tr_b16 v[{pk+4*m+2*jj}:{pk+4*m+2*jj+1}], v{vVr+jj} offset:{2048*u + 1024*m}") for m in range(2) for jj in range(2)]
    a.wait(lg=tr[3]); store(3, PK + 24)
    a("s_branch L_A1_pub")
    a.label("L_A1_w1")
    a.lgq = list(lgq0); a.vmq = list(vmq0)
    gelu_consts(T, vA)
    a(f"v_sub_f32 v{vB}, 0, v{REC}")
    for u in range(4):
        a.wait(lg=toks[u]); shift16(ACC + 16 * u, CS + 16 * u)
        gelu16(ACC + 16 * u, GT, T)
        cvt16(PK + 8 * u, ACC + 16 * u); store(u, PK + 8 * u)
    a.label("L_A1_pub")
    stamp("a1_epi")
    publish(sFL)
    stamp("a1_pub")

def rowmax(dst, s_, first):
    if first: a(f"v_max3_f32 v{dst}, v{s_}, v{s_+1}, v{s_+2}\nv_max_f32 v{dst}, v{dst}, v{s_+3}")
    else: a(f"v_max3_f32 v{dst}, v{dst}, v{s_}, v{s_+1}\nv_max3_f32 v{dst}, v{dst}, v{s_+2}, v{s_+3}")
    for i in range(4, 16, 2): a(f"v_max3_f32 v{dst}, v{dst}, v{s_+i}, v{s_+i+1}")

def stage_A2():
    a.comment("==== A2: attention, 128 queries of one head; wave = 512 keys; slot x holds query tile w^x^3")
    NR = OPT["nr"]
    Q, O, SS, P = 16, 48, 112, 144
    KB = 160; VB = KB + 8 * NR
    T = VB + 8 * NR; MX = 12
    assert T + 16 <= 256
    sH, sQB, sQ0, sK, sV, sK0, sRETRY, sKT0, sOD, sFL, sKVB, sPUB = sA0, sA0+1, sA0+2, sA0+3, sA0+4, sA0+5, sA0+6, sA0+7, sA0+8, sA0+10, sA0+11, sA0+12
    vOo, vW, vR, vKV = 0, 8, 9, 10
    a(f"s_lshr_b32 s{sT0}, s{sLOC}, 4\ns_lshl_b32 s{sH}, s{sXCD}, 1\ns_add_u32 s{sH}, s{sH}, s{sT0}\ns_and_b32 s{sQB}, s{sLOC}, 15")
    a(f"s_lshr_b32 s{sT0}, s{sH}, 2\ns_lshl_b32 s{sT1}, s{sQB}, 4\ns_add_u32 s{sT1}, s{sT1}, s{sT0}")
    a(f"s_lshl_b32 s{sT2}, s{sW}, 6\ns_add_u32 s{sT2}, s{sT2}, s{sT0}")
    a(f"v_subrev_u32 v{T}, 2, v{vLANE}\nv_and_b32 v{T+1}, 3, v{T}\nv_lshlrev_b32 v{T+1}, 4, v{T+1}")
    a(f"v_bfe_u32 v{T+2}, v{T}, 2, 1\nv_lshl_add_u32 v{T+1}, v{T+2}, 2, v{T+1}\nv_add_u32 v{T+1}, 4, v{T+1}\nv_add_u32 v{T+1}, s{sT2}, v{T+1}")
    a(f"v_mov_b32 v{vPO}, s{sT1}\nv_cmp_gt_u32 vcc, 8, v{T}\nv_cndmask_b32 v{vPO}, v{vPO}, v{T+1}, vcc")
    a(f"s_add_u32 s{sT0}, s{sT0}, 4\nv_mov_b32 v{T+1}, s{sT0}\nv_cmp_eq_u32 vcc, 1, v{vLANE}\nv_cndmask_b32 v{vPO}, v{vPO}, v{T+1}, vcc")
    a(f"v_lshlrev_b32 v{vPO}, 7, v{vPO}")
    if FLG + F_QKV * FT: a(f"v_add_u32 v{vPO}, {FLG + F_QKV*FT}, v{vPO}")
    a(f"s_lshl_b32 s{sK0}, s{sH}, 18\ns_add_u32 s{sK0}, s{sK0}, {KV_}\ns_lshl_b32 s{sT0}, s{sW}, 16\ns_add_u32 s{sT0}, s{sT0}, s{sK0}\ns_mov_b32 s{sKVB}, s{sT0}")
    a(f"s_lshl_b32 s{sQ0}, s{sH}, 17\ns_lshl_b32 s{sT0}, s{sQB}, 13\ns_add_u32 s{sQ0}, s{sQ0}, s{sT0}\ns_add_u32 s{sQ0}, s{sQ0}, {QB_}")
    for kt in range(16): a(f"s_add_u32 s{8+kt}, s{sQB}, {kt}\ns_and_b32 s{8+kt}, s{8+kt}, 15\ns_lshl_b32 s{8+kt}, s{8+kt}, 12")
    a(f"s_mov_b32 s{sRETRY}, 0\ns_mov_b32 s{sPUB}, 0")
    for x in range(4): a(f"s_xor_b32 s{4+x}, s{sW}, {x^3}\ns_lshl_b32 s{4+x}, s{4+x}, 11\ns_add_u32 s{4+x}, s{4+x}, s{sQ0}")
    a(f"v_mul_u32_u24 v{vOo}, {PL}, v{vHH}\nv_lshl_add_u32 v{vOo}, v{vT_}, 4, v{vOo}")
    a(f"s_lshl_b32 s{sT0}, s{sQB}, 2\ns_add_u32 s{sT0}, s{sT0}, s{sW}\ns_lshl_b32 s{sT0}, s{sT0}, 9")
    a(f"s_mul_i32 s{sT1}, s{sH}, {4*PL}\ns_add_u32 s{sT0}, s{sT0}, s{sT1}\ns_add_u32 s{sOD}, s{sT0}, {O_}\ns_add_u32 s{sOD+1}, s{sOD}, {2*PL}")
    a(f"s_lshl_b32 s{sT0}, s{sQB}, 4\ns_add_u32 s{sT0}, s{sT0}, s{sH}\ns_lshl_b32 s{sT0}, s{sT0}, 7\ns_add_u32 s{sFL}, s{sT0}, {FLG + F_O*FT}\ns_lshl_b32 s{sT0}, s{sW}, 3\ns_add_u32 s{sFL}, s{sFL}, s{sT0}")
    def ld(dst, soff, imm, vo=vL16): return a.vm(f"buffer_load_dwordx4 v[{dst}:{dst+3}], v{vo}, s[{sWS}:{sWS+3}], s{soff} offen offset:{imm} sc1")
    vPK = T + 8
    if OPT["split"]:
        a(f"v_mov_b32 v{vPK}, v{vPO}\nv_readlane_b32 s{sT0}, v{vPO}, 0\nv_cmp_gt_u32 vcc, 2, v{vLANE}\nv_mov_b32 v{T+9}, s{sT0}\nv_cndmask_b32 v{vPO}, v{T+9}, v{vPO}, vcc")
    poll()
    stamp("a2_poll")
    k0 = [ld(T, sK0, 0), ld(T + 4, sK0, 1024)]
    qt = [[ld(Q + 8 * x, 4 + x, 0), ld(Q + 8 * x + 4, 4 + x, 1024)] for x in range(4)]
    if OPT["split"]:
        ft = a.vm(f"buffer_load_dwordx2 v[{vP0}:{vP0+1}], v{vPK}, s[{sWS}:{sWS+3}], 0 offen sc1")
    order = []
    for kt in range(16):
        for kind in "KV":
            for half in range(2):
                need = 4 * kt - 2 if kind == "K" else 4 * kt + 1
                free = 4 * (kt - NR) + (3 if kind == "K" else 5)
                order.append((need, kind, kt, half, free))
    order.sort()
    tok = {}
    sKT = 8
    def issue(e):
        need, kind, kt, half, free = e
        if kind == "K": t = ld(KB + 8 * (kt % NR) + 4 * half, sKT + kt, 1024 * half, vKV)
        else: t = ld(VB + 8 * (kt % NR) + 4 * half, sKT + kt, 2048 + 1024 * half, vKV)
        tok.setdefault((kind, kt), []).append(t)
    def bump(e): pass
    NPRE = 6
    def first_loads():
        for e in order[:NPRE]: issue(e); bump(e)
    def kv_start():
        a(f"v_add_u32 v{vKV}, s{sKVB}, v{vL16}")
        first_loads()
        a(f"s_mul_i32 s{sT0}, s{sW}, 12288\nv_add_u32 v{vW}, s{sT0}, v{vL16}")
    if not OPT["split"]: kv_start()
    pend = order[NPRE:]
    for x in range(4):
        a.wait(vm=k0 + qt[x])
        s_ = SS + 16 * (x & 1)
        mfma(s_, T, Q + 8 * x, first=True); mfma(s_, T + 4, Q + 8 * x + 4)
        if x == 0 and OPT["split"]:
            L = newlab("kvc")
            a.wait(vm=[ft])
            a(f"v_cmp_ne_u64 vcc, v[{vP0}:{vP0+1}], v[{vNO}:{vNO+1}]\ns_cbranch_vccz {L}\nv_mov_b32 v{vPO}, v{vPK}")
            poll()
            a.label(L)
            stamp("a2_kv")
            kv_start()
        if x > 0: rowmax(MX + x - 1, SS + 16 * ((x - 1) & 1), True)
    rowmax(MX + 3, SS + 16, True)
    stamp("a2_max")
    a.label("L_A2_setmax")
    for x in range(4):
        a(f"v_mov_b32 v{T+x}, v{MX+x}")
    for x in range(4):
        a(f"v_permlane32_swap_b32 v{T+x}, v{MX+x}")
    for x in range(4):
        a(f"v_max_f32 v{MX+x}, v{T+x}, v{MX+x}")
    for x in range(4):
        m = MX + x; t = T + 4 * x
        a(f"v_cvt_pk_bf16_f32 v{t}, -v{m}, -v{m}\nv_and_b32 v{t+1}, 0xffff0000, v{t}\nv_sub_f32 v{t+2}, -v{m}, v{t+1}")
        a(f"v_cvt_pk_bf16_f32 v{t+3}, v{t+2}, v{t+2}\nv_and_b32 v{t+3}, 0xffff0000, v{t+3}\nv_sub_f32 v{t+2}, v{t+2}, v{t+3}")
        a(f"v_and_b32 v{t}, 0xffff, v{t}\nv_or_b32 v{t}, v{t}, v{t+3}\nv_cvt_pk_bf16_f32 v{t+2}, v{t+2}, 0")
        a(f"v_cndmask_b32 v{Q+8*x+6}, v{Q+8*x+6}, v{t}, s[{sHI}:{sHI+1}]\nv_cndmask_b32 v{Q+8*x+7}, v{Q+8*x+7}, v{t+2}, s[{sHI}:{sHI+1}]")
        if x == 0:
            a.wait(vm=tok[("K", 0)])
            mfma(SS, KB, Q, first=True); mfma(SS, KB + 4, Q + 4)
    def QK(n, half):
        kt, x = divmod(n, 4)
        mfma(SS + 16 * (n & 1), KB + 8 * (kt % NR) + 4 * half, Q + 8 * x + 4 * half, first=(half == 0))
    def PV(n, half):
        kt, x = divmod(n, 4)
        mfma(O + 16 * x, VB + 8 * (kt % NR) + 4 * half, P + 8 * (n & 1) + 4 * half, first=(kt == 0 and half == 0))
    def owrite(x, i): a.lg(f"ds_write_b128 v{vW}, v[{O+16*x+4*i}:{O+16*x+4*i+3}] offset:{x*4096 + 1024*i}")
    stamp("a2_start")
    if OPT["prio_a1"]: a("s_setprio 0")
    a.hot = True
    for n in range(64):
        if n in (16, 32, 48): stamp(f"a2_b{n}")
        kt, x = divmod(n, 4)
        s_ = SS + 16 * (n & 1); p_ = P + 8 * (n & 1)
        e = lambda i: a(f"v_exp_f32 v{s_+i}, v{s_+i}")
        c = lambda i: a(f"v_cvt_pk_bf16_f32 v{p_+i}, v{s_+2*i}, v{s_+2*i+1}")
        sh = [[], [], [], []]
        pre = [[], [], [], []]
        ap = OPT["aprio"] if n < OPT["alate"] else OPT["aprio2"]
        if n == OPT["alate"] and ap == 5: pre[0].append(lambda: a("s_setprio 3"))
        for g in (0, 2):
            if pend and pend[0][4] <= n:
                ent = pend.pop(0)
                assert ent[0] > n + 1, (ent, n)
                hi = ap == 1 or (ap in (2, 3) and g == 2)
                if hi: pre[g].append(lambda: a("s_setprio 3"))
                sh[g].append(lambda ent=ent: issue(ent))
                if hi: sh[g].append(lambda: a("s_setprio 0"))
                sh[g + 1].append(lambda ent=ent: bump(ent))
        if ap == 2: sh[3].append(lambda: a("s_setprio 3")); sh[1].append(lambda: a("s_setprio 0"))
        if ap == 3: sh[3].append(lambda: a("s_setprio 3")); sh[0].append(lambda: a("s_setprio 0"))
        if ap == 4: sh[3].append(lambda: a("s_setprio 3")); sh[2].append(lambda: a("s_setprio 0"))
        if x == 2 and kt + 1 < 16: sh[3].append(lambda: a.wait(vm=tok[("K", kt + 1)]))
        if x == 1: sh[1].append(lambda: a.wait(vm=tok[("V", kt)]))
        if n == 62:
            for g in range(4): sh[g].append(lambda g=g: owrite(0, g))
        if n == 63:
            for g in range(4): sh[g].append(lambda g=g: owrite(1, g))
        mm = [(lambda: QK(n + 1, 0)) if n < 63 else None, (lambda: QK(n + 1, 1)) if n < 63 else None,
              (lambda: PV(n - 1, 0)) if n > 0 else None, (lambda: PV(n - 1, 1)) if n > 0 else None]
        seq = [[("e", 0), ("e", 1), ("e", 2), ("e", 3), ("c", 0)],
               [("e", 4), ("e", 5), ("c", 1), ("e", 6), ("e", 7), ("c", 2)],
               [("e", 8), ("e", 9), ("c", 3), ("e", 10), ("e", 11), ("c", 4)],
               [("e", 12), ("e", 13), ("c", 5), ("e", 14), ("e", 15), ("c", 6), ("c", 7)]]
        for g in range(4):
            for t in pre[g]: t()
            if mm[g]: mm[g]()
            for t in sh[g]: t()
            for k, i in seq[g]: (e if k == "e" else c)(i)
    assert not pend
    a.hot = False
    if OPT["prio_at"]: a(f"s_setprio {OPT['prio_at']}")
    PV(63, 0); PV(63, 1)
    stamp("a2_main")
    a(f"v_mov_b32 v{T+2}, 49152\nv_mov_b32 v{T+3}, 0")
    a.lg(f"ds_write_b32 v{T+2}, v{T+3}")
    for i in range(4): owrite(2, i)
    a.wait_all(vm=False); a("s_barrier")
    stamp("a2_cbar")
    tk = []
    for x in range(3):
        a(f"s_xor_b32 s{sT0}, s{sW}, {x^3}\ns_mul_i32 s{sT0}, s{sT0}, 12288\nv_add_u32 v{vR}, s{sT0}, v{vL16}")
        tk.append([a.lg(f"ds_read_b128 v[{O+16*x+4*i}:{O+16*x+4*i+3}], v{vR} offset:{x*4096 + 1024*i}") for i in range(4)])
    R = O + 48
    for x in range(3):
        a.wait(lg=tk[x])
        for i in range(0, 16, 2): a(f"v_pk_add_f32 v[{R+i}:{R+i+1}], v[{R+i}:{R+i+1}], v[{O+16*x+i}:{O+16*x+i+1}]")
    a(f"v_mov_b32 v{T+4}, v{R+12}\nv_mov_b32 v{T+5}, v{R+12}\nv_permlane32_swap_b32 v{T+4}, v{T+5}\nv_rcp_f32 v{vA}, v{T+5}")
    scale16(R)
    cvt16(P, R)
    a(f"v_cndmask_b32 v{P+6}, v{P+6}, v{vZERO}, s[{sHI}:{sHI+1}]\nv_cndmask_b32 v{P+7}, v{P+7}, v{vZERO}, s[{sHI}:{sHI+1}]")
    a(f"s_cmp_lg_u32 s{sPUB}, 0\ns_cbranch_scc1 L_A2_done")
    a.vm(f"buffer_store_dwordx4 v[{P}:{P+3}], v{vOo}, s[{sWS}:{sWS+3}], s{sOD} offen sc1")
    a.vm(f"buffer_store_dwordx4 v[{P+4}:{P+7}], v{vOo}, s[{sWS}:{sWS+3}], s{sOD+1} offen sc1")
    a(f"v_pk_mul_f32 v[{T+6}:{T+7}], v[{R}:{R+1}], 0 op_sel_hi:[1,0]")
    for i in range(2, 16, 2): a(f"v_pk_fma_f32 v[{T+6}:{T+7}], v[{R+i}:{R+i+1}], 0, v[{T+6}:{T+7}] op_sel_hi:[1,0,1]")
    a(f"s_mov_b32 s{sT0}, {hx(f2u(2.0**120))}\nv_cmp_nge_f32 vcc, s{sT0}, v{T+5}\nv_cmp_u_f32 s[{sT2}:{sT3}], v{T+6}, v{T+7}\ns_or_b64 vcc, vcc, s[{sT2}:{sT3}]")
    a(f"s_cmp_lg_u32 s{sRETRY}, 0\ns_cbranch_scc1 L_A2_good\ns_cbranch_vccz L_A2_good")
    a(f"v_mov_b32 v{T+3}, 1\nds_write_b32 v{T+2}, v{T+3}\ns_branch L_A2_done")
    a.label("L_A2_good")
    stamp("a2_st")
    a(f"s_mov_b32 s{sPUB}, 1\ns_mov_b64 exec, 1\ns_waitcnt vmcnt(0)")
    a(f"buffer_store_dwordx2 v[{vNO}:{vNO+1}], v{vZERO}, s[{sWS}:{sWS+3}], s{sFL} offen sc1\ns_mov_b64 exec, -1")
    stamp("a2_pub")
    a.label("L_A2_done")
    a.wait_all(vm=False); a("s_barrier")
    a(f"ds_read_b32 v{T+3}, v{T+2}\ns_waitcnt lgkmcnt(0)\nv_readfirstlane_b32 s{sT0}, v{T+3}")
    a(f"s_andn2_b32 s{sT0}, s{sT0}, s{sRETRY}\ns_cmp_lg_u32 s{sT0}, 0\ns_cbranch_scc1 L_A2_fallback")
    stamp_flush()
    a("s_endpgm")
    a.label("L_A2_fallback")
    a(f"s_mov_b32 s{sRETRY}, 1\ns_barrier")
    for x in range(4):
        a(f"v_cndmask_b32 v{Q+8*x+6}, v{Q+8*x+6}, v{vZERO}, s[{sHI}:{sHI+1}]\nv_cndmask_b32 v{Q+8*x+7}, v{Q+8*x+7}, v{vZERO}, s[{sHI}:{sHI+1}]")
        a(f"v_mov_b32 v{MX+x}, 0xff800000")
    a(f"s_mov_b32 s{sK}, 0\ns_mov_b32 s{sT4}, 16")
    a.label("L_A2_fb_loop")
    ld(T, sK, 0, vKV); ld(T + 4, sK, 1024, vKV); a.wait_all()
    for x in range(4):
        mfma(SS, T, Q + 8 * x, first=True); mfma(SS, T + 4, Q + 8 * x + 4)
        rowmax(MX + x, SS, False)
        a("s_nop 7")
    a(f"s_add_u32 s{sK}, s{sK}, 4096\ns_sub_u32 s{sT4}, s{sT4}, 1\ns_cmp_lg_u32 s{sT4}, 0\ns_cbranch_scc1 L_A2_fb_loop")
    a(f"v_lshlrev_b32 v{T+8}, 2, v{vLANE}")
    for x in range(4):
        a(f"s_xor_b32 s{sT0}, s{sW}, {x^3}\ns_lshl_b32 s{sT0}, s{sT0}, 8\ns_lshl_b32 s{sT1}, s{sW}, 10\ns_add_u32 s{sT0}, s{sT0}, s{sT1}")
        a(f"v_add_u32 v{T+9}, s{sT0}, v{T+8}\nds_write_b32 v{T+9}, v{MX+x}")
    a("s_waitcnt lgkmcnt(0)\ns_barrier")
    for x in range(4):
        a(f"s_xor_b32 s{sT0}, s{sW}, {x^3}\ns_lshl_b32 s{sT0}, s{sT0}, 8\nv_add_u32 v{T+9}, s{sT0}, v{T+8}")
        for w2 in range(4): a(f"ds_read_b32 v{T+10+w2}, v{T+9} offset:{1024*w2}")
        a(f"s_waitcnt lgkmcnt(0)\nv_max3_f32 v{MX+x}, v{T+10}, v{T+11}, v{T+12}\nv_max_f32 v{MX+x}, v{MX+x}, v{T+13}")
    a("s_barrier")
    first_loads()
    a.wait_all()
    a("s_nop 7\ns_branch L_A2_setmax")

RES, vWD, vPLN, vGo1, vWr4 = 232, 248, 250, 251, 252
vWd3, vWr3, vCA3, SEL3, CS43, vXo, vSo, vSH, vST, vCW3, TB = 194, 198, 202, 206, 210, 214, 215, 216, 220, 223, 224
sR64, sCT, sRW, sCW, sSO, sG2 = 75, 76, 77, 78, 79, 80
sRB3, sC3, sW3O, sM03, sK3 = 82, 83, 84, 91, 92
sG4, sW4o, sM04, sWOo, sOo, sX1D, sFX1, sFG, sOUTD, sST1D = 4, 11, 18, 19, 20, 21, 22, 23, 24, 25
sGS = 40
NZ = 9
CSB3 = 73728
B3 = {}; B4 = {}

def touch(srd_, soff, n):
    for i in range(n): a(f"s_buffer_load_dword s3, s[{srd_}:{srd_+3}], s{soff} offset:{128*i}")

def throttled(thunks, depth):
    toks = []
    for i, t in enumerate(thunks):
        toks += t()
        if len(toks) > depth: a.wait(vm=toks[:len(toks) - depth])
    return toks

def go_poll(st=True):
    if not OPT["go"]: return
    a(f"s_and_b32 s{sT3}, s2, 255\ns_lshl_b32 s{sT3}, s{sT3}, 7\ns_add_u32 s{sT3}, s{sT3}, {FLG + F_GO*FT}\nv_mov_b32 v{vPO}, s{sT3}")
    poll()
    if st: stamp("b0_go")

def stage_B0():
    a.comment("==== B0: row statistics of x, prefetches, set-up")
    a.label("L_roleB")
    prev_stamp[0] = 0
    a.vmq = []; a.lgq = []
    T = TB; XR = 16
    a(f"s_lshl_b32 s{sT0}, s{sXCD}, 5\ns_add_u32 s{sT0}, s{sT0}, s{sLOC}\ns_lshl_b32 s{sT0}, s{sT0}, 2\ns_add_u32 s{sT0}, s{sT0}, s{sW}")
    a(f"s_mul_i32 s{sT1}, s{sT0}, {2*896}\ns_lshl_b32 s{sT4}, s{sT0}, 5\ns_add_u32 s{sT4}, s{sT4}, {ST0}")
    a(f"v_mul_u32_u24 v{T}, 896, v{vHH}\nv_lshl_add_u32 v{T}, v{vT_}, 4, v{T}\nv_mov_b32 v{T+1}, 0x7fff0000\nv_cmp_gt_u32 vcc, 28, v{vT_}\nv_cndmask_b32 v{T}, v{T+1}, v{T}, vcc")
    a("s_waitcnt lgkmcnt(0)")
    srd(sX, 4, S * D * 2)
    xl = [a.vm(f"buffer_load_dwordx4 v[{XR+4*i}:{XR+4*i+3}], v{T}, s[{sX}:{sX+3}], s{sT1} offen offset:{448*i}") for i in range(2)]
    stamp("b0_karg")
    srd(sDBG, 22, 256); srd(sWS, 24, WS_SIZE); srd(sW2, 14, D * D * 2); srd(sW3, 16, D * F * 2); srd(sW4, 18, D * F * 2); srd(sWO, 8, D * D * 2); srd(sOUT, 20, S * D * 2)
    a(f"v_mov_b32 v{XR+8}, 0\nv_mov_b32 v{XR+10}, 0\nv_lshlrev_b32 v{T+2}, 4, v{vHH}")
    def touches(items, nwg=256):
        a(f"s_and_b32 s{sT0}, s2, 255\nv_lshlrev_b32 v193, 7, v{vLANE}")
        Lj = newlab("tj")
        for w, (sr_, n) in enumerate(items):
            L = newlab("tc")
            if w < 3: a(f"s_cmp_lg_u32 s{sW}, {w}\ns_cbranch_scc1 {L}")
            if sr_ == "code":
                a(f"s_getpc_b64 s[{sWA}:{sWA+1}]")
                a.label("L_pc")
                a(f"s_sub_u32 s{sWA}, s{sWA}, L_pc-{NAME}_kernel\ns_subb_u32 s{sWA+1}, s{sWA+1}, 0\ns_mov_b32 s{sWA+2}, L_code_end-{NAME}_kernel\ns_mov_b32 s{sWA+3}, 0x20000")
                a(f"s_mov_b32 s{sT0}, s{sLOC}"); sr_ = sWA
            if n <= 16: a("v_and_b32 v193, 0x7ff, v193")
            a(f"s_mul_i32 s{sT0}, s{sT0}, {n*128}\nbuffer_load_dword v192, v193, s[{sr_}:{sr_+3}], s{sT0} offen")
            if w < 3: a(f"s_branch {Lj}"); a.label(L)
        a.label(Lj)
        a.tok += 1; a.vmq.append(a.tok)
    if OPT["pf"] & 1: touches([(sW2, 13), ("code", 12), (sW2, 13), (sW2, 13)])
    if OPT["pf"] & 4: touches([(sW3, 49), (sW4, 49), (sWO, 13), (sWO, 13)])
    a(f"s_mul_i32 s{sT0}, s{sLOC}, 37\ns_lshr_b32 s{sT0}, s{sT0}, 8\ns_mul_i32 s{sT1}, s{sT0}, 7\ns_sub_u32 s{sCT}, s{sLOC}, s{sT1}")
    a(f"s_lshl_b32 s{sR64}, s{sXCD}, 2\ns_add_u32 s{sR64}, s{sR64}, s{sT0}\ns_lshr_b32 s{sRW}, s{sW}, 1\ns_and_b32 s{sCW}, s{sW}, 1")
    vXd = 60
    addr_wdma128(vWD, 64); addr_xdma(vXd, 2, 64)
    a.wait(vm=xl)
    stamp("b0_x")
    if OPT["pf"] & 16: touches([(sW3, 49), (sW4, 49), (sWO, 13), (sW2, 13)])
    no = a.vm(f"buffer_load_dwordx2 v[{vNO}:{vNO+1}], v{vZERO}, s[{sDBG}:{sDBG+3}], 0 offen sc1")
    for i in range(8): a(f"v_dot2c_f32_bf16 v{XR+8}, s{sONES}, v{XR+i}\nv_dot2c_f32_bf16 v{XR+10}, v{XR+i}, v{XR+i}")
    for r in (8, 4, 2, 1):
        for v in (XR + 8, XR + 10): a(f"v_add_f32_dpp v{v}, v{v}, v{v} row_ror:{r} row_mask:0xf bank_mask:0xf")
    for v in (XR + 8, XR + 10): a(f"v_mov_b32 v{v+1}, v{v}")
    for v in (XR + 8, XR + 10): a(f"v_permlane16_swap_b32 v{v}, v{v+1}")
    for v in (XR + 8, XR + 10): a(f"v_add_f32 v{v}, v{v}, v{v+1}")
    ln_stats(XR + 8, XR + 10, T)
    a(f"v_add_f32 v{XR+10}, {hx(f2u(EPS))}, v{XR+10}\nv_rsq_f32 v{XR+10}, v{XR+10}")
    a.wait(vm=no)
    check_nonce()
    a(f"v_mov_b32 v{XR+9}, v{vNO}\nv_mov_b32 v{XR+11}, v{vNO}\ns_mov_b32 exec_lo, 1\ns_mov_b32 exec_hi, 1")
    a(f"buffer_store_dwordx4 v[{XR+8}:{XR+11}], v{T+2}, s[{sWS}:{sWS+3}], s{sT4} offen sc1\ns_mov_b64 exec, -1")
    stamp("b0_rec")
    if OPT["nob"]: stamp_flush(); a("s_endpgm")
    if OPT["l2w3"]:
        nl = OPT["l2w3"]; rounds = (98 + nl - 1) // nl
        a(f"s_lshl_b32 s{sT0}, s{sLOC}, 2\ns_add_u32 s{sT0}, s{sT0}, s{sW}\ns_mul_i32 s{sT0}, s{sT0}, {98*128}\nv_min_u32 v193, {nl-1}, v{vLANE}\nv_lshlrev_b32 v193, 7, v193")
        for r in range(rounds):
            a(f"buffer_load_dword v192, v193, s[{sW3}:{sW3+3}], s{sT0} offen\ns_add_u32 s{sT0}, s{sT0}, {nl*128}\ns_waitcnt vmcnt(0)")
        a.vmq = []
        stamp("b0_l2")
    if OPT["pf"] & 2:
        go_poll(); touches([(sW3, 49), (sW4, 49), (sWO, 13), (sWO, 13)])
    a(f"s_cmp_ge_u32 s{sLOC}, 28\ns_cbranch_scc1 L_helper")
    if OPT["prio_b"]: a(f"s_setprio {OPT['prio_b']}")
    a(f"v_mul_u32_u24 v{vXo}, {PL}, v{vHH}\nv_lshl_add_u32 v{vXo}, v{vT_}, 4, v{vXo}\ns_lshl_b32 s{sT0}, s{sRW}, 9\nv_add_u32 v{vPLN}, s{sT0}, v{vXo}")
    a(f"s_xor_b32 s{sT0}, s{sT0}, 512\nv_add_u32 v{vGo1}, s{sT0}, v{vXo}")
    if OPT["map3"]:
        a(f"s_and_b32 s{sT0}, s{sXCD}, 1\ns_mul_i32 s{sT0}, s{sT0}, 7\ns_add_u32 s{sC3}, s{sT0}, s{sCT}")
        a(f"s_lshr_b32 s{sT0}, s{sXCD}, 1\ns_lshl_b32 s{sT0}, s{sT0}, 2\ns_and_b32 s{sT1}, s{sR64}, 3\ns_add_u32 s{sRB3}, s{sT0}, s{sT1}\ns_lshl_b32 s{sT0}, s{sT1}, 1")
    else:
        a(f"s_cmp_ge_u32 s{sLOC}, 14\ns_cselect_b32 s{sT0}, 1, 0\ns_cselect_b32 s{sT1}, 14, 0\ns_sub_u32 s{sC3}, s{sLOC}, s{sT1}")
        a(f"s_lshl_b32 s{sRB3}, s{sXCD}, 1\ns_add_u32 s{sRB3}, s{sRB3}, s{sT0}\ns_mul_i32 s{sT0}, s{sT0}, 3")
    a(f"s_add_u32 s{sT0}, s{sT0}, s{sCT}\ns_sub_u32 s{sT1}, s{sT0}, 7\ns_cselect_b32 s{sT0}, s{sT0}, s{sT1}")
    rot7(sK3, sT0)
    a(f"s_and_b32 s{sT0}, s{sR64}, 3\ns_lshl_b32 s{sT0}, s{sT0}, 1\ns_add_u32 s{sT0}, s{sT0}, s{sCT}\ns_sub_u32 s{sT1}, s{sT0}, 7\ns_cselect_b32 s{sT0}, s{sT0}, s{sT1}")
    rot7(sG4, sT0)
    a(f"s_mul_i32 s{sT1}, s{sW}, {16*3584}\ns_lshl_b32 s{sT2}, s{sC3}, 8\ns_add_u32 s{sT1}, s{sT1}, s{sT2}")
    a(f"s_mul_i32 s{sT0}, s{sW}, {448*896}\ns_lshl_b32 s{sT2}, s{sCT}, 7\ns_add_u32 s{sT0}, s{sT0}, s{sT2}")
    a(f"s_mul_i32 s{sWOo}, s{sW}, {112*896}\ns_add_u32 s{sWOo}, s{sWOo}, s{sT2}")
    a(f"s_lshl_b32 s{sT2}, s{sR64}, 10\ns_mul_i32 s{sT3}, s{sW}, {56*PL}\ns_add_u32 s{sT3}, s{sT3}, s{sT2}\ns_add_u32 s{sT3}, s{sT3}, {G_}")
    a(f"s_mul_i32 s{sOo}, s{sW}, {16*PL}\ns_add_u32 s{sOo}, s{sOo}, s{sT2}\ns_add_u32 s{sOo}, s{sOo}, {O_}")
    a(f"s_lshl_b32 s{sT4}, s{sRB3}, 2\ns_add_u32 s{sT4}, s{sT4}, s{sW}\ns_lshl_b32 s{sSO}, s{sT4}, 8\ns_add_u32 s{sSO}, s{sSO}, {ST1}\ns_lshl_b32 s{sT4}, s{sT4}, 9")
    for c in range(7):
        a(f"s_mul_i32 s{sW3O+c}, s{sK3+c}, {64*3584}\ns_add_u32 s{sW3O+c}, s{sW3O+c}, s{sT1}")
        a(f"s_mul_i32 s{sW4o+c}, s{sG4+c}, {64*896}\ns_add_u32 s{sW4o+c}, s{sW4o+c}, s{sT0}")
        a(f"s_mul_i32 s{sG4+c}, s{sG4+c}, {8*PL}\ns_add_u32 s{sG4+c}, s{sG4+c}, s{sT3}")
        a(f"s_mul_i32 s{sK3+c}, s{sK3+c}, {8*PL}\ns_add_u32 s{sK3+c}, s{sK3+c}, s{sT4}\ns_add_u32 s{sK3+c}, s{sK3+c}, {X1}")
    a(f"s_mul_i32 s{sT1}, s{sC3}, {16*PL}\ns_add_u32 s{sT4}, s{sT4}, s{sT1}\ns_add_u32 s{sT4}, s{sT4}, {G_}")
    for u in range(4): a(f"s_add_u32 s{sT0}, s{sW}, {u}\ns_and_b32 s{sT0}, s{sT0}, 3\ns_mul_i32 s{sT0}, s{sT0}, {4*PL}\ns_add_u32 s{sGS+u}, s{sT0}, s{sT4}")
    a(f"s_lshl_b32 s{sM03}, s{sW}, 12\ns_mul_i32 s{sM04}, s{sW}, {NZ*2048}")
    a(f"s_lshl_b32 s{sT2}, s{sCT}, 1\ns_add_u32 s{sT2}, s{sT2}, s{sCW}\ns_mul_i32 s{sT0}, s{sT2}, {4*PL}\ns_lshl_b32 s{sT1}, s{sR64}, 10")
    a(f"s_add_u32 s{sT0}, s{sT0}, s{sT1}\ns_add_u32 s{sX1D}, s{sT0}, {X1}\ns_lshl_b32 s{sST1D}, s{sT2}, 14\ns_add_u32 s{sST1D}, s{sST1D}, {ST1}")
    a(f"s_lshl_b32 s{sT2}, s{sT2}, 6\ns_lshl_b32 s{sT0}, s{sR64}, 1\ns_add_u32 s{sT0}, s{sT0}, s{sRW}\ns_mul_i32 s{sOUTD}, s{sT0}, {32*896}\ns_add_u32 s{sOUTD}, s{sOUTD}, s{sT2}")
    a(f"s_lshl_b32 s{sT0}, s{sR64}, 3\ns_add_u32 s{sT0}, s{sT0}, s{sCT}\ns_lshl_b32 s{sT0}, s{sT0}, 7\ns_add_u32 s{sFX1}, s{sT0}, {FLG + F_X1*FT}")
    a(f"s_lshl_b32 s{sT0}, s{sRB3}, 4\ns_add_u32 s{sT0}, s{sT0}, s{sC3}\ns_lshl_b32 s{sT0}, s{sT0}, 7\ns_add_u32 s{sFG}, s{sT0}, {FLG + F_G*FT}")
    a(f"s_movk_i32 s{sT3}, 3584")
    addr_wdma256(vWd3, sT3, T)
    addr_wrd256(vWr3, 64, T)
    a(f"s_lshl_b32 s{sT1}, s{sW}, 9\ns_add_u32 s{sT1}, s{sT1}, {CSB3}\nv_lshl_add_u32 v{vCW3}, v{vLANE}, 3, s{sT1}")
    for u in range(4):
        a(f"s_add_u32 s{sT0}, s{sW}, {u}\ns_and_b32 s{sT0}, s{sT0}, 3\ns_lshl_b32 s{sT0}, s{sT0}, 7\ns_add_u32 s{sT0}, s{sT0}, s{sT1}\nv_lshl_add_u32 v{vCA3+u}, v{vHH}, 4, s{sT0}")
    addr_wrd128(vWr4, 4, sCW, sM04, T)
    a(f"v_xor_b32 v{vWr4+1}, 64, v{vWr4}")
    a(f"v_mul_u32_u24 v{vSo}, {7*16384}, v{vHH}\nv_lshl_add_u32 v{vSo}, v{vT_}, 3, v{vSo}")
    a(f"s_lshl_b32 s{sT0}, s{sR64}, 6\ns_lshl_b32 s{sT1}, s{sRW}, 5\ns_add_u32 s{sT0}, s{sT0}, s{sT1}\nv_add_u32 v{T}, s{sT0}, v{vT_}")
    a(f"v_lshlrev_b32 v{vST+2}, 3, v{T}\nv_lshlrev_b32 v{T+4}, 4, v{T}")
    a(f"v_mul_u32_u24 v{T+1}, {PL}, v{vHH}\nv_mov_b32 v{T+3}, 0x7fff0000\ns_movk_i32 s{sT2}, 2048")
    a(f"s_add_u32 s{sT0}, s{sCW}, 1")
    for g, op in enumerate(("v_subrev_u32", "v_add_u32")):
        a(f"{op} v{T+2}, s{sT0}, v{T}\nv_cmp_gt_u32 vcc, s{sT2}, v{T+2}\nv_lshl_add_u32 v{vSH+g}, v{T+2}, 4, v{T+1}\nv_cndmask_b32 v{vSH+g}, v{T+3}, v{vSH+g}, vcc")
    if not OPT["pf"] & 2: go_poll()
    a(f"s_lshl_b32 s{sT0}, s{sR64}, 2\ns_add_u32 s{sT0}, s{sT0}, s{sW}\ns_mul_i32 s{sT0}, s{sT0}, {16*896}\ns_lshl_b32 s{sT1}, s{sCT}, 7\ns_add_u32 s{sT0}, s{sT0}, s{sT1}")
    a(f"s_lshl_b32 s{sT2}, s{sW}, 11"); set_m0(sT2, 57344)
    for q in range(2): a.vm(f"buffer_load_dwordx4 v{vXd+q}, s[{sX}:{sX+3}], s{sT0} offen offset:{1024*q} lds")
    a(f"s_mul_i32 s{sT0}, s{sW}, {112*896}\ns_add_u32 s{sT0}, s{sT0}, s{sT1}\ns_mul_i32 s{sT1}, s{sW}, 14336")
    a(f"s_and_b32 s{sT2}, s{sR64}, 3\ns_lshl_b32 s{sT2}, s{sT2}, 1")
    def w2q(q):
        a(f"s_mul_i32 s{sT4}, s{sT2}, {16*896}\ns_add_u32 s{sT4}, s{sT4}, s{sT0}\ns_lshl_b32 s{sT5}, s{sT2}, 11\ns_add_u32 m0, s{sT5}, s{sT1}")
        tk = [a.vm(f"buffer_load_dwordx4 v{vWD+j}, s[{sW2}:{sW2+3}], s{sT4} offen offset:{1024*j} lds") for j in range(2)]
        if q < 6: a(f"s_add_u32 s{sT2}, s{sT2}, 1\ns_cmp_eq_u32 s{sT2}, 7\ns_cselect_b32 s{sT2}, 0, s{sT2}")
        return tk
    throttled([lambda q=q: w2q(q) for q in range(7)], OPT["thr"])
    REC = 160
    a(f"s_mov_b32 s{sT4}, {ST0}")
    check_record(REC, T + 4, sT4, loaded=False)
    a("s_barrier")
    stamp("b0_w2")
    if OPT["pf"] & 8: touches([(sW3, 56), (sW4, 56), (sWO, 14), (sWO, 14)], 224)
    ACC, W2F, XV, vWr = 16, 48, 164, 172
    a(f"s_mul_i32 s{sT3}, s{sCW}, 28672")
    addr_wrd128(vWr, 4, sCW, sT3, T)
    a(f"v_xor_b32 v{vWr+1}, 64, v{vWr}")
    a(f"v_bfe_u32 v{T}, v{vT_}, 1, 3\ns_lshl_b32 s{sT0}, s{sCW}, 2\nv_xor_b32 v{T}, s{sT0}, v{T}\nv_lshlrev_b32 v{T}, 4, v{T}")
    a(f"v_lshl_add_u32 v{T}, v{vT_}, 7, v{T}\nv_lshl_add_u32 v{T}, v{vHH}, 3, v{T}\ns_lshl_b32 s{sT0}, s{sRW}, 12\nv_add_u32 v{T}, s{sT0}, v{T}")
    for i in range(4):
        a(f"v_xor_b32 v{T+1}, {16*i}, v{T}")
        a.lg(f"ds_read_b64 v[{XV+2*i}:{XV+2*i+1}], v{T+1} offset:57344")
    for s in range(14):
        for b in range(2):
            for jj in range(2): a.lg(f"ds_read_b64_tr_b16 v[{W2F+8*s+4*b+2*jj}:{W2F+8*s+4*b+2*jj+1}], v{vWr+b} offset:{s*2048 + jj*1024}")
            if len(a.lgq) > 12: a.wait(lg=a.lgq[-11])
    a.wait_all(vm=False); a("s_barrier")
    m0 = [None]
    def issue_w(c, qs=range(4)):
        if m0[0] != c: set_m0(sM03, (c % 5) * 16384); m0[0] = c
        return [a.vm(f"buffer_load_dwordx4 v{vWd3+q}, s[{sW3}:{sW3+3}], s{sW3O+c} offen offset:{1024*q} lds") for q in qs]
    B3["issue_w"] = issue_w; B3["wt"] = {}
    def w3c(c, q):
        t = issue_w(c, (q,)); B3["wt"].setdefault(c, []).extend(t); return t
    B3["pieces"] = [lambda c=c, q=q: w3c(c, q) for c in range(5) for q in range(4)]
    if OPT["w3a"] and OPT["w3t"]:
        a(f"s_lshr_b32 s{sT0}, s{sXCD}, 1\ns_lshl_b32 s{sT0}, s{sT0}, 2\ns_lshr_b32 s{sT1}, s{sLOC}, 3\ns_add_u32 s{sT0}, s{sT0}, s{sT1}\ns_lshl_b32 s{sT0}, s{sT0}, 4")
        a(f"s_and_b32 s{sT1}, s{sXCD}, 1\ns_lshl_b32 s{sT1}, s{sT1}, 3\ns_add_u32 s{sT0}, s{sT0}, s{sT1}\ns_and_b32 s{sT1}, s{sLOC}, 7\ns_add_u32 s{sT0}, s{sT0}, s{sT1}")
        a(f"s_lshl_b32 s{sT0}, s{sT0}, 7\ns_add_u32 s{sT0}, s{sT0}, {FLG + F_QKV*FT}\nv_mov_b32 v{vPO}, s{sT0}")
        poll()
        stamp("b0_ap")
    for t in B3["pieces"][:OPT["w3a"]]: t()
    for i in range(8):
        a(f"v_lshlrev_b32 v{RES+2*i}, 16, v{XV+i}\nv_and_b32 v{RES+2*i+1}, 0xffff0000, v{XV+i}")
    a(f"v_mov_b32 v{vA}, v{REC+2}\nv_mul_f32 v{vB}, v{REC}, v{REC+2}\nv_sub_f32 v{vB}, 0, v{vB}")
    for i in range(0, 16, 2):
        a(f"v_pk_fma_f32 v[{ACC+i}:{ACC+i+1}], v[{RES+i}:{RES+i+1}], v[{vA}:{vA+1}], v[{vB}:{vB+1}] op_sel_hi:[1,0,0]")

def helper():
    a.label("L_helper")
    a.vmq = []; a.lgq = []
    prev_stamp[0] = stamp_names.get("b0_rec")
    if OPT["prio_h"]: a(f"s_setprio {OPT['prio_h']}")
    T = TB
    a(f"s_lshr_b32 s{sT0}, s{sXCD}, 1\ns_lshl_b32 s{sT0}, s{sT0}, 2\ns_add_u32 s{sT0}, s{sT0}, 3\ns_lshl_b32 s{sT0}, s{sT0}, 4")
    a(f"s_and_b32 s{sT1}, s{sXCD}, 1\ns_lshl_b32 s{sT1}, s{sT1}, 3\ns_add_u32 s{sT0}, s{sT0}, s{sT1}\ns_and_b32 s{sT1}, s{sLOC}, 7\ns_add_u32 s{sT0}, s{sT0}, s{sT1}")
    a(f"s_lshl_b32 s{sT0}, s{sT0}, 7\ns_add_u32 s{sT0}, s{sT0}, {FLG + F_QKV*FT}\nv_mov_b32 v{vPO}, s{sT0}")
    if OPT["hwait"] == 1: poll()
    if OPT["hwait"] == 2: go_poll(False)
    stamp("h_go")
    sB = sT4; LD, SUM = 16, 80
    a(f"s_and_b32 s{sB}, s2, 255\ns_sub_u32 s{sB}, s{sB}, 224\ns_cmp_ge_u32 s{sB}, 28\ns_cbranch_scc1 L_nocs")
    a(f"s_mul_i32 s{sT0}, s{sW}, {112*3584}\ns_lshl_b32 s{sT1}, s{sB}, 7\ns_add_u32 s{sT0}, s{sT0}, s{sT1}")
    a(f"v_lshrrev_b32 v{T}, 3, v{vLANE}\nv_mul_u32_u24 v{T}, 3584, v{T}\nv_and_b32 v{T+1}, 7, v{vLANE}\nv_lshl_add_u32 v{T}, v{T+1}, 4, v{T}")
    tk = []
    for i in range(14):
        tk.append(a.vm(f"buffer_load_dwordx4 v[{LD+4*i}:{LD+4*i+3}], v{T}, s[{sW3}:{sW3+3}], s{sT0} offen"))
        if i < 13: a(f"s_add_u32 s{sT0}, s{sT0}, {8*3584}")
        if i >= OPT["hthr"]: a.wait(vm=tk[i - OPT["hthr"]])
    for k in range(8): a(f"v_mov_b32 v{SUM+k}, 0")
    for i in range(14):
        a.wait(vm=tk[i])
        for k in range(4):
            a(f"v_lshlrev_b32 v{T+2}, 16, v{LD+4*i+k}\nv_and_b32 v{T+3}, 0xffff0000, v{LD+4*i+k}\nv_pk_add_f32 v[{SUM+2*k}:{SUM+2*k+1}], v[{SUM+2*k}:{SUM+2*k+1}], v[{T+2}:{T+3}]")
    stamp("h_ld")
    for k in range(8): a(f"v_add_f32_dpp v{SUM+k}, v{SUM+k}, v{SUM+k} row_ror:8 row_mask:0xf bank_mask:0xf")
    for op in ("v_permlane16_swap_b32", "v_permlane32_swap_b32"):
        for k in range(8): a(f"v_mov_b32 v{SUM+8+k}, v{SUM+k}")
        for k in range(8): a(f"{op} v{SUM+k}, v{SUM+8+k}")
        for k in range(8): a(f"v_add_f32 v{SUM+k}, v{SUM+k}, v{SUM+8+k}")
    a(f"s_lshl_b32 s{sT0}, s{sW}, 8\nv_lshlrev_b32 v{T+1}, 5, v{T+1}\nv_add_u32 v{T+2}, s{sT0}, v{T+1}")
    a(f"ds_write_b128 v{T+2}, v[{SUM}:{SUM+3}]\nds_write_b128 v{T+2}, v[{SUM+4}:{SUM+7}] offset:16\ns_waitcnt lgkmcnt(0)\ns_barrier")
    a(f"v_lshlrev_b32 v{T+2}, 2, v{vLANE}")
    for w2 in range(4): a(f"ds_read_b32 v{SUM+w2}, v{T+2} offset:{256*w2}")
    a(f"s_waitcnt lgkmcnt(0)\nv_add_f32 v{SUM}, v{SUM}, v{SUM+1}\nv_add_f32 v{SUM+2}, v{SUM+2}, v{SUM+3}\nv_add_f32 v{SUM}, v{SUM}, v{SUM+2}")
    a(f"s_lshl_b32 s{sT0}, s{sB}, 8\ns_add_u32 s{sT0}, s{sT0}, {CS3}\ns_lshl_b32 s{sT1}, s{sB}, 7\ns_add_u32 s{sT1}, s{sT1}, {FLG + F_CS*FT}")
    a(f"s_cmp_lg_u32 s{sW}, 0\ns_cbranch_scc1 L_nocs")
    a(f"buffer_store_dword v{SUM}, v{T+2}, s[{sWS}:{sWS+3}], s{sT0} offen sc1\ns_waitcnt vmcnt(0)")
    publish(sT1, barrier=False)
    a.label("L_nocs")
    a.vmq = []
    stamp("h_cs")
    if OPT["l2w4"]:
        nl = OPT["l2w4"]
        a(f"s_sub_u32 s{sT1}, s{sLOC}, 28\ns_lshl_b32 s{sT1}, s{sT1}, 2\ns_add_u32 s{sT1}, s{sT1}, s{sW}\nv_min_u32 v193, {nl-1}, v{vLANE}\nv_lshlrev_b32 v193, 7, v193")
        for sr_, lines in ((sW4, 784), (sWO, 196)):
            L = newlab("pf"); R = (lines + nl - 1) // nl
            a(f"s_mul_i32 s{sT3}, s{sT1}, {lines*128}\ns_mul_i32 s{sT4}, s{sXCD}, {R}\ns_lshr_b32 s{sT4}, s{sT4}, 3\ns_mov_b32 s{sT2}, {R}")
            a.label(L)
            a(f"s_mul_i32 s{sT0}, s{sT4}, {nl*128}\ns_add_u32 s{sT0}, s{sT0}, s{sT3}")
            a(f"buffer_load_dword v192, v193, s[{sr_}:{sr_+3}], s{sT0} offen\ns_add_u32 s{sT4}, s{sT4}, 1\ns_cmp_eq_u32 s{sT4}, {R}\ns_cselect_b32 s{sT4}, 0, s{sT4}\ns_waitcnt vmcnt(0)")
            a(f"s_sub_u32 s{sT2}, s{sT2}, 1\ns_cmp_lg_u32 s{sT2}, 0\ns_cbranch_scc1 {L}")
    stamp("h_w4"); stamp_flush()
    if OPT["clr"]:
        a(f"s_and_b32 s{sT0}, s2, 255\ns_cmp_lg_u32 s{sT0}, 255\ns_cbranch_scc1 L_end")
        a(f"s_lshl_b32 s{sT0}, s{sW}, 13\ns_add_u32 s{sT0}, s{sT0}, {FLG + F_O*FT}\nv_lshl_add_u32 v{vPO}, v{vLANE}, 7, s{sT0}")
        poll(sleep=32)
        a(f"s_barrier\ns_cmp_lg_u32 s{sW}, 0\ns_cbranch_scc1 L_end\nv_mov_b32 v{vP0}, 0\nv_mov_b32 v{vP0+1}, 0\ns_mov_b64 exec, 1")
        a(f"buffer_store_dwordx2 v[{vP0}:{vP0+1}], v{vZERO}, s[{sDBG}:{sDBG+3}], 0 offen sc1")
    a("s_endpgm")

def stage_B2():
    a.comment("==== B2: x1 = xn + shift(h) @ w2, 64 x 64 tile")
    ACC, W2F, HF, NH = 16, 48, 160, 8
    T = TB
    a(f"s_lshr_b32 s{sT0}, s{sR64}, 1\ns_and_b32 s{sT1}, s{sR64}, 1\ns_lshl_b32 s{sT1}, s{sT1}, 1\ns_add_u32 s{sT1}, s{sT1}, s{sT0}\ns_sub_u32 s{sT1}, s{sT1}, 1")
    a(f"s_max_i32 s{sT1}, s{sT1}, 0\ns_min_i32 s{sT1}, s{sT1}, 15\ns_lshl_b32 s{sT2}, s{sCW}, 8\ns_add_u32 s{sT2}, s{sT2}, {FLG + F_QKV*FT + 12*128}")
    a(f"v_mov_b32 v{T}, s{sT0}\nv_mov_b32 v{T+1}, s{sT1}\nv_cmp_gt_u32 vcc, 2, v{vLANE}\nv_cndmask_b32 v{T}, v{T+1}, v{T}, vcc")
    a(f"v_and_b32 v{T+1}, 1, v{vLANE}\nv_lshl_add_u32 v{T}, v{T}, 4, v{T+1}\nv_lshlrev_b32 v{T}, 7, v{T}\nv_add_u32 v{vPO}, s{sT2}, v{T}")
    a(f"s_mul_i32 s{sT0}, s{sCW}, {28*PL}\ns_add_u32 s{sT0}, s{sT0}, {H_}\ns_add_u32 s{sT1}, s{sX1D}, {2*PL}")
    vW, vR = vSH + 2, vSH + 3
    a(f"s_lshl_b32 s{sT2}, s{sW}, 12\ns_add_u32 s{sT2}, s{sT2}, 65536\nv_add_u32 v{vW}, s{sT2}, v{vL16}\nv_xor_b32 v{vR}, 4096, v{vW}")
    if OPT["tw3"]:
        a(f"v_min_u32 v{T}, 55, v{vLANE}\nv_mul_u32_u24 v{T+1}, 37, v{T}\nv_lshrrev_b32 v{T+1}, 9, v{T+1}\nv_mul_u32_u24 v{T+2}, 14, v{T+1}\nv_sub_u32 v{T}, v{T}, v{T+2}")
        a(f"v_mul_u32_u24 v{T+1}, 3584, v{T+1}\nv_lshl_add_u32 v193, v{T}, 7, v{T+1}")
        a(f"s_lshl_b32 s{sT3}, s{sLOC}, 2\ns_add_u32 s{sT3}, s{sT3}, s{sW}\ns_mul_i32 s{sT3}, s{sT3}, {4*3584}\ns_and_b32 s{sT2}, s{sXCD}, 1\ns_mul_i32 s{sT2}, s{sT2}, 1792\ns_add_u32 s{sT3}, s{sT3}, s{sT2}")
        if OPT["tw3"] == 99: a.vm(f"buffer_load_dword v192, v193, s[{sW3}:{sW3+3}], s{sT3} offen")
    stamp("b2_ready")
    poll()
    stamp("b2_poll")
    ht = []
    def hload():
        ks = len(ht); r = HF + 4 * (ks % NH)
        ht.append(a.vm(f"buffer_load_dwordx4 v[{r}:{r+3}], v{vSH + ks//7}, s[{sWS}:{sWS+3}], s{sT0} offen sc1"))
        if ks < 13: a(f"s_add_u32 s{sT0}, s{sT0}, {2*PL}")
    for ks in range(NH): hload()
    a(f"s_lshl_b32 s{sT2}, s{sRB3}, 1\ns_add_u32 s{sT2}, s{sT2}, s{sRW}\ns_lshl_b32 s{sT2}, s{sT2}, 10\ns_add_u32 s{sT2}, s{sT2}, {FLG + F_X1*FT}")
    a(f"v_min_u32 v{T}, 6, v{vLANE}\nv_lshl_add_u32 v{vPO}, v{T}, 7, s{sT2}")
    for s in range(14):
        a.wait(vm=ht[s])
        if s == 0: stamp("b2_h0")
        mfma(ACC + 16, W2F + 8 * s + 4, HF + 4 * (s % NH), first=(s == 0))
        mfma(ACC, W2F + 8 * s, HF + 4 * (s % NH))
        if len(ht) < 14: hload()
        if OPT["tw3"] and s == OPT["tw3"]:
            a.vm(f"buffer_load_dword v192, v193, s[{sW3}:{sW3+3}], s{sT3} offen")
    stamp("b2_main")
    for i in range(4): a.lg(f"ds_write_b128 v{vW}, v[{ACC+16+4*i}:{ACC+16+4*i+3}] offset:{1024*i}")
    a.wait_all(vm=False); a("s_barrier")
    tk = [a.lg(f"ds_read_b128 v[{ACC+16+4*i}:{ACC+16+4*i+3}], v{vR} offset:{1024*i}") for i in range(4)]
    for i in range(4):
        a.wait(lg=tk[i])
        for k in (0, 2): a(f"v_pk_add_f32 v[{ACC+4*i+k}:{ACC+4*i+k+1}], v[{ACC+4*i+k}:{ACC+4*i+k+1}], v[{ACC+16+4*i+k}:{ACC+16+4*i+k+1}]")
    PK = 48; sts = []
    cvt16(PK, ACC)
    for p in range(2):
        a(f"v_permlane32_swap_b32 v{PK+4*p}, v{PK+4*p+2}\nv_permlane32_swap_b32 v{PK+4*p+1}, v{PK+4*p+3}")
        sts.append(a.vm(f"buffer_store_dwordx4 v[{PK+4*p}:{PK+4*p+3}], v{vPLN}, s[{sWS}:{sWS+3}], s{sT1 if p else sX1D} offen sc1"))
    a(f"v_pk_add_f32 v[{T}:{T+1}], v[{ACC}:{ACC+1}], v[{ACC+2}:{ACC+3}]\nv_pk_mul_f32 v[{T+2}:{T+3}], v[{ACC}:{ACC+1}], v[{ACC}:{ACC+1}]")
    a(f"v_pk_fma_f32 v[{T+2}:{T+3}], v[{ACC+2}:{ACC+3}], v[{ACC+2}:{ACC+3}], v[{T+2}:{T+3}]")
    for i in range(4, 16, 2):
        a(f"v_pk_add_f32 v[{T}:{T+1}], v[{T}:{T+1}], v[{ACC+i}:{ACC+i+1}]\nv_pk_fma_f32 v[{T+2}:{T+3}], v[{ACC+i}:{ACC+i+1}], v[{ACC+i}:{ACC+i+1}], v[{T+2}:{T+3}]")
    a(f"v_add_f32 v{T}, v{T}, v{T+1}\nv_add_f32 v{T+2}, v{T+2}, v{T+3}\nv_mov_b32 v{T+1}, v{T}\nv_mov_b32 v{T+3}, v{T+2}")
    a(f"v_permlane32_swap_b32 v{T}, v{T+1}\nv_permlane32_swap_b32 v{T+2}, v{T+3}\nv_add_f32 v{vST}, v{T}, v{T+1}\nv_add_f32 v{vST+1}, v{T+2}, v{T+3}")
    sts.append(a.vm(f"buffer_store_dwordx2 v[{vST}:{vST+1}], v{vST+2}, s[{sWS}:{sWS+3}], s{sST1D} offen sc1"))
    for i in range(0, 16, 2): a(f"v_pk_add_f32 v[{RES+i}:{RES+i+1}], v[{RES+i}:{RES+i+1}], v[{ACC+i}:{ACC+i+1}]")
    stamp("b2_st")
    n0 = OPT["w3a"]; n1 = max(n0, OPT["w3b"])
    for t in B3["pieces"][n0:n1]: t()
    a.wait(vm=sts); a("s_barrier")
    publish(sFX1, barrier=False)
    stamp("b2_pub")
    n2 = max(n1, OPT["w3c"])
    for t in B3["pieces"][n1:n2]:
        if len(a.vmq) >= OPT["thr3"]: a.wait(vm=a.vmq[-OPT["thr3"]])
        t()
    B3["stream"] = B3["pieces"][n2:]

def stage_B3():
    a.comment("==== B3: g = gelu(LN(x1) @ w3), 128 x 128 tile")
    ACC, XF, NX, WF, ST = 16, 80, 16, 144, 176
    T = TB
    poll()
    stamp("b3_poll")
    xt = []
    def xload():
        s = len(xt); c, ks = divmod(s, 4); r = XF + 4 * (s % NX)
        so = sK3 + c
        if ks: a(f"s_add_u32 s{sT0}, s{sK3+c}, {2*ks*PL}"); so = sT0
        xt.append(a.vm(f"buffer_load_dwordx4 v[{r}:{r+3}], v{vXo}, s[{sWS}:{sWS+3}], s{so} offen sc1"))
    for s in range(6): xload()
    stt = []; cst = []; cft = []
    def stat_load():
        i = len(stt)
        if i: a(f"s_add_u32 s{sSO}, s{sSO}, 16384")
        stt.append(a.vm(f"buffer_load_dwordx2 v[{ST+2*i}:{ST+2*i+1}], v{vSo}, s[{sWS}:{sWS+3}], s{sSO} offen sc1"))
    def kstep(s):
        th = []
        n = len(xt)
        for k in range(2):
            if n + k < 28 and n + k < s + NX and n + k <= s + 13: th.append(xload)
        if OPT["tw4"]:
            def tch(k):
                if k == 0:
                    a(f"s_lshl_b32 s{sT1}, s{sLOC}, 2\ns_add_u32 s{sT1}, s{sT1}, s{sW}\ns_mul_i32 s{sT2}, s{sT1}, {112*128}\ns_mul_i32 s{sT3}, s{sT1}, {28*128}")
                    a(f"s_and_b32 s{sT1}, s{sXCD}, 1\ns_mul_i32 s{sT1}, s{sT1}, {56*128}\nv_min_u32 v193, 55, v{vLANE}\nv_lshlrev_b32 v193, 7, v193\ns_add_u32 s{sT4}, s{sT2}, s{sT1}")
                    a.vm(f"buffer_load_dword v192, v193, s[{sW4}:{sW4+3}], s{sT4} offen")
                if k == 1:
                    a(f"s_sub_u32 s{sT4}, s{sT2}, s{sT1}\ns_add_u32 s{sT4}, s{sT4}, {56*128}")
                    a.vm(f"buffer_load_dword v192, v193, s[{sW4}:{sW4+3}], s{sT4} offen")
                if k == 2:
                    a(f"v_min_u32 v193, {27*128}, v193")
                    a.vm(f"buffer_load_dword v192, v193, s[{sWO}:{sWO+3}], s{sT3} offen")
            for k in range(3):
                if s == OPT["tw4"] + k * OPT["tw4d"]: th.append(lambda k=k: tch(k))
        if 9 <= s < 16: th.append(stat_load)
        if s == 7:
            def csflag():
                a(f"s_lshl_b32 s{sT0}, s{sC3}, 8\ns_add_u32 s{sT0}, s{sT0}, {FLG + F_CS*FT}\nv_and_b32 v{vPO}, 1, v{vLANE}\nv_lshl_add_u32 v{vPO}, v{vPO}, 7, s{sT0}")
                cft.append(a.vm(f"buffer_load_dwordx2 v[{vP0}:{vP0+1}], v{vPO}, s[{sWS}:{sWS+3}], 0 offen sc1"))
            th.append(csflag)
        if s == 13:
            def csload():
                L = newlab("cc")
                a.wait(vm=cft); q = list(a.vmq)
                a(f"v_cmp_ne_u64 vcc, v[{vP0}:{vP0+1}], v[{vNO}:{vNO+1}]\ns_cbranch_vccz {L}")
                poll(); a.label(L); a.vmq = q
                a(f"s_lshl_b32 s{sT0}, s{sC3}, 9\ns_add_u32 s{sT0}, s{sT0}, {CS3}\nv_lshlrev_b32 v{SEL3}, 3, v{vLANE}")
                cst.append(a.vm(f"buffer_load_dwordx2 v[{CS43}:{CS43+1}], v{SEL3}, s[{sWS}:{sWS+3}], s{sT0} offen sc1"))
            th.append(csload)
        if s == 21:
            def cswrite():
                a.wait(vm=cst); a.lg(f"ds_write_b64 v{vCW3}, v[{CS43}:{CS43+1}]")
            th.append(cswrite)
        return th
    hooks = dict(before_barrier=lambda c: None, after_barrier=lambda c: [], lg_need=lambda s: [], vm_need=lambda s: [xt[s]], kstep=kstep)
    PAD[0] = OPT["pad3"]
    panel_mainloop("b3", ACC, WF, vWr3, 5, lambda s: XF + 4 * (s % NX), B3["issue_w"], B3["wt"], hooks, None, None, stream=B3["stream"])
    PAD[0] = 0
    stamp("b3_main")
    CS, GT, PK = 80, 144, 160
    toks = [read_cs(CS + 16 * u, vCA3 + u) for u in range(3)]
    a.wait(vm=stt)
    for i in (2, 4): a(f"v_pk_add_f32 v[{ST}:{ST+1}], v[{ST}:{ST+1}], v[{ST+i}:{ST+i+1}]\nv_pk_add_f32 v[{ST+6}:{ST+7}], v[{ST+6}:{ST+7}], v[{ST+6+i}:{ST+7+i}]")
    a(f"v_pk_add_f32 v[{ST}:{ST+1}], v[{ST}:{ST+1}], v[{ST+12}:{ST+13}]\nv_pk_add_f32 v[{ST}:{ST+1}], v[{ST}:{ST+1}], v[{ST+6}:{ST+7}]")
    a(f"v_mov_b32 v{ST+2}, v{ST}\nv_mov_b32 v{ST+3}, v{ST+1}\nv_permlane32_swap_b32 v{ST}, v{ST+2}\nv_permlane32_swap_b32 v{ST+1}, v{ST+3}")
    a(f"v_pk_add_f32 v[{ST}:{ST+1}], v[{ST}:{ST+1}], v[{ST+2}:{ST+3}]")
    ln_stats(ST, ST + 1, T)
    a(f"v_add_f32 v{ST+1}, {hx(f2u(EPS))}, v{ST+1}\nv_rsq_f32 v{vA}, v{ST+1}\nv_sub_f32 v{vB}, 0, v{ST}")
    gelu_consts(ST + 2, vA)
    a.wait(lg=toks[0])
    toks.append(read_cs(CS + 48, vCA3 + 3))
    stamp("b3_csbar")
    def issue_w4(j):
        set_m0(sM04, (j % NZ) * 2048)
        if j < 28:
            c, ks = divmod(j, 4); srd_, base, add = sW4, sW4o + c, ks * 16 * 896
        else:
            hd, m = divmod(j - 28, 2); srd_, base, add = sWO, sWOo, (28 * hd + 16 * m) * 896
        so = base
        if add: a(f"s_add_u32 s{sT5}, s{base}, {add}"); so = sT5
        return [a.vm(f"buffer_load_dwordx4 v{vWD+q}, s[{srd_}:{srd_+3}], s{so} offen offset:{1024*q} lds") for q in range(2)]
    B4["issue_w"] = issue_w4; B4["wt"] = {}
    cnt = [0]
    def hook():
        cnt[0] += 1
        j = len(B4["wt"])
        if cnt[0] == 1: a("s_barrier")
        if j < NZ and cnt[0] % 2 == 0:
            if len(a.vmq) >= OPT["thr4"]: a.wait(vm=a.vmq[-OPT["thr4"]])
            B4["wt"][j] = issue_w4(j)
    for u in range(4):
        a.wait(lg=toks[u]); shift16(ACC + 16 * u, CS + 16 * u)
        gelu16(ACC + 16 * u, GT, ST + 2, hook)
        pk = PK + 8 * (u & 1)
        cvt16(pk, ACC + 16 * u)
        a(f"s_add_u32 s{sT1}, s{sGS+u}, {2*PL}")
        a.vm(f"buffer_store_dwordx4 v[{pk}:{pk+3}], v{vXo}, s[{sWS}:{sWS+3}], s{sGS+u} offen sc1")
        a.vm(f"buffer_store_dwordx4 v[{pk+4}:{pk+7}], v{vXo}, s[{sWS}:{sWS+3}], s{sT1} offen sc1")
    assert len(B4["wt"]) == NZ
    stamp("b3_epi")
    sts = a.vmq[-2:]
    NRG = OPT["nrg"]; WR = 144
    for j in range(NRG):
        a.wait(vm=B4["wt"][j])
        for b in range(2):
            for jj in range(2):
                r = WR + 8 * j + 4 * b + 2 * jj
                a.lg(f"ds_read_b64_tr_b16 v[{r}:{r+1}], v{vWr4+b} offset:{j*2048 + jj*1024}")
        if len(a.lgq) > 8: a.wait(lg=a.lgq[-5])
        if j == 0:
            for i in range(16): a(f"v_mov_b32 v{ACC+i}, v{RES+i}")
    a(f"s_lshr_b32 s{sT0}, s{sR64}, 1\ns_lshl_b32 s{sT0}, s{sT0}, 4\ns_mul_i32 s{sT1}, s{sW}, 7\ns_lshr_b32 s{sT1}, s{sT1}, 1\ns_add_u32 s{sT1}, s{sT1}, s{sT0}")
    a(f"v_and_b32 v{T}, 3, v{vLANE}\nv_add_u32 v{T+1}, s{sT1}, v{T}\nv_lshlrev_b32 v{T+1}, 7, v{T+1}\nv_add_u32 v{vPO}, {FLG + F_G*FT}, v{T+1}")
    a(f"s_lshl_b32 s{sT1}, s{sW}, 2\ns_add_u32 s{sT1}, s{sT1}, s{sT0}\nv_add_u32 v{T+1}, s{sT1}, v{T}\nv_lshlrev_b32 v{T+1}, 7, v{T+1}\nv_add_u32 v{T+7}, {FLG + F_O*FT}, v{T+1}")
    a(f"s_and_b32 s{sT1}, s{sR64}, 1\ns_lshl_b32 s{sT1}, s{sT1}, 4\nv_bfe_u32 v{T+1}, v{vLANE}, 2, 1\nv_lshl_add_u32 v{T+1}, v{T+1}, 3, s{sT1}\nv_add_u32 v{T+7}, v{T+7}, v{T+1}")
    if not NRG:
        for i in range(16): a(f"v_mov_b32 v{ACC+i}, v{RES+i}")
    a.wait_all(vm=False)
    n1 = min(NRG, OPT["w4b"])
    for j in range(n1): B4["wt"][NZ + j] = issue_w4(NZ + j)
    a.wait(vm=sts); a("s_barrier")
    publish(sFG, barrier=False)
    stamp("b3_pub")
    for j in range(n1, NRG):
        if len(a.vmq) >= OPT["thr4"]: a.wait(vm=a.vmq[-OPT["thr4"]])
        B4["wt"][NZ + j] = issue_w4(NZ + j)

def stage_B4():
    a.comment("==== B4: out = x + x1 + g @ w4 + o @ wo, 64 x 64 tile, k split over the waves")
    ACC, GF, WR, WF, T = 16, 80, 144, 208, TB
    NRG = OPT["nrg"]
    vGo = [vPLN, vGo1]; vPO2 = T + 7
    wt = B4["wt"]; issue_w = B4["issue_w"]
    rd = {}; gt = {}
    def reads(j):
        rd[j] = []
        if j < NRG: return []
        a.wait(vm=wt[j])
        return [lambda b=b, jj=jj: rd[j].append(a.lg(f"ds_read_b64_tr_b16 v[{WF+8*(j&1)+4*b+2*jj}:{WF+8*(j&1)+4*b+2*jj+1}], v{vWr4+b} offset:{(j%NZ)*2048 + jj*1024}")) for b in range(2) for jj in range(2)]
    def gload(j):
        if j < 28:
            c, ks = divmod(j, 4); base, add = sG4 + c, 2 * ks * PL
        else: base, add = sOo, 2 * (j - 28) * PL
        so = base
        if add: a(f"s_add_u32 s{sT4}, s{base}, {add}"); so = sT4
        r = GF + 8 * (j % 8)
        gt[j] = [a.vm(f"buffer_load_dwordx4 v[{r+4*aa}:{r+4*aa+3}], v{vGo[aa]}, s[{sWS}:{sWS+3}], s{so} offen sc1") for aa in range(2)]
    ot = []
    def ocheck():
        L = newlab("oc"); q = None
        a.wait(vm=ot)
        q = list(a.vmq)
        a(f"v_cmp_ne_u64 vcc, v[{vP0}:{vP0+1}], v[{vNO}:{vNO+1}]\ns_cbranch_vccz {L}\nv_mov_b32 v{vPO}, v{vPO2}")
        poll()
        a.label(L)
        a.vmq = q
        stamp("b4_opoll")
    for t in reads(0): t()
    poll()
    stamp("b4_poll")
    for j in range(4): gload(j)
    PAD[0] = OPT["pad4"]
    for j in range(36):
        if j == 28: stamp("b4_g")
        a.wait(vm=gt[j], lg=rd[j])
        if j in (0, 14): stamp(f"b4_j{j}")
        rds = reads(j + 1) if j + 1 < 36 else []
        late = []
        n = len(gt)
        jo = 28 - OPT["olead"]
        if j == jo - 3 and not OPT["noattn"]:
            late.append(lambda: ot.append(a.vm(f"buffer_load_dwordx2 v[{vP0}:{vP0+1}], v{vPO2}, s[{sWS}:{sWS+3}], 0 offen sc1")))
        if j == jo - 1 and not OPT["noattn"]: late.append(ocheck)
        for k in range(2):
            if n + k < 36 and n + k <= j + 7 and (n + k < 28 or j >= jo): late.append(lambda k=n + k: gload(k))
        if j + NZ < 36 and j >= NRG: late.append(lambda j=j: wt.__setitem__(j + NZ, issue_w(j + NZ)))
        g = GF + 8 * (j % 8); w = WF + 8 * (j & 1) if j >= NRG else WR + 8 * j
        for u in range(4):
            aa, b = divmod(u, 2)
            mfma(ACC + 16 * u, w + 4 * b, g + 4 * aa, first=(j == 0 and u > 0))
            if u == 0:
                for t in rds: t()
            elif late: late.pop(0)()
        for t in late: t()
    PAD[0] = 0
    stamp("b4_o")
    vW, vR = T, T + 1
    a(f"v_add_u32 v{vW}, s{sM04}, v{vL16}\nv_mul_u32_u24 v{T+2}, 896, v{vT_}\nv_lshl_add_u32 v{T+2}, v{vHH}, 4, v{T+2}")
    for u in range(1, 4):
        for i in range(4): a.lg(f"ds_write_b128 v{vW}, v[{ACC+16*u+4*i}:{ACC+16*u+4*i+3}] offset:{(u-1)*4096 + 1024*i}")
    a.wait_all(vm=False); a("s_barrier")
    stamp("b4_rbar")
    tk = []
    for u in range(1, 4):
        a(f"s_xor_b32 s{sT0}, s{sW}, {u}\ns_mul_i32 s{sT0}, s{sT0}, {NZ*2048}\nv_add_u32 v{vR}, s{sT0}, v{vL16}")
        tk.append([a.lg(f"ds_read_b128 v[{ACC+16*u+4*i}:{ACC+16*u+4*i+3}], v{vR} offset:{(u-1)*4096 + 1024*i}") for i in range(4)])
    for u in range(1, 4):
        a.wait(lg=tk[u - 1])
        for i in range(0, 16, 2): a(f"v_pk_add_f32 v[{ACC+i}:{ACC+i+1}], v[{ACC+i}:{ACC+i+1}], v[{ACC+16*u+i}:{ACC+16*u+i+1}]")
    PK = GF
    cvt16(PK, ACC)
    for p in range(2):
        a(f"v_permlane32_swap_b32 v{PK+4*p}, v{PK+4*p+2}\nv_permlane32_swap_b32 v{PK+4*p+1}, v{PK+4*p+3}")
        a.vm(f"buffer_store_dwordx4 v[{PK+4*p}:{PK+4*p+3}], v{T+2}, s[{sOUT}:{sOUT+3}], s{sOUTD} offen offset:{32*p}" + ["", " sc1", " nt", " sc0 sc1"][OPT["outsc"]])
    stamp("b4_end"); stamp_flush()

HEAD = f"""; parallel sum of an attention block and a spatial-shift MLP mixer.  One persistent launch, two workgroups per CU:
; @launch grid=(512,1,1) block=(256,1,1) lds={LDS_BYTES}
.amdgcn_target "amdgcn-amd-amdhsa--gfx950"
.text
.globl {NAME}_kernel
.p2align 8
.type {NAME}_kernel,@function
{NAME}_kernel:
"""
TAIL = f""".section .rodata,"a"
.p2align 6
.amdhsa_kernel {NAME}_kernel
  .amdhsa_next_free_vgpr 256
  .amdhsa_next_free_sgpr 102
  .amdhsa_accum_offset 256
  .amdhsa_group_segment_fixed_size 0
  .amdhsa_kernarg_size 88
  .amdhsa_user_sgpr_count 2
  .amdhsa_user_sgpr_kernarg_segment_ptr 1
  .amdhsa_system_sgpr_workgroup_id_x 1
.end_amdhsa_kernel
"""

def build():
    prologue()
    stage_A1()
    if OPT["noattn"]: stamp_flush(); a("s_endpgm")
    else: stage_A2()
    stage_B0()
    stage_B2()
    stage_B3()
    stage_B4()
    a.label("L_end")
    a("s_endpgm")
    helper()
    a.label("L_code_end")
    a.pad_hazards()
    size, nprom, nnop = fix_straddles(a, HEAD, TAIL, verbose=True)
    print(f"code bytes {size}, hazard nops {a.nops_inserted}, promoted {nprom}, straddle nops {nnop}")
    open(sys.argv[1], "w").write(HEAD + a.text() + TAIL + (("; roles: BA\n" if OPT["swap"] else "") + "; stamps: " + ",".join(stamp_names) + "\n" if OPT["stamps"] else ""))

if __name__ == "__main__":
    build()
```

```python
import sys, math, struct
from asmlib import *

NAME = "parallel_sum__mha_block__mixer_s_mlp__prompt"
OPT = dict(stamps=0, spin=400000, prio_b=1, pf=1, outsc=0, noattn=0, nob=0, nr=5, thr=64, go=12, prio_a1=2, prio_at=2, w2late=1, thra=6, swap=1, anf=1, thr3=6, w3a=0, w3b=3, aprio=1, pad3=0, pad4=0, xp=0, defer=0, w3c=20, l2w3=0, l2w4=0, clr=1, map3=1, split=0, prio_h=1, hwait=1, hthr=14, alate=64, aprio2=1, nrg=8, w4b=0, olead=5, dsw=1, a1s=2, w3t=1, dbgst=0, thr4=64, tw4=16, tw4d=3, tw3=0, wsoff=0, nd=4, nz=10, ng=8, psl=1)
for a in sys.argv[2:]:
    k, v = a.split("="); OPT[k] = int(v, 0)

def f2u(x): return struct.unpack("<I", struct.pack("<f", x))[0]
def hx(x): return hex(x & 0xffffffff)

S, D, F = 2048, 448, 1792
PL = 32768 + 256
MB_A = 0x00000
MB_H = 0x20000
MB_X = 0x2E000
MB_G = 0x3C000
MB_O = 0x4A000
F_GO = 0x58000
F_CS = 0x5C000
F_AP = 0x60000
OOB = 0x7fff0000
QB_ = 0x80000
KV_ = QB_ + 16 * 64 * 2048
H_ = KV_ + 16 * 64 * 4096
X1 = H_ + 0x1C4000
O_ = X1 + 0x1C4000
G_ = O_ + 0x204000
CS3 = G_ + 0x70E000
ST0 = CS3 + 0x2000
ST1 = ST0 + 0x8000
WS_SIZE = ST1 + 14 * 0x4000
STAMP = 0x1600000
if OPT['stamps']: WS_SIZE = STAMP + 0x80000
LDS_BYTES = 81920
EPS = 1e-5
QSCALE = (28 ** -0.5) * math.log2(math.e)
GA = -2.0 * math.log2(math.e) * math.sqrt(2.0 / math.pi)
GB = GA * 0.044715

sX, sDBG, sW2, sWA, sWS, sW3, sW4, sWO, sOUT = 28, 32, 36, 40, 44, 48, 52, 56, 60
sF = 28
sNO = 0
sHI = 26
sW, sXCD, sLOC = 64, 65, 66
sONES = 67
sT0, sT1, sT2, sT3, sT4, sT5 = 68, 69, 70, 71, 72, 73
sCNT = 74
sA0 = 75
vTID, vLANE, vT_, vHH, vZERO = 0, 1, 2, 3, 4
vNO = 6
vP0 = 8
vPO = 10
vL16 = 11
vA, vB = 12, 14

a = Asm()
lab = [0]
def newlab(p):
    lab[0] += 1; return f"L_{p}_{lab[0]}"

def srd(dst, ptr, size):
    if dst == sWS and OPT["wsoff"]:
        a(f"s_add_u32 s{dst}, s{ptr}, {OPT['wsoff'] << 20}\ns_addc_u32 s{dst+1}, s{ptr+1}, 0\ns_mov_b32 s{dst+2}, {hx(size)}\ns_mov_b32 s{dst+3}, 0x20000")
        return
    a(f"s_mov_b32 s{dst}, s{ptr}\ns_mov_b32 s{dst+1}, s{ptr+1}\ns_mov_b32 s{dst+2}, {hx(size)}\ns_mov_b32 s{dst+3}, 0x20000")

nstamp = [0]
prev_stamp = [None]
stamp_names = {}
def stamp(name, first=False):
    if not OPT["stamps"]: return
    idx = stamp_names.setdefault(name, len(stamp_names))
    assert idx < 64
    if first: a("v_mov_b32 v5, 0")
    elif prev_stamp[0] is not None: a(f"v_writelane_b32 v5, s100, {prev_stamp[0]}")
    a("s_memrealtime s[100:101]" if OPT["stamps"] == 1 else "s_memtime s[100:101]")
    prev_stamp[0] = idx

def stamp_flush():
    if not OPT["stamps"]: return
    if OPT["dbgst"]:
        L = newlab("dbg")
        role = "a" if prev_stamp[0] in [v for k, v in stamp_names.items() if k.startswith("a")] else "b"
        want = {"a": ["a1_c0", "a1_main", "a1_pub", "a2_poll", "a2_start", "a2_main", "a2_pub"], "b": ["b0_rec", "b2_poll", "b2_pub", "b3_poll", "b3_main", "b4_poll", "b4_end"]}[role]
        if not all(w in stamp_names for w in want) or list(stamp_names)[prev_stamp[0]] != want[-1]: return
        a(f"s_waitcnt lgkmcnt(0)\nv_writelane_b32 v5, s100, {prev_stamp[0]}\ns_and_b32 s100, s2, 255\ns_lshl_b32 s100, s100, 2\ns_add_u32 s100, s100, s{sW}\ns_cmp_lg_u32 s100, {OPT['dbgst']*4}\ns_cbranch_scc1 {L}")
        a(f"v_readlane_b32 s100, v5, 0\ns_mov_b64 exec, 1")
        for i, w in enumerate(want):
            a(f"v_readlane_b32 s101, v5, {stamp_names[w]}\ns_sub_u32 s101, s101, s100\nv_mov_b32 v{vP0}, s101\nbuffer_store_dword v{vP0}, v{vZERO}, s[{sDBG}:{sDBG+3}], 0 offen offset:{8 + 4*i + (28 if role == 'b' else 0)}\ns_nop 1")
        a("s_mov_b64 exec, -1")
        a.label(L)
        return
    a(f"s_waitcnt lgkmcnt(0)\nv_writelane_b32 v5, s100, {prev_stamp[0]}")
    a(f"s_lshl_b32 s100, s2, 2\ns_add_u32 s100, s100, s{sW}\ns_lshl_b32 s100, s100, 8\ns_add_u32 s100, s100, {STAMP}")
    a(f"v_lshlrev_b32 v{vP0}, 2, v{vLANE}\nbuffer_store_dword v5, v{vP0}, s[{sWS}:{sWS+3}], s100 offen")

def get_nonce(loaded=False):
    L = newlab("no"); Dn = newlab("nod"); C = newlab("noc")
    q = list(a.vmq)
    a(f"s_mov_b32 s{sCNT}, {OPT['spin']}")
    if loaded: a(f"s_branch {C}")
    a.label(L)
    a(f"buffer_load_dwordx2 v[{vNO}:{vNO+1}], v{vZERO}, s[{sDBG}:{sDBG+3}], 0 offen sc1\ns_waitcnt vmcnt(0)")
    a.label(C)
    a(f"v_readfirstlane_b32 s{sNO}, v{vNO}\nv_readfirstlane_b32 s{sNO+1}, v{vNO+1}")
    a(f"s_cmp_lg_u32 s{sNO}, 0\ns_cbranch_scc1 {Dn}\ns_sub_u32 s{sCNT}, s{sCNT}, 1\ns_cbranch_scc1 {Dn}\ns_sleep 1\ns_branch {L}")
    a.label(Dn)
    if not loaded: a.vmq = []

def post(vaddrs, barrier=True):
    L = newlab("post")
    if barrier:
        a.wait_all()
        a("s_barrier")
    a(f"s_cmp_lg_u32 s{sW}, 0\ns_cbranch_scc1 {L}")
    for v in vaddrs: a(f"buffer_store_dwordx2 v[{vNO}:{vNO+1}], v{v}, s[{sWS}:{sWS+3}], 0 offen sc1")
    a.label(L)

def lane_div(q, r, src, d, t):
    a(f"v_mul_u32_u24 v{q}, 37, v{src}\nv_lshrrev_b32 v{q}, {8 if d == 7 else 9}, v{q}\nv_mul_u32_u24 v{t}, {d}, v{q}\nv_sub_u32 v{r}, v{src}, v{t}")

def lanes_below(v, n, t):
    a(f"v_mov_b32 v{t}, {hx(OOB)}\nv_cmp_gt_u32 vcc, {n}, v{vLANE}\nv_cndmask_b32 v{v}, v{t}, v{v}, vcc")

def spoll(loads):
    L = newlab("sp"); Dn = newlab("spd")
    a(f"s_mov_b32 s{sCNT}, {OPT['spin']}")
    a.label(L)
    regs = []
    for (d, n, so, imm, used) in loads:
        a(f"s_buffer_load_dwordx{n} s[{d}:{d+n-1}], s[{sWS}:{sWS+3}], s{so} offset:{imm} glc")
        regs += [d + 2 * k for k in range(used)]
    a.wait_all(vm=False)
    for r in regs: a(f"s_xor_b64 s[{r}:{r+1}], s[{r}:{r+1}], s[{sNO}:{sNO+1}]")
    while len(regs) > 1:
        r = regs.pop(); a(f"s_or_b64 s[{regs[0]}:{regs[0]+1}], s[{regs[0]}:{regs[0]+1}], s[{r}:{r+1}]")
    a(f"s_cbranch_scc0 {Dn}\ns_sub_u32 s{sCNT}, s{sCNT}, 1\ns_cbranch_scc1 {Dn}" + ("\ns_sleep 1" if OPT["psl"] else "") + f"\ns_branch {L}")
    a.label(Dn)

def poll(sleep=1):
    L = newlab("po"); Dn = newlab("pod")
    a(f"s_mov_b32 s{sCNT}, {OPT['spin']}")
    a.label(L)
    a(f"buffer_load_dwordx2 v[{vP0}:{vP0+1}], v{vPO}, s[{sWS}:{sWS+3}], 0 offen sc1")
    a.wait_all(lg=False)
    a(f"v_cmp_ne_u64 vcc, v[{vP0}:{vP0+1}], v[{vNO}:{vNO+1}]\ns_cbranch_vccz {Dn}\ns_sub_u32 s{sCNT}, s{sCNT}, 1\ns_cbranch_scc1 {Dn}\ns_sleep {sleep}\ns_branch {L}")
    a.label(Dn)

def publish(sflag, barrier=True):
    L = newlab("pub")
    if barrier:
        a.wait_all()
        a("s_barrier")
    a(f"s_cmp_lg_u32 s{sW}, 0\ns_cbranch_scc1 {L}\ns_mov_b64 exec, 1")
    a(f"buffer_store_dwordx2 v[{vNO}:{vNO+1}], v{vZERO}, s[{sWS}:{sWS+3}], s{sflag} offen sc1")
    a("s_mov_b64 exec, -1")
    a.label(L)
    a.flag_pending = True

def xhalf_add(v, t1, t2):
    a(f"v_mov_b32 v{t1}, v{v}\nv_mov_b32 v{t2}, v{v}\nv_permlane32_swap_b32 v{t1}, v{t2}\nv_add_f32 v{v}, v{t1}, v{t2}")

def ln_stats(vsum, vsq, t):
    a(f"v_mul_f32 v{vsum}, {hx(f2u(1.0/D))}, v{vsum}\nv_mul_f32 v{vsq}, {hx(f2u(1.0/D))}, v{vsq}")
    a(f"v_fma_f32 v{vsq}, -v{vsum}, v{vsum}, v{vsq}\nv_max_f32 v{vsq}, 0, v{vsq}")

def scale16(acc):
    for i in range(0, 16, 2):
        a(f"v_pk_mul_f32 v[{acc+i}:{acc+i+1}], v[{acc+i}:{acc+i+1}], v[{vA}:{vA+1}] op_sel_hi:[1,0]")
def shift16(acc, cs):
    for i in range(0, 16, 2):
        a(f"v_pk_fma_f32 v[{acc+i}:{acc+i+1}], v[{cs+i}:{cs+i+1}], v[{vB}:{vB+1}], v[{acc+i}:{acc+i+1}] op_sel_hi:[1,0,1]")

def gelu_consts(vC, va):
    a(f"v_mul_f32 v{vC}, {hx(f2u(GA))}, v{va}\nv_mul_f32 v{vC+2}, v{va}, v{va}\nv_rcp_f32 v{vC+4}, v{va}\nv_mul_f32 v{vC+2}, v{vC+2}, v{va}\nv_mul_f32 v{vC+2}, {hx(f2u(GB))}, v{vC+2}")

def gelu16(y, t, vC, hook=lambda: None):
    for i in range(0, 16, 2):
        a(f"v_pk_mul_f32 v[{t+i}:{t+i+1}], v[{y+i}:{y+i+1}], v[{y+i}:{y+i+1}]")
    for i in range(0, 16, 2):
        a(f"v_pk_fma_f32 v[{t+i}:{t+i+1}], v[{t+i}:{t+i+1}], v[{vC+2}:{vC+3}], v[{vC}:{vC+1}] op_sel_hi:[1,0,0]")
    hook()
    for i in range(0, 16, 2):
        a(f"v_pk_mul_f32 v[{t+i}:{t+i+1}], v[{t+i}:{t+i+1}], v[{y+i}:{y+i+1}]")
    for i in range(16):
        a(f"v_exp_f32 v{t+i}, v{t+i}")
        if i == 7: hook()
    for i in range(0, 16, 2):
        a(f"v_pk_fma_f32 v[{t+i}:{t+i+1}], v[{t+i}:{t+i+1}], v[{vC+4}:{vC+5}], v[{vC+4}:{vC+5}] op_sel_hi:[1,0,0]")
    hook()
    for i in range(16):
        a(f"v_rcp_f32 v{t+i}, v{t+i}")
        if i == 9: hook()
    for i in range(0, 16, 2):
        a(f"v_pk_mul_f32 v[{y+i}:{y+i+1}], v[{y+i}:{y+i+1}], v[{t+i}:{t+i+1}]")
    hook()

class Deferred:
    def __init__(self): self.groups = []
    def __enter__(self):
        self.orig = Asm.__call__; d = self
        def cap(asm, text):
            n = len(asm.ins); d.orig(asm, text); d.groups.append(asm.ins[n:]); del asm.ins[n:]
        Asm.__call__ = cap; return self
    def __exit__(self, *e): Asm.__call__ = self.orig
    def drip(self, ninstr):
        while self.groups and ninstr > 0:
            g = self.groups.pop(0); a.ins.extend(g); ninstr -= len(g)
    def flush(self): self.drip(1 << 30)

def cvt16(pk, y):
    for i in range(8): a(f"v_cvt_pk_bf16_f32 v{pk+i}, v{y+2*i}, v{y+2*i+1}")

PAD = [0]
def mfma(d, A, B, first=False):
    if PAD[0] > 0: a(f"s_nop {PAD[0]-1}")
    elif PAD[0] < 0:
        n = 0
        for i in reversed(a.ins):
            if i.kind == "mfma": break
            if not i.is_label: n += i.states * (OPT["dsw"] if i.kind in ("ds", "vmem", "dma") else 1)
            if n >= -PAD[0]: break
        if n < -PAD[0]: a(f"s_nop {-PAD[0]-n-1}")
    c = "0" if first else f"v[{d}:{d+15}]"
    a(f"v_mfma_f32_32x32x16_bf16 v[{d}:{d+15}], v[{A}:{A+3}], v[{B}:{B+3}], {c}")

def interleave(main, fill):
    n = len(main); k = 0
    for i, m in enumerate(main):
        m()
        upto = (len(fill) * (i + 1) + n - 1) // n
        while k < upto: fill[k](); k += 1

def rot7(dst, rot, n=7):
    for c in range(n):
        a(f"s_add_u32 s{dst+c}, s{rot}, {c}\ns_sub_u32 s{sT5}, s{dst+c}, 7\ns_cselect_b32 s{dst+c}, s{dst+c}, s{sT5}")


def prologue():
    a("s_cmp_ge_u32 s2, 512\ns_cbranch_scc1 L_end")
    a("s_load_dwordx16 s[4:19], s[0:1], 0\ns_load_dwordx4 s[20:23], s[0:1], 64\ns_load_dwordx2 s[24:25], s[0:1], 80")
    a(f"s_memrealtime s[{sTAG}:{sTAG+1}]")
    a(f"v_lshrrev_b32 v8, 6, v0\nv_and_b32 v{vLANE}, 63, v0\nv_readfirstlane_b32 s{sW}, v8")
    a(f"v_and_b32 v{vT_}, 31, v0\nv_bfe_u32 v{vHH}, v0, 5, 1\nv_mov_b32 v{vZERO}, 0\nv_lshlrev_b32 v{vL16}, 4, v{vLANE}")
    a(f"s_mov_b32 s{sHI}, 0\ns_mov_b32 s{sHI+1}, -1\ns_mov_b32 s{sONES}, 0x3f803f80")
    a(f"s_and_b32 s{sXCD}, s2, 7\ns_bfe_u32 s{sLOC}, s2, {(5 << 16) | 3}")
    stamp("entry", first=True)
    a(f"s_or_b32 s{sT4}, s2, s{sW}\ns_cmp_lg_u32 s{sT4}, 0\ns_cbranch_scc1 L_notag\ns_waitcnt lgkmcnt(0)")
    srd(sDBG, 22, 256)
    a(f"s_or_b32 s{sTAG}, s{sTAG}, 1\nv_mov_b32 v{vNO}, s{sTAG}\nv_mov_b32 v{vNO+1}, s{sTAG+1}\ns_mov_b64 exec, 1")
    a(f"buffer_store_dwordx2 v[{vNO}:{vNO+1}], v{vZERO}, s[{sDBG}:{sDBG+3}], 0 offen sc1\ns_mov_b64 exec, -1")
    a.label("L_notag")
    a("s_cmp_ge_u32 s2, 256\n" + ("s_cbranch_scc0" if OPT["swap"] else "s_cbranch_scc1") + " L_roleB")

def make_sel(dst, t):
    a(f"v_bfe_u32 v{t}, v{vLANE}, 2, 1\nv_bfe_u32 v{t+1}, v{vLANE}, 4, 1\nv_cmp_eq_u32 vcc, v{t}, v{t+1}\nv_mov_b32 v{t}, s{sONES}\ns_nop 0\n"
      + "\n".join(f"v_cndmask_b32 v{dst+i}, 0, v{t}, vcc" for i in range(4)))

def mfma_sum(d, sel, B, first):
    c = "0" if first else f"v[{d}:{d+3}]"
    a(f"v_mfma_f32_16x16x32_bf16 v[{d}:{d+3}], v[{sel}:{sel+3}], v[{B}:{B+3}], {c}")

def check_record(REC, voff, soff, loaded=True):
    L = newlab("rec"); Dn = newlab("recd"); C = newlab("recc")
    a(f"s_mov_b32 s{sCNT}, {OPT['spin']}")
    if loaded: a(f"s_branch {C}")
    a.label(L)
    a(f"buffer_load_dwordx4 v[{REC}:{REC+3}], v{voff}, s[{sWS}:{sWS+3}], s{soff} offen sc1\ns_waitcnt vmcnt(0)")
    a.label(C)
    a(f"v_cmp_ne_u32 vcc, v{REC+1}, v{vNO}\nv_cmp_ne_u32 s[{sT2}:{sT3}], v{REC+3}, v{vNO}\ns_or_b64 vcc, vcc, s[{sT2}:{sT3}]")
    a(f"v_cmp_eq_u32 s[{sT2}:{sT3}], 0, v{vNO}\ns_or_b64 vcc, vcc, s[{sT2}:{sT3}]\ns_cbranch_vccz {Dn}")
    a(f"s_sub_u32 s{sCNT}, s{sCNT}, 1\ns_cbranch_scc1 {Dn}\ns_sleep 1\ns_branch {L}")
    a.label(Dn)
    if not loaded: a.vmq = []

def addr_xdma(dst, nq, t):
    for q in range(nq):
        a(f"v_lshrrev_b32 v{t}, 3, v{vLANE}\nv_add_u32 v{t}, {8*q}, v{t}")
        a(f"v_bfe_u32 v{t+1}, v{t}, 1, 3\nv_and_b32 v{t+2}, 7, v{vLANE}\nv_xor_b32 v{t+1}, v{t+1}, v{t+2}")
        a(f"v_mul_u32_u24 v{t}, 896, v{t}\nv_lshl_add_u32 v{t}, v{t+1}, 4, v{t}\nv_subrev_u32 v{dst+q}, {1024*q}, v{t}")

def addr_wdma128(dst, t):
    a(f"v_lshrrev_b32 v{t}, 3, v{vLANE}\nv_bfe_u32 v{t+1}, v{vLANE}, 4, 1\nv_lshlrev_b32 v{t+1}, 2, v{t+1}")
    a(f"v_and_b32 v{t+2}, 7, v{vLANE}\nv_xor_b32 v{t+1}, v{t+1}, v{t+2}")
    a(f"v_mul_u32_u24 v{t}, 896, v{t}\nv_lshl_add_u32 v{dst}, v{t+1}, 4, v{t}\nv_add_u32 v{dst+1}, {8*896-1024}, v{dst}")

def addr_wdma256(dst, sstride, t, mask=False):
    a(f"v_lshrrev_b32 v{t}, 4, v{vLANE}\nv_lshlrev_b32 v{t+1}, 2, v{t}\nv_sub_u32 v{t+1}, v{vLANE}, v{t+1}\nv_and_b32 v{t+1}, 15, v{t+1}")
    a(f"v_mul_u32_u24 v{t}, s{sstride}, v{t}\nv_lshl_add_u32 v{dst}, v{t+1}, 4, v{t}")
    if mask: a(f"v_mov_b32 v{t}, 0x7fff0000\nv_cmp_gt_u32 vcc, 14, v{t+1}\nv_cndmask_b32 v{dst}, v{t}, v{dst}, vcc")
    a(f"s_lshl_b32 s{sT5}, s{sstride}, 2\ns_sub_u32 s{sT5}, s{sT5}, 1024")
    for q in range(1, 4): a(f"v_add_u32 v{dst+q}, s{sT5}, v{dst+q-1}")

def addr_xrd(dst, sbase, t):
    a(f"v_bfe_u32 v{t}, v{vT_}, 1, 3\nv_xor_b32 v{t}, v{t}, v{vHH}\nv_lshlrev_b32 v{t}, 4, v{t}\nv_lshl_add_u32 v{t}, v{vT_}, 7, v{t}")
    for ks in range(4):
        a(f"v_xor_b32 v{dst+ks}, {32*ks}, v{t}\nv_add_u32 v{dst+ks}, s{sbase}, v{dst+ks}")

def lane_rcg(t):
    a(f"v_bfe_u32 v{t}, v{vLANE}, 2, 2\nv_and_b32 v{t+1}, 3, v{vLANE}\nv_lshlrev_b32 v{t+1}, 3, v{t+1}")
    a(f"v_bfe_u32 v{t+2}, v{vLANE}, 4, 1\nv_lshl_add_u32 v{t+1}, v{t+2}, 5, v{t+1}")

def addr_wrd256(dst, cs, t):
    lane_rcg(t)
    a(f"v_lshl_add_u32 v{t+1}, v{t}, 6, v{t+1}")
    a(f"v_lshl_add_u32 v{t}, v{vHH}, 3, v{t}\nv_lshlrev_b32 v{t}, 8, v{t}")
    for u in range(4):
        a(f"s_add_u32 s{sT0}, s{sW}, {u}\ns_and_b32 s{sT0}, s{sT0}, 3\ns_mul_i32 s{sT0}, s{sT0}, {cs}")
        a(f"v_add_u32 v{dst+u}, s{sT0}, v{t+1}\nv_and_b32 v{dst+u}, 255, v{dst+u}\nv_add_u32 v{dst+u}, v{dst+u}, v{t}")

def addr_wrd128(dst, hhmul, scol, sbase, t):
    lane_rcg(t)
    a(f"v_lshrrev_b32 v{t+2}, 1, v{t}\nv_xor_b32 v{t+2}, s{scol}, v{t+2}\nv_lshl_add_u32 v{t+1}, v{t+2}, 6, v{t+1}")
    a(f"v_mad_u32_u24 v{t}, v{vHH}, {hhmul}, v{t}\nv_lshl_add_u32 v{dst}, v{t}, 7, v{t+1}")
    if sbase is not None: a(f"v_add_u32 v{dst}, s{sbase}, v{dst}")

def set_m0(expr_sgpr, add):
    a(f"s_add_u32 m0, s{expr_sgpr}, {add}" if add else f"s_mov_b32 m0, s{expr_sgpr}")


def panel_mainloop(name, ACC, WF, vWrd, nslot, xfrag, issue_w, wtok, hooks, SEL, CS4, defer=None, stream=()):
    rd = {}
    hi = [False]
    pre = set(range(nslot)); stream = list(stream)
    def wreads(s):
        c, ks = divmod(s, 4); slot = c % nslot
        base = slot * 16384 + ks * 4096
        if slot == 4 and not hi[0]:
            for u in range(4): a(f"v_add_u32 v{vWrd+u}, 0x10000, v{vWrd+u}")
            hi[0] = True
        if slot != 4 and hi[0]:
            for u in range(4): a(f"v_subrev_u32 v{vWrd+u}, 0x10000, v{vWrd+u}")
            hi[0] = False
        if slot == 4: base -= 65536
        toks = []; rd[s] = toks; th = []
        for u in range(2 if OPT["xp"] & 8 else 4):
            for jj in range(2):
                r = WF + (s & 1) * 16 + u * 4 + jj * 2
                th.append(lambda r=r, u=u, jj=jj: toks.append(a.lg(f"ds_read_b64_tr_b16 v[{r}:{r+1}], v{vWrd+u} offset:{base + jj*1024}")))
        return th
    hooks["before_barrier"](0)
    a.wait(vm=wtok[0]); a("s_barrier")
    stamp(name + "_c0")
    for t in hooks["after_barrier"](0) + wreads(0): t()
    for s in range(28):
        c, ks = divmod(s, 4)
        a.wait(lg=rd[s] + hooks["lg_need"](s), vm=hooks["vm_need"](s))
        reads = []; late = []
        if ks == 3 and c < 6:
            hooks["before_barrier"](c + 1)
            a.wait(vm=wtok[c + 1]); a("s_barrier")
            if c in (1, 3, 5): stamp(name + f"_c{c+1}")
            reads += hooks["after_barrier"](c + 1)
        if s < 27: reads += wreads(s + 1)
        for cc, qs in ((c + nslot, (0, 1)) if ks == 3 else (c - 1 + nslot, (2, 3)) if ks == 0 and c > 0 else (99, ()),):
            if cc <= 6 and cc not in pre:
                for q in qs: late.append(lambda cc=cc, q=q: wtok.setdefault(cc, []).extend(issue_w(cc, (q,))))
        for k in range(2):
            if stream: late.append(stream.pop(0))
        late += hooks["kstep"](s)
        xf = xfrag(s); w = WF + (s & 1) * 16
        h = (len(reads) + 1) // 2
        mfma(ACC, w, xf, first=(s == 0))
        for t in reads[:h]: t()
        mfma(ACC + 16, w + 4, xf, first=(s == 0))
        for t in reads[h:]: t()
        h = (len(late) + 1) // 2
        mfma(ACC + 32, w + 8, xf, first=(s == 0))
        for t in late[:h]: t()
        if defer: defer.drip(3)
        mfma(ACC + 48, w + 12, xf, first=(s == 0))
        for t in late[h:]: t()
        if defer: defer.drip(3)
        if SEL is not None and not (OPT["xp"] & 4 and s > 0): mfma_sum(CS4, SEL, w, s == 0)
    if defer: defer.flush()

def addr_cs(vCW, vCA, csbase):
    a(f"s_lshl_b32 s{sT0}, s{sW}, 7\ns_add_u32 s{sT0}, s{sT0}, {csbase}\nv_lshl_add_u32 v{vCW}, v{vT_}, 2, s{sT0}")
    for u in range(4):
        a(f"s_add_u32 s{sT0}, s{sW}, {u}\ns_and_b32 s{sT0}, s{sT0}, 3\ns_lshl_b32 s{sT0}, s{sT0}, 7\ns_add_u32 s{sT0}, s{sT0}, {csbase}\nv_lshl_add_u32 v{vCA+u}, v{vHH}, 4, s{sT0}")

def read_cs(dst, vaddr):
    return [a.lg(f"ds_read_b128 v[{dst+4*i}:{dst+4*i+3}], v{vaddr} offset:{32*i}") for i in range(4)]

sTAG = 98
def stage_A1():
    a.comment("==== A1: 128 rows x 112 columns of LN(x) @ [wq | wk | wv | w1]")
    if OPT["prio_a1"]: a(f"s_setprio {OPT['prio_a1']}")
    ACC, XF, WF = 16, 80, 112
    vWd, vXd, vXr, vWr = 144, 148, 152, 156
    SEL, CS4, REC, vCA, vVw, vVr, vPA, vPB, vSt, vCW, vM0, vM1, vRo = 160, 164, 168, 172, 176, 180, 182, 183, 184, 185, 186, 187, 188
    T = 190
    GT, PK = 200, 216
    sRB, sCG, sROT = sA0, sA0 + 1, sA0 + 2
    sKC = sA0 + 3
    sWO_ = sA0 + 10
    sM0W, sM0X, sTY, sHQ, sSTR, sCST = sA0 + 17, sA0 + 18, sA0 + 19, sA0 + 20, sA0 + 21, sA0 + 22
    sD0, sD1, sFL, sRO, sSC, sGO, sG = 4, 8, 12, 13, 14, 15, 16
    a(f"s_lshr_b32 s{sT0}, s{sLOC}, 3\ns_lshr_b32 s{sT2}, s{sXCD}, 1\ns_lshl_b32 s{sT2}, s{sT2}, 2\ns_add_u32 s{sRB}, s{sT2}, s{sT0}")
    a(f"s_and_b32 s{sT2}, s{sXCD}, 1\ns_lshl_b32 s{sT2}, s{sT2}, 3\ns_and_b32 s{sT1}, s{sLOC}, 7\ns_add_u32 s{sCG}, s{sT2}, s{sT1}")
    a(f"s_lshr_b32 s{sTY}, s{sCG}, 2\ns_and_b32 s{sHQ}, s{sCG}, 3")
    a(f"s_cmp_eq_u32 s{sTY}, 3\ns_movk_i32 s{sSTR}, 2688\ns_cselect_b32 s{sSTR}, 896, s{sSTR}\ns_cselect_b32 s{sCST}, 64, 56\ns_cselect_b32 s{sT3}, s{sHQ}, s{sCG}")
    a(f"s_mul_i32 s{sT0}, s{sLOC}, 37\ns_lshr_b32 s{sT0}, s{sT0}, 8\ns_mul_i32 s{sT0}, s{sT0}, 7\ns_sub_u32 s{sROT}, s{sLOC}, s{sT0}")
    a(f"s_lshl_b32 s{sT0}, s{sRB}, 2\ns_add_u32 s{sT0}, s{sT0}, s{sW}\ns_mul_i32 s{sT0}, s{sT0}, {32*896}")
    a(f"s_lshl_b32 s{sT1}, s{sW}, 4\ns_mul_i32 s{sT1}, s{sT1}, s{sSTR}\ns_mul_i32 s{sT2}, s{sT3}, 224\ns_add_u32 s{sT1}, s{sT1}, s{sT2}")
    a(f"s_lshl_b32 s{sT2}, s{sSTR}, 6")
    def chunk_offsets(c):
        a(f"s_add_u32 s{sKC+c}, s{sROT}, {c}\ns_sub_u32 s{sT5}, s{sKC+c}, 7\ns_cselect_b32 s{sKC+c}, s{sKC+c}, s{sT5}")
        a(f"s_mul_i32 s{sWO_+c}, s{sKC+c}, s{sT2}\ns_add_u32 s{sWO_+c}, s{sWO_+c}, s{sT1}")
        a(f"s_lshl_b32 s{sKC+c}, s{sKC+c}, 7\ns_add_u32 s{sKC+c}, s{sKC+c}, s{sT0}")
    for c in range(2): chunk_offsets(c)
    a(f"s_lshl_b32 s{sM0W}, s{sW}, 12\ns_lshl_b32 s{sM0X}, s{sW}, 13\ns_add_u32 s{sM0X}, s{sM0X}, 49152")
    addr_xdma(vXd, 4, T); addr_wdma256(vWd, sSTR, T, mask=True)
    a("s_waitcnt lgkmcnt(0)")
    stamp("a1_karg")
    srd(sX, 4, S * D * 2)
    a(f"s_cmp_eq_u32 s{sTY}, 3\ns_cselect_b32 s{sWA}, s12, s6\ns_cselect_b32 s{sWA+1}, s13, s7\ns_mov_b32 s{sWA+2}, {D*3*D*2}\ns_cselect_b32 s{sWA+2}, {D*D*2}, s{sWA+2}\ns_mov_b32 s{sWA+3}, 0x20000")
    srd(sDBG, 22, 256)
    m0 = [None]
    def issue_x(c, qs=range(4)):
        if m0[0] != ("x", c): set_m0(sM0X, (c & 1) * 4096); m0[0] = ("x", c)
        if OPT["xp"] & 1 and c > 1: return []
        return [a.vm(f"buffer_load_dwordx4 v{vXd+q}, s[{sX}:{sX+3}], s{sKC+c} offen offset:{1024*q} lds") for q in qs]
    def issue_w(c, qs=range(4)):
        if m0[0] != ("w", c): set_m0(sM0W, (c % 3) * 16384); m0[0] = ("w", c)
        if OPT["xp"] & 2 and c > 2: return []
        return [a.vm(f"buffer_load_dwordx4 v{vWd+q}, s[{sWA}:{sWA+3}], s{sWO_+c} offen offset:{1024*q} lds") for q in qs]
    xt = {}; wt = {}
    xt[0] = issue_x(0); wt[0] = issue_w(0)
    for c in range(2, 7): chunk_offsets(c)
    addr_xrd(vXr, sM0X, T)
    if OPT["a1s"] < 2: xt[1] = issue_x(1)
    addr_wrd256(vWr, f"s{sCST}", T)
    make_sel(SEL, T)
    srd(sWS, 24, WS_SIZE)
    CSB = 16384
    with Deferred() as df:
        a(f"s_and_b32 s{sGO}, s2, 255\ns_lshl_b32 s{sGO}, s{sGO}, 6\ns_add_u32 s{sGO}, s{sGO}, {F_GO}")
        a(f"s_lshl_b32 s{sT0}, s{sRB}, 2\ns_add_u32 s{sT4}, s{sT0}, s{sW}\ns_lshl_b32 s{sRO}, s{sT4}, 9\ns_add_u32 s{sRO}, s{sRO}, {ST0}")
        a(f"v_lshlrev_b32 v{vRo}, 4, v{vT_}")
        addr_cs(vCW, vCA, CSB)
        a(f"s_lshl_b32 s{sT0}, s{sHQ}, 15\ns_lshl_b32 s{sT1}, s{sRB}, 9\ns_add_u32 s{sT1}, s{sT1}, s{sT0}")
        a(f"v_lshrrev_b32 v{T}, 2, v{vLANE}\nv_lshlrev_b32 v{T}, 13, v{T}\nv_and_b32 v{T+1}, 3, v{vLANE}\nv_lshl_add_u32 v{T}, v{T+1}, 7, v{T}\nv_add_u32 v{vM1}, s{sT1}, v{T}")
        lanes_below(vM1, 16, T)
        a(f"s_lshr_b32 s{sT1}, s{sRB}, 2\ns_lshl_b32 s{sT1}, s{sT1}, 7\ns_add_u32 s{sT0}, s{sT0}, s{sT1}\ns_and_b32 s{sT1}, s{sRB}, 3\ns_lshl_b32 s{sT2}, s{sTY}, 2\ns_add_u32 s{sT1}, s{sT1}, s{sT2}")
        a(f"s_sub_u32 s{sT1}, s{sT1}, 2\ns_lshl_b32 s{sT1}, s{sT1}, 3\ns_add_u32 s{sT0}, s{sT0}, s{sT1}\nv_lshl_add_u32 v{vM0}, v{vLANE}, 9, s{sT0}")
        a(f"s_cmp_eq_u32 s{sTY}, 0\ns_cselect_b64 vcc, -1, 0\nv_cndmask_b32 v{vM0}, v{vM0}, v{vM1}, vcc")
        lane_div(T, T + 1, vLANE, 14, T + 2)
        a(f"s_lshl_b32 s{sT0}, s{sRB}, 1\ns_sub_u32 s{sT0}, s{sT0}, 1\nv_add_u32 v{T+2}, s{sT0}, v{T}\nv_max_i32 v{T+2}, 0, v{T+2}\nv_min_i32 v{T+2}, 31, v{T+2}")
        a(f"v_mul_u32_u24 v{T+2}, 14, v{T+2}\nv_add_u32 v{T+2}, v{T+2}, v{T+1}\nv_lshlrev_b32 v{T+2}, 7, v{T+2}")
        a(f"v_add_u32 v{T}, 1, v{T}\nv_bfe_u32 v{T}, v{T}, 1, 1\nv_xor_b32 v{T}, 1, v{T}\nv_lshl_add_u32 v{T+2}, v{T}, 3, v{T+2}")
        a(f"s_lshr_b32 s{sT0}, s{sHQ}, 1\ns_lshl_b32 s{sT0}, s{sT0}, 6\ns_and_b32 s{sT1}, s{sHQ}, 1\ns_lshl_b32 s{sT1}, s{sT1}, 4\ns_add_u32 s{sT0}, s{sT0}, s{sT1}\ns_add_u32 s{sT0}, s{sT0}, {MB_H}\nv_add_u32 v{T+2}, s{sT0}, v{T+2}")
        lanes_below(T + 2, 56, T)
        a(f"s_cmp_eq_u32 s{sTY}, 3\ns_cselect_b64 vcc, -1, 0\nv_cndmask_b32 v{vM0}, v{vM0}, v{T+2}, vcc")
        a(f"s_cmp_eq_u32 s{sTY}, 1\ns_cselect_b32 s{sT0}, 8, {hx(OOB)}\nv_add_u32 v{vM1}, s{sT0}, v{vM1}")
        a(f"s_and_b32 s{sT0}, s2, 255\ns_lshl_b32 s{sT0}, s{sT0}, 6\ns_add_u32 s{sT0}, s{sT0}, {F_AP}\nv_mov_b32 v{T}, s{sT0}\nv_cmp_eq_u32 vcc, 16, v{vLANE}\ns_nop 1\nv_cndmask_b32 v{vM1}, v{vM1}, v{T}, vcc")
        a(f"s_lshl_b32 s{sT1}, s{sHQ}, 8\ns_add_u32 s{sT0}, s{sT4}, s{sT1}\ns_cmp_eq_u32 s{sTY}, 0\ns_cselect_b32 s{sSC}, 11, 12\ns_mov_b32 s{sT2}, {KV_ - 2048}\ns_cselect_b32 s{sT2}, {QB_}, s{sT2}")
        a(f"s_lshl_b32 s{sT0}, s{sT0}, s{sSC}\ns_lshl_b32 s{sT1}, s{sTY}, 11\ns_add_u32 s{sT0}, s{sT0}, s{sT1}\ns_add_u32 s{sT0}, s{sT0}, s{sT2}")
        a(f"s_lshl_b32 s{sT4}, s{sT4}, 9\ns_mul_i32 s{sT1}, s{sHQ}, {14*PL}\ns_add_u32 s{sT4}, s{sT4}, s{sT1}\ns_add_u32 s{sT4}, s{sT4}, {H_}")
        a(f"s_lshl_b32 s{sT1}, 64, s{sSC}\ns_movk_i32 s{sT2}, 1024\ns_movk_i32 s{sT3}, 512")
        a(f"s_cmp_eq_u32 s{sTY}, 3\ns_cselect_b32 s{sT0}, s{sT4}, s{sT0}\ns_cselect_b32 s{sT1}, {4*PL}, s{sT1}\ns_cselect_b32 s{sT2}, {2*PL}, s{sT2}\ns_cselect_b32 s{sT3}, {PL}, s{sT3}")
        a(f"v_mul_u32_u24 v{vSt}, s{sT3}, v{vHH}\nv_lshl_add_u32 v{vSt}, v{vT_}, 4, v{vSt}")
        for u in range(4):
            a(f"s_add_u32 s{sT3}, s{sW}, {u}\ns_and_b32 s{sT3}, s{sT3}, 3\ns_mul_i32 s{sD0+u}, s{sT3}, s{sT1}\ns_add_u32 s{sD0+u}, s{sD0+u}, s{sT0}")
            a(f"s_add_u32 s{sD1+u}, s{sD0+u}, s{sT2}\ns_lshl_b32 s{sT4}, s{sTY}, 2\ns_or_b32 s{sT3}, s{sT3}, s{sT4}")
            a(f"s_cmp_eq_u32 s{sT3}, 15\ns_cselect_b32 s{sD1+u}, 0x7fff0000, s{sD1+u}")
        a(f"s_cmp_eq_u32 s{sTY}, 1\ns_cselect_b32 s{sT1}, 0x3f803f80, 0\ns_cselect_b32 s{sT2}, 0x3f80, 0")
        a(f"s_cmp_eq_u32 s{sTY}, 2\ns_cselect_b32 s{sT1}, 0x3f80, s{sT1}")
        a(f"v_mov_b32 v{vPA}, s{sT1}\nv_mov_b32 v{vPB}, s{sT2}")
        a(f"s_cmp_eq_u32 s{sTY}, 0\ns_cselect_b32 s{sSC}, {hx(f2u(QSCALE))}, 1.0")
        a(f"v_bfe_u32 v{T}, v{vT_}, 1, 3\nv_xor_b32 v{T}, v{T}, v{vHH}\nv_lshlrev_b32 v{T}, 3, v{T}\nv_lshl_add_u32 v{T}, v{vT_}, 6, v{T}")
        for i in range(4): a(f"v_xor_b32 v{vVw+i}, {16*i}, v{T}\nv_add_u32 v{vVw+i}, s{sM0X}, v{vVw+i}")
        lane_rcg(T)
        for jj in range(2):
            a(f"v_lshl_add_u32 v{T+2}, v{vHH}, 2, v{T}\nv_add_u32 v{T+2}, {8*jj}, v{T+2}")
            a(f"v_bfe_u32 v{T+3}, v{T+2}, 1, 3\nv_lshlrev_b32 v{T+3}, 3, v{T+3}\nv_xor_b32 v{T+3}, v{T+3}, v{T+1}")
            a(f"v_lshl_add_u32 v{vVr+jj}, v{T+2}, 6, v{T+3}\nv_add_u32 v{vVr+jj}, s{sM0X}, v{vVr+jj}")
    if not OPT["defer"]: df.drip(70 if OPT["a1s"] < 2 else 999)
    if OPT["a1s"] >= 2: xt[1] = issue_x(1)
    wt[1] = issue_w(1)
    if not OPT["defer"]: df.flush()
    st1 = []
    if OPT["a1s"]: st1 = [lambda q=q: wt.setdefault(2, []).extend(issue_w(2, (q,))) for q in range(4)]
    else: wt[2] = issue_w(2)
    stamp("a1_issued")
    xr = {}; rec = []
    def go():
        a.wait(vm=rec[0]); get_nonce(loaded=True)
        publish(sGO, barrier=False)
    def after_barrier(c):
        xr[c] = []
        return [lambda ks=ks: xr[c].append(a.lg(f"ds_read_b128 v[{XF+(c&1)*16+4*ks}:{XF+(c&1)*16+4*ks+3}], v{vXr+ks} offset:{(c&1)*4096}")) for ks in range(4)]
    def kstep(s):
        th = []
        c, ks = divmod(s, 4)
        if ks in (1, 2) and c + 2 <= 6:
            for q in (2 * ks - 2, 2 * ks - 1): th.append(lambda q=q: xt.setdefault(c + 2, []).extend(issue_x(c + 2, (q,))))
        if s == OPT["go"] - 5: th.append(lambda: rec.append(a.vm(f"buffer_load_dwordx2 v[{vNO}:{vNO+1}], v{vZERO}, s[{sDBG}:{sDBG+3}], 0 offen sc1")))
        if s == OPT["go"]: th.append(go)
        if s == 22: th.append(lambda: rec.append(a.vm(f"buffer_load_dwordx4 v[{REC}:{REC+3}], v{vRo}, s[{sWS}:{sWS+3}], s{sRO} offen sc1")))
        return th
    hooks = dict(before_barrier=lambda c: a.wait(vm=xt[c]), after_barrier=after_barrier,
                 lg_need=lambda s: xr[s // 4] if s % 4 == 0 else [], vm_need=lambda s: [], kstep=kstep)
    panel_mainloop("a1", ACC, WF, vWr, 3, lambda s: XF + ((s // 4) & 1) * 16 + 4 * (s % 4), issue_w, wt, hooks, SEL, CS4, df, stream=st1)
    stamp("a1_main")
    a.wait(vm=rec)
    check_record(REC, vRo, sRO)
    a.lg(f"ds_write_b32 v{vCW}, v{CS4}")
    a(f"v_mul_f32 v{T}, v{REC+2}, v{REC+2}\nv_mov_b32 v{T+1}, {hx(f2u(1.0 + EPS))}\nv_mov_b32 v{T+2}, {hx(f2u(-EPS))}\nv_fma_f32 v{T}, v{T}, v{T+2}, v{T+1}\nv_rsq_f32 v{T}, v{T}")
    a(f"s_cmp_eq_u32 s{sTY}, 3\ns_cselect_b64 vcc, -1, 0\nv_mov_b32 v{T+1}, s{sSC}\nv_cndmask_b32 v{T}, v{T+1}, v{T}, vcc")
    a(f"v_mul_f32 v{vA}, v{T}, v{REC+2}\nv_mul_f32 v{vB}, v{vA}, v{REC}\nv_sub_f32 v{vB}, 0, v{vB}")
    a.wait_all(vm=False); a("s_barrier")
    stamp("a1_csbar")
    CS = 80
    toks = [read_cs(CS + 16 * u, vCA + u) for u in range(3)]
    a(f"s_cmp_eq_u32 s{sTY}, 3\ns_cbranch_scc1 L_A1_nosc")
    for u in range(4): scale16(ACC + 16 * u)
    a.label("L_A1_nosc")
    a.wait(lg=toks[0])
    toks.append(read_cs(CS + 48, vCA + 3))
    def store(u, pk):
        a.vm(f"buffer_store_dwordx4 v[{pk}:{pk+3}], v{vSt}, s[{sWS}:{sWS+3}], s{sD0+u} offen sc1")
        a.vm(f"buffer_store_dwordx4 v[{pk+4}:{pk+7}], v{vSt}, s[{sWS}:{sWS+3}], s{sD1+u} offen sc1")
    def pads(pk): a(f"v_cndmask_b32 v{pk+6}, v{pk+6}, v{vPA}, s[{sHI}:{sHI+1}]\nv_cndmask_b32 v{pk+7}, v{pk+7}, v{vPB}, s[{sHI}:{sHI+1}]")
    lgq0 = list(a.lgq); vmq0 = list(a.vmq)
    a(f"s_cmp_eq_u32 s{sTY}, 2\ns_cbranch_scc1 L_A1_v\ns_cmp_eq_u32 s{sTY}, 3\ns_cbranch_scc1 L_A1_w1")
    for u in range(4):
        a.wait(lg=toks[u]); shift16(ACC + 16 * u, CS + 16 * u)
        cvt16(PK + 8 * u, ACC + 16 * u); pads(PK + 8 * u); store(u, PK + 8 * u)
    a("s_branch L_A1_pub")
    a.label("L_A1_v")
    a.lgq = list(lgq0); a.vmq = list(vmq0); tr = {}
    for u in range(4):
        pk = PK + 8 * u
        a.wait(lg=toks[u]); shift16(ACC + 16 * u, CS + 16 * u)
        cvt16(pk, ACC + 16 * u); pads(pk)
        if u == 0: a.wait(lg=toks[3])
        if u > 0: a.wait(lg=tr[u - 1]); store(u - 1, pk - 8)
        for i in range(4): a.lg(f"ds_write_b64 v{vVw+i}, v[{pk+2*i}:{pk+2*i+1}] offset:{2048*u}")
        tr[u] = [a.lg(f"ds_read_b64_tr_b16 v[{pk+4*m+2*jj}:{pk+4*m+2*jj+1}], v{vVr+jj} offset:{2048*u + 1024*m}") for m in range(2) for jj in range(2)]
    a.wait(lg=tr[3]); store(3, PK + 24)
    a("s_branch L_A1_pub")
    a.label("L_A1_w1")
    a.lgq = list(lgq0); a.vmq = list(vmq0)
    gelu_consts(T, vA)
    a(f"v_sub_f32 v{vB}, 0, v{REC}")
    for u in range(4):
        a.wait(lg=toks[u]); shift16(ACC + 16 * u, CS + 16 * u)
        gelu16(ACC + 16 * u, GT, T)
        cvt16(PK + 8 * u, ACC + 16 * u); store(u, PK + 8 * u)
    a.label("L_A1_pub")
    stamp("a1_epi")
    post([vM0, vM1])
    stamp("a1_pub")

def rowmax(dst, s_, first):
    if first: a(f"v_max3_f32 v{dst}, v{s_}, v{s_+1}, v{s_+2}\nv_max_f32 v{dst}, v{dst}, v{s_+3}")
    else: a(f"v_max3_f32 v{dst}, v{dst}, v{s_}, v{s_+1}\nv_max3_f32 v{dst}, v{dst}, v{s_+2}, v{s_+3}")
    for i in range(4, 16, 2): a(f"v_max3_f32 v{dst}, v{dst}, v{s_+i}, v{s_+i+1}")

def stage_A2():
    a.comment("==== A2: attention, 128 queries of one head; wave = 512 keys; slot x holds query tile w^x^3")
    NR = OPT["nr"]
    Q, O, SS, P = 16, 48, 112, 144
    KB = 160; VB = KB + 8 * NR
    T = VB + 8 * NR; MX = 12
    assert T + 16 <= 256
    sH, sQB, sQ0, sK, sV, sK0, sRETRY, sKT0, sOD, sFL, sKVB, sPUB = sA0, sA0+1, sA0+2, sA0+3, sA0+4, sA0+5, sA0+6, sA0+7, sA0+8, sA0+10, sA0+11, sA0+12
    vOo, vW, vR, vKV = 0, 8, 9, 10
    a(f"s_lshr_b32 s{sT0}, s{sLOC}, 4\ns_lshl_b32 s{sH}, s{sXCD}, 1\ns_add_u32 s{sH}, s{sH}, s{sT0}\ns_and_b32 s{sQB}, s{sLOC}, 15")
    sMB = 52
    a(f"s_lshl_b32 s{sT0}, s{sH}, 4\ns_add_u32 s{sT0}, s{sT0}, s{sQB}\ns_lshl_b32 s{sT0}, s{sT0}, 2\ns_add_u32 s{sT0}, s{sT0}, s{sW}\ns_lshl_b32 s{sMB}, s{sT0}, 7")
    a(f"s_lshl_b32 s{sK0}, s{sH}, 18\ns_add_u32 s{sK0}, s{sK0}, {KV_}\ns_lshl_b32 s{sT0}, s{sW}, 16\ns_add_u32 s{sT0}, s{sT0}, s{sK0}\ns_mov_b32 s{sKVB}, s{sT0}\ns_lshl_b32 s{sT0}, s{sQB}, 14\ns_add_u32 s{sK0}, s{sK0}, s{sT0}")
    a(f"s_lshl_b32 s{sQ0}, s{sH}, 17\ns_lshl_b32 s{sT0}, s{sQB}, 13\ns_add_u32 s{sQ0}, s{sQ0}, s{sT0}\ns_add_u32 s{sQ0}, s{sQ0}, {QB_}")
    for kt in range(16): a(f"s_add_u32 s{8+kt}, s{sQB}, {kt}\ns_and_b32 s{8+kt}, s{8+kt}, 15\ns_lshl_b32 s{8+kt}, s{8+kt}, 12")
    a(f"s_mov_b32 s{sRETRY}, 0\ns_mov_b32 s{sPUB}, 0")
    for x in range(4): a(f"s_xor_b32 s{4+x}, s{sW}, {x^3}\ns_lshl_b32 s{4+x}, s{4+x}, 11\ns_add_u32 s{4+x}, s{4+x}, s{sQ0}")
    a(f"v_mul_u32_u24 v{vOo}, {PL}, v{vHH}\nv_lshl_add_u32 v{vOo}, v{vT_}, 4, v{vOo}")
    a(f"s_lshl_b32 s{sT0}, s{sQB}, 2\ns_add_u32 s{sT0}, s{sT0}, s{sW}\ns_lshl_b32 s{sT0}, s{sT0}, 9")
    a(f"s_mul_i32 s{sT1}, s{sH}, {4*PL}\ns_add_u32 s{sT0}, s{sT0}, s{sT1}\ns_add_u32 s{sOD}, s{sT0}, {O_}\ns_add_u32 s{sOD+1}, s{sOD}, {2*PL}")
    a(f"s_lshl_b32 s{sT0}, s{sQB}, 1\ns_lshr_b32 s{sT1}, s{sW}, 1\ns_add_u32 s{sT0}, s{sT0}, s{sT1}\ns_mul_i32 s{sT0}, s{sT0}, {7*256}\ns_lshr_b32 s{sT1}, s{sH}, 2\ns_lshl_b32 s{sT1}, s{sT1}, 6\ns_add_u32 s{sT0}, s{sT0}, s{sT1}")
    a(f"s_and_b32 s{sT1}, s{sH}, 3\ns_lshl_b32 s{sT1}, s{sT1}, 1\ns_and_b32 s{sT2}, s{sW}, 1\ns_add_u32 s{sT1}, s{sT1}, s{sT2}\ns_lshl_b32 s{sT1}, s{sT1}, 3\ns_add_u32 s{sT0}, s{sT0}, s{sT1}\ns_add_u32 s{sFL}, s{sT0}, {MB_O}")
    def ld(dst, soff, imm, vo=vL16): return a.vm(f"buffer_load_dwordx4 v[{dst}:{dst+3}], v{vo}, s[{sWS}:{sWS+3}], s{soff} offen offset:{imm} sc1")
    spoll([(sF, 16, sMB, MB_A, 8), (48, 4, sMB, MB_A + 64, 2)])
    stamp("a2_poll")
    k0 = [ld(T, sK0, 0), ld(T + 4, sK0, 1024)]
    qt = [[ld(Q + 8 * x, 4 + x, 0), ld(Q + 8 * x + 4, 4 + x, 1024)] for x in range(4)]
    ND = OPT["nd"]
    BL = [(kt, x) for kt in range(16 - ND) for x in range(4)] + [(kt, x) for kt in range(16 - ND, 16) for x in range(3)] + [(kt, 3) for kt in range(16 - ND, 16)]
    first = {kt: min(n for n, b in enumerate(BL) if b[0] == kt) for kt in range(16)}
    last = {kt: max(n for n, b in enumerate(BL) if b[0] == kt) for kt in range(16)}
    lastx = {x: max(n for n, b in enumerate(BL) if b[1] == x) for x in range(4)}
    order = []
    for kt in range(16):
        for kind in "KV":
            for half in range(2):
                need = first[kt] - 2 if kind == "K" else first[kt] + 1
                free = -99 if kt < NR else (last[kt - NR] if kind == "K" else last[kt - NR] + 2)
                order.append((need, kind, kt, half, free))
    order.sort()
    tok = {}
    sKT = 8
    def issue(e):
        need, kind, kt, half, free = e
        if kind == "K": t = ld(KB + 8 * (kt % NR) + 4 * half, sKT + kt, 1024 * half, vKV)
        else: t = ld(VB + 8 * (kt % NR) + 4 * half, sKT + kt, 2048 + 1024 * half, vKV)
        tok.setdefault((kind, kt), []).append(t)
    def bump(e): pass
    NPRE = 6
    def first_loads():
        for e in order[:NPRE]: issue(e); bump(e)
    def kv_start():
        a(f"v_add_u32 v{vKV}, s{sKVB}, v{vL16}")
        first_loads()
        a(f"s_mul_i32 s{sT0}, s{sW}, 12288\nv_add_u32 v{vW}, s{sT0}, v{vL16}")
    kv_start()
    pend = order[NPRE:]
    for x in range(4):
        a.wait(vm=k0 + qt[x])
        s_ = SS + 16 * (x & 1)
        mfma(s_, T, Q + 8 * x, first=True); mfma(s_, T + 4, Q + 8 * x + 4)
        if x > 0: rowmax(MX + x - 1, SS + 16 * ((x - 1) & 1), True)
    rowmax(MX + 3, SS + 16, True)
    stamp("a2_max")
    a.label("L_A2_setmax")
    for x in range(4):
        a(f"v_mov_b32 v{T+x}, v{MX+x}")
    for x in range(4):
        a(f"v_permlane32_swap_b32 v{T+x}, v{MX+x}")
    for x in range(4):
        a(f"v_max_f32 v{MX+x}, v{T+x}, v{MX+x}")
    for x in range(4):
        m = MX + x; t = T + 4 * x
        a(f"v_cvt_pk_bf16_f32 v{t}, -v{m}, -v{m}\nv_and_b32 v{t+1}, 0xffff0000, v{t}\nv_sub_f32 v{t+2}, -v{m}, v{t+1}")
        a(f"v_cvt_pk_bf16_f32 v{t+3}, v{t+2}, v{t+2}\nv_and_b32 v{t+3}, 0xffff0000, v{t+3}\nv_sub_f32 v{t+2}, v{t+2}, v{t+3}")
        a(f"v_and_b32 v{t}, 0xffff, v{t}\nv_or_b32 v{t}, v{t}, v{t+3}\nv_cvt_pk_bf16_f32 v{t+2}, v{t+2}, 0")
        a(f"v_cndmask_b32 v{Q+8*x+6}, v{Q+8*x+6}, v{t}, s[{sHI}:{sHI+1}]\nv_cndmask_b32 v{Q+8*x+7}, v{Q+8*x+7}, v{t+2}, s[{sHI}:{sHI+1}]")
        if x == 0:
            a.wait(vm=tok[("K", 0)])
            mfma(SS, KB, Q, first=True); mfma(SS, KB + 4, Q + 4)
    def QK(n, half):
        kt, x = BL[n]
        mfma(SS + 16 * (n & 1), KB + 8 * (kt % NR) + 4 * half, Q + 8 * x + 4 * half, first=(half == 0))
    def PV(n, half):
        kt, x = BL[n]
        mfma(O + 16 * x, VB + 8 * (kt % NR) + 4 * half, P + 8 * (n & 1) + 4 * half, first=(kt == 0 and half == 0))
    def owrite(x, i): a.lg(f"ds_write_b128 v{vW}, v[{O+16*x+4*i}:{O+16*x+4*i+3}] offset:{x*4096 + 1024*i}")
    tk = []
    def oread(x): tk.append([a.lg(f"ds_read_b128 v[{O+16*x+4*i}:{O+16*x+4*i+3}], v{T+8+x} offset:{x*4096 + 1024*i}") for i in range(4)])
    for x in range(3): a(f"s_xor_b32 s{sT0}, s{sW}, {x^3}\ns_mul_i32 s{sT0}, s{sT0}, 12288\nv_add_u32 v{T+8+x}, s{sT0}, v{vL16}")
    a(f"v_mov_b32 v{T+2}, 49152\nv_mov_b32 v{T+3}, 0")
    a.lg(f"ds_write_b32 v{T+2}, v{T+3}")
    stamp("a2_start")
    if OPT["prio_a1"]: a("s_setprio 0")
    a.hot = True
    for n in range(64):
        if n in (16, 32, 48): stamp(f"a2_b{n}")
        kt, x = BL[n]
        s_ = SS + 16 * (n & 1); p_ = P + 8 * (n & 1)
        e = lambda i: a(f"v_exp_f32 v{s_+i}, v{s_+i}")
        c = lambda i: a(f"v_cvt_pk_bf16_f32 v{p_+i}, v{s_+2*i}, v{s_+2*i+1}")
        sh = [[], [], [], []]
        pre = [[], [], [], []]
        ap = OPT["aprio"] if n < OPT["alate"] else OPT["aprio2"]
        if n == OPT["alate"] and ap == 5: pre[0].append(lambda: a("s_setprio 3"))
        for g in (0, 2):
            if pend and pend[0][4] <= n:
                ent = pend.pop(0)
                assert ent[0] > n + 1, (ent, n)
                hi = ap == 1 or (ap in (2, 3) and g == 2)
                if hi: pre[g].append(lambda: a("s_setprio 3"))
                sh[g].append(lambda ent=ent: issue(ent))
                if hi: sh[g].append(lambda: a("s_setprio 0"))
                sh[g + 1].append(lambda ent=ent: bump(ent))
        if ap == 2: sh[3].append(lambda: a("s_setprio 3")); sh[1].append(lambda: a("s_setprio 0"))
        if ap == 3: sh[3].append(lambda: a("s_setprio 3")); sh[0].append(lambda: a("s_setprio 0"))
        if ap == 4: sh[3].append(lambda: a("s_setprio 3")); sh[2].append(lambda: a("s_setprio 0"))
        for k2 in range(1, 16):
            if first[k2] - 2 == n: sh[3].append(lambda k2=k2: a.wait(vm=tok[("K", k2)]))
        for k2 in range(16):
            if first[k2] + 1 == n: sh[1].append(lambda k2=k2: a.wait(vm=tok[("V", k2)]))
        for x2 in range(3):
            if n == lastx[x2] + 2:
                for g in range(4): sh[min(g + 1, 3)].append(lambda g=g, x2=x2: owrite(x2, g))
        if ND >= 4 and n == lastx[2] + 3:
            sh[1].append(lambda: (a.wait_all(vm=False), a("s_barrier")))
            sh[2].append(lambda: oread(0)); sh[3].append(lambda: oread(1))
        if ND >= 4 and n == lastx[2] + 4: sh[0].append(lambda: oread(2))
        mm = [(lambda: QK(n + 1, 0)) if n < 63 else None, (lambda: QK(n + 1, 1)) if n < 63 else None,
              (lambda: PV(n - 1, 0)) if n > 0 else None, (lambda: PV(n - 1, 1)) if n > 0 else None]
        seq = [[("e", 0), ("e", 1), ("e", 2), ("e", 3), ("c", 0)],
               [("e", 4), ("e", 5), ("c", 1), ("e", 6), ("e", 7), ("c", 2)],
               [("e", 8), ("e", 9), ("c", 3), ("e", 10), ("e", 11), ("c", 4)],
               [("e", 12), ("e", 13), ("c", 5), ("e", 14), ("e", 15), ("c", 6), ("c", 7)]]
        for g in range(4):
            for t in pre[g]: t()
            if mm[g]: mm[g]()
            for t in sh[g]: t()
            for k, i in seq[g]: (e if k == "e" else c)(i)
    assert not pend
    a.hot = False
    if OPT["prio_at"]: a(f"s_setprio {OPT['prio_at']}")
    PV(63, 0); PV(63, 1)
    stamp("a2_main")
    R = O + 48
    if ND < 4:
        for x2 in range(3):
            if lastx[x2] + 2 > 63:
                for i in range(4): owrite(x2, i)
        a.wait_all(vm=False); a("s_barrier")
        stamp("a2_cbar")
        for x in range(3): oread(x)
    a.wait(lg=tk[1])
    for i in range(0, 16, 2): a(f"v_pk_add_f32 v[{O+i}:{O+i+1}], v[{O+i}:{O+i+1}], v[{O+16+i}:{O+16+i+1}]")
    a.wait(lg=tk[2])
    for i in range(0, 16, 2): a(f"v_pk_add_f32 v[{O+i}:{O+i+1}], v[{O+i}:{O+i+1}], v[{O+32+i}:{O+32+i+1}]")
    for i in range(0, 16, 2): a(f"v_pk_add_f32 v[{R+i}:{R+i+1}], v[{R+i}:{R+i+1}], v[{O+i}:{O+i+1}]")
    a(f"v_mov_b32 v{T+4}, v{R+12}\nv_mov_b32 v{T+5}, v{R+12}\nv_permlane32_swap_b32 v{T+4}, v{T+5}\nv_rcp_f32 v{vA}, v{T+5}")
    scale16(R)
    cvt16(P, R)
    a(f"v_cndmask_b32 v{P+6}, v{P+6}, v{vZERO}, s[{sHI}:{sHI+1}]\nv_cndmask_b32 v{P+7}, v{P+7}, v{vZERO}, s[{sHI}:{sHI+1}]")
    a(f"s_cmp_lg_u32 s{sPUB}, 0\ns_cbranch_scc1 L_A2_done")
    a.vm(f"buffer_store_dwordx4 v[{P}:{P+3}], v{vOo}, s[{sWS}:{sWS+3}], s{sOD} offen sc1")
    a.vm(f"buffer_store_dwordx4 v[{P+4}:{P+7}], v{vOo}, s[{sWS}:{sWS+3}], s{sOD+1} offen sc1")
    a(f"v_pk_mul_f32 v[{T+6}:{T+7}], v[{R}:{R+1}], 0 op_sel_hi:[1,0]")
    for i in range(2, 16, 2): a(f"v_pk_fma_f32 v[{T+6}:{T+7}], v[{R+i}:{R+i+1}], 0, v[{T+6}:{T+7}] op_sel_hi:[1,0,1]")
    a(f"s_mov_b32 s{sT0}, {hx(f2u(2.0**120))}\nv_cmp_nge_f32 vcc, s{sT0}, v{T+5}\nv_cmp_u_f32 s[{sT2}:{sT3}], v{T+6}, v{T+7}\ns_or_b64 vcc, vcc, s[{sT2}:{sT3}]")
    a(f"s_cmp_lg_u32 s{sRETRY}, 0\ns_cbranch_scc1 L_A2_good\ns_cbranch_vccz L_A2_good")
    a(f"v_mov_b32 v{T+3}, 1\nds_write_b32 v{T+2}, v{T+3}\ns_branch L_A2_done")
    a.label("L_A2_good")
    stamp("a2_st")
    a(f"s_mov_b32 s{sPUB}, 1\nv_lshlrev_b32 v{T+6}, 8, v{vLANE}\ns_mov_b64 exec, 0x7f\ns_waitcnt vmcnt(0)")
    a(f"buffer_store_dwordx2 v[{vNO}:{vNO+1}], v{T+6}, s[{sWS}:{sWS+3}], s{sFL} offen sc1\ns_mov_b64 exec, -1")
    stamp("a2_pub")
    a.label("L_A2_done")
    a.wait_all(vm=False); a("s_barrier")
    a(f"ds_read_b32 v{T+3}, v{T+2}\ns_waitcnt lgkmcnt(0)\nv_readfirstlane_b32 s{sT0}, v{T+3}")
    a(f"s_andn2_b32 s{sT0}, s{sT0}, s{sRETRY}\ns_cmp_lg_u32 s{sT0}, 0\ns_cbranch_scc1 L_A2_fallback")
    stamp_flush()
    a("s_endpgm")
    a.label("L_A2_fallback")
    a(f"s_mov_b32 s{sRETRY}, 1\ns_barrier")
    for x in range(4):
        a(f"v_cndmask_b32 v{Q+8*x+6}, v{Q+8*x+6}, v{vZERO}, s[{sHI}:{sHI+1}]\nv_cndmask_b32 v{Q+8*x+7}, v{Q+8*x+7}, v{vZERO}, s[{sHI}:{sHI+1}]")
        a(f"v_mov_b32 v{MX+x}, 0xff800000")
    a(f"s_mov_b32 s{sK}, 0\ns_mov_b32 s{sT4}, 16")
    a.label("L_A2_fb_loop")
    ld(T, sK, 0, vKV); ld(T + 4, sK, 1024, vKV); a.wait_all()
    for x in range(4):
        mfma(SS, T, Q + 8 * x, first=True); mfma(SS, T + 4, Q + 8 * x + 4)
        rowmax(MX + x, SS, False)
        a("s_nop 7")
    a(f"s_add_u32 s{sK}, s{sK}, 4096\ns_sub_u32 s{sT4}, s{sT4}, 1\ns_cmp_lg_u32 s{sT4}, 0\ns_cbranch_scc1 L_A2_fb_loop")
    a(f"v_lshlrev_b32 v{T+8}, 2, v{vLANE}")
    for x in range(4):
        a(f"s_xor_b32 s{sT0}, s{sW}, {x^3}\ns_lshl_b32 s{sT0}, s{sT0}, 8\ns_lshl_b32 s{sT1}, s{sW}, 10\ns_add_u32 s{sT0}, s{sT0}, s{sT1}")
        a(f"v_add_u32 v{T+9}, s{sT0}, v{T+8}\nds_write_b32 v{T+9}, v{MX+x}")
    a("s_waitcnt lgkmcnt(0)\ns_barrier")
    for x in range(4):
        a(f"s_xor_b32 s{sT0}, s{sW}, {x^3}\ns_lshl_b32 s{sT0}, s{sT0}, 8\nv_add_u32 v{T+9}, s{sT0}, v{T+8}")
        for w2 in range(4): a(f"ds_read_b32 v{T+10+w2}, v{T+9} offset:{1024*w2}")
        a(f"s_waitcnt lgkmcnt(0)\nv_max3_f32 v{MX+x}, v{T+10}, v{T+11}, v{T+12}\nv_max_f32 v{MX+x}, v{MX+x}, v{T+13}")
    a("s_barrier")
    first_loads()
    a.wait_all()
    a("s_nop 7\ns_branch L_A2_setmax")

RES, vWD, vPLN, vGo1, vWr4, vMX, vMG = 232, 248, 250, 251, 252, 254, 255
vWd3, vWr3, vCA3, SEL3, CS43, vXo, vSo, vSH, vST, vCW3, TB = 194, 198, 202, 206, 210, 214, 215, 216, 220, 223, 224
sR64, sCT, sRW, sCW, sSO, sG2 = 75, 76, 77, 78, 79, 80
sRB3, sC3, sW3O, sM03, sK3 = 82, 83, 84, 91, 92
sG4, sW4o, sM04, sWOo, sOo, sX1D, sMB2, sMB3, sOUTD, sST1D = 4, 11, 18, 19, 20, 21, 22, 23, 24, 25
sGS = [80, 81, 99, 3]
NZ = OPT['nz']
CSB3 = 73728
B3 = {}; B4 = {}

def touch(srd_, soff, n):
    for i in range(n): a(f"s_buffer_load_dword s3, s[{srd_}:{srd_+3}], s{soff} offset:{128*i}")

def throttled(thunks, depth):
    toks = []
    for i, t in enumerate(thunks):
        toks += t()
        if len(toks) > depth: a.wait(vm=toks[:len(toks) - depth])
    return toks

def go_poll(st=True):
    if not OPT["go"]: return
    a(f"s_and_b32 s{sT4}, s2, 255\ns_lshl_b32 s{sT4}, s{sT4}, 6")
    spoll([(sT2, 2, sT4, F_GO, 1)])
    if st: stamp("b0_go")

def stage_B0():
    a.comment("==== B0: row statistics of x, prefetches, set-up")
    a.label("L_roleB")
    prev_stamp[0] = 0
    a.vmq = []; a.lgq = []
    T = TB; XR = 16
    a(f"s_lshl_b32 s{sT0}, s{sXCD}, 5\ns_add_u32 s{sT0}, s{sT0}, s{sLOC}\ns_lshl_b32 s{sT0}, s{sT0}, 2\ns_add_u32 s{sT0}, s{sT0}, s{sW}")
    a(f"s_mul_i32 s{sT1}, s{sT0}, {2*896}\ns_lshl_b32 s{sT4}, s{sT0}, 5\ns_add_u32 s{sT4}, s{sT4}, {ST0}")
    a(f"v_mul_u32_u24 v{T}, 896, v{vHH}\nv_lshl_add_u32 v{T}, v{vT_}, 4, v{T}\nv_mov_b32 v{T+1}, 0x7fff0000\nv_cmp_gt_u32 vcc, 28, v{vT_}\nv_cndmask_b32 v{T}, v{T+1}, v{T}, vcc")
    a("s_waitcnt lgkmcnt(0)")
    srd(sX, 4, S * D * 2)
    xl = [a.vm(f"buffer_load_dwordx4 v[{XR+4*i}:{XR+4*i+3}], v{T}, s[{sX}:{sX+3}], s{sT1} offen offset:{448*i}") for i in range(2)]
    stamp("b0_karg")
    srd(sDBG, 22, 256); srd(sWS, 24, WS_SIZE); srd(sW2, 14, D * D * 2); srd(sW3, 16, D * F * 2); srd(sW4, 18, D * F * 2); srd(sWO, 8, D * D * 2); srd(sOUT, 20, S * D * 2)
    a(f"v_mov_b32 v{XR+8}, 0\nv_mov_b32 v{XR+10}, 0\nv_lshlrev_b32 v{T+2}, 4, v{vHH}")
    def touches(items, nwg=256):
        a(f"s_and_b32 s{sT0}, s2, 255\nv_lshlrev_b32 v193, 7, v{vLANE}")
        Lj = newlab("tj")
        for w, (sr_, n) in enumerate(items):
            L = newlab("tc")
            if w < 3: a(f"s_cmp_lg_u32 s{sW}, {w}\ns_cbranch_scc1 {L}")
            if sr_ == "code":
                a(f"s_getpc_b64 s[{sWA}:{sWA+1}]")
                a.label("L_pc")
                a(f"s_sub_u32 s{sWA}, s{sWA}, L_pc-{NAME}_kernel\ns_subb_u32 s{sWA+1}, s{sWA+1}, 0\ns_mov_b32 s{sWA+2}, L_code_end-{NAME}_kernel\ns_mov_b32 s{sWA+3}, 0x20000")
                a(f"s_mov_b32 s{sT0}, s{sLOC}"); sr_ = sWA
            if n <= 16: a("v_and_b32 v193, 0x7ff, v193")
            a(f"s_mul_i32 s{sT0}, s{sT0}, {n*128}\nbuffer_load_dword v192, v193, s[{sr_}:{sr_+3}], s{sT0} offen")
            if w < 3: a(f"s_branch {Lj}"); a.label(L)
        a.label(Lj)
        a.tok += 1; a.vmq.append(a.tok)
    if OPT["pf"] & 1: touches([(sW2, 13), ("code", 12), (sW2, 13), (sW2, 13)])
    if OPT["pf"] & 4: touches([(sW3, 49), (sW4, 49), (sWO, 13), (sWO, 13)])
    a(f"s_mul_i32 s{sT0}, s{sLOC}, 37\ns_lshr_b32 s{sT0}, s{sT0}, 8\ns_mul_i32 s{sT1}, s{sT0}, 7\ns_sub_u32 s{sCT}, s{sLOC}, s{sT1}")
    a(f"s_lshl_b32 s{sR64}, s{sXCD}, 2\ns_add_u32 s{sR64}, s{sR64}, s{sT0}\ns_lshr_b32 s{sRW}, s{sW}, 1\ns_and_b32 s{sCW}, s{sW}, 1")
    vXd = 60
    addr_wdma128(vWD, 64); addr_xdma(vXd, 2, 64)
    a.wait(vm=xl)
    stamp("b0_x")
    no = a.vm(f"buffer_load_dwordx2 v[{vNO}:{vNO+1}], v{vZERO}, s[{sDBG}:{sDBG+3}], 0 offen sc1")
    if OPT["pf"] & 16: touches([(sW3, 49), (sW4, 49), (sWO, 13), (sW2, 13)])
    for i in range(8): a(f"v_dot2c_f32_bf16 v{XR+8}, s{sONES}, v{XR+i}\nv_dot2c_f32_bf16 v{XR+10}, v{XR+i}, v{XR+i}")
    for r in (8, 4, 2, 1):
        for v in (XR + 8, XR + 10): a(f"v_add_f32_dpp v{v}, v{v}, v{v} row_ror:{r} row_mask:0xf bank_mask:0xf")
    for v in (XR + 8, XR + 10): a(f"v_mov_b32 v{v+1}, v{v}")
    for v in (XR + 8, XR + 10): a(f"v_permlane16_swap_b32 v{v}, v{v+1}")
    for v in (XR + 8, XR + 10): a(f"v_add_f32 v{v}, v{v}, v{v+1}")
    ln_stats(XR + 8, XR + 10, T)
    a(f"v_add_f32 v{XR+10}, {hx(f2u(EPS))}, v{XR+10}\nv_rsq_f32 v{XR+10}, v{XR+10}")
    a.wait(vm=no); get_nonce(loaded=True)
    a(f"v_mov_b32 v{XR+9}, v{vNO}\nv_mov_b32 v{XR+11}, v{vNO}\ns_mov_b32 exec_lo, 1\ns_mov_b32 exec_hi, 1")
    a(f"buffer_store_dwordx4 v[{XR+8}:{XR+11}], v{T+2}, s[{sWS}:{sWS+3}], s{sT4} offen sc1\ns_mov_b64 exec, -1")
    stamp("b0_rec")
    if OPT["nob"]: stamp_flush(); a("s_endpgm")
    if OPT["l2w3"]:
        nl = OPT["l2w3"]; rounds = (98 + nl - 1) // nl
        a(f"s_lshl_b32 s{sT0}, s{sLOC}, 2\ns_add_u32 s{sT0}, s{sT0}, s{sW}\ns_mul_i32 s{sT0}, s{sT0}, {98*128}\nv_min_u32 v193, {nl-1}, v{vLANE}\nv_lshlrev_b32 v193, 7, v193")
        for r in range(rounds):
            a(f"buffer_load_dword v192, v193, s[{sW3}:{sW3+3}], s{sT0} offen\ns_add_u32 s{sT0}, s{sT0}, {nl*128}\ns_waitcnt vmcnt(0)")
        a.vmq = []
        stamp("b0_l2")
    if OPT["pf"] & 2:
        go_poll(); touches([(sW3, 49), (sW4, 49), (sWO, 13), (sWO, 13)])
    a(f"s_cmp_ge_u32 s{sLOC}, 28\ns_cbranch_scc1 L_helper")
    if OPT["prio_b"]: a(f"s_setprio {OPT['prio_b']}")
    a(f"v_mul_u32_u24 v{vXo}, {PL}, v{vHH}\nv_lshl_add_u32 v{vXo}, v{vT_}, 4, v{vXo}\ns_lshl_b32 s{sT0}, s{sRW}, 9\nv_add_u32 v{vPLN}, s{sT0}, v{vXo}")
    a(f"s_xor_b32 s{sT0}, s{sT0}, 512\nv_add_u32 v{vGo1}, s{sT0}, v{vXo}")
    if OPT["map3"]:
        a(f"s_and_b32 s{sT0}, s{sXCD}, 1\ns_mul_i32 s{sT0}, s{sT0}, 7\ns_add_u32 s{sC3}, s{sT0}, s{sCT}")
        a(f"s_lshr_b32 s{sT0}, s{sXCD}, 1\ns_lshl_b32 s{sT0}, s{sT0}, 2\ns_and_b32 s{sT1}, s{sR64}, 3\ns_add_u32 s{sRB3}, s{sT0}, s{sT1}\ns_lshl_b32 s{sT0}, s{sT1}, 1")
    else:
        a(f"s_cmp_ge_u32 s{sLOC}, 14\ns_cselect_b32 s{sT0}, 1, 0\ns_cselect_b32 s{sT1}, 14, 0\ns_sub_u32 s{sC3}, s{sLOC}, s{sT1}")
        a(f"s_lshl_b32 s{sRB3}, s{sXCD}, 1\ns_add_u32 s{sRB3}, s{sRB3}, s{sT0}\ns_mul_i32 s{sT0}, s{sT0}, 3")
    a(f"s_add_u32 s{sT0}, s{sT0}, s{sCT}\ns_sub_u32 s{sT1}, s{sT0}, 7\ns_cselect_b32 s{sT0}, s{sT0}, s{sT1}")
    rot7(sK3, sT0)
    a(f"s_and_b32 s{sT0}, s{sR64}, 3\ns_lshl_b32 s{sT0}, s{sT0}, 1\ns_add_u32 s{sT0}, s{sT0}, s{sCT}\ns_sub_u32 s{sT1}, s{sT0}, 7\ns_cselect_b32 s{sT0}, s{sT0}, s{sT1}")
    rot7(sG4, sT0)
    a(f"s_mul_i32 s{sT1}, s{sW}, {16*3584}\ns_lshl_b32 s{sT2}, s{sC3}, 8\ns_add_u32 s{sT1}, s{sT1}, s{sT2}")
    a(f"s_mul_i32 s{sT0}, s{sW}, {448*896}\ns_lshl_b32 s{sT2}, s{sCT}, 7\ns_add_u32 s{sT0}, s{sT0}, s{sT2}")
    a(f"s_mul_i32 s{sWOo}, s{sW}, {112*896}\ns_add_u32 s{sWOo}, s{sWOo}, s{sT2}")
    a(f"s_lshl_b32 s{sT2}, s{sR64}, 10\ns_mul_i32 s{sT3}, s{sW}, {56*PL}\ns_add_u32 s{sT3}, s{sT3}, s{sT2}\ns_add_u32 s{sT3}, s{sT3}, {G_}")
    a(f"s_mul_i32 s{sOo}, s{sW}, {16*PL}\ns_add_u32 s{sOo}, s{sOo}, s{sT2}\ns_add_u32 s{sOo}, s{sOo}, {O_}")
    a(f"s_lshl_b32 s{sT4}, s{sRB3}, 2\ns_add_u32 s{sT4}, s{sT4}, s{sW}\ns_lshl_b32 s{sSO}, s{sT4}, 8\ns_add_u32 s{sSO}, s{sSO}, {ST1}\ns_lshl_b32 s{sT4}, s{sT4}, 9")
    for c in range(7):
        a(f"s_mul_i32 s{sW3O+c}, s{sK3+c}, {64*3584}\ns_add_u32 s{sW3O+c}, s{sW3O+c}, s{sT1}")
        a(f"s_mul_i32 s{sW4o+c}, s{sG4+c}, {64*896}\ns_add_u32 s{sW4o+c}, s{sW4o+c}, s{sT0}")
        a(f"s_mul_i32 s{sG4+c}, s{sG4+c}, {8*PL}\ns_add_u32 s{sG4+c}, s{sG4+c}, s{sT3}")
        a(f"s_mul_i32 s{sK3+c}, s{sK3+c}, {8*PL}\ns_add_u32 s{sK3+c}, s{sK3+c}, s{sT4}\ns_add_u32 s{sK3+c}, s{sK3+c}, {X1}")
    a(f"s_mul_i32 s{sT1}, s{sC3}, {16*PL}\ns_add_u32 s{sT4}, s{sT4}, s{sT1}\ns_add_u32 s{sT4}, s{sT4}, {G_}")
    for u in range(4): a(f"s_add_u32 s{sT0}, s{sW}, {u}\ns_and_b32 s{sT0}, s{sT0}, 3\ns_mul_i32 s{sT0}, s{sT0}, {4*PL}\ns_add_u32 s{sGS[u]}, s{sT0}, s{sT4}")
    a(f"s_lshl_b32 s{sM03}, s{sW}, 12\ns_mul_i32 s{sM04}, s{sW}, {NZ*2048}")
    a(f"s_lshl_b32 s{sT2}, s{sCT}, 1\ns_add_u32 s{sT2}, s{sT2}, s{sCW}\ns_mul_i32 s{sT0}, s{sT2}, {4*PL}\ns_lshl_b32 s{sT1}, s{sR64}, 10")
    a(f"s_add_u32 s{sT0}, s{sT0}, s{sT1}\ns_add_u32 s{sX1D}, s{sT0}, {X1}\ns_lshl_b32 s{sST1D}, s{sT2}, 14\ns_add_u32 s{sST1D}, s{sST1D}, {ST1}")
    a(f"s_lshl_b32 s{sT2}, s{sT2}, 6\ns_lshl_b32 s{sT0}, s{sR64}, 1\ns_add_u32 s{sT0}, s{sT0}, s{sRW}\ns_mul_i32 s{sOUTD}, s{sT0}, {32*896}\ns_add_u32 s{sOUTD}, s{sOUTD}, s{sT2}")
    a(f"s_mul_i32 s{sT0}, s{sR64}, 7\ns_add_u32 s{sT0}, s{sT0}, s{sCT}\ns_lshl_b32 s{sT0}, s{sT0}, 2\ns_add_u32 s{sT0}, s{sT0}, s{sW}\ns_lshl_b32 s{sMB2}, s{sT0}, 6")
    a(f"s_mul_i32 s{sT0}, s{sRB3}, 14\ns_add_u32 s{sT0}, s{sT0}, s{sC3}\ns_lshl_b32 s{sT0}, s{sT0}, 2\ns_add_u32 s{sT0}, s{sT0}, s{sW}\ns_lshl_b32 s{sMB3}, s{sT0}, 6")
    a(f"s_lshr_b32 s{sT0}, s{sR64}, 1\ns_mul_i32 s{sT0}, s{sT0}, {14*256}\ns_and_b32 s{sT1}, s{sR64}, 1\ns_lshl_b32 s{sT1}, s{sT1}, 7\ns_add_u32 s{sT0}, s{sT0}, s{sT1}\ns_lshl_b32 s{sT1}, s{sCT}, 3\ns_add_u32 s{sT0}, s{sT0}, s{sT1}\ns_add_u32 s{sT0}, s{sT0}, {MB_X}")
    a(f"v_lshrrev_b32 v{T}, 1, v{vLANE}\nv_lshlrev_b32 v{T}, 8, v{T}\nv_and_b32 v{T+1}, 1, v{vLANE}\nv_lshl_add_u32 v{T}, v{T+1}, 6, v{T}\nv_add_u32 v{vMX}, s{sT0}, v{T}")
    lanes_below(vMX, 28, T)
    lane_div(T, T + 1, vLANE, 14, T + 2)
    a(f"s_lshl_b32 s{sT0}, s{sC3}, 1\nv_add_u32 v{T}, s{sT0}, v{T}\nv_mul_u32_u24 v{T}, 37, v{T}\nv_lshrrev_b32 v{T}, 8, v{T}")
    a(f"v_mul_u32_u24 v{T+2}, 7, v{T}\nv_lshrrev_b32 v{T+2}, 1, v{T+2}\nv_sub_u32 v{T+2}, s{sC3}, v{T+2}\nv_lshlrev_b32 v{T+2}, 3, v{T+2}\nv_lshl_add_u32 v{T+2}, v{T}, 6, v{T+2}")
    a(f"s_mul_i32 s{sT0}, s{sRB3}, {14*256}\ns_add_u32 s{sT0}, s{sT0}, {MB_G}\nv_lshl_add_u32 v{T+2}, v{T+1}, 8, v{T+2}\nv_add_u32 v{vMG}, s{sT0}, v{T+2}")
    lanes_below(vMG, 28, T)
    a(f"s_movk_i32 s{sT3}, 3584")
    addr_wdma256(vWd3, sT3, T)
    addr_wrd256(vWr3, 64, T)
    a(f"s_lshl_b32 s{sT1}, s{sW}, 9\ns_add_u32 s{sT1}, s{sT1}, {CSB3}\nv_lshl_add_u32 v{vCW3}, v{vLANE}, 3, s{sT1}")
    for u in range(4):
        a(f"s_add_u32 s{sT0}, s{sW}, {u}\ns_and_b32 s{sT0}, s{sT0}, 3\ns_lshl_b32 s{sT0}, s{sT0}, 7\ns_add_u32 s{sT0}, s{sT0}, s{sT1}\nv_lshl_add_u32 v{vCA3+u}, v{vHH}, 4, s{sT0}")
    addr_wrd128(vWr4, 4, sCW, sM04, T)
    a(f"v_xor_b32 v{vWr4+1}, 64, v{vWr4}")
    a(f"v_mul_u32_u24 v{vSo}, {7*16384}, v{vHH}\nv_lshl_add_u32 v{vSo}, v{vT_}, 3, v{vSo}")
    a(f"s_lshl_b32 s{sT0}, s{sR64}, 6\ns_lshl_b32 s{sT1}, s{sRW}, 5\ns_add_u32 s{sT0}, s{sT0}, s{sT1}\nv_add_u32 v{T}, s{sT0}, v{vT_}")
    a(f"v_lshlrev_b32 v{vST+2}, 3, v{T}\nv_lshlrev_b32 v{T+4}, 4, v{T}")
    a(f"v_mul_u32_u24 v{T+1}, {PL}, v{vHH}\nv_mov_b32 v{T+3}, 0x7fff0000\ns_movk_i32 s{sT2}, 2048")
    a(f"s_add_u32 s{sT0}, s{sCW}, 1")
    for g, op in enumerate(("v_subrev_u32", "v_add_u32")):
        a(f"{op} v{T+2}, s{sT0}, v{T}\nv_cmp_gt_u32 vcc, s{sT2}, v{T+2}\nv_lshl_add_u32 v{vSH+g}, v{T+2}, 4, v{T+1}\nv_cndmask_b32 v{vSH+g}, v{T+3}, v{vSH+g}, vcc")
    if not OPT["pf"] & 2: go_poll()
    a(f"s_lshl_b32 s{sT0}, s{sR64}, 2\ns_add_u32 s{sT0}, s{sT0}, s{sW}\ns_mul_i32 s{sT0}, s{sT0}, {16*896}\ns_lshl_b32 s{sT1}, s{sCT}, 7\ns_add_u32 s{sT0}, s{sT0}, s{sT1}")
    a(f"s_lshl_b32 s{sT2}, s{sW}, 11"); set_m0(sT2, 57344)
    for q in range(2): a.vm(f"buffer_load_dwordx4 v{vXd+q}, s[{sX}:{sX+3}], s{sT0} offen offset:{1024*q} lds")
    a(f"s_mul_i32 s{sT0}, s{sW}, {112*896}\ns_add_u32 s{sT0}, s{sT0}, s{sT1}\ns_mul_i32 s{sT1}, s{sW}, 14336")
    a(f"s_and_b32 s{sT2}, s{sR64}, 3\ns_lshl_b32 s{sT2}, s{sT2}, 1")
    def w2q(q):
        a(f"s_mul_i32 s{sT4}, s{sT2}, {16*896}\ns_add_u32 s{sT4}, s{sT4}, s{sT0}\ns_lshl_b32 s{sT5}, s{sT2}, 11\ns_add_u32 m0, s{sT5}, s{sT1}")
        tk = [a.vm(f"buffer_load_dwordx4 v{vWD+j}, s[{sW2}:{sW2+3}], s{sT4} offen offset:{1024*j} lds") for j in range(2)]
        if q < 6: a(f"s_add_u32 s{sT2}, s{sT2}, 1\ns_cmp_eq_u32 s{sT2}, 7\ns_cselect_b32 s{sT2}, 0, s{sT2}")
        return tk
    throttled([lambda q=q: w2q(q) for q in range(7)], OPT["thr"])
    REC = 160
    a(f"s_mov_b32 s{sT4}, {ST0}")
    check_record(REC, T + 4, sT4, loaded=False)
    a("s_barrier")
    stamp("b0_w2")
    if OPT["pf"] & 8: touches([(sW3, 56), (sW4, 56), (sWO, 14), (sWO, 14)], 224)
    ACC, W2F, XV, vWr = 16, 48, 164, 172
    a(f"s_mul_i32 s{sT3}, s{sCW}, 28672")
    addr_wrd128(vWr, 4, sCW, sT3, T)
    a(f"v_xor_b32 v{vWr+1}, 64, v{vWr}")
    a(f"v_bfe_u32 v{T}, v{vT_}, 1, 3\ns_lshl_b32 s{sT0}, s{sCW}, 2\nv_xor_b32 v{T}, s{sT0}, v{T}\nv_lshlrev_b32 v{T}, 4, v{T}")
    a(f"v_lshl_add_u32 v{T}, v{vT_}, 7, v{T}\nv_lshl_add_u32 v{T}, v{vHH}, 3, v{T}\ns_lshl_b32 s{sT0}, s{sRW}, 12\nv_add_u32 v{T}, s{sT0}, v{T}")
    for i in range(4):
        a(f"v_xor_b32 v{T+1}, {16*i}, v{T}")
        a.lg(f"ds_read_b64 v[{XV+2*i}:{XV+2*i+1}], v{T+1} offset:57344")
    for s in range(14):
        for b in range(2):
            for jj in range(2): a.lg(f"ds_read_b64_tr_b16 v[{W2F+8*s+4*b+2*jj}:{W2F+8*s+4*b+2*jj+1}], v{vWr+b} offset:{s*2048 + jj*1024}")
            if len(a.lgq) > 12: a.wait(lg=a.lgq[-11])
    a.wait_all(vm=False); a("s_barrier")
    m0 = [None]
    def issue_w(c, qs=range(4)):
        if m0[0] != c: set_m0(sM03, (c % 5) * 16384); m0[0] = c
        return [a.vm(f"buffer_load_dwordx4 v{vWd3+q}, s[{sW3}:{sW3+3}], s{sW3O+c} offen offset:{1024*q} lds") for q in qs]
    B3["issue_w"] = issue_w; B3["wt"] = {}
    def w3c(c, q):
        t = issue_w(c, (q,)); B3["wt"].setdefault(c, []).extend(t); return t
    B3["pieces"] = [lambda c=c, q=q: w3c(c, q) for c in range(5) for q in range(4)]
    for t in B3["pieces"][:OPT["w3a"]]: t()
    for i in range(8):
        a(f"v_lshlrev_b32 v{RES+2*i}, 16, v{XV+i}\nv_and_b32 v{RES+2*i+1}, 0xffff0000, v{XV+i}")
    a(f"v_mov_b32 v{vA}, v{REC+2}\nv_mul_f32 v{vB}, v{REC}, v{REC+2}\nv_sub_f32 v{vB}, 0, v{vB}")
    for i in range(0, 16, 2):
        a(f"v_pk_fma_f32 v[{ACC+i}:{ACC+i+1}], v[{RES+i}:{RES+i+1}], v[{vA}:{vA+1}], v[{vB}:{vB+1}] op_sel_hi:[1,0,0]")

def helper():
    a.label("L_helper")
    a.vmq = []; a.lgq = []
    prev_stamp[0] = stamp_names.get("b0_rec")
    if OPT["prio_h"]: a(f"s_setprio {OPT['prio_h']}")
    T = TB
    a(f"s_and_b32 s{sT0}, s2, 255\ns_lshl_b32 s{sT0}, s{sT0}, 6")
    spoll([(sT2, 2, sT0, F_AP, 1)])
    stamp("h_go")
    sB = sT4; LD, SUM = 16, 80
    a(f"s_and_b32 s{sB}, s2, 255\ns_sub_u32 s{sB}, s{sB}, 224\ns_cmp_ge_u32 s{sB}, 28\ns_cbranch_scc1 L_nocs")
    a(f"s_mul_i32 s{sT0}, s{sW}, {112*3584}\ns_lshl_b32 s{sT1}, s{sB}, 7\ns_add_u32 s{sT0}, s{sT0}, s{sT1}")
    a(f"v_lshrrev_b32 v{T}, 3, v{vLANE}\nv_mul_u32_u24 v{T}, 3584, v{T}\nv_and_b32 v{T+1}, 7, v{vLANE}\nv_lshl_add_u32 v{T}, v{T+1}, 4, v{T}")
    tk = []
    for i in range(14):
        tk.append(a.vm(f"buffer_load_dwordx4 v[{LD+4*i}:{LD+4*i+3}], v{T}, s[{sW3}:{sW3+3}], s{sT0} offen"))
        if i < 13: a(f"s_add_u32 s{sT0}, s{sT0}, {8*3584}")
        if i >= OPT["hthr"]: a.wait(vm=tk[i - OPT["hthr"]])
    for k in range(8): a(f"v_mov_b32 v{SUM+k}, 0")
    for i in range(14):
        a.wait(vm=tk[i])
        for k in range(4):
            a(f"v_lshlrev_b32 v{T+2}, 16, v{LD+4*i+k}\nv_and_b32 v{T+3}, 0xffff0000, v{LD+4*i+k}\nv_pk_add_f32 v[{SUM+2*k}:{SUM+2*k+1}], v[{SUM+2*k}:{SUM+2*k+1}], v[{T+2}:{T+3}]")
    stamp("h_ld")
    for k in range(8): a(f"v_add_f32_dpp v{SUM+k}, v{SUM+k}, v{SUM+k} row_ror:8 row_mask:0xf bank_mask:0xf")
    for op in ("v_permlane16_swap_b32", "v_permlane32_swap_b32"):
        for k in range(8): a(f"v_mov_b32 v{SUM+8+k}, v{SUM+k}")
        for k in range(8): a(f"{op} v{SUM+k}, v{SUM+8+k}")
        for k in range(8): a(f"v_add_f32 v{SUM+k}, v{SUM+k}, v{SUM+8+k}")
    a(f"s_lshl_b32 s{sT0}, s{sW}, 8\nv_lshlrev_b32 v{T+1}, 5, v{T+1}\nv_add_u32 v{T+2}, s{sT0}, v{T+1}")
    a(f"ds_write_b128 v{T+2}, v[{SUM}:{SUM+3}]\nds_write_b128 v{T+2}, v[{SUM+4}:{SUM+7}] offset:16\ns_waitcnt lgkmcnt(0)\ns_barrier")
    a(f"v_lshlrev_b32 v{T+2}, 2, v{vLANE}")
    for w2 in range(4): a(f"ds_read_b32 v{SUM+w2}, v{T+2} offset:{256*w2}")
    a(f"s_waitcnt lgkmcnt(0)\nv_add_f32 v{SUM}, v{SUM}, v{SUM+1}\nv_add_f32 v{SUM+2}, v{SUM+2}, v{SUM+3}\nv_add_f32 v{SUM}, v{SUM}, v{SUM+2}")
    a(f"s_lshl_b32 s{sT0}, s{sB}, 8\ns_add_u32 s{sT0}, s{sT0}, {CS3}\ns_lshl_b32 s{sT1}, s{sB}, 3\ns_add_u32 s{sT1}, s{sT1}, {F_CS}")
    a(f"s_cmp_lg_u32 s{sW}, 0\ns_cbranch_scc1 L_nocs")
    a(f"buffer_store_dword v{SUM}, v{T+2}, s[{sWS}:{sWS+3}], s{sT0} offen sc1\ns_waitcnt vmcnt(0)")
    publish(sT1, barrier=False)
    a.label("L_nocs")
    a.vmq = []
    stamp("h_cs")
    if OPT["l2w4"]:
        nl = OPT["l2w4"]
        a(f"s_sub_u32 s{sT1}, s{sLOC}, 28\ns_lshl_b32 s{sT1}, s{sT1}, 2\ns_add_u32 s{sT1}, s{sT1}, s{sW}\nv_min_u32 v193, {nl-1}, v{vLANE}\nv_lshlrev_b32 v193, 7, v193")
        for sr_, lines in ((sW4, 784), (sWO, 196)):
            L = newlab("pf"); R = (lines + nl - 1) // nl
            a(f"s_mul_i32 s{sT3}, s{sT1}, {lines*128}\ns_mul_i32 s{sT4}, s{sXCD}, {R}\ns_lshr_b32 s{sT4}, s{sT4}, 3\ns_mov_b32 s{sT2}, {R}")
            a.label(L)
            a(f"s_mul_i32 s{sT0}, s{sT4}, {nl*128}\ns_add_u32 s{sT0}, s{sT0}, s{sT3}")
            a(f"buffer_load_dword v192, v193, s[{sr_}:{sr_+3}], s{sT0} offen\ns_add_u32 s{sT4}, s{sT4}, 1\ns_cmp_eq_u32 s{sT4}, {R}\ns_cselect_b32 s{sT4}, 0, s{sT4}\ns_waitcnt vmcnt(0)")
            a(f"s_sub_u32 s{sT2}, s{sT2}, 1\ns_cmp_lg_u32 s{sT2}, 0\ns_cbranch_scc1 {L}")
    stamp("h_w4"); stamp_flush()
    if OPT["clr"]:
        a(f"s_and_b32 s{sT0}, s2, 255\ns_cmp_lg_u32 s{sT0}, 255\ns_cbranch_scc1 L_end")
        a(f"s_lshl_b32 s{sT0}, s{sW}, 12\ns_add_u32 s{sT0}, s{sT0}, {F_AP}\nv_lshl_add_u32 v{vPO}, v{vLANE}, 6, s{sT0}")
        poll(sleep=32)
        a(f"s_barrier\ns_cmp_lg_u32 s{sW}, 0\ns_cbranch_scc1 L_end\nv_mov_b32 v{vP0}, 0\nv_mov_b32 v{vP0+1}, 0\ns_mov_b64 exec, 1")
        a(f"buffer_store_dwordx2 v[{vP0}:{vP0+1}], v{vZERO}, s[{sDBG}:{sDBG+3}], 0 offen sc1")
    a("s_endpgm")

def stage_B2():
    a.comment("==== B2: x1 = xn + shift(h) @ w2, 64 x 64 tile")
    ACC, W2F, HF, NH = 16, 48, 160, 8
    T = TB
    a(f"s_mul_i32 s{sT0}, s{sCW}, {28*PL}\ns_add_u32 s{sT0}, s{sT0}, {H_}\ns_add_u32 s{sT1}, s{sX1D}, {2*PL}")
    vW, vR = vSH + 2, vSH + 3
    a(f"s_lshl_b32 s{sT2}, s{sW}, 12\ns_add_u32 s{sT2}, s{sT2}, 65536\nv_add_u32 v{vW}, s{sT2}, v{vL16}\nv_xor_b32 v{vR}, 4096, v{vW}")
    if OPT["tw3"]:
        a(f"v_min_u32 v{T}, 55, v{vLANE}\nv_mul_u32_u24 v{T+1}, 37, v{T}\nv_lshrrev_b32 v{T+1}, 9, v{T+1}\nv_mul_u32_u24 v{T+2}, 14, v{T+1}\nv_sub_u32 v{T}, v{T}, v{T+2}")
        a(f"v_mul_u32_u24 v{T+1}, 3584, v{T+1}\nv_lshl_add_u32 v193, v{T}, 7, v{T+1}")
        a(f"s_lshl_b32 s{sT3}, s{sLOC}, 2\ns_add_u32 s{sT3}, s{sT3}, s{sW}\ns_mul_i32 s{sT3}, s{sT3}, {4*3584}\ns_and_b32 s{sT2}, s{sXCD}, 1\ns_mul_i32 s{sT2}, s{sT2}, 1792\ns_add_u32 s{sT3}, s{sT3}, s{sT2}")
        if OPT["tw3"] == 99: a.vm(f"buffer_load_dword v192, v193, s[{sW3}:{sW3+3}], s{sT3} offen")
    stamp("b2_ready")
    spoll([(sF, 8, sMB2, MB_H, 4)])
    stamp("b2_poll")
    ht = []
    def hload():
        ks = len(ht); r = HF + 4 * (ks % NH)
        ht.append(a.vm(f"buffer_load_dwordx4 v[{r}:{r+3}], v{vSH + ks//7}, s[{sWS}:{sWS+3}], s{sT0} offen sc1"))
        if ks < 13: a(f"s_add_u32 s{sT0}, s{sT0}, {2*PL}")
    for ks in range(NH): hload()
    for s in range(14):
        a.wait(vm=ht[s])
        if s == 0: stamp("b2_h0")
        mfma(ACC + 16, W2F + 8 * s + 4, HF + 4 * (s % NH), first=(s == 0))
        mfma(ACC, W2F + 8 * s, HF + 4 * (s % NH))
        if len(ht) < 14: hload()
        if OPT["tw3"] and s == OPT["tw3"]:
            a.vm(f"buffer_load_dword v192, v193, s[{sW3}:{sW3+3}], s{sT3} offen")
    stamp("b2_main")
    for i in range(4): a.lg(f"ds_write_b128 v{vW}, v[{ACC+16+4*i}:{ACC+16+4*i+3}] offset:{1024*i}")
    a.wait_all(vm=False); a("s_barrier")
    tk = [a.lg(f"ds_read_b128 v[{ACC+16+4*i}:{ACC+16+4*i+3}], v{vR} offset:{1024*i}") for i in range(4)]
    for i in range(4):
        a.wait(lg=tk[i])
        for k in (0, 2): a(f"v_pk_add_f32 v[{ACC+4*i+k}:{ACC+4*i+k+1}], v[{ACC+4*i+k}:{ACC+4*i+k+1}], v[{ACC+16+4*i+k}:{ACC+16+4*i+k+1}]")
    PK = 48; sts = []
    cvt16(PK, ACC)
    for p in range(2):
        a(f"v_permlane32_swap_b32 v{PK+4*p}, v{PK+4*p+2}\nv_permlane32_swap_b32 v{PK+4*p+1}, v{PK+4*p+3}")
        sts.append(a.vm(f"buffer_store_dwordx4 v[{PK+4*p}:{PK+4*p+3}], v{vPLN}, s[{sWS}:{sWS+3}], s{sT1 if p else sX1D} offen sc1"))
    a(f"v_pk_add_f32 v[{T}:{T+1}], v[{ACC}:{ACC+1}], v[{ACC+2}:{ACC+3}]\nv_pk_mul_f32 v[{T+2}:{T+3}], v[{ACC}:{ACC+1}], v[{ACC}:{ACC+1}]")
    a(f"v_pk_fma_f32 v[{T+2}:{T+3}], v[{ACC+2}:{ACC+3}], v[{ACC+2}:{ACC+3}], v[{T+2}:{T+3}]")
    for i in range(4, 16, 2):
        a(f"v_pk_add_f32 v[{T}:{T+1}], v[{T}:{T+1}], v[{ACC+i}:{ACC+i+1}]\nv_pk_fma_f32 v[{T+2}:{T+3}], v[{ACC+i}:{ACC+i+1}], v[{ACC+i}:{ACC+i+1}], v[{T+2}:{T+3}]")
    a(f"v_add_f32 v{T}, v{T}, v{T+1}\nv_add_f32 v{T+2}, v{T+2}, v{T+3}\nv_mov_b32 v{T+1}, v{T}\nv_mov_b32 v{T+3}, v{T+2}")
    a(f"v_permlane32_swap_b32 v{T}, v{T+1}\nv_permlane32_swap_b32 v{T+2}, v{T+3}\nv_add_f32 v{vST}, v{T}, v{T+1}\nv_add_f32 v{vST+1}, v{T+2}, v{T+3}")
    sts.append(a.vm(f"buffer_store_dwordx2 v[{vST}:{vST+1}], v{vST+2}, s[{sWS}:{sWS+3}], s{sST1D} offen sc1"))
    for i in range(0, 16, 2): a(f"v_pk_add_f32 v[{RES+i}:{RES+i+1}], v[{RES+i}:{RES+i+1}], v[{ACC+i}:{ACC+i+1}]")
    stamp("b2_st")
    n0 = OPT["w3a"]; n1 = max(n0, OPT["w3b"])
    for t in B3["pieces"][n0:n1]: t()
    a.wait(vm=sts); a("s_barrier")
    post([vMX], barrier=False)
    stamp("b2_pub")
    n2 = max(n1, OPT["w3c"])
    for t in B3["pieces"][n1:n2]:
        if len(a.vmq) >= OPT["thr3"]: a.wait(vm=a.vmq[-OPT["thr3"]])
        t()
    B3["stream"] = B3["pieces"][n2:]

def stage_B3():
    a.comment("==== B3: g = gelu(LN(x1) @ w3), 128 x 128 tile")
    ACC, XF, NX, WF, ST = 16, 80, 16, 144, 176
    T = TB
    spoll([(sF, 16, sMB3, MB_X, 7)])
    stamp("b3_poll")
    xt = []
    def xload():
        s = len(xt); c, ks = divmod(s, 4); r = XF + 4 * (s % NX)
        so = sK3 + c
        if ks: a(f"s_add_u32 s{sT0}, s{sK3+c}, {2*ks*PL}"); so = sT0
        xt.append(a.vm(f"buffer_load_dwordx4 v[{r}:{r+3}], v{vXo}, s[{sWS}:{sWS+3}], s{so} offen sc1"))
    for s in range(6): xload()
    stt = []; cst = []; cft = []
    def stat_load():
        i = len(stt)
        if i: a(f"s_add_u32 s{sSO}, s{sSO}, 16384")
        stt.append(a.vm(f"buffer_load_dwordx2 v[{ST+2*i}:{ST+2*i+1}], v{vSo}, s[{sWS}:{sWS+3}], s{sSO} offen sc1"))
    def kstep(s):
        th = []
        n = len(xt)
        for k in range(2):
            if n + k < 28 and n + k < s + NX and n + k <= s + 13: th.append(xload)
        if OPT["tw4"]:
            def tch(k):
                if k == 0:
                    a(f"s_lshl_b32 s{sT1}, s{sLOC}, 2\ns_add_u32 s{sT1}, s{sT1}, s{sW}\ns_mul_i32 s{sT2}, s{sT1}, {112*128}\ns_mul_i32 s{sT3}, s{sT1}, {28*128}")
                    a(f"s_and_b32 s{sT1}, s{sXCD}, 1\ns_mul_i32 s{sT1}, s{sT1}, {56*128}\nv_min_u32 v193, 55, v{vLANE}\nv_lshlrev_b32 v193, 7, v193\ns_add_u32 s{sT4}, s{sT2}, s{sT1}")
                    a.vm(f"buffer_load_dword v192, v193, s[{sW4}:{sW4+3}], s{sT4} offen")
                if k == 1:
                    a(f"s_sub_u32 s{sT4}, s{sT2}, s{sT1}\ns_add_u32 s{sT4}, s{sT4}, {56*128}")
                    a.vm(f"buffer_load_dword v192, v193, s[{sW4}:{sW4+3}], s{sT4} offen")
                if k == 2:
                    a(f"v_min_u32 v193, {27*128}, v193")
                    a.vm(f"buffer_load_dword v192, v193, s[{sWO}:{sWO+3}], s{sT3} offen")
            for k in range(3):
                if s == OPT["tw4"] + k * OPT["tw4d"]: th.append(lambda k=k: tch(k))
        if 9 <= s < 16: th.append(stat_load)
        if s == 7:
            def csflag():
                a(f"s_lshl_b32 s{sT0}, s{sC3}, 4\ns_add_u32 s{sT0}, s{sT0}, {F_CS}\nv_and_b32 v{vPO}, 1, v{vLANE}\nv_lshl_add_u32 v{vPO}, v{vPO}, 3, s{sT0}")
                cft.append(a.vm(f"buffer_load_dwordx2 v[{vP0}:{vP0+1}], v{vPO}, s[{sWS}:{sWS+3}], 0 offen sc1"))
            th.append(csflag)
        if s == 13:
            def csload():
                L = newlab("cc")
                a.wait(vm=cft); q = list(a.vmq)
                a(f"v_cmp_ne_u64 vcc, v[{vP0}:{vP0+1}], v[{vNO}:{vNO+1}]\ns_cbranch_vccz {L}")
                poll(); a.label(L); a.vmq = q
                a(f"s_lshl_b32 s{sT0}, s{sC3}, 9\ns_add_u32 s{sT0}, s{sT0}, {CS3}\nv_lshlrev_b32 v{SEL3}, 3, v{vLANE}")
                cst.append(a.vm(f"buffer_load_dwordx2 v[{CS43}:{CS43+1}], v{SEL3}, s[{sWS}:{sWS+3}], s{sT0} offen sc1"))
            th.append(csload)
        if s == 21:
            def cswrite():
                a.wait(vm=cst); a.lg(f"ds_write_b64 v{vCW3}, v[{CS43}:{CS43+1}]")
            th.append(cswrite)
        return th
    hooks = dict(before_barrier=lambda c: None, after_barrier=lambda c: [], lg_need=lambda s: [], vm_need=lambda s: [xt[s]], kstep=kstep)
    PAD[0] = OPT["pad3"]
    panel_mainloop("b3", ACC, WF, vWr3, 5, lambda s: XF + 4 * (s % NX), B3["issue_w"], B3["wt"], hooks, None, None, stream=B3["stream"])
    PAD[0] = 0
    stamp("b3_main")
    CS, GT, PK = 80, 144, 160
    toks = [read_cs(CS + 16 * u, vCA3 + u) for u in range(3)]
    a.wait(vm=stt)
    for i in (2, 4): a(f"v_pk_add_f32 v[{ST}:{ST+1}], v[{ST}:{ST+1}], v[{ST+i}:{ST+i+1}]\nv_pk_add_f32 v[{ST+6}:{ST+7}], v[{ST+6}:{ST+7}], v[{ST+6+i}:{ST+7+i}]")
    a(f"v_pk_add_f32 v[{ST}:{ST+1}], v[{ST}:{ST+1}], v[{ST+12}:{ST+13}]\nv_pk_add_f32 v[{ST}:{ST+1}], v[{ST}:{ST+1}], v[{ST+6}:{ST+7}]")
    a(f"v_mov_b32 v{ST+2}, v{ST}\nv_mov_b32 v{ST+3}, v{ST+1}\nv_permlane32_swap_b32 v{ST}, v{ST+2}\nv_permlane32_swap_b32 v{ST+1}, v{ST+3}")
    a(f"v_pk_add_f32 v[{ST}:{ST+1}], v[{ST}:{ST+1}], v[{ST+2}:{ST+3}]")
    ln_stats(ST, ST + 1, T)
    a(f"v_add_f32 v{ST+1}, {hx(f2u(EPS))}, v{ST+1}\nv_rsq_f32 v{vA}, v{ST+1}\nv_sub_f32 v{vB}, 0, v{ST}")
    gelu_consts(ST + 2, vA)
    a.wait(lg=toks[0])
    toks.append(read_cs(CS + 48, vCA3 + 3))
    stamp("b3_csbar")
    def issue_w4(j):
        set_m0(sM04, (j % NZ) * 2048)
        if j < 28:
            c, ks = divmod(j, 4); srd_, base, add = sW4, sW4o + c, ks * 16 * 896
        else:
            hd, m = divmod(j - 28, 2); srd_, base, add = sWO, sWOo, (28 * hd + 16 * m) * 896
        so = base
        if add: a(f"s_add_u32 s{sT5}, s{base}, {add}"); so = sT5
        return [a.vm(f"buffer_load_dwordx4 v{vWD+q}, s[{srd_}:{srd_+3}], s{so} offen offset:{1024*q} lds") for q in range(2)]
    B4["issue_w"] = issue_w4; B4["wt"] = {}
    cnt = [0]
    def hook():
        cnt[0] += 1
        j = len(B4["wt"])
        if cnt[0] == 1: a.wait(lg=toks[3]); a("s_barrier")
        if j < NZ and cnt[0] % 2 == 0:
            if len(a.vmq) >= OPT["thr4"]: a.wait(vm=a.vmq[-OPT["thr4"]])
            B4["wt"][j] = issue_w4(j)
    for u in range(4):
        a.wait(lg=toks[u]); shift16(ACC + 16 * u, CS + 16 * u)
        gelu16(ACC + 16 * u, GT, ST + 2, hook)
        pk = PK + 8 * (u & 1)
        cvt16(pk, ACC + 16 * u)
        a(f"s_add_u32 s{sT1}, s{sGS[u]}, {2*PL}")
        a.vm(f"buffer_store_dwordx4 v[{pk}:{pk+3}], v{vXo}, s[{sWS}:{sWS+3}], s{sGS[u]} offen sc1")
        a.vm(f"buffer_store_dwordx4 v[{pk+4}:{pk+7}], v{vXo}, s[{sWS}:{sWS+3}], s{sT1} offen sc1")
    assert len(B4["wt"]) == NZ
    stamp("b3_epi")
    sts = a.vmq[-2:]
    NRG = OPT["nrg"]; WR = 144
    def wfrag(j):
        a.wait(vm=B4["wt"][j])
        for b in range(2):
            for jj in range(2):
                r = wreg(j) + 4 * b + 2 * jj
                a.lg(f"ds_read_b64_tr_b16 v[{r}:{r+1}], v{vWr4+b} offset:{(j%NZ)*2048 + jj*1024}")
        if len(a.lgq) > 8: a.wait(lg=a.lgq[-5])
    for i in range(16): a(f"v_mov_b32 v{ACC+i}, v{RES+i}")
    for j in range(min(NRG, NZ)): wfrag(j)
    a(f"s_add_u32 s{sT1}, s{sMB2}, {MB_O}\nv_and_b32 v{T}, 7, v{vLANE}\nv_lshl_add_u32 v{T+7}, v{T}, 3, s{sT1}")
    a.wait_all(vm=False)
    a.wait(vm=sts); a("s_barrier")
    post([vMG], barrier=False)
    stamp("b3_pub")
    for j in range(min(NRG, NZ)): B4["wt"][NZ + j] = issue_w4(NZ + j)
    if NRG > NZ:
        for j in range(NZ, NRG): wfrag(j)
        a.wait_all(vm=False)
        for j in range(NZ, NRG): B4["wt"][NZ + j] = issue_w4(NZ + j)

def wreg(j):
    n1 = 8 + (8 - OPT["ng"])
    return 80 + 8 * OPT["ng"] + 8 * j if j < n1 else RES + 8 * (j - n1)

def stage_B4():
    a.comment("==== B4: out = x + x1 + g @ w4 + o @ wo, 64 x 64 tile, k split over the waves")
    ACC, GF, WR, WF, T = 16, 80, 144, 208, TB
    NRG = OPT["nrg"]; NG = OPT["ng"]
    vGo = [vPLN, vGo1]; vPO2 = T + 7
    wt = B4["wt"]; issue_w = B4["issue_w"]
    rd = {}; gt = {}
    def reads(j):
        rd[j] = []
        if j < NRG: return []
        a.wait(vm=wt[j])
        return [lambda b=b, jj=jj: rd[j].append(a.lg(f"ds_read_b64_tr_b16 v[{WF+8*(j&1)+4*b+2*jj}:{WF+8*(j&1)+4*b+2*jj+1}], v{vWr4+b} offset:{(j%NZ)*2048 + jj*1024}")) for b in range(2) for jj in range(2)]
    def gload(j):
        if j < 28:
            c, ks = divmod(j, 4); base, add = sG4 + c, 2 * ks * PL
        else: base, add = sOo, 2 * (j - 28) * PL
        so = base
        if add: a(f"s_add_u32 s{sT4}, s{base}, {add}"); so = sT4
        r = GF + 8 * (j % NG)
        gt[j] = [a.vm(f"buffer_load_dwordx4 v[{r+4*aa}:{r+4*aa+3}], v{vGo[aa]}, s[{sWS}:{sWS+3}], s{so} offen sc1") for aa in range(2)]
    ot = []
    def ocheck():
        L = newlab("oc"); q = None
        a.wait(vm=ot)
        q = list(a.vmq); ql = list(a.lgq)
        a(f"v_cmp_ne_u64 vcc, v[{vP0}:{vP0+1}], v[{vNO}:{vNO+1}]\ns_cbranch_vccz {L}")
        spoll([(sF, 16, sMB2, MB_O, 8)])
        a.label(L)
        a.vmq = q; a.lgq = ql
        stamp("b4_opoll")
    for t in reads(0): t()
    spoll([(sF, 8, sMB2, MB_G, 4)])
    stamp("b4_poll")
    for j in range(4): gload(j)
    PAD[0] = OPT["pad4"]
    for j in range(36):
        if j == 28: stamp("b4_g")
        a.wait(vm=gt[j], lg=rd[j])
        if j in (0, 14): stamp(f"b4_j{j}")
        rds = reads(j + 1) if j + 1 < 36 else []
        late = []
        n = len(gt)
        jo = 28 - OPT["olead"]
        if j == jo - 3 and not OPT["noattn"]:
            late.append(lambda: ot.append(a.vm(f"buffer_load_dwordx2 v[{vP0}:{vP0+1}], v{vPO2}, s[{sWS}:{sWS+3}], 0 offen sc1")))
        if j == jo - 1 and not OPT["noattn"]: late.append(ocheck)
        for k in range(2):
            if n + k < 36 and n + k <= j + NG - 1 and (n + k < 28 or j >= jo): late.append(lambda k=n + k: gload(k))
        if j + NZ < 36 and j >= NRG: late.append(lambda j=j: wt.__setitem__(j + NZ, issue_w(j + NZ)))
        g = GF + 8 * (j % NG); w = WF + 8 * (j & 1) if j >= NRG else wreg(j)
        for u in range(4):
            aa, b = divmod(u, 2)
            mfma(ACC + 16 * u, w + 4 * b, g + 4 * aa, first=(j == 0 and u > 0))
            if u == 0:
                for t in rds: t()
            elif late: late.pop(0)()
        for t in late: t()
    PAD[0] = 0
    stamp("b4_o")
    vW, vR = T, T + 1
    a(f"v_add_u32 v{vW}, s{sM04}, v{vL16}\nv_mul_u32_u24 v{T+2}, 896, v{vT_}\nv_lshl_add_u32 v{T+2}, v{vHH}, 4, v{T+2}")
    for u in range(1, 4):
        for i in range(4): a.lg(f"ds_write_b128 v{vW}, v[{ACC+16*u+4*i}:{ACC+16*u+4*i+3}] offset:{(u-1)*4096 + 1024*i}")
    a.wait_all(vm=False); a("s_barrier")
    stamp("b4_rbar")
    tk = []
    for u in range(1, 4):
        a(f"s_xor_b32 s{sT0}, s{sW}, {u}\ns_mul_i32 s{sT0}, s{sT0}, {NZ*2048}\nv_add_u32 v{vR}, s{sT0}, v{vL16}")
        tk.append([a.lg(f"ds_read_b128 v[{ACC+16*u+4*i}:{ACC+16*u+4*i+3}], v{vR} offset:{(u-1)*4096 + 1024*i}") for i in range(4)])
    for u in range(1, 4):
        a.wait(lg=tk[u - 1])
        for i in range(0, 16, 2): a(f"v_pk_add_f32 v[{ACC+i}:{ACC+i+1}], v[{ACC+i}:{ACC+i+1}], v[{ACC+16*u+i}:{ACC+16*u+i+1}]")
    PK = GF
    cvt16(PK, ACC)
    for p in range(2):
        a(f"v_permlane32_swap_b32 v{PK+4*p}, v{PK+4*p+2}\nv_permlane32_swap_b32 v{PK+4*p+1}, v{PK+4*p+3}")
        a.vm(f"buffer_store_dwordx4 v[{PK+4*p}:{PK+4*p+3}], v{T+2}, s[{sOUT}:{sOUT+3}], s{sOUTD} offen offset:{32*p}" + ["", " sc1", " nt", " sc0 sc1"][OPT["outsc"]])
    stamp("b4_end"); stamp_flush()

HEAD = f"""; parallel sum of an attention block and a spatial-shift MLP mixer.  One persistent launch, two workgroups per CU:
; @launch grid=(512,1,1) block=(256,1,1) lds={LDS_BYTES}
.amdgcn_target "amdgcn-amd-amdhsa--gfx950"
.text
.globl {NAME}_kernel
.p2align 8
.type {NAME}_kernel,@function
{NAME}_kernel:
"""
TAIL = f""".section .rodata,"a"
.p2align 6
.amdhsa_kernel {NAME}_kernel
  .amdhsa_next_free_vgpr 256
  .amdhsa_next_free_sgpr 102
  .amdhsa_accum_offset 256
  .amdhsa_group_segment_fixed_size 0
  .amdhsa_kernarg_size 88
  .amdhsa_user_sgpr_count 2
  .amdhsa_user_sgpr_kernarg_segment_ptr 1
  .amdhsa_system_sgpr_workgroup_id_x 1
.end_amdhsa_kernel
"""

def build():
    prologue()
    stage_A1()
    if OPT["noattn"]: stamp_flush(); a("s_endpgm")
    else: stage_A2()
    stage_B0()
    stage_B2()
    stage_B3()
    stage_B4()
    a.label("L_end")
    a("s_endpgm")
    helper()
    a.label("L_code_end")
    a.pad_hazards()
    size, nprom, nnop = fix_straddles(a, HEAD, TAIL, verbose=True)
    print(f"code bytes {size}, hazard nops {a.nops_inserted}, promoted {nprom}, straddle nops {nnop}")
    open(sys.argv[1], "w").write(HEAD + a.text() + TAIL + (("; roles: BA\n" if OPT["swap"] else "") + "; stamps: " + ",".join(stamp_names) + "\n" if OPT["stamps"] else ""))

if __name__ == "__main__":
    build()
```

```python
import sys, math, struct
from asmlib import *

NAME = "parallel_sum__mha_block__mixer_s_mlp__prompt"
OPT = dict(stamps=0, spin=400000, prio_b=1, pf=1, outsc=0, noattn=0, nob=0, nr=4, thr=64, go=15, prio_a1=2, prio_at=2, w2late=1, thra=6, swap=1, anf=1, thr3=6, w3a=0, w3b=3, aprio=1, pad3=0, pad4=0, xp=0, defer=0, w3c=20, l2w3=0, l2w4=0, clr=1, map3=1, split=0, prio_h=1, hwait=1, hthr=6, alate=64, aprio2=1, nrg=8, w4b=0, olead=5, dsw=1, a1s=2, w3t=1, dbgst=0, thr4=64, tw4=16, tw4d=3, tw3=0, wsoff=0, nd=4, nz=10, ng=8, psl=1, w4c=8, early3=1, late0=1, hall=0, fill=0, prio_a2=2)
for a in sys.argv[2:]:
    k, v = a.split("="); OPT[k] = int(v, 0)

def f2u(x): return struct.unpack("<I", struct.pack("<f", x))[0]
def hx(x): return hex(x & 0xffffffff)

S, D, F = 2048, 448, 1792
PL = 32768 + 256
MB_A = 0x00000
MB_H = 0x20000
MB_X = 0x2E000
MB_G = 0x3C000
MB_O = 0x4A000
F_GO = 0x58000
F_CS = 0x5C000
F_AP = 0x60000
OOB = 0x7fff0000
QB_ = 0x80000
KV_ = QB_ + 16 * 64 * 2048
H_ = KV_ + 16 * 64 * 4096
X1 = H_ + 0x1C4000
O_ = X1 + 0x1C4000
G_ = O_ + 0x204000
CS3 = G_ + 0x70E000
ST0 = CS3 + 0x2000
ST1 = ST0 + 0x8000
WS_SIZE = ST1 + 14 * 0x4000
STAMP = 0x1A00000
if OPT['stamps']: WS_SIZE = STAMP + 0x80000
LDS_BYTES = 81920
EPS = 1e-5
QSCALE = (28 ** -0.5) * math.log2(math.e)
GA = -2.0 * math.log2(math.e) * math.sqrt(2.0 / math.pi)
GB = GA * 0.044715

sX, sDBG, sW2, sWA, sWS, sW3, sW4, sWO, sOUT = 28, 32, 36, 40, 44, 48, 52, 56, 60
sF = 28
sNO = 0
sHI = 26
sW, sXCD, sLOC = 64, 65, 66
sONES = 67
sT0, sT1, sT2, sT3, sT4, sT5 = 68, 69, 70, 71, 72, 73
sCNT = 74
sA0 = 75
vTID, vLANE, vT_, vHH, vZERO = 0, 1, 2, 3, 4
vNO = 6
vP0 = 8
vPO = 10
vL16 = 11
vA, vB = 12, 14

a = Asm()
lab = [0]
def newlab(p):
    lab[0] += 1; return f"L_{p}_{lab[0]}"

def srd(dst, ptr, size):
    if dst == sWS and OPT["wsoff"]:
        a(f"s_add_u32 s{dst}, s{ptr}, {OPT['wsoff'] << 20}\ns_addc_u32 s{dst+1}, s{ptr+1}, 0\ns_mov_b32 s{dst+2}, {hx(size)}\ns_mov_b32 s{dst+3}, 0x20000")
        return
    a(f"s_mov_b32 s{dst}, s{ptr}\ns_mov_b32 s{dst+1}, s{ptr+1}\ns_mov_b32 s{dst+2}, {hx(size)}\ns_mov_b32 s{dst+3}, 0x20000")

nstamp = [0]
prev_stamp = [None]
stamp_names = {}
def stamp(name, first=False):
    if not OPT["stamps"]: return
    idx = stamp_names.setdefault(name, len(stamp_names))
    assert idx < 64
    if first: a("v_mov_b32 v5, 0")
    elif prev_stamp[0] is not None: a(f"v_writelane_b32 v5, s100, {prev_stamp[0]}")
    a("s_memrealtime s[100:101]" if OPT["stamps"] == 1 else "s_memtime s[100:101]")
    prev_stamp[0] = idx

def stamp_flush():
    if not OPT["stamps"]: return
    if OPT["dbgst"]:
        L = newlab("dbg")
        role = "a" if prev_stamp[0] in [v for k, v in stamp_names.items() if k.startswith("a")] else "b"
        want = {"a": ["a1_c0", "a1_main", "a1_pub", "a2_poll", "a2_start", "a2_main", "a2_pub"], "b": ["b0_rec", "b2_poll", "b2_pub", "b3_poll", "b3_main", "b4_poll", "b4_end"]}[role]
        if not all(w in stamp_names for w in want) or list(stamp_names)[prev_stamp[0]] != want[-1]: return
        a(f"s_waitcnt lgkmcnt(0)\nv_writelane_b32 v5, s100, {prev_stamp[0]}\ns_and_b32 s100, s2, 255\ns_lshl_b32 s100, s100, 2\ns_add_u32 s100, s100, s{sW}\ns_cmp_lg_u32 s100, {OPT['dbgst']*4}\ns_cbranch_scc1 {L}")
        a(f"v_readlane_b32 s100, v5, 0\ns_mov_b64 exec, 1")
        for i, w in enumerate(want):
            a(f"v_readlane_b32 s101, v5, {stamp_names[w]}\ns_sub_u32 s101, s101, s100\nv_mov_b32 v{vP0}, s101\nbuffer_store_dword v{vP0}, v{vZERO}, s[{sDBG}:{sDBG+3}], 0 offen offset:{8 + 4*i + (28 if role == 'b' else 0)}\ns_nop 1")
        a("s_mov_b64 exec, -1")
        a.label(L)
        return
    a(f"s_waitcnt lgkmcnt(0)\nv_writelane_b32 v5, s100, {prev_stamp[0]}")
    a(f"s_lshl_b32 s100, s2, 2\ns_add_u32 s100, s100, s{sW}\ns_lshl_b32 s100, s100, 8\ns_add_u32 s100, s100, {STAMP}")
    a(f"v_lshlrev_b32 v{vP0}, 2, v{vLANE}\nbuffer_store_dword v5, v{vP0}, s[{sWS}:{sWS+3}], s100 offen")

def get_nonce(loaded=False):
    L = newlab("no"); Dn = newlab("nod"); C = newlab("noc")
    q = list(a.vmq)
    a(f"s_mov_b32 s{sCNT}, {OPT['spin']}")
    if loaded: a(f"s_branch {C}")
    a.label(L)
    a(f"buffer_load_dwordx2 v[{vNO}:{vNO+1}], v{vZERO}, s[{sDBG}:{sDBG+3}], 0 offen sc1\ns_waitcnt vmcnt(0)")
    a.label(C)
    a(f"v_readfirstlane_b32 s{sNO}, v{vNO}\nv_readfirstlane_b32 s{sNO+1}, v{vNO+1}")
    a(f"s_cmp_lg_u32 s{sNO}, 0\ns_cbranch_scc1 {Dn}\ns_sub_u32 s{sCNT}, s{sCNT}, 1\ns_cbranch_scc1 {Dn}\ns_sleep 1\ns_branch {L}")
    a.label(Dn)
    if not loaded: a.vmq = []

def post(vaddrs, barrier=True):
    L = newlab("post")
    if barrier:
        a.wait_all()
        a("s_barrier")
    a(f"s_cmp_lg_u32 s{sW}, 0\ns_cbranch_scc1 {L}")
    for v in vaddrs: a(f"buffer_store_dwordx2 v[{vNO}:{vNO+1}], v{v}, s[{sWS}:{sWS+3}], 0 offen sc1")
    a.label(L)

def lane_div(q, r, src, d, t):
    a(f"v_mul_u32_u24 v{q}, 37, v{src}\nv_lshrrev_b32 v{q}, {8 if d == 7 else 9}, v{q}\nv_mul_u32_u24 v{t}, {d}, v{q}\nv_sub_u32 v{r}, v{src}, v{t}")

def lanes_below(v, n, t):
    a(f"v_mov_b32 v{t}, {hx(OOB)}\nv_cmp_gt_u32 vcc, {n}, v{vLANE}\nv_cndmask_b32 v{v}, v{t}, v{v}, vcc")

def spoll(loads):
    L = newlab("sp"); Dn = newlab("spd")
    a(f"s_mov_b32 s{sCNT}, {OPT['spin']}")
    a.label(L)
    regs = []
    for (d, n, so, imm, used) in loads:
        a(f"s_buffer_load_dwordx{n} s[{d}:{d+n-1}], s[{sWS}:{sWS+3}], s{so} offset:{imm} glc")
        regs += [d + 2 * k for k in range(used)]
    a.wait_all(vm=False)
    for r in regs: a(f"s_xor_b64 s[{r}:{r+1}], s[{r}:{r+1}], s[{sNO}:{sNO+1}]")
    while len(regs) > 1:
        r = regs.pop(); a(f"s_or_b64 s[{regs[0]}:{regs[0]+1}], s[{regs[0]}:{regs[0]+1}], s[{r}:{r+1}]")
    a(f"s_cbranch_scc0 {Dn}\ns_sub_u32 s{sCNT}, s{sCNT}, 1\ns_cbranch_scc1 {Dn}" + ("\ns_sleep 1" if OPT["psl"] else "") + f"\ns_branch {L}")
    a.label(Dn)

def poll(sleep=1):
    L = newlab("po"); Dn = newlab("pod")
    a(f"s_mov_b32 s{sCNT}, {OPT['spin']}")
    a.label(L)
    a(f"buffer_load_dwordx2 v[{vP0}:{vP0+1}], v{vPO}, s[{sWS}:{sWS+3}], 0 offen sc1")
    a.wait_all(lg=False)
    a(f"v_cmp_ne_u64 vcc, v[{vP0}:{vP0+1}], v[{vNO}:{vNO+1}]\ns_cbranch_vccz {Dn}\ns_sub_u32 s{sCNT}, s{sCNT}, 1\ns_cbranch_scc1 {Dn}\ns_sleep {sleep}\ns_branch {L}")
    a.label(Dn)

def publish(sflag, barrier=True):
    L = newlab("pub")
    if barrier:
        a.wait_all()
        a("s_barrier")
    a(f"s_cmp_lg_u32 s{sW}, 0\ns_cbranch_scc1 {L}\ns_mov_b64 exec, 1")
    a(f"buffer_store_dwordx2 v[{vNO}:{vNO+1}], v{vZERO}, s[{sWS}:{sWS+3}], s{sflag} offen sc1")
    a("s_mov_b64 exec, -1")
    a.label(L)
    a.flag_pending = True

def xhalf_add(v, t1, t2):
    a(f"v_mov_b32 v{t1}, v{v}\nv_mov_b32 v{t2}, v{v}\nv_permlane32_swap_b32 v{t1}, v{t2}\nv_add_f32 v{v}, v{t1}, v{t2}")

def ln_stats(vsum, vsq, t):
    a(f"v_mul_f32 v{vsum}, {hx(f2u(1.0/D))}, v{vsum}\nv_mul_f32 v{vsq}, {hx(f2u(1.0/D))}, v{vsq}")
    a(f"v_fma_f32 v{vsq}, -v{vsum}, v{vsum}, v{vsq}\nv_max_f32 v{vsq}, 0, v{vsq}")

def scale16(acc):
    for i in range(0, 16, 2):
        a(f"v_pk_mul_f32 v[{acc+i}:{acc+i+1}], v[{acc+i}:{acc+i+1}], v[{vA}:{vA+1}] op_sel_hi:[1,0]")
def shift16(acc, cs):
    for i in range(0, 16, 2):
        a(f"v_pk_fma_f32 v[{acc+i}:{acc+i+1}], v[{cs+i}:{cs+i+1}], v[{vB}:{vB+1}], v[{acc+i}:{acc+i+1}] op_sel_hi:[1,0,1]")

def gelu_consts(vC, va):
    a(f"v_mul_f32 v{vC}, {hx(f2u(GA))}, v{va}\nv_mul_f32 v{vC+2}, v{va}, v{va}\nv_rcp_f32 v{vC+4}, v{va}\nv_mul_f32 v{vC+2}, v{vC+2}, v{va}\nv_mul_f32 v{vC+2}, {hx(f2u(GB))}, v{vC+2}")

def gelu16(y, t, vC, hook=lambda: None):
    for i in range(0, 16, 2):
        a(f"v_pk_mul_f32 v[{t+i}:{t+i+1}], v[{y+i}:{y+i+1}], v[{y+i}:{y+i+1}]")
    for i in range(0, 16, 2):
        a(f"v_pk_fma_f32 v[{t+i}:{t+i+1}], v[{t+i}:{t+i+1}], v[{vC+2}:{vC+3}], v[{vC}:{vC+1}] op_sel_hi:[1,0,0]")
    hook()
    for i in range(0, 16, 2):
        a(f"v_pk_mul_f32 v[{t+i}:{t+i+1}], v[{t+i}:{t+i+1}], v[{y+i}:{y+i+1}]")
    for i in range(16):
        a(f"v_exp_f32 v{t+i}, v{t+i}")
        if i == 7: hook()
    for i in range(0, 16, 2):
        a(f"v_pk_fma_f32 v[{t+i}:{t+i+1}], v[{t+i}:{t+i+1}], v[{vC+4}:{vC+5}], v[{vC+4}:{vC+5}] op_sel_hi:[1,0,0]")
    hook()
    for i in range(16):
        a(f"v_rcp_f32 v{t+i}, v{t+i}")
        if i == 9: hook()
    for i in range(0, 16, 2):
        a(f"v_pk_mul_f32 v[{y+i}:{y+i+1}], v[{y+i}:{y+i+1}], v[{t+i}:{t+i+1}]")
    hook()

class Deferred:
    def __init__(self): self.groups = []
    def __enter__(self):
        self.orig = Asm.__call__; d = self
        def cap(asm, text):
            n = len(asm.ins); d.orig(asm, text); d.groups.append(asm.ins[n:]); del asm.ins[n:]
        Asm.__call__ = cap; return self
    def __exit__(self, *e): Asm.__call__ = self.orig
    def drip(self, ninstr):
        while self.groups and ninstr > 0:
            g = self.groups.pop(0); a.ins.extend(g); ninstr -= len(g)
    def flush(self): self.drip(1 << 30)

def cvt16(pk, y):
    for i in range(8): a(f"v_cvt_pk_bf16_f32 v{pk+i}, v{y+2*i}, v{y+2*i+1}")

PAD = [0]
def mfma(d, A, B, first=False):
    if PAD[0] > 0: a(f"s_nop {PAD[0]-1}")
    elif PAD[0] < 0:
        n = 0
        for i in reversed(a.ins):
            if i.kind == "mfma": break
            if not i.is_label: n += i.states * (OPT["dsw"] if i.kind in ("ds", "vmem", "dma") else 1)
            if n >= -PAD[0]: break
        if n < -PAD[0]: a(f"s_nop {-PAD[0]-n-1}")
    c = "0" if first else f"v[{d}:{d+15}]"
    a(f"v_mfma_f32_32x32x16_bf16 v[{d}:{d+15}], v[{A}:{A+3}], v[{B}:{B+3}], {c}")

def interleave(main, fill):
    n = len(main); k = 0
    for i, m in enumerate(main):
        m()
        upto = (len(fill) * (i + 1) + n - 1) // n
        while k < upto: fill[k](); k += 1

def rot7(dst, rot, n=7):
    for c in range(n):
        a(f"s_add_u32 s{dst+c}, s{rot}, {c}\ns_sub_u32 s{sT5}, s{dst+c}, 7\ns_cselect_b32 s{dst+c}, s{dst+c}, s{sT5}")


def prologue():
    a("s_cmp_ge_u32 s2, 512\ns_cbranch_scc1 L_end")
    a("s_load_dwordx16 s[4:19], s[0:1], 0\ns_load_dwordx4 s[20:23], s[0:1], 64\ns_load_dwordx2 s[24:25], s[0:1], 80")
    a(f"s_memrealtime s[{sTAG}:{sTAG+1}]")
    a(f"v_lshrrev_b32 v8, 6, v0\nv_and_b32 v{vLANE}, 63, v0\nv_readfirstlane_b32 s{sW}, v8")
    a(f"v_and_b32 v{vT_}, 31, v0\nv_bfe_u32 v{vHH}, v0, 5, 1\nv_mov_b32 v{vZERO}, 0\nv_lshlrev_b32 v{vL16}, 4, v{vLANE}")
    a(f"s_mov_b32 s{sHI}, 0\ns_mov_b32 s{sHI+1}, -1\ns_mov_b32 s{sONES}, 0x3f803f80")
    a(f"s_and_b32 s{sXCD}, s2, 7\ns_bfe_u32 s{sLOC}, s2, {(5 << 16) | 3}")
    stamp("entry", first=True)
    a(f"s_or_b32 s{sT4}, s2, s{sW}\ns_cmp_lg_u32 s{sT4}, 0\ns_cbranch_scc1 L_notag\ns_waitcnt lgkmcnt(0)")
    srd(sDBG, 22, 256)
    a(f"s_or_b32 s{sTAG}, s{sTAG}, 1\nv_mov_b32 v{vNO}, s{sTAG}\nv_mov_b32 v{vNO+1}, s{sTAG+1}\ns_mov_b64 exec, 1")
    a(f"buffer_store_dwordx2 v[{vNO}:{vNO+1}], v{vZERO}, s[{sDBG}:{sDBG+3}], 0 offen sc1\ns_mov_b64 exec, -1")
    a.label("L_notag")
    a("s_cmp_ge_u32 s2, 256\n" + ("s_cbranch_scc0" if OPT["swap"] else "s_cbranch_scc1") + " L_roleB")

def make_sel(dst, t):
    a(f"v_bfe_u32 v{t}, v{vLANE}, 2, 1\nv_bfe_u32 v{t+1}, v{vLANE}, 4, 1\nv_cmp_eq_u32 vcc, v{t}, v{t+1}\nv_mov_b32 v{t}, s{sONES}\ns_nop 0\n"
      + "\n".join(f"v_cndmask_b32 v{dst+i}, 0, v{t}, vcc" for i in range(4)))

def mfma_sum(d, sel, B, first):
    c = "0" if first else f"v[{d}:{d+3}]"
    a(f"v_mfma_f32_16x16x32_bf16 v[{d}:{d+3}], v[{sel}:{sel+3}], v[{B}:{B+3}], {c}")

def check_record(REC, voff, soff, loaded=True):
    L = newlab("rec"); Dn = newlab("recd"); C = newlab("recc")
    a(f"s_mov_b32 s{sCNT}, {OPT['spin']}")
    if loaded: a(f"s_branch {C}")
    a.label(L)
    a(f"buffer_load_dwordx4 v[{REC}:{REC+3}], v{voff}, s[{sWS}:{sWS+3}], s{soff} offen sc1\ns_waitcnt vmcnt(0)")
    a.label(C)
    a(f"v_cmp_ne_u32 vcc, v{REC+1}, v{vNO}\nv_cmp_ne_u32 s[{sT2}:{sT3}], v{REC+3}, v{vNO}\ns_or_b64 vcc, vcc, s[{sT2}:{sT3}]")
    a(f"v_cmp_eq_u32 s[{sT2}:{sT3}], 0, v{vNO}\ns_or_b64 vcc, vcc, s[{sT2}:{sT3}]\ns_cbranch_vccz {Dn}")
    a(f"s_sub_u32 s{sCNT}, s{sCNT}, 1\ns_cbranch_scc1 {Dn}\ns_sleep 1\ns_branch {L}")
    a.label(Dn)
    if not loaded: a.vmq = []

def addr_xdma(dst, nq, t):
    for q in range(nq):
        a(f"v_lshrrev_b32 v{t}, 3, v{vLANE}\nv_add_u32 v{t}, {8*q}, v{t}")
        a(f"v_bfe_u32 v{t+1}, v{t}, 1, 3\nv_and_b32 v{t+2}, 7, v{vLANE}\nv_xor_b32 v{t+1}, v{t+1}, v{t+2}")
        a(f"v_mul_u32_u24 v{t}, 896, v{t}\nv_lshl_add_u32 v{t}, v{t+1}, 4, v{t}\nv_subrev_u32 v{dst+q}, {1024*q}, v{t}")

def addr_wdma128(dst, t):
    a(f"v_lshrrev_b32 v{t}, 3, v{vLANE}\nv_bfe_u32 v{t+1}, v{vLANE}, 4, 1\nv_lshlrev_b32 v{t+1}, 2, v{t+1}")
    a(f"v_and_b32 v{t+2}, 7, v{vLANE}\nv_xor_b32 v{t+1}, v{t+1}, v{t+2}")
    a(f"v_mul_u32_u24 v{t}, 896, v{t}\nv_lshl_add_u32 v{dst}, v{t+1}, 4, v{t}\nv_add_u32 v{dst+1}, {8*896-1024}, v{dst}")

def addr_wdma256(dst, sstride, t, mask=False):
    a(f"v_lshrrev_b32 v{t}, 4, v{vLANE}\nv_lshlrev_b32 v{t+1}, 2, v{t}\nv_sub_u32 v{t+1}, v{vLANE}, v{t+1}\nv_and_b32 v{t+1}, 15, v{t+1}")
    a(f"v_mul_u32_u24 v{t}, s{sstride}, v{t}\nv_lshl_add_u32 v{dst}, v{t+1}, 4, v{t}")
    if mask: a(f"v_mov_b32 v{t}, 0x7fff0000\nv_cmp_gt_u32 vcc, 14, v{t+1}\nv_cndmask_b32 v{dst}, v{t}, v{dst}, vcc")
    a(f"s_lshl_b32 s{sT5}, s{sstride}, 2\ns_sub_u32 s{sT5}, s{sT5}, 1024")
    for q in range(1, 4): a(f"v_add_u32 v{dst+q}, s{sT5}, v{dst+q-1}")

def addr_xrd(dst, sbase, t):
    a(f"v_bfe_u32 v{t}, v{vT_}, 1, 3\nv_xor_b32 v{t}, v{t}, v{vHH}\nv_lshlrev_b32 v{t}, 4, v{t}\nv_lshl_add_u32 v{t}, v{vT_}, 7, v{t}")
    for ks in range(4):
        a(f"v_xor_b32 v{dst+ks}, {32*ks}, v{t}\nv_add_u32 v{dst+ks}, s{sbase}, v{dst+ks}")

def lane_rcg(t):
    a(f"v_bfe_u32 v{t}, v{vLANE}, 2, 2\nv_and_b32 v{t+1}, 3, v{vLANE}\nv_lshlrev_b32 v{t+1}, 3, v{t+1}")
    a(f"v_bfe_u32 v{t+2}, v{vLANE}, 4, 1\nv_lshl_add_u32 v{t+1}, v{t+2}, 5, v{t+1}")

def addr_wrd256(dst, cs, t):
    lane_rcg(t)
    a(f"v_lshl_add_u32 v{t+1}, v{t}, 6, v{t+1}")
    a(f"v_lshl_add_u32 v{t}, v{vHH}, 3, v{t}\nv_lshlrev_b32 v{t}, 8, v{t}")
    for u in range(4):
        a(f"s_add_u32 s{sT0}, s{sW}, {u}\ns_and_b32 s{sT0}, s{sT0}, 3\ns_mul_i32 s{sT0}, s{sT0}, {cs}")
        a(f"v_add_u32 v{dst+u}, s{sT0}, v{t+1}\nv_and_b32 v{dst+u}, 255, v{dst+u}\nv_add_u32 v{dst+u}, v{dst+u}, v{t}")

def addr_wrd128(dst, hhmul, scol, sbase, t):
    lane_rcg(t)
    a(f"v_lshrrev_b32 v{t+2}, 1, v{t}\nv_xor_b32 v{t+2}, s{scol}, v{t+2}\nv_lshl_add_u32 v{t+1}, v{t+2}, 6, v{t+1}")
    a(f"v_mad_u32_u24 v{t}, v{vHH}, {hhmul}, v{t}\nv_lshl_add_u32 v{dst}, v{t}, 7, v{t+1}")
    if sbase is not None: a(f"v_add_u32 v{dst}, s{sbase}, v{dst}")

def set_m0(expr_sgpr, add):
    a(f"s_add_u32 m0, s{expr_sgpr}, {add}" if add else f"s_mov_b32 m0, s{expr_sgpr}")


def panel_mainloop(name, ACC, WF, vWrd, nslot, xfrag, issue_w, wtok, hooks, SEL, CS4, defer=None, stream=()):
    rd = {}
    hi = [False]
    pre = set(range(nslot)); stream = list(stream)
    def wreads(s):
        c, ks = divmod(s, 4); slot = c % nslot
        base = slot * 16384 + ks * 4096
        if slot == 4 and not hi[0]:
            for u in range(4): a(f"v_add_u32 v{vWrd+u}, 0x10000, v{vWrd+u}")
            hi[0] = True
        if slot != 4 and hi[0]:
            for u in range(4): a(f"v_subrev_u32 v{vWrd+u}, 0x10000, v{vWrd+u}")
            hi[0] = False
        if slot == 4: base -= 65536
        toks = []; rd[s] = toks; th = []
        for u in range(2 if OPT["xp"] & 8 else 4):
            for jj in range(2):
                r = WF + (s & 1) * 16 + u * 4 + jj * 2
                th.append(lambda r=r, u=u, jj=jj: toks.append(a.lg(f"ds_read_b64_tr_b16 v[{r}:{r+1}], v{vWrd+u} offset:{base + jj*1024}")))
        return th
    hooks["before_barrier"](0)
    a.wait(vm=wtok[0]); a("s_barrier")
    stamp(name + "_c0")
    for t in hooks["after_barrier"](0) + wreads(0): t()
    for s in range(28):
        c, ks = divmod(s, 4)
        a.wait(lg=rd[s] + hooks["lg_need"](s), vm=hooks["vm_need"](s))
        reads = []; late = []
        if ks == 3 and c < 6:
            hooks["before_barrier"](c + 1)
            a.wait(vm=wtok[c + 1]); a("s_barrier")
            if c in (1, 3, 5): stamp(name + f"_c{c+1}")
            reads += hooks["after_barrier"](c + 1)
        if s < 27: reads += wreads(s + 1)
        for cc, qs in ((c + nslot, (0, 1)) if ks == 3 else (c - 1 + nslot, (2, 3)) if ks == 0 and c > 0 else (99, ()),):
            if cc <= 6 and cc not in pre:
                for q in qs: late.append(lambda cc=cc, q=q: wtok.setdefault(cc, []).extend(issue_w(cc, (q,))))
        for k in range(2):
            if stream: late.append(stream.pop(0))
        late += hooks["kstep"](s)
        xf = xfrag(s); w = WF + (s & 1) * 16
        h = (len(reads) + 1) // 2
        mfma(ACC, w, xf, first=(s == 0))
        for t in reads[:h]: t()
        mfma(ACC + 16, w + 4, xf, first=(s == 0))
        for t in reads[h:]: t()
        h = (len(late) + 1) // 2
        mfma(ACC + 32, w + 8, xf, first=(s == 0))
        for t in late[:h]: t()
        if defer: defer.drip(3)
        mfma(ACC + 48, w + 12, xf, first=(s == 0))
        for t in late[h:]: t()
        if defer: defer.drip(3)
        if SEL is not None and not (OPT["xp"] & 4 and s > 0): mfma_sum(CS4, SEL, w, s == 0)
    if defer: defer.flush()

def addr_cs(vCW, vCA, csbase):
    a(f"s_lshl_b32 s{sT0}, s{sW}, 7\ns_add_u32 s{sT0}, s{sT0}, {csbase}\nv_lshl_add_u32 v{vCW}, v{vT_}, 2, s{sT0}")
    for u in range(4):
        a(f"s_add_u32 s{sT0}, s{sW}, {u}\ns_and_b32 s{sT0}, s{sT0}, 3\ns_lshl_b32 s{sT0}, s{sT0}, 7\ns_add_u32 s{sT0}, s{sT0}, {csbase}\nv_lshl_add_u32 v{vCA+u}, v{vHH}, 4, s{sT0}")

def read_cs(dst, vaddr):
    return [a.lg(f"ds_read_b128 v[{dst+4*i}:{dst+4*i+3}], v{vaddr} offset:{32*i}") for i in range(4)]

sTAG = 98
def stage_A1():
    a.comment("==== A1: 128 rows x 112 columns of LN(x) @ [wq | wk | wv | w1]")
    if OPT["prio_a1"]: a(f"s_setprio {OPT['prio_a1']}")
    ACC, XF, WF = 16, 80, 112
    vWd, vXd, vXr, vWr = 144, 148, 152, 156
    SEL, CS4, REC, vCA, vVw, vVr, vPA, vPB, vSt, vCW, vM0, vM1, vRo = 160, 164, 168, 172, 176, 180, 182, 183, 184, 185, 186, 187, 188
    T = 190
    GT, PK = 200, 216
    sRB, sCG, sROT = sA0, sA0 + 1, sA0 + 2
    sKC = sA0 + 3
    sWO_ = sA0 + 10
    sM0W, sM0X, sTY, sHQ, sSTR, sCST = sA0 + 17, sA0 + 18, sA0 + 19, sA0 + 20, sA0 + 21, sA0 + 22
    sD0, sD1, sFL, sRO, sSC, sGO, sG = 4, 8, 12, 13, 14, 15, 16
    a(f"s_lshr_b32 s{sT0}, s{sLOC}, 3\ns_lshr_b32 s{sT2}, s{sXCD}, 1\ns_lshl_b32 s{sT2}, s{sT2}, 2\ns_add_u32 s{sRB}, s{sT2}, s{sT0}")
    a(f"s_and_b32 s{sT2}, s{sXCD}, 1\ns_lshl_b32 s{sT2}, s{sT2}, 3\ns_and_b32 s{sT1}, s{sLOC}, 7\ns_add_u32 s{sCG}, s{sT2}, s{sT1}")
    a(f"s_lshr_b32 s{sTY}, s{sCG}, 2\ns_and_b32 s{sHQ}, s{sCG}, 3")
    a(f"s_cmp_eq_u32 s{sTY}, 3\ns_movk_i32 s{sSTR}, 2688\ns_cselect_b32 s{sSTR}, 896, s{sSTR}\ns_cselect_b32 s{sCST}, 64, 56\ns_cselect_b32 s{sT3}, s{sHQ}, s{sCG}")
    a(f"s_mul_i32 s{sT0}, s{sLOC}, 37\ns_lshr_b32 s{sT0}, s{sT0}, 8\ns_mul_i32 s{sT0}, s{sT0}, 7\ns_sub_u32 s{sROT}, s{sLOC}, s{sT0}")
    a(f"s_lshl_b32 s{sT0}, s{sRB}, 2\ns_add_u32 s{sT0}, s{sT0}, s{sW}\ns_mul_i32 s{sT0}, s{sT0}, {32*896}")
    a(f"s_lshl_b32 s{sT1}, s{sW}, 4\ns_mul_i32 s{sT1}, s{sT1}, s{sSTR}\ns_mul_i32 s{sT2}, s{sT3}, 224\ns_add_u32 s{sT1}, s{sT1}, s{sT2}")
    a(f"s_lshl_b32 s{sT2}, s{sSTR}, 6")
    def chunk_offsets(c):
        a(f"s_add_u32 s{sKC+c}, s{sROT}, {c}\ns_sub_u32 s{sT5}, s{sKC+c}, 7\ns_cselect_b32 s{sKC+c}, s{sKC+c}, s{sT5}")
        a(f"s_mul_i32 s{sWO_+c}, s{sKC+c}, s{sT2}\ns_add_u32 s{sWO_+c}, s{sWO_+c}, s{sT1}")
        a(f"s_lshl_b32 s{sKC+c}, s{sKC+c}, 7\ns_add_u32 s{sKC+c}, s{sKC+c}, s{sT0}")
    for c in range(2): chunk_offsets(c)
    a(f"s_lshl_b32 s{sM0W}, s{sW}, 12\ns_lshl_b32 s{sM0X}, s{sW}, 13\ns_add_u32 s{sM0X}, s{sM0X}, 49152")
    addr_xdma(vXd, 4, T); addr_wdma256(vWd, sSTR, T, mask=True)
    a("s_waitcnt lgkmcnt(0)")
    stamp("a1_karg")
    srd(sX, 4, S * D * 2)
    a(f"s_cmp_eq_u32 s{sTY}, 3\ns_cselect_b32 s{sWA}, s12, s6\ns_cselect_b32 s{sWA+1}, s13, s7\ns_mov_b32 s{sWA+2}, {D*3*D*2}\ns_cselect_b32 s{sWA+2}, {D*D*2}, s{sWA+2}\ns_mov_b32 s{sWA+3}, 0x20000")
    srd(sDBG, 22, 256)
    m0 = [None]
    def issue_x(c, qs=range(4)):
        if m0[0] != ("x", c): set_m0(sM0X, (c & 1) * 4096); m0[0] = ("x", c)
        if OPT["xp"] & 1 and c > 1: return []
        return [a.vm(f"buffer_load_dwordx4 v{vXd+q}, s[{sX}:{sX+3}], s{sKC+c} offen offset:{1024*q} lds") for q in qs]
    def issue_w(c, qs=range(4)):
        if m0[0] != ("w", c): set_m0(sM0W, (c % 3) * 16384); m0[0] = ("w", c)
        if OPT["xp"] & 2 and c > 2: return []
        return [a.vm(f"buffer_load_dwordx4 v{vWd+q}, s[{sWA}:{sWA+3}], s{sWO_+c} offen offset:{1024*q} lds") for q in qs]
    xt = {}; wt = {}
    xt[0] = issue_x(0); wt[0] = issue_w(0)
    for c in range(2, 7): chunk_offsets(c)
    addr_xrd(vXr, sM0X, T)
    if OPT["a1s"] < 2: xt[1] = issue_x(1)
    addr_wrd256(vWr, f"s{sCST}", T)
    make_sel(SEL, T)
    srd(sWS, 24, WS_SIZE)
    CSB = 16384
    with Deferred() as df:
        a(f"s_and_b32 s{sGO}, s2, 255\ns_lshl_b32 s{sGO}, s{sGO}, 6\ns_add_u32 s{sGO}, s{sGO}, {F_GO}")
        a(f"s_lshl_b32 s{sT0}, s{sRB}, 2\ns_add_u32 s{sT4}, s{sT0}, s{sW}\ns_lshl_b32 s{sRO}, s{sT4}, 9\ns_add_u32 s{sRO}, s{sRO}, {ST0}")
        a(f"v_lshlrev_b32 v{vRo}, 4, v{vT_}")
        addr_cs(vCW, vCA, CSB)
        a(f"s_lshl_b32 s{sT0}, s{sHQ}, 15\ns_lshl_b32 s{sT1}, s{sRB}, 9\ns_add_u32 s{sT1}, s{sT1}, s{sT0}")
        a(f"v_lshrrev_b32 v{T}, 2, v{vLANE}\nv_lshlrev_b32 v{T}, 13, v{T}\nv_and_b32 v{T+1}, 3, v{vLANE}\nv_lshl_add_u32 v{T}, v{T+1}, 7, v{T}\nv_add_u32 v{vM1}, s{sT1}, v{T}")
        lanes_below(vM1, 16, T)
        a(f"s_lshr_b32 s{sT1}, s{sRB}, 2\ns_lshl_b32 s{sT1}, s{sT1}, 7\ns_add_u32 s{sT0}, s{sT0}, s{sT1}\ns_and_b32 s{sT1}, s{sRB}, 3\ns_lshl_b32 s{sT2}, s{sTY}, 2\ns_add_u32 s{sT1}, s{sT1}, s{sT2}")
        a(f"s_sub_u32 s{sT1}, s{sT1}, 2\ns_lshl_b32 s{sT1}, s{sT1}, 3\ns_add_u32 s{sT0}, s{sT0}, s{sT1}\nv_lshl_add_u32 v{vM0}, v{vLANE}, 9, s{sT0}")
        a(f"s_cmp_eq_u32 s{sTY}, 0\ns_cselect_b64 vcc, -1, 0\nv_cndmask_b32 v{vM0}, v{vM0}, v{vM1}, vcc")
        lane_div(T, T + 1, vLANE, 14, T + 2)
        a(f"s_lshl_b32 s{sT0}, s{sRB}, 1\ns_sub_u32 s{sT0}, s{sT0}, 1\nv_add_u32 v{T+2}, s{sT0}, v{T}\nv_max_i32 v{T+2}, 0, v{T+2}\nv_min_i32 v{T+2}, 31, v{T+2}")
        a(f"v_mul_u32_u24 v{T+2}, 14, v{T+2}\nv_add_u32 v{T+2}, v{T+2}, v{T+1}\nv_lshlrev_b32 v{T+2}, 7, v{T+2}")
        a(f"v_add_u32 v{T}, 1, v{T}\nv_bfe_u32 v{T}, v{T}, 1, 1\nv_xor_b32 v{T}, 1, v{T}\nv_lshl_add_u32 v{T+2}, v{T}, 3, v{T+2}")
        a(f"s_lshr_b32 s{sT0}, s{sHQ}, 1\ns_lshl_b32 s{sT0}, s{sT0}, 6\ns_and_b32 s{sT1}, s{sHQ}, 1\ns_lshl_b32 s{sT1}, s{sT1}, 4\ns_add_u32 s{sT0}, s{sT0}, s{sT1}\ns_add_u32 s{sT0}, s{sT0}, {MB_H}\nv_add_u32 v{T+2}, s{sT0}, v{T+2}")
        lanes_below(T + 2, 56, T)
        a(f"s_cmp_eq_u32 s{sTY}, 3\ns_cselect_b64 vcc, -1, 0\nv_cndmask_b32 v{vM0}, v{vM0}, v{T+2}, vcc")
        a(f"s_cmp_eq_u32 s{sTY}, 1\ns_cselect_b32 s{sT0}, 8, {hx(OOB)}\nv_add_u32 v{vM1}, s{sT0}, v{vM1}")
        a(f"s_and_b32 s{sT0}, s2, 255\ns_lshl_b32 s{sT0}, s{sT0}, 6\ns_add_u32 s{sT0}, s{sT0}, {F_AP}\nv_mov_b32 v{T}, s{sT0}\nv_cmp_eq_u32 vcc, 16, v{vLANE}\ns_nop 1\nv_cndmask_b32 v{vM1}, v{vM1}, v{T}, vcc")
        a(f"s_lshl_b32 s{sT1}, s{sHQ}, 8\ns_add_u32 s{sT0}, s{sT4}, s{sT1}\ns_cmp_eq_u32 s{sTY}, 0\ns_cselect_b32 s{sSC}, 11, 12\ns_mov_b32 s{sT2}, {KV_ - 2048}\ns_cselect_b32 s{sT2}, {QB_}, s{sT2}")
        a(f"s_lshl_b32 s{sT0}, s{sT0}, s{sSC}\ns_lshl_b32 s{sT1}, s{sTY}, 11\ns_add_u32 s{sT0}, s{sT0}, s{sT1}\ns_add_u32 s{sT0}, s{sT0}, s{sT2}")
        a(f"s_lshl_b32 s{sT4}, s{sT4}, 9\ns_mul_i32 s{sT1}, s{sHQ}, {14*PL}\ns_add_u32 s{sT4}, s{sT4}, s{sT1}\ns_add_u32 s{sT4}, s{sT4}, {H_}")
        a(f"s_lshl_b32 s{sT1}, 64, s{sSC}\ns_movk_i32 s{sT2}, 1024\ns_movk_i32 s{sT3}, 512")
        a(f"s_cmp_eq_u32 s{sTY}, 3\ns_cselect_b32 s{sT0}, s{sT4}, s{sT0}\ns_cselect_b32 s{sT1}, {4*PL}, s{sT1}\ns_cselect_b32 s{sT2}, {2*PL}, s{sT2}\ns_cselect_b32 s{sT3}, {PL}, s{sT3}")
        a(f"v_mul_u32_u24 v{vSt}, s{sT3}, v{vHH}\nv_lshl_add_u32 v{vSt}, v{vT_}, 4, v{vSt}")
        for u in range(4):
            a(f"s_add_u32 s{sT3}, s{sW}, {u}\ns_and_b32 s{sT3}, s{sT3}, 3\ns_mul_i32 s{sD0+u}, s{sT3}, s{sT1}\ns_add_u32 s{sD0+u}, s{sD0+u}, s{sT0}")
            a(f"s_add_u32 s{sD1+u}, s{sD0+u}, s{sT2}\ns_lshl_b32 s{sT4}, s{sTY}, 2\ns_or_b32 s{sT3}, s{sT3}, s{sT4}")
            a(f"s_cmp_eq_u32 s{sT3}, 15\ns_cselect_b32 s{sD1+u}, 0x7fff0000, s{sD1+u}")
        a(f"s_cmp_eq_u32 s{sTY}, 1\ns_cselect_b32 s{sT1}, 0x3f803f80, 0\ns_cselect_b32 s{sT2}, 0x3f80, 0")
        a(f"s_cmp_eq_u32 s{sTY}, 2\ns_cselect_b32 s{sT1}, 0x3f80, s{sT1}")
        a(f"v_mov_b32 v{vPA}, s{sT1}\nv_mov_b32 v{vPB}, s{sT2}")
        a(f"s_cmp_eq_u32 s{sTY}, 0\ns_cselect_b32 s{sSC}, {hx(f2u(QSCALE))}, 1.0")
        a(f"v_bfe_u32 v{T}, v{vT_}, 1, 3\nv_xor_b32 v{T}, v{T}, v{vHH}\nv_lshlrev_b32 v{T}, 3, v{T}\nv_lshl_add_u32 v{T}, v{vT_}, 6, v{T}")
        for i in range(4): a(f"v_xor_b32 v{vVw+i}, {16*i}, v{T}\nv_add_u32 v{vVw+i}, s{sM0X}, v{vVw+i}")
        lane_rcg(T)
        for jj in range(2):
            a(f"v_lshl_add_u32 v{T+2}, v{vHH}, 2, v{T}\nv_add_u32 v{T+2}, {8*jj}, v{T+2}")
            a(f"v_bfe_u32 v{T+3}, v{T+2}, 1, 3\nv_lshlrev_b32 v{T+3}, 3, v{T+3}\nv_xor_b32 v{T+3}, v{T+3}, v{T+1}")
            a(f"v_lshl_add_u32 v{vVr+jj}, v{T+2}, 6, v{T+3}\nv_add_u32 v{vVr+jj}, s{sM0X}, v{vVr+jj}")
    if not OPT["defer"]: df.drip(70 if OPT["a1s"] < 2 else 999)
    if OPT["a1s"] >= 2: xt[1] = issue_x(1)
    wt[1] = issue_w(1)
    if not OPT["defer"]: df.flush()
    st1 = []
    if OPT["a1s"]: st1 = [lambda q=q: wt.setdefault(2, []).extend(issue_w(2, (q,))) for q in range(4)]
    else: wt[2] = issue_w(2)
    stamp("a1_issued")
    xr = {}; rec = []
    def go():
        a.wait(vm=rec[0]); get_nonce(loaded=True)
        publish(sGO, barrier=False)
    def after_barrier(c):
        xr[c] = []
        return [lambda ks=ks: xr[c].append(a.lg(f"ds_read_b128 v[{XF+(c&1)*16+4*ks}:{XF+(c&1)*16+4*ks+3}], v{vXr+ks} offset:{(c&1)*4096}")) for ks in range(4)]
    def kstep(s):
        th = []
        c, ks = divmod(s, 4)
        if ks in (1, 2) and c + 2 <= 6:
            for q in (2 * ks - 2, 2 * ks - 1): th.append(lambda q=q: xt.setdefault(c + 2, []).extend(issue_x(c + 2, (q,))))
        if s == OPT["go"] - 5: th.append(lambda: rec.append(a.vm(f"buffer_load_dwordx2 v[{vNO}:{vNO+1}], v{vZERO}, s[{sDBG}:{sDBG+3}], 0 offen sc1")))
        if s == OPT["go"]: th.append(go)
        if s == 22: th.append(lambda: rec.append(a.vm(f"buffer_load_dwordx4 v[{REC}:{REC+3}], v{vRo}, s[{sWS}:{sWS+3}], s{sRO} offen sc1")))
        return th
    hooks = dict(before_barrier=lambda c: a.wait(vm=xt[c]), after_barrier=after_barrier,
                 lg_need=lambda s: xr[s // 4] if s % 4 == 0 else [], vm_need=lambda s: [], kstep=kstep)
    panel_mainloop("a1", ACC, WF, vWr, 3, lambda s: XF + ((s // 4) & 1) * 16 + 4 * (s % 4), issue_w, wt, hooks, SEL, CS4, df, stream=st1)
    stamp("a1_main")
    a.wait(vm=rec)
    check_record(REC, vRo, sRO)
    a.lg(f"ds_write_b32 v{vCW}, v{CS4}")
    a(f"v_mul_f32 v{T}, v{REC+2}, v{REC+2}\nv_mov_b32 v{T+1}, {hx(f2u(1.0 + EPS))}\nv_mov_b32 v{T+2}, {hx(f2u(-EPS))}\nv_fma_f32 v{T}, v{T}, v{T+2}, v{T+1}\nv_rsq_f32 v{T}, v{T}")
    a(f"s_cmp_eq_u32 s{sTY}, 3\ns_cselect_b64 vcc, -1, 0\nv_mov_b32 v{T+1}, s{sSC}\nv_cndmask_b32 v{T}, v{T+1}, v{T}, vcc")
    a(f"v_mul_f32 v{vA}, v{T}, v{REC+2}\nv_mul_f32 v{vB}, v{vA}, v{REC}\nv_sub_f32 v{vB}, 0, v{vB}")
    a.wait_all(vm=False); a("s_barrier")
    stamp("a1_csbar")
    CS = 80
    toks = [read_cs(CS + 16 * u, vCA + u) for u in range(3)]
    a(f"s_cmp_eq_u32 s{sTY}, 3\ns_cbranch_scc1 L_A1_nosc")
    for u in range(4): scale16(ACC + 16 * u)
    a.label("L_A1_nosc")
    a.wait(lg=toks[0])
    toks.append(read_cs(CS + 48, vCA + 3))
    def store(u, pk):
        a.vm(f"buffer_store_dwordx4 v[{pk}:{pk+3}], v{vSt}, s[{sWS}:{sWS+3}], s{sD0+u} offen sc1")
        a.vm(f"buffer_store_dwordx4 v[{pk+4}:{pk+7}], v{vSt}, s[{sWS}:{sWS+3}], s{sD1+u} offen sc1")
    def pads(pk): a(f"v_cndmask_b32 v{pk+6}, v{pk+6}, v{vPA}, s[{sHI}:{sHI+1}]\nv_cndmask_b32 v{pk+7}, v{pk+7}, v{vPB}, s[{sHI}:{sHI+1}]")
    lgq0 = list(a.lgq); vmq0 = list(a.vmq)
    a(f"s_cmp_eq_u32 s{sTY}, 2\ns_cbranch_scc1 L_A1_v\ns_cmp_eq_u32 s{sTY}, 3\ns_cbranch_scc1 L_A1_w1")
    for u in range(4):
        a.wait(lg=toks[u]); shift16(ACC + 16 * u, CS + 16 * u)
        cvt16(PK + 8 * u, ACC + 16 * u); pads(PK + 8 * u); store(u, PK + 8 * u)
    a("s_branch L_A1_pub")
    a.label("L_A1_v")
    a.lgq = list(lgq0); a.vmq = list(vmq0); tr = {}
    for u in range(4):
        pk = PK + 8 * u
        a.wait(lg=toks[u]); shift16(ACC + 16 * u, CS + 16 * u)
        cvt16(pk, ACC + 16 * u); pads(pk)
        if u == 0: a.wait(lg=toks[3])
        if u > 0: a.wait(lg=tr[u - 1]); store(u - 1, pk - 8)
        for i in range(4): a.lg(f"ds_write_b64 v{vVw+i}, v[{pk+2*i}:{pk+2*i+1}] offset:{2048*u}")
        tr[u] = [a.lg(f"ds_read_b64_tr_b16 v[{pk+4*m+2*jj}:{pk+4*m+2*jj+1}], v{vVr+jj} offset:{2048*u + 1024*m}") for m in range(2) for jj in range(2)]
    a.wait(lg=tr[3]); store(3, PK + 24)
    a("s_branch L_A1_pub")
    a.label("L_A1_w1")
    a.lgq = list(lgq0); a.vmq = list(vmq0)
    gelu_consts(T, vA)
    a(f"v_sub_f32 v{vB}, 0, v{REC}")
    for u in range(4):
        a.wait(lg=toks[u]); shift16(ACC + 16 * u, CS + 16 * u)
        gelu16(ACC + 16 * u, GT, T)
        cvt16(PK + 8 * u, ACC + 16 * u); store(u, PK + 8 * u)
    a.label("L_A1_pub")
    stamp("a1_epi")
    post([vM0, vM1])
    stamp("a1_pub")

def rowmax(dst, s_, first):
    if first: a(f"v_max3_f32 v{dst}, v{s_}, v{s_+1}, v{s_+2}\nv_max_f32 v{dst}, v{dst}, v{s_+3}")
    else: a(f"v_max3_f32 v{dst}, v{dst}, v{s_}, v{s_+1}\nv_max3_f32 v{dst}, v{dst}, v{s_+2}, v{s_+3}")
    for i in range(4, 16, 2): a(f"v_max3_f32 v{dst}, v{dst}, v{s_+i}, v{s_+i+1}")

def stage_A2():
    a.comment("==== A2: attention, 128 queries of one head; wave = 512 keys; slot x holds query tile w^x^3")
    NR = OPT["nr"]
    Q, O, SS, P = 16, 48, 112, 144
    KB = 160; VB = KB + 8 * NR
    T = VB + 8 * NR; MX = 12
    assert T + 16 <= 256
    sH, sQB, sQ0, sK, sV, sK0, sRETRY, sKT0, sOD, sFL, sKVB, sPUB = sA0, sA0+1, sA0+2, sA0+3, sA0+4, sA0+5, sA0+6, sA0+7, sA0+8, sA0+10, sA0+11, sA0+12
    vOo, vW, vR, vKV = 0, 8, 9, 10
    a(f"s_lshr_b32 s{sT0}, s{sLOC}, 4\ns_lshl_b32 s{sH}, s{sXCD}, 1\ns_add_u32 s{sH}, s{sH}, s{sT0}\ns_and_b32 s{sQB}, s{sLOC}, 15")
    sMB = 52
    a(f"s_lshl_b32 s{sT0}, s{sH}, 4\ns_add_u32 s{sT0}, s{sT0}, s{sQB}\ns_lshl_b32 s{sT0}, s{sT0}, 2\ns_add_u32 s{sT0}, s{sT0}, s{sW}\ns_lshl_b32 s{sMB}, s{sT0}, 7")
    a(f"s_lshl_b32 s{sK0}, s{sH}, 18\ns_add_u32 s{sK0}, s{sK0}, {KV_}\ns_lshl_b32 s{sT0}, s{sW}, 16\ns_add_u32 s{sT0}, s{sT0}, s{sK0}\ns_mov_b32 s{sKVB}, s{sT0}\ns_lshl_b32 s{sT0}, s{sQB}, 14\ns_add_u32 s{sK0}, s{sK0}, s{sT0}")
    a(f"s_lshl_b32 s{sQ0}, s{sH}, 17\ns_lshl_b32 s{sT0}, s{sQB}, 13\ns_add_u32 s{sQ0}, s{sQ0}, s{sT0}\ns_add_u32 s{sQ0}, s{sQ0}, {QB_}")
    for kt in range(16): a(f"s_add_u32 s{8+kt}, s{sQB}, {kt}\ns_and_b32 s{8+kt}, s{8+kt}, 15\ns_lshl_b32 s{8+kt}, s{8+kt}, 12")
    a(f"s_mov_b32 s{sRETRY}, 0\ns_mov_b32 s{sPUB}, 0")
    for x in range(4): a(f"s_xor_b32 s{4+x}, s{sW}, {x^3}\ns_lshl_b32 s{4+x}, s{4+x}, 11\ns_add_u32 s{4+x}, s{4+x}, s{sQ0}")
    a(f"v_mul_u32_u24 v{vOo}, {PL}, v{vHH}\nv_lshl_add_u32 v{vOo}, v{vT_}, 4, v{vOo}")
    a(f"s_lshl_b32 s{sT0}, s{sQB}, 2\ns_add_u32 s{sT0}, s{sT0}, s{sW}\ns_lshl_b32 s{sT0}, s{sT0}, 9")
    a(f"s_mul_i32 s{sT1}, s{sH}, {4*PL}\ns_add_u32 s{sT0}, s{sT0}, s{sT1}\ns_add_u32 s{sOD}, s{sT0}, {O_}\ns_add_u32 s{sOD+1}, s{sOD}, {2*PL}")
    a(f"s_lshl_b32 s{sT0}, s{sQB}, 1\ns_lshr_b32 s{sT1}, s{sW}, 1\ns_add_u32 s{sT0}, s{sT0}, s{sT1}\ns_mul_i32 s{sT0}, s{sT0}, {7*256}\ns_lshr_b32 s{sT1}, s{sH}, 2\ns_lshl_b32 s{sT1}, s{sT1}, 6\ns_add_u32 s{sT0}, s{sT0}, s{sT1}")
    a(f"s_and_b32 s{sT1}, s{sH}, 3\ns_lshl_b32 s{sT1}, s{sT1}, 1\ns_and_b32 s{sT2}, s{sW}, 1\ns_add_u32 s{sT1}, s{sT1}, s{sT2}\ns_lshl_b32 s{sT1}, s{sT1}, 3\ns_add_u32 s{sT0}, s{sT0}, s{sT1}\ns_add_u32 s{sFL}, s{sT0}, {MB_O}")
    def ld(dst, soff, imm, vo=vL16): return a.vm(f"buffer_load_dwordx4 v[{dst}:{dst+3}], v{vo}, s[{sWS}:{sWS+3}], s{soff} offen offset:{imm} sc1")
    if OPT["prio_a2"] != OPT["prio_a1"]: a(f"s_setprio {OPT['prio_a2']}")
    spoll([(sF, 16, sMB, MB_A, 8), (48, 4, sMB, MB_A + 64, 2)])
    stamp("a2_poll")
    k0 = [ld(T, sK0, 0), ld(T + 4, sK0, 1024)]
    qt = [[ld(Q + 8 * x, 4 + x, 0), ld(Q + 8 * x + 4, 4 + x, 1024)] for x in range(4)]
    ND = OPT["nd"]
    BL = [(kt, x) for kt in range(16 - ND) for x in range(4)] + [(kt, x) for kt in range(16 - ND, 16) for x in range(3)] + [(kt, 3) for kt in range(16 - ND, 16)]
    first = {kt: min(n for n, b in enumerate(BL) if b[0] == kt) for kt in range(16)}
    last = {kt: max(n for n, b in enumerate(BL) if b[0] == kt) for kt in range(16)}
    lastx = {x: max(n for n, b in enumerate(BL) if b[1] == x) for x in range(4)}
    order = []
    for kt in range(16):
        for kind in "KV":
            for half in range(2):
                need = first[kt] - 2 if kind == "K" else first[kt] + 1
                free = -99 if kt < NR else (last[kt - NR] if kind == "K" else last[kt - NR] + 2)
                order.append((need, kind, kt, half, free))
    order.sort()
    tok = {}
    sKT = 8
    def issue(e):
        need, kind, kt, half, free = e
        if kind == "K": t = ld(KB + 8 * (kt % NR) + 4 * half, sKT + kt, 1024 * half, vKV)
        else: t = ld(VB + 8 * (kt % NR) + 4 * half, sKT + kt, 2048 + 1024 * half, vKV)
        tok.setdefault((kind, kt), []).append(t)
    def bump(e): pass
    NPRE = 6
    def first_loads():
        for e in order[:NPRE]: issue(e); bump(e)
    def kv_start():
        a(f"v_add_u32 v{vKV}, s{sKVB}, v{vL16}")
        first_loads()
        a(f"s_mul_i32 s{sT0}, s{sW}, 12288\nv_add_u32 v{vW}, s{sT0}, v{vL16}")
    kv_start()
    pend = order[NPRE:]
    for x in range(4):
        a.wait(vm=k0 + qt[x])
        s_ = SS + 16 * (x & 1)
        mfma(s_, T, Q + 8 * x, first=True); mfma(s_, T + 4, Q + 8 * x + 4)
        if x > 0: rowmax(MX + x - 1, SS + 16 * ((x - 1) & 1), True)
    rowmax(MX + 3, SS + 16, True)
    stamp("a2_max")
    a.label("L_A2_setmax")
    for x in range(4):
        a(f"v_mov_b32 v{T+x}, v{MX+x}")
    for x in range(4):
        a(f"v_permlane32_swap_b32 v{T+x}, v{MX+x}")
    for x in range(4):
        a(f"v_max_f32 v{MX+x}, v{T+x}, v{MX+x}")
    for x in range(4):
        m = MX + x; t = T + 4 * x
        a(f"v_cvt_pk_bf16_f32 v{t}, -v{m}, -v{m}\nv_and_b32 v{t+1}, 0xffff0000, v{t}\nv_sub_f32 v{t+2}, -v{m}, v{t+1}")
        a(f"v_cvt_pk_bf16_f32 v{t+3}, v{t+2}, v{t+2}\nv_and_b32 v{t+3}, 0xffff0000, v{t+3}\nv_sub_f32 v{t+2}, v{t+2}, v{t+3}")
        a(f"v_and_b32 v{t}, 0xffff, v{t}\nv_or_b32 v{t}, v{t}, v{t+3}\nv_cvt_pk_bf16_f32 v{t+2}, v{t+2}, 0")
        a(f"v_cndmask_b32 v{Q+8*x+6}, v{Q+8*x+6}, v{t}, s[{sHI}:{sHI+1}]\nv_cndmask_b32 v{Q+8*x+7}, v{Q+8*x+7}, v{t+2}, s[{sHI}:{sHI+1}]")
        if x == 0:
            a.wait(vm=tok[("K", 0)])
            mfma(SS, KB, Q, first=True); mfma(SS, KB + 4, Q + 4)
    def QK(n, half):
        kt, x = BL[n]
        mfma(SS + 16 * (n & 1), KB + 8 * (kt % NR) + 4 * half, Q + 8 * x + 4 * half, first=(half == 0))
    def PV(n, half):
        kt, x = BL[n]
        mfma(O + 16 * x, VB + 8 * (kt % NR) + 4 * half, P + 8 * (n & 1) + 4 * half, first=(kt == 0 and half == 0))
    def owrite(x, i): a.lg(f"ds_write_b128 v{vW}, v[{O+16*x+4*i}:{O+16*x+4*i+3}] offset:{x*4096 + 1024*i}")
    tk = []
    def oread(x): tk.append([a.lg(f"ds_read_b128 v[{O+16*x+4*i}:{O+16*x+4*i+3}], v{T+8+x} offset:{x*4096 + 1024*i}") for i in range(4)])
    for x in range(3): a(f"s_xor_b32 s{sT0}, s{sW}, {x^3}\ns_mul_i32 s{sT0}, s{sT0}, 12288\nv_add_u32 v{T+8+x}, s{sT0}, v{vL16}")
    a(f"v_mov_b32 v{T+2}, 49152\nv_mov_b32 v{T+3}, 0")
    a.lg(f"ds_write_b32 v{T+2}, v{T+3}")
    stamp("a2_start")
    if OPT["prio_a1"]: a("s_setprio 0")
    a.hot = True
    for n in range(64):
        if n in (16, 32, 48): stamp(f"a2_b{n}")
        kt, x = BL[n]
        s_ = SS + 16 * (n & 1); p_ = P + 8 * (n & 1)
        e = lambda i: a(f"v_exp_f32 v{s_+i}, v{s_+i}")
        c = lambda i: a(f"v_cvt_pk_bf16_f32 v{p_+i}, v{s_+2*i}, v{s_+2*i+1}")
        sh = [[], [], [], []]
        pre = [[], [], [], []]
        ap = OPT["aprio"] if n < OPT["alate"] else OPT["aprio2"]
        if n == OPT["alate"] and ap == 5: pre[0].append(lambda: a("s_setprio 3"))
        for g in ((0, 2) if n >= OPT['fill'] else (0,)):
            if pend and pend[0][4] <= n:
                ent = pend.pop(0)
                assert ent[0] > n + 1, (ent, n)
                hi = ap == 1 or (ap in (2, 3) and g == 2)
                if hi: pre[g].append(lambda: a("s_setprio 3"))
                sh[g].append(lambda ent=ent: issue(ent))
                if hi: sh[g].append(lambda: a("s_setprio 0"))
                sh[g + 1].append(lambda ent=ent: bump(ent))
        if ap == 2: sh[3].append(lambda: a("s_setprio 3")); sh[1].append(lambda: a("s_setprio 0"))
        if ap == 3: sh[3].append(lambda: a("s_setprio 3")); sh[0].append(lambda: a("s_setprio 0"))
        if ap == 4: sh[3].append(lambda: a("s_setprio 3")); sh[2].append(lambda: a("s_setprio 0"))
        for k2 in range(1, 16):
            if first[k2] - 2 == n: sh[3].append(lambda k2=k2: a.wait(vm=tok[("K", k2)]))
        for k2 in range(16):
            if first[k2] + 1 == n: sh[1].append(lambda k2=k2: a.wait(vm=tok[("V", k2)]))
        for x2 in range(3):
            if n == lastx[x2] + 2:
                for g in range(4): sh[min(g + 1, 3)].append(lambda g=g, x2=x2: owrite(x2, g))
        if ND >= 4 and n == lastx[2] + 3:
            sh[1].append(lambda: (a.wait_all(vm=False), a("s_barrier")))
            sh[2].append(lambda: oread(0)); sh[3].append(lambda: oread(1))
        if ND >= 4 and n == lastx[2] + 4: sh[0].append(lambda: oread(2))
        mm = [(lambda: QK(n + 1, 0)) if n < 63 else None, (lambda: QK(n + 1, 1)) if n < 63 else None,
              (lambda: PV(n - 1, 0)) if n > 0 else None, (lambda: PV(n - 1, 1)) if n > 0 else None]
        seq = [[("e", 0), ("e", 1), ("e", 2), ("e", 3), ("c", 0)],
               [("e", 4), ("e", 5), ("c", 1), ("e", 6), ("e", 7), ("c", 2)],
               [("e", 8), ("e", 9), ("c", 3), ("e", 10), ("e", 11), ("c", 4)],
               [("e", 12), ("e", 13), ("c", 5), ("e", 14), ("e", 15), ("c", 6), ("c", 7)]]
        for g in range(4):
            for t in pre[g]: t()
            if mm[g]: mm[g]()
            for t in sh[g]: t()
            for k, i in seq[g]: (e if k == "e" else c)(i)
    assert not pend
    a.hot = False
    if OPT["prio_at"]: a(f"s_setprio {OPT['prio_at']}")
    PV(63, 0); PV(63, 1)
    stamp("a2_main")
    R = O + 48
    if ND < 4:
        for x2 in range(3):
            if lastx[x2] + 2 > 63:
                for i in range(4): owrite(x2, i)
        a.wait_all(vm=False); a("s_barrier")
        stamp("a2_cbar")
        for x in range(3): oread(x)
    a.wait(lg=tk[1])
    for i in range(0, 16, 2): a(f"v_pk_add_f32 v[{O+i}:{O+i+1}], v[{O+i}:{O+i+1}], v[{O+16+i}:{O+16+i+1}]")
    a.wait(lg=tk[2])
    for i in range(0, 16, 2): a(f"v_pk_add_f32 v[{O+i}:{O+i+1}], v[{O+i}:{O+i+1}], v[{O+32+i}:{O+32+i+1}]")
    for i in range(0, 16, 2): a(f"v_pk_add_f32 v[{R+i}:{R+i+1}], v[{R+i}:{R+i+1}], v[{O+i}:{O+i+1}]")
    a(f"v_mov_b32 v{T+4}, v{R+12}\nv_mov_b32 v{T+5}, v{R+12}\nv_permlane32_swap_b32 v{T+4}, v{T+5}\nv_rcp_f32 v{vA}, v{T+5}")
    scale16(R)
    cvt16(P, R)
    a(f"v_cndmask_b32 v{P+6}, v{P+6}, v{vZERO}, s[{sHI}:{sHI+1}]\nv_cndmask_b32 v{P+7}, v{P+7}, v{vZERO}, s[{sHI}:{sHI+1}]")
    a(f"s_cmp_lg_u32 s{sPUB}, 0\ns_cbranch_scc1 L_A2_done")
    a.vm(f"buffer_store_dwordx4 v[{P}:{P+3}], v{vOo}, s[{sWS}:{sWS+3}], s{sOD} offen sc1")
    a.vm(f"buffer_store_dwordx4 v[{P+4}:{P+7}], v{vOo}, s[{sWS}:{sWS+3}], s{sOD+1} offen sc1")
    a(f"v_pk_mul_f32 v[{T+6}:{T+7}], v[{R}:{R+1}], 0 op_sel_hi:[1,0]")
    for i in range(2, 16, 2): a(f"v_pk_fma_f32 v[{T+6}:{T+7}], v[{R+i}:{R+i+1}], 0, v[{T+6}:{T+7}] op_sel_hi:[1,0,1]")
    a(f"s_mov_b32 s{sT0}, {hx(f2u(2.0**120))}\nv_cmp_nge_f32 vcc, s{sT0}, v{T+5}\nv_cmp_u_f32 s[{sT2}:{sT3}], v{T+6}, v{T+7}\ns_or_b64 vcc, vcc, s[{sT2}:{sT3}]")
    a(f"s_cmp_lg_u32 s{sRETRY}, 0\ns_cbranch_scc1 L_A2_good\ns_cbranch_vccz L_A2_good")
    a(f"v_mov_b32 v{T+3}, 1\nds_write_b32 v{T+2}, v{T+3}\ns_branch L_A2_done")
    a.label("L_A2_good")
    stamp("a2_st")
    a(f"s_mov_b32 s{sPUB}, 1\nv_lshlrev_b32 v{T+6}, 8, v{vLANE}\ns_mov_b64 exec, 0x7f\ns_waitcnt vmcnt(0)")
    a(f"buffer_store_dwordx2 v[{vNO}:{vNO+1}], v{T+6}, s[{sWS}:{sWS+3}], s{sFL} offen sc1\ns_mov_b64 exec, -1")
    stamp("a2_pub")
    a.label("L_A2_done")
    a.wait_all(vm=False); a("s_barrier")
    a(f"ds_read_b32 v{T+3}, v{T+2}\ns_waitcnt lgkmcnt(0)\nv_readfirstlane_b32 s{sT0}, v{T+3}")
    a(f"s_andn2_b32 s{sT0}, s{sT0}, s{sRETRY}\ns_cmp_lg_u32 s{sT0}, 0\ns_cbranch_scc1 L_A2_fallback")
    stamp_flush()
    a("s_endpgm")
    a.label("L_A2_fallback")
    a(f"s_mov_b32 s{sRETRY}, 1\ns_barrier")
    for x in range(4):
        a(f"v_cndmask_b32 v{Q+8*x+6}, v{Q+8*x+6}, v{vZERO}, s[{sHI}:{sHI+1}]\nv_cndmask_b32 v{Q+8*x+7}, v{Q+8*x+7}, v{vZERO}, s[{sHI}:{sHI+1}]")
        a(f"v_mov_b32 v{MX+x}, 0xff800000")
    a(f"s_mov_b32 s{sK}, 0\ns_mov_b32 s{sT4}, 16")
    a.label("L_A2_fb_loop")
    ld(T, sK, 0, vKV); ld(T + 4, sK, 1024, vKV); a.wait_all()
    for x in range(4):
        mfma(SS, T, Q + 8 * x, first=True); mfma(SS, T + 4, Q + 8 * x + 4)
        rowmax(MX + x, SS, False)
        a("s_nop 7")
    a(f"s_add_u32 s{sK}, s{sK}, 4096\ns_sub_u32 s{sT4}, s{sT4}, 1\ns_cmp_lg_u32 s{sT4}, 0\ns_cbranch_scc1 L_A2_fb_loop")
    a(f"v_lshlrev_b32 v{T+8}, 2, v{vLANE}")
    for x in range(4):
        a(f"s_xor_b32 s{sT0}, s{sW}, {x^3}\ns_lshl_b32 s{sT0}, s{sT0}, 8\ns_lshl_b32 s{sT1}, s{sW}, 10\ns_add_u32 s{sT0}, s{sT0}, s{sT1}")
        a(f"v_add_u32 v{T+9}, s{sT0}, v{T+8}\nds_write_b32 v{T+9}, v{MX+x}")
    a("s_waitcnt lgkmcnt(0)\ns_barrier")
    for x in range(4):
        a(f"s_xor_b32 s{sT0}, s{sW}, {x^3}\ns_lshl_b32 s{sT0}, s{sT0}, 8\nv_add_u32 v{T+9}, s{sT0}, v{T+8}")
        for w2 in range(4): a(f"ds_read_b32 v{T+10+w2}, v{T+9} offset:{1024*w2}")
        a(f"s_waitcnt lgkmcnt(0)\nv_max3_f32 v{MX+x}, v{T+10}, v{T+11}, v{T+12}\nv_max_f32 v{MX+x}, v{MX+x}, v{T+13}")
    a("s_barrier")
    first_loads()
    a.wait_all()
    a("s_nop 7\ns_branch L_A2_setmax")

RES, vWD, vPLN, vGo1, vWr4, vMX, vMG = 232, 248, 250, 251, 252, 254, 255
vWd3, vWr3, vCA3, SEL3, CS43, vXo, vSo, vSH, vST, vCW3, TB = 194, 198, 202, 206, 210, 214, 215, 216, 220, 223, 224
sR64, sCT, sRW, sCW, sSO, sG2 = 75, 76, 77, 78, 79, 80
sRB3, sC3, sW3O, sM03, sK3 = 82, 83, 84, 91, 92
sG4, sW4o, sM04, sWOo, sOo, sX1D, sMB2, sMB3, sOUTD, sST1D = 4, 11, 18, 19, 20, 21, 22, 23, 24, 25
sGS = [80, 81, 99, 3]
NZ = OPT['nz']
CSB3 = 73728
B3 = {}; B4 = {}

def touch(srd_, soff, n):
    for i in range(n): a(f"s_buffer_load_dword s3, s[{srd_}:{srd_+3}], s{soff} offset:{128*i}")

def throttled(thunks, depth):
    toks = []
    for i, t in enumerate(thunks):
        toks += t()
        if len(toks) > depth: a.wait(vm=toks[:len(toks) - depth])
    return toks

def go_poll(st=True):
    if not OPT["go"]: return
    a(f"s_and_b32 s{sT4}, s2, 255\ns_lshl_b32 s{sT4}, s{sT4}, 6")
    spoll([(sT2, 2, sT4, F_GO, 1)])
    if st: stamp("b0_go")

def stage_B0():
    a.comment("==== B0: row statistics of x, prefetches, set-up")
    a.label("L_roleB")
    prev_stamp[0] = 0
    a.vmq = []; a.lgq = []
    T = TB; XR = 16
    a(f"s_lshl_b32 s{sT0}, s{sXCD}, 5\ns_add_u32 s{sT0}, s{sT0}, s{sLOC}\ns_lshl_b32 s{sT0}, s{sT0}, 2\ns_add_u32 s{sT0}, s{sT0}, s{sW}")
    a(f"s_mul_i32 s{sT1}, s{sT0}, {2*896}\ns_lshl_b32 s{sT4}, s{sT0}, 5\ns_add_u32 s{sT4}, s{sT4}, {ST0}")
    a(f"v_mul_u32_u24 v{T}, 896, v{vHH}\nv_lshl_add_u32 v{T}, v{vT_}, 4, v{T}\nv_mov_b32 v{T+1}, 0x7fff0000\nv_cmp_gt_u32 vcc, 28, v{vT_}\nv_cndmask_b32 v{T}, v{T+1}, v{T}, vcc")
    a("s_waitcnt lgkmcnt(0)")
    srd(sX, 4, S * D * 2)
    xl = [a.vm(f"buffer_load_dwordx4 v[{XR+4*i}:{XR+4*i+3}], v{T}, s[{sX}:{sX+3}], s{sT1} offen offset:{448*i}") for i in range(2)]
    stamp("b0_karg")
    srd(sDBG, 22, 256); srd(sWS, 24, WS_SIZE); srd(sW2, 14, D * D * 2); srd(sW3, 16, D * F * 2); srd(sW4, 18, D * F * 2); srd(sWO, 8, D * D * 2); srd(sOUT, 20, S * D * 2)
    a(f"v_mov_b32 v{XR+8}, 0\nv_mov_b32 v{XR+10}, 0\nv_lshlrev_b32 v{T+2}, 4, v{vHH}")
    def touches(items, nwg=256):
        a(f"s_and_b32 s{sT0}, s2, 255\nv_lshlrev_b32 v193, 7, v{vLANE}")
        Lj = newlab("tj")
        for w, (sr_, n) in enumerate(items):
            L = newlab("tc")
            if w < 3: a(f"s_cmp_lg_u32 s{sW}, {w}\ns_cbranch_scc1 {L}")
            if sr_ == "code":
                a(f"s_getpc_b64 s[{sWA}:{sWA+1}]")
                a.label("L_pc")
                a(f"s_sub_u32 s{sWA}, s{sWA}, L_pc-{NAME}_kernel\ns_subb_u32 s{sWA+1}, s{sWA+1}, 0\ns_mov_b32 s{sWA+2}, L_code_end-{NAME}_kernel\ns_mov_b32 s{sWA+3}, 0x20000")
                a(f"s_mov_b32 s{sT0}, s{sLOC}"); sr_ = sWA
            if n <= 16: a("v_and_b32 v193, 0x7ff, v193")
            a(f"s_mul_i32 s{sT0}, s{sT0}, {n*128}\nbuffer_load_dword v192, v193, s[{sr_}:{sr_+3}], s{sT0} offen")
            if w < 3: a(f"s_branch {Lj}"); a.label(L)
        a.label(Lj)
        a.tok += 1; a.vmq.append(a.tok)
    if OPT["pf"] & 1: touches([(sW2, 13), ("code", 12), (sW2, 13), (sW2, 13)])
    if OPT["pf"] & 4: touches([(sW3, 49), (sW4, 49), (sWO, 13), (sWO, 13)])
    a(f"s_mul_i32 s{sT0}, s{sLOC}, 37\ns_lshr_b32 s{sT0}, s{sT0}, 8\ns_mul_i32 s{sT1}, s{sT0}, 7\ns_sub_u32 s{sCT}, s{sLOC}, s{sT1}")
    a(f"s_lshl_b32 s{sR64}, s{sXCD}, 2\ns_add_u32 s{sR64}, s{sR64}, s{sT0}\ns_lshr_b32 s{sRW}, s{sW}, 1\ns_and_b32 s{sCW}, s{sW}, 1")
    vXd = 60
    addr_wdma128(vWD, 64); addr_xdma(vXd, 2, 64)
    a.wait(vm=xl)
    stamp("b0_x")
    no = a.vm(f"buffer_load_dwordx2 v[{vNO}:{vNO+1}], v{vZERO}, s[{sDBG}:{sDBG+3}], 0 offen sc1")
    if OPT["pf"] & 16: touches([(sW3, 49), (sW4, 49), (sWO, 13), (sW2, 13)])
    for i in range(8): a(f"v_dot2c_f32_bf16 v{XR+8}, s{sONES}, v{XR+i}\nv_dot2c_f32_bf16 v{XR+10}, v{XR+i}, v{XR+i}")
    for r in (8, 4, 2, 1):
        for v in (XR + 8, XR + 10): a(f"v_add_f32_dpp v{v}, v{v}, v{v} row_ror:{r} row_mask:0xf bank_mask:0xf")
    for v in (XR + 8, XR + 10): a(f"v_mov_b32 v{v+1}, v{v}")
    for v in (XR + 8, XR + 10): a(f"v_permlane16_swap_b32 v{v}, v{v+1}")
    for v in (XR + 8, XR + 10): a(f"v_add_f32 v{v}, v{v}, v{v+1}")
    ln_stats(XR + 8, XR + 10, T)
    a(f"v_add_f32 v{XR+10}, {hx(f2u(EPS))}, v{XR+10}\nv_rsq_f32 v{XR+10}, v{XR+10}")
    a.wait(vm=no); get_nonce(loaded=True)
    a(f"v_mov_b32 v{XR+9}, v{vNO}\nv_mov_b32 v{XR+11}, v{vNO}\ns_mov_b32 exec_lo, 1\ns_mov_b32 exec_hi, 1")
    a(f"buffer_store_dwordx4 v[{XR+8}:{XR+11}], v{T+2}, s[{sWS}:{sWS+3}], s{sT4} offen sc1\ns_mov_b64 exec, -1")
    stamp("b0_rec")
    if OPT["nob"]: stamp_flush(); a("s_endpgm")
    if OPT["l2w3"]:
        nl = OPT["l2w3"]; rounds = (98 + nl - 1) // nl
        a(f"s_lshl_b32 s{sT0}, s{sLOC}, 2\ns_add_u32 s{sT0}, s{sT0}, s{sW}\ns_mul_i32 s{sT0}, s{sT0}, {98*128}\nv_min_u32 v193, {nl-1}, v{vLANE}\nv_lshlrev_b32 v193, 7, v193")
        for r in range(rounds):
            a(f"buffer_load_dword v192, v193, s[{sW3}:{sW3+3}], s{sT0} offen\ns_add_u32 s{sT0}, s{sT0}, {nl*128}\ns_waitcnt vmcnt(0)")
        a.vmq = []
        stamp("b0_l2")
    if OPT["pf"] & 2:
        go_poll(); touches([(sW3, 49), (sW4, 49), (sWO, 13), (sWO, 13)])
    a(f"s_cmp_ge_u32 s{sLOC}, 28\ns_cbranch_scc1 L_helper")
    if OPT["prio_b"]: a(f"s_setprio {OPT['prio_b']}")
    a(f"v_mul_u32_u24 v{vXo}, {PL}, v{vHH}\nv_lshl_add_u32 v{vXo}, v{vT_}, 4, v{vXo}\ns_lshl_b32 s{sT0}, s{sRW}, 9\nv_add_u32 v{vPLN}, s{sT0}, v{vXo}")
    a(f"s_xor_b32 s{sT0}, s{sT0}, 512\nv_add_u32 v{vGo1}, s{sT0}, v{vXo}")
    if OPT["map3"]:
        a(f"s_and_b32 s{sT0}, s{sXCD}, 1\ns_mul_i32 s{sT0}, s{sT0}, 7\ns_add_u32 s{sC3}, s{sT0}, s{sCT}")
        a(f"s_lshr_b32 s{sT0}, s{sXCD}, 1\ns_lshl_b32 s{sT0}, s{sT0}, 2\ns_and_b32 s{sT1}, s{sR64}, 3\ns_add_u32 s{sRB3}, s{sT0}, s{sT1}\ns_lshl_b32 s{sT0}, s{sT1}, 1")
    else:
        a(f"s_cmp_ge_u32 s{sLOC}, 14\ns_cselect_b32 s{sT0}, 1, 0\ns_cselect_b32 s{sT1}, 14, 0\ns_sub_u32 s{sC3}, s{sLOC}, s{sT1}")
        a(f"s_lshl_b32 s{sRB3}, s{sXCD}, 1\ns_add_u32 s{sRB3}, s{sRB3}, s{sT0}\ns_mul_i32 s{sT0}, s{sT0}, 3")
    a(f"s_add_u32 s{sT0}, s{sT0}, s{sCT}\ns_sub_u32 s{sT1}, s{sT0}, 7\ns_cselect_b32 s{sT0}, s{sT0}, s{sT1}")
    rot7(sK3, sT0)
    a(f"s_and_b32 s{sT0}, s{sR64}, 3\ns_lshl_b32 s{sT0}, s{sT0}, 1\ns_add_u32 s{sT0}, s{sT0}, s{sCT}\ns_sub_u32 s{sT1}, s{sT0}, 7\ns_cselect_b32 s{sT0}, s{sT0}, s{sT1}")
    rot7(sG4, sT0)
    a(f"s_mul_i32 s{sT1}, s{sW}, {16*3584}\ns_lshl_b32 s{sT2}, s{sC3}, 8\ns_add_u32 s{sT1}, s{sT1}, s{sT2}")
    a(f"s_mul_i32 s{sT0}, s{sW}, {448*896}\ns_lshl_b32 s{sT2}, s{sCT}, 7\ns_add_u32 s{sT0}, s{sT0}, s{sT2}")
    a(f"s_mul_i32 s{sWOo}, s{sW}, {112*896}\ns_add_u32 s{sWOo}, s{sWOo}, s{sT2}")
    a(f"s_lshl_b32 s{sT2}, s{sR64}, 10\ns_mul_i32 s{sT3}, s{sW}, {56*PL}\ns_add_u32 s{sT3}, s{sT3}, s{sT2}\ns_add_u32 s{sT3}, s{sT3}, {G_}")
    a(f"s_mul_i32 s{sOo}, s{sW}, {16*PL}\ns_add_u32 s{sOo}, s{sOo}, s{sT2}\ns_add_u32 s{sOo}, s{sOo}, {O_}")
    a(f"s_lshl_b32 s{sT4}, s{sRB3}, 2\ns_add_u32 s{sT4}, s{sT4}, s{sW}\ns_lshl_b32 s{sSO}, s{sT4}, 8\ns_add_u32 s{sSO}, s{sSO}, {ST1}\ns_lshl_b32 s{sT4}, s{sT4}, 9")
    for c in range(7):
        a(f"s_mul_i32 s{sW3O+c}, s{sK3+c}, {64*3584}\ns_add_u32 s{sW3O+c}, s{sW3O+c}, s{sT1}")
        a(f"s_mul_i32 s{sW4o+c}, s{sG4+c}, {64*896}\ns_add_u32 s{sW4o+c}, s{sW4o+c}, s{sT0}")
        a(f"s_mul_i32 s{sG4+c}, s{sG4+c}, {8*PL}\ns_add_u32 s{sG4+c}, s{sG4+c}, s{sT3}")
        a(f"s_mul_i32 s{sK3+c}, s{sK3+c}, {8*PL}\ns_add_u32 s{sK3+c}, s{sK3+c}, s{sT4}\ns_add_u32 s{sK3+c}, s{sK3+c}, {X1}")
    a(f"s_mul_i32 s{sT1}, s{sC3}, {16*PL}\ns_add_u32 s{sT4}, s{sT4}, s{sT1}\ns_add_u32 s{sT4}, s{sT4}, {G_}")
    for u in range(4): a(f"s_add_u32 s{sT0}, s{sW}, {u}\ns_and_b32 s{sT0}, s{sT0}, 3\ns_mul_i32 s{sT0}, s{sT0}, {4*PL}\ns_add_u32 s{sGS[u]}, s{sT0}, s{sT4}")
    a(f"s_lshl_b32 s{sM03}, s{sW}, 12\ns_mul_i32 s{sM04}, s{sW}, {NZ*2048}")
    a(f"s_lshl_b32 s{sT2}, s{sCT}, 1\ns_add_u32 s{sT2}, s{sT2}, s{sCW}\ns_mul_i32 s{sT0}, s{sT2}, {4*PL}\ns_lshl_b32 s{sT1}, s{sR64}, 10")
    a(f"s_add_u32 s{sT0}, s{sT0}, s{sT1}\ns_add_u32 s{sX1D}, s{sT0}, {X1}\ns_lshl_b32 s{sST1D}, s{sT2}, 14\ns_add_u32 s{sST1D}, s{sST1D}, {ST1}")
    a(f"s_lshl_b32 s{sT2}, s{sT2}, 6\ns_lshl_b32 s{sT0}, s{sR64}, 1\ns_add_u32 s{sT0}, s{sT0}, s{sRW}\ns_mul_i32 s{sOUTD}, s{sT0}, {32*896}\ns_add_u32 s{sOUTD}, s{sOUTD}, s{sT2}")
    a(f"s_mul_i32 s{sT0}, s{sR64}, 7\ns_add_u32 s{sT0}, s{sT0}, s{sCT}\ns_lshl_b32 s{sT0}, s{sT0}, 2\ns_add_u32 s{sT0}, s{sT0}, s{sW}\ns_lshl_b32 s{sMB2}, s{sT0}, 6")
    a(f"s_mul_i32 s{sT0}, s{sRB3}, 14\ns_add_u32 s{sT0}, s{sT0}, s{sC3}\ns_lshl_b32 s{sT0}, s{sT0}, 2\ns_add_u32 s{sT0}, s{sT0}, s{sW}\ns_lshl_b32 s{sMB3}, s{sT0}, 6")
    a(f"s_lshr_b32 s{sT0}, s{sR64}, 1\ns_mul_i32 s{sT0}, s{sT0}, {14*256}\ns_and_b32 s{sT1}, s{sR64}, 1\ns_lshl_b32 s{sT1}, s{sT1}, 7\ns_add_u32 s{sT0}, s{sT0}, s{sT1}\ns_lshl_b32 s{sT1}, s{sCT}, 3\ns_add_u32 s{sT0}, s{sT0}, s{sT1}\ns_add_u32 s{sT0}, s{sT0}, {MB_X}")
    a(f"v_lshrrev_b32 v{T}, 1, v{vLANE}\nv_lshlrev_b32 v{T}, 8, v{T}\nv_and_b32 v{T+1}, 1, v{vLANE}\nv_lshl_add_u32 v{T}, v{T+1}, 6, v{T}\nv_add_u32 v{vMX}, s{sT0}, v{T}")
    lanes_below(vMX, 28, T)
    lane_div(T, T + 1, vLANE, 14, T + 2)
    a(f"s_lshl_b32 s{sT0}, s{sC3}, 1\nv_add_u32 v{T}, s{sT0}, v{T}\nv_mul_u32_u24 v{T}, 37, v{T}\nv_lshrrev_b32 v{T}, 8, v{T}")
    a(f"v_mul_u32_u24 v{T+2}, 7, v{T}\nv_lshrrev_b32 v{T+2}, 1, v{T+2}\nv_sub_u32 v{T+2}, s{sC3}, v{T+2}\nv_lshlrev_b32 v{T+2}, 3, v{T+2}\nv_lshl_add_u32 v{T+2}, v{T}, 6, v{T+2}")
    a(f"s_mul_i32 s{sT0}, s{sRB3}, {14*256}\ns_add_u32 s{sT0}, s{sT0}, {MB_G}\nv_lshl_add_u32 v{T+2}, v{T+1}, 8, v{T+2}\nv_add_u32 v{vMG}, s{sT0}, v{T+2}")
    lanes_below(vMG, 28, T)
    a(f"s_movk_i32 s{sT3}, 3584")
    addr_wdma256(vWd3, sT3, T)
    addr_wrd256(vWr3, 64, T)
    a(f"s_lshl_b32 s{sT1}, s{sW}, 9\ns_add_u32 s{sT1}, s{sT1}, {CSB3}\nv_lshl_add_u32 v{vCW3}, v{vLANE}, 3, s{sT1}")
    for u in range(4):
        a(f"s_add_u32 s{sT0}, s{sW}, {u}\ns_and_b32 s{sT0}, s{sT0}, 3\ns_lshl_b32 s{sT0}, s{sT0}, 7\ns_add_u32 s{sT0}, s{sT0}, s{sT1}\nv_lshl_add_u32 v{vCA3+u}, v{vHH}, 4, s{sT0}")
    addr_wrd128(vWr4, 4, sCW, sM04, T)
    a(f"v_xor_b32 v{vWr4+1}, 64, v{vWr4}")
    a(f"v_mul_u32_u24 v{vSo}, {7*16384}, v{vHH}\nv_lshl_add_u32 v{vSo}, v{vT_}, 3, v{vSo}")
    a(f"s_lshl_b32 s{sT0}, s{sR64}, 6\ns_lshl_b32 s{sT1}, s{sRW}, 5\ns_add_u32 s{sT0}, s{sT0}, s{sT1}\nv_add_u32 v{T}, s{sT0}, v{vT_}")
    a(f"v_lshlrev_b32 v{vST+2}, 3, v{T}\nv_lshlrev_b32 v{T+4}, 4, v{T}")
    a(f"v_mul_u32_u24 v{T+1}, {PL}, v{vHH}\nv_mov_b32 v{T+3}, 0x7fff0000\ns_movk_i32 s{sT2}, 2048")
    a(f"s_add_u32 s{sT0}, s{sCW}, 1")
    for g, op in enumerate(("v_subrev_u32", "v_add_u32")):
        a(f"{op} v{T+2}, s{sT0}, v{T}\nv_cmp_gt_u32 vcc, s{sT2}, v{T+2}\nv_lshl_add_u32 v{vSH+g}, v{T+2}, 4, v{T+1}\nv_cndmask_b32 v{vSH+g}, v{T+3}, v{vSH+g}, vcc")
    if not OPT["pf"] & 2: go_poll()
    a(f"s_lshl_b32 s{sT0}, s{sR64}, 2\ns_add_u32 s{sT0}, s{sT0}, s{sW}\ns_mul_i32 s{sT0}, s{sT0}, {16*896}\ns_lshl_b32 s{sT1}, s{sCT}, 7\ns_add_u32 s{sT0}, s{sT0}, s{sT1}")
    a(f"s_lshl_b32 s{sT2}, s{sW}, 11"); set_m0(sT2, 57344)
    for q in range(2): a.vm(f"buffer_load_dwordx4 v{vXd+q}, s[{sX}:{sX+3}], s{sT0} offen offset:{1024*q} lds")
    a(f"s_mul_i32 s{sT0}, s{sW}, {112*896}\ns_add_u32 s{sT0}, s{sT0}, s{sT1}\ns_mul_i32 s{sT1}, s{sW}, 14336")
    a(f"s_and_b32 s{sT2}, s{sR64}, 3\ns_lshl_b32 s{sT2}, s{sT2}, 1")
    def w2q(q):
        a(f"s_mul_i32 s{sT4}, s{sT2}, {16*896}\ns_add_u32 s{sT4}, s{sT4}, s{sT0}\ns_lshl_b32 s{sT5}, s{sT2}, 11\ns_add_u32 m0, s{sT5}, s{sT1}")
        tk = [a.vm(f"buffer_load_dwordx4 v{vWD+j}, s[{sW2}:{sW2+3}], s{sT4} offen offset:{1024*j} lds") for j in range(2)]
        if q < 6: a(f"s_add_u32 s{sT2}, s{sT2}, 1\ns_cmp_eq_u32 s{sT2}, 7\ns_cselect_b32 s{sT2}, 0, s{sT2}")
        return tk
    throttled([lambda q=q: w2q(q) for q in range(7)], OPT["thr"])
    REC = 160
    a(f"s_mov_b32 s{sT4}, {ST0}")
    check_record(REC, T + 4, sT4, loaded=False)
    a("s_barrier")
    stamp("b0_w2")
    if OPT["pf"] & 8: touches([(sW3, 56), (sW4, 56), (sWO, 14), (sWO, 14)], 224)
    ACC, W2F, XV, vWr = 16, 48, 164, 172
    a(f"s_mul_i32 s{sT3}, s{sCW}, 28672")
    addr_wrd128(vWr, 4, sCW, sT3, T)
    a(f"v_xor_b32 v{vWr+1}, 64, v{vWr}")
    a(f"v_bfe_u32 v{T}, v{vT_}, 1, 3\ns_lshl_b32 s{sT0}, s{sCW}, 2\nv_xor_b32 v{T}, s{sT0}, v{T}\nv_lshlrev_b32 v{T}, 4, v{T}")
    a(f"v_lshl_add_u32 v{T}, v{vT_}, 7, v{T}\nv_lshl_add_u32 v{T}, v{vHH}, 3, v{T}\ns_lshl_b32 s{sT0}, s{sRW}, 12\nv_add_u32 v{T}, s{sT0}, v{T}")
    for i in range(4):
        a(f"v_xor_b32 v{T+1}, {16*i}, v{T}")
        a.lg(f"ds_read_b64 v[{XV+2*i}:{XV+2*i+1}], v{T+1} offset:57344")
    if not OPT["hall"]:
        for s in range(14):
            for b in range(2):
                for jj in range(2): a.lg(f"ds_read_b64_tr_b16 v[{W2F+8*s+4*b+2*jj}:{W2F+8*s+4*b+2*jj+1}], v{vWr+b} offset:{s*2048 + jj*1024}")
                if len(a.lgq) > 12: a.wait(lg=a.lgq[-11])
        a.wait_all(vm=False); a("s_barrier")
    else:
        a(f"v_mov_b32 v{SEL3}, v{vWr}\nv_mov_b32 v{SEL3+1}, v{vWr+1}")
        a.wait_all(vm=False)
    m0 = [None]
    def issue_w(c, qs=range(4)):
        if m0[0] != c: set_m0(sM03, (c % 5) * 16384); m0[0] = c
        return [a.vm(f"buffer_load_dwordx4 v{vWd3+q}, s[{sW3}:{sW3+3}], s{sW3O+c} offen offset:{1024*q} lds") for q in qs]
    B3["issue_w"] = issue_w; B3["wt"] = {}
    def w3c(c, q):
        t = issue_w(c, (q,)); B3["wt"].setdefault(c, []).extend(t); return t
    B3["pieces"] = [lambda c=c, q=q: w3c(c, q) for c in range(5) for q in range(4)]
    for t in B3["pieces"][:OPT["w3a"]]: t()
    for i in range(8):
        a(f"v_lshlrev_b32 v{RES+2*i}, 16, v{XV+i}\nv_and_b32 v{RES+2*i+1}, 0xffff0000, v{XV+i}")
    a(f"v_mov_b32 v{vA}, v{REC+2}\nv_mul_f32 v{vB}, v{REC}, v{REC+2}\nv_sub_f32 v{vB}, 0, v{vB}")
    for i in range(0, 16, 2):
        a(f"v_pk_fma_f32 v[{ACC+i}:{ACC+i+1}], v[{RES+i}:{RES+i+1}], v[{vA}:{vA+1}], v[{vB}:{vB+1}] op_sel_hi:[1,0,0]")

def helper():
    a.label("L_helper")
    a.vmq = []; a.lgq = []
    prev_stamp[0] = stamp_names.get("b0_rec")
    if OPT["prio_h"]: a(f"s_setprio {OPT['prio_h']}")
    T = TB
    a(f"s_and_b32 s{sT0}, s2, 255\ns_lshl_b32 s{sT0}, s{sT0}, 6")
    spoll([(sT2, 2, sT0, F_AP, 1)])
    stamp("h_go")
    sB = sT4; LD, SUM = 16, 80
    a(f"s_and_b32 s{sB}, s2, 255\ns_sub_u32 s{sB}, s{sB}, 224\ns_cmp_ge_u32 s{sB}, 28\ns_cbranch_scc1 L_nocs")
    a(f"s_mul_i32 s{sT0}, s{sW}, {112*3584}\ns_lshl_b32 s{sT1}, s{sB}, 7\ns_add_u32 s{sT0}, s{sT0}, s{sT1}")
    a(f"v_lshrrev_b32 v{T}, 3, v{vLANE}\nv_mul_u32_u24 v{T}, 3584, v{T}\nv_and_b32 v{T+1}, 7, v{vLANE}\nv_lshl_add_u32 v{T}, v{T+1}, 4, v{T}")
    tk = []
    for i in range(14):
        tk.append(a.vm(f"buffer_load_dwordx4 v[{LD+4*i}:{LD+4*i+3}], v{T}, s[{sW3}:{sW3+3}], s{sT0} offen"))
        if i < 13: a(f"s_add_u32 s{sT0}, s{sT0}, {8*3584}")
        if i >= OPT["hthr"]: a.wait(vm=tk[i - OPT["hthr"]])
    for k in range(8): a(f"v_mov_b32 v{SUM+k}, 0")
    for i in range(14):
        a.wait(vm=tk[i])
        for k in range(4):
            a(f"v_lshlrev_b32 v{T+2}, 16, v{LD+4*i+k}\nv_and_b32 v{T+3}, 0xffff0000, v{LD+4*i+k}\nv_pk_add_f32 v[{SUM+2*k}:{SUM+2*k+1}], v[{SUM+2*k}:{SUM+2*k+1}], v[{T+2}:{T+3}]")
    stamp("h_ld")
    for k in range(8): a(f"v_add_f32_dpp v{SUM+k}, v{SUM+k}, v{SUM+k} row_ror:8 row_mask:0xf bank_mask:0xf")
    for op in ("v_permlane16_swap_b32", "v_permlane32_swap_b32"):
        for k in range(8): a(f"v_mov_b32 v{SUM+8+k}, v{SUM+k}")
        for k in range(8): a(f"{op} v{SUM+k}, v{SUM+8+k}")
        for k in range(8): a(f"v_add_f32 v{SUM+k}, v{SUM+k}, v{SUM+8+k}")
    a(f"s_lshl_b32 s{sT0}, s{sW}, 8\nv_lshlrev_b32 v{T+1}, 5, v{T+1}\nv_add_u32 v{T+2}, s{sT0}, v{T+1}")
    a(f"ds_write_b128 v{T+2}, v[{SUM}:{SUM+3}]\nds_write_b128 v{T+2}, v[{SUM+4}:{SUM+7}] offset:16\ns_waitcnt lgkmcnt(0)\ns_barrier")
    a(f"v_lshlrev_b32 v{T+2}, 2, v{vLANE}")
    for w2 in range(4): a(f"ds_read_b32 v{SUM+w2}, v{T+2} offset:{256*w2}")
    a(f"s_waitcnt lgkmcnt(0)\nv_add_f32 v{SUM}, v{SUM}, v{SUM+1}\nv_add_f32 v{SUM+2}, v{SUM+2}, v{SUM+3}\nv_add_f32 v{SUM}, v{SUM}, v{SUM+2}")
    a(f"s_lshl_b32 s{sT0}, s{sB}, 8\ns_add_u32 s{sT0}, s{sT0}, {CS3}\ns_lshl_b32 s{sT1}, s{sB}, 3\ns_add_u32 s{sT1}, s{sT1}, {F_CS}")
    a(f"s_cmp_lg_u32 s{sW}, 0\ns_cbranch_scc1 L_nocs")
    a(f"buffer_store_dword v{SUM}, v{T+2}, s[{sWS}:{sWS+3}], s{sT0} offen sc1\ns_waitcnt vmcnt(0)")
    publish(sT1, barrier=False)
    a.label("L_nocs")
    a.vmq = []
    stamp("h_cs")
    if OPT["l2w4"]:
        nl = OPT["l2w4"]
        a(f"s_sub_u32 s{sT1}, s{sLOC}, 28\ns_lshl_b32 s{sT1}, s{sT1}, 2\ns_add_u32 s{sT1}, s{sT1}, s{sW}\nv_min_u32 v193, {nl-1}, v{vLANE}\nv_lshlrev_b32 v193, 7, v193")
        for sr_, lines in ((sW4, 784), (sWO, 196)):
            L = newlab("pf"); R = (lines + nl - 1) // nl
            a(f"s_mul_i32 s{sT3}, s{sT1}, {lines*128}\ns_mul_i32 s{sT4}, s{sXCD}, {R}\ns_lshr_b32 s{sT4}, s{sT4}, 3\ns_mov_b32 s{sT2}, {R}")
            a.label(L)
            a(f"s_mul_i32 s{sT0}, s{sT4}, {nl*128}\ns_add_u32 s{sT0}, s{sT0}, s{sT3}")
            a(f"buffer_load_dword v192, v193, s[{sr_}:{sr_+3}], s{sT0} offen\ns_add_u32 s{sT4}, s{sT4}, 1\ns_cmp_eq_u32 s{sT4}, {R}\ns_cselect_b32 s{sT4}, 0, s{sT4}\ns_waitcnt vmcnt(0)")
            a(f"s_sub_u32 s{sT2}, s{sT2}, 1\ns_cmp_lg_u32 s{sT2}, 0\ns_cbranch_scc1 {L}")
    stamp("h_w4"); stamp_flush()
    if OPT["clr"]:
        a(f"s_and_b32 s{sT0}, s2, 255\ns_cmp_lg_u32 s{sT0}, 255\ns_cbranch_scc1 L_end")
        a(f"s_lshl_b32 s{sT0}, s{sW}, 12\ns_add_u32 s{sT0}, s{sT0}, {F_AP}\nv_lshl_add_u32 v{vPO}, v{vLANE}, 6, s{sT0}")
        poll(sleep=32)
        a(f"s_barrier\ns_cmp_lg_u32 s{sW}, 0\ns_cbranch_scc1 L_end\nv_mov_b32 v{vP0}, 0\nv_mov_b32 v{vP0+1}, 0\ns_mov_b64 exec, 1")
        a(f"buffer_store_dwordx2 v[{vP0}:{vP0+1}], v{vZERO}, s[{sDBG}:{sDBG+3}], 0 offen sc1")
    a("s_endpgm")

def stage_B2():
    a.comment("==== B2: x1 = xn + shift(h) @ w2, 64 x 64 tile")
    ACC, W2F, HF, NH = (16, 48, 160, 8) if not OPT['hall'] else (16, 48, 80, 14)
    T = TB
    a(f"s_mul_i32 s{sT0}, s{sCW}, {28*PL}\ns_add_u32 s{sT0}, s{sT0}, {H_}\ns_add_u32 s{sT1}, s{sX1D}, {2*PL}")
    vW, vR = vSH + 2, vSH + 3
    a(f"s_lshl_b32 s{sT2}, s{sW}, 12\ns_add_u32 s{sT2}, s{sT2}, 65536\nv_add_u32 v{vW}, s{sT2}, v{vL16}\nv_xor_b32 v{vR}, 4096, v{vW}")
    if OPT["tw3"]:
        a(f"v_min_u32 v{T}, 55, v{vLANE}\nv_mul_u32_u24 v{T+1}, 37, v{T}\nv_lshrrev_b32 v{T+1}, 9, v{T+1}\nv_mul_u32_u24 v{T+2}, 14, v{T+1}\nv_sub_u32 v{T}, v{T}, v{T+2}")
        a(f"v_mul_u32_u24 v{T+1}, 3584, v{T+1}\nv_lshl_add_u32 v193, v{T}, 7, v{T+1}")
        a(f"s_lshl_b32 s{sT3}, s{sLOC}, 2\ns_add_u32 s{sT3}, s{sT3}, s{sW}\ns_mul_i32 s{sT3}, s{sT3}, {4*3584}\ns_and_b32 s{sT2}, s{sXCD}, 1\ns_mul_i32 s{sT2}, s{sT2}, 1792\ns_add_u32 s{sT3}, s{sT3}, s{sT2}")
        if OPT["tw3"] == 99: a.vm(f"buffer_load_dword v192, v193, s[{sW3}:{sW3+3}], s{sT3} offen")
    rd = {}
    def wrd(s):
        if OPT["hall"] and s < 14:
            rd[s] = [a.lg(f"ds_read_b64_tr_b16 v[{W2F+8*(s%3)+4*b+2*jj}:{W2F+8*(s%3)+4*b+2*jj+1}], v{SEL3+b} offset:{s*2048 + jj*1024}") for b in (1, 0) for jj in range(2)]
    wrd(0); wrd(1)
    stamp("b2_ready")
    spoll([(sF, 8, sMB2, MB_H, 4)])
    stamp("b2_poll")
    ht = []
    def hload():
        ks = len(ht); r = HF + 4 * (ks % NH)
        ht.append(a.vm(f"buffer_load_dwordx4 v[{r}:{r+3}], v{vSH + ks//7}, s[{sWS}:{sWS+3}], s{sT0} offen sc1"))
        if ks < 13: a(f"s_add_u32 s{sT0}, s{sT0}, {2*PL}")
    for ks in range(NH): hload()
    for s in range(14):
        a.wait(vm=ht[s], lg=rd.get(s, []))
        if s == 0: stamp("b2_h0")
        wf = W2F + 8 * (s % 3 if OPT["hall"] else s)
        mfma(ACC + 16, wf + 4, HF + 4 * (s % NH), first=(s == 0))
        wrd(s + 2)
        mfma(ACC, wf, HF + 4 * (s % NH))
        if len(ht) < 14: hload()
        if OPT["tw3"] and s == OPT["tw3"]:
            a.vm(f"buffer_load_dword v192, v193, s[{sW3}:{sW3+3}], s{sT3} offen")
    stamp("b2_main")
    for i in range(4): a.lg(f"ds_write_b128 v{vW}, v[{ACC+16+4*i}:{ACC+16+4*i+3}] offset:{1024*i}")
    a.wait_all(vm=False); a("s_barrier")
    tk = [a.lg(f"ds_read_b128 v[{ACC+16+4*i}:{ACC+16+4*i+3}], v{vR} offset:{1024*i}") for i in range(4)]
    for i in range(4):
        a.wait(lg=tk[i])
        for k in (0, 2): a(f"v_pk_add_f32 v[{ACC+4*i+k}:{ACC+4*i+k+1}], v[{ACC+4*i+k}:{ACC+4*i+k+1}], v[{ACC+16+4*i+k}:{ACC+16+4*i+k+1}]")
    PK = 48; sts = []
    cvt16(PK, ACC)
    for p in range(2):
        a(f"v_permlane32_swap_b32 v{PK+4*p}, v{PK+4*p+2}\nv_permlane32_swap_b32 v{PK+4*p+1}, v{PK+4*p+3}")
        sts.append(a.vm(f"buffer_store_dwordx4 v[{PK+4*p}:{PK+4*p+3}], v{vPLN}, s[{sWS}:{sWS+3}], s{sT1 if p else sX1D} offen sc1"))
    a(f"v_pk_add_f32 v[{T}:{T+1}], v[{ACC}:{ACC+1}], v[{ACC+2}:{ACC+3}]\nv_pk_mul_f32 v[{T+2}:{T+3}], v[{ACC}:{ACC+1}], v[{ACC}:{ACC+1}]")
    a(f"v_pk_fma_f32 v[{T+2}:{T+3}], v[{ACC+2}:{ACC+3}], v[{ACC+2}:{ACC+3}], v[{T+2}:{T+3}]")
    for i in range(4, 16, 2):
        a(f"v_pk_add_f32 v[{T}:{T+1}], v[{T}:{T+1}], v[{ACC+i}:{ACC+i+1}]\nv_pk_fma_f32 v[{T+2}:{T+3}], v[{ACC+i}:{ACC+i+1}], v[{ACC+i}:{ACC+i+1}], v[{T+2}:{T+3}]")
    a(f"v_add_f32 v{T}, v{T}, v{T+1}\nv_add_f32 v{T+2}, v{T+2}, v{T+3}\nv_mov_b32 v{T+1}, v{T}\nv_mov_b32 v{T+3}, v{T+2}")
    a(f"v_permlane32_swap_b32 v{T}, v{T+1}\nv_permlane32_swap_b32 v{T+2}, v{T+3}\nv_add_f32 v{vST}, v{T}, v{T+1}\nv_add_f32 v{vST+1}, v{T+2}, v{T+3}")
    sts.append(a.vm(f"buffer_store_dwordx2 v[{vST}:{vST+1}], v{vST+2}, s[{sWS}:{sWS+3}], s{sST1D} offen sc1"))
    for i in range(0, 16, 2): a(f"v_pk_add_f32 v[{RES+i}:{RES+i+1}], v[{RES+i}:{RES+i+1}], v[{ACC+i}:{ACC+i+1}]")
    stamp("b2_st")
    n0 = OPT["w3a"]; n1 = max(n0, OPT["w3b"])
    for t in B3["pieces"][n0:n1]: t()
    a.wait(vm=sts); a("s_barrier")
    post([vMX], barrier=False)
    stamp("b2_pub")
    n2 = max(n1, OPT["w3c"])
    for t in B3["pieces"][n1:n2]:
        if len(a.vmq) >= OPT["thr3"]: a.wait(vm=a.vmq[-OPT["thr3"]])
        t()
    B3["stream"] = B3["pieces"][n2:]

def stage_B3():
    a.comment("==== B3: g = gelu(LN(x1) @ w3), 128 x 128 tile")
    ACC, XF, NX, WF, ST = 16, 80, 16, 144, 176
    T = TB
    spoll([(sF, 16, sMB3, MB_X, 7)])
    stamp("b3_poll")
    xt = []
    def xload():
        s = len(xt); c, ks = divmod(s, 4); r = XF + 4 * (s % NX)
        so = sK3 + c
        if ks: a(f"s_add_u32 s{sT0}, s{sK3+c}, {2*ks*PL}"); so = sT0
        xt.append(a.vm(f"buffer_load_dwordx4 v[{r}:{r+3}], v{vXo}, s[{sWS}:{sWS+3}], s{so} offen sc1"))
    for s in range(6): xload()
    stt = []; cst = []; cft = []
    def stat_load():
        i = len(stt)
        if i: a(f"s_add_u32 s{sSO}, s{sSO}, 16384")
        stt.append(a.vm(f"buffer_load_dwordx2 v[{ST+2*i}:{ST+2*i+1}], v{vSo}, s[{sWS}:{sWS+3}], s{sSO} offen sc1"))
    GT, PK = 144, 160
    CSR = {0: 128, 1: 80, 2: 96, 3: 112}; toks = {}
    df3 = Deferred()
    def finish_stats():
        a.wait(vm=stt)
        with df3:
            for i in range(2, 14, 2): a(f"v_add_f32 v{ST}, v{ST}, v{ST+i}\nv_add_f32 v{ST+1}, v{ST+1}, v{ST+i+1}")
            a(f"v_mov_b32 v{ST+2}, v{ST}\nv_mov_b32 v{ST+3}, v{ST+1}\ns_nop 0\nv_permlane32_swap_b32 v{ST}, v{ST+2}\nv_permlane32_swap_b32 v{ST+1}, v{ST+3}")
            a(f"v_add_f32 v{ST}, v{ST}, v{ST+2}\nv_add_f32 v{ST+1}, v{ST+1}, v{ST+3}")
            ln_stats(ST, ST + 1, T)
            a(f"v_add_f32 v{ST+1}, {hx(f2u(EPS))}, v{ST+1}\nv_rsq_f32 v{vA}, v{ST+1}\nv_sub_f32 v{vB}, 0, v{ST}")
            gelu_consts(ST + 2, vA)
    def kstep(s):
        th = []
        if OPT["early3"]:
            if s == 18: th.append(finish_stats)
            if s in (22, 23, 25): th.append(lambda u={22: 0, 23: 1, 25: 2}[s]: toks.__setitem__(u, read_cs(CSR[u], vCA3 + u)))
        n = len(xt)
        for k in range(2):
            if n + k < 28 and n + k < s + NX and n + k <= s + 13: th.append(xload)
        if OPT["tw4"]:
            def tch(k):
                if k == 0:
                    a(f"s_lshl_b32 s{sT1}, s{sLOC}, 2\ns_add_u32 s{sT1}, s{sT1}, s{sW}\ns_mul_i32 s{sT2}, s{sT1}, {112*128}\ns_mul_i32 s{sT3}, s{sT1}, {28*128}")
                    a(f"s_and_b32 s{sT1}, s{sXCD}, 1\ns_mul_i32 s{sT1}, s{sT1}, {56*128}\nv_min_u32 v193, 55, v{vLANE}\nv_lshlrev_b32 v193, 7, v193\ns_add_u32 s{sT4}, s{sT2}, s{sT1}")
                    a.vm(f"buffer_load_dword v192, v193, s[{sW4}:{sW4+3}], s{sT4} offen")
                if k == 1:
                    a(f"s_sub_u32 s{sT4}, s{sT2}, s{sT1}\ns_add_u32 s{sT4}, s{sT4}, {56*128}")
                    a.vm(f"buffer_load_dword v192, v193, s[{sW4}:{sW4+3}], s{sT4} offen")
                if k == 2:
                    a(f"v_min_u32 v193, {27*128}, v193")
                    a.vm(f"buffer_load_dword v192, v193, s[{sWO}:{sWO+3}], s{sT3} offen")
            for k in range(3):
                if s == OPT["tw4"] + k * OPT["tw4d"]: th.append(lambda k=k: tch(k))
        if 9 <= s < 16: th.append(stat_load)
        if s == 7:
            def csflag():
                a(f"s_lshl_b32 s{sT0}, s{sC3}, 4\ns_add_u32 s{sT0}, s{sT0}, {F_CS}\nv_and_b32 v{vPO}, 1, v{vLANE}\nv_lshl_add_u32 v{vPO}, v{vPO}, 3, s{sT0}")
                cft.append(a.vm(f"buffer_load_dwordx2 v[{vP0}:{vP0+1}], v{vPO}, s[{sWS}:{sWS+3}], 0 offen sc1"))
            th.append(csflag)
        if s == 13:
            def csload():
                L = newlab("cc")
                a.wait(vm=cft); q = list(a.vmq)
                a(f"v_cmp_ne_u64 vcc, v[{vP0}:{vP0+1}], v[{vNO}:{vNO+1}]\ns_cbranch_vccz {L}")
                poll(); a.label(L); a.vmq = q
                a(f"s_lshl_b32 s{sT0}, s{sC3}, 9\ns_add_u32 s{sT0}, s{sT0}, {CS3}\nv_lshlrev_b32 v{SEL3}, 3, v{vLANE}")
                cst.append(a.vm(f"buffer_load_dwordx2 v[{CS43}:{CS43+1}], v{SEL3}, s[{sWS}:{sWS+3}], s{sT0} offen sc1"))
            th.append(csload)
        if s == 21:
            def cswrite():
                a.wait(vm=cst); a.lg(f"ds_write_b64 v{vCW3}, v[{CS43}:{CS43+1}]")
            th.append(cswrite)
        return th
    hooks = dict(before_barrier=lambda c: None, after_barrier=lambda c: [], lg_need=lambda s: [], vm_need=lambda s: [xt[s]], kstep=kstep)
    PAD[0] = OPT["pad3"]
    panel_mainloop("b3", ACC, WF, vWr3, 5, lambda s: XF + 4 * (s % NX), B3["issue_w"], B3["wt"], hooks, None, None, df3, stream=B3["stream"])
    PAD[0] = 0
    stamp("b3_main")
    if not OPT["early3"]:
        finish_stats(); df3.flush()
    for u in range(4):
        if u not in toks: toks[u] = read_cs(CSR[u], vCA3 + u); a.wait(lg=a.lgq[-9]) if len(a.lgq) > 12 else None
    stamp("b3_csbar")
    def issue_w4(j):
        set_m0(sM04, (j % NZ) * 2048)
        if j < 28:
            c, ks = divmod(j, 4); srd_, base, add = sW4, sW4o + c, ks * 16 * 896
        else:
            hd, m = divmod(j - 28, 2); srd_, base, add = sWO, sWOo, (28 * hd + 16 * m) * 896
        so = base
        if add: a(f"s_add_u32 s{sT5}, s{base}, {add}"); so = sT5
        return [a.vm(f"buffer_load_dwordx4 v{vWD+q}, s[{srd_}:{srd_+3}], s{so} offen offset:{1024*q} lds") for q in range(2)]
    B4["issue_w"] = issue_w4; B4["wt"] = {}
    cnt = [0]
    def hook():
        cnt[0] += 1
        j = len(B4["wt"])
        if cnt[0] == 1: a.wait(lg=toks[3]); a("s_barrier")
        if j < NZ and cnt[0] % 2 == 0:
            if len(a.vmq) >= OPT["thr4"]: a.wait(vm=a.vmq[-OPT["thr4"]])
            B4["wt"][j] = issue_w4(j)
    for u in range(4):
        a.wait(lg=toks[u]); shift16(ACC + 16 * u, CSR[u])
        gelu16(ACC + 16 * u, GT, ST + 2, hook)
        pk = PK + 8 * (u & 1)
        cvt16(pk, ACC + 16 * u)
        a(f"s_add_u32 s{sT1}, s{sGS[u]}, {2*PL}")
        a.vm(f"buffer_store_dwordx4 v[{pk}:{pk+3}], v{vXo}, s[{sWS}:{sWS+3}], s{sGS[u]} offen sc1")
        a.vm(f"buffer_store_dwordx4 v[{pk+4}:{pk+7}], v{vXo}, s[{sWS}:{sWS+3}], s{sT1} offen sc1")
    assert len(B4["wt"]) == NZ
    stamp("b3_epi")
    sts = a.vmq[-2:]
    NRG = OPT["nrg"]; WR = 144
    def wfrag(j):
        a.wait(vm=B4["wt"][j])
        for b in range(2):
            for jj in range(2):
                r = wreg(j) + 4 * b + 2 * jj
                a.lg(f"ds_read_b64_tr_b16 v[{r}:{r+1}], v{vWr4+b} offset:{(j%NZ)*2048 + jj*1024}")
        if len(a.lgq) > 8: a.wait(lg=a.lgq[-5])
    for i in range(16): a(f"v_mov_b32 v{ACC+i}, v{RES+i}")
    for j in range(min(NRG, NZ)): wfrag(j)
    a(f"s_add_u32 s{sT1}, s{sMB2}, {MB_O}\nv_and_b32 v{T}, 7, v{vLANE}\nv_lshl_add_u32 v{T+7}, v{T}, 3, s{sT1}")
    a.wait_all(vm=False)
    assert NRG <= NZ
    n1 = min(NRG, OPT["w4b"]); n2 = min(NRG, max(n1, OPT["w4c"]))
    for j in range(n1): B4["wt"][NZ + j] = issue_w4(NZ + j)
    a.wait(vm=sts); a("s_barrier")
    post([vMG], barrier=False)
    stamp("b3_pub")
    for j in range(n1, n2): B4["wt"][NZ + j] = issue_w4(NZ + j)
    B4["stream"] = list(range(NZ + n2, NZ + NRG))

def wreg(j):
    n1 = 8 + (8 - OPT["ng"])
    return 80 + 8 * OPT["ng"] + 8 * j if j < n1 else RES + 8 * (j - n1)

def stage_B4():
    a.comment("==== B4: out = x + x1 + g @ w4 + o @ wo, 64 x 64 tile, k split over the waves")
    ACC, GF, WR, WF, T = 16, 80, 144, 208, TB
    NRG = OPT["nrg"]; NG = OPT["ng"]
    vGo = [vPLN, vGo1]; vPO2 = T + 7
    wt = B4["wt"]; issue_w = B4["issue_w"]
    rd = {}; gt = {}
    J0 = 28 if OPT["late0"] else 36
    def wfr(j, b):
        if j < NRG: return wreg(j) + 4 * b
        if j >= J0 and b == 0: return WR + 4 * (j - J0)
        return WF + 8 * (j & 1) + 4 * b
    def reads(j):
        rd[j] = []
        if j < NRG: return []
        a.wait(vm=wt[j])
        return [lambda b=b, jj=jj: rd[j].append(a.lg(f"ds_read_b64_tr_b16 v[{wfr(j, b)+2*jj}:{wfr(j, b)+2*jj+1}], v{vWr4+b} offset:{(j%NZ)*2048 + jj*1024}")) for b in range(2) for jj in range(2)]
    def gload(j):
        if j < 28:
            c, ks = divmod(j, 4); base, add = sG4 + c, 2 * ks * PL
        else: base, add = sOo, 2 * (j - 28) * PL
        so = base
        if add: a(f"s_add_u32 s{sT4}, s{base}, {add}"); so = sT4
        r = GF + 8 * (j % NG)
        gt[j] = [a.vm(f"buffer_load_dwordx4 v[{r+4*aa}:{r+4*aa+3}], v{vGo[aa]}, s[{sWS}:{sWS+3}], s{so} offen sc1") for aa in range(2)]
    ot = []
    def ocheck():
        L = newlab("oc"); q = None
        a.wait(vm=ot)
        q = list(a.vmq); ql = list(a.lgq)
        a(f"v_cmp_ne_u64 vcc, v[{vP0}:{vP0+1}], v[{vNO}:{vNO+1}]\ns_cbranch_vccz {L}")
        spoll([(sF, 16, sMB2, MB_O, 8)])
        a.label(L)
        a.vmq = q; a.lgq = ql
        stamp("b4_opoll")
    for t in reads(0): t()
    spoll([(sF, 8, sMB2, MB_G, 4)])
    stamp("b4_poll")
    for j in range(4): gload(j)
    PAD[0] = OPT["pad4"]
    for j in range(36):
        if j == 28: stamp("b4_g")
        a.wait(vm=gt[j], lg=rd[j])
        if j in (0, 14): stamp(f"b4_j{j}")
        rds = reads(j + 1) if j + 1 < 36 else []
        late = []
        n = len(gt)
        jo = 28 - OPT["olead"]
        if j == jo - 3 and not OPT["noattn"]:
            late.append(lambda: ot.append(a.vm(f"buffer_load_dwordx2 v[{vP0}:{vP0+1}], v{vPO2}, s[{sWS}:{sWS+3}], 0 offen sc1")))
        if j == jo - 1 and not OPT["noattn"]: late.append(ocheck)
        for k in range(2):
            if n + k < 36 and n + k <= j + NG - 1 and (n + k < 28 or j >= jo): late.append(lambda k=n + k: gload(k))
        if B4["stream"] and j >= 1: late.append(lambda k=B4["stream"].pop(0): wt.__setitem__(k, issue_w(k)))
        if j + NZ < 36 and j >= NRG: late.append(lambda j=j: wt.__setitem__(j + NZ, issue_w(j + NZ)))
        g = GF + 8 * (j % NG)
        for u in ((0, 1, 2, 3) if j < J0 else (1, 2, 3)):
            aa, b = divmod(u, 2)
            mfma(ACC + 16 * u, wfr(j, b), g + 4 * aa, first=(j == 0 and u > 0))
            if rds:
                for t in rds: t()
                rds = []
            elif late: late.pop(0)()
        for t in late: t()
    PAD[0] = 0
    stamp("b4_o")
    vW, vR = T, T + 1
    a(f"v_add_u32 v{vW}, s{sM04}, v{vL16}\nv_mul_u32_u24 v{T+2}, 896, v{vT_}\nv_lshl_add_u32 v{T+2}, v{vHH}, 4, v{T+2}")
    wr = [lambda u=u, i=i: a.lg(f"ds_write_b128 v{vW}, v[{ACC+16*u+4*i}:{ACC+16*u+4*i+3}] offset:{(u-1)*4096 + 1024*i}") for u in range(1, 4) for i in range(4)]
    for j in range(J0, 36):
        mfma(ACC, wfr(j, 0), GF + 8 * (j % NG))
        if j > J0 + 1:
            for t in wr[:2]: t()
            wr = wr[2:]
    for t in wr: t()
    a.wait_all(vm=False); a("s_barrier")
    stamp("b4_rbar")
    tk = []
    for u in range(1, 4):
        a(f"s_xor_b32 s{sT0}, s{sW}, {u}\ns_mul_i32 s{sT0}, s{sT0}, {NZ*2048}\nv_add_u32 v{vR}, s{sT0}, v{vL16}")
        tk.append([a.lg(f"ds_read_b128 v[{ACC+16*u+4*i}:{ACC+16*u+4*i+3}], v{vR} offset:{(u-1)*4096 + 1024*i}") for i in range(4)])
    for u in range(1, 4):
        a.wait(lg=tk[u - 1])
        for i in range(0, 16, 2): a(f"v_pk_add_f32 v[{ACC+i}:{ACC+i+1}], v[{ACC+i}:{ACC+i+1}], v[{ACC+16*u+i}:{ACC+16*u+i+1}]")
    PK = GF
    cvt16(PK, ACC)
    for p in range(2):
        a(f"v_permlane32_swap_b32 v{PK+4*p}, v{PK+4*p+2}\nv_permlane32_swap_b32 v{PK+4*p+1}, v{PK+4*p+3}")
        a.vm(f"buffer_store_dwordx4 v[{PK+4*p}:{PK+4*p+3}], v{T+2}, s[{sOUT}:{sOUT+3}], s{sOUTD} offen offset:{32*p}" + ["", " sc1", " nt", " sc0 sc1"][OPT["outsc"]])
    stamp("b4_end"); stamp_flush()

HEAD = f"""; out = x + MHA(LN(x)) + MixerMLP(LN(x))     S=2048 D=448 H=16 Dh=28 F=1792, bf16 in / out
;
; Hand-offs go through d_ws: write-through (sc1) stores, s_waitcnt, then an 8-byte tag written into the consumer's mailbox.
; The tag is a clock reading taken by workgroup 0 and passed on through d_debug, so words left in d_ws by the harness or by an
; earlier launch never match.  Consumers poll (bounded) and read the data with sc1 loads; nothing depends on XCD placement.
; (row sum < 2^120, all outputs finite) sends the workgroup to a second pass with the exact row maximum otherwise.
; @launch grid=(512,1,1) block=(256,1,1) lds={LDS_BYTES}
.amdgcn_target "amdgcn-amd-amdhsa--gfx950"
.text
.globl {NAME}_kernel
.p2align 8
.type {NAME}_kernel,@function
{NAME}_kernel:
"""
TAIL = f""".section .rodata,"a"
.p2align 6
.amdhsa_kernel {NAME}_kernel
  .amdhsa_next_free_vgpr 256
  .amdhsa_next_free_sgpr 102
  .amdhsa_accum_offset 256
  .amdhsa_group_segment_fixed_size 0
  .amdhsa_kernarg_size 88
  .amdhsa_user_sgpr_count 2
  .amdhsa_user_sgpr_kernarg_segment_ptr 1
  .amdhsa_system_sgpr_workgroup_id_x 1
.end_amdhsa_kernel
"""

def build():
    prologue()
    stage_A1()
    if OPT["noattn"]: stamp_flush(); a("s_endpgm")
    else: stage_A2()
    stage_B0()
    stage_B2()
    stage_B3()
    stage_B4()
    a.label("L_end")
    a("s_endpgm")
    helper()
    a.label("L_code_end")
    a.pad_hazards()
    size, nprom, nnop = fix_straddles(a, HEAD, TAIL, verbose=True)
    print(f"code bytes {size}, hazard nops {a.nops_inserted}, promoted {nprom}, straddle nops {nnop}")
    open(sys.argv[1], "w").write(HEAD + a.text() + TAIL + (("; roles: BA\n" if OPT["swap"] else "") + "; stamps: " + ",".join(stamp_names) + "\n" if OPT["stamps"] else ""))

if __name__ == "__main__":
    build()
```

```python
import sys, math, struct
from asmlib import *

NAME = "parallel_sum__mha_block__mixer_s_mlp__prompt"
OPT = dict(stamps=0, spin=400000, prio_b=1, pf=1, outsc=0, noattn=0, nob=0, nr=4, thr=64, go=15, prio_a1=2, prio_at=2, w2late=1, thra=6, swap=1, anf=1, thr3=6, w3a=0, w3b=3, aprio=1, pad3=0, pad4=0, xp=0, defer=0, w3c=20, l2w3=0, l2w4=0, clr=1, map3=1, split=0, prio_h=1, hwait=1, hthr=6, alate=64, aprio2=1, nrg=8, w4b=0, olead=5, dsw=1, a1s=2, w3t=1, dbgst=0, thr4=64, tw4=16, tw4d=3, tw3=0, wsoff=0, nd=4, nz=10, ng=8, psl=1, w4c=8, early3=1, late0=1, hall=0, fill=0, prio_a2=2, tlb=0)
for a in sys.argv[2:]:
    k, v = a.split("="); OPT[k] = int(v, 0)

def f2u(x): return struct.unpack("<I", struct.pack("<f", x))[0]
def hx(x): return hex(x & 0xffffffff)

S, D, F = 2048, 448, 1792
PL = 32768 + 256
MB_A = 0x00000
MB_H = 0x20000
MB_X = 0x2E000
MB_G = 0x3C000
MB_O = 0x4A000
F_GO = 0x58000
F_CS = 0x5C000
F_AP = 0x60000
OOB = 0x7fff0000
QB_ = 0x80000
KV_ = QB_ + 16 * 64 * 2048
H_ = KV_ + 16 * 64 * 4096
X1 = H_ + 0x1C4000
O_ = X1 + 0x1C4000
G_ = O_ + 0x204000
CS3 = G_ + 0x70E000
ST0 = CS3 + 0x2000
ST1 = ST0 + 0x8000
WS_SIZE = ST1 + 14 * 0x4000
STAMP = 0x1A00000
if OPT['stamps']: WS_SIZE = STAMP + 0x80000
LDS_BYTES = 81920
EPS = 1e-5
QSCALE = (28 ** -0.5) * math.log2(math.e)
GA = -2.0 * math.log2(math.e) * math.sqrt(2.0 / math.pi)
GB = GA * 0.044715

sX, sDBG, sW2, sWA, sWS, sW3, sW4, sWO, sOUT = 28, 32, 36, 40, 44, 48, 52, 56, 60
sF = 28
sNO = 0
sHI = 26
sW, sXCD, sLOC = 64, 65, 66
sONES = 67
sT0, sT1, sT2, sT3, sT4, sT5 = 68, 69, 70, 71, 72, 73
sCNT = 74
sA0 = 75
vTID, vLANE, vT_, vHH, vZERO = 0, 1, 2, 3, 4
vNO = 6
vP0 = 8
vPO = 10
vL16 = 11
vA, vB = 12, 14

a = Asm()
lab = [0]
def newlab(p):
    lab[0] += 1; return f"L_{p}_{lab[0]}"

def srd(dst, ptr, size):
    if dst == sWS and OPT["wsoff"]:
        a(f"s_add_u32 s{dst}, s{ptr}, {OPT['wsoff'] << 20}\ns_addc_u32 s{dst+1}, s{ptr+1}, 0\ns_mov_b32 s{dst+2}, {hx(size)}\ns_mov_b32 s{dst+3}, 0x20000")
        return
    a(f"s_mov_b32 s{dst}, s{ptr}\ns_mov_b32 s{dst+1}, s{ptr+1}\ns_mov_b32 s{dst+2}, {hx(size)}\ns_mov_b32 s{dst+3}, 0x20000")

nstamp = [0]
prev_stamp = [None]
stamp_names = {}
def stamp(name, first=False):
    if not OPT["stamps"]: return
    idx = stamp_names.setdefault(name, len(stamp_names))
    assert idx < 64
    if first: a("v_mov_b32 v5, 0")
    elif prev_stamp[0] is not None: a(f"v_writelane_b32 v5, s100, {prev_stamp[0]}")
    a("s_memrealtime s[100:101]" if OPT["stamps"] == 1 else "s_memtime s[100:101]")
    prev_stamp[0] = idx

def stamp_flush():
    if not OPT["stamps"]: return
    if OPT["dbgst"]:
        L = newlab("dbg")
        role = "a" if prev_stamp[0] in [v for k, v in stamp_names.items() if k.startswith("a")] else "b"
        want = {"a": ["a1_c0", "a1_main", "a1_pub", "a2_poll", "a2_start", "a2_main", "a2_pub"], "b": ["b0_rec", "b2_poll", "b2_pub", "b3_poll", "b3_main", "b4_poll", "b4_end"]}[role]
        if not all(w in stamp_names for w in want) or list(stamp_names)[prev_stamp[0]] != want[-1]: return
        a(f"s_waitcnt lgkmcnt(0)\nv_writelane_b32 v5, s100, {prev_stamp[0]}\ns_and_b32 s100, s2, 255\ns_lshl_b32 s100, s100, 2\ns_add_u32 s100, s100, s{sW}\ns_cmp_lg_u32 s100, {OPT['dbgst']*4}\ns_cbranch_scc1 {L}")
        a(f"v_readlane_b32 s100, v5, 0\ns_mov_b64 exec, 1")
        for i, w in enumerate(want):
            a(f"v_readlane_b32 s101, v5, {stamp_names[w]}\ns_sub_u32 s101, s101, s100\nv_mov_b32 v{vP0}, s101\nbuffer_store_dword v{vP0}, v{vZERO}, s[{sDBG}:{sDBG+3}], 0 offen offset:{8 + 4*i + (28 if role == 'b' else 0)}\ns_nop 1")
        a("s_mov_b64 exec, -1")
        a.label(L)
        return
    a(f"s_waitcnt lgkmcnt(0)\nv_writelane_b32 v5, s100, {prev_stamp[0]}")
    a(f"s_lshl_b32 s100, s2, 2\ns_add_u32 s100, s100, s{sW}\ns_lshl_b32 s100, s100, 8\ns_add_u32 s100, s100, {STAMP}")
    a(f"v_lshlrev_b32 v{vP0}, 2, v{vLANE}\nbuffer_store_dword v5, v{vP0}, s[{sWS}:{sWS+3}], s100 offen")

def get_nonce(loaded=False):
    L = newlab("no"); Dn = newlab("nod"); C = newlab("noc")
    q = list(a.vmq)
    a(f"s_mov_b32 s{sCNT}, {OPT['spin']}")
    if loaded: a(f"s_branch {C}")
    a.label(L)
    a(f"buffer_load_dwordx2 v[{vNO}:{vNO+1}], v{vZERO}, s[{sDBG}:{sDBG+3}], 0 offen sc1\ns_waitcnt vmcnt(0)")
    a.label(C)
    a(f"v_readfirstlane_b32 s{sNO}, v{vNO}\nv_readfirstlane_b32 s{sNO+1}, v{vNO+1}")
    a(f"s_cmp_lg_u32 s{sNO}, 0\ns_cbranch_scc1 {Dn}\ns_sub_u32 s{sCNT}, s{sCNT}, 1\ns_cbranch_scc1 {Dn}\ns_sleep 1\ns_branch {L}")
    a.label(Dn)
    if not loaded: a.vmq = []

def post(vaddrs, barrier=True):
    L = newlab("post")
    if barrier:
        a.wait_all()
        a("s_barrier")
    a(f"s_cmp_lg_u32 s{sW}, 0\ns_cbranch_scc1 {L}")
    for v in vaddrs: a(f"buffer_store_dwordx2 v[{vNO}:{vNO+1}], v{v}, s[{sWS}:{sWS+3}], 0 offen sc1")
    a.label(L)

def lane_div(q, r, src, d, t):
    a(f"v_mul_u32_u24 v{q}, 37, v{src}\nv_lshrrev_b32 v{q}, {8 if d == 7 else 9}, v{q}\nv_mul_u32_u24 v{t}, {d}, v{q}\nv_sub_u32 v{r}, v{src}, v{t}")

def lanes_below(v, n, t):
    a(f"v_mov_b32 v{t}, {hx(OOB)}\nv_cmp_gt_u32 vcc, {n}, v{vLANE}\nv_cndmask_b32 v{v}, v{t}, v{v}, vcc")

def spoll(loads):
    L = newlab("sp"); Dn = newlab("spd")
    a(f"s_mov_b32 s{sCNT}, {OPT['spin']}")
    a.label(L)
    regs = []
    for (d, n, so, imm, used) in loads:
        a(f"s_buffer_load_dwordx{n} s[{d}:{d+n-1}], s[{sWS}:{sWS+3}], s{so} offset:{imm} glc")
        regs += [d + 2 * k for k in range(used)]
    a.wait_all(vm=False)
    for r in regs: a(f"s_xor_b64 s[{r}:{r+1}], s[{r}:{r+1}], s[{sNO}:{sNO+1}]")
    while len(regs) > 1:
        r = regs.pop(); a(f"s_or_b64 s[{regs[0]}:{regs[0]+1}], s[{regs[0]}:{regs[0]+1}], s[{r}:{r+1}]")
    a(f"s_cbranch_scc0 {Dn}\ns_sub_u32 s{sCNT}, s{sCNT}, 1\ns_cbranch_scc1 {Dn}" + ("\ns_sleep 1" if OPT["psl"] else "") + f"\ns_branch {L}")
    a.label(Dn)

def poll(sleep=1):
    L = newlab("po"); Dn = newlab("pod")
    a(f"s_mov_b32 s{sCNT}, {OPT['spin']}")
    a.label(L)
    a(f"buffer_load_dwordx2 v[{vP0}:{vP0+1}], v{vPO}, s[{sWS}:{sWS+3}], 0 offen sc1")
    a.wait_all(lg=False)
    a(f"v_cmp_ne_u64 vcc, v[{vP0}:{vP0+1}], v[{vNO}:{vNO+1}]\ns_cbranch_vccz {Dn}\ns_sub_u32 s{sCNT}, s{sCNT}, 1\ns_cbranch_scc1 {Dn}\ns_sleep {sleep}\ns_branch {L}")
    a.label(Dn)

def publish(sflag, barrier=True):
    L = newlab("pub")
    if barrier:
        a.wait_all()
        a("s_barrier")
    a(f"s_cmp_lg_u32 s{sW}, 0\ns_cbranch_scc1 {L}\ns_mov_b64 exec, 1")
    a(f"buffer_store_dwordx2 v[{vNO}:{vNO+1}], v{vZERO}, s[{sWS}:{sWS+3}], s{sflag} offen sc1")
    a("s_mov_b64 exec, -1")
    a.label(L)
    a.flag_pending = True

def xhalf_add(v, t1, t2):
    a(f"v_mov_b32 v{t1}, v{v}\nv_mov_b32 v{t2}, v{v}\nv_permlane32_swap_b32 v{t1}, v{t2}\nv_add_f32 v{v}, v{t1}, v{t2}")

def ln_stats(vsum, vsq, t):
    a(f"v_mul_f32 v{vsum}, {hx(f2u(1.0/D))}, v{vsum}\nv_mul_f32 v{vsq}, {hx(f2u(1.0/D))}, v{vsq}")
    a(f"v_fma_f32 v{vsq}, -v{vsum}, v{vsum}, v{vsq}\nv_max_f32 v{vsq}, 0, v{vsq}")

def scale16(acc):
    for i in range(0, 16, 2):
        a(f"v_pk_mul_f32 v[{acc+i}:{acc+i+1}], v[{acc+i}:{acc+i+1}], v[{vA}:{vA+1}] op_sel_hi:[1,0]")
def shift16(acc, cs):
    for i in range(0, 16, 2):
        a(f"v_pk_fma_f32 v[{acc+i}:{acc+i+1}], v[{cs+i}:{cs+i+1}], v[{vB}:{vB+1}], v[{acc+i}:{acc+i+1}] op_sel_hi:[1,0,1]")

def gelu_consts(vC, va):
    a(f"v_mul_f32 v{vC}, {hx(f2u(GA))}, v{va}\nv_mul_f32 v{vC+2}, v{va}, v{va}\nv_rcp_f32 v{vC+4}, v{va}\nv_mul_f32 v{vC+2}, v{vC+2}, v{va}\nv_mul_f32 v{vC+2}, {hx(f2u(GB))}, v{vC+2}")

def gelu16(y, t, vC, hook=lambda: None):
    for i in range(0, 16, 2):
        a(f"v_pk_mul_f32 v[{t+i}:{t+i+1}], v[{y+i}:{y+i+1}], v[{y+i}:{y+i+1}]")
    for i in range(0, 16, 2):
        a(f"v_pk_fma_f32 v[{t+i}:{t+i+1}], v[{t+i}:{t+i+1}], v[{vC+2}:{vC+3}], v[{vC}:{vC+1}] op_sel_hi:[1,0,0]")
    hook()
    for i in range(0, 16, 2):
        a(f"v_pk_mul_f32 v[{t+i}:{t+i+1}], v[{t+i}:{t+i+1}], v[{y+i}:{y+i+1}]")
    for i in range(16):
        a(f"v_exp_f32 v{t+i}, v{t+i}")
        if i == 7: hook()
    for i in range(0, 16, 2):
        a(f"v_pk_fma_f32 v[{t+i}:{t+i+1}], v[{t+i}:{t+i+1}], v[{vC+4}:{vC+5}], v[{vC+4}:{vC+5}] op_sel_hi:[1,0,0]")
    hook()
    for i in range(16):
        a(f"v_rcp_f32 v{t+i}, v{t+i}")
        if i == 9: hook()
    for i in range(0, 16, 2):
        a(f"v_pk_mul_f32 v[{y+i}:{y+i+1}], v[{y+i}:{y+i+1}], v[{t+i}:{t+i+1}]")
    hook()

class Deferred:
    def __init__(self): self.groups = []
    def __enter__(self):
        self.orig = Asm.__call__; d = self
        def cap(asm, text):
            n = len(asm.ins); d.orig(asm, text); d.groups.append(asm.ins[n:]); del asm.ins[n:]
        Asm.__call__ = cap; return self
    def __exit__(self, *e): Asm.__call__ = self.orig
    def drip(self, ninstr):
        while self.groups and ninstr > 0:
            g = self.groups.pop(0); a.ins.extend(g); ninstr -= len(g)
    def flush(self): self.drip(1 << 30)

def cvt16(pk, y):
    for i in range(8): a(f"v_cvt_pk_bf16_f32 v{pk+i}, v{y+2*i}, v{y+2*i+1}")

PAD = [0]
def mfma(d, A, B, first=False):
    if PAD[0] > 0: a(f"s_nop {PAD[0]-1}")
    elif PAD[0] < 0:
        n = 0
        for i in reversed(a.ins):
            if i.kind == "mfma": break
            if not i.is_label: n += i.states * (OPT["dsw"] if i.kind in ("ds", "vmem", "dma") else 1)
            if n >= -PAD[0]: break
        if n < -PAD[0]: a(f"s_nop {-PAD[0]-n-1}")
    c = "0" if first else f"v[{d}:{d+15}]"
    a(f"v_mfma_f32_32x32x16_bf16 v[{d}:{d+15}], v[{A}:{A+3}], v[{B}:{B+3}], {c}")

def interleave(main, fill):
    n = len(main); k = 0
    for i, m in enumerate(main):
        m()
        upto = (len(fill) * (i + 1) + n - 1) // n
        while k < upto: fill[k](); k += 1

def rot7(dst, rot, n=7):
    for c in range(n):
        a(f"s_add_u32 s{dst+c}, s{rot}, {c}\ns_sub_u32 s{sT5}, s{dst+c}, 7\ns_cselect_b32 s{dst+c}, s{dst+c}, s{sT5}")


def prologue():
    a("s_cmp_ge_u32 s2, 512\ns_cbranch_scc1 L_end")
    a("s_load_dwordx16 s[4:19], s[0:1], 0\ns_load_dwordx4 s[20:23], s[0:1], 64\ns_load_dwordx2 s[24:25], s[0:1], 80")
    a(f"s_memrealtime s[{sTAG}:{sTAG+1}]")
    a(f"v_lshrrev_b32 v8, 6, v0\nv_and_b32 v{vLANE}, 63, v0\nv_readfirstlane_b32 s{sW}, v8")
    a(f"v_and_b32 v{vT_}, 31, v0\nv_bfe_u32 v{vHH}, v0, 5, 1\nv_mov_b32 v{vZERO}, 0\nv_lshlrev_b32 v{vL16}, 4, v{vLANE}")
    a(f"s_mov_b32 s{sHI}, 0\ns_mov_b32 s{sHI+1}, -1\ns_mov_b32 s{sONES}, 0x3f803f80")
    a(f"s_and_b32 s{sXCD}, s2, 7\ns_bfe_u32 s{sLOC}, s2, {(5 << 16) | 3}")
    stamp("entry", first=True)
    a(f"s_or_b32 s{sT4}, s2, s{sW}\ns_cmp_lg_u32 s{sT4}, 0\ns_cbranch_scc1 L_notag\ns_waitcnt lgkmcnt(0)")
    srd(sDBG, 22, 256)
    a(f"s_or_b32 s{sTAG}, s{sTAG}, 1\nv_mov_b32 v{vNO}, s{sTAG}\nv_mov_b32 v{vNO+1}, s{sTAG+1}\ns_mov_b64 exec, 1")
    a(f"buffer_store_dwordx2 v[{vNO}:{vNO+1}], v{vZERO}, s[{sDBG}:{sDBG+3}], 0 offen sc1\ns_mov_b64 exec, -1")
    a.label("L_notag")
    a("s_cmp_ge_u32 s2, 256\n" + ("s_cbranch_scc0" if OPT["swap"] else "s_cbranch_scc1") + " L_roleB")

def make_sel(dst, t):
    a(f"v_bfe_u32 v{t}, v{vLANE}, 2, 1\nv_bfe_u32 v{t+1}, v{vLANE}, 4, 1\nv_cmp_eq_u32 vcc, v{t}, v{t+1}\nv_mov_b32 v{t}, s{sONES}\ns_nop 0\n"
      + "\n".join(f"v_cndmask_b32 v{dst+i}, 0, v{t}, vcc" for i in range(4)))

def mfma_sum(d, sel, B, first):
    c = "0" if first else f"v[{d}:{d+3}]"
    a(f"v_mfma_f32_16x16x32_bf16 v[{d}:{d+3}], v[{sel}:{sel+3}], v[{B}:{B+3}], {c}")

def check_record(REC, voff, soff, loaded=True):
    L = newlab("rec"); Dn = newlab("recd"); C = newlab("recc")
    a(f"s_mov_b32 s{sCNT}, {OPT['spin']}")
    if loaded: a(f"s_branch {C}")
    a.label(L)
    a(f"buffer_load_dwordx4 v[{REC}:{REC+3}], v{voff}, s[{sWS}:{sWS+3}], s{soff} offen sc1\ns_waitcnt vmcnt(0)")
    a.label(C)
    a(f"v_cmp_ne_u32 vcc, v{REC+1}, v{vNO}\nv_cmp_ne_u32 s[{sT2}:{sT3}], v{REC+3}, v{vNO}\ns_or_b64 vcc, vcc, s[{sT2}:{sT3}]")
    a(f"v_cmp_eq_u32 s[{sT2}:{sT3}], 0, v{vNO}\ns_or_b64 vcc, vcc, s[{sT2}:{sT3}]\ns_cbranch_vccz {Dn}")
    a(f"s_sub_u32 s{sCNT}, s{sCNT}, 1\ns_cbranch_scc1 {Dn}\ns_sleep 1\ns_branch {L}")
    a.label(Dn)
    if not loaded: a.vmq = []

def addr_xdma(dst, nq, t):
    for q in range(nq):
        a(f"v_lshrrev_b32 v{t}, 3, v{vLANE}\nv_add_u32 v{t}, {8*q}, v{t}")
        a(f"v_bfe_u32 v{t+1}, v{t}, 1, 3\nv_and_b32 v{t+2}, 7, v{vLANE}\nv_xor_b32 v{t+1}, v{t+1}, v{t+2}")
        a(f"v_mul_u32_u24 v{t}, 896, v{t}\nv_lshl_add_u32 v{t}, v{t+1}, 4, v{t}\nv_subrev_u32 v{dst+q}, {1024*q}, v{t}")

def addr_wdma128(dst, t):
    a(f"v_lshrrev_b32 v{t}, 3, v{vLANE}\nv_bfe_u32 v{t+1}, v{vLANE}, 4, 1\nv_lshlrev_b32 v{t+1}, 2, v{t+1}")
    a(f"v_and_b32 v{t+2}, 7, v{vLANE}\nv_xor_b32 v{t+1}, v{t+1}, v{t+2}")
    a(f"v_mul_u32_u24 v{t}, 896, v{t}\nv_lshl_add_u32 v{dst}, v{t+1}, 4, v{t}\nv_add_u32 v{dst+1}, {8*896-1024}, v{dst}")

def addr_wdma256(dst, sstride, t, mask=False):
    a(f"v_lshrrev_b32 v{t}, 4, v{vLANE}\nv_lshlrev_b32 v{t+1}, 2, v{t}\nv_sub_u32 v{t+1}, v{vLANE}, v{t+1}\nv_and_b32 v{t+1}, 15, v{t+1}")
    a(f"v_mul_u32_u24 v{t}, s{sstride}, v{t}\nv_lshl_add_u32 v{dst}, v{t+1}, 4, v{t}")
    if mask: a(f"v_mov_b32 v{t}, 0x7fff0000\nv_cmp_gt_u32 vcc, 14, v{t+1}\nv_cndmask_b32 v{dst}, v{t}, v{dst}, vcc")
    a(f"s_lshl_b32 s{sT5}, s{sstride}, 2\ns_sub_u32 s{sT5}, s{sT5}, 1024")
    for q in range(1, 4): a(f"v_add_u32 v{dst+q}, s{sT5}, v{dst+q-1}")

def addr_xrd(dst, sbase, t):
    a(f"v_bfe_u32 v{t}, v{vT_}, 1, 3\nv_xor_b32 v{t}, v{t}, v{vHH}\nv_lshlrev_b32 v{t}, 4, v{t}\nv_lshl_add_u32 v{t}, v{vT_}, 7, v{t}")
    for ks in range(4):
        a(f"v_xor_b32 v{dst+ks}, {32*ks}, v{t}\nv_add_u32 v{dst+ks}, s{sbase}, v{dst+ks}")

def lane_rcg(t):
    a(f"v_bfe_u32 v{t}, v{vLANE}, 2, 2\nv_and_b32 v{t+1}, 3, v{vLANE}\nv_lshlrev_b32 v{t+1}, 3, v{t+1}")
    a(f"v_bfe_u32 v{t+2}, v{vLANE}, 4, 1\nv_lshl_add_u32 v{t+1}, v{t+2}, 5, v{t+1}")

def addr_wrd256(dst, cs, t):
    lane_rcg(t)
    a(f"v_lshl_add_u32 v{t+1}, v{t}, 6, v{t+1}")
    a(f"v_lshl_add_u32 v{t}, v{vHH}, 3, v{t}\nv_lshlrev_b32 v{t}, 8, v{t}")
    for u in range(4):
        a(f"s_add_u32 s{sT0}, s{sW}, {u}\ns_and_b32 s{sT0}, s{sT0}, 3\ns_mul_i32 s{sT0}, s{sT0}, {cs}")
        a(f"v_add_u32 v{dst+u}, s{sT0}, v{t+1}\nv_and_b32 v{dst+u}, 255, v{dst+u}\nv_add_u32 v{dst+u}, v{dst+u}, v{t}")

def addr_wrd128(dst, hhmul, scol, sbase, t):
    lane_rcg(t)
    a(f"v_lshrrev_b32 v{t+2}, 1, v{t}\nv_xor_b32 v{t+2}, s{scol}, v{t+2}\nv_lshl_add_u32 v{t+1}, v{t+2}, 6, v{t+1}")
    a(f"v_mad_u32_u24 v{t}, v{vHH}, {hhmul}, v{t}\nv_lshl_add_u32 v{dst}, v{t}, 7, v{t+1}")
    if sbase is not None: a(f"v_add_u32 v{dst}, s{sbase}, v{dst}")

def set_m0(expr_sgpr, add):
    a(f"s_add_u32 m0, s{expr_sgpr}, {add}" if add else f"s_mov_b32 m0, s{expr_sgpr}")


def panel_mainloop(name, ACC, WF, vWrd, nslot, xfrag, issue_w, wtok, hooks, SEL, CS4, defer=None, stream=()):
    rd = {}
    hi = [False]
    pre = set(range(nslot)); stream = list(stream)
    def wreads(s):
        c, ks = divmod(s, 4); slot = c % nslot
        base = slot * 16384 + ks * 4096
        if slot == 4 and not hi[0]:
            for u in range(4): a(f"v_add_u32 v{vWrd+u}, 0x10000, v{vWrd+u}")
            hi[0] = True
        if slot != 4 and hi[0]:
            for u in range(4): a(f"v_subrev_u32 v{vWrd+u}, 0x10000, v{vWrd+u}")
            hi[0] = False
        if slot == 4: base -= 65536
        toks = []; rd[s] = toks; th = []
        for u in range(2 if OPT["xp"] & 8 else 4):
            for jj in range(2):
                r = WF + (s & 1) * 16 + u * 4 + jj * 2
                th.append(lambda r=r, u=u, jj=jj: toks.append(a.lg(f"ds_read_b64_tr_b16 v[{r}:{r+1}], v{vWrd+u} offset:{base + jj*1024}")))
        return th
    hooks["before_barrier"](0)
    a.wait(vm=wtok[0]); a("s_barrier")
    stamp(name + "_c0")
    for t in hooks["after_barrier"](0) + wreads(0): t()
    for s in range(28):
        c, ks = divmod(s, 4)
        a.wait(lg=rd[s] + hooks["lg_need"](s), vm=hooks["vm_need"](s))
        reads = []; late = []
        if ks == 3 and c < 6:
            hooks["before_barrier"](c + 1)
            a.wait(vm=wtok[c + 1]); a("s_barrier")
            if c in (1, 3, 5): stamp(name + f"_c{c+1}")
            reads += hooks["after_barrier"](c + 1)
        if s < 27: reads += wreads(s + 1)
        for cc, qs in ((c + nslot, (0, 1)) if ks == 3 else (c - 1 + nslot, (2, 3)) if ks == 0 and c > 0 else (99, ()),):
            if cc <= 6 and cc not in pre:
                for q in qs: late.append(lambda cc=cc, q=q: wtok.setdefault(cc, []).extend(issue_w(cc, (q,))))
        for k in range(2):
            if stream: late.append(stream.pop(0))
        late += hooks["kstep"](s)
        xf = xfrag(s); w = WF + (s & 1) * 16
        h = (len(reads) + 1) // 2
        mfma(ACC, w, xf, first=(s == 0))
        for t in reads[:h]: t()
        mfma(ACC + 16, w + 4, xf, first=(s == 0))
        for t in reads[h:]: t()
        h = (len(late) + 1) // 2
        mfma(ACC + 32, w + 8, xf, first=(s == 0))
        for t in late[:h]: t()
        if defer: defer.drip(3)
        mfma(ACC + 48, w + 12, xf, first=(s == 0))
        for t in late[h:]: t()
        if defer: defer.drip(3)
        if SEL is not None and not (OPT["xp"] & 4 and s > 0): mfma_sum(CS4, SEL, w, s == 0)
    if defer: defer.flush()

def addr_cs(vCW, vCA, csbase):
    a(f"s_lshl_b32 s{sT0}, s{sW}, 7\ns_add_u32 s{sT0}, s{sT0}, {csbase}\nv_lshl_add_u32 v{vCW}, v{vT_}, 2, s{sT0}")
    for u in range(4):
        a(f"s_add_u32 s{sT0}, s{sW}, {u}\ns_and_b32 s{sT0}, s{sT0}, 3\ns_lshl_b32 s{sT0}, s{sT0}, 7\ns_add_u32 s{sT0}, s{sT0}, {csbase}\nv_lshl_add_u32 v{vCA+u}, v{vHH}, 4, s{sT0}")

def read_cs(dst, vaddr):
    return [a.lg(f"ds_read_b128 v[{dst+4*i}:{dst+4*i+3}], v{vaddr} offset:{32*i}") for i in range(4)]

sTAG = 98
def stage_A1():
    a.comment("==== A1: 128 rows x 112 columns of LN(x) @ [wq | wk | wv | w1]")
    if OPT["prio_a1"]: a(f"s_setprio {OPT['prio_a1']}")
    ACC, XF, WF = 16, 80, 112
    vWd, vXd, vXr, vWr = 144, 148, 152, 156
    SEL, CS4, REC, vCA, vVw, vVr, vPA, vPB, vSt, vCW, vM0, vM1, vRo = 160, 164, 168, 172, 176, 180, 182, 183, 184, 185, 186, 187, 188
    T = 190
    GT, PK = 200, 216
    sRB, sCG, sROT = sA0, sA0 + 1, sA0 + 2
    sKC = sA0 + 3
    sWO_ = sA0 + 10
    sM0W, sM0X, sTY, sHQ, sSTR, sCST = sA0 + 17, sA0 + 18, sA0 + 19, sA0 + 20, sA0 + 21, sA0 + 22
    sD0, sD1, sFL, sRO, sSC, sGO, sG = 4, 8, 12, 13, 14, 15, 16
    a(f"s_lshr_b32 s{sT0}, s{sLOC}, 3\ns_lshr_b32 s{sT2}, s{sXCD}, 1\ns_lshl_b32 s{sT2}, s{sT2}, 2\ns_add_u32 s{sRB}, s{sT2}, s{sT0}")
    a(f"s_and_b32 s{sT2}, s{sXCD}, 1\ns_lshl_b32 s{sT2}, s{sT2}, 3\ns_and_b32 s{sT1}, s{sLOC}, 7\ns_add_u32 s{sCG}, s{sT2}, s{sT1}")
    a(f"s_lshr_b32 s{sTY}, s{sCG}, 2\ns_and_b32 s{sHQ}, s{sCG}, 3")
    a(f"s_cmp_eq_u32 s{sTY}, 3\ns_movk_i32 s{sSTR}, 2688\ns_cselect_b32 s{sSTR}, 896, s{sSTR}\ns_cselect_b32 s{sCST}, 64, 56\ns_cselect_b32 s{sT3}, s{sHQ}, s{sCG}")
    a(f"s_mul_i32 s{sT0}, s{sLOC}, 37\ns_lshr_b32 s{sT0}, s{sT0}, 8\ns_mul_i32 s{sT0}, s{sT0}, 7\ns_sub_u32 s{sROT}, s{sLOC}, s{sT0}")
    a(f"s_lshl_b32 s{sT0}, s{sRB}, 2\ns_add_u32 s{sT0}, s{sT0}, s{sW}\ns_mul_i32 s{sT0}, s{sT0}, {32*896}")
    a(f"s_lshl_b32 s{sT1}, s{sW}, 4\ns_mul_i32 s{sT1}, s{sT1}, s{sSTR}\ns_mul_i32 s{sT2}, s{sT3}, 224\ns_add_u32 s{sT1}, s{sT1}, s{sT2}")
    a(f"s_lshl_b32 s{sT2}, s{sSTR}, 6")
    def chunk_offsets(c):
        a(f"s_add_u32 s{sKC+c}, s{sROT}, {c}\ns_sub_u32 s{sT5}, s{sKC+c}, 7\ns_cselect_b32 s{sKC+c}, s{sKC+c}, s{sT5}")
        a(f"s_mul_i32 s{sWO_+c}, s{sKC+c}, s{sT2}\ns_add_u32 s{sWO_+c}, s{sWO_+c}, s{sT1}")
        a(f"s_lshl_b32 s{sKC+c}, s{sKC+c}, 7\ns_add_u32 s{sKC+c}, s{sKC+c}, s{sT0}")
    for c in range(2): chunk_offsets(c)
    a(f"s_lshl_b32 s{sM0W}, s{sW}, 12\ns_lshl_b32 s{sM0X}, s{sW}, 13\ns_add_u32 s{sM0X}, s{sM0X}, 49152")
    addr_xdma(vXd, 4, T); addr_wdma256(vWd, sSTR, T, mask=True)
    a("s_waitcnt lgkmcnt(0)")
    stamp("a1_karg")
    srd(sX, 4, S * D * 2)
    a(f"s_cmp_eq_u32 s{sTY}, 3\ns_cselect_b32 s{sWA}, s12, s6\ns_cselect_b32 s{sWA+1}, s13, s7\ns_mov_b32 s{sWA+2}, {D*3*D*2}\ns_cselect_b32 s{sWA+2}, {D*D*2}, s{sWA+2}\ns_mov_b32 s{sWA+3}, 0x20000")
    srd(sDBG, 22, 256)
    m0 = [None]
    def issue_x(c, qs=range(4)):
        if m0[0] != ("x", c): set_m0(sM0X, (c & 1) * 4096); m0[0] = ("x", c)
        if OPT["xp"] & 1 and c > 1: return []
        return [a.vm(f"buffer_load_dwordx4 v{vXd+q}, s[{sX}:{sX+3}], s{sKC+c} offen offset:{1024*q} lds") for q in qs]
    def issue_w(c, qs=range(4)):
        if m0[0] != ("w", c): set_m0(sM0W, (c % 3) * 16384); m0[0] = ("w", c)
        if OPT["xp"] & 2 and c > 2: return []
        return [a.vm(f"buffer_load_dwordx4 v{vWd+q}, s[{sWA}:{sWA+3}], s{sWO_+c} offen offset:{1024*q} lds") for q in qs]
    xt = {}; wt = {}
    xt[0] = issue_x(0); wt[0] = issue_w(0)
    for c in range(2, 7): chunk_offsets(c)
    addr_xrd(vXr, sM0X, T)
    if OPT["a1s"] < 2: xt[1] = issue_x(1)
    addr_wrd256(vWr, f"s{sCST}", T)
    make_sel(SEL, T)
    srd(sWS, 24, WS_SIZE)
    CSB = 16384
    with Deferred() as df:
        a(f"s_and_b32 s{sGO}, s2, 255\ns_lshl_b32 s{sGO}, s{sGO}, 6\ns_add_u32 s{sGO}, s{sGO}, {F_GO}")
        a(f"s_lshl_b32 s{sT0}, s{sRB}, 2\ns_add_u32 s{sT4}, s{sT0}, s{sW}\ns_lshl_b32 s{sRO}, s{sT4}, 9\ns_add_u32 s{sRO}, s{sRO}, {ST0}")
        a(f"v_lshlrev_b32 v{vRo}, 4, v{vT_}")
        addr_cs(vCW, vCA, CSB)
        a(f"s_lshl_b32 s{sT0}, s{sHQ}, 15\ns_lshl_b32 s{sT1}, s{sRB}, 9\ns_add_u32 s{sT1}, s{sT1}, s{sT0}")
        a(f"v_lshrrev_b32 v{T}, 2, v{vLANE}\nv_lshlrev_b32 v{T}, 13, v{T}\nv_and_b32 v{T+1}, 3, v{vLANE}\nv_lshl_add_u32 v{T}, v{T+1}, 7, v{T}\nv_add_u32 v{vM1}, s{sT1}, v{T}")
        lanes_below(vM1, 16, T)
        a(f"s_lshr_b32 s{sT1}, s{sRB}, 2\ns_lshl_b32 s{sT1}, s{sT1}, 7\ns_add_u32 s{sT0}, s{sT0}, s{sT1}\ns_and_b32 s{sT1}, s{sRB}, 3\ns_lshl_b32 s{sT2}, s{sTY}, 2\ns_add_u32 s{sT1}, s{sT1}, s{sT2}")
        a(f"s_sub_u32 s{sT1}, s{sT1}, 2\ns_lshl_b32 s{sT1}, s{sT1}, 3\ns_add_u32 s{sT0}, s{sT0}, s{sT1}\nv_lshl_add_u32 v{vM0}, v{vLANE}, 9, s{sT0}")
        a(f"s_cmp_eq_u32 s{sTY}, 0\ns_cselect_b64 vcc, -1, 0\nv_cndmask_b32 v{vM0}, v{vM0}, v{vM1}, vcc")
        lane_div(T, T + 1, vLANE, 14, T + 2)
        a(f"s_lshl_b32 s{sT0}, s{sRB}, 1\ns_sub_u32 s{sT0}, s{sT0}, 1\nv_add_u32 v{T+2}, s{sT0}, v{T}\nv_max_i32 v{T+2}, 0, v{T+2}\nv_min_i32 v{T+2}, 31, v{T+2}")
        a(f"v_mul_u32_u24 v{T+2}, 14, v{T+2}\nv_add_u32 v{T+2}, v{T+2}, v{T+1}\nv_lshlrev_b32 v{T+2}, 7, v{T+2}")
        a(f"v_add_u32 v{T}, 1, v{T}\nv_bfe_u32 v{T}, v{T}, 1, 1\nv_xor_b32 v{T}, 1, v{T}\nv_lshl_add_u32 v{T+2}, v{T}, 3, v{T+2}")
        a(f"s_lshr_b32 s{sT0}, s{sHQ}, 1\ns_lshl_b32 s{sT0}, s{sT0}, 6\ns_and_b32 s{sT1}, s{sHQ}, 1\ns_lshl_b32 s{sT1}, s{sT1}, 4\ns_add_u32 s{sT0}, s{sT0}, s{sT1}\ns_add_u32 s{sT0}, s{sT0}, {MB_H}\nv_add_u32 v{T+2}, s{sT0}, v{T+2}")
        lanes_below(T + 2, 56, T)
        a(f"s_cmp_eq_u32 s{sTY}, 3\ns_cselect_b64 vcc, -1, 0\nv_cndmask_b32 v{vM0}, v{vM0}, v{T+2}, vcc")
        a(f"s_cmp_eq_u32 s{sTY}, 1\ns_cselect_b32 s{sT0}, 8, {hx(OOB)}\nv_add_u32 v{vM1}, s{sT0}, v{vM1}")
        a(f"s_and_b32 s{sT0}, s2, 255\ns_lshl_b32 s{sT0}, s{sT0}, 6\ns_add_u32 s{sT0}, s{sT0}, {F_AP}\nv_mov_b32 v{T}, s{sT0}\nv_cmp_eq_u32 vcc, 16, v{vLANE}\ns_nop 1\nv_cndmask_b32 v{vM1}, v{vM1}, v{T}, vcc")
        a(f"s_lshl_b32 s{sT1}, s{sHQ}, 8\ns_add_u32 s{sT0}, s{sT4}, s{sT1}\ns_cmp_eq_u32 s{sTY}, 0\ns_cselect_b32 s{sSC}, 11, 12\ns_mov_b32 s{sT2}, {KV_ - 2048}\ns_cselect_b32 s{sT2}, {QB_}, s{sT2}")
        a(f"s_lshl_b32 s{sT0}, s{sT0}, s{sSC}\ns_lshl_b32 s{sT1}, s{sTY}, 11\ns_add_u32 s{sT0}, s{sT0}, s{sT1}\ns_add_u32 s{sT0}, s{sT0}, s{sT2}")
        a(f"s_lshl_b32 s{sT4}, s{sT4}, 9\ns_mul_i32 s{sT1}, s{sHQ}, {14*PL}\ns_add_u32 s{sT4}, s{sT4}, s{sT1}\ns_add_u32 s{sT4}, s{sT4}, {H_}")
        a(f"s_lshl_b32 s{sT1}, 64, s{sSC}\ns_movk_i32 s{sT2}, 1024\ns_movk_i32 s{sT3}, 512")
        a(f"s_cmp_eq_u32 s{sTY}, 3\ns_cselect_b32 s{sT0}, s{sT4}, s{sT0}\ns_cselect_b32 s{sT1}, {4*PL}, s{sT1}\ns_cselect_b32 s{sT2}, {2*PL}, s{sT2}\ns_cselect_b32 s{sT3}, {PL}, s{sT3}")
        a(f"v_mul_u32_u24 v{vSt}, s{sT3}, v{vHH}\nv_lshl_add_u32 v{vSt}, v{vT_}, 4, v{vSt}")
        for u in range(4):
            a(f"s_add_u32 s{sT3}, s{sW}, {u}\ns_and_b32 s{sT3}, s{sT3}, 3\ns_mul_i32 s{sD0+u}, s{sT3}, s{sT1}\ns_add_u32 s{sD0+u}, s{sD0+u}, s{sT0}")
            a(f"s_add_u32 s{sD1+u}, s{sD0+u}, s{sT2}\ns_lshl_b32 s{sT4}, s{sTY}, 2\ns_or_b32 s{sT3}, s{sT3}, s{sT4}")
            a(f"s_cmp_eq_u32 s{sT3}, 15\ns_cselect_b32 s{sD1+u}, 0x7fff0000, s{sD1+u}")
        a(f"s_cmp_eq_u32 s{sTY}, 1\ns_cselect_b32 s{sT1}, 0x3f803f80, 0\ns_cselect_b32 s{sT2}, 0x3f80, 0")
        a(f"s_cmp_eq_u32 s{sTY}, 2\ns_cselect_b32 s{sT1}, 0x3f80, s{sT1}")
        a(f"v_mov_b32 v{vPA}, s{sT1}\nv_mov_b32 v{vPB}, s{sT2}")
        a(f"s_cmp_eq_u32 s{sTY}, 0\ns_cselect_b32 s{sSC}, {hx(f2u(QSCALE))}, 1.0")
        a(f"v_bfe_u32 v{T}, v{vT_}, 1, 3\nv_xor_b32 v{T}, v{T}, v{vHH}\nv_lshlrev_b32 v{T}, 3, v{T}\nv_lshl_add_u32 v{T}, v{vT_}, 6, v{T}")
        for i in range(4): a(f"v_xor_b32 v{vVw+i}, {16*i}, v{T}\nv_add_u32 v{vVw+i}, s{sM0X}, v{vVw+i}")
        lane_rcg(T)
        for jj in range(2):
            a(f"v_lshl_add_u32 v{T+2}, v{vHH}, 2, v{T}\nv_add_u32 v{T+2}, {8*jj}, v{T+2}")
            a(f"v_bfe_u32 v{T+3}, v{T+2}, 1, 3\nv_lshlrev_b32 v{T+3}, 3, v{T+3}\nv_xor_b32 v{T+3}, v{T+3}, v{T+1}")
            a(f"v_lshl_add_u32 v{vVr+jj}, v{T+2}, 6, v{T+3}\nv_add_u32 v{vVr+jj}, s{sM0X}, v{vVr+jj}")
    if not OPT["defer"]: df.drip(70 if OPT["a1s"] < 2 else 999)
    if OPT["a1s"] >= 2: xt[1] = issue_x(1)
    wt[1] = issue_w(1)
    if not OPT["defer"]: df.flush()
    st1 = []
    if OPT["a1s"]: st1 = [lambda q=q: wt.setdefault(2, []).extend(issue_w(2, (q,))) for q in range(4)]
    else: wt[2] = issue_w(2)
    stamp("a1_issued")
    xr = {}; rec = []
    def go():
        a.wait(vm=rec[0]); get_nonce(loaded=True)
        publish(sGO, barrier=False)
    def after_barrier(c):
        xr[c] = []
        return [lambda ks=ks: xr[c].append(a.lg(f"ds_read_b128 v[{XF+(c&1)*16+4*ks}:{XF+(c&1)*16+4*ks+3}], v{vXr+ks} offset:{(c&1)*4096}")) for ks in range(4)]
    def kstep(s):
        th = []
        c, ks = divmod(s, 4)
        if ks in (1, 2) and c + 2 <= 6:
            for q in (2 * ks - 2, 2 * ks - 1): th.append(lambda q=q: xt.setdefault(c + 2, []).extend(issue_x(c + 2, (q,))))
        if s == OPT["go"] - 5: th.append(lambda: rec.append(a.vm(f"buffer_load_dwordx2 v[{vNO}:{vNO+1}], v{vZERO}, s[{sDBG}:{sDBG+3}], 0 offen sc1")))
        if s == OPT["go"]: th.append(go)
        if s == 22: th.append(lambda: rec.append(a.vm(f"buffer_load_dwordx4 v[{REC}:{REC+3}], v{vRo}, s[{sWS}:{sWS+3}], s{sRO} offen sc1")))
        return th
    hooks = dict(before_barrier=lambda c: a.wait(vm=xt[c]), after_barrier=after_barrier,
                 lg_need=lambda s: xr[s // 4] if s % 4 == 0 else [], vm_need=lambda s: [], kstep=kstep)
    panel_mainloop("a1", ACC, WF, vWr, 3, lambda s: XF + ((s // 4) & 1) * 16 + 4 * (s % 4), issue_w, wt, hooks, SEL, CS4, df, stream=st1)
    stamp("a1_main")
    a.wait(vm=rec)
    check_record(REC, vRo, sRO)
    a.lg(f"ds_write_b32 v{vCW}, v{CS4}")
    a(f"v_mul_f32 v{T}, v{REC+2}, v{REC+2}\nv_mov_b32 v{T+1}, {hx(f2u(1.0 + EPS))}\nv_mov_b32 v{T+2}, {hx(f2u(-EPS))}\nv_fma_f32 v{T}, v{T}, v{T+2}, v{T+1}\nv_rsq_f32 v{T}, v{T}")
    a(f"s_cmp_eq_u32 s{sTY}, 3\ns_cselect_b64 vcc, -1, 0\nv_mov_b32 v{T+1}, s{sSC}\nv_cndmask_b32 v{T}, v{T+1}, v{T}, vcc")
    a(f"v_mul_f32 v{vA}, v{T}, v{REC+2}\nv_mul_f32 v{vB}, v{vA}, v{REC}\nv_sub_f32 v{vB}, 0, v{vB}")
    a.wait_all(vm=False); a("s_barrier")
    stamp("a1_csbar")
    CS = 80
    toks = [read_cs(CS + 16 * u, vCA + u) for u in range(3)]
    a(f"s_cmp_eq_u32 s{sTY}, 3\ns_cbranch_scc1 L_A1_nosc")
    for u in range(4): scale16(ACC + 16 * u)
    a.label("L_A1_nosc")
    a.wait(lg=toks[0])
    toks.append(read_cs(CS + 48, vCA + 3))
    def store(u, pk):
        a.vm(f"buffer_store_dwordx4 v[{pk}:{pk+3}], v{vSt}, s[{sWS}:{sWS+3}], s{sD0+u} offen sc1")
        a.vm(f"buffer_store_dwordx4 v[{pk+4}:{pk+7}], v{vSt}, s[{sWS}:{sWS+3}], s{sD1+u} offen sc1")
    def pads(pk): a(f"v_cndmask_b32 v{pk+6}, v{pk+6}, v{vPA}, s[{sHI}:{sHI+1}]\nv_cndmask_b32 v{pk+7}, v{pk+7}, v{vPB}, s[{sHI}:{sHI+1}]")
    lgq0 = list(a.lgq); vmq0 = list(a.vmq)
    a(f"s_cmp_eq_u32 s{sTY}, 2\ns_cbranch_scc1 L_A1_v\ns_cmp_eq_u32 s{sTY}, 3\ns_cbranch_scc1 L_A1_w1")
    for u in range(4):
        a.wait(lg=toks[u]); shift16(ACC + 16 * u, CS + 16 * u)
        cvt16(PK + 8 * u, ACC + 16 * u); pads(PK + 8 * u); store(u, PK + 8 * u)
    a("s_branch L_A1_pub")
    a.label("L_A1_v")
    a.lgq = list(lgq0); a.vmq = list(vmq0); tr = {}
    for u in range(4):
        pk = PK + 8 * u
        a.wait(lg=toks[u]); shift16(ACC + 16 * u, CS + 16 * u)
        cvt16(pk, ACC + 16 * u); pads(pk)
        if u == 0: a.wait(lg=toks[3])
        if u > 0: a.wait(lg=tr[u - 1]); store(u - 1, pk - 8)
        for i in range(4): a.lg(f"ds_write_b64 v{vVw+i}, v[{pk+2*i}:{pk+2*i+1}] offset:{2048*u}")
        tr[u] = [a.lg(f"ds_read_b64_tr_b16 v[{pk+4*m+2*jj}:{pk+4*m+2*jj+1}], v{vVr+jj} offset:{2048*u + 1024*m}") for m in range(2) for jj in range(2)]
    a.wait(lg=tr[3]); store(3, PK + 24)
    a("s_branch L_A1_pub")
    a.label("L_A1_w1")
    a.lgq = list(lgq0); a.vmq = list(vmq0)
    gelu_consts(T, vA)
    a(f"v_sub_f32 v{vB}, 0, v{REC}")
    for u in range(4):
        a.wait(lg=toks[u]); shift16(ACC + 16 * u, CS + 16 * u)
        gelu16(ACC + 16 * u, GT, T)
        cvt16(PK + 8 * u, ACC + 16 * u); store(u, PK + 8 * u)
    a.label("L_A1_pub")
    stamp("a1_epi")
    post([vM0, vM1])
    stamp("a1_pub")

def rowmax(dst, s_, first):
    if first: a(f"v_max3_f32 v{dst}, v{s_}, v{s_+1}, v{s_+2}\nv_max_f32 v{dst}, v{dst}, v{s_+3}")
    else: a(f"v_max3_f32 v{dst}, v{dst}, v{s_}, v{s_+1}\nv_max3_f32 v{dst}, v{dst}, v{s_+2}, v{s_+3}")
    for i in range(4, 16, 2): a(f"v_max3_f32 v{dst}, v{dst}, v{s_+i}, v{s_+i+1}")

def stage_A2():
    a.comment("==== A2: attention, 128 queries of one head; wave = 512 keys; slot x holds query tile w^x^3")
    NR = OPT["nr"]
    Q, O, SS, P = 16, 48, 112, 144
    KB = 160; VB = KB + 8 * NR
    T = VB + 8 * NR; MX = 12
    assert T + 16 <= 256
    sH, sQB, sQ0, sK, sV, sK0, sRETRY, sKT0, sOD, sFL, sKVB, sPUB = sA0, sA0+1, sA0+2, sA0+3, sA0+4, sA0+5, sA0+6, sA0+7, sA0+8, sA0+10, sA0+11, sA0+12
    vOo, vW, vR, vKV = 0, 8, 9, 10
    a(f"s_lshr_b32 s{sT0}, s{sLOC}, 4\ns_lshl_b32 s{sH}, s{sXCD}, 1\ns_add_u32 s{sH}, s{sH}, s{sT0}\ns_and_b32 s{sQB}, s{sLOC}, 15")
    sMB = 52
    a(f"s_lshl_b32 s{sT0}, s{sH}, 4\ns_add_u32 s{sT0}, s{sT0}, s{sQB}\ns_lshl_b32 s{sT0}, s{sT0}, 2\ns_add_u32 s{sT0}, s{sT0}, s{sW}\ns_lshl_b32 s{sMB}, s{sT0}, 7")
    a(f"s_lshl_b32 s{sK0}, s{sH}, 18\ns_add_u32 s{sK0}, s{sK0}, {KV_}\ns_lshl_b32 s{sT0}, s{sW}, 16\ns_add_u32 s{sT0}, s{sT0}, s{sK0}\ns_mov_b32 s{sKVB}, s{sT0}\ns_lshl_b32 s{sT0}, s{sQB}, 14\ns_add_u32 s{sK0}, s{sK0}, s{sT0}")
    a(f"s_lshl_b32 s{sQ0}, s{sH}, 17\ns_lshl_b32 s{sT0}, s{sQB}, 13\ns_add_u32 s{sQ0}, s{sQ0}, s{sT0}\ns_add_u32 s{sQ0}, s{sQ0}, {QB_}")
    for kt in range(16): a(f"s_add_u32 s{8+kt}, s{sQB}, {kt}\ns_and_b32 s{8+kt}, s{8+kt}, 15\ns_lshl_b32 s{8+kt}, s{8+kt}, 12")
    a(f"s_mov_b32 s{sRETRY}, 0\ns_mov_b32 s{sPUB}, 0")
    for x in range(4): a(f"s_xor_b32 s{4+x}, s{sW}, {x^3}\ns_lshl_b32 s{4+x}, s{4+x}, 11\ns_add_u32 s{4+x}, s{4+x}, s{sQ0}")
    a(f"v_mul_u32_u24 v{vOo}, {PL}, v{vHH}\nv_lshl_add_u32 v{vOo}, v{vT_}, 4, v{vOo}")
    a(f"s_lshl_b32 s{sT0}, s{sQB}, 2\ns_add_u32 s{sT0}, s{sT0}, s{sW}\ns_lshl_b32 s{sT0}, s{sT0}, 9")
    a(f"s_mul_i32 s{sT1}, s{sH}, {4*PL}\ns_add_u32 s{sT0}, s{sT0}, s{sT1}\ns_add_u32 s{sOD}, s{sT0}, {O_}\ns_add_u32 s{sOD+1}, s{sOD}, {2*PL}")
    a(f"s_lshl_b32 s{sT0}, s{sQB}, 1\ns_lshr_b32 s{sT1}, s{sW}, 1\ns_add_u32 s{sT0}, s{sT0}, s{sT1}\ns_mul_i32 s{sT0}, s{sT0}, {7*256}\ns_lshr_b32 s{sT1}, s{sH}, 2\ns_lshl_b32 s{sT1}, s{sT1}, 6\ns_add_u32 s{sT0}, s{sT0}, s{sT1}")
    a(f"s_and_b32 s{sT1}, s{sH}, 3\ns_lshl_b32 s{sT1}, s{sT1}, 1\ns_and_b32 s{sT2}, s{sW}, 1\ns_add_u32 s{sT1}, s{sT1}, s{sT2}\ns_lshl_b32 s{sT1}, s{sT1}, 3\ns_add_u32 s{sT0}, s{sT0}, s{sT1}\ns_add_u32 s{sFL}, s{sT0}, {MB_O}")
    def ld(dst, soff, imm, vo=vL16): return a.vm(f"buffer_load_dwordx4 v[{dst}:{dst+3}], v{vo}, s[{sWS}:{sWS+3}], s{soff} offen offset:{imm} sc1")
    if OPT["prio_a2"] != OPT["prio_a1"]: a(f"s_setprio {OPT['prio_a2']}")
    spoll([(sF, 16, sMB, MB_A, 8), (48, 4, sMB, MB_A + 64, 2)])
    stamp("a2_poll")
    k0 = [ld(T, sK0, 0), ld(T + 4, sK0, 1024)]
    qt = [[ld(Q + 8 * x, 4 + x, 0), ld(Q + 8 * x + 4, 4 + x, 1024)] for x in range(4)]
    ND = OPT["nd"]
    BL = [(kt, x) for kt in range(16 - ND) for x in range(4)] + [(kt, x) for kt in range(16 - ND, 16) for x in range(3)] + [(kt, 3) for kt in range(16 - ND, 16)]
    first = {kt: min(n for n, b in enumerate(BL) if b[0] == kt) for kt in range(16)}
    last = {kt: max(n for n, b in enumerate(BL) if b[0] == kt) for kt in range(16)}
    lastx = {x: max(n for n, b in enumerate(BL) if b[1] == x) for x in range(4)}
    order = []
    for kt in range(16):
        for kind in "KV":
            for half in range(2):
                need = first[kt] - 2 if kind == "K" else first[kt] + 1
                free = -99 if kt < NR else (last[kt - NR] if kind == "K" else last[kt - NR] + 2)
                order.append((need, kind, kt, half, free))
    order.sort()
    tok = {}
    sKT = 8
    def issue(e):
        need, kind, kt, half, free = e
        if kind == "K": t = ld(KB + 8 * (kt % NR) + 4 * half, sKT + kt, 1024 * half, vKV)
        else: t = ld(VB + 8 * (kt % NR) + 4 * half, sKT + kt, 2048 + 1024 * half, vKV)
        tok.setdefault((kind, kt), []).append(t)
    def bump(e): pass
    NPRE = 6
    def first_loads():
        for e in order[:NPRE]: issue(e); bump(e)
    def kv_start():
        a(f"v_add_u32 v{vKV}, s{sKVB}, v{vL16}")
        first_loads()
        a(f"s_mul_i32 s{sT0}, s{sW}, 12288\nv_add_u32 v{vW}, s{sT0}, v{vL16}")
    kv_start()
    pend = order[NPRE:]
    for x in range(4):
        a.wait(vm=k0 + qt[x])
        s_ = SS + 16 * (x & 1)
        mfma(s_, T, Q + 8 * x, first=True); mfma(s_, T + 4, Q + 8 * x + 4)
        if x > 0: rowmax(MX + x - 1, SS + 16 * ((x - 1) & 1), True)
    rowmax(MX + 3, SS + 16, True)
    stamp("a2_max")
    a.label("L_A2_setmax")
    for x in range(4):
        a(f"v_mov_b32 v{T+x}, v{MX+x}")
    for x in range(4):
        a(f"v_permlane32_swap_b32 v{T+x}, v{MX+x}")
    for x in range(4):
        a(f"v_max_f32 v{MX+x}, v{T+x}, v{MX+x}")
    for x in range(4):
        m = MX + x; t = T + 4 * x
        a(f"v_cvt_pk_bf16_f32 v{t}, -v{m}, -v{m}\nv_and_b32 v{t+1}, 0xffff0000, v{t}\nv_sub_f32 v{t+2}, -v{m}, v{t+1}")
        a(f"v_cvt_pk_bf16_f32 v{t+3}, v{t+2}, v{t+2}\nv_and_b32 v{t+3}, 0xffff0000, v{t+3}\nv_sub_f32 v{t+2}, v{t+2}, v{t+3}")
        a(f"v_and_b32 v{t}, 0xffff, v{t}\nv_or_b32 v{t}, v{t}, v{t+3}\nv_cvt_pk_bf16_f32 v{t+2}, v{t+2}, 0")
        a(f"v_cndmask_b32 v{Q+8*x+6}, v{Q+8*x+6}, v{t}, s[{sHI}:{sHI+1}]\nv_cndmask_b32 v{Q+8*x+7}, v{Q+8*x+7}, v{t+2}, s[{sHI}:{sHI+1}]")
        if x == 0:
            a.wait(vm=tok[("K", 0)])
            mfma(SS, KB, Q, first=True); mfma(SS, KB + 4, Q + 4)
    def QK(n, half):
        kt, x = BL[n]
        mfma(SS + 16 * (n & 1), KB + 8 * (kt % NR) + 4 * half, Q + 8 * x + 4 * half, first=(half == 0))
    def PV(n, half):
        kt, x = BL[n]
        mfma(O + 16 * x, VB + 8 * (kt % NR) + 4 * half, P + 8 * (n & 1) + 4 * half, first=(kt == 0 and half == 0))
    def owrite(x, i): a.lg(f"ds_write_b128 v{vW}, v[{O+16*x+4*i}:{O+16*x+4*i+3}] offset:{x*4096 + 1024*i}")
    tk = []
    def oread(x): tk.append([a.lg(f"ds_read_b128 v[{O+16*x+4*i}:{O+16*x+4*i+3}], v{T+8+x} offset:{x*4096 + 1024*i}") for i in range(4)])
    for x in range(3): a(f"s_xor_b32 s{sT0}, s{sW}, {x^3}\ns_mul_i32 s{sT0}, s{sT0}, 12288\nv_add_u32 v{T+8+x}, s{sT0}, v{vL16}")
    a(f"v_mov_b32 v{T+2}, 49152\nv_mov_b32 v{T+3}, 0")
    a.lg(f"ds_write_b32 v{T+2}, v{T+3}")
    stamp("a2_start")
    if OPT["prio_a1"]: a("s_setprio 0")
    a.hot = True
    for n in range(64):
        if n in (16, 32, 48): stamp(f"a2_b{n}")
        kt, x = BL[n]
        s_ = SS + 16 * (n & 1); p_ = P + 8 * (n & 1)
        e = lambda i: a(f"v_exp_f32 v{s_+i}, v{s_+i}")
        c = lambda i: a(f"v_cvt_pk_bf16_f32 v{p_+i}, v{s_+2*i}, v{s_+2*i+1}")
        sh = [[], [], [], []]
        pre = [[], [], [], []]
        ap = OPT["aprio"] if n < OPT["alate"] else OPT["aprio2"]
        if n == OPT["alate"] and ap == 5: pre[0].append(lambda: a("s_setprio 3"))
        for g in ((0, 2) if n >= OPT['fill'] else (0,)):
            if pend and pend[0][4] <= n:
                ent = pend.pop(0)
                assert ent[0] > n + 1, (ent, n)
                hi = ap == 1 or (ap in (2, 3) and g == 2)
                if hi: pre[g].append(lambda: a("s_setprio 3"))
                sh[g].append(lambda ent=ent: issue(ent))
                if hi: sh[g].append(lambda: a("s_setprio 0"))
                sh[g + 1].append(lambda ent=ent: bump(ent))
        if ap == 2: sh[3].append(lambda: a("s_setprio 3")); sh[1].append(lambda: a("s_setprio 0"))
        if ap == 3: sh[3].append(lambda: a("s_setprio 3")); sh[0].append(lambda: a("s_setprio 0"))
        if ap == 4: sh[3].append(lambda: a("s_setprio 3")); sh[2].append(lambda: a("s_setprio 0"))
        for k2 in range(1, 16):
            if first[k2] - 2 == n: sh[3].append(lambda k2=k2: a.wait(vm=tok[("K", k2)]))
        for k2 in range(16):
            if first[k2] + 1 == n: sh[1].append(lambda k2=k2: a.wait(vm=tok[("V", k2)]))
        for x2 in range(3):
            if n == lastx[x2] + 2:
                for g in range(4): sh[min(g + 1, 3)].append(lambda g=g, x2=x2: owrite(x2, g))
        if ND >= 4 and n == lastx[2] + 3:
            sh[1].append(lambda: (a.wait_all(vm=False), a("s_barrier")))
            sh[2].append(lambda: oread(0)); sh[3].append(lambda: oread(1))
        if ND >= 4 and n == lastx[2] + 4: sh[0].append(lambda: oread(2))
        mm = [(lambda: QK(n + 1, 0)) if n < 63 else None, (lambda: QK(n + 1, 1)) if n < 63 else None,
              (lambda: PV(n - 1, 0)) if n > 0 else None, (lambda: PV(n - 1, 1)) if n > 0 else None]
        seq = [[("e", 0), ("e", 1), ("e", 2), ("e", 3), ("c", 0)],
               [("e", 4), ("e", 5), ("c", 1), ("e", 6), ("e", 7), ("c", 2)],
               [("e", 8), ("e", 9), ("c", 3), ("e", 10), ("e", 11), ("c", 4)],
               [("e", 12), ("e", 13), ("c", 5), ("e", 14), ("e", 15), ("c", 6), ("c", 7)]]
        for g in range(4):
            for t in pre[g]: t()
            if mm[g]: mm[g]()
            for t in sh[g]: t()
            for k, i in seq[g]: (e if k == "e" else c)(i)
    assert not pend
    a.hot = False
    if OPT["prio_at"]: a(f"s_setprio {OPT['prio_at']}")
    PV(63, 0); PV(63, 1)
    stamp("a2_main")
    R = O + 48
    if ND < 4:
        for x2 in range(3):
            if lastx[x2] + 2 > 63:
                for i in range(4): owrite(x2, i)
        a.wait_all(vm=False); a("s_barrier")
        stamp("a2_cbar")
        for x in range(3): oread(x)
    a.wait(lg=tk[1])
    for i in range(0, 16, 2): a(f"v_pk_add_f32 v[{O+i}:{O+i+1}], v[{O+i}:{O+i+1}], v[{O+16+i}:{O+16+i+1}]")
    a.wait(lg=tk[2])
    for i in range(0, 16, 2): a(f"v_pk_add_f32 v[{O+i}:{O+i+1}], v[{O+i}:{O+i+1}], v[{O+32+i}:{O+32+i+1}]")
    for i in range(0, 16, 2): a(f"v_pk_add_f32 v[{R+i}:{R+i+1}], v[{R+i}:{R+i+1}], v[{O+i}:{O+i+1}]")
    a(f"v_mov_b32 v{T+4}, v{R+12}\nv_mov_b32 v{T+5}, v{R+12}\nv_permlane32_swap_b32 v{T+4}, v{T+5}\nv_rcp_f32 v{vA}, v{T+5}")
    scale16(R)
    cvt16(P, R)
    a(f"v_cndmask_b32 v{P+6}, v{P+6}, v{vZERO}, s[{sHI}:{sHI+1}]\nv_cndmask_b32 v{P+7}, v{P+7}, v{vZERO}, s[{sHI}:{sHI+1}]")
    a(f"s_cmp_lg_u32 s{sPUB}, 0\ns_cbranch_scc1 L_A2_done")
    a.vm(f"buffer_store_dwordx4 v[{P}:{P+3}], v{vOo}, s[{sWS}:{sWS+3}], s{sOD} offen sc1")
    a.vm(f"buffer_store_dwordx4 v[{P+4}:{P+7}], v{vOo}, s[{sWS}:{sWS+3}], s{sOD+1} offen sc1")
    a(f"v_pk_mul_f32 v[{T+6}:{T+7}], v[{R}:{R+1}], 0 op_sel_hi:[1,0]")
    for i in range(2, 16, 2): a(f"v_pk_fma_f32 v[{T+6}:{T+7}], v[{R+i}:{R+i+1}], 0, v[{T+6}:{T+7}] op_sel_hi:[1,0,1]")
    a(f"s_mov_b32 s{sT0}, {hx(f2u(2.0**120))}\nv_cmp_nge_f32 vcc, s{sT0}, v{T+5}\nv_cmp_u_f32 s[{sT2}:{sT3}], v{T+6}, v{T+7}\ns_or_b64 vcc, vcc, s[{sT2}:{sT3}]")
    a(f"s_cmp_lg_u32 s{sRETRY}, 0\ns_cbranch_scc1 L_A2_good\ns_cbranch_vccz L_A2_good")
    a(f"v_mov_b32 v{T+3}, 1\nds_write_b32 v{T+2}, v{T+3}\ns_branch L_A2_done")
    a.label("L_A2_good")
    stamp("a2_st")
    a(f"s_mov_b32 s{sPUB}, 1\nv_lshlrev_b32 v{T+6}, 8, v{vLANE}\ns_mov_b64 exec, 0x7f\ns_waitcnt vmcnt(0)")
    a(f"buffer_store_dwordx2 v[{vNO}:{vNO+1}], v{T+6}, s[{sWS}:{sWS+3}], s{sFL} offen sc1\ns_mov_b64 exec, -1")
    stamp("a2_pub")
    a.label("L_A2_done")
    a.wait_all(vm=False); a("s_barrier")
    a(f"ds_read_b32 v{T+3}, v{T+2}\ns_waitcnt lgkmcnt(0)\nv_readfirstlane_b32 s{sT0}, v{T+3}")
    a(f"s_andn2_b32 s{sT0}, s{sT0}, s{sRETRY}\ns_cmp_lg_u32 s{sT0}, 0\ns_cbranch_scc1 L_A2_fallback")
    stamp_flush()
    a("s_endpgm")
    a.label("L_A2_fallback")
    a(f"s_mov_b32 s{sRETRY}, 1\ns_barrier")
    for x in range(4):
        a(f"v_cndmask_b32 v{Q+8*x+6}, v{Q+8*x+6}, v{vZERO}, s[{sHI}:{sHI+1}]\nv_cndmask_b32 v{Q+8*x+7}, v{Q+8*x+7}, v{vZERO}, s[{sHI}:{sHI+1}]")
        a(f"v_mov_b32 v{MX+x}, 0xff800000")
    a(f"s_mov_b32 s{sK}, 0\ns_mov_b32 s{sT4}, 16")
    a.label("L_A2_fb_loop")
    ld(T, sK, 0, vKV); ld(T + 4, sK, 1024, vKV); a.wait_all()
    for x in range(4):
        mfma(SS, T, Q + 8 * x, first=True); mfma(SS, T + 4, Q + 8 * x + 4)
        rowmax(MX + x, SS, False)
        a("s_nop 7")
    a(f"s_add_u32 s{sK}, s{sK}, 4096\ns_sub_u32 s{sT4}, s{sT4}, 1\ns_cmp_lg_u32 s{sT4}, 0\ns_cbranch_scc1 L_A2_fb_loop")
    a(f"v_lshlrev_b32 v{T+8}, 2, v{vLANE}")
    for x in range(4):
        a(f"s_xor_b32 s{sT0}, s{sW}, {x^3}\ns_lshl_b32 s{sT0}, s{sT0}, 8\ns_lshl_b32 s{sT1}, s{sW}, 10\ns_add_u32 s{sT0}, s{sT0}, s{sT1}")
        a(f"v_add_u32 v{T+9}, s{sT0}, v{T+8}\nds_write_b32 v{T+9}, v{MX+x}")
    a("s_waitcnt lgkmcnt(0)\ns_barrier")
    for x in range(4):
        a(f"s_xor_b32 s{sT0}, s{sW}, {x^3}\ns_lshl_b32 s{sT0}, s{sT0}, 8\nv_add_u32 v{T+9}, s{sT0}, v{T+8}")
        for w2 in range(4): a(f"ds_read_b32 v{T+10+w2}, v{T+9} offset:{1024*w2}")
        a(f"s_waitcnt lgkmcnt(0)\nv_max3_f32 v{MX+x}, v{T+10}, v{T+11}, v{T+12}\nv_max_f32 v{MX+x}, v{MX+x}, v{T+13}")
    a("s_barrier")
    first_loads()
    a.wait_all()
    a("s_nop 7\ns_branch L_A2_setmax")

RES, vWD, vPLN, vGo1, vWr4, vMX, vMG = 232, 248, 250, 251, 252, 254, 255
vWd3, vWr3, vCA3, SEL3, CS43, vXo, vSo, vSH, vST, vCW3, TB = 194, 198, 202, 206, 210, 214, 215, 216, 220, 223, 224
sR64, sCT, sRW, sCW, sSO, sG2 = 75, 76, 77, 78, 79, 80
sRB3, sC3, sW3O, sM03, sK3 = 82, 83, 84, 91, 92
sG4, sW4o, sM04, sWOo, sOo, sX1D, sMB2, sMB3, sOUTD, sST1D = 4, 11, 18, 19, 20, 21, 22, 23, 24, 25
sGS = [80, 81, 99, 3]
NZ = OPT['nz']
CSB3 = 73728
B3 = {}; B4 = {}

def touch(srd_, soff, n):
    for i in range(n): a(f"s_buffer_load_dword s3, s[{srd_}:{srd_+3}], s{soff} offset:{128*i}")

def throttled(thunks, depth):
    toks = []
    for i, t in enumerate(thunks):
        toks += t()
        if len(toks) > depth: a.wait(vm=toks[:len(toks) - depth])
    return toks

def go_poll(st=True):
    if not OPT["go"]: return
    a(f"s_and_b32 s{sT4}, s2, 255\ns_lshl_b32 s{sT4}, s{sT4}, 6")
    spoll([(sT2, 2, sT4, F_GO, 1)])
    if st: stamp("b0_go")

def stage_B0():
    a.comment("==== B0: row statistics of x, prefetches, set-up")
    a.label("L_roleB")
    prev_stamp[0] = 0
    a.vmq = []; a.lgq = []
    T = TB; XR = 16
    a(f"s_lshl_b32 s{sT0}, s{sXCD}, 5\ns_add_u32 s{sT0}, s{sT0}, s{sLOC}\ns_lshl_b32 s{sT0}, s{sT0}, 2\ns_add_u32 s{sT0}, s{sT0}, s{sW}")
    a(f"s_mul_i32 s{sT1}, s{sT0}, {2*896}\ns_lshl_b32 s{sT4}, s{sT0}, 5\ns_add_u32 s{sT4}, s{sT4}, {ST0}")
    a(f"v_mul_u32_u24 v{T}, 896, v{vHH}\nv_lshl_add_u32 v{T}, v{vT_}, 4, v{T}\nv_mov_b32 v{T+1}, 0x7fff0000\nv_cmp_gt_u32 vcc, 28, v{vT_}\nv_cndmask_b32 v{T}, v{T+1}, v{T}, vcc")
    a("s_waitcnt lgkmcnt(0)")
    srd(sX, 4, S * D * 2)
    xl = [a.vm(f"buffer_load_dwordx4 v[{XR+4*i}:{XR+4*i+3}], v{T}, s[{sX}:{sX+3}], s{sT1} offen offset:{448*i}") for i in range(2)]
    stamp("b0_karg")
    srd(sDBG, 22, 256); srd(sWS, 24, WS_SIZE); srd(sW2, 14, D * D * 2); srd(sW3, 16, D * F * 2); srd(sW4, 18, D * F * 2); srd(sWO, 8, D * D * 2); srd(sOUT, 20, S * D * 2)
    a(f"v_mov_b32 v{XR+8}, 0\nv_mov_b32 v{XR+10}, 0\nv_lshlrev_b32 v{T+2}, 4, v{vHH}")
    def touches(items, nwg=256):
        a(f"s_and_b32 s{sT0}, s2, 255\nv_lshlrev_b32 v193, 7, v{vLANE}")
        Lj = newlab("tj")
        for w, (sr_, n) in enumerate(items):
            L = newlab("tc")
            if w < 3: a(f"s_cmp_lg_u32 s{sW}, {w}\ns_cbranch_scc1 {L}")
            if sr_ == "code":
                a(f"s_getpc_b64 s[{sWA}:{sWA+1}]")
                a.label("L_pc")
                a(f"s_sub_u32 s{sWA}, s{sWA}, L_pc-{NAME}_kernel\ns_subb_u32 s{sWA+1}, s{sWA+1}, 0\ns_mov_b32 s{sWA+2}, L_code_end-{NAME}_kernel\ns_mov_b32 s{sWA+3}, 0x20000")
                a(f"s_mov_b32 s{sT0}, s{sLOC}"); sr_ = sWA
            if n == 0:
                a(f"v_lshlrev_b32 v193, 20, v{vLANE}\nv_add_u32 v193, 0x7c000, v193")
            elif n <= 16: a("v_and_b32 v193, 0x7ff, v193")
            a(f"s_mul_i32 s{sT0}, s{sT0}, {n*128}\nbuffer_load_dword v192, v193, s[{sr_}:{sr_+3}], s{sT0} offen")
            if w < 3: a(f"s_branch {Lj}"); a.label(L)
        a.label(Lj)
        a.tok += 1; a.vmq.append(a.tok)
    if OPT["pf"] & 1: touches([(sW2, 13), ("code", 12), (sWS, 0) if OPT["tlb"] else (sW2, 13), (sOUT, 0) if OPT["tlb"] else (sW2, 13)])
    if OPT["tlb"] & 2: touches([(sW3, 0), (sW4, 0), (sWO, 0), (sWO, 0)])
    if OPT["pf"] & 4: touches([(sW3, 49), (sW4, 49), (sWO, 13), (sWO, 13)])
    a(f"s_mul_i32 s{sT0}, s{sLOC}, 37\ns_lshr_b32 s{sT0}, s{sT0}, 8\ns_mul_i32 s{sT1}, s{sT0}, 7\ns_sub_u32 s{sCT}, s{sLOC}, s{sT1}")
    a(f"s_lshl_b32 s{sR64}, s{sXCD}, 2\ns_add_u32 s{sR64}, s{sR64}, s{sT0}\ns_lshr_b32 s{sRW}, s{sW}, 1\ns_and_b32 s{sCW}, s{sW}, 1")
    vXd = 60
    addr_wdma128(vWD, 64); addr_xdma(vXd, 2, 64)
    a.wait(vm=xl)
    stamp("b0_x")
    no = a.vm(f"buffer_load_dwordx2 v[{vNO}:{vNO+1}], v{vZERO}, s[{sDBG}:{sDBG+3}], 0 offen sc1")
    if OPT["pf"] & 16: touches([(sW3, 49), (sW4, 49), (sWO, 13), (sW2, 13)])
    for i in range(8): a(f"v_dot2c_f32_bf16 v{XR+8}, s{sONES}, v{XR+i}\nv_dot2c_f32_bf16 v{XR+10}, v{XR+i}, v{XR+i}")
    for r in (8, 4, 2, 1):
        for v in (XR + 8, XR + 10): a(f"v_add_f32_dpp v{v}, v{v}, v{v} row_ror:{r} row_mask:0xf bank_mask:0xf")
    for v in (XR + 8, XR + 10): a(f"v_mov_b32 v{v+1}, v{v}")
    for v in (XR + 8, XR + 10): a(f"v_permlane16_swap_b32 v{v}, v{v+1}")
    for v in (XR + 8, XR + 10): a(f"v_add_f32 v{v}, v{v}, v{v+1}")
    ln_stats(XR + 8, XR + 10, T)
    a(f"v_add_f32 v{XR+10}, {hx(f2u(EPS))}, v{XR+10}\nv_rsq_f32 v{XR+10}, v{XR+10}")
    a.wait(vm=no); get_nonce(loaded=True)
    a(f"v_mov_b32 v{XR+9}, v{vNO}\nv_mov_b32 v{XR+11}, v{vNO}\ns_mov_b32 exec_lo, 1\ns_mov_b32 exec_hi, 1")
    a(f"buffer_store_dwordx4 v[{XR+8}:{XR+11}], v{T+2}, s[{sWS}:{sWS+3}], s{sT4} offen sc1\ns_mov_b64 exec, -1")
    stamp("b0_rec")
    if OPT["nob"]: stamp_flush(); a("s_endpgm")
    if OPT["l2w3"]:
        nl = OPT["l2w3"]; rounds = (98 + nl - 1) // nl
        a(f"s_lshl_b32 s{sT0}, s{sLOC}, 2\ns_add_u32 s{sT0}, s{sT0}, s{sW}\ns_mul_i32 s{sT0}, s{sT0}, {98*128}\nv_min_u32 v193, {nl-1}, v{vLANE}\nv_lshlrev_b32 v193, 7, v193")
        for r in range(rounds):
            a(f"buffer_load_dword v192, v193, s[{sW3}:{sW3+3}], s{sT0} offen\ns_add_u32 s{sT0}, s{sT0}, {nl*128}\ns_waitcnt vmcnt(0)")
        a.vmq = []
        stamp("b0_l2")
    if OPT["pf"] & 2:
        go_poll(); touches([(sW3, 49), (sW4, 49), (sWO, 13), (sWO, 13)])
    a(f"s_cmp_ge_u32 s{sLOC}, 28\ns_cbranch_scc1 L_helper")
    if OPT["prio_b"]: a(f"s_setprio {OPT['prio_b']}")
    a(f"v_mul_u32_u24 v{vXo}, {PL}, v{vHH}\nv_lshl_add_u32 v{vXo}, v{vT_}, 4, v{vXo}\ns_lshl_b32 s{sT0}, s{sRW}, 9\nv_add_u32 v{vPLN}, s{sT0}, v{vXo}")
    a(f"s_xor_b32 s{sT0}, s{sT0}, 512\nv_add_u32 v{vGo1}, s{sT0}, v{vXo}")
    if OPT["map3"]:
        a(f"s_and_b32 s{sT0}, s{sXCD}, 1\ns_mul_i32 s{sT0}, s{sT0}, 7\ns_add_u32 s{sC3}, s{sT0}, s{sCT}")
        a(f"s_lshr_b32 s{sT0}, s{sXCD}, 1\ns_lshl_b32 s{sT0}, s{sT0}, 2\ns_and_b32 s{sT1}, s{sR64}, 3\ns_add_u32 s{sRB3}, s{sT0}, s{sT1}\ns_lshl_b32 s{sT0}, s{sT1}, 1")
    else:
        a(f"s_cmp_ge_u32 s{sLOC}, 14\ns_cselect_b32 s{sT0}, 1, 0\ns_cselect_b32 s{sT1}, 14, 0\ns_sub_u32 s{sC3}, s{sLOC}, s{sT1}")
        a(f"s_lshl_b32 s{sRB3}, s{sXCD}, 1\ns_add_u32 s{sRB3}, s{sRB3}, s{sT0}\ns_mul_i32 s{sT0}, s{sT0}, 3")
    a(f"s_add_u32 s{sT0}, s{sT0}, s{sCT}\ns_sub_u32 s{sT1}, s{sT0}, 7\ns_cselect_b32 s{sT0}, s{sT0}, s{sT1}")
    rot7(sK3, sT0)
    a(f"s_and_b32 s{sT0}, s{sR64}, 3\ns_lshl_b32 s{sT0}, s{sT0}, 1\ns_add_u32 s{sT0}, s{sT0}, s{sCT}\ns_sub_u32 s{sT1}, s{sT0}, 7\ns_cselect_b32 s{sT0}, s{sT0}, s{sT1}")
    rot7(sG4, sT0)
    a(f"s_mul_i32 s{sT1}, s{sW}, {16*3584}\ns_lshl_b32 s{sT2}, s{sC3}, 8\ns_add_u32 s{sT1}, s{sT1}, s{sT2}")
    a(f"s_mul_i32 s{sT0}, s{sW}, {448*896}\ns_lshl_b32 s{sT2}, s{sCT}, 7\ns_add_u32 s{sT0}, s{sT0}, s{sT2}")
    a(f"s_mul_i32 s{sWOo}, s{sW}, {112*896}\ns_add_u32 s{sWOo}, s{sWOo}, s{sT2}")
    a(f"s_lshl_b32 s{sT2}, s{sR64}, 10\ns_mul_i32 s{sT3}, s{sW}, {56*PL}\ns_add_u32 s{sT3}, s{sT3}, s{sT2}\ns_add_u32 s{sT3}, s{sT3}, {G_}")
    a(f"s_mul_i32 s{sOo}, s{sW}, {16*PL}\ns_add_u32 s{sOo}, s{sOo}, s{sT2}\ns_add_u32 s{sOo}, s{sOo}, {O_}")
    a(f"s_lshl_b32 s{sT4}, s{sRB3}, 2\ns_add_u32 s{sT4}, s{sT4}, s{sW}\ns_lshl_b32 s{sSO}, s{sT4}, 8\ns_add_u32 s{sSO}, s{sSO}, {ST1}\ns_lshl_b32 s{sT4}, s{sT4}, 9")
    for c in range(7):
        a(f"s_mul_i32 s{sW3O+c}, s{sK3+c}, {64*3584}\ns_add_u32 s{sW3O+c}, s{sW3O+c}, s{sT1}")
        a(f"s_mul_i32 s{sW4o+c}, s{sG4+c}, {64*896}\ns_add_u32 s{sW4o+c}, s{sW4o+c}, s{sT0}")
        a(f"s_mul_i32 s{sG4+c}, s{sG4+c}, {8*PL}\ns_add_u32 s{sG4+c}, s{sG4+c}, s{sT3}")
        a(f"s_mul_i32 s{sK3+c}, s{sK3+c}, {8*PL}\ns_add_u32 s{sK3+c}, s{sK3+c}, s{sT4}\ns_add_u32 s{sK3+c}, s{sK3+c}, {X1}")
    a(f"s_mul_i32 s{sT1}, s{sC3}, {16*PL}\ns_add_u32 s{sT4}, s{sT4}, s{sT1}\ns_add_u32 s{sT4}, s{sT4}, {G_}")
    for u in range(4): a(f"s_add_u32 s{sT0}, s{sW}, {u}\ns_and_b32 s{sT0}, s{sT0}, 3\ns_mul_i32 s{sT0}, s{sT0}, {4*PL}\ns_add_u32 s{sGS[u]}, s{sT0}, s{sT4}")
    a(f"s_lshl_b32 s{sM03}, s{sW}, 12\ns_mul_i32 s{sM04}, s{sW}, {NZ*2048}")
    a(f"s_lshl_b32 s{sT2}, s{sCT}, 1\ns_add_u32 s{sT2}, s{sT2}, s{sCW}\ns_mul_i32 s{sT0}, s{sT2}, {4*PL}\ns_lshl_b32 s{sT1}, s{sR64}, 10")
    a(f"s_add_u32 s{sT0}, s{sT0}, s{sT1}\ns_add_u32 s{sX1D}, s{sT0}, {X1}\ns_lshl_b32 s{sST1D}, s{sT2}, 14\ns_add_u32 s{sST1D}, s{sST1D}, {ST1}")
    a(f"s_lshl_b32 s{sT2}, s{sT2}, 6\ns_lshl_b32 s{sT0}, s{sR64}, 1\ns_add_u32 s{sT0}, s{sT0}, s{sRW}\ns_mul_i32 s{sOUTD}, s{sT0}, {32*896}\ns_add_u32 s{sOUTD}, s{sOUTD}, s{sT2}")
    a(f"s_mul_i32 s{sT0}, s{sR64}, 7\ns_add_u32 s{sT0}, s{sT0}, s{sCT}\ns_lshl_b32 s{sT0}, s{sT0}, 2\ns_add_u32 s{sT0}, s{sT0}, s{sW}\ns_lshl_b32 s{sMB2}, s{sT0}, 6")
    a(f"s_mul_i32 s{sT0}, s{sRB3}, 14\ns_add_u32 s{sT0}, s{sT0}, s{sC3}\ns_lshl_b32 s{sT0}, s{sT0}, 2\ns_add_u32 s{sT0}, s{sT0}, s{sW}\ns_lshl_b32 s{sMB3}, s{sT0}, 6")
    a(f"s_lshr_b32 s{sT0}, s{sR64}, 1\ns_mul_i32 s{sT0}, s{sT0}, {14*256}\ns_and_b32 s{sT1}, s{sR64}, 1\ns_lshl_b32 s{sT1}, s{sT1}, 7\ns_add_u32 s{sT0}, s{sT0}, s{sT1}\ns_lshl_b32 s{sT1}, s{sCT}, 3\ns_add_u32 s{sT0}, s{sT0}, s{sT1}\ns_add_u32 s{sT0}, s{sT0}, {MB_X}")
    a(f"v_lshrrev_b32 v{T}, 1, v{vLANE}\nv_lshlrev_b32 v{T}, 8, v{T}\nv_and_b32 v{T+1}, 1, v{vLANE}\nv_lshl_add_u32 v{T}, v{T+1}, 6, v{T}\nv_add_u32 v{vMX}, s{sT0}, v{T}")
    lanes_below(vMX, 28, T)
    lane_div(T, T + 1, vLANE, 14, T + 2)
    a(f"s_lshl_b32 s{sT0}, s{sC3}, 1\nv_add_u32 v{T}, s{sT0}, v{T}\nv_mul_u32_u24 v{T}, 37, v{T}\nv_lshrrev_b32 v{T}, 8, v{T}")
    a(f"v_mul_u32_u24 v{T+2}, 7, v{T}\nv_lshrrev_b32 v{T+2}, 1, v{T+2}\nv_sub_u32 v{T+2}, s{sC3}, v{T+2}\nv_lshlrev_b32 v{T+2}, 3, v{T+2}\nv_lshl_add_u32 v{T+2}, v{T}, 6, v{T+2}")
    a(f"s_mul_i32 s{sT0}, s{sRB3}, {14*256}\ns_add_u32 s{sT0}, s{sT0}, {MB_G}\nv_lshl_add_u32 v{T+2}, v{T+1}, 8, v{T+2}\nv_add_u32 v{vMG}, s{sT0}, v{T+2}")
    lanes_below(vMG, 28, T)
    a(f"s_movk_i32 s{sT3}, 3584")
    addr_wdma256(vWd3, sT3, T)
    addr_wrd256(vWr3, 64, T)
    a(f"s_lshl_b32 s{sT1}, s{sW}, 9\ns_add_u32 s{sT1}, s{sT1}, {CSB3}\nv_lshl_add_u32 v{vCW3}, v{vLANE}, 3, s{sT1}")
    for u in range(4):
        a(f"s_add_u32 s{sT0}, s{sW}, {u}\ns_and_b32 s{sT0}, s{sT0}, 3\ns_lshl_b32 s{sT0}, s{sT0}, 7\ns_add_u32 s{sT0}, s{sT0}, s{sT1}\nv_lshl_add_u32 v{vCA3+u}, v{vHH}, 4, s{sT0}")
    addr_wrd128(vWr4, 4, sCW, sM04, T)
    a(f"v_xor_b32 v{vWr4+1}, 64, v{vWr4}")
    a(f"v_mul_u32_u24 v{vSo}, {7*16384}, v{vHH}\nv_lshl_add_u32 v{vSo}, v{vT_}, 3, v{vSo}")
    a(f"s_lshl_b32 s{sT0}, s{sR64}, 6\ns_lshl_b32 s{sT1}, s{sRW}, 5\ns_add_u32 s{sT0}, s{sT0}, s{sT1}\nv_add_u32 v{T}, s{sT0}, v{vT_}")
    a(f"v_lshlrev_b32 v{vST+2}, 3, v{T}\nv_lshlrev_b32 v{T+4}, 4, v{T}")
    a(f"v_mul_u32_u24 v{T+1}, {PL}, v{vHH}\nv_mov_b32 v{T+3}, 0x7fff0000\ns_movk_i32 s{sT2}, 2048")
    a(f"s_add_u32 s{sT0}, s{sCW}, 1")
    for g, op in enumerate(("v_subrev_u32", "v_add_u32")):
        a(f"{op} v{T+2}, s{sT0}, v{T}\nv_cmp_gt_u32 vcc, s{sT2}, v{T+2}\nv_lshl_add_u32 v{vSH+g}, v{T+2}, 4, v{T+1}\nv_cndmask_b32 v{vSH+g}, v{T+3}, v{vSH+g}, vcc")
    if not OPT["pf"] & 2: go_poll()
    a(f"s_lshl_b32 s{sT0}, s{sR64}, 2\ns_add_u32 s{sT0}, s{sT0}, s{sW}\ns_mul_i32 s{sT0}, s{sT0}, {16*896}\ns_lshl_b32 s{sT1}, s{sCT}, 7\ns_add_u32 s{sT0}, s{sT0}, s{sT1}")
    a(f"s_lshl_b32 s{sT2}, s{sW}, 11"); set_m0(sT2, 57344)
    for q in range(2): a.vm(f"buffer_load_dwordx4 v{vXd+q}, s[{sX}:{sX+3}], s{sT0} offen offset:{1024*q} lds")
    a(f"s_mul_i32 s{sT0}, s{sW}, {112*896}\ns_add_u32 s{sT0}, s{sT0}, s{sT1}\ns_mul_i32 s{sT1}, s{sW}, 14336")
    a(f"s_and_b32 s{sT2}, s{sR64}, 3\ns_lshl_b32 s{sT2}, s{sT2}, 1")
    def w2q(q):
        a(f"s_mul_i32 s{sT4}, s{sT2}, {16*896}\ns_add_u32 s{sT4}, s{sT4}, s{sT0}\ns_lshl_b32 s{sT5}, s{sT2}, 11\ns_add_u32 m0, s{sT5}, s{sT1}")
        tk = [a.vm(f"buffer_load_dwordx4 v{vWD+j}, s[{sW2}:{sW2+3}], s{sT4} offen offset:{1024*j} lds") for j in range(2)]
        if q < 6: a(f"s_add_u32 s{sT2}, s{sT2}, 1\ns_cmp_eq_u32 s{sT2}, 7\ns_cselect_b32 s{sT2}, 0, s{sT2}")
        return tk
    throttled([lambda q=q: w2q(q) for q in range(7)], OPT["thr"])
    REC = 160
    a(f"s_mov_b32 s{sT4}, {ST0}")
    check_record(REC, T + 4, sT4, loaded=False)
    a("s_barrier")
    stamp("b0_w2")
    if OPT["pf"] & 8: touches([(sW3, 56), (sW4, 56), (sWO, 14), (sWO, 14)], 224)
    ACC, W2F, XV, vWr = 16, 48, 164, 172
    a(f"s_mul_i32 s{sT3}, s{sCW}, 28672")
    addr_wrd128(vWr, 4, sCW, sT3, T)
    a(f"v_xor_b32 v{vWr+1}, 64, v{vWr}")
    a(f"v_bfe_u32 v{T}, v{vT_}, 1, 3\ns_lshl_b32 s{sT0}, s{sCW}, 2\nv_xor_b32 v{T}, s{sT0}, v{T}\nv_lshlrev_b32 v{T}, 4, v{T}")
    a(f"v_lshl_add_u32 v{T}, v{vT_}, 7, v{T}\nv_lshl_add_u32 v{T}, v{vHH}, 3, v{T}\ns_lshl_b32 s{sT0}, s{sRW}, 12\nv_add_u32 v{T}, s{sT0}, v{T}")
    for i in range(4):
        a(f"v_xor_b32 v{T+1}, {16*i}, v{T}")
        a.lg(f"ds_read_b64 v[{XV+2*i}:{XV+2*i+1}], v{T+1} offset:57344")
    if not OPT["hall"]:
        for s in range(14):
            for b in range(2):
                for jj in range(2): a.lg(f"ds_read_b64_tr_b16 v[{W2F+8*s+4*b+2*jj}:{W2F+8*s+4*b+2*jj+1}], v{vWr+b} offset:{s*2048 + jj*1024}")
                if len(a.lgq) > 12: a.wait(lg=a.lgq[-11])
        a.wait_all(vm=False); a("s_barrier")
    else:
        a(f"v_mov_b32 v{SEL3}, v{vWr}\nv_mov_b32 v{SEL3+1}, v{vWr+1}")
        a.wait_all(vm=False)
    m0 = [None]
    def issue_w(c, qs=range(4)):
        if m0[0] != c: set_m0(sM03, (c % 5) * 16384); m0[0] = c
        return [a.vm(f"buffer_load_dwordx4 v{vWd3+q}, s[{sW3}:{sW3+3}], s{sW3O+c} offen offset:{1024*q} lds") for q in qs]
    B3["issue_w"] = issue_w; B3["wt"] = {}
    def w3c(c, q):
        t = issue_w(c, (q,)); B3["wt"].setdefault(c, []).extend(t); return t
    B3["pieces"] = [lambda c=c, q=q: w3c(c, q) for c in range(5) for q in range(4)]
    for t in B3["pieces"][:OPT["w3a"]]: t()
    for i in range(8):
        a(f"v_lshlrev_b32 v{RES+2*i}, 16, v{XV+i}\nv_and_b32 v{RES+2*i+1}, 0xffff0000, v{XV+i}")
    a(f"v_mov_b32 v{vA}, v{REC+2}\nv_mul_f32 v{vB}, v{REC}, v{REC+2}\nv_sub_f32 v{vB}, 0, v{vB}")
    for i in range(0, 16, 2):
        a(f"v_pk_fma_f32 v[{ACC+i}:{ACC+i+1}], v[{RES+i}:{RES+i+1}], v[{vA}:{vA+1}], v[{vB}:{vB+1}] op_sel_hi:[1,0,0]")

def helper():
    a.label("L_helper")
    a.vmq = []; a.lgq = []
    prev_stamp[0] = stamp_names.get("b0_rec")
    if OPT["prio_h"]: a(f"s_setprio {OPT['prio_h']}")
    T = TB
    a(f"s_and_b32 s{sT0}, s2, 255\ns_lshl_b32 s{sT0}, s{sT0}, 6")
    spoll([(sT2, 2, sT0, F_AP, 1)])
    stamp("h_go")
    sB = sT4; LD, SUM = 16, 80
    a(f"s_and_b32 s{sB}, s2, 255\ns_sub_u32 s{sB}, s{sB}, 224\ns_cmp_ge_u32 s{sB}, 28\ns_cbranch_scc1 L_nocs")
    a(f"s_mul_i32 s{sT0}, s{sW}, {112*3584}\ns_lshl_b32 s{sT1}, s{sB}, 7\ns_add_u32 s{sT0}, s{sT0}, s{sT1}")
    a(f"v_lshrrev_b32 v{T}, 3, v{vLANE}\nv_mul_u32_u24 v{T}, 3584, v{T}\nv_and_b32 v{T+1}, 7, v{vLANE}\nv_lshl_add_u32 v{T}, v{T+1}, 4, v{T}")
    tk = []
    for i in range(14):
        tk.append(a.vm(f"buffer_load_dwordx4 v[{LD+4*i}:{LD+4*i+3}], v{T}, s[{sW3}:{sW3+3}], s{sT0} offen"))
        if i < 13: a(f"s_add_u32 s{sT0}, s{sT0}, {8*3584}")
        if i >= OPT["hthr"]: a.wait(vm=tk[i - OPT["hthr"]])
    for k in range(8): a(f"v_mov_b32 v{SUM+k}, 0")
    for i in range(14):
        a.wait(vm=tk[i])
        for k in range(4):
            a(f"v_lshlrev_b32 v{T+2}, 16, v{LD+4*i+k}\nv_and_b32 v{T+3}, 0xffff0000, v{LD+4*i+k}\nv_pk_add_f32 v[{SUM+2*k}:{SUM+2*k+1}], v[{SUM+2*k}:{SUM+2*k+1}], v[{T+2}:{T+3}]")
    stamp("h_ld")
    for k in range(8): a(f"v_add_f32_dpp v{SUM+k}, v{SUM+k}, v{SUM+k} row_ror:8 row_mask:0xf bank_mask:0xf")
    for op in ("v_permlane16_swap_b32", "v_permlane32_swap_b32"):
        for k in range(8): a(f"v_mov_b32 v{SUM+8+k}, v{SUM+k}")
        for k in range(8): a(f"{op} v{SUM+k}, v{SUM+8+k}")
        for k in range(8): a(f"v_add_f32 v{SUM+k}, v{SUM+k}, v{SUM+8+k}")
    a(f"s_lshl_b32 s{sT0}, s{sW}, 8\nv_lshlrev_b32 v{T+1}, 5, v{T+1}\nv_add_u32 v{T+2}, s{sT0}, v{T+1}")
    a(f"ds_write_b128 v{T+2}, v[{SUM}:{SUM+3}]\nds_write_b128 v{T+2}, v[{SUM+4}:{SUM+7}] offset:16\ns_waitcnt lgkmcnt(0)\ns_barrier")
    a(f"v_lshlrev_b32 v{T+2}, 2, v{vLANE}")
    for w2 in range(4): a(f"ds_read_b32 v{SUM+w2}, v{T+2} offset:{256*w2}")
    a(f"s_waitcnt lgkmcnt(0)\nv_add_f32 v{SUM}, v{SUM}, v{SUM+1}\nv_add_f32 v{SUM+2}, v{SUM+2}, v{SUM+3}\nv_add_f32 v{SUM}, v{SUM}, v{SUM+2}")
    a(f"s_lshl_b32 s{sT0}, s{sB}, 8\ns_add_u32 s{sT0}, s{sT0}, {CS3}\ns_lshl_b32 s{sT1}, s{sB}, 3\ns_add_u32 s{sT1}, s{sT1}, {F_CS}")
    a(f"s_cmp_lg_u32 s{sW}, 0\ns_cbranch_scc1 L_nocs")
    a(f"buffer_store_dword v{SUM}, v{T+2}, s[{sWS}:{sWS+3}], s{sT0} offen sc1\ns_waitcnt vmcnt(0)")
    publish(sT1, barrier=False)
    a.label("L_nocs")
    a.vmq = []
    stamp("h_cs")
    if OPT["l2w4"]:
        nl = OPT["l2w4"]
        a(f"s_sub_u32 s{sT1}, s{sLOC}, 28\ns_lshl_b32 s{sT1}, s{sT1}, 2\ns_add_u32 s{sT1}, s{sT1}, s{sW}\nv_min_u32 v193, {nl-1}, v{vLANE}\nv_lshlrev_b32 v193, 7, v193")
        for sr_, lines in ((sW4, 784), (sWO, 196)):
            L = newlab("pf"); R = (lines + nl - 1) // nl
            a(f"s_mul_i32 s{sT3}, s{sT1}, {lines*128}\ns_mul_i32 s{sT4}, s{sXCD}, {R}\ns_lshr_b32 s{sT4}, s{sT4}, 3\ns_mov_b32 s{sT2}, {R}")
            a.label(L)
            a(f"s_mul_i32 s{sT0}, s{sT4}, {nl*128}\ns_add_u32 s{sT0}, s{sT0}, s{sT3}")
            a(f"buffer_load_dword v192, v193, s[{sr_}:{sr_+3}], s{sT0} offen\ns_add_u32 s{sT4}, s{sT4}, 1\ns_cmp_eq_u32 s{sT4}, {R}\ns_cselect_b32 s{sT4}, 0, s{sT4}\ns_waitcnt vmcnt(0)")
            a(f"s_sub_u32 s{sT2}, s{sT2}, 1\ns_cmp_lg_u32 s{sT2}, 0\ns_cbranch_scc1 {L}")
    stamp("h_w4"); stamp_flush()
    if OPT["clr"]:
        a(f"s_and_b32 s{sT0}, s2, 255\ns_cmp_lg_u32 s{sT0}, 255\ns_cbranch_scc1 L_end")
        a(f"s_lshl_b32 s{sT0}, s{sW}, 12\ns_add_u32 s{sT0}, s{sT0}, {F_AP}\nv_lshl_add_u32 v{vPO}, v{vLANE}, 6, s{sT0}")
        poll(sleep=32)
        a(f"s_barrier\ns_cmp_lg_u32 s{sW}, 0\ns_cbranch_scc1 L_end\nv_mov_b32 v{vP0}, 0\nv_mov_b32 v{vP0+1}, 0\ns_mov_b64 exec, 1")
        a(f"buffer_store_dwordx2 v[{vP0}:{vP0+1}], v{vZERO}, s[{sDBG}:{sDBG+3}], 0 offen sc1")
    a("s_endpgm")

def stage_B2():
    a.comment("==== B2: x1 = xn + shift(h) @ w2, 64 x 64 tile")
    ACC, W2F, HF, NH = (16, 48, 160, 8) if not OPT['hall'] else (16, 48, 80, 14)
    T = TB
    a(f"s_mul_i32 s{sT0}, s{sCW}, {28*PL}\ns_add_u32 s{sT0}, s{sT0}, {H_}\ns_add_u32 s{sT1}, s{sX1D}, {2*PL}")
    vW, vR = vSH + 2, vSH + 3
    a(f"s_lshl_b32 s{sT2}, s{sW}, 12\ns_add_u32 s{sT2}, s{sT2}, 65536\nv_add_u32 v{vW}, s{sT2}, v{vL16}\nv_xor_b32 v{vR}, 4096, v{vW}")
    if OPT["tw3"]:
        a(f"v_min_u32 v{T}, 55, v{vLANE}\nv_mul_u32_u24 v{T+1}, 37, v{T}\nv_lshrrev_b32 v{T+1}, 9, v{T+1}\nv_mul_u32_u24 v{T+2}, 14, v{T+1}\nv_sub_u32 v{T}, v{T}, v{T+2}")
        a(f"v_mul_u32_u24 v{T+1}, 3584, v{T+1}\nv_lshl_add_u32 v193, v{T}, 7, v{T+1}")
        a(f"s_lshl_b32 s{sT3}, s{sLOC}, 2\ns_add_u32 s{sT3}, s{sT3}, s{sW}\ns_mul_i32 s{sT3}, s{sT3}, {4*3584}\ns_and_b32 s{sT2}, s{sXCD}, 1\ns_mul_i32 s{sT2}, s{sT2}, 1792\ns_add_u32 s{sT3}, s{sT3}, s{sT2}")
        if OPT["tw3"] == 99: a.vm(f"buffer_load_dword v192, v193, s[{sW3}:{sW3+3}], s{sT3} offen")
    rd = {}
    def wrd(s):
        if OPT["hall"] and s < 14:
            rd[s] = [a.lg(f"ds_read_b64_tr_b16 v[{W2F+8*(s%3)+4*b+2*jj}:{W2F+8*(s%3)+4*b+2*jj+1}], v{SEL3+b} offset:{s*2048 + jj*1024}") for b in (1, 0) for jj in range(2)]
    wrd(0); wrd(1)
    stamp("b2_ready")
    spoll([(sF, 8, sMB2, MB_H, 4)])
    stamp("b2_poll")
    ht = []
    def hload():
        ks = len(ht); r = HF + 4 * (ks % NH)
        ht.append(a.vm(f"buffer_load_dwordx4 v[{r}:{r+3}], v{vSH + ks//7}, s[{sWS}:{sWS+3}], s{sT0} offen sc1"))
        if ks < 13: a(f"s_add_u32 s{sT0}, s{sT0}, {2*PL}")
    for ks in range(NH): hload()
    for s in range(14):
        a.wait(vm=ht[s], lg=rd.get(s, []))
        if s == 0: stamp("b2_h0")
        wf = W2F + 8 * (s % 3 if OPT["hall"] else s)
        mfma(ACC + 16, wf + 4, HF + 4 * (s % NH), first=(s == 0))
        wrd(s + 2)
        mfma(ACC, wf, HF + 4 * (s % NH))
        if len(ht) < 14: hload()
        if OPT["tw3"] and s == OPT["tw3"]:
            a.vm(f"buffer_load_dword v192, v193, s[{sW3}:{sW3+3}], s{sT3} offen")
    stamp("b2_main")
    for i in range(4): a.lg(f"ds_write_b128 v{vW}, v[{ACC+16+4*i}:{ACC+16+4*i+3}] offset:{1024*i}")
    a.wait_all(vm=False); a("s_barrier")
    tk = [a.lg(f"ds_read_b128 v[{ACC+16+4*i}:{ACC+16+4*i+3}], v{vR} offset:{1024*i}") for i in range(4)]
    for i in range(4):
        a.wait(lg=tk[i])
        for k in (0, 2): a(f"v_pk_add_f32 v[{ACC+4*i+k}:{ACC+4*i+k+1}], v[{ACC+4*i+k}:{ACC+4*i+k+1}], v[{ACC+16+4*i+k}:{ACC+16+4*i+k+1}]")
    PK = 48; sts = []
    cvt16(PK, ACC)
    for p in range(2):
        a(f"v_permlane32_swap_b32 v{PK+4*p}, v{PK+4*p+2}\nv_permlane32_swap_b32 v{PK+4*p+1}, v{PK+4*p+3}")
        sts.append(a.vm(f"buffer_store_dwordx4 v[{PK+4*p}:{PK+4*p+3}], v{vPLN}, s[{sWS}:{sWS+3}], s{sT1 if p else sX1D} offen sc1"))
    a(f"v_pk_add_f32 v[{T}:{T+1}], v[{ACC}:{ACC+1}], v[{ACC+2}:{ACC+3}]\nv_pk_mul_f32 v[{T+2}:{T+3}], v[{ACC}:{ACC+1}], v[{ACC}:{ACC+1}]")
    a(f"v_pk_fma_f32 v[{T+2}:{T+3}], v[{ACC+2}:{ACC+3}], v[{ACC+2}:{ACC+3}], v[{T+2}:{T+3}]")
    for i in range(4, 16, 2):
        a(f"v_pk_add_f32 v[{T}:{T+1}], v[{T}:{T+1}], v[{ACC+i}:{ACC+i+1}]\nv_pk_fma_f32 v[{T+2}:{T+3}], v[{ACC+i}:{ACC+i+1}], v[{ACC+i}:{ACC+i+1}], v[{T+2}:{T+3}]")
    a(f"v_add_f32 v{T}, v{T}, v{T+1}\nv_add_f32 v{T+2}, v{T+2}, v{T+3}\nv_mov_b32 v{T+1}, v{T}\nv_mov_b32 v{T+3}, v{T+2}")
    a(f"v_permlane32_swap_b32 v{T}, v{T+1}\nv_permlane32_swap_b32 v{T+2}, v{T+3}\nv_add_f32 v{vST}, v{T}, v{T+1}\nv_add_f32 v{vST+1}, v{T+2}, v{T+3}")
    sts.append(a.vm(f"buffer_store_dwordx2 v[{vST}:{vST+1}], v{vST+2}, s[{sWS}:{sWS+3}], s{sST1D} offen sc1"))
    for i in range(0, 16, 2): a(f"v_pk_add_f32 v[{RES+i}:{RES+i+1}], v[{RES+i}:{RES+i+1}], v[{ACC+i}:{ACC+i+1}]")
    stamp("b2_st")
    n0 = OPT["w3a"]; n1 = max(n0, OPT["w3b"])
    for t in B3["pieces"][n0:n1]: t()
    a.wait(vm=sts); a("s_barrier")
    post([vMX], barrier=False)
    stamp("b2_pub")
    n2 = max(n1, OPT["w3c"])
    for t in B3["pieces"][n1:n2]:
        if len(a.vmq) >= OPT["thr3"]: a.wait(vm=a.vmq[-OPT["thr3"]])
        t()
    B3["stream"] = B3["pieces"][n2:]

def stage_B3():
    a.comment("==== B3: g = gelu(LN(x1) @ w3), 128 x 128 tile")
    ACC, XF, NX, WF, ST = 16, 80, 16, 144, 176
    T = TB
    spoll([(sF, 16, sMB3, MB_X, 7)])
    stamp("b3_poll")
    xt = []
    def xload():
        s = len(xt); c, ks = divmod(s, 4); r = XF + 4 * (s % NX)
        so = sK3 + c
        if ks: a(f"s_add_u32 s{sT0}, s{sK3+c}, {2*ks*PL}"); so = sT0
        xt.append(a.vm(f"buffer_load_dwordx4 v[{r}:{r+3}], v{vXo}, s[{sWS}:{sWS+3}], s{so} offen sc1"))
    for s in range(6): xload()
    stt = []; cst = []; cft = []
    def stat_load():
        i = len(stt)
        if i: a(f"s_add_u32 s{sSO}, s{sSO}, 16384")
        stt.append(a.vm(f"buffer_load_dwordx2 v[{ST+2*i}:{ST+2*i+1}], v{vSo}, s[{sWS}:{sWS+3}], s{sSO} offen sc1"))
    GT, PK = 144, 160
    CSR = {0: 128, 1: 80, 2: 96, 3: 112}; toks = {}
    df3 = Deferred()
    def finish_stats():
        a.wait(vm=stt)
        with df3:
            for i in range(2, 14, 2): a(f"v_add_f32 v{ST}, v{ST}, v{ST+i}\nv_add_f32 v{ST+1}, v{ST+1}, v{ST+i+1}")
            a(f"v_mov_b32 v{ST+2}, v{ST}\nv_mov_b32 v{ST+3}, v{ST+1}\ns_nop 0\nv_permlane32_swap_b32 v{ST}, v{ST+2}\nv_permlane32_swap_b32 v{ST+1}, v{ST+3}")
            a(f"v_add_f32 v{ST}, v{ST}, v{ST+2}\nv_add_f32 v{ST+1}, v{ST+1}, v{ST+3}")
            ln_stats(ST, ST + 1, T)
            a(f"v_add_f32 v{ST+1}, {hx(f2u(EPS))}, v{ST+1}\nv_rsq_f32 v{vA}, v{ST+1}\nv_sub_f32 v{vB}, 0, v{ST}")
            gelu_consts(ST + 2, vA)
    def kstep(s):
        th = []
        if OPT["early3"]:
            if s == 18: th.append(finish_stats)
            if s in (22, 23, 25): th.append(lambda u={22: 0, 23: 1, 25: 2}[s]: toks.__setitem__(u, read_cs(CSR[u], vCA3 + u)))
        n = len(xt)
        for k in range(2):
            if n + k < 28 and n + k < s + NX and n + k <= s + 13: th.append(xload)
        if OPT["tw4"]:
            def tch(k):
                if k == 0:
                    a(f"s_lshl_b32 s{sT1}, s{sLOC}, 2\ns_add_u32 s{sT1}, s{sT1}, s{sW}\ns_mul_i32 s{sT2}, s{sT1}, {112*128}\ns_mul_i32 s{sT3}, s{sT1}, {28*128}")
                    a(f"s_and_b32 s{sT1}, s{sXCD}, 1\ns_mul_i32 s{sT1}, s{sT1}, {56*128}\nv_min_u32 v193, 55, v{vLANE}\nv_lshlrev_b32 v193, 7, v193\ns_add_u32 s{sT4}, s{sT2}, s{sT1}")
                    a.vm(f"buffer_load_dword v192, v193, s[{sW4}:{sW4+3}], s{sT4} offen")
                if k == 1:
                    a(f"s_sub_u32 s{sT4}, s{sT2}, s{sT1}\ns_add_u32 s{sT4}, s{sT4}, {56*128}")
                    a.vm(f"buffer_load_dword v192, v193, s[{sW4}:{sW4+3}], s{sT4} offen")
                if k == 2:
                    a(f"v_min_u32 v193, {27*128}, v193")
                    a.vm(f"buffer_load_dword v192, v193, s[{sWO}:{sWO+3}], s{sT3} offen")
            for k in range(3):
                if s == OPT["tw4"] + k * OPT["tw4d"]: th.append(lambda k=k: tch(k))
        if 9 <= s < 16: th.append(stat_load)
        if s == 7:
            def csflag():
                a(f"s_lshl_b32 s{sT0}, s{sC3}, 4\ns_add_u32 s{sT0}, s{sT0}, {F_CS}\nv_and_b32 v{vPO}, 1, v{vLANE}\nv_lshl_add_u32 v{vPO}, v{vPO}, 3, s{sT0}")
                cft.append(a.vm(f"buffer_load_dwordx2 v[{vP0}:{vP0+1}], v{vPO}, s[{sWS}:{sWS+3}], 0 offen sc1"))
            th.append(csflag)
        if s == 13:
            def csload():
                L = newlab("cc")
                a.wait(vm=cft); q = list(a.vmq)
                a(f"v_cmp_ne_u64 vcc, v[{vP0}:{vP0+1}], v[{vNO}:{vNO+1}]\ns_cbranch_vccz {L}")
                poll(); a.label(L); a.vmq = q
                a(f"s_lshl_b32 s{sT0}, s{sC3}, 9\ns_add_u32 s{sT0}, s{sT0}, {CS3}\nv_lshlrev_b32 v{SEL3}, 3, v{vLANE}")
                cst.append(a.vm(f"buffer_load_dwordx2 v[{CS43}:{CS43+1}], v{SEL3}, s[{sWS}:{sWS+3}], s{sT0} offen sc1"))
            th.append(csload)
        if s == 21:
            def cswrite():
                a.wait(vm=cst); a.lg(f"ds_write_b64 v{vCW3}, v[{CS43}:{CS43+1}]")
            th.append(cswrite)
        return th
    hooks = dict(before_barrier=lambda c: None, after_barrier=lambda c: [], lg_need=lambda s: [], vm_need=lambda s: [xt[s]], kstep=kstep)
    PAD[0] = OPT["pad3"]
    panel_mainloop("b3", ACC, WF, vWr3, 5, lambda s: XF + 4 * (s % NX), B3["issue_w"], B3["wt"], hooks, None, None, df3, stream=B3["stream"])
    PAD[0] = 0
    stamp("b3_main")
    if not OPT["early3"]:
        finish_stats(); df3.flush()
    for u in range(4):
        if u not in toks: toks[u] = read_cs(CSR[u], vCA3 + u); a.wait(lg=a.lgq[-9]) if len(a.lgq) > 12 else None
    stamp("b3_csbar")
    def issue_w4(j):
        set_m0(sM04, (j % NZ) * 2048)
        if j < 28:
            c, ks = divmod(j, 4); srd_, base, add = sW4, sW4o + c, ks * 16 * 896
        else:
            hd, m = divmod(j - 28, 2); srd_, base, add = sWO, sWOo, (28 * hd + 16 * m) * 896
        so = base
        if add: a(f"s_add_u32 s{sT5}, s{base}, {add}"); so = sT5
        return [a.vm(f"buffer_load_dwordx4 v{vWD+q}, s[{srd_}:{srd_+3}], s{so} offen offset:{1024*q} lds") for q in range(2)]
    B4["issue_w"] = issue_w4; B4["wt"] = {}
    cnt = [0]
    def hook():
        cnt[0] += 1
        j = len(B4["wt"])
        if cnt[0] == 1: a.wait(lg=toks[3]); a("s_barrier")
        if j < NZ and cnt[0] % 2 == 0:
            if len(a.vmq) >= OPT["thr4"]: a.wait(vm=a.vmq[-OPT["thr4"]])
            B4["wt"][j] = issue_w4(j)
    for u in range(4):
        a.wait(lg=toks[u]); shift16(ACC + 16 * u, CSR[u])
        gelu16(ACC + 16 * u, GT, ST + 2, hook)
        pk = PK + 8 * (u & 1)
        cvt16(pk, ACC + 16 * u)
        a(f"s_add_u32 s{sT1}, s{sGS[u]}, {2*PL}")
        a.vm(f"buffer_store_dwordx4 v[{pk}:{pk+3}], v{vXo}, s[{sWS}:{sWS+3}], s{sGS[u]} offen sc1")
        a.vm(f"buffer_store_dwordx4 v[{pk+4}:{pk+7}], v{vXo}, s[{sWS}:{sWS+3}], s{sT1} offen sc1")
    assert len(B4["wt"]) == NZ
    stamp("b3_epi")
    sts = a.vmq[-2:]
    NRG = OPT["nrg"]; WR = 144
    def wfrag(j):
        a.wait(vm=B4["wt"][j])
        for b in range(2):
            for jj in range(2):
                r = wreg(j) + 4 * b + 2 * jj
                a.lg(f"ds_read_b64_tr_b16 v[{r}:{r+1}], v{vWr4+b} offset:{(j%NZ)*2048 + jj*1024}")
        if len(a.lgq) > 8: a.wait(lg=a.lgq[-5])
    for i in range(16): a(f"v_mov_b32 v{ACC+i}, v{RES+i}")
    for j in range(min(NRG, NZ)): wfrag(j)
    a(f"s_add_u32 s{sT1}, s{sMB2}, {MB_O}\nv_and_b32 v{T}, 7, v{vLANE}\nv_lshl_add_u32 v{T+7}, v{T}, 3, s{sT1}")
    a.wait_all(vm=False)
    assert NRG <= NZ
    n1 = min(NRG, OPT["w4b"]); n2 = min(NRG, max(n1, OPT["w4c"]))
    for j in range(n1): B4["wt"][NZ + j] = issue_w4(NZ + j)
    a.wait(vm=sts); a("s_barrier")
    post([vMG], barrier=False)
    stamp("b3_pub")
    for j in range(n1, n2): B4["wt"][NZ + j] = issue_w4(NZ + j)
    B4["stream"] = list(range(NZ + n2, NZ + NRG))

def wreg(j):
    n1 = 8 + (8 - OPT["ng"])
    return 80 + 8 * OPT["ng"] + 8 * j if j < n1 else RES + 8 * (j - n1)

def stage_B4():
    a.comment("==== B4: out = x + x1 + g @ w4 + o @ wo, 64 x 64 tile, k split over the waves")
    ACC, GF, WR, WF, T = 16, 80, 144, 208, TB
    NRG = OPT["nrg"]; NG = OPT["ng"]
    vGo = [vPLN, vGo1]; vPO2 = T + 7
    wt = B4["wt"]; issue_w = B4["issue_w"]
    rd = {}; gt = {}
    J0 = 28 if OPT["late0"] else 36
    def wfr(j, b):
        if j < NRG: return wreg(j) + 4 * b
        if j >= J0 and b == 0: return WR + 4 * (j - J0)
        return WF + 8 * (j & 1) + 4 * b
    def reads(j):
        rd[j] = []
        if j < NRG: return []
        a.wait(vm=wt[j])
        return [lambda b=b, jj=jj: rd[j].append(a.lg(f"ds_read_b64_tr_b16 v[{wfr(j, b)+2*jj}:{wfr(j, b)+2*jj+1}], v{vWr4+b} offset:{(j%NZ)*2048 + jj*1024}")) for b in range(2) for jj in range(2)]
    def gload(j):
        if j < 28:
            c, ks = divmod(j, 4); base, add = sG4 + c, 2 * ks * PL
        else: base, add = sOo, 2 * (j - 28) * PL
        so = base
        if add: a(f"s_add_u32 s{sT4}, s{base}, {add}"); so = sT4
        r = GF + 8 * (j % NG)
        gt[j] = [a.vm(f"buffer_load_dwordx4 v[{r+4*aa}:{r+4*aa+3}], v{vGo[aa]}, s[{sWS}:{sWS+3}], s{so} offen sc1") for aa in range(2)]
    ot = []
    def ocheck():
        L = newlab("oc"); q = None
        a.wait(vm=ot)
        q = list(a.vmq); ql = list(a.lgq)
        a(f"v_cmp_ne_u64 vcc, v[{vP0}:{vP0+1}], v[{vNO}:{vNO+1}]\ns_cbranch_vccz {L}")
        spoll([(sF, 16, sMB2, MB_O, 8)])
        a.label(L)
        a.vmq = q; a.lgq = ql
        stamp("b4_opoll")
    for t in reads(0): t()
    spoll([(sF, 8, sMB2, MB_G, 4)])
    stamp("b4_poll")
    for j in range(4): gload(j)
    PAD[0] = OPT["pad4"]
    for j in range(36):
        if j == 28: stamp("b4_g")
        a.wait(vm=gt[j], lg=rd[j])
        if j in (0, 14): stamp(f"b4_j{j}")
        rds = reads(j + 1) if j + 1 < 36 else []
        late = []
        n = len(gt)
        jo = 28 - OPT["olead"]
        if j == jo - 3 and not OPT["noattn"]:
            late.append(lambda: ot.append(a.vm(f"buffer_load_dwordx2 v[{vP0}:{vP0+1}], v{vPO2}, s[{sWS}:{sWS+3}], 0 offen sc1")))
        if j == jo - 1 and not OPT["noattn"]: late.append(ocheck)
        for k in range(2):
            if n + k < 36 and n + k <= j + NG - 1 and (n + k < 28 or j >= jo): late.append(lambda k=n + k: gload(k))
        if B4["stream"] and j >= 1: late.append(lambda k=B4["stream"].pop(0): wt.__setitem__(k, issue_w(k)))
        if j + NZ < 36 and j >= NRG: late.append(lambda j=j: wt.__setitem__(j + NZ, issue_w(j + NZ)))
        g = GF + 8 * (j % NG)
        for u in ((0, 1, 2, 3) if j < J0 else (1, 2, 3)):
            aa, b = divmod(u, 2)
            mfma(ACC + 16 * u, wfr(j, b), g + 4 * aa, first=(j == 0 and u > 0))
            if rds:
                for t in rds: t()
                rds = []
            elif late: late.pop(0)()
        for t in late: t()
    PAD[0] = 0
    stamp("b4_o")
    vW, vR = T, T + 1
    a(f"v_add_u32 v{vW}, s{sM04}, v{vL16}\nv_mul_u32_u24 v{T+2}, 896, v{vT_}\nv_lshl_add_u32 v{T+2}, v{vHH}, 4, v{T+2}")
    wr = [lambda u=u, i=i: a.lg(f"ds_write_b128 v{vW}, v[{ACC+16*u+4*i}:{ACC+16*u+4*i+3}] offset:{(u-1)*4096 + 1024*i}") for u in range(1, 4) for i in range(4)]
    for j in range(J0, 36):
        mfma(ACC, wfr(j, 0), GF + 8 * (j % NG))
        if j > J0 + 1:
            for t in wr[:2]: t()
            wr = wr[2:]
    for t in wr: t()
    a.wait_all(vm=False); a("s_barrier")
    stamp("b4_rbar")
    tk = []
    for u in range(1, 4):
        a(f"s_xor_b32 s{sT0}, s{sW}, {u}\ns_mul_i32 s{sT0}, s{sT0}, {NZ*2048}\nv_add_u32 v{vR}, s{sT0}, v{vL16}")
        tk.append([a.lg(f"ds_read_b128 v[{ACC+16*u+4*i}:{ACC+16*u+4*i+3}], v{vR} offset:{(u-1)*4096 + 1024*i}") for i in range(4)])
    for u in range(1, 4):
        a.wait(lg=tk[u - 1])
        for i in range(0, 16, 2): a(f"v_pk_add_f32 v[{ACC+i}:{ACC+i+1}], v[{ACC+i}:{ACC+i+1}], v[{ACC+16*u+i}:{ACC+16*u+i+1}]")
    PK = GF
    cvt16(PK, ACC)
    for p in range(2):
        a(f"v_permlane32_swap_b32 v{PK+4*p}, v{PK+4*p+2}\nv_permlane32_swap_b32 v{PK+4*p+1}, v{PK+4*p+3}")
        a.vm(f"buffer_store_dwordx4 v[{PK+4*p}:{PK+4*p+3}], v{T+2}, s[{sOUT}:{sOUT+3}], s{sOUTD} offen offset:{32*p}" + ["", " sc1", " nt", " sc0 sc1"][OPT["outsc"]])
    stamp("b4_end"); stamp_flush()

HEAD = f"""; out = x + MHA(LN(x)) + MixerMLP(LN(x))     S=2048 D=448 H=16 Dh=28 F=1792, bf16 in / out
;
; Hand-offs go through d_ws: write-through (sc1) stores, s_waitcnt, then an 8-byte tag written into the consumer's mailbox.
; The tag is a clock reading taken by workgroup 0 and passed on through d_debug, so words left in d_ws by the harness or by an
; earlier launch never match.  Consumers poll (bounded) and read the data with sc1 loads; nothing depends on XCD placement.
; (row sum < 2^120, all outputs finite) sends the workgroup to a second pass with the exact row maximum otherwise.
; @launch grid=(512,1,1) block=(256,1,1) lds={LDS_BYTES}
.amdgcn_target "amdgcn-amd-amdhsa--gfx950"
.text
.globl {NAME}_kernel
.p2align 8
.type {NAME}_kernel,@function
{NAME}_kernel:
"""
TAIL = f""".section .rodata,"a"
.p2align 6
.amdhsa_kernel {NAME}_kernel
  .amdhsa_next_free_vgpr 256
  .amdhsa_next_free_sgpr 102
  .amdhsa_accum_offset 256
  .amdhsa_group_segment_fixed_size 0
  .amdhsa_kernarg_size 88
  .amdhsa_user_sgpr_count 2
  .amdhsa_user_sgpr_kernarg_segment_ptr 1
  .amdhsa_system_sgpr_workgroup_id_x 1
.end_amdhsa_kernel
"""

def build():
    prologue()
    stage_A1()
    if OPT["noattn"]: stamp_flush(); a("s_endpgm")
    else: stage_A2()
    stage_B0()
    stage_B2()
    stage_B3()
    stage_B4()
    a.label("L_end")
    a("s_endpgm")
    helper()
    a.label("L_code_end")
    a.pad_hazards()
    size, nprom, nnop = fix_straddles(a, HEAD, TAIL, verbose=True)
    print(f"code bytes {size}, hazard nops {a.nops_inserted}, promoted {nprom}, straddle nops {nnop}")
    open(sys.argv[1], "w").write(HEAD + a.text() + TAIL + (("; roles: BA\n" if OPT["swap"] else "") + "; stamps: " + ",".join(stamp_names) + "\n" if OPT["stamps"] else ""))

if __name__ == "__main__":
    build()
```

```python
import sys, math, struct
from asmlib import *

NAME = "parallel_sum__mha_block__mixer_s_mlp__prompt"
OPT = dict(stamps=0, spin=400000, prio_b=1, pf=1, outsc=0, noattn=0, nob=0, nr=4, thr=64, go=15, prio_a1=2, prio_at=2, w2late=1, thra=6, swap=1, anf=1, thr3=6, w3a=0, w3b=3, aprio=1, pad3=0, pad4=0, xp=0, defer=0, w3c=20, l2w3=0, l2w4=0, clr=1, map3=1, split=0, prio_h=1, hwait=1, hthr=6, alate=64, aprio2=1, nrg=8, w4b=0, olead=5, dsw=1, a1s=2, w3t=1, dbgst=0, thr4=64, tw4=16, tw4d=3, tw3=0, wsoff=0, nd=4, nz=10, ng=8, psl=1, w4c=8, early3=1, late0=1, hall=0, fill=0, prio_a2=2, tlb=0, aw3=0, adapt=1, nb3=0)
for a in sys.argv[2:]:
    k, v = a.split("="); OPT[k] = int(v, 0)

def f2u(x): return struct.unpack("<I", struct.pack("<f", x))[0]
def hx(x): return hex(x & 0xffffffff)

S, D, F = 2048, 448, 1792
PL = 32768 + 256
MB_A = 0x00000
MB_H = 0x20000
MB_X = 0x2E000
MB_G = 0x3C000
MB_O = 0x4A000
F_GO = 0x58000
F_CS = 0x5C000
F_AP = 0x60000
OOB = 0x7fff0000
QB_ = 0x80000
KV_ = QB_ + 16 * 64 * 2048
H_ = KV_ + 16 * 64 * 4096
X1 = H_ + 0x1C4000
O_ = X1 + 0x1C4000
G_ = O_ + 0x204000
CS3 = G_ + 0x70E000
ST0 = CS3 + 0x2000
ST1 = ST0 + 0x8000
WS_SIZE = ST1 + 14 * 0x4000
STAMP = 0x1A00000
if OPT['stamps']: WS_SIZE = STAMP + 0x80000
LDS_BYTES = 81920
EPS = 1e-5
QSCALE = (28 ** -0.5) * math.log2(math.e)
GA = -2.0 * math.log2(math.e) * math.sqrt(2.0 / math.pi)
GB = GA * 0.044715

sX, sDBG, sW2, sWA, sWS, sW3, sW4, sWO, sOUT = 28, 32, 36, 40, 44, 48, 52, 56, 60
sF = 28
sNO = 0
sHI = 26
sW, sXCD, sLOC = 64, 65, 66
sONES = 67
sT0, sT1, sT2, sT3, sT4, sT5 = 68, 69, 70, 71, 72, 73
sCNT = 74
sA0 = 75
vTID, vLANE, vT_, vHH, vZERO = 0, 1, 2, 3, 4
vNO = 6
vP0 = 8
vPO = 10
vL16 = 11
vA, vB = 12, 14

a = Asm()
lab = [0]
def newlab(p):
    lab[0] += 1; return f"L_{p}_{lab[0]}"

def srd(dst, ptr, size):
    if dst == sWS and OPT["wsoff"]:
        a(f"s_add_u32 s{dst}, s{ptr}, {OPT['wsoff'] << 20}\ns_addc_u32 s{dst+1}, s{ptr+1}, 0\ns_mov_b32 s{dst+2}, {hx(size)}\ns_mov_b32 s{dst+3}, 0x20000")
        return
    a(f"s_mov_b32 s{dst}, s{ptr}\ns_mov_b32 s{dst+1}, s{ptr+1}\ns_mov_b32 s{dst+2}, {hx(size)}\ns_mov_b32 s{dst+3}, 0x20000")

nstamp = [0]
prev_stamp = [None]
stamp_names = {}
def stamp(name, first=False):
    if not OPT["stamps"]: return
    idx = stamp_names.setdefault(name, len(stamp_names))
    assert idx < 64
    if first: a("v_mov_b32 v5, 0")
    elif prev_stamp[0] is not None: a(f"v_writelane_b32 v5, s100, {prev_stamp[0]}")
    a("s_memrealtime s[100:101]" if OPT["stamps"] == 1 else "s_memtime s[100:101]")
    prev_stamp[0] = idx

def stamp_flush():
    if not OPT["stamps"]: return
    if OPT["dbgst"]:
        L = newlab("dbg")
        role = "a" if prev_stamp[0] in [v for k, v in stamp_names.items() if k.startswith("a")] else "b"
        want = {"a": ["a1_c0", "a1_main", "a1_pub", "a2_poll", "a2_start", "a2_main", "a2_pub"], "b": ["b0_rec", "b2_poll", "b2_pub", "b3_poll", "b3_main", "b4_poll", "b4_end"]}[role]
        if not all(w in stamp_names for w in want) or list(stamp_names)[prev_stamp[0]] != want[-1]: return
        a(f"s_waitcnt lgkmcnt(0)\nv_writelane_b32 v5, s100, {prev_stamp[0]}\ns_and_b32 s100, s2, 255\ns_lshl_b32 s100, s100, 2\ns_add_u32 s100, s100, s{sW}\ns_cmp_lg_u32 s100, {OPT['dbgst']*4}\ns_cbranch_scc1 {L}")
        a(f"v_readlane_b32 s100, v5, 0\ns_mov_b64 exec, 1")
        for i, w in enumerate(want):
            a(f"v_readlane_b32 s101, v5, {stamp_names[w]}\ns_sub_u32 s101, s101, s100\nv_mov_b32 v{vP0}, s101\nbuffer_store_dword v{vP0}, v{vZERO}, s[{sDBG}:{sDBG+3}], 0 offen offset:{8 + 4*i + (28 if role == 'b' else 0)}\ns_nop 1")
        a("s_mov_b64 exec, -1")
        a.label(L)
        return
    a(f"s_waitcnt lgkmcnt(0)\nv_writelane_b32 v5, s100, {prev_stamp[0]}")
    a(f"s_lshl_b32 s100, s2, 2\ns_add_u32 s100, s100, s{sW}\ns_lshl_b32 s100, s100, 8\ns_add_u32 s100, s100, {STAMP}")
    a(f"v_lshlrev_b32 v{vP0}, 2, v{vLANE}\nbuffer_store_dword v5, v{vP0}, s[{sWS}:{sWS+3}], s100 offen")

def get_nonce(loaded=False):
    L = newlab("no"); Dn = newlab("nod"); C = newlab("noc")
    q = list(a.vmq)
    a(f"s_mov_b32 s{sCNT}, {OPT['spin']}")
    if loaded: a(f"s_branch {C}")
    a.label(L)
    a(f"buffer_load_dwordx2 v[{vNO}:{vNO+1}], v{vZERO}, s[{sDBG}:{sDBG+3}], 0 offen sc1\ns_waitcnt vmcnt(0)")
    a.label(C)
    a(f"v_readfirstlane_b32 s{sNO}, v{vNO}\nv_readfirstlane_b32 s{sNO+1}, v{vNO+1}")
    a(f"s_cmp_lg_u32 s{sNO}, 0\ns_cbranch_scc1 {Dn}\ns_sub_u32 s{sCNT}, s{sCNT}, 1\ns_cbranch_scc1 {Dn}\ns_sleep 1\ns_branch {L}")
    a.label(Dn)
    if not loaded: a.vmq = []

def post(vaddrs, barrier=True):
    L = newlab("post")
    if barrier:
        a.wait_all()
        a("s_barrier")
    a(f"s_cmp_lg_u32 s{sW}, 0\ns_cbranch_scc1 {L}")
    for v in vaddrs: a(f"buffer_store_dwordx2 v[{vNO}:{vNO+1}], v{v}, s[{sWS}:{sWS+3}], 0 offen sc1")
    a.label(L)

def lane_div(q, r, src, d, t):
    a(f"v_mul_u32_u24 v{q}, 37, v{src}\nv_lshrrev_b32 v{q}, {8 if d == 7 else 9}, v{q}\nv_mul_u32_u24 v{t}, {d}, v{q}\nv_sub_u32 v{r}, v{src}, v{t}")

def lanes_below(v, n, t):
    a(f"v_mov_b32 v{t}, {hx(OOB)}\nv_cmp_gt_u32 vcc, {n}, v{vLANE}\nv_cndmask_b32 v{v}, v{t}, v{v}, vcc")

def spoll(loads):
    L = newlab("sp"); Dn = newlab("spd")
    a(f"s_mov_b32 s{sCNT}, {OPT['spin']}")
    a.label(L)
    regs = []
    for (d, n, so, imm, used) in loads:
        a(f"s_buffer_load_dwordx{n} s[{d}:{d+n-1}], s[{sWS}:{sWS+3}], s{so} offset:{imm} glc")
        regs += [d + 2 * k for k in range(used)]
    a.wait_all(vm=False)
    for r in regs: a(f"s_xor_b64 s[{r}:{r+1}], s[{r}:{r+1}], s[{sNO}:{sNO+1}]")
    while len(regs) > 1:
        r = regs.pop(); a(f"s_or_b64 s[{regs[0]}:{regs[0]+1}], s[{regs[0]}:{regs[0]+1}], s[{r}:{r+1}]")
    a(f"s_cbranch_scc0 {Dn}\ns_sub_u32 s{sCNT}, s{sCNT}, 1\ns_cbranch_scc1 {Dn}" + ("\ns_sleep 1" if OPT["psl"] else "") + f"\ns_branch {L}")
    a.label(Dn)

def poll(sleep=1):
    L = newlab("po"); Dn = newlab("pod")
    a(f"s_mov_b32 s{sCNT}, {OPT['spin']}")
    a.label(L)
    a(f"buffer_load_dwordx2 v[{vP0}:{vP0+1}], v{vPO}, s[{sWS}:{sWS+3}], 0 offen sc1")
    a.wait_all(lg=False)
    a(f"v_cmp_ne_u64 vcc, v[{vP0}:{vP0+1}], v[{vNO}:{vNO+1}]\ns_cbranch_vccz {Dn}\ns_sub_u32 s{sCNT}, s{sCNT}, 1\ns_cbranch_scc1 {Dn}\ns_sleep {sleep}\ns_branch {L}")
    a.label(Dn)

def publish(sflag, barrier=True):
    L = newlab("pub")
    if barrier:
        a.wait_all()
        a("s_barrier")
    a(f"s_cmp_lg_u32 s{sW}, 0\ns_cbranch_scc1 {L}\ns_mov_b64 exec, 1")
    a(f"buffer_store_dwordx2 v[{vNO}:{vNO+1}], v{vZERO}, s[{sWS}:{sWS+3}], s{sflag} offen sc1")
    a("s_mov_b64 exec, -1")
    a.label(L)
    a.flag_pending = True

def xhalf_add(v, t1, t2):
    a(f"v_mov_b32 v{t1}, v{v}\nv_mov_b32 v{t2}, v{v}\nv_permlane32_swap_b32 v{t1}, v{t2}\nv_add_f32 v{v}, v{t1}, v{t2}")

def ln_stats(vsum, vsq, t):
    a(f"v_mul_f32 v{vsum}, {hx(f2u(1.0/D))}, v{vsum}\nv_mul_f32 v{vsq}, {hx(f2u(1.0/D))}, v{vsq}")
    a(f"v_fma_f32 v{vsq}, -v{vsum}, v{vsum}, v{vsq}\nv_max_f32 v{vsq}, 0, v{vsq}")

def scale16(acc):
    for i in range(0, 16, 2):
        a(f"v_pk_mul_f32 v[{acc+i}:{acc+i+1}], v[{acc+i}:{acc+i+1}], v[{vA}:{vA+1}] op_sel_hi:[1,0]")
def shift16(acc, cs):
    for i in range(0, 16, 2):
        a(f"v_pk_fma_f32 v[{acc+i}:{acc+i+1}], v[{cs+i}:{cs+i+1}], v[{vB}:{vB+1}], v[{acc+i}:{acc+i+1}] op_sel_hi:[1,0,1]")

def gelu_consts(vC, va):
    a(f"v_mul_f32 v{vC}, {hx(f2u(GA))}, v{va}\nv_mul_f32 v{vC+2}, v{va}, v{va}\nv_rcp_f32 v{vC+4}, v{va}\nv_mul_f32 v{vC+2}, v{vC+2}, v{va}\nv_mul_f32 v{vC+2}, {hx(f2u(GB))}, v{vC+2}")

def gelu16(y, t, vC, hook=lambda: None):
    for i in range(0, 16, 2):
        a(f"v_pk_mul_f32 v[{t+i}:{t+i+1}], v[{y+i}:{y+i+1}], v[{y+i}:{y+i+1}]")
    for i in range(0, 16, 2):
        a(f"v_pk_fma_f32 v[{t+i}:{t+i+1}], v[{t+i}:{t+i+1}], v[{vC+2}:{vC+3}], v[{vC}:{vC+1}] op_sel_hi:[1,0,0]")
    hook()
    for i in range(0, 16, 2):
        a(f"v_pk_mul_f32 v[{t+i}:{t+i+1}], v[{t+i}:{t+i+1}], v[{y+i}:{y+i+1}]")
    for i in range(16):
        a(f"v_exp_f32 v{t+i}, v{t+i}")
        if i == 7: hook()
    for i in range(0, 16, 2):
        a(f"v_pk_fma_f32 v[{t+i}:{t+i+1}], v[{t+i}:{t+i+1}], v[{vC+4}:{vC+5}], v[{vC+4}:{vC+5}] op_sel_hi:[1,0,0]")
    hook()
    for i in range(16):
        a(f"v_rcp_f32 v{t+i}, v{t+i}")
        if i == 9: hook()
    for i in range(0, 16, 2):
        a(f"v_pk_mul_f32 v[{y+i}:{y+i+1}], v[{y+i}:{y+i+1}], v[{t+i}:{t+i+1}]")
    hook()

class Deferred:
    def __init__(self): self.groups = []
    def __enter__(self):
        self.orig = Asm.__call__; d = self
        def cap(asm, text):
            n = len(asm.ins); d.orig(asm, text); d.groups.append(asm.ins[n:]); del asm.ins[n:]
        Asm.__call__ = cap; return self
    def __exit__(self, *e): Asm.__call__ = self.orig
    def drip(self, ninstr):
        while self.groups and ninstr > 0:
            g = self.groups.pop(0); a.ins.extend(g); ninstr -= len(g)
    def flush(self): self.drip(1 << 30)

def cvt16(pk, y):
    for i in range(8): a(f"v_cvt_pk_bf16_f32 v{pk+i}, v{y+2*i}, v{y+2*i+1}")

PAD = [0]
def mfma(d, A, B, first=False):
    if PAD[0] > 0: a(f"s_nop {PAD[0]-1}")
    elif PAD[0] < 0:
        n = 0
        for i in reversed(a.ins):
            if i.kind == "mfma": break
            if not i.is_label: n += i.states * (OPT["dsw"] if i.kind in ("ds", "vmem", "dma") else 1)
            if n >= -PAD[0]: break
        if n < -PAD[0]: a(f"s_nop {-PAD[0]-n-1}")
    c = "0" if first else f"v[{d}:{d+15}]"
    a(f"v_mfma_f32_32x32x16_bf16 v[{d}:{d+15}], v[{A}:{A+3}], v[{B}:{B+3}], {c}")

def interleave(main, fill):
    n = len(main); k = 0
    for i, m in enumerate(main):
        m()
        upto = (len(fill) * (i + 1) + n - 1) // n
        while k < upto: fill[k](); k += 1

def rot7(dst, rot, n=7):
    for c in range(n):
        a(f"s_add_u32 s{dst+c}, s{rot}, {c}\ns_sub_u32 s{sT5}, s{dst+c}, 7\ns_cselect_b32 s{dst+c}, s{dst+c}, s{sT5}")


def prologue():
    a("s_cmp_ge_u32 s2, 512\ns_cbranch_scc1 L_end")
    a("s_load_dwordx16 s[4:19], s[0:1], 0\ns_load_dwordx4 s[20:23], s[0:1], 64\ns_load_dwordx2 s[24:25], s[0:1], 80")
    a(f"s_memrealtime s[{sTAG}:{sTAG+1}]")
    a(f"v_lshrrev_b32 v8, 6, v0\nv_and_b32 v{vLANE}, 63, v0\nv_readfirstlane_b32 s{sW}, v8")
    a(f"v_and_b32 v{vT_}, 31, v0\nv_bfe_u32 v{vHH}, v0, 5, 1\nv_mov_b32 v{vZERO}, 0\nv_lshlrev_b32 v{vL16}, 4, v{vLANE}")
    a(f"s_mov_b32 s{sHI}, 0\ns_mov_b32 s{sHI+1}, -1\ns_mov_b32 s{sONES}, 0x3f803f80")
    a(f"s_and_b32 s{sXCD}, s2, 7\ns_bfe_u32 s{sLOC}, s2, {(5 << 16) | 3}")
    stamp("entry", first=True)
    a(f"s_or_b32 s{sT4}, s2, s{sW}\ns_cmp_lg_u32 s{sT4}, 0\ns_cbranch_scc1 L_notag\ns_waitcnt lgkmcnt(0)")
    srd(sDBG, 22, 256)
    a(f"s_or_b32 s{sTAG}, s{sTAG}, 1\nv_mov_b32 v{vNO}, s{sTAG}\nv_mov_b32 v{vNO+1}, s{sTAG+1}\ns_mov_b64 exec, 1")
    a(f"buffer_store_dwordx2 v[{vNO}:{vNO+1}], v{vZERO}, s[{sDBG}:{sDBG+3}], 0 offen sc1\ns_mov_b64 exec, -1")
    a.label("L_notag")
    a("s_cmp_ge_u32 s2, 256\n" + ("s_cbranch_scc0" if OPT["swap"] else "s_cbranch_scc1") + " L_roleB")

def make_sel(dst, t):
    a(f"v_bfe_u32 v{t}, v{vLANE}, 2, 1\nv_bfe_u32 v{t+1}, v{vLANE}, 4, 1\nv_cmp_eq_u32 vcc, v{t}, v{t+1}\nv_mov_b32 v{t}, s{sONES}\ns_nop 0\n"
      + "\n".join(f"v_cndmask_b32 v{dst+i}, 0, v{t}, vcc" for i in range(4)))

def mfma_sum(d, sel, B, first):
    c = "0" if first else f"v[{d}:{d+3}]"
    a(f"v_mfma_f32_16x16x32_bf16 v[{d}:{d+3}], v[{sel}:{sel+3}], v[{B}:{B+3}], {c}")

def check_record(REC, voff, soff, loaded=True):
    L = newlab("rec"); Dn = newlab("recd"); C = newlab("recc")
    a(f"s_mov_b32 s{sCNT}, {OPT['spin']}")
    if loaded: a(f"s_branch {C}")
    a.label(L)
    a(f"buffer_load_dwordx4 v[{REC}:{REC+3}], v{voff}, s[{sWS}:{sWS+3}], s{soff} offen sc1\ns_waitcnt vmcnt(0)")
    a.label(C)
    a(f"v_cmp_ne_u32 vcc, v{REC+1}, v{vNO}\nv_cmp_ne_u32 s[{sT2}:{sT3}], v{REC+3}, v{vNO}\ns_or_b64 vcc, vcc, s[{sT2}:{sT3}]")
    a(f"v_cmp_eq_u32 s[{sT2}:{sT3}], 0, v{vNO}\ns_or_b64 vcc, vcc, s[{sT2}:{sT3}]\ns_cbranch_vccz {Dn}")
    a(f"s_sub_u32 s{sCNT}, s{sCNT}, 1\ns_cbranch_scc1 {Dn}\ns_sleep 1\ns_branch {L}")
    a.label(Dn)
    if not loaded: a.vmq = []

def addr_xdma(dst, nq, t):
    for q in range(nq):
        a(f"v_lshrrev_b32 v{t}, 3, v{vLANE}\nv_add_u32 v{t}, {8*q}, v{t}")
        a(f"v_bfe_u32 v{t+1}, v{t}, 1, 3\nv_and_b32 v{t+2}, 7, v{vLANE}\nv_xor_b32 v{t+1}, v{t+1}, v{t+2}")
        a(f"v_mul_u32_u24 v{t}, 896, v{t}\nv_lshl_add_u32 v{t}, v{t+1}, 4, v{t}\nv_subrev_u32 v{dst+q}, {1024*q}, v{t}")

def addr_wdma128(dst, t):
    a(f"v_lshrrev_b32 v{t}, 3, v{vLANE}\nv_bfe_u32 v{t+1}, v{vLANE}, 4, 1\nv_lshlrev_b32 v{t+1}, 2, v{t+1}")
    a(f"v_and_b32 v{t+2}, 7, v{vLANE}\nv_xor_b32 v{t+1}, v{t+1}, v{t+2}")
    a(f"v_mul_u32_u24 v{t}, 896, v{t}\nv_lshl_add_u32 v{dst}, v{t+1}, 4, v{t}\nv_add_u32 v{dst+1}, {8*896-1024}, v{dst}")

def addr_wdma256(dst, sstride, t, mask=False):
    a(f"v_lshrrev_b32 v{t}, 4, v{vLANE}\nv_lshlrev_b32 v{t+1}, 2, v{t}\nv_sub_u32 v{t+1}, v{vLANE}, v{t+1}\nv_and_b32 v{t+1}, 15, v{t+1}")
    a(f"v_mul_u32_u24 v{t}, s{sstride}, v{t}\nv_lshl_add_u32 v{dst}, v{t+1}, 4, v{t}")
    if mask: a(f"v_mov_b32 v{t}, 0x7fff0000\nv_cmp_gt_u32 vcc, 14, v{t+1}\nv_cndmask_b32 v{dst}, v{t}, v{dst}, vcc")
    a(f"s_lshl_b32 s{sT5}, s{sstride}, 2\ns_sub_u32 s{sT5}, s{sT5}, 1024")
    for q in range(1, 4): a(f"v_add_u32 v{dst+q}, s{sT5}, v{dst+q-1}")

def addr_xrd(dst, sbase, t):
    a(f"v_bfe_u32 v{t}, v{vT_}, 1, 3\nv_xor_b32 v{t}, v{t}, v{vHH}\nv_lshlrev_b32 v{t}, 4, v{t}\nv_lshl_add_u32 v{t}, v{vT_}, 7, v{t}")
    for ks in range(4):
        a(f"v_xor_b32 v{dst+ks}, {32*ks}, v{t}\nv_add_u32 v{dst+ks}, s{sbase}, v{dst+ks}")

def lane_rcg(t):
    a(f"v_bfe_u32 v{t}, v{vLANE}, 2, 2\nv_and_b32 v{t+1}, 3, v{vLANE}\nv_lshlrev_b32 v{t+1}, 3, v{t+1}")
    a(f"v_bfe_u32 v{t+2}, v{vLANE}, 4, 1\nv_lshl_add_u32 v{t+1}, v{t+2}, 5, v{t+1}")

def addr_wrd256(dst, cs, t):
    lane_rcg(t)
    a(f"v_lshl_add_u32 v{t+1}, v{t}, 6, v{t+1}")
    a(f"v_lshl_add_u32 v{t}, v{vHH}, 3, v{t}\nv_lshlrev_b32 v{t}, 8, v{t}")
    for u in range(4):
        a(f"s_add_u32 s{sT0}, s{sW}, {u}\ns_and_b32 s{sT0}, s{sT0}, 3\ns_mul_i32 s{sT0}, s{sT0}, {cs}")
        a(f"v_add_u32 v{dst+u}, s{sT0}, v{t+1}\nv_and_b32 v{dst+u}, 255, v{dst+u}\nv_add_u32 v{dst+u}, v{dst+u}, v{t}")

def addr_wrd128(dst, hhmul, scol, sbase, t):
    lane_rcg(t)
    a(f"v_lshrrev_b32 v{t+2}, 1, v{t}\nv_xor_b32 v{t+2}, s{scol}, v{t+2}\nv_lshl_add_u32 v{t+1}, v{t+2}, 6, v{t+1}")
    a(f"v_mad_u32_u24 v{t}, v{vHH}, {hhmul}, v{t}\nv_lshl_add_u32 v{dst}, v{t}, 7, v{t+1}")
    if sbase is not None: a(f"v_add_u32 v{dst}, s{sbase}, v{dst}")

def set_m0(expr_sgpr, add):
    a(f"s_add_u32 m0, s{expr_sgpr}, {add}" if add else f"s_mov_b32 m0, s{expr_sgpr}")


def panel_mainloop(name, ACC, WF, vWrd, nslot, xfrag, issue_w, wtok, hooks, SEL, CS4, defer=None, stream=()):
    rd = {}
    hi = [False]
    pre = set(range(nslot)); stream = list(stream); stream0 = bool(stream)
    def wreads(s):
        c, ks = divmod(s, 4); slot = c % nslot
        base = slot * 16384 + ks * 4096
        if slot == 4 and not hi[0]:
            for u in range(4): a(f"v_add_u32 v{vWrd+u}, 0x10000, v{vWrd+u}")
            hi[0] = True
        if slot != 4 and hi[0]:
            for u in range(4): a(f"v_subrev_u32 v{vWrd+u}, 0x10000, v{vWrd+u}")
            hi[0] = False
        if slot == 4: base -= 65536
        toks = []; rd[s] = toks; th = []
        for u in range(2 if OPT["xp"] & 8 else 4):
            for jj in range(2):
                r = WF + (s & 1) * 16 + u * 4 + jj * 2
                th.append(lambda r=r, u=u, jj=jj: toks.append(a.lg(f"ds_read_b64_tr_b16 v[{r}:{r+1}], v{vWrd+u} offset:{base + jj*1024}")))
        return th
    hooks["before_barrier"](0)
    a.wait(vm=wtok[0]); a("s_barrier")
    stamp(name + "_c0")
    for t in hooks["after_barrier"](0) + wreads(0): t()
    for s in range(28):
        c, ks = divmod(s, 4)
        a.wait(lg=rd[s] + hooks["lg_need"](s), vm=hooks["vm_need"](s))
        reads = []; late = []
        if ks == 3 and c < 6:
            hooks["before_barrier"](c + 1)
            if nslot == 5 and OPT["nb3"] and not stream0:
                if c + 1 == 2: a.wait(vm=wtok[4])
                if c + 1 not in (3, 4): a.wait(vm=wtok[c + 1]); a("s_barrier")
            else:
                a.wait(vm=wtok[c + 1]); a("s_barrier")
            if c in (1, 3, 5): stamp(name + f"_c{c+1}")
            reads += hooks["after_barrier"](c + 1)
        if s < 27: reads += wreads(s + 1)
        for cc, qs in ((c + nslot, (0, 1)) if ks == 3 else (c - 1 + nslot, (2, 3)) if ks == 0 and c > 0 else (99, ()),):
            if cc <= 6 and cc not in pre:
                for q in qs: late.append(lambda cc=cc, q=q: wtok.setdefault(cc, []).extend(issue_w(cc, (q,))))
        for k in range(2):
            if stream: late.append(stream.pop(0))
        late += hooks["kstep"](s)
        xf = xfrag(s); w = WF + (s & 1) * 16
        h = (len(reads) + 1) // 2
        mfma(ACC, w, xf, first=(s == 0))
        for t in reads[:h]: t()
        mfma(ACC + 16, w + 4, xf, first=(s == 0))
        for t in reads[h:]: t()
        h = (len(late) + 1) // 2
        mfma(ACC + 32, w + 8, xf, first=(s == 0))
        for t in late[:h]: t()
        if defer: defer.drip(3)
        mfma(ACC + 48, w + 12, xf, first=(s == 0))
        for t in late[h:]: t()
        if defer: defer.drip(3)
        if SEL is not None and not (OPT["xp"] & 4 and s > 0): mfma_sum(CS4, SEL, w, s == 0)
    if defer: defer.flush()

def addr_cs(vCW, vCA, csbase):
    a(f"s_lshl_b32 s{sT0}, s{sW}, 7\ns_add_u32 s{sT0}, s{sT0}, {csbase}\nv_lshl_add_u32 v{vCW}, v{vT_}, 2, s{sT0}")
    for u in range(4):
        a(f"s_add_u32 s{sT0}, s{sW}, {u}\ns_and_b32 s{sT0}, s{sT0}, 3\ns_lshl_b32 s{sT0}, s{sT0}, 7\ns_add_u32 s{sT0}, s{sT0}, {csbase}\nv_lshl_add_u32 v{vCA+u}, v{vHH}, 4, s{sT0}")

def read_cs(dst, vaddr):
    return [a.lg(f"ds_read_b128 v[{dst+4*i}:{dst+4*i+3}], v{vaddr} offset:{32*i}") for i in range(4)]

sTAG = 98
def stage_A1():
    a.comment("==== A1: 128 rows x 112 columns of LN(x) @ [wq | wk | wv | w1]")
    if OPT["prio_a1"]: a(f"s_setprio {OPT['prio_a1']}")
    ACC, XF, WF = 16, 80, 112
    vWd, vXd, vXr, vWr = 144, 148, 152, 156
    SEL, CS4, REC, vCA, vVw, vVr, vPA, vPB, vSt, vCW, vM0, vM1, vRo = 160, 164, 168, 172, 176, 180, 182, 183, 184, 185, 186, 187, 188
    T = 190
    GT, PK = 200, 216
    sRB, sCG, sROT = sA0, sA0 + 1, sA0 + 2
    sKC = sA0 + 3
    sWO_ = sA0 + 10
    sM0W, sM0X, sTY, sHQ, sSTR, sCST = sA0 + 17, sA0 + 18, sA0 + 19, sA0 + 20, sA0 + 21, sA0 + 22
    sD0, sD1, sFL, sRO, sSC, sGO, sG = 4, 8, 12, 13, 14, 15, 16
    a(f"s_lshr_b32 s{sT0}, s{sLOC}, 3\ns_lshr_b32 s{sT2}, s{sXCD}, 1\ns_lshl_b32 s{sT2}, s{sT2}, 2\ns_add_u32 s{sRB}, s{sT2}, s{sT0}")
    a(f"s_and_b32 s{sT2}, s{sXCD}, 1\ns_lshl_b32 s{sT2}, s{sT2}, 3\ns_and_b32 s{sT1}, s{sLOC}, 7\ns_add_u32 s{sCG}, s{sT2}, s{sT1}")
    a(f"s_lshr_b32 s{sTY}, s{sCG}, 2\ns_and_b32 s{sHQ}, s{sCG}, 3")
    a(f"s_cmp_eq_u32 s{sTY}, 3\ns_movk_i32 s{sSTR}, 2688\ns_cselect_b32 s{sSTR}, 896, s{sSTR}\ns_cselect_b32 s{sCST}, 64, 56\ns_cselect_b32 s{sT3}, s{sHQ}, s{sCG}")
    a(f"s_mul_i32 s{sT0}, s{sLOC}, 37\ns_lshr_b32 s{sT0}, s{sT0}, 8\ns_mul_i32 s{sT0}, s{sT0}, 7\ns_sub_u32 s{sROT}, s{sLOC}, s{sT0}")
    a(f"s_lshl_b32 s{sT0}, s{sRB}, 2\ns_add_u32 s{sT0}, s{sT0}, s{sW}\ns_mul_i32 s{sT0}, s{sT0}, {32*896}")
    a(f"s_lshl_b32 s{sT1}, s{sW}, 4\ns_mul_i32 s{sT1}, s{sT1}, s{sSTR}\ns_mul_i32 s{sT2}, s{sT3}, 224\ns_add_u32 s{sT1}, s{sT1}, s{sT2}")
    a(f"s_lshl_b32 s{sT2}, s{sSTR}, 6")
    def chunk_offsets(c):
        a(f"s_add_u32 s{sKC+c}, s{sROT}, {c}\ns_sub_u32 s{sT5}, s{sKC+c}, 7\ns_cselect_b32 s{sKC+c}, s{sKC+c}, s{sT5}")
        a(f"s_mul_i32 s{sWO_+c}, s{sKC+c}, s{sT2}\ns_add_u32 s{sWO_+c}, s{sWO_+c}, s{sT1}")
        a(f"s_lshl_b32 s{sKC+c}, s{sKC+c}, 7\ns_add_u32 s{sKC+c}, s{sKC+c}, s{sT0}")
    for c in range(2): chunk_offsets(c)
    a(f"s_lshl_b32 s{sM0W}, s{sW}, 12\ns_lshl_b32 s{sM0X}, s{sW}, 13\ns_add_u32 s{sM0X}, s{sM0X}, 49152")
    addr_xdma(vXd, 4, T); addr_wdma256(vWd, sSTR, T, mask=True)
    a("s_waitcnt lgkmcnt(0)")
    stamp("a1_karg")
    srd(sX, 4, S * D * 2)
    a(f"s_cmp_eq_u32 s{sTY}, 3\ns_cselect_b32 s{sWA}, s12, s6\ns_cselect_b32 s{sWA+1}, s13, s7\ns_mov_b32 s{sWA+2}, {D*3*D*2}\ns_cselect_b32 s{sWA+2}, {D*D*2}, s{sWA+2}\ns_mov_b32 s{sWA+3}, 0x20000")
    srd(sDBG, 22, 256)
    m0 = [None]
    def issue_x(c, qs=range(4)):
        if m0[0] != ("x", c): set_m0(sM0X, (c & 1) * 4096); m0[0] = ("x", c)
        if OPT["xp"] & 1 and c > 1: return []
        return [a.vm(f"buffer_load_dwordx4 v{vXd+q}, s[{sX}:{sX+3}], s{sKC+c} offen offset:{1024*q} lds") for q in qs]
    def issue_w(c, qs=range(4)):
        if m0[0] != ("w", c): set_m0(sM0W, (c % 3) * 16384); m0[0] = ("w", c)
        if OPT["xp"] & 2 and c > 2: return []
        return [a.vm(f"buffer_load_dwordx4 v{vWd+q}, s[{sWA}:{sWA+3}], s{sWO_+c} offen offset:{1024*q} lds") for q in qs]
    xt = {}; wt = {}
    xt[0] = issue_x(0); wt[0] = issue_w(0)
    for c in range(2, 7): chunk_offsets(c)
    addr_xrd(vXr, sM0X, T)
    if OPT["a1s"] < 2: xt[1] = issue_x(1)
    addr_wrd256(vWr, f"s{sCST}", T)
    make_sel(SEL, T)
    srd(sWS, 24, WS_SIZE)
    if OPT["aw3"]: srd(sWO, 16, D * F * 2)
    CSB = 16384
    with Deferred() as df:
        a(f"s_and_b32 s{sGO}, s2, 255\ns_lshl_b32 s{sGO}, s{sGO}, 6\ns_add_u32 s{sGO}, s{sGO}, {F_GO}")
        a(f"s_lshl_b32 s{sT0}, s{sRB}, 2\ns_add_u32 s{sT4}, s{sT0}, s{sW}\ns_lshl_b32 s{sRO}, s{sT4}, 9\ns_add_u32 s{sRO}, s{sRO}, {ST0}")
        a(f"v_lshlrev_b32 v{vRo}, 4, v{vT_}")
        addr_cs(vCW, vCA, CSB)
        a(f"s_lshl_b32 s{sT0}, s{sHQ}, 15\ns_lshl_b32 s{sT1}, s{sRB}, 9\ns_add_u32 s{sT1}, s{sT1}, s{sT0}")
        a(f"v_lshrrev_b32 v{T}, 2, v{vLANE}\nv_lshlrev_b32 v{T}, 13, v{T}\nv_and_b32 v{T+1}, 3, v{vLANE}\nv_lshl_add_u32 v{T}, v{T+1}, 7, v{T}\nv_add_u32 v{vM1}, s{sT1}, v{T}")
        lanes_below(vM1, 16, T)
        a(f"s_lshr_b32 s{sT1}, s{sRB}, 2\ns_lshl_b32 s{sT1}, s{sT1}, 7\ns_add_u32 s{sT0}, s{sT0}, s{sT1}\ns_and_b32 s{sT1}, s{sRB}, 3\ns_lshl_b32 s{sT2}, s{sTY}, 2\ns_add_u32 s{sT1}, s{sT1}, s{sT2}")
        a(f"s_sub_u32 s{sT1}, s{sT1}, 2\ns_lshl_b32 s{sT1}, s{sT1}, 3\ns_add_u32 s{sT0}, s{sT0}, s{sT1}\nv_lshl_add_u32 v{vM0}, v{vLANE}, 9, s{sT0}")
        a(f"s_cmp_eq_u32 s{sTY}, 0\ns_cselect_b64 vcc, -1, 0\nv_cndmask_b32 v{vM0}, v{vM0}, v{vM1}, vcc")
        lane_div(T, T + 1, vLANE, 14, T + 2)
        a(f"s_lshl_b32 s{sT0}, s{sRB}, 1\ns_sub_u32 s{sT0}, s{sT0}, 1\nv_add_u32 v{T+2}, s{sT0}, v{T}\nv_max_i32 v{T+2}, 0, v{T+2}\nv_min_i32 v{T+2}, 31, v{T+2}")
        a(f"v_mul_u32_u24 v{T+2}, 14, v{T+2}\nv_add_u32 v{T+2}, v{T+2}, v{T+1}\nv_lshlrev_b32 v{T+2}, 7, v{T+2}")
        a(f"v_add_u32 v{T}, 1, v{T}\nv_bfe_u32 v{T}, v{T}, 1, 1\nv_xor_b32 v{T}, 1, v{T}\nv_lshl_add_u32 v{T+2}, v{T}, 3, v{T+2}")
        a(f"s_lshr_b32 s{sT0}, s{sHQ}, 1\ns_lshl_b32 s{sT0}, s{sT0}, 6\ns_and_b32 s{sT1}, s{sHQ}, 1\ns_lshl_b32 s{sT1}, s{sT1}, 4\ns_add_u32 s{sT0}, s{sT0}, s{sT1}\ns_add_u32 s{sT0}, s{sT0}, {MB_H}\nv_add_u32 v{T+2}, s{sT0}, v{T+2}")
        lanes_below(T + 2, 56, T)
        a(f"s_cmp_eq_u32 s{sTY}, 3\ns_cselect_b64 vcc, -1, 0\nv_cndmask_b32 v{vM0}, v{vM0}, v{T+2}, vcc")
        a(f"s_cmp_eq_u32 s{sTY}, 1\ns_cselect_b32 s{sT0}, 8, {hx(OOB)}\nv_add_u32 v{vM1}, s{sT0}, v{vM1}")
        a(f"s_and_b32 s{sT0}, s2, 255\ns_lshl_b32 s{sT0}, s{sT0}, 6\ns_add_u32 s{sT0}, s{sT0}, {F_AP}\nv_mov_b32 v{T}, s{sT0}\nv_cmp_eq_u32 vcc, 16, v{vLANE}\ns_nop 1\nv_cndmask_b32 v{vM1}, v{vM1}, v{T}, vcc")
        a(f"s_lshl_b32 s{sT1}, s{sHQ}, 8\ns_add_u32 s{sT0}, s{sT4}, s{sT1}\ns_cmp_eq_u32 s{sTY}, 0\ns_cselect_b32 s{sSC}, 11, 12\ns_mov_b32 s{sT2}, {KV_ - 2048}\ns_cselect_b32 s{sT2}, {QB_}, s{sT2}")
        a(f"s_lshl_b32 s{sT0}, s{sT0}, s{sSC}\ns_lshl_b32 s{sT1}, s{sTY}, 11\ns_add_u32 s{sT0}, s{sT0}, s{sT1}\ns_add_u32 s{sT0}, s{sT0}, s{sT2}")
        a(f"s_lshl_b32 s{sT4}, s{sT4}, 9\ns_mul_i32 s{sT1}, s{sHQ}, {14*PL}\ns_add_u32 s{sT4}, s{sT4}, s{sT1}\ns_add_u32 s{sT4}, s{sT4}, {H_}")
        a(f"s_lshl_b32 s{sT1}, 64, s{sSC}\ns_movk_i32 s{sT2}, 1024\ns_movk_i32 s{sT3}, 512")
        a(f"s_cmp_eq_u32 s{sTY}, 3\ns_cselect_b32 s{sT0}, s{sT4}, s{sT0}\ns_cselect_b32 s{sT1}, {4*PL}, s{sT1}\ns_cselect_b32 s{sT2}, {2*PL}, s{sT2}\ns_cselect_b32 s{sT3}, {PL}, s{sT3}")
        a(f"v_mul_u32_u24 v{vSt}, s{sT3}, v{vHH}\nv_lshl_add_u32 v{vSt}, v{vT_}, 4, v{vSt}")
        for u in range(4):
            a(f"s_add_u32 s{sT3}, s{sW}, {u}\ns_and_b32 s{sT3}, s{sT3}, 3\ns_mul_i32 s{sD0+u}, s{sT3}, s{sT1}\ns_add_u32 s{sD0+u}, s{sD0+u}, s{sT0}")
            a(f"s_add_u32 s{sD1+u}, s{sD0+u}, s{sT2}\ns_lshl_b32 s{sT4}, s{sTY}, 2\ns_or_b32 s{sT3}, s{sT3}, s{sT4}")
            a(f"s_cmp_eq_u32 s{sT3}, 15\ns_cselect_b32 s{sD1+u}, 0x7fff0000, s{sD1+u}")
        a(f"s_cmp_eq_u32 s{sTY}, 1\ns_cselect_b32 s{sT1}, 0x3f803f80, 0\ns_cselect_b32 s{sT2}, 0x3f80, 0")
        a(f"s_cmp_eq_u32 s{sTY}, 2\ns_cselect_b32 s{sT1}, 0x3f80, s{sT1}")
        a(f"v_mov_b32 v{vPA}, s{sT1}\nv_mov_b32 v{vPB}, s{sT2}")
        a(f"s_cmp_eq_u32 s{sTY}, 0\ns_cselect_b32 s{sSC}, {hx(f2u(QSCALE))}, 1.0")
        a(f"v_bfe_u32 v{T}, v{vT_}, 1, 3\nv_xor_b32 v{T}, v{T}, v{vHH}\nv_lshlrev_b32 v{T}, 3, v{T}\nv_lshl_add_u32 v{T}, v{vT_}, 6, v{T}")
        for i in range(4): a(f"v_xor_b32 v{vVw+i}, {16*i}, v{T}\nv_add_u32 v{vVw+i}, s{sM0X}, v{vVw+i}")
        lane_rcg(T)
        for jj in range(2):
            a(f"v_lshl_add_u32 v{T+2}, v{vHH}, 2, v{T}\nv_add_u32 v{T+2}, {8*jj}, v{T+2}")
            a(f"v_bfe_u32 v{T+3}, v{T+2}, 1, 3\nv_lshlrev_b32 v{T+3}, 3, v{T+3}\nv_xor_b32 v{T+3}, v{T+3}, v{T+1}")
            a(f"v_lshl_add_u32 v{vVr+jj}, v{T+2}, 6, v{T+3}\nv_add_u32 v{vVr+jj}, s{sM0X}, v{vVr+jj}")
    if not OPT["defer"]: df.drip(70 if OPT["a1s"] < 2 else 999)
    if OPT["a1s"] >= 2: xt[1] = issue_x(1)
    wt[1] = issue_w(1)
    if not OPT["defer"]: df.flush()
    st1 = []
    if OPT["a1s"]: st1 = [lambda q=q: wt.setdefault(2, []).extend(issue_w(2, (q,))) for q in range(4)]
    else: wt[2] = issue_w(2)
    stamp("a1_issued")
    xr = {}; rec = []
    def go():
        a.wait(vm=rec[0]); get_nonce(loaded=True)
        publish(sGO, barrier=False)
    def after_barrier(c):
        xr[c] = []
        return [lambda ks=ks: xr[c].append(a.lg(f"ds_read_b128 v[{XF+(c&1)*16+4*ks}:{XF+(c&1)*16+4*ks+3}], v{vXr+ks} offset:{(c&1)*4096}")) for ks in range(4)]
    def kstep(s):
        th = []
        c, ks = divmod(s, 4)
        if ks in (1, 2) and c + 2 <= 6:
            for q in (2 * ks - 2, 2 * ks - 1): th.append(lambda q=q: xt.setdefault(c + 2, []).extend(issue_x(c + 2, (q,))))
        if s == OPT["go"] - 5: th.append(lambda: rec.append(a.vm(f"buffer_load_dwordx2 v[{vNO}:{vNO+1}], v{vZERO}, s[{sDBG}:{sDBG+3}], 0 offen sc1")))
        if s == OPT["go"]: th.append(go)
        if s == 22: th.append(lambda: rec.append(a.vm(f"buffer_load_dwordx4 v[{REC}:{REC+3}], v{vRo}, s[{sWS}:{sWS+3}], s{sRO} offen sc1")))
        return th
    hooks = dict(before_barrier=lambda c: a.wait(vm=xt[c]), after_barrier=after_barrier,
                 lg_need=lambda s: xr[s // 4] if s % 4 == 0 else [], vm_need=lambda s: [], kstep=kstep)
    panel_mainloop("a1", ACC, WF, vWr, 3, lambda s: XF + ((s // 4) & 1) * 16 + 4 * (s % 4), issue_w, wt, hooks, SEL, CS4, df, stream=st1)
    stamp("a1_main")
    a.wait(vm=rec)
    check_record(REC, vRo, sRO)
    a.lg(f"ds_write_b32 v{vCW}, v{CS4}")
    a(f"v_mul_f32 v{T}, v{REC+2}, v{REC+2}\nv_mov_b32 v{T+1}, {hx(f2u(1.0 + EPS))}\nv_mov_b32 v{T+2}, {hx(f2u(-EPS))}\nv_fma_f32 v{T}, v{T}, v{T+2}, v{T+1}\nv_rsq_f32 v{T}, v{T}")
    a(f"s_cmp_eq_u32 s{sTY}, 3\ns_cselect_b64 vcc, -1, 0\nv_mov_b32 v{T+1}, s{sSC}\nv_cndmask_b32 v{T}, v{T+1}, v{T}, vcc")
    a(f"v_mul_f32 v{vA}, v{T}, v{REC+2}\nv_mul_f32 v{vB}, v{vA}, v{REC}\nv_sub_f32 v{vB}, 0, v{vB}")
    a.wait_all(vm=False); a("s_barrier")
    stamp("a1_csbar")
    CS = 80
    toks = [read_cs(CS + 16 * u, vCA + u) for u in range(3)]
    a(f"s_cmp_eq_u32 s{sTY}, 3\ns_cbranch_scc1 L_A1_nosc")
    for u in range(4): scale16(ACC + 16 * u)
    a.label("L_A1_nosc")
    a.wait(lg=toks[0])
    toks.append(read_cs(CS + 48, vCA + 3))
    def store(u, pk):
        a.vm(f"buffer_store_dwordx4 v[{pk}:{pk+3}], v{vSt}, s[{sWS}:{sWS+3}], s{sD0+u} offen sc1")
        a.vm(f"buffer_store_dwordx4 v[{pk+4}:{pk+7}], v{vSt}, s[{sWS}:{sWS+3}], s{sD1+u} offen sc1")
    def pads(pk): a(f"v_cndmask_b32 v{pk+6}, v{pk+6}, v{vPA}, s[{sHI}:{sHI+1}]\nv_cndmask_b32 v{pk+7}, v{pk+7}, v{vPB}, s[{sHI}:{sHI+1}]")
    lgq0 = list(a.lgq); vmq0 = list(a.vmq)
    a(f"s_cmp_eq_u32 s{sTY}, 2\ns_cbranch_scc1 L_A1_v\ns_cmp_eq_u32 s{sTY}, 3\ns_cbranch_scc1 L_A1_w1")
    for u in range(4):
        a.wait(lg=toks[u]); shift16(ACC + 16 * u, CS + 16 * u)
        cvt16(PK + 8 * u, ACC + 16 * u); pads(PK + 8 * u); store(u, PK + 8 * u)
    a("s_branch L_A1_pub")
    a.label("L_A1_v")
    a.lgq = list(lgq0); a.vmq = list(vmq0); tr = {}
    for u in range(4):
        pk = PK + 8 * u
        a.wait(lg=toks[u]); shift16(ACC + 16 * u, CS + 16 * u)
        cvt16(pk, ACC + 16 * u); pads(pk)
        if u == 0: a.wait(lg=toks[3])
        if u > 0: a.wait(lg=tr[u - 1]); store(u - 1, pk - 8)
        for i in range(4): a.lg(f"ds_write_b64 v{vVw+i}, v[{pk+2*i}:{pk+2*i+1}] offset:{2048*u}")
        tr[u] = [a.lg(f"ds_read_b64_tr_b16 v[{pk+4*m+2*jj}:{pk+4*m+2*jj+1}], v{vVr+jj} offset:{2048*u + 1024*m}") for m in range(2) for jj in range(2)]
    a.wait(lg=tr[3]); store(3, PK + 24)
    a("s_branch L_A1_pub")
    a.label("L_A1_w1")
    a.lgq = list(lgq0); a.vmq = list(vmq0)
    gelu_consts(T, vA)
    a(f"v_sub_f32 v{vB}, 0, v{REC}")
    for u in range(4):
        a.wait(lg=toks[u]); shift16(ACC + 16 * u, CS + 16 * u)
        gelu16(ACC + 16 * u, GT, T)
        cvt16(PK + 8 * u, ACC + 16 * u); store(u, PK + 8 * u)
    a.label("L_A1_pub")
    stamp("a1_epi")
    post([vM0, vM1])
    stamp("a1_pub")

def rowmax(dst, s_, first):
    if first: a(f"v_max3_f32 v{dst}, v{s_}, v{s_+1}, v{s_+2}\nv_max_f32 v{dst}, v{dst}, v{s_+3}")
    else: a(f"v_max3_f32 v{dst}, v{dst}, v{s_}, v{s_+1}\nv_max3_f32 v{dst}, v{dst}, v{s_+2}, v{s_+3}")
    for i in range(4, 16, 2): a(f"v_max3_f32 v{dst}, v{dst}, v{s_+i}, v{s_+i+1}")

def stage_A2():
    a.comment("==== A2: attention, 128 queries of one head; wave = 512 keys; slot x holds query tile w^x^3")
    NR = OPT["nr"]
    Q, O, SS, P = 16, 48, 112, 144
    KB = 160; VB = KB + 8 * NR
    T = VB + 8 * NR; MX = 12
    assert T + 16 <= 256
    sH, sQB, sQ0, sK, sV, sK0, sRETRY, sKT0, sOD, sFL, sKVB, sPUB = sA0, sA0+1, sA0+2, sA0+3, sA0+4, sA0+5, sA0+6, sA0+7, sA0+8, sA0+10, sA0+11, sA0+12
    vOo, vW, vR, vKV = 0, 8, 9, 10
    a(f"s_lshr_b32 s{sT0}, s{sLOC}, 4\ns_lshl_b32 s{sH}, s{sXCD}, 1\ns_add_u32 s{sH}, s{sH}, s{sT0}\ns_and_b32 s{sQB}, s{sLOC}, 15")
    sMB = 52
    a(f"s_lshl_b32 s{sT0}, s{sH}, 4\ns_add_u32 s{sT0}, s{sT0}, s{sQB}\ns_lshl_b32 s{sT0}, s{sT0}, 2\ns_add_u32 s{sT0}, s{sT0}, s{sW}\ns_lshl_b32 s{sMB}, s{sT0}, 7")
    a(f"s_lshl_b32 s{sK0}, s{sH}, 18\ns_add_u32 s{sK0}, s{sK0}, {KV_}\ns_lshl_b32 s{sT0}, s{sW}, 16\ns_add_u32 s{sT0}, s{sT0}, s{sK0}\ns_mov_b32 s{sKVB}, s{sT0}\ns_lshl_b32 s{sT0}, s{sQB}, 14\ns_add_u32 s{sK0}, s{sK0}, s{sT0}")
    a(f"s_lshl_b32 s{sQ0}, s{sH}, 17\ns_lshl_b32 s{sT0}, s{sQB}, 13\ns_add_u32 s{sQ0}, s{sQ0}, s{sT0}\ns_add_u32 s{sQ0}, s{sQ0}, {QB_}")
    for kt in range(16): a(f"s_add_u32 s{8+kt}, s{sQB}, {kt}\ns_and_b32 s{8+kt}, s{8+kt}, 15\ns_lshl_b32 s{8+kt}, s{8+kt}, 12")
    a(f"s_mov_b32 s{sRETRY}, 0\ns_mov_b32 s{sPUB}, 0")
    for x in range(4): a(f"s_xor_b32 s{4+x}, s{sW}, {x^3}\ns_lshl_b32 s{4+x}, s{4+x}, 11\ns_add_u32 s{4+x}, s{4+x}, s{sQ0}")
    a(f"v_mul_u32_u24 v{vOo}, {PL}, v{vHH}\nv_lshl_add_u32 v{vOo}, v{vT_}, 4, v{vOo}")
    a(f"s_lshl_b32 s{sT0}, s{sQB}, 2\ns_add_u32 s{sT0}, s{sT0}, s{sW}\ns_lshl_b32 s{sT0}, s{sT0}, 9")
    a(f"s_mul_i32 s{sT1}, s{sH}, {4*PL}\ns_add_u32 s{sT0}, s{sT0}, s{sT1}\ns_add_u32 s{sOD}, s{sT0}, {O_}\ns_add_u32 s{sOD+1}, s{sOD}, {2*PL}")
    a(f"s_lshl_b32 s{sT0}, s{sQB}, 1\ns_lshr_b32 s{sT1}, s{sW}, 1\ns_add_u32 s{sT0}, s{sT0}, s{sT1}\ns_mul_i32 s{sT0}, s{sT0}, {7*256}\ns_lshr_b32 s{sT1}, s{sH}, 2\ns_lshl_b32 s{sT1}, s{sT1}, 6\ns_add_u32 s{sT0}, s{sT0}, s{sT1}")
    a(f"s_and_b32 s{sT1}, s{sH}, 3\ns_lshl_b32 s{sT1}, s{sT1}, 1\ns_and_b32 s{sT2}, s{sW}, 1\ns_add_u32 s{sT1}, s{sT1}, s{sT2}\ns_lshl_b32 s{sT1}, s{sT1}, 3\ns_add_u32 s{sT0}, s{sT0}, s{sT1}\ns_add_u32 s{sFL}, s{sT0}, {MB_O}")
    def ld(dst, soff, imm, vo=vL16): return a.vm(f"buffer_load_dwordx4 v[{dst}:{dst+3}], v{vo}, s[{sWS}:{sWS+3}], s{soff} offen offset:{imm} sc1")
    if OPT["prio_a2"] != OPT["prio_a1"]: a(f"s_setprio {OPT['prio_a2']}")
    spoll([(sF, 16, sMB, MB_A, 8), (48, 4, sMB, MB_A + 64, 2)])
    stamp("a2_poll")
    k0 = [ld(T, sK0, 0), ld(T + 4, sK0, 1024)]
    qt = [[ld(Q + 8 * x, 4 + x, 0), ld(Q + 8 * x + 4, 4 + x, 1024)] for x in range(4)]
    ND = OPT["nd"]
    BL = [(kt, x) for kt in range(16 - ND) for x in range(4)] + [(kt, x) for kt in range(16 - ND, 16) for x in range(3)] + [(kt, 3) for kt in range(16 - ND, 16)]
    first = {kt: min(n for n, b in enumerate(BL) if b[0] == kt) for kt in range(16)}
    last = {kt: max(n for n, b in enumerate(BL) if b[0] == kt) for kt in range(16)}
    lastx = {x: max(n for n, b in enumerate(BL) if b[1] == x) for x in range(4)}
    order = []
    for kt in range(16):
        for kind in "KV":
            for half in range(2):
                need = first[kt] - 2 if kind == "K" else first[kt] + 1
                free = -99 if kt < NR else (last[kt - NR] if kind == "K" else last[kt - NR] + 2)
                order.append((need, kind, kt, half, free))
    order.sort()
    tok = {}
    sKT = 8
    def issue(e):
        need, kind, kt, half, free = e
        if kind == "K": t = ld(KB + 8 * (kt % NR) + 4 * half, sKT + kt, 1024 * half, vKV)
        else: t = ld(VB + 8 * (kt % NR) + 4 * half, sKT + kt, 2048 + 1024 * half, vKV)
        tok.setdefault((kind, kt), []).append(t)
    def bump(e): pass
    NPRE = 6
    def first_loads():
        for e in order[:NPRE]: issue(e); bump(e)
    def kv_start():
        a(f"v_add_u32 v{vKV}, s{sKVB}, v{vL16}")
        first_loads()
        a(f"s_mul_i32 s{sT0}, s{sW}, 12288\nv_add_u32 v{vW}, s{sT0}, v{vL16}")
    kv_start()
    pend = order[NPRE:]
    for x in range(4):
        a.wait(vm=k0 + qt[x])
        s_ = SS + 16 * (x & 1)
        mfma(s_, T, Q + 8 * x, first=True); mfma(s_, T + 4, Q + 8 * x + 4)
        if x > 0: rowmax(MX + x - 1, SS + 16 * ((x - 1) & 1), True)
    rowmax(MX + 3, SS + 16, True)
    stamp("a2_max")
    a.label("L_A2_setmax")
    for x in range(4):
        a(f"v_mov_b32 v{T+x}, v{MX+x}")
    for x in range(4):
        a(f"v_permlane32_swap_b32 v{T+x}, v{MX+x}")
    for x in range(4):
        a(f"v_max_f32 v{MX+x}, v{T+x}, v{MX+x}")
    for x in range(4):
        m = MX + x; t = T + 4 * x
        a(f"v_cvt_pk_bf16_f32 v{t}, -v{m}, -v{m}\nv_and_b32 v{t+1}, 0xffff0000, v{t}\nv_sub_f32 v{t+2}, -v{m}, v{t+1}")
        a(f"v_cvt_pk_bf16_f32 v{t+3}, v{t+2}, v{t+2}\nv_and_b32 v{t+3}, 0xffff0000, v{t+3}\nv_sub_f32 v{t+2}, v{t+2}, v{t+3}")
        a(f"v_and_b32 v{t}, 0xffff, v{t}\nv_or_b32 v{t}, v{t}, v{t+3}\nv_cvt_pk_bf16_f32 v{t+2}, v{t+2}, 0")
        a(f"v_cndmask_b32 v{Q+8*x+6}, v{Q+8*x+6}, v{t}, s[{sHI}:{sHI+1}]\nv_cndmask_b32 v{Q+8*x+7}, v{Q+8*x+7}, v{t+2}, s[{sHI}:{sHI+1}]")
        if x == 0:
            a.wait(vm=tok[("K", 0)])
            mfma(SS, KB, Q, first=True); mfma(SS, KB + 4, Q + 4)
    def QK(n, half):
        kt, x = BL[n]
        mfma(SS + 16 * (n & 1), KB + 8 * (kt % NR) + 4 * half, Q + 8 * x + 4 * half, first=(half == 0))
    def PV(n, half):
        kt, x = BL[n]
        mfma(O + 16 * x, VB + 8 * (kt % NR) + 4 * half, P + 8 * (n & 1) + 4 * half, first=(kt == 0 and half == 0))
    def owrite(x, i): a.lg(f"ds_write_b128 v{vW}, v[{O+16*x+4*i}:{O+16*x+4*i+3}] offset:{x*4096 + 1024*i}")
    tk = []
    def oread(x): tk.append([a.lg(f"ds_read_b128 v[{O+16*x+4*i}:{O+16*x+4*i+3}], v{T+8+x} offset:{x*4096 + 1024*i}") for i in range(4)])
    for x in range(3): a(f"s_xor_b32 s{sT0}, s{sW}, {x^3}\ns_mul_i32 s{sT0}, s{sT0}, 12288\nv_add_u32 v{T+8+x}, s{sT0}, v{vL16}")
    a(f"v_mov_b32 v{T+2}, 49152\nv_mov_b32 v{T+3}, 0")
    a.lg(f"ds_write_b32 v{T+2}, v{T+3}")
    if OPT["aw3"]:
        a(f"s_and_b32 s{sT4}, s2, 255\ns_lshl_b32 s{sT4}, s{sT4}, 2\ns_add_u32 s{sT4}, s{sT4}, s{sW}\ns_mul_i32 s{sT4}, s{sT4}, {13*128}\nv_min_u32 v{T+12}, 12, v{vLANE}\nv_lshlrev_b32 v{T+12}, 7, v{T+12}")
    stamp("a2_start")
    if OPT["prio_a1"]: a("s_setprio 0")
    a.hot = True
    for n in range(64):
        if n in (16, 32, 48): stamp(f"a2_b{n}")
        kt, x = BL[n]
        s_ = SS + 16 * (n & 1); p_ = P + 8 * (n & 1)
        e = lambda i: a(f"v_exp_f32 v{s_+i}, v{s_+i}")
        c = lambda i: a(f"v_cvt_pk_bf16_f32 v{p_+i}, v{s_+2*i}, v{s_+2*i+1}")
        sh = [[], [], [], []]
        pre = [[], [], [], []]
        ap = OPT["aprio"] if n < OPT["alate"] else OPT["aprio2"]
        if n == OPT["alate"] and ap == 5: pre[0].append(lambda: a("s_setprio 3"))
        for g in ((0, 2) if n >= OPT['fill'] else (0,)):
            if pend and pend[0][4] <= n:
                ent = pend.pop(0)
                assert ent[0] > n + 1, (ent, n)
                hi = ap == 1 or (ap in (2, 3) and g == 2)
                if hi: pre[g].append(lambda: a("s_setprio 3"))
                sh[g].append(lambda ent=ent: issue(ent))
                if hi: sh[g].append(lambda: a("s_setprio 0"))
                sh[g + 1].append(lambda ent=ent: bump(ent))
        if ap == 2: sh[3].append(lambda: a("s_setprio 3")); sh[1].append(lambda: a("s_setprio 0"))
        if ap == 3: sh[3].append(lambda: a("s_setprio 3")); sh[0].append(lambda: a("s_setprio 0"))
        if ap == 4: sh[3].append(lambda: a("s_setprio 3")); sh[2].append(lambda: a("s_setprio 0"))
        for k2 in range(1, 16):
            if first[k2] - 2 == n: sh[3].append(lambda k2=k2: a.wait(vm=tok[("K", k2)]))
        for k2 in range(16):
            if first[k2] + 1 == n: sh[1].append(lambda k2=k2: a.wait(vm=tok[("V", k2)]))
        if OPT["aw3"] and n == OPT["aw3"]: sh[3].append(lambda: a.vm(f"buffer_load_dword v{T+13}, v{T+12}, s[{sWO}:{sWO+3}], s{sT4} offen"))
        for x2 in range(3):
            if n == lastx[x2] + 2:
                for g in range(4): sh[min(g + 1, 3)].append(lambda g=g, x2=x2: owrite(x2, g))
        if ND >= 4 and n == lastx[2] + 3:
            sh[1].append(lambda: (a.wait_all(vm=False), a("s_barrier")))
            sh[2].append(lambda: oread(0)); sh[3].append(lambda: oread(1))
        if ND >= 4 and n == lastx[2] + 4: sh[0].append(lambda: oread(2))
        mm = [(lambda: QK(n + 1, 0)) if n < 63 else None, (lambda: QK(n + 1, 1)) if n < 63 else None,
              (lambda: PV(n - 1, 0)) if n > 0 else None, (lambda: PV(n - 1, 1)) if n > 0 else None]
        seq = [[("e", 0), ("e", 1), ("e", 2), ("e", 3), ("c", 0)],
               [("e", 4), ("e", 5), ("c", 1), ("e", 6), ("e", 7), ("c", 2)],
               [("e", 8), ("e", 9), ("c", 3), ("e", 10), ("e", 11), ("c", 4)],
               [("e", 12), ("e", 13), ("c", 5), ("e", 14), ("e", 15), ("c", 6), ("c", 7)]]
        for g in range(4):
            for t in pre[g]: t()
            if mm[g]: mm[g]()
            for t in sh[g]: t()
            for k, i in seq[g]: (e if k == "e" else c)(i)
    assert not pend
    a.hot = False
    if OPT["prio_at"]: a(f"s_setprio {OPT['prio_at']}")
    PV(63, 0); PV(63, 1)
    stamp("a2_main")
    R = O + 48
    if ND < 4:
        for x2 in range(3):
            if lastx[x2] + 2 > 63:
                for i in range(4): owrite(x2, i)
        a.wait_all(vm=False); a("s_barrier")
        stamp("a2_cbar")
        for x in range(3): oread(x)
    a.wait(lg=tk[1])
    for i in range(0, 16, 2): a(f"v_pk_add_f32 v[{O+i}:{O+i+1}], v[{O+i}:{O+i+1}], v[{O+16+i}:{O+16+i+1}]")
    a.wait(lg=tk[2])
    for i in range(0, 16, 2): a(f"v_pk_add_f32 v[{O+i}:{O+i+1}], v[{O+i}:{O+i+1}], v[{O+32+i}:{O+32+i+1}]")
    for i in range(0, 16, 2): a(f"v_pk_add_f32 v[{R+i}:{R+i+1}], v[{R+i}:{R+i+1}], v[{O+i}:{O+i+1}]")
    a(f"v_mov_b32 v{T+4}, v{R+12}\nv_mov_b32 v{T+5}, v{R+12}\nv_permlane32_swap_b32 v{T+4}, v{T+5}\nv_rcp_f32 v{vA}, v{T+5}")
    scale16(R)
    cvt16(P, R)
    a(f"v_cndmask_b32 v{P+6}, v{P+6}, v{vZERO}, s[{sHI}:{sHI+1}]\nv_cndmask_b32 v{P+7}, v{P+7}, v{vZERO}, s[{sHI}:{sHI+1}]")
    a(f"s_cmp_lg_u32 s{sPUB}, 0\ns_cbranch_scc1 L_A2_done")
    a.vm(f"buffer_store_dwordx4 v[{P}:{P+3}], v{vOo}, s[{sWS}:{sWS+3}], s{sOD} offen sc1")
    a.vm(f"buffer_store_dwordx4 v[{P+4}:{P+7}], v{vOo}, s[{sWS}:{sWS+3}], s{sOD+1} offen sc1")
    a(f"v_pk_mul_f32 v[{T+6}:{T+7}], v[{R}:{R+1}], 0 op_sel_hi:[1,0]")
    for i in range(2, 16, 2): a(f"v_pk_fma_f32 v[{T+6}:{T+7}], v[{R+i}:{R+i+1}], 0, v[{T+6}:{T+7}] op_sel_hi:[1,0,1]")
    a(f"s_mov_b32 s{sT0}, {hx(f2u(2.0**120))}\nv_cmp_nge_f32 vcc, s{sT0}, v{T+5}\nv_cmp_u_f32 s[{sT2}:{sT3}], v{T+6}, v{T+7}\ns_or_b64 vcc, vcc, s[{sT2}:{sT3}]")
    a(f"s_cmp_lg_u32 s{sRETRY}, 0\ns_cbranch_scc1 L_A2_good\ns_cbranch_vccz L_A2_good")
    a(f"v_mov_b32 v{T+3}, 1\nds_write_b32 v{T+2}, v{T+3}\ns_branch L_A2_done")
    a.label("L_A2_good")
    stamp("a2_st")
    a(f"s_mov_b32 s{sPUB}, 1\nv_lshlrev_b32 v{T+6}, 8, v{vLANE}\ns_mov_b64 exec, 0x7f\ns_waitcnt vmcnt(0)")
    a(f"buffer_store_dwordx2 v[{vNO}:{vNO+1}], v{T+6}, s[{sWS}:{sWS+3}], s{sFL} offen sc1\ns_mov_b64 exec, -1")
    stamp("a2_pub")
    a.label("L_A2_done")
    a.wait_all(vm=False); a("s_barrier")
    a(f"ds_read_b32 v{T+3}, v{T+2}\ns_waitcnt lgkmcnt(0)\nv_readfirstlane_b32 s{sT0}, v{T+3}")
    a(f"s_andn2_b32 s{sT0}, s{sT0}, s{sRETRY}\ns_cmp_lg_u32 s{sT0}, 0\ns_cbranch_scc1 L_A2_fallback")
    stamp_flush()
    a("s_endpgm")
    a.label("L_A2_fallback")
    a(f"s_mov_b32 s{sRETRY}, 1\ns_barrier")
    for x in range(4):
        a(f"v_cndmask_b32 v{Q+8*x+6}, v{Q+8*x+6}, v{vZERO}, s[{sHI}:{sHI+1}]\nv_cndmask_b32 v{Q+8*x+7}, v{Q+8*x+7}, v{vZERO}, s[{sHI}:{sHI+1}]")
        a(f"v_mov_b32 v{MX+x}, 0xff800000")
    a(f"s_mov_b32 s{sK}, 0\ns_mov_b32 s{sT4}, 16")
    a.label("L_A2_fb_loop")
    ld(T, sK, 0, vKV); ld(T + 4, sK, 1024, vKV); a.wait_all()
    for x in range(4):
        mfma(SS, T, Q + 8 * x, first=True); mfma(SS, T + 4, Q + 8 * x + 4)
        rowmax(MX + x, SS, False)
        a("s_nop 7")
    a(f"s_add_u32 s{sK}, s{sK}, 4096\ns_sub_u32 s{sT4}, s{sT4}, 1\ns_cmp_lg_u32 s{sT4}, 0\ns_cbranch_scc1 L_A2_fb_loop")
    a(f"v_lshlrev_b32 v{T+8}, 2, v{vLANE}")
    for x in range(4):
        a(f"s_xor_b32 s{sT0}, s{sW}, {x^3}\ns_lshl_b32 s{sT0}, s{sT0}, 8\ns_lshl_b32 s{sT1}, s{sW}, 10\ns_add_u32 s{sT0}, s{sT0}, s{sT1}")
        a(f"v_add_u32 v{T+9}, s{sT0}, v{T+8}\nds_write_b32 v{T+9}, v{MX+x}")
    a("s_waitcnt lgkmcnt(0)\ns_barrier")
    for x in range(4):
        a(f"s_xor_b32 s{sT0}, s{sW}, {x^3}\ns_lshl_b32 s{sT0}, s{sT0}, 8\nv_add_u32 v{T+9}, s{sT0}, v{T+8}")
        for w2 in range(4): a(f"ds_read_b32 v{T+10+w2}, v{T+9} offset:{1024*w2}")
        a(f"s_waitcnt lgkmcnt(0)\nv_max3_f32 v{MX+x}, v{T+10}, v{T+11}, v{T+12}\nv_max_f32 v{MX+x}, v{MX+x}, v{T+13}")
    a("s_barrier")
    first_loads()
    a.wait_all()
    a("s_nop 7\ns_branch L_A2_setmax")

RES, vWD, vPLN, vGo1, vWr4, vMX, vMG = 232, 248, 250, 251, 252, 254, 255
vWd3, vWr3, vCA3, SEL3, CS43, vXo, vSo, vSH, vST, vCW3, TB = 194, 198, 202, 206, 210, 214, 215, 216, 220, 223, 224
sR64, sCT, sRW, sCW, sSO, sG2 = 75, 76, 77, 78, 79, 80
sRB3, sC3, sW3O, sM03, sK3 = 82, 83, 84, 91, 92
sG4, sW4o, sM04, sWOo, sOo, sX1D, sMB2, sMB3, sOUTD, sST1D = 4, 11, 18, 19, 20, 21, 22, 23, 24, 25
sGS = [80, 81, 99, 3]
NZ = OPT['nz']
CSB3 = 73728
B3 = {}; B4 = {}

def touch(srd_, soff, n):
    for i in range(n): a(f"s_buffer_load_dword s3, s[{srd_}:{srd_+3}], s{soff} offset:{128*i}")

def throttled(thunks, depth):
    toks = []
    for i, t in enumerate(thunks):
        toks += t()
        if len(toks) > depth: a.wait(vm=toks[:len(toks) - depth])
    return toks

def go_poll(st=True):
    if not OPT["go"]: return
    a(f"s_and_b32 s{sT4}, s2, 255\ns_lshl_b32 s{sT4}, s{sT4}, 6")
    spoll([(sT2, 2, sT4, F_GO, 1)])
    if st: stamp("b0_go")

def stage_B0():
    a.comment("==== B0: row statistics of x, prefetches, set-up")
    a.label("L_roleB")
    prev_stamp[0] = 0
    a.vmq = []; a.lgq = []
    T = TB; XR = 16
    a(f"s_lshl_b32 s{sT0}, s{sXCD}, 5\ns_add_u32 s{sT0}, s{sT0}, s{sLOC}\ns_lshl_b32 s{sT0}, s{sT0}, 2\ns_add_u32 s{sT0}, s{sT0}, s{sW}")
    a(f"s_mul_i32 s{sT1}, s{sT0}, {2*896}\ns_lshl_b32 s{sT4}, s{sT0}, 5\ns_add_u32 s{sT4}, s{sT4}, {ST0}")
    a(f"v_mul_u32_u24 v{T}, 896, v{vHH}\nv_lshl_add_u32 v{T}, v{vT_}, 4, v{T}\nv_mov_b32 v{T+1}, 0x7fff0000\nv_cmp_gt_u32 vcc, 28, v{vT_}\nv_cndmask_b32 v{T}, v{T+1}, v{T}, vcc")
    a("s_waitcnt lgkmcnt(0)")
    srd(sX, 4, S * D * 2)
    xl = [a.vm(f"buffer_load_dwordx4 v[{XR+4*i}:{XR+4*i+3}], v{T}, s[{sX}:{sX+3}], s{sT1} offen offset:{448*i}") for i in range(2)]
    stamp("b0_karg")
    srd(sDBG, 22, 256); srd(sWS, 24, WS_SIZE); srd(sW2, 14, D * D * 2); srd(sW3, 16, D * F * 2); srd(sW4, 18, D * F * 2); srd(sWO, 8, D * D * 2); srd(sOUT, 20, S * D * 2)
    a(f"v_mov_b32 v{XR+8}, 0\nv_mov_b32 v{XR+10}, 0\nv_lshlrev_b32 v{T+2}, 4, v{vHH}")
    def touches(items, nwg=256):
        a(f"s_and_b32 s{sT0}, s2, 255\nv_lshlrev_b32 v193, 7, v{vLANE}")
        Lj = newlab("tj")
        for w, (sr_, n) in enumerate(items):
            L = newlab("tc")
            if w < 3: a(f"s_cmp_lg_u32 s{sW}, {w}\ns_cbranch_scc1 {L}")
            if sr_ == "code":
                a(f"s_getpc_b64 s[{sWA}:{sWA+1}]")
                a.label("L_pc")
                a(f"s_sub_u32 s{sWA}, s{sWA}, L_pc-{NAME}_kernel\ns_subb_u32 s{sWA+1}, s{sWA+1}, 0\ns_mov_b32 s{sWA+2}, L_code_end-{NAME}_kernel\ns_mov_b32 s{sWA+3}, 0x20000")
                a(f"s_mov_b32 s{sT0}, s{sLOC}"); sr_ = sWA
            if n == 0:
                a(f"v_lshlrev_b32 v193, 20, v{vLANE}\nv_add_u32 v193, 0x7c000, v193")
            elif n <= 16: a("v_and_b32 v193, 0x7ff, v193")
            a(f"s_mul_i32 s{sT0}, s{sT0}, {n*128}\nbuffer_load_dword v192, v193, s[{sr_}:{sr_+3}], s{sT0} offen")
            if w < 3: a(f"s_branch {Lj}"); a.label(L)
        a.label(Lj)
        a.tok += 1; a.vmq.append(a.tok)
    if OPT["pf"] & 1: touches([(sW2, 13), ("code", 12), (sWS, 0) if OPT["tlb"] else (sW2, 13), (sOUT, 0) if OPT["tlb"] else (sW2, 13)])
    if OPT["tlb"] & 2: touches([(sW3, 0), (sW4, 0), (sWO, 0), (sWO, 0)])
    if OPT["pf"] & 4: touches([(sW3, 49), (sW4, 49), (sWO, 13), (sWO, 13)])
    a(f"s_mul_i32 s{sT0}, s{sLOC}, 37\ns_lshr_b32 s{sT0}, s{sT0}, 8\ns_mul_i32 s{sT1}, s{sT0}, 7\ns_sub_u32 s{sCT}, s{sLOC}, s{sT1}")
    a(f"s_lshl_b32 s{sR64}, s{sXCD}, 2\ns_add_u32 s{sR64}, s{sR64}, s{sT0}\ns_lshr_b32 s{sRW}, s{sW}, 1\ns_and_b32 s{sCW}, s{sW}, 1")
    vXd = 60
    addr_wdma128(vWD, 64); addr_xdma(vXd, 2, 64)
    a.wait(vm=xl)
    stamp("b0_x")
    no = a.vm(f"buffer_load_dwordx2 v[{vNO}:{vNO+1}], v{vZERO}, s[{sDBG}:{sDBG+3}], 0 offen sc1")
    if OPT["pf"] & 16: touches([(sW3, 49), (sW4, 49), (sWO, 13), (sW2, 13)])
    for i in range(8): a(f"v_dot2c_f32_bf16 v{XR+8}, s{sONES}, v{XR+i}\nv_dot2c_f32_bf16 v{XR+10}, v{XR+i}, v{XR+i}")
    for r in (8, 4, 2, 1):
        for v in (XR + 8, XR + 10): a(f"v_add_f32_dpp v{v}, v{v}, v{v} row_ror:{r} row_mask:0xf bank_mask:0xf")
    for v in (XR + 8, XR + 10): a(f"v_mov_b32 v{v+1}, v{v}")
    for v in (XR + 8, XR + 10): a(f"v_permlane16_swap_b32 v{v}, v{v+1}")
    for v in (XR + 8, XR + 10): a(f"v_add_f32 v{v}, v{v}, v{v+1}")
    ln_stats(XR + 8, XR + 10, T)
    a(f"v_add_f32 v{XR+10}, {hx(f2u(EPS))}, v{XR+10}\nv_rsq_f32 v{XR+10}, v{XR+10}")
    a.wait(vm=no); get_nonce(loaded=True)
    a(f"v_mov_b32 v{XR+9}, v{vNO}\nv_mov_b32 v{XR+11}, v{vNO}\ns_mov_b32 exec_lo, 1\ns_mov_b32 exec_hi, 1")
    a(f"buffer_store_dwordx4 v[{XR+8}:{XR+11}], v{T+2}, s[{sWS}:{sWS+3}], s{sT4} offen sc1\ns_mov_b64 exec, -1")
    stamp("b0_rec")
    if OPT["nob"]: stamp_flush(); a("s_endpgm")
    if OPT["l2w3"]:
        nl = OPT["l2w3"]; rounds = (98 + nl - 1) // nl
        a(f"s_lshl_b32 s{sT0}, s{sLOC}, 2\ns_add_u32 s{sT0}, s{sT0}, s{sW}\ns_mul_i32 s{sT0}, s{sT0}, {98*128}\nv_min_u32 v193, {nl-1}, v{vLANE}\nv_lshlrev_b32 v193, 7, v193")
        for r in range(rounds):
            a(f"buffer_load_dword v192, v193, s[{sW3}:{sW3+3}], s{sT0} offen\ns_add_u32 s{sT0}, s{sT0}, {nl*128}\ns_waitcnt vmcnt(0)")
        a.vmq = []
        stamp("b0_l2")
    if OPT["pf"] & 2:
        go_poll(); touches([(sW3, 49), (sW4, 49), (sWO, 13), (sWO, 13)])
    a(f"s_cmp_ge_u32 s{sLOC}, 28\ns_cbranch_scc1 L_helper")
    if OPT["prio_b"]: a(f"s_setprio {OPT['prio_b']}")
    a(f"v_mul_u32_u24 v{vXo}, {PL}, v{vHH}\nv_lshl_add_u32 v{vXo}, v{vT_}, 4, v{vXo}\ns_lshl_b32 s{sT0}, s{sRW}, 9\nv_add_u32 v{vPLN}, s{sT0}, v{vXo}")
    a(f"s_xor_b32 s{sT0}, s{sT0}, 512\nv_add_u32 v{vGo1}, s{sT0}, v{vXo}")
    if OPT["map3"]:
        a(f"s_and_b32 s{sT0}, s{sXCD}, 1\ns_mul_i32 s{sT0}, s{sT0}, 7\ns_add_u32 s{sC3}, s{sT0}, s{sCT}")
        a(f"s_lshr_b32 s{sT0}, s{sXCD}, 1\ns_lshl_b32 s{sT0}, s{sT0}, 2\ns_and_b32 s{sT1}, s{sR64}, 3\ns_add_u32 s{sRB3}, s{sT0}, s{sT1}\ns_lshl_b32 s{sT0}, s{sT1}, 1")
    else:
        a(f"s_cmp_ge_u32 s{sLOC}, 14\ns_cselect_b32 s{sT0}, 1, 0\ns_cselect_b32 s{sT1}, 14, 0\ns_sub_u32 s{sC3}, s{sLOC}, s{sT1}")
        a(f"s_lshl_b32 s{sRB3}, s{sXCD}, 1\ns_add_u32 s{sRB3}, s{sRB3}, s{sT0}\ns_mul_i32 s{sT0}, s{sT0}, 3")
    a(f"s_add_u32 s{sT0}, s{sT0}, s{sCT}\ns_sub_u32 s{sT1}, s{sT0}, 7\ns_cselect_b32 s{sT0}, s{sT0}, s{sT1}")
    rot7(sK3, sT0)
    a(f"s_and_b32 s{sT0}, s{sR64}, 3\ns_lshl_b32 s{sT0}, s{sT0}, 1\ns_add_u32 s{sT0}, s{sT0}, s{sCT}\ns_sub_u32 s{sT1}, s{sT0}, 7\ns_cselect_b32 s{sT0}, s{sT0}, s{sT1}")
    rot7(sG4, sT0)
    a(f"s_mul_i32 s{sT1}, s{sW}, {16*3584}\ns_lshl_b32 s{sT2}, s{sC3}, 8\ns_add_u32 s{sT1}, s{sT1}, s{sT2}")
    a(f"s_mul_i32 s{sT0}, s{sW}, {448*896}\ns_lshl_b32 s{sT2}, s{sCT}, 7\ns_add_u32 s{sT0}, s{sT0}, s{sT2}")
    a(f"s_mul_i32 s{sWOo}, s{sW}, {112*896}\ns_add_u32 s{sWOo}, s{sWOo}, s{sT2}")
    a(f"s_lshl_b32 s{sT2}, s{sR64}, 10\ns_mul_i32 s{sT3}, s{sW}, {56*PL}\ns_add_u32 s{sT3}, s{sT3}, s{sT2}\ns_add_u32 s{sT3}, s{sT3}, {G_}")
    a(f"s_mul_i32 s{sOo}, s{sW}, {16*PL}\ns_add_u32 s{sOo}, s{sOo}, s{sT2}\ns_add_u32 s{sOo}, s{sOo}, {O_}")
    a(f"s_lshl_b32 s{sT4}, s{sRB3}, 2\ns_add_u32 s{sT4}, s{sT4}, s{sW}\ns_lshl_b32 s{sSO}, s{sT4}, 8\ns_add_u32 s{sSO}, s{sSO}, {ST1}\ns_lshl_b32 s{sT4}, s{sT4}, 9")
    for c in range(7):
        a(f"s_mul_i32 s{sW3O+c}, s{sK3+c}, {64*3584}\ns_add_u32 s{sW3O+c}, s{sW3O+c}, s{sT1}")
        a(f"s_mul_i32 s{sW4o+c}, s{sG4+c}, {64*896}\ns_add_u32 s{sW4o+c}, s{sW4o+c}, s{sT0}")
        a(f"s_mul_i32 s{sG4+c}, s{sG4+c}, {8*PL}\ns_add_u32 s{sG4+c}, s{sG4+c}, s{sT3}")
        a(f"s_mul_i32 s{sK3+c}, s{sK3+c}, {8*PL}\ns_add_u32 s{sK3+c}, s{sK3+c}, s{sT4}\ns_add_u32 s{sK3+c}, s{sK3+c}, {X1}")
    a(f"s_mul_i32 s{sT1}, s{sC3}, {16*PL}\ns_add_u32 s{sT4}, s{sT4}, s{sT1}\ns_add_u32 s{sT4}, s{sT4}, {G_}")
    for u in range(4): a(f"s_add_u32 s{sT0}, s{sW}, {u}\ns_and_b32 s{sT0}, s{sT0}, 3\ns_mul_i32 s{sT0}, s{sT0}, {4*PL}\ns_add_u32 s{sGS[u]}, s{sT0}, s{sT4}")
    a(f"s_lshl_b32 s{sM03}, s{sW}, 12\ns_mul_i32 s{sM04}, s{sW}, {NZ*2048}")
    a(f"s_lshl_b32 s{sT2}, s{sCT}, 1\ns_add_u32 s{sT2}, s{sT2}, s{sCW}\ns_mul_i32 s{sT0}, s{sT2}, {4*PL}\ns_lshl_b32 s{sT1}, s{sR64}, 10")
    a(f"s_add_u32 s{sT0}, s{sT0}, s{sT1}\ns_add_u32 s{sX1D}, s{sT0}, {X1}\ns_lshl_b32 s{sST1D}, s{sT2}, 14\ns_add_u32 s{sST1D}, s{sST1D}, {ST1}")
    a(f"s_lshl_b32 s{sT2}, s{sT2}, 6\ns_lshl_b32 s{sT0}, s{sR64}, 1\ns_add_u32 s{sT0}, s{sT0}, s{sRW}\ns_mul_i32 s{sOUTD}, s{sT0}, {32*896}\ns_add_u32 s{sOUTD}, s{sOUTD}, s{sT2}")
    a(f"s_mul_i32 s{sT0}, s{sR64}, 7\ns_add_u32 s{sT0}, s{sT0}, s{sCT}\ns_lshl_b32 s{sT0}, s{sT0}, 2\ns_add_u32 s{sT0}, s{sT0}, s{sW}\ns_lshl_b32 s{sMB2}, s{sT0}, 6")
    a(f"s_mul_i32 s{sT0}, s{sRB3}, 14\ns_add_u32 s{sT0}, s{sT0}, s{sC3}\ns_lshl_b32 s{sT0}, s{sT0}, 2\ns_add_u32 s{sT0}, s{sT0}, s{sW}\ns_lshl_b32 s{sMB3}, s{sT0}, 6")
    a(f"s_lshr_b32 s{sT0}, s{sR64}, 1\ns_mul_i32 s{sT0}, s{sT0}, {14*256}\ns_and_b32 s{sT1}, s{sR64}, 1\ns_lshl_b32 s{sT1}, s{sT1}, 7\ns_add_u32 s{sT0}, s{sT0}, s{sT1}\ns_lshl_b32 s{sT1}, s{sCT}, 3\ns_add_u32 s{sT0}, s{sT0}, s{sT1}\ns_add_u32 s{sT0}, s{sT0}, {MB_X}")
    a(f"v_lshrrev_b32 v{T}, 1, v{vLANE}\nv_lshlrev_b32 v{T}, 8, v{T}\nv_and_b32 v{T+1}, 1, v{vLANE}\nv_lshl_add_u32 v{T}, v{T+1}, 6, v{T}\nv_add_u32 v{vMX}, s{sT0}, v{T}")
    lanes_below(vMX, 28, T)
    lane_div(T, T + 1, vLANE, 14, T + 2)
    a(f"s_lshl_b32 s{sT0}, s{sC3}, 1\nv_add_u32 v{T}, s{sT0}, v{T}\nv_mul_u32_u24 v{T}, 37, v{T}\nv_lshrrev_b32 v{T}, 8, v{T}")
    a(f"v_mul_u32_u24 v{T+2}, 7, v{T}\nv_lshrrev_b32 v{T+2}, 1, v{T+2}\nv_sub_u32 v{T+2}, s{sC3}, v{T+2}\nv_lshlrev_b32 v{T+2}, 3, v{T+2}\nv_lshl_add_u32 v{T+2}, v{T}, 6, v{T+2}")
    a(f"s_mul_i32 s{sT0}, s{sRB3}, {14*256}\ns_add_u32 s{sT0}, s{sT0}, {MB_G}\nv_lshl_add_u32 v{T+2}, v{T+1}, 8, v{T+2}\nv_add_u32 v{vMG}, s{sT0}, v{T+2}")
    lanes_below(vMG, 28, T)
    a(f"s_movk_i32 s{sT3}, 3584")
    addr_wdma256(vWd3, sT3, T)
    addr_wrd256(vWr3, 64, T)
    a(f"s_lshl_b32 s{sT1}, s{sW}, 9\ns_add_u32 s{sT1}, s{sT1}, {CSB3}\nv_lshl_add_u32 v{vCW3}, v{vLANE}, 3, s{sT1}")
    for u in range(4):
        a(f"s_add_u32 s{sT0}, s{sW}, {u}\ns_and_b32 s{sT0}, s{sT0}, 3\ns_lshl_b32 s{sT0}, s{sT0}, 7\ns_add_u32 s{sT0}, s{sT0}, s{sT1}\nv_lshl_add_u32 v{vCA3+u}, v{vHH}, 4, s{sT0}")
    addr_wrd128(vWr4, 4, sCW, sM04, T)
    a(f"v_xor_b32 v{vWr4+1}, 64, v{vWr4}")
    a(f"v_mul_u32_u24 v{vSo}, {7*16384}, v{vHH}\nv_lshl_add_u32 v{vSo}, v{vT_}, 3, v{vSo}")
    a(f"s_lshl_b32 s{sT0}, s{sR64}, 6\ns_lshl_b32 s{sT1}, s{sRW}, 5\ns_add_u32 s{sT0}, s{sT0}, s{sT1}\nv_add_u32 v{T}, s{sT0}, v{vT_}")
    a(f"v_lshlrev_b32 v{vST+2}, 3, v{T}\nv_lshlrev_b32 v{T+4}, 4, v{T}")
    a(f"v_mul_u32_u24 v{T+1}, {PL}, v{vHH}\nv_mov_b32 v{T+3}, 0x7fff0000\ns_movk_i32 s{sT2}, 2048")
    a(f"s_add_u32 s{sT0}, s{sCW}, 1")
    for g, op in enumerate(("v_subrev_u32", "v_add_u32")):
        a(f"{op} v{T+2}, s{sT0}, v{T}\nv_cmp_gt_u32 vcc, s{sT2}, v{T+2}\nv_lshl_add_u32 v{vSH+g}, v{T+2}, 4, v{T+1}\nv_cndmask_b32 v{vSH+g}, v{T+3}, v{vSH+g}, vcc")
    if not OPT["pf"] & 2: go_poll()
    a(f"s_lshl_b32 s{sT0}, s{sR64}, 2\ns_add_u32 s{sT0}, s{sT0}, s{sW}\ns_mul_i32 s{sT0}, s{sT0}, {16*896}\ns_lshl_b32 s{sT1}, s{sCT}, 7\ns_add_u32 s{sT0}, s{sT0}, s{sT1}")
    a(f"s_lshl_b32 s{sT2}, s{sW}, 11"); set_m0(sT2, 57344)
    for q in range(2): a.vm(f"buffer_load_dwordx4 v{vXd+q}, s[{sX}:{sX+3}], s{sT0} offen offset:{1024*q} lds")
    a(f"s_mul_i32 s{sT0}, s{sW}, {112*896}\ns_add_u32 s{sT0}, s{sT0}, s{sT1}\ns_mul_i32 s{sT1}, s{sW}, 14336")
    a(f"s_and_b32 s{sT2}, s{sR64}, 3\ns_lshl_b32 s{sT2}, s{sT2}, 1")
    def w2q(q):
        a(f"s_mul_i32 s{sT4}, s{sT2}, {16*896}\ns_add_u32 s{sT4}, s{sT4}, s{sT0}\ns_lshl_b32 s{sT5}, s{sT2}, 11\ns_add_u32 m0, s{sT5}, s{sT1}")
        tk = [a.vm(f"buffer_load_dwordx4 v{vWD+j}, s[{sW2}:{sW2+3}], s{sT4} offen offset:{1024*j} lds") for j in range(2)]
        if q < 6: a(f"s_add_u32 s{sT2}, s{sT2}, 1\ns_cmp_eq_u32 s{sT2}, 7\ns_cselect_b32 s{sT2}, 0, s{sT2}")
        return tk
    throttled([lambda q=q: w2q(q) for q in range(7)], OPT["thr"])
    REC = 160
    a(f"s_mov_b32 s{sT4}, {ST0}")
    check_record(REC, T + 4, sT4, loaded=False)
    a("s_barrier")
    stamp("b0_w2")
    if OPT["pf"] & 8: touches([(sW3, 56), (sW4, 56), (sWO, 14), (sWO, 14)], 224)
    ACC, W2F, XV, vWr = 16, 48, 164, 172
    a(f"s_mul_i32 s{sT3}, s{sCW}, 28672")
    addr_wrd128(vWr, 4, sCW, sT3, T)
    a(f"v_xor_b32 v{vWr+1}, 64, v{vWr}")
    a(f"v_bfe_u32 v{T}, v{vT_}, 1, 3\ns_lshl_b32 s{sT0}, s{sCW}, 2\nv_xor_b32 v{T}, s{sT0}, v{T}\nv_lshlrev_b32 v{T}, 4, v{T}")
    a(f"v_lshl_add_u32 v{T}, v{vT_}, 7, v{T}\nv_lshl_add_u32 v{T}, v{vHH}, 3, v{T}\ns_lshl_b32 s{sT0}, s{sRW}, 12\nv_add_u32 v{T}, s{sT0}, v{T}")
    for i in range(4):
        a(f"v_xor_b32 v{T+1}, {16*i}, v{T}")
        a.lg(f"ds_read_b64 v[{XV+2*i}:{XV+2*i+1}], v{T+1} offset:57344")
    if not OPT["hall"]:
        for s in range(14):
            for b in range(2):
                for jj in range(2): a.lg(f"ds_read_b64_tr_b16 v[{W2F+8*s+4*b+2*jj}:{W2F+8*s+4*b+2*jj+1}], v{vWr+b} offset:{s*2048 + jj*1024}")
                if len(a.lgq) > 12: a.wait(lg=a.lgq[-11])
        a.wait_all(vm=False); a("s_barrier")
    else:
        a(f"v_mov_b32 v{SEL3}, v{vWr}\nv_mov_b32 v{SEL3+1}, v{vWr+1}")
        a.wait_all(vm=False)
    m0 = [None]
    def issue_w(c, qs=range(4)):
        if m0[0] != c: set_m0(sM03, (c % 5) * 16384); m0[0] = c
        return [a.vm(f"buffer_load_dwordx4 v{vWd3+q}, s[{sW3}:{sW3+3}], s{sW3O+c} offen offset:{1024*q} lds") for q in qs]
    B3["issue_w"] = issue_w; B3["wt"] = {}
    def w3c(c, q):
        t = issue_w(c, (q,)); B3["wt"].setdefault(c, []).extend(t); return t
    B3["pieces"] = [lambda c=c, q=q: w3c(c, q) for c in range(5) for q in range(4)]
    for t in B3["pieces"][:OPT["w3a"]]: t()
    for i in range(8):
        a(f"v_lshlrev_b32 v{RES+2*i}, 16, v{XV+i}\nv_and_b32 v{RES+2*i+1}, 0xffff0000, v{XV+i}")
    a(f"v_mov_b32 v{vA}, v{REC+2}\nv_mul_f32 v{vB}, v{REC}, v{REC+2}\nv_sub_f32 v{vB}, 0, v{vB}")
    for i in range(0, 16, 2):
        a(f"v_pk_fma_f32 v[{ACC+i}:{ACC+i+1}], v[{RES+i}:{RES+i+1}], v[{vA}:{vA+1}], v[{vB}:{vB+1}] op_sel_hi:[1,0,0]")

def helper():
    a.label("L_helper")
    a.vmq = []; a.lgq = []
    prev_stamp[0] = stamp_names.get("b0_rec")
    if OPT["prio_h"]: a(f"s_setprio {OPT['prio_h']}")
    T = TB
    a(f"s_and_b32 s{sT0}, s2, 255\ns_lshl_b32 s{sT0}, s{sT0}, 6")
    spoll([(sT2, 2, sT0, F_AP, 1)])
    stamp("h_go")
    sB = sT4; LD, SUM = 16, 80
    a(f"s_and_b32 s{sB}, s2, 255\ns_sub_u32 s{sB}, s{sB}, 224\ns_cmp_ge_u32 s{sB}, 28\ns_cbranch_scc1 L_nocs")
    a(f"s_mul_i32 s{sT0}, s{sW}, {112*3584}\ns_lshl_b32 s{sT1}, s{sB}, 7\ns_add_u32 s{sT0}, s{sT0}, s{sT1}")
    a(f"v_lshrrev_b32 v{T}, 3, v{vLANE}\nv_mul_u32_u24 v{T}, 3584, v{T}\nv_and_b32 v{T+1}, 7, v{vLANE}\nv_lshl_add_u32 v{T}, v{T+1}, 4, v{T}")
    tk = []
    for i in range(14):
        tk.append(a.vm(f"buffer_load_dwordx4 v[{LD+4*i}:{LD+4*i+3}], v{T}, s[{sW3}:{sW3+3}], s{sT0} offen"))
        if i < 13: a(f"s_add_u32 s{sT0}, s{sT0}, {8*3584}")
        if i >= OPT["hthr"]: a.wait(vm=tk[i - OPT["hthr"]])
    for k in range(8): a(f"v_mov_b32 v{SUM+k}, 0")
    for i in range(14):
        a.wait(vm=tk[i])
        for k in range(4):
            a(f"v_lshlrev_b32 v{T+2}, 16, v{LD+4*i+k}\nv_and_b32 v{T+3}, 0xffff0000, v{LD+4*i+k}\nv_pk_add_f32 v[{SUM+2*k}:{SUM+2*k+1}], v[{SUM+2*k}:{SUM+2*k+1}], v[{T+2}:{T+3}]")
    stamp("h_ld")
    for k in range(8): a(f"v_add_f32_dpp v{SUM+k}, v{SUM+k}, v{SUM+k} row_ror:8 row_mask:0xf bank_mask:0xf")
    for op in ("v_permlane16_swap_b32", "v_permlane32_swap_b32"):
        for k in range(8): a(f"v_mov_b32 v{SUM+8+k}, v{SUM+k}")
        for k in range(8): a(f"{op} v{SUM+k}, v{SUM+8+k}")
        for k in range(8): a(f"v_add_f32 v{SUM+k}, v{SUM+k}, v{SUM+8+k}")
    a(f"s_lshl_b32 s{sT0}, s{sW}, 8\nv_lshlrev_b32 v{T+1}, 5, v{T+1}\nv_add_u32 v{T+2}, s{sT0}, v{T+1}")
    a(f"ds_write_b128 v{T+2}, v[{SUM}:{SUM+3}]\nds_write_b128 v{T+2}, v[{SUM+4}:{SUM+7}] offset:16\ns_waitcnt lgkmcnt(0)\ns_barrier")
    a(f"v_lshlrev_b32 v{T+2}, 2, v{vLANE}")
    for w2 in range(4): a(f"ds_read_b32 v{SUM+w2}, v{T+2} offset:{256*w2}")
    a(f"s_waitcnt lgkmcnt(0)\nv_add_f32 v{SUM}, v{SUM}, v{SUM+1}\nv_add_f32 v{SUM+2}, v{SUM+2}, v{SUM+3}\nv_add_f32 v{SUM}, v{SUM}, v{SUM+2}")
    a(f"s_lshl_b32 s{sT0}, s{sB}, 8\ns_add_u32 s{sT0}, s{sT0}, {CS3}\ns_lshl_b32 s{sT1}, s{sB}, 3\ns_add_u32 s{sT1}, s{sT1}, {F_CS}")
    a(f"s_cmp_lg_u32 s{sW}, 0\ns_cbranch_scc1 L_nocs")
    a(f"buffer_store_dword v{SUM}, v{T+2}, s[{sWS}:{sWS+3}], s{sT0} offen sc1\ns_waitcnt vmcnt(0)")
    publish(sT1, barrier=False)
    a.label("L_nocs")
    a.vmq = []
    stamp("h_cs")
    if OPT["l2w4"]:
        nl = OPT["l2w4"]
        a(f"s_sub_u32 s{sT1}, s{sLOC}, 28\ns_lshl_b32 s{sT1}, s{sT1}, 2\ns_add_u32 s{sT1}, s{sT1}, s{sW}\nv_min_u32 v193, {nl-1}, v{vLANE}\nv_lshlrev_b32 v193, 7, v193")
        for sr_, lines in ((sW4, 784), (sWO, 196)):
            L = newlab("pf"); R = (lines + nl - 1) // nl
            a(f"s_mul_i32 s{sT3}, s{sT1}, {lines*128}\ns_mul_i32 s{sT4}, s{sXCD}, {R}\ns_lshr_b32 s{sT4}, s{sT4}, 3\ns_mov_b32 s{sT2}, {R}")
            a.label(L)
            a(f"s_mul_i32 s{sT0}, s{sT4}, {nl*128}\ns_add_u32 s{sT0}, s{sT0}, s{sT3}")
            a(f"buffer_load_dword v192, v193, s[{sr_}:{sr_+3}], s{sT0} offen\ns_add_u32 s{sT4}, s{sT4}, 1\ns_cmp_eq_u32 s{sT4}, {R}\ns_cselect_b32 s{sT4}, 0, s{sT4}\ns_waitcnt vmcnt(0)")
            a(f"s_sub_u32 s{sT2}, s{sT2}, 1\ns_cmp_lg_u32 s{sT2}, 0\ns_cbranch_scc1 {L}")
    stamp("h_w4"); stamp_flush()
    if OPT["clr"]:
        a(f"s_and_b32 s{sT0}, s2, 255\ns_cmp_lg_u32 s{sT0}, 255\ns_cbranch_scc1 L_end")
        a(f"s_lshl_b32 s{sT0}, s{sW}, 12\ns_add_u32 s{sT0}, s{sT0}, {F_AP}\nv_lshl_add_u32 v{vPO}, v{vLANE}, 6, s{sT0}")
        poll(sleep=32)
        a(f"s_barrier\ns_cmp_lg_u32 s{sW}, 0\ns_cbranch_scc1 L_end\nv_mov_b32 v{vP0}, 0\nv_mov_b32 v{vP0+1}, 0\ns_mov_b64 exec, 1")
        a(f"buffer_store_dwordx2 v[{vP0}:{vP0+1}], v{vZERO}, s[{sDBG}:{sDBG+3}], 0 offen sc1")
    a("s_endpgm")

def stage_B2():
    a.comment("==== B2: x1 = xn + shift(h) @ w2, 64 x 64 tile")
    ACC, W2F, HF, NH = (16, 48, 160, 8) if not OPT['hall'] else (16, 48, 80, 14)
    T = TB
    a(f"s_mul_i32 s{sT0}, s{sCW}, {28*PL}\ns_add_u32 s{sT0}, s{sT0}, {H_}\ns_add_u32 s{sT1}, s{sX1D}, {2*PL}")
    vW, vR = vSH + 2, vSH + 3
    a(f"s_lshl_b32 s{sT2}, s{sW}, 12\ns_add_u32 s{sT2}, s{sT2}, 65536\nv_add_u32 v{vW}, s{sT2}, v{vL16}\nv_xor_b32 v{vR}, 4096, v{vW}")
    if OPT["tw3"]:
        a(f"v_min_u32 v{T}, 55, v{vLANE}\nv_mul_u32_u24 v{T+1}, 37, v{T}\nv_lshrrev_b32 v{T+1}, 9, v{T+1}\nv_mul_u32_u24 v{T+2}, 14, v{T+1}\nv_sub_u32 v{T}, v{T}, v{T+2}")
        a(f"v_mul_u32_u24 v{T+1}, 3584, v{T+1}\nv_lshl_add_u32 v193, v{T}, 7, v{T+1}")
        a(f"s_lshl_b32 s{sT3}, s{sLOC}, 2\ns_add_u32 s{sT3}, s{sT3}, s{sW}\ns_mul_i32 s{sT3}, s{sT3}, {4*3584}\ns_and_b32 s{sT2}, s{sXCD}, 1\ns_mul_i32 s{sT2}, s{sT2}, 1792\ns_add_u32 s{sT3}, s{sT3}, s{sT2}")
        if OPT["tw3"] == 99: a.vm(f"buffer_load_dword v192, v193, s[{sW3}:{sW3+3}], s{sT3} offen")
    rd = {}
    def wrd(s):
        if OPT["hall"] and s < 14:
            rd[s] = [a.lg(f"ds_read_b64_tr_b16 v[{W2F+8*(s%3)+4*b+2*jj}:{W2F+8*(s%3)+4*b+2*jj+1}], v{SEL3+b} offset:{s*2048 + jj*1024}") for b in (1, 0) for jj in range(2)]
    wrd(0); wrd(1)
    stamp("b2_ready")
    spoll([(sF, 8, sMB2, MB_H, 4)])
    stamp("b2_poll")
    ht = []
    def hload():
        ks = len(ht); r = HF + 4 * (ks % NH)
        ht.append(a.vm(f"buffer_load_dwordx4 v[{r}:{r+3}], v{vSH + ks//7}, s[{sWS}:{sWS+3}], s{sT0} offen sc1"))
        if ks < 13: a(f"s_add_u32 s{sT0}, s{sT0}, {2*PL}")
    for ks in range(NH): hload()
    for s in range(14):
        a.wait(vm=ht[s], lg=rd.get(s, []))
        if s == 0: stamp("b2_h0")
        wf = W2F + 8 * (s % 3 if OPT["hall"] else s)
        mfma(ACC + 16, wf + 4, HF + 4 * (s % NH), first=(s == 0))
        wrd(s + 2)
        mfma(ACC, wf, HF + 4 * (s % NH))
        if len(ht) < 14: hload()
        if OPT["tw3"] and s == OPT["tw3"]:
            a.vm(f"buffer_load_dword v192, v193, s[{sW3}:{sW3+3}], s{sT3} offen")
    stamp("b2_main")
    for i in range(4): a.lg(f"ds_write_b128 v{vW}, v[{ACC+16+4*i}:{ACC+16+4*i+3}] offset:{1024*i}")
    a.wait_all(vm=False); a("s_barrier")
    tk = [a.lg(f"ds_read_b128 v[{ACC+16+4*i}:{ACC+16+4*i+3}], v{vR} offset:{1024*i}") for i in range(4)]
    for i in range(4):
        a.wait(lg=tk[i])
        for k in (0, 2): a(f"v_pk_add_f32 v[{ACC+4*i+k}:{ACC+4*i+k+1}], v[{ACC+4*i+k}:{ACC+4*i+k+1}], v[{ACC+16+4*i+k}:{ACC+16+4*i+k+1}]")
    PK = 48; sts = []
    cvt16(PK, ACC)
    for p in range(2):
        a(f"v_permlane32_swap_b32 v{PK+4*p}, v{PK+4*p+2}\nv_permlane32_swap_b32 v{PK+4*p+1}, v{PK+4*p+3}")
        sts.append(a.vm(f"buffer_store_dwordx4 v[{PK+4*p}:{PK+4*p+3}], v{vPLN}, s[{sWS}:{sWS+3}], s{sT1 if p else sX1D} offen sc1"))
    a(f"v_pk_add_f32 v[{T}:{T+1}], v[{ACC}:{ACC+1}], v[{ACC+2}:{ACC+3}]\nv_pk_mul_f32 v[{T+2}:{T+3}], v[{ACC}:{ACC+1}], v[{ACC}:{ACC+1}]")
    a(f"v_pk_fma_f32 v[{T+2}:{T+3}], v[{ACC+2}:{ACC+3}], v[{ACC+2}:{ACC+3}], v[{T+2}:{T+3}]")
    for i in range(4, 16, 2):
        a(f"v_pk_add_f32 v[{T}:{T+1}], v[{T}:{T+1}], v[{ACC+i}:{ACC+i+1}]\nv_pk_fma_f32 v[{T+2}:{T+3}], v[{ACC+i}:{ACC+i+1}], v[{ACC+i}:{ACC+i+1}], v[{T+2}:{T+3}]")
    a(f"v_add_f32 v{T}, v{T}, v{T+1}\nv_add_f32 v{T+2}, v{T+2}, v{T+3}\nv_mov_b32 v{T+1}, v{T}\nv_mov_b32 v{T+3}, v{T+2}")
    a(f"v_permlane32_swap_b32 v{T}, v{T+1}\nv_permlane32_swap_b32 v{T+2}, v{T+3}\nv_add_f32 v{vST}, v{T}, v{T+1}\nv_add_f32 v{vST+1}, v{T+2}, v{T+3}")
    sts.append(a.vm(f"buffer_store_dwordx2 v[{vST}:{vST+1}], v{vST+2}, s[{sWS}:{sWS+3}], s{sST1D} offen sc1"))
    for i in range(0, 16, 2): a(f"v_pk_add_f32 v[{RES+i}:{RES+i+1}], v[{RES+i}:{RES+i+1}], v[{ACC+i}:{ACC+i+1}]")
    stamp("b2_st")
    n0 = OPT["w3a"]; n1 = max(n0, OPT["w3b"])
    for t in B3["pieces"][n0:n1]: t()
    a.wait(vm=sts); a("s_barrier")
    post([vMX], barrier=False)
    stamp("b2_pub")
    n2 = max(n1, OPT["w3c"])
    for t in B3["pieces"][n1:n2]:
        if len(a.vmq) >= OPT["thr3"]: a.wait(vm=a.vmq[-OPT["thr3"]])
        t()
    B3["stream"] = B3["pieces"][n2:]

def stage_B3():
    a.comment("==== B3: g = gelu(LN(x1) @ w3), 128 x 128 tile")
    ACC, XF, NX, WF, ST = 16, 80, 16, 144, 176
    T = TB
    spoll([(sF, 16, sMB3, MB_X, 7)])
    stamp("b3_poll")
    xt = []
    def xload():
        s = len(xt); c, ks = divmod(s, 4); r = XF + 4 * (s % NX)
        so = sK3 + c
        if ks: a(f"s_add_u32 s{sT0}, s{sK3+c}, {2*ks*PL}"); so = sT0
        xt.append(a.vm(f"buffer_load_dwordx4 v[{r}:{r+3}], v{vXo}, s[{sWS}:{sWS+3}], s{so} offen sc1"))
    for s in range(6): xload()
    stt = []; cst = []; cft = []
    def stat_load():
        i = len(stt)
        if i: a(f"s_add_u32 s{sSO}, s{sSO}, 16384")
        stt.append(a.vm(f"buffer_load_dwordx2 v[{ST+2*i}:{ST+2*i+1}], v{vSo}, s[{sWS}:{sWS+3}], s{sSO} offen sc1"))
    GT, PK = 144, 160
    CSR = {0: 128, 1: 80, 2: 96, 3: 112}; toks = {}
    df3 = Deferred()
    def finish_stats():
        a.wait(vm=stt)
        with df3:
            for i in range(2, 14, 2): a(f"v_add_f32 v{ST}, v{ST}, v{ST+i}\nv_add_f32 v{ST+1}, v{ST+1}, v{ST+i+1}")
            a(f"v_mov_b32 v{ST+2}, v{ST}\nv_mov_b32 v{ST+3}, v{ST+1}\ns_nop 0\nv_permlane32_swap_b32 v{ST}, v{ST+2}\nv_permlane32_swap_b32 v{ST+1}, v{ST+3}")
            a(f"v_add_f32 v{ST}, v{ST}, v{ST+2}\nv_add_f32 v{ST+1}, v{ST+1}, v{ST+3}")
            ln_stats(ST, ST + 1, T)
            a(f"v_add_f32 v{ST+1}, {hx(f2u(EPS))}, v{ST+1}\nv_rsq_f32 v{vA}, v{ST+1}\nv_sub_f32 v{vB}, 0, v{ST}")
            gelu_consts(ST + 2, vA)
    def kstep(s):
        th = []
        if OPT["early3"]:
            if s == 18: th.append(finish_stats)
            if s in (22, 23, 25): th.append(lambda u={22: 0, 23: 1, 25: 2}[s]: toks.__setitem__(u, read_cs(CSR[u], vCA3 + u)))
        n = len(xt)
        for k in range(2):
            if n + k < 28 and n + k < s + NX and n + k <= s + 13: th.append(xload)
        if OPT["tw4"]:
            def tch(k):
                if k == 0:
                    a(f"s_lshl_b32 s{sT1}, s{sLOC}, 2\ns_add_u32 s{sT1}, s{sT1}, s{sW}\ns_mul_i32 s{sT2}, s{sT1}, {112*128}\ns_mul_i32 s{sT3}, s{sT1}, {28*128}")
                    a(f"s_and_b32 s{sT1}, s{sXCD}, 1\ns_mul_i32 s{sT1}, s{sT1}, {56*128}\nv_min_u32 v193, 55, v{vLANE}\nv_lshlrev_b32 v193, 7, v193\ns_add_u32 s{sT4}, s{sT2}, s{sT1}")
                    a.vm(f"buffer_load_dword v192, v193, s[{sW4}:{sW4+3}], s{sT4} offen")
                if k == 1:
                    a(f"s_sub_u32 s{sT4}, s{sT2}, s{sT1}\ns_add_u32 s{sT4}, s{sT4}, {56*128}")
                    a.vm(f"buffer_load_dword v192, v193, s[{sW4}:{sW4+3}], s{sT4} offen")
                if k == 2:
                    a(f"v_min_u32 v193, {27*128}, v193")
                    a.vm(f"buffer_load_dword v192, v193, s[{sWO}:{sWO+3}], s{sT3} offen")
            for k in range(3):
                if s == OPT["tw4"] + k * OPT["tw4d"]: th.append(lambda k=k: tch(k))
        if 9 <= s < 16: th.append(stat_load)
        if s == 7:
            def csflag():
                a(f"s_lshl_b32 s{sT0}, s{sC3}, 4\ns_add_u32 s{sT0}, s{sT0}, {F_CS}\nv_and_b32 v{vPO}, 1, v{vLANE}\nv_lshl_add_u32 v{vPO}, v{vPO}, 3, s{sT0}")
                cft.append(a.vm(f"buffer_load_dwordx2 v[{vP0}:{vP0+1}], v{vPO}, s[{sWS}:{sWS+3}], 0 offen sc1"))
            th.append(csflag)
        if s == 13:
            def csload():
                L = newlab("cc")
                a.wait(vm=cft); q = list(a.vmq)
                a(f"v_cmp_ne_u64 vcc, v[{vP0}:{vP0+1}], v[{vNO}:{vNO+1}]\ns_cbranch_vccz {L}")
                poll(); a.label(L); a.vmq = q
                a(f"s_lshl_b32 s{sT0}, s{sC3}, 9\ns_add_u32 s{sT0}, s{sT0}, {CS3}\nv_lshlrev_b32 v{SEL3}, 3, v{vLANE}")
                cst.append(a.vm(f"buffer_load_dwordx2 v[{CS43}:{CS43+1}], v{SEL3}, s[{sWS}:{sWS+3}], s{sT0} offen sc1"))
            th.append(csload)
        if s == 21:
            def cswrite():
                a.wait(vm=cst); a.lg(f"ds_write_b64 v{vCW3}, v[{CS43}:{CS43+1}]")
            th.append(cswrite)
        return th
    hooks = dict(before_barrier=lambda c: None, after_barrier=lambda c: [], lg_need=lambda s: [], vm_need=lambda s: [xt[s]], kstep=kstep)
    PAD[0] = OPT["pad3"]
    panel_mainloop("b3", ACC, WF, vWr3, 5, lambda s: XF + 4 * (s % NX), B3["issue_w"], B3["wt"], hooks, None, None, df3, stream=B3["stream"])
    PAD[0] = 0
    stamp("b3_main")
    if not OPT["early3"]:
        finish_stats(); df3.flush()
    for u in range(4):
        if u not in toks: toks[u] = read_cs(CSR[u], vCA3 + u); a.wait(lg=a.lgq[-9]) if len(a.lgq) > 12 else None
    stamp("b3_csbar")
    def issue_w4(j):
        set_m0(sM04, (j % NZ) * 2048)
        if j < 28:
            c, ks = divmod(j, 4); srd_, base, add = sW4, sW4o + c, ks * 16 * 896
        else:
            hd, m = divmod(j - 28, 2); srd_, base, add = sWO, sWOo, (28 * hd + 16 * m) * 896
        so = base
        if add: a(f"s_add_u32 s{sT5}, s{base}, {add}"); so = sT5
        return [a.vm(f"buffer_load_dwordx4 v{vWD+q}, s[{srd_}:{srd_+3}], s{so} offen offset:{1024*q} lds") for q in range(2)]
    B4["issue_w"] = issue_w4; B4["wt"] = {}
    cnt = [0]
    def hook():
        cnt[0] += 1
        j = len(B4["wt"])
        if cnt[0] == 1: a.wait(lg=toks[3]); a("s_barrier")
        if j < NZ and cnt[0] % 2 == 0:
            if len(a.vmq) >= OPT["thr4"]: a.wait(vm=a.vmq[-OPT["thr4"]])
            B4["wt"][j] = issue_w4(j)
    for u in range(4):
        a.wait(lg=toks[u]); shift16(ACC + 16 * u, CSR[u])
        gelu16(ACC + 16 * u, GT, ST + 2, hook)
        pk = PK + 8 * (u & 1)
        cvt16(pk, ACC + 16 * u)
        a(f"s_add_u32 s{sT1}, s{sGS[u]}, {2*PL}")
        a.vm(f"buffer_store_dwordx4 v[{pk}:{pk+3}], v{vXo}, s[{sWS}:{sWS+3}], s{sGS[u]} offen sc1")
        a.vm(f"buffer_store_dwordx4 v[{pk+4}:{pk+7}], v{vXo}, s[{sWS}:{sWS+3}], s{sT1} offen sc1")
    assert len(B4["wt"]) == NZ
    stamp("b3_epi")
    sts = a.vmq[-2:]
    NRG = OPT["nrg"]; WR = 144
    def wfrag(j):
        a.wait(vm=B4["wt"][j])
        for b in range(2):
            for jj in range(2):
                r = wreg(j) + 4 * b + 2 * jj
                a.lg(f"ds_read_b64_tr_b16 v[{r}:{r+1}], v{vWr4+b} offset:{(j%NZ)*2048 + jj*1024}")
        if len(a.lgq) > 8: a.wait(lg=a.lgq[-5])
    for i in range(16): a(f"v_mov_b32 v{ACC+i}, v{RES+i}")
    for j in range(min(NRG, NZ)): wfrag(j)
    a(f"s_add_u32 s{sT1}, s{sMB2}, {MB_O}\nv_and_b32 v{T}, 7, v{vLANE}\nv_lshl_add_u32 v{T+7}, v{T}, 3, s{sT1}")
    a.wait_all(vm=False)
    assert NRG <= NZ
    n1 = min(NRG, OPT["w4b"]); n2 = min(NRG, max(n1, OPT["w4c"]))
    for j in range(n1): B4["wt"][NZ + j] = issue_w4(NZ + j)
    a.wait(vm=sts); a("s_barrier")
    post([vMG], barrier=False)
    stamp("b3_pub")
    for j in range(n1, n2): B4["wt"][NZ + j] = issue_w4(NZ + j)
    B4["stream"] = list(range(NZ + n2, NZ + NRG))

def wreg(j):
    n1 = 8 + (8 - OPT["ng"])
    return 80 + 8 * OPT["ng"] + 8 * j if j < n1 else RES + 8 * (j - n1)

def stage_B4():
    a.comment("==== B4: out = x + x1 + g @ w4 + o @ wo, 64 x 64 tile, k split over the waves")
    ACC, GF, WR, WF, T = 16, 80, 144, 208, TB
    NRG = OPT["nrg"]; NG = OPT["ng"]
    vGo = [vPLN, vGo1]; vPO2 = T + 7
    wt = B4["wt"]; issue_w = B4["issue_w"]
    rd = {}; gt = {}
    J0 = 28 if OPT["late0"] else 36
    def wfr(j, b):
        if j < NRG: return wreg(j) + 4 * b
        if j >= J0 and b == 0: return WR + 4 * (j - J0)
        return WF + 8 * (j & 1) + 4 * b
    def reads(j):
        rd[j] = []
        if j < NRG: return []
        a.wait(vm=wt[j])
        return [lambda b=b, jj=jj: rd[j].append(a.lg(f"ds_read_b64_tr_b16 v[{wfr(j, b)+2*jj}:{wfr(j, b)+2*jj+1}], v{vWr4+b} offset:{(j%NZ)*2048 + jj*1024}")) for b in range(2) for jj in range(2)]
    def gload(j):
        if j < 28:
            c, ks = divmod(j, 4); base, add = sG4 + c, 2 * ks * PL
        else: base, add = sOo, 2 * (j - 28) * PL
        so = base
        if add: a(f"s_add_u32 s{sT4}, s{base}, {add}"); so = sT4
        r = GF + 8 * (j % NG)
        gt[j] = [a.vm(f"buffer_load_dwordx4 v[{r+4*aa}:{r+4*aa+3}], v{vGo[aa]}, s[{sWS}:{sWS+3}], s{so} offen sc1") for aa in range(2)]
    ot = []
    def ocheck():
        L = newlab("oc"); q = None
        a.wait(vm=ot)
        q = list(a.vmq); ql = list(a.lgq)
        a(f"v_cmp_ne_u64 vcc, v[{vP0}:{vP0+1}], v[{vNO}:{vNO+1}]\ns_cbranch_vccz {L}")
        spoll([(sF, 16, sMB2, MB_O, 8)])
        a.label(L)
        a.vmq = q; a.lgq = ql
        stamp("b4_opoll")
    for t in reads(0): t()
    spoll([(sF, 8, sMB2, MB_G, 4)])
    stamp("b4_poll")
    for j in range(4): gload(j)
    PAD[0] = OPT["pad4"]
    jo = 28 - OPT["olead"]
    def step(j, oloads):
        a.wait(vm=gt[j], lg=rd[j])
        if j in (0, 14): stamp(f"b4_j{j}")
        rds = reads(j + 1) if j + 1 < 36 else []
        late = []
        n = len(gt)
        if j == jo - 3 and not OPT["noattn"]:
            late.append(lambda: ot.append(a.vm(f"buffer_load_dwordx2 v[{vP0}:{vP0+1}], v{vPO2}, s[{sWS}:{sWS+3}], 0 offen sc1")))
        if j == jo - 1 and not OPT["noattn"] and not OPT["adapt"]: late.append(ocheck)
        for k in range(2):
            if n + k < 36 and n + k <= j + NG - 1 and (n + k < 28 or (oloads and j >= jo)): late.append(lambda k=n + k: gload(k))
        if B4["stream"] and j >= 1: late.append(lambda k=B4["stream"].pop(0): wt.__setitem__(k, issue_w(k)))
        if j + NZ < 36 and j >= NRG: late.append(lambda j=j: wt.__setitem__(j + NZ, issue_w(j + NZ)))
        g = GF + 8 * (j % NG)
        for u in ((0, 1, 2, 3) if j < J0 else (1, 2, 3)):
            aa, b = divmod(u, 2)
            mfma(ACC + 16 * u, wfr(j, b), g + 4 * aa, first=(j == 0 and u > 0))
            if rds:
                for t in rds: t()
                rds = []
            elif late: late.pop(0)()
        for t in late: t()
    for j in range(jo): step(j, True)
    if OPT["adapt"]:
        a.wait(vm=ot)
        a(f"v_cmp_ne_u64 vcc, v[{vP0}:{vP0+1}], v[{vNO}:{vNO+1}]\ns_cbranch_vccnz L_B4_late")
        st = (list(a.vmq), list(a.lgq), dict(gt), {k: list(v) for k, v in rd.items()}, dict(wt), prev_stamp[0])
        stamp("b4_opoll")
        for j in range(jo, 36): step(j, True)
        a("s_branch L_B4_join")
        a.label("L_B4_late")
        a.vmq, a.lgq = list(st[0]), list(st[1]); gt.clear(); gt.update(st[2]); rd.clear(); rd.update(st[3]); wt.clear(); wt.update(st[4]); prev_stamp[0] = st[5]
        for j in range(jo, 28): step(j, False)
        ql = list(a.lgq)
        spoll([(sF, 16, sMB2, MB_O, 8)])
        stamp("b4_opoll")
        for j in range(28, 36): gload(j)
        for j in range(28, 36): step(j, True)
        a.label("L_B4_join")
    else:
        for j in range(jo, 36): step(j, True)
    PAD[0] = 0
    stamp("b4_o")
    vW, vR = T, T + 1
    a(f"v_add_u32 v{vW}, s{sM04}, v{vL16}\nv_mul_u32_u24 v{T+2}, 896, v{vT_}\nv_lshl_add_u32 v{T+2}, v{vHH}, 4, v{T+2}")
    wr = [lambda u=u, i=i: a.lg(f"ds_write_b128 v{vW}, v[{ACC+16*u+4*i}:{ACC+16*u+4*i+3}] offset:{(u-1)*4096 + 1024*i}") for u in range(1, 4) for i in range(4)]
    for j in range(J0, 36):
        mfma(ACC, wfr(j, 0), GF + 8 * (j % NG))
        if j > J0 + 1:
            for t in wr[:2]: t()
            wr = wr[2:]
    for t in wr: t()
    a.wait_all(vm=False); a("s_barrier")
    stamp("b4_rbar")
    tk = []
    for u in range(1, 4):
        a(f"s_xor_b32 s{sT0}, s{sW}, {u}\ns_mul_i32 s{sT0}, s{sT0}, {NZ*2048}\nv_add_u32 v{vR}, s{sT0}, v{vL16}")
        tk.append([a.lg(f"ds_read_b128 v[{ACC+16*u+4*i}:{ACC+16*u+4*i+3}], v{vR} offset:{(u-1)*4096 + 1024*i}") for i in range(4)])
    for u in range(1, 4):
        a.wait(lg=tk[u - 1])
        for i in range(0, 16, 2): a(f"v_pk_add_f32 v[{ACC+i}:{ACC+i+1}], v[{ACC+i}:{ACC+i+1}], v[{ACC+16*u+i}:{ACC+16*u+i+1}]")
    PK = GF
    cvt16(PK, ACC)
    for p in range(2):
        a(f"v_permlane32_swap_b32 v{PK+4*p}, v{PK+4*p+2}\nv_permlane32_swap_b32 v{PK+4*p+1}, v{PK+4*p+3}")
        a.vm(f"buffer_store_dwordx4 v[{PK+4*p}:{PK+4*p+3}], v{T+2}, s[{sOUT}:{sOUT+3}], s{sOUTD} offen offset:{32*p}" + ["", " sc1", " nt", " sc0 sc1"][OPT["outsc"]])
    stamp("b4_end"); stamp_flush()

HEAD = f"""; out = x + MHA(LN(x)) + MixerMLP(LN(x))     S=2048 D=448 H=16 Dh=28 F=1792, bf16 in / out
;
; Hand-offs go through d_ws: write-through (sc1) stores, s_waitcnt, then an 8-byte tag written into the consumer's mailbox.
; The tag is a clock reading taken by workgroup 0 and passed on through d_debug, so words left in d_ws by the harness or by an
; earlier launch never match.  Consumers poll (bounded) and read the data with sc1 loads; nothing depends on XCD placement.
; (row sum < 2^120, all outputs finite) sends the workgroup to a second pass with the exact row maximum otherwise.
; @launch grid=(512,1,1) block=(256,1,1) lds={LDS_BYTES}
.amdgcn_target "amdgcn-amd-amdhsa--gfx950"
.text
.globl {NAME}_kernel
.p2align 8
.type {NAME}_kernel,@function
{NAME}_kernel:
"""
TAIL = f""".section .rodata,"a"
.p2align 6
.amdhsa_kernel {NAME}_kernel
  .amdhsa_next_free_vgpr 256
  .amdhsa_next_free_sgpr 102
  .amdhsa_accum_offset 256
  .amdhsa_group_segment_fixed_size 0
  .amdhsa_kernarg_size 88
  .amdhsa_user_sgpr_count 2
  .amdhsa_user_sgpr_kernarg_segment_ptr 1
  .amdhsa_system_sgpr_workgroup_id_x 1
.end_amdhsa_kernel
"""

def build():
    prologue()
    stage_A1()
    if OPT["noattn"]: stamp_flush(); a("s_endpgm")
    else: stage_A2()
    stage_B0()
    stage_B2()
    stage_B3()
    stage_B4()
    a.label("L_end")
    a("s_endpgm")
    helper()
    a.label("L_code_end")
    a.pad_hazards()
    size, nprom, nnop = fix_straddles(a, HEAD, TAIL, verbose=True)
    print(f"code bytes {size}, hazard nops {a.nops_inserted}, promoted {nprom}, straddle nops {nnop}")
    open(sys.argv[1], "w").write(HEAD + a.text() + TAIL + (("; roles: BA\n" if OPT["swap"] else "") + "; stamps: " + ",".join(stamp_names) + "\n" if OPT["stamps"] else ""))

if __name__ == "__main__":
    build()
```

```python
import sys, math, struct
from asmlib import *

NAME = "parallel_sum__mha_block__mixer_s_mlp__prompt"
OPT = dict(stamps=0, spin=400000, prio_b=1, pf=1, outsc=0, noattn=0, nob=0, nr=4, thr=64, go=15, prio_a1=2, prio_at=2, w2late=1, thra=6, swap=1, anf=1, thr3=6, w3a=0, w3b=3, aprio=1, pad3=0, pad4=0, xp=0, defer=0, w3c=20, l2w3=0, l2w4=0, clr=1, map3=1, split=0, prio_h=1, hwait=1, hthr=6, alate=64, aprio2=1, nrg=8, w4b=0, olead=5, dsw=1, a1s=2, w3t=1, dbgst=0, thr4=64, tw4=16, tw4d=3, tw3=0, wsoff=0, nd=4, nz=10, ng=8, psl=1, w4c=8, early3=1, late0=1, hall=0, fill=0, prio_a2=2, tlb=0, aw3=0, adapt=1, nb3=0, htw=0)
for a in sys.argv[2:]:
    k, v = a.split("="); OPT[k] = int(v, 0)

def f2u(x): return struct.unpack("<I", struct.pack("<f", x))[0]
def hx(x): return hex(x & 0xffffffff)

S, D, F = 2048, 448, 1792
PL = 32768 + 256
MB_A = 0x00000
MB_H = 0x20000
MB_X = 0x2E000
MB_G = 0x3C000
MB_O = 0x4A000
F_GO = 0x58000
F_CS = 0x5C000
F_AP = 0x60000
OOB = 0x7fff0000
QB_ = 0x80000
KV_ = QB_ + 16 * 64 * 2048
H_ = KV_ + 16 * 64 * 4096
X1 = H_ + 0x1C4000
O_ = X1 + 0x1C4000
G_ = O_ + 0x204000
CS3 = G_ + 0x70E000
ST0 = CS3 + 0x2000
ST1 = ST0 + 0x8000
WS_SIZE = ST1 + 14 * 0x4000
STAMP = 0x1A00000
if OPT['stamps']: WS_SIZE = STAMP + 0x80000
LDS_BYTES = 81920
EPS = 1e-5
QSCALE = (28 ** -0.5) * math.log2(math.e)
GA = -2.0 * math.log2(math.e) * math.sqrt(2.0 / math.pi)
GB = GA * 0.044715

sX, sDBG, sW2, sWA, sWS, sW3, sW4, sWO, sOUT = 28, 32, 36, 40, 44, 48, 52, 56, 60
sF = 28
sNO = 0
sHI = 26
sW, sXCD, sLOC = 64, 65, 66
sONES = 67
sT0, sT1, sT2, sT3, sT4, sT5 = 68, 69, 70, 71, 72, 73
sCNT = 74
sA0 = 75
vTID, vLANE, vT_, vHH, vZERO = 0, 1, 2, 3, 4
vNO = 6
vP0 = 8
vPO = 10
vL16 = 11
vA, vB = 12, 14

a = Asm()
lab = [0]
def newlab(p):
    lab[0] += 1; return f"L_{p}_{lab[0]}"

def srd(dst, ptr, size):
    if dst == sWS and OPT["wsoff"]:
        a(f"s_add_u32 s{dst}, s{ptr}, {OPT['wsoff'] << 20}\ns_addc_u32 s{dst+1}, s{ptr+1}, 0\ns_mov_b32 s{dst+2}, {hx(size)}\ns_mov_b32 s{dst+3}, 0x20000")
        return
    a(f"s_mov_b32 s{dst}, s{ptr}\ns_mov_b32 s{dst+1}, s{ptr+1}\ns_mov_b32 s{dst+2}, {hx(size)}\ns_mov_b32 s{dst+3}, 0x20000")

nstamp = [0]
prev_stamp = [None]
stamp_names = {}
def stamp(name, first=False):
    if not OPT["stamps"]: return
    idx = stamp_names.setdefault(name, len(stamp_names))
    assert idx < 64
    if first: a("v_mov_b32 v5, 0")
    elif prev_stamp[0] is not None: a(f"v_writelane_b32 v5, s100, {prev_stamp[0]}")
    a("s_memrealtime s[100:101]" if OPT["stamps"] == 1 else "s_memtime s[100:101]")
    prev_stamp[0] = idx

def stamp_flush():
    if not OPT["stamps"]: return
    if OPT["dbgst"]:
        L = newlab("dbg")
        role = "a" if prev_stamp[0] in [v for k, v in stamp_names.items() if k.startswith("a")] else "b"
        want = {"a": ["a1_c0", "a1_main", "a1_pub", "a2_poll", "a2_start", "a2_main", "a2_pub"], "b": ["b0_rec", "b2_poll", "b2_pub", "b3_poll", "b3_main", "b4_poll", "b4_end"]}[role]
        if not all(w in stamp_names for w in want) or list(stamp_names)[prev_stamp[0]] != want[-1]: return
        a(f"s_waitcnt lgkmcnt(0)\nv_writelane_b32 v5, s100, {prev_stamp[0]}\ns_and_b32 s100, s2, 255\ns_lshl_b32 s100, s100, 2\ns_add_u32 s100, s100, s{sW}\ns_cmp_lg_u32 s100, {OPT['dbgst']*4}\ns_cbranch_scc1 {L}")
        a(f"v_readlane_b32 s100, v5, 0\ns_mov_b64 exec, 1")
        for i, w in enumerate(want):
            a(f"v_readlane_b32 s101, v5, {stamp_names[w]}\ns_sub_u32 s101, s101, s100\nv_mov_b32 v{vP0}, s101\nbuffer_store_dword v{vP0}, v{vZERO}, s[{sDBG}:{sDBG+3}], 0 offen offset:{8 + 4*i + (28 if role == 'b' else 0)}\ns_nop 1")
        a("s_mov_b64 exec, -1")
        a.label(L)
        return
    a(f"s_waitcnt lgkmcnt(0)\nv_writelane_b32 v5, s100, {prev_stamp[0]}")
    a(f"s_lshl_b32 s100, s2, 2\ns_add_u32 s100, s100, s{sW}\ns_lshl_b32 s100, s100, 8\ns_add_u32 s100, s100, {STAMP}")
    a(f"v_lshlrev_b32 v{vP0}, 2, v{vLANE}\nbuffer_store_dword v5, v{vP0}, s[{sWS}:{sWS+3}], s100 offen")

def get_nonce(loaded=False):
    L = newlab("no"); Dn = newlab("nod"); C = newlab("noc")
    q = list(a.vmq)
    a(f"s_mov_b32 s{sCNT}, {OPT['spin']}")
    if loaded: a(f"s_branch {C}")
    a.label(L)
    a(f"buffer_load_dwordx2 v[{vNO}:{vNO+1}], v{vZERO}, s[{sDBG}:{sDBG+3}], 0 offen sc1\ns_waitcnt vmcnt(0)")
    a.label(C)
    a(f"v_readfirstlane_b32 s{sNO}, v{vNO}\nv_readfirstlane_b32 s{sNO+1}, v{vNO+1}")
    a(f"s_cmp_lg_u32 s{sNO}, 0\ns_cbranch_scc1 {Dn}\ns_sub_u32 s{sCNT}, s{sCNT}, 1\ns_cbranch_scc1 {Dn}\ns_sleep 1\ns_branch {L}")
    a.label(Dn)
    if not loaded: a.vmq = []

def post(vaddrs, barrier=True):
    L = newlab("post")
    if barrier:
        a.wait_all()
        a("s_barrier")
    a(f"s_cmp_lg_u32 s{sW}, 0\ns_cbranch_scc1 {L}")
    for v in vaddrs: a(f"buffer_store_dwordx2 v[{vNO}:{vNO+1}], v{v}, s[{sWS}:{sWS+3}], 0 offen sc1")
    a.label(L)

def lane_div(q, r, src, d, t):
    a(f"v_mul_u32_u24 v{q}, 37, v{src}\nv_lshrrev_b32 v{q}, {8 if d == 7 else 9}, v{q}\nv_mul_u32_u24 v{t}, {d}, v{q}\nv_sub_u32 v{r}, v{src}, v{t}")

def lanes_below(v, n, t):
    a(f"v_mov_b32 v{t}, {hx(OOB)}\nv_cmp_gt_u32 vcc, {n}, v{vLANE}\nv_cndmask_b32 v{v}, v{t}, v{v}, vcc")

def spoll(loads):
    L = newlab("sp"); Dn = newlab("spd")
    a(f"s_mov_b32 s{sCNT}, {OPT['spin']}")
    a.label(L)
    regs = []
    for (d, n, so, imm, used) in loads:
        a(f"s_buffer_load_dwordx{n} s[{d}:{d+n-1}], s[{sWS}:{sWS+3}], s{so} offset:{imm} glc")
        regs += [d + 2 * k for k in range(used)]
    a.wait_all(vm=False)
    for r in regs: a(f"s_xor_b64 s[{r}:{r+1}], s[{r}:{r+1}], s[{sNO}:{sNO+1}]")
    while len(regs) > 1:
        r = regs.pop(); a(f"s_or_b64 s[{regs[0]}:{regs[0]+1}], s[{regs[0]}:{regs[0]+1}], s[{r}:{r+1}]")
    a(f"s_cbranch_scc0 {Dn}\ns_sub_u32 s{sCNT}, s{sCNT}, 1\ns_cbranch_scc1 {Dn}" + ("\ns_sleep 1" if OPT["psl"] else "") + f"\ns_branch {L}")
    a.label(Dn)

def poll(sleep=1):
    L = newlab("po"); Dn = newlab("pod")
    a(f"s_mov_b32 s{sCNT}, {OPT['spin']}")
    a.label(L)
    a(f"buffer_load_dwordx2 v[{vP0}:{vP0+1}], v{vPO}, s[{sWS}:{sWS+3}], 0 offen sc1")
    a.wait_all(lg=False)
    a(f"v_cmp_ne_u64 vcc, v[{vP0}:{vP0+1}], v[{vNO}:{vNO+1}]\ns_cbranch_vccz {Dn}\ns_sub_u32 s{sCNT}, s{sCNT}, 1\ns_cbranch_scc1 {Dn}\ns_sleep {sleep}\ns_branch {L}")
    a.label(Dn)

def publish(sflag, barrier=True):
    L = newlab("pub")
    if barrier:
        a.wait_all()
        a("s_barrier")
    a(f"s_cmp_lg_u32 s{sW}, 0\ns_cbranch_scc1 {L}\ns_mov_b64 exec, 1")
    a(f"buffer_store_dwordx2 v[{vNO}:{vNO+1}], v{vZERO}, s[{sWS}:{sWS+3}], s{sflag} offen sc1")
    a("s_mov_b64 exec, -1")
    a.label(L)
    a.flag_pending = True

def xhalf_add(v, t1, t2):
    a(f"v_mov_b32 v{t1}, v{v}\nv_mov_b32 v{t2}, v{v}\nv_permlane32_swap_b32 v{t1}, v{t2}\nv_add_f32 v{v}, v{t1}, v{t2}")

def ln_stats(vsum, vsq, t):
    a(f"v_mul_f32 v{vsum}, {hx(f2u(1.0/D))}, v{vsum}\nv_mul_f32 v{vsq}, {hx(f2u(1.0/D))}, v{vsq}")
    a(f"v_fma_f32 v{vsq}, -v{vsum}, v{vsum}, v{vsq}\nv_max_f32 v{vsq}, 0, v{vsq}")

def scale16(acc):
    for i in range(0, 16, 2):
        a(f"v_pk_mul_f32 v[{acc+i}:{acc+i+1}], v[{acc+i}:{acc+i+1}], v[{vA}:{vA+1}] op_sel_hi:[1,0]")
def shift16(acc, cs):
    for i in range(0, 16, 2):
        a(f"v_pk_fma_f32 v[{acc+i}:{acc+i+1}], v[{cs+i}:{cs+i+1}], v[{vB}:{vB+1}], v[{acc+i}:{acc+i+1}] op_sel_hi:[1,0,1]")

def gelu_consts(vC, va):
    a(f"v_mul_f32 v{vC}, {hx(f2u(GA))}, v{va}\nv_mul_f32 v{vC+2}, v{va}, v{va}\nv_rcp_f32 v{vC+4}, v{va}\nv_mul_f32 v{vC+2}, v{vC+2}, v{va}\nv_mul_f32 v{vC+2}, {hx(f2u(GB))}, v{vC+2}")

def gelu16(y, t, vC, hook=lambda: None):
    for i in range(0, 16, 2):
        a(f"v_pk_mul_f32 v[{t+i}:{t+i+1}], v[{y+i}:{y+i+1}], v[{y+i}:{y+i+1}]")
    for i in range(0, 16, 2):
        a(f"v_pk_fma_f32 v[{t+i}:{t+i+1}], v[{t+i}:{t+i+1}], v[{vC+2}:{vC+3}], v[{vC}:{vC+1}] op_sel_hi:[1,0,0]")
    hook()
    for i in range(0, 16, 2):
        a(f"v_pk_mul_f32 v[{t+i}:{t+i+1}], v[{t+i}:{t+i+1}], v[{y+i}:{y+i+1}]")
    for i in range(16):
        a(f"v_exp_f32 v{t+i}, v{t+i}")
        if i == 7: hook()
    for i in range(0, 16, 2):
        a(f"v_pk_fma_f32 v[{t+i}:{t+i+1}], v[{t+i}:{t+i+1}], v[{vC+4}:{vC+5}], v[{vC+4}:{vC+5}] op_sel_hi:[1,0,0]")
    hook()
    for i in range(16):
        a(f"v_rcp_f32 v{t+i}, v{t+i}")
        if i == 9: hook()
    for i in range(0, 16, 2):
        a(f"v_pk_mul_f32 v[{y+i}:{y+i+1}], v[{y+i}:{y+i+1}], v[{t+i}:{t+i+1}]")
    hook()

class Deferred:
    def __init__(self): self.groups = []
    def __enter__(self):
        self.orig = Asm.__call__; d = self
        def cap(asm, text):
            n = len(asm.ins); d.orig(asm, text); d.groups.append(asm.ins[n:]); del asm.ins[n:]
        Asm.__call__ = cap; return self
    def __exit__(self, *e): Asm.__call__ = self.orig
    def drip(self, ninstr):
        while self.groups and ninstr > 0:
            g = self.groups.pop(0); a.ins.extend(g); ninstr -= len(g)
    def flush(self): self.drip(1 << 30)

def cvt16(pk, y):
    for i in range(8): a(f"v_cvt_pk_bf16_f32 v{pk+i}, v{y+2*i}, v{y+2*i+1}")

PAD = [0]
def mfma(d, A, B, first=False):
    if PAD[0] > 0: a(f"s_nop {PAD[0]-1}")
    elif PAD[0] < 0:
        n = 0
        for i in reversed(a.ins):
            if i.kind == "mfma": break
            if not i.is_label: n += i.states * (OPT["dsw"] if i.kind in ("ds", "vmem", "dma") else 1)
            if n >= -PAD[0]: break
        if n < -PAD[0]: a(f"s_nop {-PAD[0]-n-1}")
    c = "0" if first else f"v[{d}:{d+15}]"
    a(f"v_mfma_f32_32x32x16_bf16 v[{d}:{d+15}], v[{A}:{A+3}], v[{B}:{B+3}], {c}")

def interleave(main, fill):
    n = len(main); k = 0
    for i, m in enumerate(main):
        m()
        upto = (len(fill) * (i + 1) + n - 1) // n
        while k < upto: fill[k](); k += 1

def rot7(dst, rot, n=7):
    for c in range(n):
        a(f"s_add_u32 s{dst+c}, s{rot}, {c}\ns_sub_u32 s{sT5}, s{dst+c}, 7\ns_cselect_b32 s{dst+c}, s{dst+c}, s{sT5}")


def prologue():
    a("s_cmp_ge_u32 s2, 512\ns_cbranch_scc1 L_end")
    a("s_load_dwordx16 s[4:19], s[0:1], 0\ns_load_dwordx4 s[20:23], s[0:1], 64\ns_load_dwordx2 s[24:25], s[0:1], 80")
    a(f"s_memrealtime s[{sTAG}:{sTAG+1}]")
    a(f"v_lshrrev_b32 v8, 6, v0\nv_and_b32 v{vLANE}, 63, v0\nv_readfirstlane_b32 s{sW}, v8")
    a(f"v_and_b32 v{vT_}, 31, v0\nv_bfe_u32 v{vHH}, v0, 5, 1\nv_mov_b32 v{vZERO}, 0\nv_lshlrev_b32 v{vL16}, 4, v{vLANE}")
    a(f"s_mov_b32 s{sHI}, 0\ns_mov_b32 s{sHI+1}, -1\ns_mov_b32 s{sONES}, 0x3f803f80")
    a(f"s_and_b32 s{sXCD}, s2, 7\ns_bfe_u32 s{sLOC}, s2, {(5 << 16) | 3}")
    stamp("entry", first=True)
    a(f"s_or_b32 s{sT4}, s2, s{sW}\ns_cmp_lg_u32 s{sT4}, 0\ns_cbranch_scc1 L_notag\ns_waitcnt lgkmcnt(0)")
    srd(sDBG, 22, 256)
    a(f"s_or_b32 s{sTAG}, s{sTAG}, 1\nv_mov_b32 v{vNO}, s{sTAG}\nv_mov_b32 v{vNO+1}, s{sTAG+1}\ns_mov_b64 exec, 1")
    a(f"buffer_store_dwordx2 v[{vNO}:{vNO+1}], v{vZERO}, s[{sDBG}:{sDBG+3}], 0 offen sc1\ns_mov_b64 exec, -1")
    a.label("L_notag")
    a("s_cmp_ge_u32 s2, 256\n" + ("s_cbranch_scc0" if OPT["swap"] else "s_cbranch_scc1") + " L_roleB")

def make_sel(dst, t):
    a(f"v_bfe_u32 v{t}, v{vLANE}, 2, 1\nv_bfe_u32 v{t+1}, v{vLANE}, 4, 1\nv_cmp_eq_u32 vcc, v{t}, v{t+1}\nv_mov_b32 v{t}, s{sONES}\ns_nop 0\n"
      + "\n".join(f"v_cndmask_b32 v{dst+i}, 0, v{t}, vcc" for i in range(4)))

def mfma_sum(d, sel, B, first):
    c = "0" if first else f"v[{d}:{d+3}]"
    a(f"v_mfma_f32_16x16x32_bf16 v[{d}:{d+3}], v[{sel}:{sel+3}], v[{B}:{B+3}], {c}")

def check_record(REC, voff, soff, loaded=True):
    L = newlab("rec"); Dn = newlab("recd"); C = newlab("recc")
    a(f"s_mov_b32 s{sCNT}, {OPT['spin']}")
    if loaded: a(f"s_branch {C}")
    a.label(L)
    a(f"buffer_load_dwordx4 v[{REC}:{REC+3}], v{voff}, s[{sWS}:{sWS+3}], s{soff} offen sc1\ns_waitcnt vmcnt(0)")
    a.label(C)
    a(f"v_cmp_ne_u32 vcc, v{REC+1}, v{vNO}\nv_cmp_ne_u32 s[{sT2}:{sT3}], v{REC+3}, v{vNO}\ns_or_b64 vcc, vcc, s[{sT2}:{sT3}]")
    a(f"v_cmp_eq_u32 s[{sT2}:{sT3}], 0, v{vNO}\ns_or_b64 vcc, vcc, s[{sT2}:{sT3}]\ns_cbranch_vccz {Dn}")
    a(f"s_sub_u32 s{sCNT}, s{sCNT}, 1\ns_cbranch_scc1 {Dn}\ns_sleep 1\ns_branch {L}")
    a.label(Dn)
    if not loaded: a.vmq = []

def addr_xdma(dst, nq, t):
    for q in range(nq):
        a(f"v_lshrrev_b32 v{t}, 3, v{vLANE}\nv_add_u32 v{t}, {8*q}, v{t}")
        a(f"v_bfe_u32 v{t+1}, v{t}, 1, 3\nv_and_b32 v{t+2}, 7, v{vLANE}\nv_xor_b32 v{t+1}, v{t+1}, v{t+2}")
        a(f"v_mul_u32_u24 v{t}, 896, v{t}\nv_lshl_add_u32 v{t}, v{t+1}, 4, v{t}\nv_subrev_u32 v{dst+q}, {1024*q}, v{t}")

def addr_wdma128(dst, t):
    a(f"v_lshrrev_b32 v{t}, 3, v{vLANE}\nv_bfe_u32 v{t+1}, v{vLANE}, 4, 1\nv_lshlrev_b32 v{t+1}, 2, v{t+1}")
    a(f"v_and_b32 v{t+2}, 7, v{vLANE}\nv_xor_b32 v{t+1}, v{t+1}, v{t+2}")
    a(f"v_mul_u32_u24 v{t}, 896, v{t}\nv_lshl_add_u32 v{dst}, v{t+1}, 4, v{t}\nv_add_u32 v{dst+1}, {8*896-1024}, v{dst}")

def addr_wdma256(dst, sstride, t, mask=False):
    a(f"v_lshrrev_b32 v{t}, 4, v{vLANE}\nv_lshlrev_b32 v{t+1}, 2, v{t}\nv_sub_u32 v{t+1}, v{vLANE}, v{t+1}\nv_and_b32 v{t+1}, 15, v{t+1}")
    a(f"v_mul_u32_u24 v{t}, s{sstride}, v{t}\nv_lshl_add_u32 v{dst}, v{t+1}, 4, v{t}")
    if mask: a(f"v_mov_b32 v{t}, 0x7fff0000\nv_cmp_gt_u32 vcc, 14, v{t+1}\nv_cndmask_b32 v{dst}, v{t}, v{dst}, vcc")
    a(f"s_lshl_b32 s{sT5}, s{sstride}, 2\ns_sub_u32 s{sT5}, s{sT5}, 1024")
    for q in range(1, 4): a(f"v_add_u32 v{dst+q}, s{sT5}, v{dst+q-1}")

def addr_xrd(dst, sbase, t):
    a(f"v_bfe_u32 v{t}, v{vT_}, 1, 3\nv_xor_b32 v{t}, v{t}, v{vHH}\nv_lshlrev_b32 v{t}, 4, v{t}\nv_lshl_add_u32 v{t}, v{vT_}, 7, v{t}")
    for ks in range(4):
        a(f"v_xor_b32 v{dst+ks}, {32*ks}, v{t}\nv_add_u32 v{dst+ks}, s{sbase}, v{dst+ks}")

def lane_rcg(t):
    a(f"v_bfe_u32 v{t}, v{vLANE}, 2, 2\nv_and_b32 v{t+1}, 3, v{vLANE}\nv_lshlrev_b32 v{t+1}, 3, v{t+1}")
    a(f"v_bfe_u32 v{t+2}, v{vLANE}, 4, 1\nv_lshl_add_u32 v{t+1}, v{t+2}, 5, v{t+1}")

def addr_wrd256(dst, cs, t):
    lane_rcg(t)
    a(f"v_lshl_add_u32 v{t+1}, v{t}, 6, v{t+1}")
    a(f"v_lshl_add_u32 v{t}, v{vHH}, 3, v{t}\nv_lshlrev_b32 v{t}, 8, v{t}")
    for u in range(4):
        a(f"s_add_u32 s{sT0}, s{sW}, {u}\ns_and_b32 s{sT0}, s{sT0}, 3\ns_mul_i32 s{sT0}, s{sT0}, {cs}")
        a(f"v_add_u32 v{dst+u}, s{sT0}, v{t+1}\nv_and_b32 v{dst+u}, 255, v{dst+u}\nv_add_u32 v{dst+u}, v{dst+u}, v{t}")

def addr_wrd128(dst, hhmul, scol, sbase, t):
    lane_rcg(t)
    a(f"v_lshrrev_b32 v{t+2}, 1, v{t}\nv_xor_b32 v{t+2}, s{scol}, v{t+2}\nv_lshl_add_u32 v{t+1}, v{t+2}, 6, v{t+1}")
    a(f"v_mad_u32_u24 v{t}, v{vHH}, {hhmul}, v{t}\nv_lshl_add_u32 v{dst}, v{t}, 7, v{t+1}")
    if sbase is not None: a(f"v_add_u32 v{dst}, s{sbase}, v{dst}")

def set_m0(expr_sgpr, add):
    a(f"s_add_u32 m0, s{expr_sgpr}, {add}" if add else f"s_mov_b32 m0, s{expr_sgpr}")


def panel_mainloop(name, ACC, WF, vWrd, nslot, xfrag, issue_w, wtok, hooks, SEL, CS4, defer=None, stream=()):
    rd = {}
    hi = [False]
    pre = set(range(nslot)); stream = list(stream); stream0 = bool(stream)
    def wreads(s):
        c, ks = divmod(s, 4); slot = c % nslot
        base = slot * 16384 + ks * 4096
        if slot == 4 and not hi[0]:
            for u in range(4): a(f"v_add_u32 v{vWrd+u}, 0x10000, v{vWrd+u}")
            hi[0] = True
        if slot != 4 and hi[0]:
            for u in range(4): a(f"v_subrev_u32 v{vWrd+u}, 0x10000, v{vWrd+u}")
            hi[0] = False
        if slot == 4: base -= 65536
        toks = []; rd[s] = toks; th = []
        for u in range(2 if OPT["xp"] & 8 else 4):
            for jj in range(2):
                r = WF + (s & 1) * 16 + u * 4 + jj * 2
                th.append(lambda r=r, u=u, jj=jj: toks.append(a.lg(f"ds_read_b64_tr_b16 v[{r}:{r+1}], v{vWrd+u} offset:{base + jj*1024}")))
        return th
    hooks["before_barrier"](0)
    a.wait(vm=wtok[0]); a("s_barrier")
    stamp(name + "_c0")
    for t in hooks["after_barrier"](0) + wreads(0): t()
    for s in range(28):
        c, ks = divmod(s, 4)
        a.wait(lg=rd[s] + hooks["lg_need"](s), vm=hooks["vm_need"](s))
        reads = []; late = []
        if ks == 3 and c < 6:
            hooks["before_barrier"](c + 1)
            if nslot == 5 and OPT["nb3"] and not stream0:
                if c + 1 == 2: a.wait(vm=wtok[4])
                if c + 1 not in (3, 4): a.wait(vm=wtok[c + 1]); a("s_barrier")
            else:
                a.wait(vm=wtok[c + 1]); a("s_barrier")
            if c in (1, 3, 5): stamp(name + f"_c{c+1}")
            reads += hooks["after_barrier"](c + 1)
        if s < 27: reads += wreads(s + 1)
        for cc, qs in ((c + nslot, (0, 1)) if ks == 3 else (c - 1 + nslot, (2, 3)) if ks == 0 and c > 0 else (99, ()),):
            if cc <= 6 and cc not in pre:
                for q in qs: late.append(lambda cc=cc, q=q: wtok.setdefault(cc, []).extend(issue_w(cc, (q,))))
        for k in range(2):
            if stream: late.append(stream.pop(0))
        late += hooks["kstep"](s)
        xf = xfrag(s); w = WF + (s & 1) * 16
        h = (len(reads) + 1) // 2
        mfma(ACC, w, xf, first=(s == 0))
        for t in reads[:h]: t()
        mfma(ACC + 16, w + 4, xf, first=(s == 0))
        for t in reads[h:]: t()
        h = (len(late) + 1) // 2
        mfma(ACC + 32, w + 8, xf, first=(s == 0))
        for t in late[:h]: t()
        if defer: defer.drip(3)
        mfma(ACC + 48, w + 12, xf, first=(s == 0))
        for t in late[h:]: t()
        if defer: defer.drip(3)
        if SEL is not None and not (OPT["xp"] & 4 and s > 0): mfma_sum(CS4, SEL, w, s == 0)
    if defer: defer.flush()

def addr_cs(vCW, vCA, csbase):
    a(f"s_lshl_b32 s{sT0}, s{sW}, 7\ns_add_u32 s{sT0}, s{sT0}, {csbase}\nv_lshl_add_u32 v{vCW}, v{vT_}, 2, s{sT0}")
    for u in range(4):
        a(f"s_add_u32 s{sT0}, s{sW}, {u}\ns_and_b32 s{sT0}, s{sT0}, 3\ns_lshl_b32 s{sT0}, s{sT0}, 7\ns_add_u32 s{sT0}, s{sT0}, {csbase}\nv_lshl_add_u32 v{vCA+u}, v{vHH}, 4, s{sT0}")

def read_cs(dst, vaddr):
    return [a.lg(f"ds_read_b128 v[{dst+4*i}:{dst+4*i+3}], v{vaddr} offset:{32*i}") for i in range(4)]

sTAG = 98
def stage_A1():
    a.comment("==== A1: 128 rows x 112 columns of LN(x) @ [wq | wk | wv | w1]")
    if OPT["prio_a1"]: a(f"s_setprio {OPT['prio_a1']}")
    ACC, XF, WF = 16, 80, 112
    vWd, vXd, vXr, vWr = 144, 148, 152, 156
    SEL, CS4, REC, vCA, vVw, vVr, vPA, vPB, vSt, vCW, vM0, vM1, vRo = 160, 164, 168, 172, 176, 180, 182, 183, 184, 185, 186, 187, 188
    T = 190
    GT, PK = 200, 216
    sRB, sCG, sROT = sA0, sA0 + 1, sA0 + 2
    sKC = sA0 + 3
    sWO_ = sA0 + 10
    sM0W, sM0X, sTY, sHQ, sSTR, sCST = sA0 + 17, sA0 + 18, sA0 + 19, sA0 + 20, sA0 + 21, sA0 + 22
    sD0, sD1, sFL, sRO, sSC, sGO, sG = 4, 8, 12, 13, 14, 15, 16
    a(f"s_lshr_b32 s{sT0}, s{sLOC}, 3\ns_lshr_b32 s{sT2}, s{sXCD}, 1\ns_lshl_b32 s{sT2}, s{sT2}, 2\ns_add_u32 s{sRB}, s{sT2}, s{sT0}")
    a(f"s_and_b32 s{sT2}, s{sXCD}, 1\ns_lshl_b32 s{sT2}, s{sT2}, 3\ns_and_b32 s{sT1}, s{sLOC}, 7\ns_add_u32 s{sCG}, s{sT2}, s{sT1}")
    a(f"s_lshr_b32 s{sTY}, s{sCG}, 2\ns_and_b32 s{sHQ}, s{sCG}, 3")
    a(f"s_cmp_eq_u32 s{sTY}, 3\ns_movk_i32 s{sSTR}, 2688\ns_cselect_b32 s{sSTR}, 896, s{sSTR}\ns_cselect_b32 s{sCST}, 64, 56\ns_cselect_b32 s{sT3}, s{sHQ}, s{sCG}")
    a(f"s_mul_i32 s{sT0}, s{sLOC}, 37\ns_lshr_b32 s{sT0}, s{sT0}, 8\ns_mul_i32 s{sT0}, s{sT0}, 7\ns_sub_u32 s{sROT}, s{sLOC}, s{sT0}")
    a(f"s_lshl_b32 s{sT0}, s{sRB}, 2\ns_add_u32 s{sT0}, s{sT0}, s{sW}\ns_mul_i32 s{sT0}, s{sT0}, {32*896}")
    a(f"s_lshl_b32 s{sT1}, s{sW}, 4\ns_mul_i32 s{sT1}, s{sT1}, s{sSTR}\ns_mul_i32 s{sT2}, s{sT3}, 224\ns_add_u32 s{sT1}, s{sT1}, s{sT2}")
    a(f"s_lshl_b32 s{sT2}, s{sSTR}, 6")
    def chunk_offsets(c):
        a(f"s_add_u32 s{sKC+c}, s{sROT}, {c}\ns_sub_u32 s{sT5}, s{sKC+c}, 7\ns_cselect_b32 s{sKC+c}, s{sKC+c}, s{sT5}")
        a(f"s_mul_i32 s{sWO_+c}, s{sKC+c}, s{sT2}\ns_add_u32 s{sWO_+c}, s{sWO_+c}, s{sT1}")
        a(f"s_lshl_b32 s{sKC+c}, s{sKC+c}, 7\ns_add_u32 s{sKC+c}, s{sKC+c}, s{sT0}")
    for c in range(2): chunk_offsets(c)
    a(f"s_lshl_b32 s{sM0W}, s{sW}, 12\ns_lshl_b32 s{sM0X}, s{sW}, 13\ns_add_u32 s{sM0X}, s{sM0X}, 49152")
    addr_xdma(vXd, 4, T); addr_wdma256(vWd, sSTR, T, mask=True)
    a("s_waitcnt lgkmcnt(0)")
    stamp("a1_karg")
    srd(sX, 4, S * D * 2)
    a(f"s_cmp_eq_u32 s{sTY}, 3\ns_cselect_b32 s{sWA}, s12, s6\ns_cselect_b32 s{sWA+1}, s13, s7\ns_mov_b32 s{sWA+2}, {D*3*D*2}\ns_cselect_b32 s{sWA+2}, {D*D*2}, s{sWA+2}\ns_mov_b32 s{sWA+3}, 0x20000")
    srd(sDBG, 22, 256)
    m0 = [None]
    def issue_x(c, qs=range(4)):
        if m0[0] != ("x", c): set_m0(sM0X, (c & 1) * 4096); m0[0] = ("x", c)
        if OPT["xp"] & 1 and c > 1: return []
        return [a.vm(f"buffer_load_dwordx4 v{vXd+q}, s[{sX}:{sX+3}], s{sKC+c} offen offset:{1024*q} lds") for q in qs]
    def issue_w(c, qs=range(4)):
        if m0[0] != ("w", c): set_m0(sM0W, (c % 3) * 16384); m0[0] = ("w", c)
        if OPT["xp"] & 2 and c > 2: return []
        return [a.vm(f"buffer_load_dwordx4 v{vWd+q}, s[{sWA}:{sWA+3}], s{sWO_+c} offen offset:{1024*q} lds") for q in qs]
    xt = {}; wt = {}
    xt[0] = issue_x(0); wt[0] = issue_w(0)
    for c in range(2, 7): chunk_offsets(c)
    addr_xrd(vXr, sM0X, T)
    if OPT["a1s"] < 2: xt[1] = issue_x(1)
    addr_wrd256(vWr, f"s{sCST}", T)
    make_sel(SEL, T)
    srd(sWS, 24, WS_SIZE)
    if OPT["aw3"]: srd(sWO, 16, D * F * 2)
    CSB = 16384
    with Deferred() as df:
        a(f"s_and_b32 s{sGO}, s2, 255\ns_lshl_b32 s{sGO}, s{sGO}, 6\ns_add_u32 s{sGO}, s{sGO}, {F_GO}")
        a(f"s_lshl_b32 s{sT0}, s{sRB}, 2\ns_add_u32 s{sT4}, s{sT0}, s{sW}\ns_lshl_b32 s{sRO}, s{sT4}, 9\ns_add_u32 s{sRO}, s{sRO}, {ST0}")
        a(f"v_lshlrev_b32 v{vRo}, 4, v{vT_}")
        addr_cs(vCW, vCA, CSB)
        a(f"s_lshl_b32 s{sT0}, s{sHQ}, 15\ns_lshl_b32 s{sT1}, s{sRB}, 9\ns_add_u32 s{sT1}, s{sT1}, s{sT0}")
        a(f"v_lshrrev_b32 v{T}, 2, v{vLANE}\nv_lshlrev_b32 v{T}, 13, v{T}\nv_and_b32 v{T+1}, 3, v{vLANE}\nv_lshl_add_u32 v{T}, v{T+1}, 7, v{T}\nv_add_u32 v{vM1}, s{sT1}, v{T}")
        lanes_below(vM1, 16, T)
        a(f"s_lshr_b32 s{sT1}, s{sRB}, 2\ns_lshl_b32 s{sT1}, s{sT1}, 7\ns_add_u32 s{sT0}, s{sT0}, s{sT1}\ns_and_b32 s{sT1}, s{sRB}, 3\ns_lshl_b32 s{sT2}, s{sTY}, 2\ns_add_u32 s{sT1}, s{sT1}, s{sT2}")
        a(f"s_sub_u32 s{sT1}, s{sT1}, 2\ns_lshl_b32 s{sT1}, s{sT1}, 3\ns_add_u32 s{sT0}, s{sT0}, s{sT1}\nv_lshl_add_u32 v{vM0}, v{vLANE}, 9, s{sT0}")
        a(f"s_cmp_eq_u32 s{sTY}, 0\ns_cselect_b64 vcc, -1, 0\nv_cndmask_b32 v{vM0}, v{vM0}, v{vM1}, vcc")
        lane_div(T, T + 1, vLANE, 14, T + 2)
        a(f"s_lshl_b32 s{sT0}, s{sRB}, 1\ns_sub_u32 s{sT0}, s{sT0}, 1\nv_add_u32 v{T+2}, s{sT0}, v{T}\nv_max_i32 v{T+2}, 0, v{T+2}\nv_min_i32 v{T+2}, 31, v{T+2}")
        a(f"v_mul_u32_u24 v{T+2}, 14, v{T+2}\nv_add_u32 v{T+2}, v{T+2}, v{T+1}\nv_lshlrev_b32 v{T+2}, 7, v{T+2}")
        a(f"v_add_u32 v{T}, 1, v{T}\nv_bfe_u32 v{T}, v{T}, 1, 1\nv_xor_b32 v{T}, 1, v{T}\nv_lshl_add_u32 v{T+2}, v{T}, 3, v{T+2}")
        a(f"s_lshr_b32 s{sT0}, s{sHQ}, 1\ns_lshl_b32 s{sT0}, s{sT0}, 6\ns_and_b32 s{sT1}, s{sHQ}, 1\ns_lshl_b32 s{sT1}, s{sT1}, 4\ns_add_u32 s{sT0}, s{sT0}, s{sT1}\ns_add_u32 s{sT0}, s{sT0}, {MB_H}\nv_add_u32 v{T+2}, s{sT0}, v{T+2}")
        lanes_below(T + 2, 56, T)
        a(f"s_cmp_eq_u32 s{sTY}, 3\ns_cselect_b64 vcc, -1, 0\nv_cndmask_b32 v{vM0}, v{vM0}, v{T+2}, vcc")
        a(f"s_cmp_eq_u32 s{sTY}, 1\ns_cselect_b32 s{sT0}, 8, {hx(OOB)}\nv_add_u32 v{vM1}, s{sT0}, v{vM1}")
        a(f"s_and_b32 s{sT0}, s2, 255\ns_lshl_b32 s{sT0}, s{sT0}, 6\ns_add_u32 s{sT0}, s{sT0}, {F_AP}\nv_mov_b32 v{T}, s{sT0}\nv_cmp_eq_u32 vcc, 16, v{vLANE}\ns_nop 1\nv_cndmask_b32 v{vM1}, v{vM1}, v{T}, vcc")
        a(f"s_lshl_b32 s{sT1}, s{sHQ}, 8\ns_add_u32 s{sT0}, s{sT4}, s{sT1}\ns_cmp_eq_u32 s{sTY}, 0\ns_cselect_b32 s{sSC}, 11, 12\ns_mov_b32 s{sT2}, {KV_ - 2048}\ns_cselect_b32 s{sT2}, {QB_}, s{sT2}")
        a(f"s_lshl_b32 s{sT0}, s{sT0}, s{sSC}\ns_lshl_b32 s{sT1}, s{sTY}, 11\ns_add_u32 s{sT0}, s{sT0}, s{sT1}\ns_add_u32 s{sT0}, s{sT0}, s{sT2}")
        a(f"s_lshl_b32 s{sT4}, s{sT4}, 9\ns_mul_i32 s{sT1}, s{sHQ}, {14*PL}\ns_add_u32 s{sT4}, s{sT4}, s{sT1}\ns_add_u32 s{sT4}, s{sT4}, {H_}")
        a(f"s_lshl_b32 s{sT1}, 64, s{sSC}\ns_movk_i32 s{sT2}, 1024\ns_movk_i32 s{sT3}, 512")
        a(f"s_cmp_eq_u32 s{sTY}, 3\ns_cselect_b32 s{sT0}, s{sT4}, s{sT0}\ns_cselect_b32 s{sT1}, {4*PL}, s{sT1}\ns_cselect_b32 s{sT2}, {2*PL}, s{sT2}\ns_cselect_b32 s{sT3}, {PL}, s{sT3}")
        a(f"v_mul_u32_u24 v{vSt}, s{sT3}, v{vHH}\nv_lshl_add_u32 v{vSt}, v{vT_}, 4, v{vSt}")
        for u in range(4):
            a(f"s_add_u32 s{sT3}, s{sW}, {u}\ns_and_b32 s{sT3}, s{sT3}, 3\ns_mul_i32 s{sD0+u}, s{sT3}, s{sT1}\ns_add_u32 s{sD0+u}, s{sD0+u}, s{sT0}")
            a(f"s_add_u32 s{sD1+u}, s{sD0+u}, s{sT2}\ns_lshl_b32 s{sT4}, s{sTY}, 2\ns_or_b32 s{sT3}, s{sT3}, s{sT4}")
            a(f"s_cmp_eq_u32 s{sT3}, 15\ns_cselect_b32 s{sD1+u}, 0x7fff0000, s{sD1+u}")
        a(f"s_cmp_eq_u32 s{sTY}, 1\ns_cselect_b32 s{sT1}, 0x3f803f80, 0\ns_cselect_b32 s{sT2}, 0x3f80, 0")
        a(f"s_cmp_eq_u32 s{sTY}, 2\ns_cselect_b32 s{sT1}, 0x3f80, s{sT1}")
        a(f"v_mov_b32 v{vPA}, s{sT1}\nv_mov_b32 v{vPB}, s{sT2}")
        a(f"s_cmp_eq_u32 s{sTY}, 0\ns_cselect_b32 s{sSC}, {hx(f2u(QSCALE))}, 1.0")
        a(f"v_bfe_u32 v{T}, v{vT_}, 1, 3\nv_xor_b32 v{T}, v{T}, v{vHH}\nv_lshlrev_b32 v{T}, 3, v{T}\nv_lshl_add_u32 v{T}, v{vT_}, 6, v{T}")
        for i in range(4): a(f"v_xor_b32 v{vVw+i}, {16*i}, v{T}\nv_add_u32 v{vVw+i}, s{sM0X}, v{vVw+i}")
        lane_rcg(T)
        for jj in range(2):
            a(f"v_lshl_add_u32 v{T+2}, v{vHH}, 2, v{T}\nv_add_u32 v{T+2}, {8*jj}, v{T+2}")
            a(f"v_bfe_u32 v{T+3}, v{T+2}, 1, 3\nv_lshlrev_b32 v{T+3}, 3, v{T+3}\nv_xor_b32 v{T+3}, v{T+3}, v{T+1}")
            a(f"v_lshl_add_u32 v{vVr+jj}, v{T+2}, 6, v{T+3}\nv_add_u32 v{vVr+jj}, s{sM0X}, v{vVr+jj}")
    if not OPT["defer"]: df.drip(70 if OPT["a1s"] < 2 else 999)
    if OPT["a1s"] >= 2: xt[1] = issue_x(1)
    wt[1] = issue_w(1)
    if not OPT["defer"]: df.flush()
    st1 = []
    if OPT["a1s"]: st1 = [lambda q=q: wt.setdefault(2, []).extend(issue_w(2, (q,))) for q in range(4)]
    else: wt[2] = issue_w(2)
    stamp("a1_issued")
    xr = {}; rec = []
    def go():
        a.wait(vm=rec[0]); get_nonce(loaded=True)
        publish(sGO, barrier=False)
    def after_barrier(c):
        xr[c] = []
        return [lambda ks=ks: xr[c].append(a.lg(f"ds_read_b128 v[{XF+(c&1)*16+4*ks}:{XF+(c&1)*16+4*ks+3}], v{vXr+ks} offset:{(c&1)*4096}")) for ks in range(4)]
    def kstep(s):
        th = []
        c, ks = divmod(s, 4)
        if ks in (1, 2) and c + 2 <= 6:
            for q in (2 * ks - 2, 2 * ks - 1): th.append(lambda q=q: xt.setdefault(c + 2, []).extend(issue_x(c + 2, (q,))))
        if s == OPT["go"] - 5: th.append(lambda: rec.append(a.vm(f"buffer_load_dwordx2 v[{vNO}:{vNO+1}], v{vZERO}, s[{sDBG}:{sDBG+3}], 0 offen sc1")))
        if s == OPT["go"]: th.append(go)
        if s == 22: th.append(lambda: rec.append(a.vm(f"buffer_load_dwordx4 v[{REC}:{REC+3}], v{vRo}, s[{sWS}:{sWS+3}], s{sRO} offen sc1")))
        return th
    hooks = dict(before_barrier=lambda c: a.wait(vm=xt[c]), after_barrier=after_barrier,
                 lg_need=lambda s: xr[s // 4] if s % 4 == 0 else [], vm_need=lambda s: [], kstep=kstep)
    panel_mainloop("a1", ACC, WF, vWr, 3, lambda s: XF + ((s // 4) & 1) * 16 + 4 * (s % 4), issue_w, wt, hooks, SEL, CS4, df, stream=st1)
    stamp("a1_main")
    a.wait(vm=rec)
    check_record(REC, vRo, sRO)
    a.lg(f"ds_write_b32 v{vCW}, v{CS4}")
    a(f"v_mul_f32 v{T}, v{REC+2}, v{REC+2}\nv_mov_b32 v{T+1}, {hx(f2u(1.0 + EPS))}\nv_mov_b32 v{T+2}, {hx(f2u(-EPS))}\nv_fma_f32 v{T}, v{T}, v{T+2}, v{T+1}\nv_rsq_f32 v{T}, v{T}")
    a(f"s_cmp_eq_u32 s{sTY}, 3\ns_cselect_b64 vcc, -1, 0\nv_mov_b32 v{T+1}, s{sSC}\nv_cndmask_b32 v{T}, v{T+1}, v{T}, vcc")
    a(f"v_mul_f32 v{vA}, v{T}, v{REC+2}\nv_mul_f32 v{vB}, v{vA}, v{REC}\nv_sub_f32 v{vB}, 0, v{vB}")
    a.wait_all(vm=False); a("s_barrier")
    stamp("a1_csbar")
    CS = 80
    toks = [read_cs(CS + 16 * u, vCA + u) for u in range(3)]
    a(f"s_cmp_eq_u32 s{sTY}, 3\ns_cbranch_scc1 L_A1_nosc")
    for u in range(4): scale16(ACC + 16 * u)
    a.label("L_A1_nosc")
    a.wait(lg=toks[0])
    toks.append(read_cs(CS + 48, vCA + 3))
    def store(u, pk):
        a.vm(f"buffer_store_dwordx4 v[{pk}:{pk+3}], v{vSt}, s[{sWS}:{sWS+3}], s{sD0+u} offen sc1")
        a.vm(f"buffer_store_dwordx4 v[{pk+4}:{pk+7}], v{vSt}, s[{sWS}:{sWS+3}], s{sD1+u} offen sc1")
    def pads(pk): a(f"v_cndmask_b32 v{pk+6}, v{pk+6}, v{vPA}, s[{sHI}:{sHI+1}]\nv_cndmask_b32 v{pk+7}, v{pk+7}, v{vPB}, s[{sHI}:{sHI+1}]")
    lgq0 = list(a.lgq); vmq0 = list(a.vmq)
    a(f"s_cmp_eq_u32 s{sTY}, 2\ns_cbranch_scc1 L_A1_v\ns_cmp_eq_u32 s{sTY}, 3\ns_cbranch_scc1 L_A1_w1")
    for u in range(4):
        a.wait(lg=toks[u]); shift16(ACC + 16 * u, CS + 16 * u)
        cvt16(PK + 8 * u, ACC + 16 * u); pads(PK + 8 * u); store(u, PK + 8 * u)
    a("s_branch L_A1_pub")
    a.label("L_A1_v")
    a.lgq = list(lgq0); a.vmq = list(vmq0); tr = {}
    for u in range(4):
        pk = PK + 8 * u
        a.wait(lg=toks[u]); shift16(ACC + 16 * u, CS + 16 * u)
        cvt16(pk, ACC + 16 * u); pads(pk)
        if u == 0: a.wait(lg=toks[3])
        if u > 0: a.wait(lg=tr[u - 1]); store(u - 1, pk - 8)
        for i in range(4): a.lg(f"ds_write_b64 v{vVw+i}, v[{pk+2*i}:{pk+2*i+1}] offset:{2048*u}")
        tr[u] = [a.lg(f"ds_read_b64_tr_b16 v[{pk+4*m+2*jj}:{pk+4*m+2*jj+1}], v{vVr+jj} offset:{2048*u + 1024*m}") for m in range(2) for jj in range(2)]
    a.wait(lg=tr[3]); store(3, PK + 24)
    a("s_branch L_A1_pub")
    a.label("L_A1_w1")
    a.lgq = list(lgq0); a.vmq = list(vmq0)
    gelu_consts(T, vA)
    a(f"v_sub_f32 v{vB}, 0, v{REC}")
    for u in range(4):
        a.wait(lg=toks[u]); shift16(ACC + 16 * u, CS + 16 * u)
        gelu16(ACC + 16 * u, GT, T)
        cvt16(PK + 8 * u, ACC + 16 * u); store(u, PK + 8 * u)
    a.label("L_A1_pub")
    stamp("a1_epi")
    post([vM0, vM1])
    stamp("a1_pub")

def rowmax(dst, s_, first):
    if first: a(f"v_max3_f32 v{dst}, v{s_}, v{s_+1}, v{s_+2}\nv_max_f32 v{dst}, v{dst}, v{s_+3}")
    else: a(f"v_max3_f32 v{dst}, v{dst}, v{s_}, v{s_+1}\nv_max3_f32 v{dst}, v{dst}, v{s_+2}, v{s_+3}")
    for i in range(4, 16, 2): a(f"v_max3_f32 v{dst}, v{dst}, v{s_+i}, v{s_+i+1}")

def stage_A2():
    a.comment("==== A2: attention, 128 queries of one head; wave = 512 keys; slot x holds query tile w^x^3")
    NR = OPT["nr"]
    Q, O, SS, P = 16, 48, 112, 144
    KB = 160; VB = KB + 8 * NR
    T = VB + 8 * NR; MX = 12
    assert T + 16 <= 256
    sH, sQB, sQ0, sK, sV, sK0, sRETRY, sKT0, sOD, sFL, sKVB, sPUB = sA0, sA0+1, sA0+2, sA0+3, sA0+4, sA0+5, sA0+6, sA0+7, sA0+8, sA0+10, sA0+11, sA0+12
    vOo, vW, vR, vKV = 0, 8, 9, 10
    a(f"s_lshr_b32 s{sT0}, s{sLOC}, 4\ns_lshl_b32 s{sH}, s{sXCD}, 1\ns_add_u32 s{sH}, s{sH}, s{sT0}\ns_and_b32 s{sQB}, s{sLOC}, 15")
    sMB = 52
    a(f"s_lshl_b32 s{sT0}, s{sH}, 4\ns_add_u32 s{sT0}, s{sT0}, s{sQB}\ns_lshl_b32 s{sT0}, s{sT0}, 2\ns_add_u32 s{sT0}, s{sT0}, s{sW}\ns_lshl_b32 s{sMB}, s{sT0}, 7")
    a(f"s_lshl_b32 s{sK0}, s{sH}, 18\ns_add_u32 s{sK0}, s{sK0}, {KV_}\ns_lshl_b32 s{sT0}, s{sW}, 16\ns_add_u32 s{sT0}, s{sT0}, s{sK0}\ns_mov_b32 s{sKVB}, s{sT0}\ns_lshl_b32 s{sT0}, s{sQB}, 14\ns_add_u32 s{sK0}, s{sK0}, s{sT0}")
    a(f"s_lshl_b32 s{sQ0}, s{sH}, 17\ns_lshl_b32 s{sT0}, s{sQB}, 13\ns_add_u32 s{sQ0}, s{sQ0}, s{sT0}\ns_add_u32 s{sQ0}, s{sQ0}, {QB_}")
    for kt in range(16): a(f"s_add_u32 s{8+kt}, s{sQB}, {kt}\ns_and_b32 s{8+kt}, s{8+kt}, 15\ns_lshl_b32 s{8+kt}, s{8+kt}, 12")
    a(f"s_mov_b32 s{sRETRY}, 0\ns_mov_b32 s{sPUB}, 0")
    for x in range(4): a(f"s_xor_b32 s{4+x}, s{sW}, {x^3}\ns_lshl_b32 s{4+x}, s{4+x}, 11\ns_add_u32 s{4+x}, s{4+x}, s{sQ0}")
    a(f"v_mul_u32_u24 v{vOo}, {PL}, v{vHH}\nv_lshl_add_u32 v{vOo}, v{vT_}, 4, v{vOo}")
    a(f"s_lshl_b32 s{sT0}, s{sQB}, 2\ns_add_u32 s{sT0}, s{sT0}, s{sW}\ns_lshl_b32 s{sT0}, s{sT0}, 9")
    a(f"s_mul_i32 s{sT1}, s{sH}, {4*PL}\ns_add_u32 s{sT0}, s{sT0}, s{sT1}\ns_add_u32 s{sOD}, s{sT0}, {O_}\ns_add_u32 s{sOD+1}, s{sOD}, {2*PL}")
    a(f"s_lshl_b32 s{sT0}, s{sQB}, 1\ns_lshr_b32 s{sT1}, s{sW}, 1\ns_add_u32 s{sT0}, s{sT0}, s{sT1}\ns_mul_i32 s{sT0}, s{sT0}, {7*256}\ns_lshr_b32 s{sT1}, s{sH}, 2\ns_lshl_b32 s{sT1}, s{sT1}, 6\ns_add_u32 s{sT0}, s{sT0}, s{sT1}")
    a(f"s_and_b32 s{sT1}, s{sH}, 3\ns_lshl_b32 s{sT1}, s{sT1}, 1\ns_and_b32 s{sT2}, s{sW}, 1\ns_add_u32 s{sT1}, s{sT1}, s{sT2}\ns_lshl_b32 s{sT1}, s{sT1}, 3\ns_add_u32 s{sT0}, s{sT0}, s{sT1}\ns_add_u32 s{sFL}, s{sT0}, {MB_O}")
    def ld(dst, soff, imm, vo=vL16): return a.vm(f"buffer_load_dwordx4 v[{dst}:{dst+3}], v{vo}, s[{sWS}:{sWS+3}], s{soff} offen offset:{imm} sc1")
    if OPT["prio_a2"] != OPT["prio_a1"]: a(f"s_setprio {OPT['prio_a2']}")
    if OPT["split"]: spoll([(sF, 4, sMB, MB_A, 2)])
    else: spoll([(sF, 16, sMB, MB_A, 8), (48, 4, sMB, MB_A + 64, 2)])
    stamp("a2_poll")
    k0 = [ld(T, sK0, 0), ld(T + 4, sK0, 1024)]
    qt = [[ld(Q + 8 * x, 4 + x, 0), ld(Q + 8 * x + 4, 4 + x, 1024)] for x in range(4)]
    ND = OPT["nd"]
    BL = [(kt, x) for kt in range(16 - ND) for x in range(4)] + [(kt, x) for kt in range(16 - ND, 16) for x in range(3)] + [(kt, 3) for kt in range(16 - ND, 16)]
    first = {kt: min(n for n, b in enumerate(BL) if b[0] == kt) for kt in range(16)}
    last = {kt: max(n for n, b in enumerate(BL) if b[0] == kt) for kt in range(16)}
    lastx = {x: max(n for n, b in enumerate(BL) if b[1] == x) for x in range(4)}
    order = []
    for kt in range(16):
        for kind in "KV":
            for half in range(2):
                need = first[kt] - 2 if kind == "K" else first[kt] + 1
                free = -99 if kt < NR else (last[kt - NR] if kind == "K" else last[kt - NR] + 2)
                order.append((need, kind, kt, half, free))
    order.sort()
    tok = {}
    sKT = 8
    def issue(e):
        need, kind, kt, half, free = e
        if kind == "K": t = ld(KB + 8 * (kt % NR) + 4 * half, sKT + kt, 1024 * half, vKV)
        else: t = ld(VB + 8 * (kt % NR) + 4 * half, sKT + kt, 2048 + 1024 * half, vKV)
        tok.setdefault((kind, kt), []).append(t)
    def bump(e): pass
    NPRE = 6
    def first_loads():
        for e in order[:NPRE]: issue(e); bump(e)
    def kv_start():
        a(f"v_add_u32 v{vKV}, s{sKVB}, v{vL16}")
        first_loads()
        a(f"s_mul_i32 s{sT0}, s{sW}, 12288\nv_add_u32 v{vW}, s{sT0}, v{vL16}")
    if not OPT["split"]: kv_start()
    pend = order[NPRE:]
    for x in range(4):
        a.wait(vm=k0 + qt[x])
        s_ = SS + 16 * (x & 1)
        mfma(s_, T, Q + 8 * x, first=True); mfma(s_, T + 4, Q + 8 * x + 4)
        if OPT["split"] and x == OPT["split"] - 1:
            spoll([(sF, 16, sMB, MB_A + 16, 8)])
            stamp("a2_kv")
            kv_start()
        if x > 0: rowmax(MX + x - 1, SS + 16 * ((x - 1) & 1), True)
    rowmax(MX + 3, SS + 16, True)
    stamp("a2_max")
    a.label("L_A2_setmax")
    for x in range(4):
        a(f"v_mov_b32 v{T+x}, v{MX+x}")
    for x in range(4):
        a(f"v_permlane32_swap_b32 v{T+x}, v{MX+x}")
    for x in range(4):
        a(f"v_max_f32 v{MX+x}, v{T+x}, v{MX+x}")
    for x in range(4):
        m = MX + x; t = T + 4 * x
        a(f"v_cvt_pk_bf16_f32 v{t}, -v{m}, -v{m}\nv_and_b32 v{t+1}, 0xffff0000, v{t}\nv_sub_f32 v{t+2}, -v{m}, v{t+1}")
        a(f"v_cvt_pk_bf16_f32 v{t+3}, v{t+2}, v{t+2}\nv_and_b32 v{t+3}, 0xffff0000, v{t+3}\nv_sub_f32 v{t+2}, v{t+2}, v{t+3}")
        a(f"v_and_b32 v{t}, 0xffff, v{t}\nv_or_b32 v{t}, v{t}, v{t+3}\nv_cvt_pk_bf16_f32 v{t+2}, v{t+2}, 0")
        a(f"v_cndmask_b32 v{Q+8*x+6}, v{Q+8*x+6}, v{t}, s[{sHI}:{sHI+1}]\nv_cndmask_b32 v{Q+8*x+7}, v{Q+8*x+7}, v{t+2}, s[{sHI}:{sHI+1}]")
        if x == 0:
            a.wait(vm=tok[("K", 0)])
            mfma(SS, KB, Q, first=True); mfma(SS, KB + 4, Q + 4)
    def QK(n, half):
        kt, x = BL[n]
        mfma(SS + 16 * (n & 1), KB + 8 * (kt % NR) + 4 * half, Q + 8 * x + 4 * half, first=(half == 0))
    def PV(n, half):
        kt, x = BL[n]
        mfma(O + 16 * x, VB + 8 * (kt % NR) + 4 * half, P + 8 * (n & 1) + 4 * half, first=(kt == 0 and half == 0))
    def owrite(x, i): a.lg(f"ds_write_b128 v{vW}, v[{O+16*x+4*i}:{O+16*x+4*i+3}] offset:{x*4096 + 1024*i}")
    tk = []
    def oread(x): tk.append([a.lg(f"ds_read_b128 v[{O+16*x+4*i}:{O+16*x+4*i+3}], v{T+8+x} offset:{x*4096 + 1024*i}") for i in range(4)])
    for x in range(3): a(f"s_xor_b32 s{sT0}, s{sW}, {x^3}\ns_mul_i32 s{sT0}, s{sT0}, 12288\nv_add_u32 v{T+8+x}, s{sT0}, v{vL16}")
    a(f"v_mov_b32 v{T+2}, 49152\nv_mov_b32 v{T+3}, 0")
    a.lg(f"ds_write_b32 v{T+2}, v{T+3}")
    if OPT["aw3"]:
        a(f"s_and_b32 s{sT4}, s2, 255\ns_lshl_b32 s{sT4}, s{sT4}, 2\ns_add_u32 s{sT4}, s{sT4}, s{sW}\ns_mul_i32 s{sT4}, s{sT4}, {13*128}\nv_min_u32 v{T+12}, 12, v{vLANE}\nv_lshlrev_b32 v{T+12}, 7, v{T+12}")
    stamp("a2_start")
    if OPT["prio_a1"]: a("s_setprio 0")
    a.hot = True
    for n in range(64):
        if n in (16, 32, 48): stamp(f"a2_b{n}")
        kt, x = BL[n]
        s_ = SS + 16 * (n & 1); p_ = P + 8 * (n & 1)
        e = lambda i: a(f"v_exp_f32 v{s_+i}, v{s_+i}")
        c = lambda i: a(f"v_cvt_pk_bf16_f32 v{p_+i}, v{s_+2*i}, v{s_+2*i+1}")
        sh = [[], [], [], []]
        pre = [[], [], [], []]
        ap = OPT["aprio"] if n < OPT["alate"] else OPT["aprio2"]
        if n == OPT["alate"] and ap == 5: pre[0].append(lambda: a("s_setprio 3"))
        for g in ((0, 2) if n >= OPT['fill'] else (0,)):
            if pend and pend[0][4] <= n:
                ent = pend.pop(0)
                assert ent[0] > n + 1, (ent, n)
                hi = ap == 1 or (ap in (2, 3) and g == 2)
                if hi: pre[g].append(lambda: a("s_setprio 3"))
                sh[g].append(lambda ent=ent: issue(ent))
                if hi: sh[g].append(lambda: a("s_setprio 0"))
                sh[g + 1].append(lambda ent=ent: bump(ent))
        if ap == 2: sh[3].append(lambda: a("s_setprio 3")); sh[1].append(lambda: a("s_setprio 0"))
        if ap == 3: sh[3].append(lambda: a("s_setprio 3")); sh[0].append(lambda: a("s_setprio 0"))
        if ap == 4: sh[3].append(lambda: a("s_setprio 3")); sh[2].append(lambda: a("s_setprio 0"))
        for k2 in range(1, 16):
            if first[k2] - 2 == n: sh[3].append(lambda k2=k2: a.wait(vm=tok[("K", k2)]))
        for k2 in range(16):
            if first[k2] + 1 == n: sh[1].append(lambda k2=k2: a.wait(vm=tok[("V", k2)]))
        if OPT["aw3"] and n == OPT["aw3"]: sh[3].append(lambda: a.vm(f"buffer_load_dword v{T+13}, v{T+12}, s[{sWO}:{sWO+3}], s{sT4} offen"))
        for x2 in range(3):
            if n == lastx[x2] + 2:
                for g in range(4): sh[min(g + 1, 3)].append(lambda g=g, x2=x2: owrite(x2, g))
        if ND >= 4 and n == lastx[2] + 3:
            sh[1].append(lambda: (a.wait_all(vm=False), a("s_barrier")))
            sh[2].append(lambda: oread(0)); sh[3].append(lambda: oread(1))
        if ND >= 4 and n == lastx[2] + 4: sh[0].append(lambda: oread(2))
        mm = [(lambda: QK(n + 1, 0)) if n < 63 else None, (lambda: QK(n + 1, 1)) if n < 63 else None,
              (lambda: PV(n - 1, 0)) if n > 0 else None, (lambda: PV(n - 1, 1)) if n > 0 else None]
        seq = [[("e", 0), ("e", 1), ("e", 2), ("e", 3), ("c", 0)],
               [("e", 4), ("e", 5), ("c", 1), ("e", 6), ("e", 7), ("c", 2)],
               [("e", 8), ("e", 9), ("c", 3), ("e", 10), ("e", 11), ("c", 4)],
               [("e", 12), ("e", 13), ("c", 5), ("e", 14), ("e", 15), ("c", 6), ("c", 7)]]
        for g in range(4):
            for t in pre[g]: t()
            if mm[g]: mm[g]()
            for t in sh[g]: t()
            for k, i in seq[g]: (e if k == "e" else c)(i)
    assert not pend
    a.hot = False
    if OPT["prio_at"]: a(f"s_setprio {OPT['prio_at']}")
    PV(63, 0); PV(63, 1)
    stamp("a2_main")
    R = O + 48
    if ND < 4:
        for x2 in range(3):
            if lastx[x2] + 2 > 63:
                for i in range(4): owrite(x2, i)
        a.wait_all(vm=False); a("s_barrier")
        stamp("a2_cbar")
        for x in range(3): oread(x)
    a.wait(lg=tk[1])
    for i in range(0, 16, 2): a(f"v_pk_add_f32 v[{O+i}:{O+i+1}], v[{O+i}:{O+i+1}], v[{O+16+i}:{O+16+i+1}]")
    a.wait(lg=tk[2])
    for i in range(0, 16, 2): a(f"v_pk_add_f32 v[{O+i}:{O+i+1}], v[{O+i}:{O+i+1}], v[{O+32+i}:{O+32+i+1}]")
    for i in range(0, 16, 2): a(f"v_pk_add_f32 v[{R+i}:{R+i+1}], v[{R+i}:{R+i+1}], v[{O+i}:{O+i+1}]")
    a(f"v_mov_b32 v{T+4}, v{R+12}\nv_mov_b32 v{T+5}, v{R+12}\nv_permlane32_swap_b32 v{T+4}, v{T+5}\nv_rcp_f32 v{vA}, v{T+5}")
    scale16(R)
    cvt16(P, R)
    a(f"v_cndmask_b32 v{P+6}, v{P+6}, v{vZERO}, s[{sHI}:{sHI+1}]\nv_cndmask_b32 v{P+7}, v{P+7}, v{vZERO}, s[{sHI}:{sHI+1}]")
    a(f"s_cmp_lg_u32 s{sPUB}, 0\ns_cbranch_scc1 L_A2_done")
    a.vm(f"buffer_store_dwordx4 v[{P}:{P+3}], v{vOo}, s[{sWS}:{sWS+3}], s{sOD} offen sc1")
    a.vm(f"buffer_store_dwordx4 v[{P+4}:{P+7}], v{vOo}, s[{sWS}:{sWS+3}], s{sOD+1} offen sc1")
    a(f"v_pk_mul_f32 v[{T+6}:{T+7}], v[{R}:{R+1}], 0 op_sel_hi:[1,0]")
    for i in range(2, 16, 2): a(f"v_pk_fma_f32 v[{T+6}:{T+7}], v[{R+i}:{R+i+1}], 0, v[{T+6}:{T+7}] op_sel_hi:[1,0,1]")
    a(f"s_mov_b32 s{sT0}, {hx(f2u(2.0**120))}\nv_cmp_nge_f32 vcc, s{sT0}, v{T+5}\nv_cmp_u_f32 s[{sT2}:{sT3}], v{T+6}, v{T+7}\ns_or_b64 vcc, vcc, s[{sT2}:{sT3}]")
    a(f"s_cmp_lg_u32 s{sRETRY}, 0\ns_cbranch_scc1 L_A2_good\ns_cbranch_vccz L_A2_good")
    a(f"v_mov_b32 v{T+3}, 1\nds_write_b32 v{T+2}, v{T+3}\ns_branch L_A2_done")
    a.label("L_A2_good")
    stamp("a2_st")
    a(f"s_mov_b32 s{sPUB}, 1\nv_lshlrev_b32 v{T+6}, 8, v{vLANE}\ns_mov_b64 exec, 0x7f\ns_waitcnt vmcnt(0)")
    a(f"buffer_store_dwordx2 v[{vNO}:{vNO+1}], v{T+6}, s[{sWS}:{sWS+3}], s{sFL} offen sc1\ns_mov_b64 exec, -1")
    stamp("a2_pub")
    a.label("L_A2_done")
    a.wait_all(vm=False); a("s_barrier")
    a(f"ds_read_b32 v{T+3}, v{T+2}\ns_waitcnt lgkmcnt(0)\nv_readfirstlane_b32 s{sT0}, v{T+3}")
    a(f"s_andn2_b32 s{sT0}, s{sT0}, s{sRETRY}\ns_cmp_lg_u32 s{sT0}, 0\ns_cbranch_scc1 L_A2_fallback")
    stamp_flush()
    a("s_endpgm")
    a.label("L_A2_fallback")
    a(f"s_mov_b32 s{sRETRY}, 1\ns_barrier")
    for x in range(4):
        a(f"v_cndmask_b32 v{Q+8*x+6}, v{Q+8*x+6}, v{vZERO}, s[{sHI}:{sHI+1}]\nv_cndmask_b32 v{Q+8*x+7}, v{Q+8*x+7}, v{vZERO}, s[{sHI}:{sHI+1}]")
        a(f"v_mov_b32 v{MX+x}, 0xff800000")
    a(f"s_mov_b32 s{sK}, 0\ns_mov_b32 s{sT4}, 16")
    a.label("L_A2_fb_loop")
    ld(T, sK, 0, vKV); ld(T + 4, sK, 1024, vKV); a.wait_all()
    for x in range(4):
        mfma(SS, T, Q + 8 * x, first=True); mfma(SS, T + 4, Q + 8 * x + 4)
        rowmax(MX + x, SS, False)
        a("s_nop 7")
    a(f"s_add_u32 s{sK}, s{sK}, 4096\ns_sub_u32 s{sT4}, s{sT4}, 1\ns_cmp_lg_u32 s{sT4}, 0\ns_cbranch_scc1 L_A2_fb_loop")
    a(f"v_lshlrev_b32 v{T+8}, 2, v{vLANE}")
    for x in range(4):
        a(f"s_xor_b32 s{sT0}, s{sW}, {x^3}\ns_lshl_b32 s{sT0}, s{sT0}, 8\ns_lshl_b32 s{sT1}, s{sW}, 10\ns_add_u32 s{sT0}, s{sT0}, s{sT1}")
        a(f"v_add_u32 v{T+9}, s{sT0}, v{T+8}\nds_write_b32 v{T+9}, v{MX+x}")
    a("s_waitcnt lgkmcnt(0)\ns_barrier")
    for x in range(4):
        a(f"s_xor_b32 s{sT0}, s{sW}, {x^3}\ns_lshl_b32 s{sT0}, s{sT0}, 8\nv_add_u32 v{T+9}, s{sT0}, v{T+8}")
        for w2 in range(4): a(f"ds_read_b32 v{T+10+w2}, v{T+9} offset:{1024*w2}")
        a(f"s_waitcnt lgkmcnt(0)\nv_max3_f32 v{MX+x}, v{T+10}, v{T+11}, v{T+12}\nv_max_f32 v{MX+x}, v{MX+x}, v{T+13}")
    a("s_barrier")
    first_loads()
    a.wait_all()
    a("s_nop 7\ns_branch L_A2_setmax")

RES, vWD, vPLN, vGo1, vWr4, vMX, vMG = 232, 248, 250, 251, 252, 254, 255
vWd3, vWr3, vCA3, SEL3, CS43, vXo, vSo, vSH, vST, vCW3, TB = 194, 198, 202, 206, 210, 214, 215, 216, 220, 223, 224
sR64, sCT, sRW, sCW, sSO, sG2 = 75, 76, 77, 78, 79, 80
sRB3, sC3, sW3O, sM03, sK3 = 82, 83, 84, 91, 92
sG4, sW4o, sM04, sWOo, sOo, sX1D, sMB2, sMB3, sOUTD, sST1D = 4, 11, 18, 19, 20, 21, 22, 23, 24, 25
sGS = [80, 81, 99, 3]
NZ = OPT['nz']
CSB3 = 73728
B3 = {}; B4 = {}

def touch(srd_, soff, n):
    for i in range(n): a(f"s_buffer_load_dword s3, s[{srd_}:{srd_+3}], s{soff} offset:{128*i}")

def throttled(thunks, depth):
    toks = []
    for i, t in enumerate(thunks):
        toks += t()
        if len(toks) > depth: a.wait(vm=toks[:len(toks) - depth])
    return toks

def go_poll(st=True):
    if not OPT["go"]: return
    a(f"s_and_b32 s{sT4}, s2, 255\ns_lshl_b32 s{sT4}, s{sT4}, 6")
    spoll([(sT2, 2, sT4, F_GO, 1)])
    if st: stamp("b0_go")

def stage_B0():
    a.comment("==== B0: row statistics of x, prefetches, set-up")
    a.label("L_roleB")
    prev_stamp[0] = 0
    a.vmq = []; a.lgq = []
    T = TB; XR = 16
    a(f"s_lshl_b32 s{sT0}, s{sXCD}, 5\ns_add_u32 s{sT0}, s{sT0}, s{sLOC}\ns_lshl_b32 s{sT0}, s{sT0}, 2\ns_add_u32 s{sT0}, s{sT0}, s{sW}")
    a(f"s_mul_i32 s{sT1}, s{sT0}, {2*896}\ns_lshl_b32 s{sT4}, s{sT0}, 5\ns_add_u32 s{sT4}, s{sT4}, {ST0}")
    a(f"v_mul_u32_u24 v{T}, 896, v{vHH}\nv_lshl_add_u32 v{T}, v{vT_}, 4, v{T}\nv_mov_b32 v{T+1}, 0x7fff0000\nv_cmp_gt_u32 vcc, 28, v{vT_}\nv_cndmask_b32 v{T}, v{T+1}, v{T}, vcc")
    a("s_waitcnt lgkmcnt(0)")
    srd(sX, 4, S * D * 2)
    xl = [a.vm(f"buffer_load_dwordx4 v[{XR+4*i}:{XR+4*i+3}], v{T}, s[{sX}:{sX+3}], s{sT1} offen offset:{448*i}") for i in range(2)]
    stamp("b0_karg")
    srd(sDBG, 22, 256); srd(sWS, 24, WS_SIZE); srd(sW2, 14, D * D * 2); srd(sW3, 16, D * F * 2); srd(sW4, 18, D * F * 2); srd(sWO, 8, D * D * 2); srd(sOUT, 20, S * D * 2)
    a(f"v_mov_b32 v{XR+8}, 0\nv_mov_b32 v{XR+10}, 0\nv_lshlrev_b32 v{T+2}, 4, v{vHH}")
    def touches(items, nwg=256):
        a(f"s_and_b32 s{sT0}, s2, 255\nv_lshlrev_b32 v193, 7, v{vLANE}")
        Lj = newlab("tj")
        for w, (sr_, n) in enumerate(items):
            L = newlab("tc")
            if w < 3: a(f"s_cmp_lg_u32 s{sW}, {w}\ns_cbranch_scc1 {L}")
            if sr_ == "code":
                a(f"s_getpc_b64 s[{sWA}:{sWA+1}]")
                a.label("L_pc")
                a(f"s_sub_u32 s{sWA}, s{sWA}, L_pc-{NAME}_kernel\ns_subb_u32 s{sWA+1}, s{sWA+1}, 0\ns_mov_b32 s{sWA+2}, L_code_end-{NAME}_kernel\ns_mov_b32 s{sWA+3}, 0x20000")
                a(f"s_mov_b32 s{sT0}, s{sLOC}"); sr_ = sWA
            if n == 0:
                a(f"v_lshlrev_b32 v193, 20, v{vLANE}\nv_add_u32 v193, 0x7c000, v193")
            elif n <= 16: a("v_and_b32 v193, 0x7ff, v193")
            a(f"s_mul_i32 s{sT0}, s{sT0}, {n*128}\nbuffer_load_dword v192, v193, s[{sr_}:{sr_+3}], s{sT0} offen")
            if w < 3: a(f"s_branch {Lj}"); a.label(L)
        a.label(Lj)
        a.tok += 1; a.vmq.append(a.tok)
    if OPT["pf"] & 1: touches([(sW2, 13), ("code", 12), (sWS, 0) if OPT["tlb"] else (sW2, 13), (sOUT, 0) if OPT["tlb"] else (sW2, 13)])
    if OPT["tlb"] & 2: touches([(sW3, 0), (sW4, 0), (sWO, 0), (sWO, 0)])
    if OPT["pf"] & 4: touches([(sW3, 49), (sW4, 49), (sWO, 13), (sWO, 13)])
    a(f"s_mul_i32 s{sT0}, s{sLOC}, 37\ns_lshr_b32 s{sT0}, s{sT0}, 8\ns_mul_i32 s{sT1}, s{sT0}, 7\ns_sub_u32 s{sCT}, s{sLOC}, s{sT1}")
    a(f"s_lshl_b32 s{sR64}, s{sXCD}, 2\ns_add_u32 s{sR64}, s{sR64}, s{sT0}\ns_lshr_b32 s{sRW}, s{sW}, 1\ns_and_b32 s{sCW}, s{sW}, 1")
    vXd = 60
    addr_wdma128(vWD, 64); addr_xdma(vXd, 2, 64)
    a.wait(vm=xl)
    stamp("b0_x")
    no = a.vm(f"buffer_load_dwordx2 v[{vNO}:{vNO+1}], v{vZERO}, s[{sDBG}:{sDBG+3}], 0 offen sc1")
    if OPT["pf"] & 16: touches([(sW3, 49), (sW4, 49), (sWO, 13), (sW2, 13)])
    for i in range(8): a(f"v_dot2c_f32_bf16 v{XR+8}, s{sONES}, v{XR+i}\nv_dot2c_f32_bf16 v{XR+10}, v{XR+i}, v{XR+i}")
    for r in (8, 4, 2, 1):
        for v in (XR + 8, XR + 10): a(f"v_add_f32_dpp v{v}, v{v}, v{v} row_ror:{r} row_mask:0xf bank_mask:0xf")
    for v in (XR + 8, XR + 10): a(f"v_mov_b32 v{v+1}, v{v}")
    for v in (XR + 8, XR + 10): a(f"v_permlane16_swap_b32 v{v}, v{v+1}")
    for v in (XR + 8, XR + 10): a(f"v_add_f32 v{v}, v{v}, v{v+1}")
    ln_stats(XR + 8, XR + 10, T)
    a(f"v_add_f32 v{XR+10}, {hx(f2u(EPS))}, v{XR+10}\nv_rsq_f32 v{XR+10}, v{XR+10}")
    a.wait(vm=no); get_nonce(loaded=True)
    a(f"v_mov_b32 v{XR+9}, v{vNO}\nv_mov_b32 v{XR+11}, v{vNO}\ns_mov_b32 exec_lo, 1\ns_mov_b32 exec_hi, 1")
    a(f"buffer_store_dwordx4 v[{XR+8}:{XR+11}], v{T+2}, s[{sWS}:{sWS+3}], s{sT4} offen sc1\ns_mov_b64 exec, -1")
    stamp("b0_rec")
    if OPT["nob"]: stamp_flush(); a("s_endpgm")
    if OPT["l2w3"]:
        nl = OPT["l2w3"]; rounds = (98 + nl - 1) // nl
        a(f"s_lshl_b32 s{sT0}, s{sLOC}, 2\ns_add_u32 s{sT0}, s{sT0}, s{sW}\ns_mul_i32 s{sT0}, s{sT0}, {98*128}\nv_min_u32 v193, {nl-1}, v{vLANE}\nv_lshlrev_b32 v193, 7, v193")
        for r in range(rounds):
            a(f"buffer_load_dword v192, v193, s[{sW3}:{sW3+3}], s{sT0} offen\ns_add_u32 s{sT0}, s{sT0}, {nl*128}\ns_waitcnt vmcnt(0)")
        a.vmq = []
        stamp("b0_l2")
    if OPT["pf"] & 2:
        go_poll(); touches([(sW3, 49), (sW4, 49), (sWO, 13), (sWO, 13)])
    a(f"s_cmp_ge_u32 s{sLOC}, 28\ns_cbranch_scc1 L_helper")
    if OPT["prio_b"]: a(f"s_setprio {OPT['prio_b']}")
    a(f"v_mul_u32_u24 v{vXo}, {PL}, v{vHH}\nv_lshl_add_u32 v{vXo}, v{vT_}, 4, v{vXo}\ns_lshl_b32 s{sT0}, s{sRW}, 9\nv_add_u32 v{vPLN}, s{sT0}, v{vXo}")
    a(f"s_xor_b32 s{sT0}, s{sT0}, 512\nv_add_u32 v{vGo1}, s{sT0}, v{vXo}")
    if OPT["map3"]:
        a(f"s_and_b32 s{sT0}, s{sXCD}, 1\ns_mul_i32 s{sT0}, s{sT0}, 7\ns_add_u32 s{sC3}, s{sT0}, s{sCT}")
        a(f"s_lshr_b32 s{sT0}, s{sXCD}, 1\ns_lshl_b32 s{sT0}, s{sT0}, 2\ns_and_b32 s{sT1}, s{sR64}, 3\ns_add_u32 s{sRB3}, s{sT0}, s{sT1}\ns_lshl_b32 s{sT0}, s{sT1}, 1")
    else:
        a(f"s_cmp_ge_u32 s{sLOC}, 14\ns_cselect_b32 s{sT0}, 1, 0\ns_cselect_b32 s{sT1}, 14, 0\ns_sub_u32 s{sC3}, s{sLOC}, s{sT1}")
        a(f"s_lshl_b32 s{sRB3}, s{sXCD}, 1\ns_add_u32 s{sRB3}, s{sRB3}, s{sT0}\ns_mul_i32 s{sT0}, s{sT0}, 3")
    a(f"s_add_u32 s{sT0}, s{sT0}, s{sCT}\ns_sub_u32 s{sT1}, s{sT0}, 7\ns_cselect_b32 s{sT0}, s{sT0}, s{sT1}")
    rot7(sK3, sT0)
    a(f"s_and_b32 s{sT0}, s{sR64}, 3\ns_lshl_b32 s{sT0}, s{sT0}, 1\ns_add_u32 s{sT0}, s{sT0}, s{sCT}\ns_sub_u32 s{sT1}, s{sT0}, 7\ns_cselect_b32 s{sT0}, s{sT0}, s{sT1}")
    rot7(sG4, sT0)
    a(f"s_mul_i32 s{sT1}, s{sW}, {16*3584}\ns_lshl_b32 s{sT2}, s{sC3}, 8\ns_add_u32 s{sT1}, s{sT1}, s{sT2}")
    a(f"s_mul_i32 s{sT0}, s{sW}, {448*896}\ns_lshl_b32 s{sT2}, s{sCT}, 7\ns_add_u32 s{sT0}, s{sT0}, s{sT2}")
    a(f"s_mul_i32 s{sWOo}, s{sW}, {112*896}\ns_add_u32 s{sWOo}, s{sWOo}, s{sT2}")
    a(f"s_lshl_b32 s{sT2}, s{sR64}, 10\ns_mul_i32 s{sT3}, s{sW}, {56*PL}\ns_add_u32 s{sT3}, s{sT3}, s{sT2}\ns_add_u32 s{sT3}, s{sT3}, {G_}")
    a(f"s_mul_i32 s{sOo}, s{sW}, {16*PL}\ns_add_u32 s{sOo}, s{sOo}, s{sT2}\ns_add_u32 s{sOo}, s{sOo}, {O_}")
    a(f"s_lshl_b32 s{sT4}, s{sRB3}, 2\ns_add_u32 s{sT4}, s{sT4}, s{sW}\ns_lshl_b32 s{sSO}, s{sT4}, 8\ns_add_u32 s{sSO}, s{sSO}, {ST1}\ns_lshl_b32 s{sT4}, s{sT4}, 9")
    for c in range(7):
        a(f"s_mul_i32 s{sW3O+c}, s{sK3+c}, {64*3584}\ns_add_u32 s{sW3O+c}, s{sW3O+c}, s{sT1}")
        a(f"s_mul_i32 s{sW4o+c}, s{sG4+c}, {64*896}\ns_add_u32 s{sW4o+c}, s{sW4o+c}, s{sT0}")
        a(f"s_mul_i32 s{sG4+c}, s{sG4+c}, {8*PL}\ns_add_u32 s{sG4+c}, s{sG4+c}, s{sT3}")
        a(f"s_mul_i32 s{sK3+c}, s{sK3+c}, {8*PL}\ns_add_u32 s{sK3+c}, s{sK3+c}, s{sT4}\ns_add_u32 s{sK3+c}, s{sK3+c}, {X1}")
    a(f"s_mul_i32 s{sT1}, s{sC3}, {16*PL}\ns_add_u32 s{sT4}, s{sT4}, s{sT1}\ns_add_u32 s{sT4}, s{sT4}, {G_}")
    for u in range(4): a(f"s_add_u32 s{sT0}, s{sW}, {u}\ns_and_b32 s{sT0}, s{sT0}, 3\ns_mul_i32 s{sT0}, s{sT0}, {4*PL}\ns_add_u32 s{sGS[u]}, s{sT0}, s{sT4}")
    a(f"s_lshl_b32 s{sM03}, s{sW}, 12\ns_mul_i32 s{sM04}, s{sW}, {NZ*2048}")
    a(f"s_lshl_b32 s{sT2}, s{sCT}, 1\ns_add_u32 s{sT2}, s{sT2}, s{sCW}\ns_mul_i32 s{sT0}, s{sT2}, {4*PL}\ns_lshl_b32 s{sT1}, s{sR64}, 10")
    a(f"s_add_u32 s{sT0}, s{sT0}, s{sT1}\ns_add_u32 s{sX1D}, s{sT0}, {X1}\ns_lshl_b32 s{sST1D}, s{sT2}, 14\ns_add_u32 s{sST1D}, s{sST1D}, {ST1}")
    a(f"s_lshl_b32 s{sT2}, s{sT2}, 6\ns_lshl_b32 s{sT0}, s{sR64}, 1\ns_add_u32 s{sT0}, s{sT0}, s{sRW}\ns_mul_i32 s{sOUTD}, s{sT0}, {32*896}\ns_add_u32 s{sOUTD}, s{sOUTD}, s{sT2}")
    a(f"s_mul_i32 s{sT0}, s{sR64}, 7\ns_add_u32 s{sT0}, s{sT0}, s{sCT}\ns_lshl_b32 s{sT0}, s{sT0}, 2\ns_add_u32 s{sT0}, s{sT0}, s{sW}\ns_lshl_b32 s{sMB2}, s{sT0}, 6")
    a(f"s_mul_i32 s{sT0}, s{sRB3}, 14\ns_add_u32 s{sT0}, s{sT0}, s{sC3}\ns_lshl_b32 s{sT0}, s{sT0}, 2\ns_add_u32 s{sT0}, s{sT0}, s{sW}\ns_lshl_b32 s{sMB3}, s{sT0}, 6")
    a(f"s_lshr_b32 s{sT0}, s{sR64}, 1\ns_mul_i32 s{sT0}, s{sT0}, {14*256}\ns_and_b32 s{sT1}, s{sR64}, 1\ns_lshl_b32 s{sT1}, s{sT1}, 7\ns_add_u32 s{sT0}, s{sT0}, s{sT1}\ns_lshl_b32 s{sT1}, s{sCT}, 3\ns_add_u32 s{sT0}, s{sT0}, s{sT1}\ns_add_u32 s{sT0}, s{sT0}, {MB_X}")
    a(f"v_lshrrev_b32 v{T}, 1, v{vLANE}\nv_lshlrev_b32 v{T}, 8, v{T}\nv_and_b32 v{T+1}, 1, v{vLANE}\nv_lshl_add_u32 v{T}, v{T+1}, 6, v{T}\nv_add_u32 v{vMX}, s{sT0}, v{T}")
    lanes_below(vMX, 28, T)
    lane_div(T, T + 1, vLANE, 14, T + 2)
    a(f"s_lshl_b32 s{sT0}, s{sC3}, 1\nv_add_u32 v{T}, s{sT0}, v{T}\nv_mul_u32_u24 v{T}, 37, v{T}\nv_lshrrev_b32 v{T}, 8, v{T}")
    a(f"v_mul_u32_u24 v{T+2}, 7, v{T}\nv_lshrrev_b32 v{T+2}, 1, v{T+2}\nv_sub_u32 v{T+2}, s{sC3}, v{T+2}\nv_lshlrev_b32 v{T+2}, 3, v{T+2}\nv_lshl_add_u32 v{T+2}, v{T}, 6, v{T+2}")
    a(f"s_mul_i32 s{sT0}, s{sRB3}, {14*256}\ns_add_u32 s{sT0}, s{sT0}, {MB_G}\nv_lshl_add_u32 v{T+2}, v{T+1}, 8, v{T+2}\nv_add_u32 v{vMG}, s{sT0}, v{T+2}")
    lanes_below(vMG, 28, T)
    a(f"s_movk_i32 s{sT3}, 3584")
    addr_wdma256(vWd3, sT3, T)
    addr_wrd256(vWr3, 64, T)
    a(f"s_lshl_b32 s{sT1}, s{sW}, 9\ns_add_u32 s{sT1}, s{sT1}, {CSB3}\nv_lshl_add_u32 v{vCW3}, v{vLANE}, 3, s{sT1}")
    for u in range(4):
        a(f"s_add_u32 s{sT0}, s{sW}, {u}\ns_and_b32 s{sT0}, s{sT0}, 3\ns_lshl_b32 s{sT0}, s{sT0}, 7\ns_add_u32 s{sT0}, s{sT0}, s{sT1}\nv_lshl_add_u32 v{vCA3+u}, v{vHH}, 4, s{sT0}")
    addr_wrd128(vWr4, 4, sCW, sM04, T)
    a(f"v_xor_b32 v{vWr4+1}, 64, v{vWr4}")
    a(f"v_mul_u32_u24 v{vSo}, {7*16384}, v{vHH}\nv_lshl_add_u32 v{vSo}, v{vT_}, 3, v{vSo}")
    a(f"s_lshl_b32 s{sT0}, s{sR64}, 6\ns_lshl_b32 s{sT1}, s{sRW}, 5\ns_add_u32 s{sT0}, s{sT0}, s{sT1}\nv_add_u32 v{T}, s{sT0}, v{vT_}")
    a(f"v_lshlrev_b32 v{vST+2}, 3, v{T}\nv_lshlrev_b32 v{T+4}, 4, v{T}")
    a(f"v_mul_u32_u24 v{T+1}, {PL}, v{vHH}\nv_mov_b32 v{T+3}, 0x7fff0000\ns_movk_i32 s{sT2}, 2048")
    a(f"s_add_u32 s{sT0}, s{sCW}, 1")
    for g, op in enumerate(("v_subrev_u32", "v_add_u32")):
        a(f"{op} v{T+2}, s{sT0}, v{T}\nv_cmp_gt_u32 vcc, s{sT2}, v{T+2}\nv_lshl_add_u32 v{vSH+g}, v{T+2}, 4, v{T+1}\nv_cndmask_b32 v{vSH+g}, v{T+3}, v{vSH+g}, vcc")
    if not OPT["pf"] & 2: go_poll()
    a(f"s_lshl_b32 s{sT0}, s{sR64}, 2\ns_add_u32 s{sT0}, s{sT0}, s{sW}\ns_mul_i32 s{sT0}, s{sT0}, {16*896}\ns_lshl_b32 s{sT1}, s{sCT}, 7\ns_add_u32 s{sT0}, s{sT0}, s{sT1}")
    a(f"s_lshl_b32 s{sT2}, s{sW}, 11"); set_m0(sT2, 57344)
    for q in range(2): a.vm(f"buffer_load_dwordx4 v{vXd+q}, s[{sX}:{sX+3}], s{sT0} offen offset:{1024*q} lds")
    a(f"s_mul_i32 s{sT0}, s{sW}, {112*896}\ns_add_u32 s{sT0}, s{sT0}, s{sT1}\ns_mul_i32 s{sT1}, s{sW}, 14336")
    a(f"s_and_b32 s{sT2}, s{sR64}, 3\ns_lshl_b32 s{sT2}, s{sT2}, 1")
    def w2q(q):
        a(f"s_mul_i32 s{sT4}, s{sT2}, {16*896}\ns_add_u32 s{sT4}, s{sT4}, s{sT0}\ns_lshl_b32 s{sT5}, s{sT2}, 11\ns_add_u32 m0, s{sT5}, s{sT1}")
        tk = [a.vm(f"buffer_load_dwordx4 v{vWD+j}, s[{sW2}:{sW2+3}], s{sT4} offen offset:{1024*j} lds") for j in range(2)]
        if q < 6: a(f"s_add_u32 s{sT2}, s{sT2}, 1\ns_cmp_eq_u32 s{sT2}, 7\ns_cselect_b32 s{sT2}, 0, s{sT2}")
        return tk
    throttled([lambda q=q: w2q(q) for q in range(7)], OPT["thr"])
    REC = 160
    a(f"s_mov_b32 s{sT4}, {ST0}")
    check_record(REC, T + 4, sT4, loaded=False)
    a("s_barrier")
    stamp("b0_w2")
    if OPT["pf"] & 8: touches([(sW3, 56), (sW4, 56), (sWO, 14), (sWO, 14)], 224)
    ACC, W2F, XV, vWr = 16, 48, 164, 172
    a(f"s_mul_i32 s{sT3}, s{sCW}, 28672")
    addr_wrd128(vWr, 4, sCW, sT3, T)
    a(f"v_xor_b32 v{vWr+1}, 64, v{vWr}")
    a(f"v_bfe_u32 v{T}, v{vT_}, 1, 3\ns_lshl_b32 s{sT0}, s{sCW}, 2\nv_xor_b32 v{T}, s{sT0}, v{T}\nv_lshlrev_b32 v{T}, 4, v{T}")
    a(f"v_lshl_add_u32 v{T}, v{vT_}, 7, v{T}\nv_lshl_add_u32 v{T}, v{vHH}, 3, v{T}\ns_lshl_b32 s{sT0}, s{sRW}, 12\nv_add_u32 v{T}, s{sT0}, v{T}")
    for i in range(4):
        a(f"v_xor_b32 v{T+1}, {16*i}, v{T}")
        a.lg(f"ds_read_b64 v[{XV+2*i}:{XV+2*i+1}], v{T+1} offset:57344")
    if not OPT["hall"]:
        for s in range(14):
            for b in range(2):
                for jj in range(2): a.lg(f"ds_read_b64_tr_b16 v[{W2F+8*s+4*b+2*jj}:{W2F+8*s+4*b+2*jj+1}], v{vWr+b} offset:{s*2048 + jj*1024}")
                if len(a.lgq) > 12: a.wait(lg=a.lgq[-11])
        a.wait_all(vm=False); a("s_barrier")
    else:
        a(f"v_mov_b32 v{SEL3}, v{vWr}\nv_mov_b32 v{SEL3+1}, v{vWr+1}")
        a.wait_all(vm=False)
    m0 = [None]
    def issue_w(c, qs=range(4)):
        if m0[0] != c: set_m0(sM03, (c % 5) * 16384); m0[0] = c
        return [a.vm(f"buffer_load_dwordx4 v{vWd3+q}, s[{sW3}:{sW3+3}], s{sW3O+c} offen offset:{1024*q} lds") for q in qs]
    B3["issue_w"] = issue_w; B3["wt"] = {}
    def w3c(c, q):
        t = issue_w(c, (q,)); B3["wt"].setdefault(c, []).extend(t); return t
    B3["pieces"] = [lambda c=c, q=q: w3c(c, q) for c in range(5) for q in range(4)]
    for t in B3["pieces"][:OPT["w3a"]]: t()
    for i in range(8):
        a(f"v_lshlrev_b32 v{RES+2*i}, 16, v{XV+i}\nv_and_b32 v{RES+2*i+1}, 0xffff0000, v{XV+i}")
    a(f"v_mov_b32 v{vA}, v{REC+2}\nv_mul_f32 v{vB}, v{REC}, v{REC+2}\nv_sub_f32 v{vB}, 0, v{vB}")
    for i in range(0, 16, 2):
        a(f"v_pk_fma_f32 v[{ACC+i}:{ACC+i+1}], v[{RES+i}:{RES+i+1}], v[{vA}:{vA+1}], v[{vB}:{vB+1}] op_sel_hi:[1,0,0]")

def helper():
    a.label("L_helper")
    a.vmq = []; a.lgq = []
    prev_stamp[0] = stamp_names.get("b0_rec")
    if OPT["prio_h"]: a(f"s_setprio {OPT['prio_h']}")
    T = TB
    a(f"s_and_b32 s{sT0}, s2, 255\ns_lshl_b32 s{sT0}, s{sT0}, 6")
    spoll([(sT2, 2, sT0, F_AP, 1)])
    stamp("h_go")
    if OPT["htw"]:
        a(f"s_and_b32 s{sT0}, s2, 255\ns_sub_u32 s{sT0}, s{sT0}, 224\ns_lshl_b32 s{sT0}, s{sT0}, 2\ns_add_u32 s{sT0}, s{sT0}, s{sW}\ns_mul_i32 s{sT0}, s{sT0}, {98*128}")
        a(f"v_min_u32 v193, 48, v{vLANE}\nv_lshlrev_b32 v193, 7, v193")
        a.vm(f"buffer_load_dword v192, v193, s[{sW3}:{sW3+3}], s{sT0} offen")
        a(f"s_add_u32 s{sT0}, s{sT0}, {49*128}")
        if OPT["htw"] == 2: a.wait_all(lg=False)
        a.vm(f"buffer_load_dword v192, v193, s[{sW3}:{sW3+3}], s{sT0} offen")
        a.wait_all(lg=False)
    sB = sT4; LD, SUM = 16, 80
    a(f"s_and_b32 s{sB}, s2, 255\ns_sub_u32 s{sB}, s{sB}, 224\ns_cmp_ge_u32 s{sB}, 28\ns_cbranch_scc1 L_nocs")
    a(f"s_mul_i32 s{sT0}, s{sW}, {112*3584}\ns_lshl_b32 s{sT1}, s{sB}, 7\ns_add_u32 s{sT0}, s{sT0}, s{sT1}")
    a(f"v_lshrrev_b32 v{T}, 3, v{vLANE}\nv_mul_u32_u24 v{T}, 3584, v{T}\nv_and_b32 v{T+1}, 7, v{vLANE}\nv_lshl_add_u32 v{T}, v{T+1}, 4, v{T}")
    tk = []
    for i in range(14):
        tk.append(a.vm(f"buffer_load_dwordx4 v[{LD+4*i}:{LD+4*i+3}], v{T}, s[{sW3}:{sW3+3}], s{sT0} offen"))
        if i < 13: a(f"s_add_u32 s{sT0}, s{sT0}, {8*3584}")
        if i >= OPT["hthr"]: a.wait(vm=tk[i - OPT["hthr"]])
    for k in range(8): a(f"v_mov_b32 v{SUM+k}, 0")
    for i in range(14):
        a.wait(vm=tk[i])
        for k in range(4):
            a(f"v_lshlrev_b32 v{T+2}, 16, v{LD+4*i+k}\nv_and_b32 v{T+3}, 0xffff0000, v{LD+4*i+k}\nv_pk_add_f32 v[{SUM+2*k}:{SUM+2*k+1}], v[{SUM+2*k}:{SUM+2*k+1}], v[{T+2}:{T+3}]")
    stamp("h_ld")
    for k in range(8): a(f"v_add_f32_dpp v{SUM+k}, v{SUM+k}, v{SUM+k} row_ror:8 row_mask:0xf bank_mask:0xf")
    for op in ("v_permlane16_swap_b32", "v_permlane32_swap_b32"):
        for k in range(8): a(f"v_mov_b32 v{SUM+8+k}, v{SUM+k}")
        for k in range(8): a(f"{op} v{SUM+k}, v{SUM+8+k}")
        for k in range(8): a(f"v_add_f32 v{SUM+k}, v{SUM+k}, v{SUM+8+k}")
    a(f"s_lshl_b32 s{sT0}, s{sW}, 8\nv_lshlrev_b32 v{T+1}, 5, v{T+1}\nv_add_u32 v{T+2}, s{sT0}, v{T+1}")
    a(f"ds_write_b128 v{T+2}, v[{SUM}:{SUM+3}]\nds_write_b128 v{T+2}, v[{SUM+4}:{SUM+7}] offset:16\ns_waitcnt lgkmcnt(0)\ns_barrier")
    a(f"v_lshlrev_b32 v{T+2}, 2, v{vLANE}")
    for w2 in range(4): a(f"ds_read_b32 v{SUM+w2}, v{T+2} offset:{256*w2}")
    a(f"s_waitcnt lgkmcnt(0)\nv_add_f32 v{SUM}, v{SUM}, v{SUM+1}\nv_add_f32 v{SUM+2}, v{SUM+2}, v{SUM+3}\nv_add_f32 v{SUM}, v{SUM}, v{SUM+2}")
    a(f"s_lshl_b32 s{sT0}, s{sB}, 8\ns_add_u32 s{sT0}, s{sT0}, {CS3}\ns_lshl_b32 s{sT1}, s{sB}, 3\ns_add_u32 s{sT1}, s{sT1}, {F_CS}")
    a(f"s_cmp_lg_u32 s{sW}, 0\ns_cbranch_scc1 L_nocs")
    a(f"buffer_store_dword v{SUM}, v{T+2}, s[{sWS}:{sWS+3}], s{sT0} offen sc1\ns_waitcnt vmcnt(0)")
    publish(sT1, barrier=False)
    a.label("L_nocs")
    a.vmq = []
    stamp("h_cs")
    if OPT["l2w4"]:
        nl = OPT["l2w4"]
        a(f"s_sub_u32 s{sT1}, s{sLOC}, 28\ns_lshl_b32 s{sT1}, s{sT1}, 2\ns_add_u32 s{sT1}, s{sT1}, s{sW}\nv_min_u32 v193, {nl-1}, v{vLANE}\nv_lshlrev_b32 v193, 7, v193")
        for sr_, lines in ((sW4, 784), (sWO, 196)):
            L = newlab("pf"); R = (lines + nl - 1) // nl
            a(f"s_mul_i32 s{sT3}, s{sT1}, {lines*128}\ns_mul_i32 s{sT4}, s{sXCD}, {R}\ns_lshr_b32 s{sT4}, s{sT4}, 3\ns_mov_b32 s{sT2}, {R}")
            a.label(L)
            a(f"s_mul_i32 s{sT0}, s{sT4}, {nl*128}\ns_add_u32 s{sT0}, s{sT0}, s{sT3}")
            a(f"buffer_load_dword v192, v193, s[{sr_}:{sr_+3}], s{sT0} offen\ns_add_u32 s{sT4}, s{sT4}, 1\ns_cmp_eq_u32 s{sT4}, {R}\ns_cselect_b32 s{sT4}, 0, s{sT4}\ns_waitcnt vmcnt(0)")
            a(f"s_sub_u32 s{sT2}, s{sT2}, 1\ns_cmp_lg_u32 s{sT2}, 0\ns_cbranch_scc1 {L}")
    stamp("h_w4"); stamp_flush()
    if OPT["clr"]:
        a(f"s_and_b32 s{sT0}, s2, 255\ns_cmp_lg_u32 s{sT0}, 255\ns_cbranch_scc1 L_end")
        a(f"s_lshl_b32 s{sT0}, s{sW}, 12\ns_add_u32 s{sT0}, s{sT0}, {F_AP}\nv_lshl_add_u32 v{vPO}, v{vLANE}, 6, s{sT0}")
        poll(sleep=32)
        a(f"s_barrier\ns_cmp_lg_u32 s{sW}, 0\ns_cbranch_scc1 L_end\nv_mov_b32 v{vP0}, 0\nv_mov_b32 v{vP0+1}, 0\ns_mov_b64 exec, 1")
        a(f"buffer_store_dwordx2 v[{vP0}:{vP0+1}], v{vZERO}, s[{sDBG}:{sDBG+3}], 0 offen sc1")
    a("s_endpgm")

def stage_B2():
    a.comment("==== B2: x1 = xn + shift(h) @ w2, 64 x 64 tile")
    ACC, W2F, HF, NH = (16, 48, 160, 8) if not OPT['hall'] else (16, 48, 80, 14)
    T = TB
    a(f"s_mul_i32 s{sT0}, s{sCW}, {28*PL}\ns_add_u32 s{sT0}, s{sT0}, {H_}\ns_add_u32 s{sT1}, s{sX1D}, {2*PL}")
    vW, vR = vSH + 2, vSH + 3
    a(f"s_lshl_b32 s{sT2}, s{sW}, 12\ns_add_u32 s{sT2}, s{sT2}, 65536\nv_add_u32 v{vW}, s{sT2}, v{vL16}\nv_xor_b32 v{vR}, 4096, v{vW}")
    if OPT["tw3"]:
        a(f"v_min_u32 v{T}, 55, v{vLANE}\nv_mul_u32_u24 v{T+1}, 37, v{T}\nv_lshrrev_b32 v{T+1}, 9, v{T+1}\nv_mul_u32_u24 v{T+2}, 14, v{T+1}\nv_sub_u32 v{T}, v{T}, v{T+2}")
        a(f"v_mul_u32_u24 v{T+1}, 3584, v{T+1}\nv_lshl_add_u32 v193, v{T}, 7, v{T+1}")
        a(f"s_lshl_b32 s{sT3}, s{sLOC}, 2\ns_add_u32 s{sT3}, s{sT3}, s{sW}\ns_mul_i32 s{sT3}, s{sT3}, {4*3584}\ns_and_b32 s{sT2}, s{sXCD}, 1\ns_mul_i32 s{sT2}, s{sT2}, 1792\ns_add_u32 s{sT3}, s{sT3}, s{sT2}")
        if OPT["tw3"] == 99: a.vm(f"buffer_load_dword v192, v193, s[{sW3}:{sW3+3}], s{sT3} offen")
    rd = {}
    def wrd(s):
        if OPT["hall"] and s < 14:
            rd[s] = [a.lg(f"ds_read_b64_tr_b16 v[{W2F+8*(s%3)+4*b+2*jj}:{W2F+8*(s%3)+4*b+2*jj+1}], v{SEL3+b} offset:{s*2048 + jj*1024}") for b in (1, 0) for jj in range(2)]
    wrd(0); wrd(1)
    stamp("b2_ready")
    spoll([(sF, 8, sMB2, MB_H, 4)])
    stamp("b2_poll")
    ht = []
    def hload():
        ks = len(ht); r = HF + 4 * (ks % NH)
        ht.append(a.vm(f"buffer_load_dwordx4 v[{r}:{r+3}], v{vSH + ks//7}, s[{sWS}:{sWS+3}], s{sT0} offen sc1"))
        if ks < 13: a(f"s_add_u32 s{sT0}, s{sT0}, {2*PL}")
    for ks in range(NH): hload()
    for s in range(14):
        a.wait(vm=ht[s], lg=rd.get(s, []))
        if s == 0: stamp("b2_h0")
        wf = W2F + 8 * (s % 3 if OPT["hall"] else s)
        mfma(ACC + 16, wf + 4, HF + 4 * (s % NH), first=(s == 0))
        wrd(s + 2)
        mfma(ACC, wf, HF + 4 * (s % NH))
        if len(ht) < 14: hload()
        if OPT["tw3"] and s == OPT["tw3"]:
            a.vm(f"buffer_load_dword v192, v193, s[{sW3}:{sW3+3}], s{sT3} offen")
    stamp("b2_main")
    for i in range(4): a.lg(f"ds_write_b128 v{vW}, v[{ACC+16+4*i}:{ACC+16+4*i+3}] offset:{1024*i}")
    a.wait_all(vm=False); a("s_barrier")
    tk = [a.lg(f"ds_read_b128 v[{ACC+16+4*i}:{ACC+16+4*i+3}], v{vR} offset:{1024*i}") for i in range(4)]
    for i in range(4):
        a.wait(lg=tk[i])
        for k in (0, 2): a(f"v_pk_add_f32 v[{ACC+4*i+k}:{ACC+4*i+k+1}], v[{ACC+4*i+k}:{ACC+4*i+k+1}], v[{ACC+16+4*i+k}:{ACC+16+4*i+k+1}]")
    PK = 48; sts = []
    cvt16(PK, ACC)
    for p in range(2):
        a(f"v_permlane32_swap_b32 v{PK+4*p}, v{PK+4*p+2}\nv_permlane32_swap_b32 v{PK+4*p+1}, v{PK+4*p+3}")
        sts.append(a.vm(f"buffer_store_dwordx4 v[{PK+4*p}:{PK+4*p+3}], v{vPLN}, s[{sWS}:{sWS+3}], s{sT1 if p else sX1D} offen sc1"))
    a(f"v_pk_add_f32 v[{T}:{T+1}], v[{ACC}:{ACC+1}], v[{ACC+2}:{ACC+3}]\nv_pk_mul_f32 v[{T+2}:{T+3}], v[{ACC}:{ACC+1}], v[{ACC}:{ACC+1}]")
    a(f"v_pk_fma_f32 v[{T+2}:{T+3}], v[{ACC+2}:{ACC+3}], v[{ACC+2}:{ACC+3}], v[{T+2}:{T+3}]")
    for i in range(4, 16, 2):
        a(f"v_pk_add_f32 v[{T}:{T+1}], v[{T}:{T+1}], v[{ACC+i}:{ACC+i+1}]\nv_pk_fma_f32 v[{T+2}:{T+3}], v[{ACC+i}:{ACC+i+1}], v[{ACC+i}:{ACC+i+1}], v[{T+2}:{T+3}]")
    a(f"v_add_f32 v{T}, v{T}, v{T+1}\nv_add_f32 v{T+2}, v{T+2}, v{T+3}\nv_mov_b32 v{T+1}, v{T}\nv_mov_b32 v{T+3}, v{T+2}")
    a(f"v_permlane32_swap_b32 v{T}, v{T+1}\nv_permlane32_swap_b32 v{T+2}, v{T+3}\nv_add_f32 v{vST}, v{T}, v{T+1}\nv_add_f32 v{vST+1}, v{T+2}, v{T+3}")
    sts.append(a.vm(f"buffer_store_dwordx2 v[{vST}:{vST+1}], v{vST+2}, s[{sWS}:{sWS+3}], s{sST1D} offen sc1"))
    for i in range(0, 16, 2): a(f"v_pk_add_f32 v[{RES+i}:{RES+i+1}], v[{RES+i}:{RES+i+1}], v[{ACC+i}:{ACC+i+1}]")
    stamp("b2_st")
    n0 = OPT["w3a"]; n1 = max(n0, OPT["w3b"])
    for t in B3["pieces"][n0:n1]: t()
    a.wait(vm=sts); a("s_barrier")
    post([vMX], barrier=False)
    stamp("b2_pub")
    n2 = max(n1, OPT["w3c"])
    for t in B3["pieces"][n1:n2]:
        if len(a.vmq) >= OPT["thr3"]: a.wait(vm=a.vmq[-OPT["thr3"]])
        t()
    B3["stream"] = B3["pieces"][n2:]

def stage_B3():
    a.comment("==== B3: g = gelu(LN(x1) @ w3), 128 x 128 tile")
    ACC, XF, NX, WF, ST = 16, 80, 16, 144, 176
    T = TB
    spoll([(sF, 16, sMB3, MB_X, 7)])
    stamp("b3_poll")
    xt = []
    def xload():
        s = len(xt); c, ks = divmod(s, 4); r = XF + 4 * (s % NX)
        so = sK3 + c
        if ks: a(f"s_add_u32 s{sT0}, s{sK3+c}, {2*ks*PL}"); so = sT0
        xt.append(a.vm(f"buffer_load_dwordx4 v[{r}:{r+3}], v{vXo}, s[{sWS}:{sWS+3}], s{so} offen sc1"))
    for s in range(6): xload()
    stt = []; cst = []; cft = []
    def stat_load():
        i = len(stt)
        if i: a(f"s_add_u32 s{sSO}, s{sSO}, 16384")
        stt.append(a.vm(f"buffer_load_dwordx2 v[{ST+2*i}:{ST+2*i+1}], v{vSo}, s[{sWS}:{sWS+3}], s{sSO} offen sc1"))
    GT, PK = 144, 160
    CSR = {0: 128, 1: 80, 2: 96, 3: 112}; toks = {}
    df3 = Deferred()
    def finish_stats():
        a.wait(vm=stt)
        with df3:
            for i in range(2, 14, 2): a(f"v_add_f32 v{ST}, v{ST}, v{ST+i}\nv_add_f32 v{ST+1}, v{ST+1}, v{ST+i+1}")
            a(f"v_mov_b32 v{ST+2}, v{ST}\nv_mov_b32 v{ST+3}, v{ST+1}\ns_nop 0\nv_permlane32_swap_b32 v{ST}, v{ST+2}\nv_permlane32_swap_b32 v{ST+1}, v{ST+3}")
            a(f"v_add_f32 v{ST}, v{ST}, v{ST+2}\nv_add_f32 v{ST+1}, v{ST+1}, v{ST+3}")
            ln_stats(ST, ST + 1, T)
            a(f"v_add_f32 v{ST+1}, {hx(f2u(EPS))}, v{ST+1}\nv_rsq_f32 v{vA}, v{ST+1}\nv_sub_f32 v{vB}, 0, v{ST}")
            gelu_consts(ST + 2, vA)
    def kstep(s):
        th = []
        if OPT["early3"]:
            if s == 18: th.append(finish_stats)
            if s in (22, 23, 25): th.append(lambda u={22: 0, 23: 1, 25: 2}[s]: toks.__setitem__(u, read_cs(CSR[u], vCA3 + u)))
        n = len(xt)
        for k in range(2):
            if n + k < 28 and n + k < s + NX and n + k <= s + 13: th.append(xload)
        if OPT["tw4"]:
            def tch(k):
                if k == 0:
                    a(f"s_lshl_b32 s{sT1}, s{sLOC}, 2\ns_add_u32 s{sT1}, s{sT1}, s{sW}\ns_mul_i32 s{sT2}, s{sT1}, {112*128}\ns_mul_i32 s{sT3}, s{sT1}, {28*128}")
                    a(f"s_and_b32 s{sT1}, s{sXCD}, 1\ns_mul_i32 s{sT1}, s{sT1}, {56*128}\nv_min_u32 v193, 55, v{vLANE}\nv_lshlrev_b32 v193, 7, v193\ns_add_u32 s{sT4}, s{sT2}, s{sT1}")
                    a.vm(f"buffer_load_dword v192, v193, s[{sW4}:{sW4+3}], s{sT4} offen")
                if k == 1:
                    a(f"s_sub_u32 s{sT4}, s{sT2}, s{sT1}\ns_add_u32 s{sT4}, s{sT4}, {56*128}")
                    a.vm(f"buffer_load_dword v192, v193, s[{sW4}:{sW4+3}], s{sT4} offen")
                if k == 2:
                    a(f"v_min_u32 v193, {27*128}, v193")
                    a.vm(f"buffer_load_dword v192, v193, s[{sWO}:{sWO+3}], s{sT3} offen")
            for k in range(3):
                if s == OPT["tw4"] + k * OPT["tw4d"]: th.append(lambda k=k: tch(k))
        if 9 <= s < 16: th.append(stat_load)
        if s == 7:
            def csflag():
                a(f"s_lshl_b32 s{sT0}, s{sC3}, 4\ns_add_u32 s{sT0}, s{sT0}, {F_CS}\nv_and_b32 v{vPO}, 1, v{vLANE}\nv_lshl_add_u32 v{vPO}, v{vPO}, 3, s{sT0}")
                cft.append(a.vm(f"buffer_load_dwordx2 v[{vP0}:{vP0+1}], v{vPO}, s[{sWS}:{sWS+3}], 0 offen sc1"))
            th.append(csflag)
        if s == 13:
            def csload():
                L = newlab("cc")
                a.wait(vm=cft); q = list(a.vmq)
                a(f"v_cmp_ne_u64 vcc, v[{vP0}:{vP0+1}], v[{vNO}:{vNO+1}]\ns_cbranch_vccz {L}")
                poll(); a.label(L); a.vmq = q
                a(f"s_lshl_b32 s{sT0}, s{sC3}, 9\ns_add_u32 s{sT0}, s{sT0}, {CS3}\nv_lshlrev_b32 v{SEL3}, 3, v{vLANE}")
                cst.append(a.vm(f"buffer_load_dwordx2 v[{CS43}:{CS43+1}], v{SEL3}, s[{sWS}:{sWS+3}], s{sT0} offen sc1"))
            th.append(csload)
        if s == 21:
            def cswrite():
                a.wait(vm=cst); a.lg(f"ds_write_b64 v{vCW3}, v[{CS43}:{CS43+1}]")
            th.append(cswrite)
        return th
    hooks = dict(before_barrier=lambda c: None, after_barrier=lambda c: [], lg_need=lambda s: [], vm_need=lambda s: [xt[s]], kstep=kstep)
    PAD[0] = OPT["pad3"]
    panel_mainloop("b3", ACC, WF, vWr3, 5, lambda s: XF + 4 * (s % NX), B3["issue_w"], B3["wt"], hooks, None, None, df3, stream=B3["stream"])
    PAD[0] = 0
    stamp("b3_main")
    if not OPT["early3"]:
        finish_stats(); df3.flush()
    for u in range(4):
        if u not in toks: toks[u] = read_cs(CSR[u], vCA3 + u); a.wait(lg=a.lgq[-9]) if len(a.lgq) > 12 else None
    stamp("b3_csbar")
    def issue_w4(j):
        set_m0(sM04, (j % NZ) * 2048)
        if j < 28:
            c, ks = divmod(j, 4); srd_, base, add = sW4, sW4o + c, ks * 16 * 896
        else:
            hd, m = divmod(j - 28, 2); srd_, base, add = sWO, sWOo, (28 * hd + 16 * m) * 896
        so = base
        if add: a(f"s_add_u32 s{sT5}, s{base}, {add}"); so = sT5
        return [a.vm(f"buffer_load_dwordx4 v{vWD+q}, s[{srd_}:{srd_+3}], s{so} offen offset:{1024*q} lds") for q in range(2)]
    B4["issue_w"] = issue_w4; B4["wt"] = {}
    cnt = [0]
    def hook():
        cnt[0] += 1
        j = len(B4["wt"])
        if cnt[0] == 1: a.wait(lg=toks[3]); a("s_barrier")
        if j < NZ and cnt[0] % 2 == 0:
            if len(a.vmq) >= OPT["thr4"]: a.wait(vm=a.vmq[-OPT["thr4"]])
            B4["wt"][j] = issue_w4(j)
    for u in range(4):
        a.wait(lg=toks[u]); shift16(ACC + 16 * u, CSR[u])
        gelu16(ACC + 16 * u, GT, ST + 2, hook)
        pk = PK + 8 * (u & 1)
        cvt16(pk, ACC + 16 * u)
        a(f"s_add_u32 s{sT1}, s{sGS[u]}, {2*PL}")
        a.vm(f"buffer_store_dwordx4 v[{pk}:{pk+3}], v{vXo}, s[{sWS}:{sWS+3}], s{sGS[u]} offen sc1")
        a.vm(f"buffer_store_dwordx4 v[{pk+4}:{pk+7}], v{vXo}, s[{sWS}:{sWS+3}], s{sT1} offen sc1")
    assert len(B4["wt"]) == NZ
    stamp("b3_epi")
    sts = a.vmq[-2:]
    NRG = OPT["nrg"]; WR = 144
    def wfrag(j):
        a.wait(vm=B4["wt"][j])
        for b in range(2):
            for jj in range(2):
                r = wreg(j) + 4 * b + 2 * jj
                a.lg(f"ds_read_b64_tr_b16 v[{r}:{r+1}], v{vWr4+b} offset:{(j%NZ)*2048 + jj*1024}")
        if len(a.lgq) > 8: a.wait(lg=a.lgq[-5])
    for i in range(16): a(f"v_mov_b32 v{ACC+i}, v{RES+i}")
    for j in range(min(NRG, NZ)): wfrag(j)
    a(f"s_add_u32 s{sT1}, s{sMB2}, {MB_O}\nv_and_b32 v{T}, 7, v{vLANE}\nv_lshl_add_u32 v{T+7}, v{T}, 3, s{sT1}")
    a.wait_all(vm=False)
    assert NRG <= NZ
    n1 = min(NRG, OPT["w4b"]); n2 = min(NRG, max(n1, OPT["w4c"]))
    for j in range(n1): B4["wt"][NZ + j] = issue_w4(NZ + j)
    a.wait(vm=sts); a("s_barrier")
    post([vMG], barrier=False)
    stamp("b3_pub")
    for j in range(n1, n2): B4["wt"][NZ + j] = issue_w4(NZ + j)
    B4["stream"] = list(range(NZ + n2, NZ + NRG))

def wreg(j):
    n1 = 8 + (8 - OPT["ng"])
    return 80 + 8 * OPT["ng"] + 8 * j if j < n1 else RES + 8 * (j - n1)

def stage_B4():
    a.comment("==== B4: out = x + x1 + g @ w4 + o @ wo, 64 x 64 tile, k split over the waves")
    ACC, GF, WR, WF, T = 16, 80, 144, 208, TB
    NRG = OPT["nrg"]; NG = OPT["ng"]
    vGo = [vPLN, vGo1]; vPO2 = T + 7
    wt = B4["wt"]; issue_w = B4["issue_w"]
    rd = {}; gt = {}
    J0 = 28 if OPT["late0"] else 36
    def wfr(j, b):
        if j < NRG: return wreg(j) + 4 * b
        if j >= J0 and b == 0: return WR + 4 * (j - J0)
        return WF + 8 * (j & 1) + 4 * b
    def reads(j):
        rd[j] = []
        if j < NRG: return []
        a.wait(vm=wt[j])
        return [lambda b=b, jj=jj: rd[j].append(a.lg(f"ds_read_b64_tr_b16 v[{wfr(j, b)+2*jj}:{wfr(j, b)+2*jj+1}], v{vWr4+b} offset:{(j%NZ)*2048 + jj*1024}")) for b in range(2) for jj in range(2)]
    def gload(j):
        if j < 28:
            c, ks = divmod(j, 4); base, add = sG4 + c, 2 * ks * PL
        else: base, add = sOo, 2 * (j - 28) * PL
        so = base
        if add: a(f"s_add_u32 s{sT4}, s{base}, {add}"); so = sT4
        r = GF + 8 * (j % NG)
        gt[j] = [a.vm(f"buffer_load_dwordx4 v[{r+4*aa}:{r+4*aa+3}], v{vGo[aa]}, s[{sWS}:{sWS+3}], s{so} offen sc1") for aa in range(2)]
    ot = []
    def ocheck():
        L = newlab("oc"); q = None
        a.wait(vm=ot)
        q = list(a.vmq); ql = list(a.lgq)
        a(f"v_cmp_ne_u64 vcc, v[{vP0}:{vP0+1}], v[{vNO}:{vNO+1}]\ns_cbranch_vccz {L}")
        spoll([(sF, 16, sMB2, MB_O, 8)])
        a.label(L)
        a.vmq = q; a.lgq = ql
        stamp("b4_opoll")
    for t in reads(0): t()
    spoll([(sF, 8, sMB2, MB_G, 4)])
    stamp("b4_poll")
    for j in range(4): gload(j)
    PAD[0] = OPT["pad4"]
    jo = 28 - OPT["olead"]
    def step(j, oloads):
        a.wait(vm=gt[j], lg=rd[j])
        if j in (0, 14): stamp(f"b4_j{j}")
        rds = reads(j + 1) if j + 1 < 36 else []
        late = []
        n = len(gt)
        if j == jo - 3 and not OPT["noattn"]:
            late.append(lambda: ot.append(a.vm(f"buffer_load_dwordx2 v[{vP0}:{vP0+1}], v{vPO2}, s[{sWS}:{sWS+3}], 0 offen sc1")))
        if j == jo - 1 and not OPT["noattn"] and not OPT["adapt"]: late.append(ocheck)
        for k in range(2):
            if n + k < 36 and n + k <= j + NG - 1 and (n + k < 28 or (oloads and j >= jo)): late.append(lambda k=n + k: gload(k))
        if B4["stream"] and j >= 1: late.append(lambda k=B4["stream"].pop(0): wt.__setitem__(k, issue_w(k)))
        if j + NZ < 36 and j >= NRG: late.append(lambda j=j: wt.__setitem__(j + NZ, issue_w(j + NZ)))
        g = GF + 8 * (j % NG)
        for u in ((0, 1, 2, 3) if j < J0 else (1, 2, 3)):
            aa, b = divmod(u, 2)
            mfma(ACC + 16 * u, wfr(j, b), g + 4 * aa, first=(j == 0 and u > 0))
            if rds:
                for t in rds: t()
                rds = []
            elif late: late.pop(0)()
        for t in late: t()
    for j in range(jo): step(j, True)
    if OPT["adapt"]:
        a.wait(vm=ot)
        a(f"v_cmp_ne_u64 vcc, v[{vP0}:{vP0+1}], v[{vNO}:{vNO+1}]\ns_cbranch_vccnz L_B4_late")
        st = (list(a.vmq), list(a.lgq), dict(gt), {k: list(v) for k, v in rd.items()}, dict(wt), prev_stamp[0])
        stamp("b4_opoll")
        for j in range(jo, 36): step(j, True)
        a("s_branch L_B4_join")
        a.label("L_B4_late")
        a.vmq, a.lgq = list(st[0]), list(st[1]); gt.clear(); gt.update(st[2]); rd.clear(); rd.update(st[3]); wt.clear(); wt.update(st[4]); prev_stamp[0] = st[5]
        for j in range(jo, 28): step(j, False)
        ql = list(a.lgq)
        spoll([(sF, 16, sMB2, MB_O, 8)])
        stamp("b4_opoll")
        for j in range(28, 36): gload(j)
        for j in range(28, 36): step(j, True)
        a.label("L_B4_join")
    else:
        for j in range(jo, 36): step(j, True)
    PAD[0] = 0
    stamp("b4_o")
    vW, vR = T, T + 1
    a(f"v_add_u32 v{vW}, s{sM04}, v{vL16}\nv_mul_u32_u24 v{T+2}, 896, v{vT_}\nv_lshl_add_u32 v{T+2}, v{vHH}, 4, v{T+2}")
    wr = [lambda u=u, i=i: a.lg(f"ds_write_b128 v{vW}, v[{ACC+16*u+4*i}:{ACC+16*u+4*i+3}] offset:{(u-1)*4096 + 1024*i}") for u in range(1, 4) for i in range(4)]
    for j in range(J0, 36):
        mfma(ACC, wfr(j, 0), GF + 8 * (j % NG))
        if j > J0 + 1:
            for t in wr[:2]: t()
            wr = wr[2:]
    for t in wr: t()
    a.wait_all(vm=False); a("s_barrier")
    stamp("b4_rbar")
    tk = []
    for u in range(1, 4):
        a(f"s_xor_b32 s{sT0}, s{sW}, {u}\ns_mul_i32 s{sT0}, s{sT0}, {NZ*2048}\nv_add_u32 v{vR}, s{sT0}, v{vL16}")
        tk.append([a.lg(f"ds_read_b128 v[{ACC+16*u+4*i}:{ACC+16*u+4*i+3}], v{vR} offset:{(u-1)*4096 + 1024*i}") for i in range(4)])
    for u in range(1, 4):
        a.wait(lg=tk[u - 1])
        for i in range(0, 16, 2): a(f"v_pk_add_f32 v[{ACC+i}:{ACC+i+1}], v[{ACC+i}:{ACC+i+1}], v[{ACC+16*u+i}:{ACC+16*u+i+1}]")
    PK = GF
    cvt16(PK, ACC)
    for p in range(2):
        a(f"v_permlane32_swap_b32 v{PK+4*p}, v{PK+4*p+2}\nv_permlane32_swap_b32 v{PK+4*p+1}, v{PK+4*p+3}")
        a.vm(f"buffer_store_dwordx4 v[{PK+4*p}:{PK+4*p+3}], v{T+2}, s[{sOUT}:{sOUT+3}], s{sOUTD} offen offset:{32*p}" + ["", " sc1", " nt", " sc0 sc1"][OPT["outsc"]])
    stamp("b4_end"); stamp_flush()

HEAD = f"""; out = x + MHA(LN(x)) + MixerMLP(LN(x))     S=2048 D=448 H=16 Dh=28 F=1792, bf16 in / out
;
; Hand-offs go through d_ws: write-through (sc1) stores, s_waitcnt, then an 8-byte tag written into the consumer's mailbox.
; The tag is a clock reading taken by workgroup 0 and passed on through d_debug, so words left in d_ws by the harness or by an
; earlier launch never match.  Consumers poll (bounded) and read the data with sc1 loads; nothing depends on XCD placement.
; (row sum < 2^120, all outputs finite) sends the workgroup to a second pass with the exact row maximum otherwise.
; @launch grid=(512,1,1) block=(256,1,1) lds={LDS_BYTES}
.amdgcn_target "amdgcn-amd-amdhsa--gfx950"
.text
.globl {NAME}_kernel
.p2align 8
.type {NAME}_kernel,@function
{NAME}_kernel:
"""
TAIL = f""".section .rodata,"a"
.p2align 6
.amdhsa_kernel {NAME}_kernel
  .amdhsa_next_free_vgpr 256
  .amdhsa_next_free_sgpr 102
  .amdhsa_accum_offset 256
  .amdhsa_group_segment_fixed_size 0
  .amdhsa_kernarg_size 88
  .amdhsa_user_sgpr_count 2
  .amdhsa_user_sgpr_kernarg_segment_ptr 1
  .amdhsa_system_sgpr_workgroup_id_x 1
.end_amdhsa_kernel
"""

def build():
    prologue()
    stage_A1()
    if OPT["noattn"]: stamp_flush(); a("s_endpgm")
    else: stage_A2()
    stage_B0()
    stage_B2()
    stage_B3()
    stage_B4()
    a.label("L_end")
    a("s_endpgm")
    helper()
    a.label("L_code_end")
    a.pad_hazards()
    size, nprom, nnop = fix_straddles(a, HEAD, TAIL, verbose=True)
    print(f"code bytes {size}, hazard nops {a.nops_inserted}, promoted {nprom}, straddle nops {nnop}")
    open(sys.argv[1], "w").write(HEAD + a.text() + TAIL + (("; roles: BA\n" if OPT["swap"] else "") + "; stamps: " + ",".join(stamp_names) + "\n" if OPT["stamps"] else ""))

if __name__ == "__main__":
    build()
```
